```python
import torch

def _softmax(x, axis=-1):
    return torch.softmax(x, dim=axis)
def _gelu(x):
    return torch.nn.functional.gelu(x, approximate="tanh")
def _silu(x):
    return torch.nn.functional.silu(x)
def _sigmoid(x):
    return torch.sigmoid(x)
def _layernorm(x, axis=-1, eps=1e-5):
    m = x.mean(dim=axis, keepdim=True)
    v = x.var(dim=axis, keepdim=True, unbiased=False)
    return (x - m) / torch.sqrt(v + eps)
def _scatter_add(tgt, idx, src, axis=0):
    return tgt.clone().index_add_(axis, idx, src)
def _segment_sum(src, seg, n):
    out = torch.zeros((n,) + src.shape[1:], dtype=src.dtype)
    return out.index_add_(0, seg, src)
def _pad(x, pw):
    flat = tuple(v for pair in reversed(pw) for v in pair)
    return torch.nn.functional.pad(x, flat)

kernel_name = 'concat_heads__sliding_block__mha_block__prompt'

def setup_inputs():

    _w = (lambda a: (lambda t: t.to(torch.bfloat16) if t.is_floating_point() else t)(torch.as_tensor(a)))
    def _A_setup():
        B, S, D = 1, 2048, 640
        return {
            "x": _w((lambda *s: torch.randn(*s, dtype=torch.bfloat16) * 0.4)(B, S, D)),
            "wqkv": _w((lambda *s: torch.randn(*s, dtype=torch.bfloat16) * 0.4)(D, 3 * D)),
            "wo": _w((lambda *s: torch.randn(*s, dtype=torch.bfloat16) * 0.05)(D, D)),
        }
    _A_in = _A_setup()

    def _B_setup():
        B, S, D, H = 1, 2048, 640, 32
        return {
            "x": _w((lambda *s: torch.randn(*s, dtype=torch.bfloat16) * 0.2)(B, S, D)),
            "wqkv": _w((lambda *s: torch.randn(*s, dtype=torch.bfloat16) * 0.4)(D, 3 * D)),
            "wo": _w((lambda *s: torch.randn(*s, dtype=torch.bfloat16) * 0.1)(D, D)),
        }
    _B_in = _B_setup()

    return {
        "A_x": _A_in["x"],
        "A_wqkv": _A_in["wqkv"],
        "A_wo": _A_in["wo"],
        "B_x": _B_in["x"],
        "B_wqkv": _B_in["wqkv"],
        "B_wo": _B_in["wo"],
    }

def reference(A_x, A_wqkv, A_wo, B_x, B_wqkv, B_wo):
    def _A_ref(x, wqkv, wo):
        B, S, D = x.shape
        H = 32; Dh = D // H; W = 256
        qkv = (lambda x, *d: x.permute(*d))((x @ wqkv).reshape(B, S, 3, H, Dh), 2, 0, 3, 1, 4)
        q, k, v = qkv[0], qkv[1], qkv[2]
        scores = torch.einsum("bhqd,bhkd->bhqk", q, k) * (Dh ** -0.5)
        idx = torch.arange(S)
        mask = (idx[:, None] - idx[None, :] >= 0) & (idx[:, None] - idx[None, :] < W)
        scores = torch.where(mask[None, None], scores, -1e9)
        p = _softmax(scores, axis=-1)
        o = torch.einsum("bhqk,bhkd->bhqd", p, v)
        return (lambda x, *d: x.permute(*d))(o, 0, 2, 1, 3).reshape(B, S, D) @ wo

    def _B_ref(x, wqkv, wo):
        B, S, D = x.shape
        H = 32
        Dh = D // H
        qkv = (lambda x, *d: x.permute(*d))((x @ wqkv).reshape(B, S, 3, H, Dh), 2, 0, 3, 1, 4)
        q, k, v = qkv[0], qkv[1], qkv[2]
        scores = torch.einsum("bhqd,bhkd->bhqk", q, k) * (Dh ** -0.5)
        p = _softmax(scores, axis=-1)
        o = torch.einsum("bhqk,bhkd->bhqd", p, v)
        return (lambda x, *d: x.permute(*d))(o, 0, 2, 1, 3).reshape(B, S, D) @ wo

    a = _A_ref(A_x, A_wqkv, A_wo)
    b = _B_ref(B_x, B_wqkv, B_wo)
    return torch.concatenate([a, b], axis=-1)
```

```python
import sys, math

NAME='concat_heads__sliding_block__mha_block__prompt'
WS_Q=0
WS_KV=2*32*64*1280
WS_O=WS_KV+2*32*64*2560
WS_END=WS_O+2*2048*1280
CSCALE=(20.0**-0.5)*math.log2(math.e)
import struct
def f32bits(x): return struct.unpack('<I',struct.pack('<f',x))[0]

class A:
    def __init__(s): s.l=[]
    def __call__(s,x): s.l.append('  '+x)
    def lab(s,x): s.l.append(x+':')
    def c(s,x): s.l.append('  ; '+x)
    def raw(s,x): s.l.append(x)
    def txt(s): return '\n'.join(s.l)+'\n'

def vr(a,n=1): return f'v{a}' if n==1 else f'v[{a}:{a+n-1}]'
def sr(a,n=1): return f's{a}' if n==1 else f's[{a}:{a+n-1}]'

def kd(name, vgpr, sgpr=96):
    return f'''.section .rodata,"a"
.p2align 6
.amdhsa_kernel {name}
  .amdhsa_next_free_vgpr {vgpr}
  .amdhsa_next_free_sgpr {sgpr}
  .amdhsa_accum_offset {(vgpr+3)//4*4}
  .amdhsa_group_segment_fixed_size 0
  .amdhsa_kernarg_size 72
  .amdhsa_user_sgpr_count 2
  .amdhsa_user_sgpr_kernarg_segment_ptr 1
  .amdhsa_system_sgpr_workgroup_id_x 1
.end_amdhsa_kernel
.text
'''

PROF=False
PROF_BASE=32<<20
class Prof:
    def __init__(s,a,kid): s.a=a; s.n=0; s.kid=kid
    def stamp(s):
        if not PROF: return
        s.a(f's_memtime s[{60+2*s.n}:{61+2*s.n}]'); s.n+=1
    def real(s,idx):
        if not PROF: return
        s.a(f's_memrealtime s[{84+2*idx}:{85+2*idx}]')
    def dump(s,wave_sgpr,nwaves,n=None):
        if not PROF: return
        a=s.a
        n=n or s.n
        a('s_waitcnt lgkmcnt(0) vmcnt(0)')
        a('s_load_dwordx2 s[88:89], s[0:1], 64')
        a(f's_mul_i32 s90, s2, {nwaves}')
        a(f's_add_u32 s90, s90, s{wave_sgpr}')
        a('s_lshl_b32 s90, s90, 6')
        a(f's_add_u32 s90, s90, {PROF_BASE+s.kid*(1<<20)}')
        a('s_waitcnt lgkmcnt(0)')
        a('s_add_u32 s88, s88, s90')
        a('s_addc_u32 s89, s89, 0')
        a('v_mov_b32 v0, 0')
        a('s_mov_b64 exec, 1')
        for i in range(n):
            a(f'v_mov_b32 v1, s{60+2*i}')
            a(f'global_store_dword v0, v1, s[88:89] offset:{4*i}')
        a('v_mov_b32 v1, s84'); a('global_store_dword v0, v1, s[88:89] offset:56')
        a('v_mov_b32 v1, s86'); a('global_store_dword v0, v1, s[88:89] offset:60')
        a('s_waitcnt vmcnt(0)')

def head(a,name):
    a.raw(f'.globl {name}')
    a.raw('.p2align 8')
    a.raw(f'.type {name},@function')
    a.lab(name)

def srd(a, d, lo, hi, nbytes):
    a(f's_mov_b32 s{d}, s{lo}')
    a(f's_and_b32 s{d+1}, s{hi}, 0xffff')
    a(f's_mov_b32 s{d+2}, {nbytes}')
    a(f's_mov_b32 s{d+3}, 0x20000')

def gen_qkv(R=5, D=4, WP=2, spread=True, noload=False):
    a=A(); name='qkv_kernel'
    head(a,name)
    p=Prof(a,0)
    NT=15
    sX,sW,sO=4,8,12
    sBR,sMT,sNT,sWV=26,27,28,29
    sKS=31
    sXo,sW0,sW1=32,33,34
    sLW=35
    sIT=36
    sXN,sWN=37,38
    sLeft=39
    sT=40
    st0,st1,st2,st3=41,42,43,44
    sG=45
    vLane=1; vX0=2; vX1=3; vW0=4; vW1=5; vt0=6; vt1=7; vt2=8; vt3=9; vt4=10; vTok=11; vG=12; vRho=13
    nsets=(R*16384+65535)//65536
    vTr=14
    vXr=(vTr+8*nsets+3)//4*4
    vWf=vXr+8*R
    vHl=vWf+4*(D+1)
    vRs=vHl+5
    vVa=vRs+10
    vAcc=(vVa+5+3)//4*4
    vEnd=vAcc+120
    assert vEnd<=256, vEnd
    def acc(cp,u): return vAcc+(cp*2+u)*4
    def xr(slot,u): return vXr+(slot*2+u)*4
    def wf(i): return vWf+(i%(D+1))*4

    a('s_cmp_ge_u32 s2, 256')
    a(f's_cbranch_scc1 L_{name}_end')
    p.real(0); p.stamp()
    a('s_load_dwordx4 s[16:19], s[0:1], 0')
    a('s_load_dwordx4 s[20:23], s[0:1], 24')
    a('s_load_dwordx2 s[24:25], s[0:1], 64')
    a(f'v_and_b32 v{vLane}, 63, v0')
    a(f'v_lshrrev_b32 v{vt0}, 6, v0')
    a(f's_and_b32 s{st0}, s2, 7')
    a(f's_lshr_b32 s{st1}, s2, 3')
    a(f'v_readfirstlane_b32 s{sWV}, v{vt0}')
    a(f's_lshr_b32 s{sBR}, s{st0}, 2')
    a(f's_bfe_u32 s{st2}, s{st0}, 0x10001')
    a(f's_lshl_b32 s{st2}, s{st2}, 3')
    a(f's_and_b32 s{st3}, s{st1}, 7')
    a(f's_add_u32 s{sMT}, s{st2}, s{st3}')
    a(f's_and_b32 s{st2}, s{st0}, 1')
    a(f's_lshl_b32 s{st2}, s{st2}, 2')
    a(f's_lshr_b32 s{st1}, s{st1}, 3')
    a(f's_add_u32 s{sNT}, s{st2}, s{st1}')
    a(f's_mul_i32 s{st3}, s{st3}, 5')
    a(f's_lshr_b32 s{st3}, s{st3}, 1')
    a(f's_mul_i32 s{st1}, s{st1}, 5')
    a(f's_add_u32 s{sKS}, s{st3}, s{st1}')
    a(f's_cmp_ge_u32 s{sKS}, 20')
    a(f's_cselect_b32 s{st0}, 20, 0')
    a(f's_sub_u32 s{sKS}, s{sKS}, s{st0}')
    a(f's_lshl_b32 s{sT}, s{sMT}, 2')
    a(f's_add_u32 s{sT}, s{sT}, s{sWV}')
    a(f's_lshl_b32 s{sLW}, s{sWV}, 12')
    a(f'v_and_b32 v{vTok}, 15, v{vLane}')
    a(f'v_lshrrev_b32 v{vG}, 4, v{vLane}')
    a(f's_lshl_b32 s{st0}, s{sT}, 5')
    a(f'v_add_u32 v{vt0}, s{st0}, v{vTok}')
    a(f'v_mul_u32_u24 v{vt0}, 1280, v{vt0}')
    a(f'v_lshl_add_u32 v{vX0}, v{vG}, 4, v{vt0}')
    a(f'v_add_u32 v{vX1}, 20480, v{vX0}')
    a(f'v_lshrrev_b32 v{vt0}, 5, v{vLane}')
    a(f'v_bfe_u32 v{vt1}, v{vLane}, 1, 4')
    a(f'v_and_b32 v{vt2}, 1, v{vLane}')
    a(f's_and_b32 s{st0}, s{sWV}, 1')
    a(f's_lshl_b32 s{st0}, s{st0}, 2')
    a(f's_mul_i32 s{st1}, s{sNT}, 480')
    a(f's_lshl_b32 s{st2}, s{sWV}, 3')
    for j,vW in ((0,vW0),(1,vW1)):
        a(f'v_add_u32 v{vt3}, s{st0}, v{vt0}')
        if j: a(f'v_add_u32 v{vt3}, 2, v{vt3}')
        a(f'v_xor_b32 v{vt3}, v{vt3}, v{vt1}')
        a(f'v_lshl_add_u32 v{vt4}, v{vt3}, 1, v{vt2}')
        a(f'v_lshlrev_b32 v{vt4}, 4, v{vt4}')
        a(f'v_add_u32 v{vW}, s{st2}, v{vt0}')
        if j: a(f'v_add_u32 v{vW}, 2, v{vW}')
        a(f'v_mul_u32_u24 v{vW}, 3840, v{vW}')
        a(f'v_cmp_eq_u32 s[46:47], 15, v{vt3}')
        a(f'v_add3_u32 v{vW}, v{vW}, v{vt4}, s{st1}')
        a(f'v_mov_b32 v{vt4}, 0x70000000')
        a(f'v_cndmask_b32 v{vW}, v{vW}, v{vt4}, s[46:47]')
    a('s_waitcnt lgkmcnt(0)')
    a(f's_cmp_eq_u32 s{sBR}, 0')
    a('s_cselect_b64 s[16:17], s[16:17], s[20:21]')
    a('s_cselect_b64 s[18:19], s[18:19], s[22:23]')
    srd(a,sX,16,17,2048*1280)
    srd(a,sW,18,19,640*3840)
    srd(a,sO,24,25,WS_O)
    a(f's_mov_b32 s{sXN}, {2048*1280}')
    a(f's_mov_b32 s{sWN}, {640*3840}')
    a(f's_mov_b32 s{sLeft}, 20')

    def lg_setup():
        a(f's_cmp_gt_i32 s{sLeft}, 0')
        a(f's_cselect_b32 s{sX+2}, s{sXN}, 0')
        a(f's_cselect_b32 s{sW+2}, s{sWN}, 0')
        a(f's_sub_u32 s{sLeft}, s{sLeft}, 1')
        a(f's_mul_i32 s{sW0}, s{sKS}, {32*3840}')
        a(f's_lshl_b32 s{sXo}, s{sKS}, 6')
        a(f's_add_u32 s{sW1}, s{sW0}, {4*3840}')
        a(f's_add_u32 s{sKS}, s{sKS}, 1')
        a(f's_cmp_eq_u32 s{sKS}, 20')
        a(f's_cselect_b32 s{sKS}, 0, s{sKS}')
    def lg_load(slot,j):
        if noload and j>=0 and inloop[0]: return
        if j<4:
            a(f's_add_u32 m0, s{sLW}, {slot*16384+j*1024}')
            a(f'buffer_load_dwordx4 v{vW0+(j&1)}, s[{sW}:{sW+3}], s{sW0 if j<2 else sW1} offen lds')
        else:
            u=j-4
            a(f'buffer_load_dwordx4 {vr(xr(slot,u),4)}, v{vX0+u}, s[{sX}:{sX+3}], s{sXo} offen')
    inloop=[False]
    p.stamp()
    SYNC=NT-D-1
    lpos=[1,3,5,8,10,12] if spread else [0]*6
    npre=sum(1 for x in lpos if SYNC+x<NT)
    for slot in range(R-1):
        lg_setup()
        for j in range(6 if slot<R-2 else npre): lg_load(slot,j)
    p.stamp()

    a(f'v_and_b32 v{vt0}, 3, v{vLane}')
    a(f'v_bfe_u32 v{vt1}, v{vLane}, 2, 2')
    a(f'v_and_b32 v{vt2}, 1, v{vG}')
    a(f'v_lshl_or_b32 v{vt2}, v{vt2}, 2, v{vt1}')
    a(f'v_lshl_add_u32 v{vt3}, v{vG}, 3, v{vt1}')
    a(f'v_lshlrev_b32 v{vt3}, 9, v{vt3}')
    a(f'v_lshl_add_u32 v{vt3}, v{vt0}, 3, v{vt3}')
    for b in range(8):
        a(f'v_xor_b32 v{vt4}, {b}, v{vt2}')
        a(f'v_lshl_add_u32 v{vTr+b}, v{vt4}, 5, v{vt3}')
        for k in range(1,nsets):
            a(f'v_add_u32 v{vTr+8*k+b}, {65536*k}, v{vTr+b}')
    for i in range(120): a(f'v_mov_b32 v{vAcc+i}, 0')
    a(f'v_lshrrev_b32 v{vt0}, 3, v{vTok}')
    a(f'v_and_b32 v{vt1}, 7, v{vTok}')
    a(f'v_lshl_add_u32 v{vRho}, v{vt0}, 4, v{vt1}')
    for c5 in range(5):
        a(f'v_add_u32 v{vt0}, {4*c5}, v{vG}')
        a(f'v_mul_u32_u24 v{vHl+c5}, 52, v{vt0}')
        a(f'v_lshrrev_b32 v{vHl+c5}, 8, v{vHl+c5}')
        a(f'v_mul_u32_u24 v{vt2}, 5, v{vHl+c5}')
        a(f'v_sub_u32 v{vt2}, v{vt0}, v{vt2}')
        a(f'v_cmp_eq_u32 s[46:47], 4, v{vt2}')
        a(f'v_lshrrev_b32 v{vt3}, 1, v{vt2}')
        a(f'v_lshlrev_b32 v{vt3}, 9, v{vt3}')
        a(f'v_and_b32 v{vt4}, 1, v{vt2}')
        a(f'v_lshl_add_u32 v{vt3}, v{vt4}, 3, v{vt3}')
        a(f'v_cndmask_b32 v{vt4}, 4, 3, s[46:47]')
        a(f'v_lshlrev_b32 v{vt0}, v{vt4}, v{vRho}')
        a(f'v_add_u32 v{vRs+2*c5}, v{vt3}, v{vt0}')
        a(f'v_lshlrev_b32 v{vt0}, v{vt4}, 8' if False else f'v_lshlrev_b32_e64 v{vt0}, v{vt4}, 8')
        a(f'v_add_u32 v{vRs+2*c5+1}, v{vRs+2*c5}, v{vt0}')
        a(f'v_add_u32 v{vt0}, {16*c5}, v{vTok}')
        a(f'v_mul_u32_u24 v{vt1}, 205, v{vt0}')
        a(f'v_lshrrev_b32 v{vt1}, 12, v{vt1}')
        a(f'v_mul_u32_u24 v{vt2}, 20, v{vt1}')
        a(f'v_sub_u32 v{vt2}, v{vt0}, v{vt2}')
        a(f'v_mul_u32_u24 v{vt1}, {64*2560}, v{vt1}')
        a(f'v_lshl_add_u32 v{vt1}, v{vt2}, 4, v{vt1}')
        a(f'v_mul_u32_u24 v{vt2}, 320, v{vG}')
        a(f'v_add_u32 v{vVa+c5}, v{vt1}, v{vt2}')
    for grp in range(3):
        sb,sh,sq=sG+3*grp,sG+3*grp+1,sG+3*grp+2
        a(f's_mul_i32 s{st0}, s{sNT}, 12')
        a(f's_add_u32 s{st0}, s{st0}, {4*grp}')
        a(f's_lshr_b32 s{sq}, s{st0}, 5')
        a(f's_and_b32 s{st0}, s{st0}, 31')
        a(f's_lshl_b32 s{st1}, s{sBR}, 5')
        a(f's_add_u32 s{st0}, s{st0}, s{st1}')
        a(f's_lshl_b32 s{st0}, s{st0}, 6')
        a(f's_add_u32 s{st0}, s{st0}, s{sT}')
        a(f's_cmp_eq_u32 s{sq}, 0')
        a(f's_cselect_b32 s{st1}, 0, 1')
        a(f's_cselect_b32 s{st2}, 0, {WS_KV}')
        a(f's_lshl_b32 s{st1}, 1280, s{st1}')
        a(f's_mul_i32 s{st0}, s{st0}, s{st1}')
        a(f's_add_u32 s{sb}, s{st0}, s{st2}')
        a(f's_lshl_b32 s{sh}, s{st1}, 6')
        a(f's_cmp_eq_u32 s{sq}, 2')
        a(f's_cselect_b32 s{st0}, 1280, 0')
        a(f's_add_u32 s{sb}, s{sb}, s{st0}')

    def trread(slot,cp,buf):
        off=slot*16384+(cp>>3)*256
        k=off//65536; off-=k*65536
        base=vTr+8*k+(cp&7)
        a(f'ds_read_b64_tr_b16 {vr(wf(buf),2)}, v{base} offset:{off}')
        a(f'ds_read_b64_tr_b16 {vr(wf(buf)+2,2)}, v{base} offset:{off+2048}')

    a(f's_cmp_ge_u32 s{sNT}, 6')
    a(f's_cbranch_scc1 L_qkv_v2')
    a(f's_cmp_eq_u32 s{sNT}, 5')
    a(f's_cbranch_scc1 L_qkv_v1')
    for var in range(3):
        nqk = [15,5,0][var]
        a.lab(f'L_qkv_v{var}')
        p.n=3; p.stamp()
        a(f's_waitcnt vmcnt({6*(R-3)+npre})')
        a('s_barrier')
        p.stamp()
        for cp in range(D): trread(0,cp,cp)
        a(f's_mov_b32 s{sIT}, {20//R}')
        inloop[0]=True
        a.lab(f'L_qkv_loop{var}')
        assert (R*NT)%(D+1)==0, "frag ring must wrap evenly"
        for slot in range(R):
            for cp in range(NT):
                gi=slot*NT+cp
                n=cp+D
                if n<NT: trread(slot,n,gi+D)
                else: trread((slot+1)%R,n-NT,gi+D)
                if cp%WP==0 or cp==NT-1 and False:
                    need=min(WP,NT-cp)
                    a(f's_waitcnt lgkmcnt({2*(D-need+1)})')
                w=wf(gi)
                for u in range(2):
                    x=xr(slot,u)
                    if cp<nqk: a(f'v_mfma_f32_16x16x32_bf16 {vr(acc(cp,u),4)}, {vr(w,4)}, {vr(x,4)}, {vr(acc(cp,u),4)}')
                    else:      a(f'v_mfma_f32_16x16x32_bf16 {vr(acc(cp,u),4)}, {vr(x,4)}, {vr(w,4)}, {vr(acc(cp,u),4)}')
                if cp==SYNC:
                    a(f's_waitcnt vmcnt({6*(R-3) if not noload else 0})')
                    a('s_barrier')
                    lg_setup()
                rel=(cp-SYNC)%NT
                ws=slot if cp>=SYNC else (slot-1)%R
                for j in range(6):
                    if lpos[j]==rel:
                        if cp<SYNC or cp>=SYNC:
                            tgt=(ws+R-1)%R
                            first[0]=True
                            lg_load(tgt,j)
        a(f's_sub_u32 s{sIT}, s{sIT}, 1')
        a(f's_cmp_lg_u32 s{sIT}, 0')
        a(f's_cbranch_scc1 L_qkv_loop{var}')
        inloop[0]=False
        a('s_waitcnt lgkmcnt(0) vmcnt(0)')
        a('s_nop 7')
        p.stamp()
        for grp in range(3):
            sb,sh,sq=sG+3*grp,sG+3*grp+1,sG+3*grp+2
            if grp*5<nqk:
                a(f's_cmp_lg_u32 s{sq}, 0')
                a(f's_cbranch_scc1 L_qkv_ns{var}_{grp}')
                a(f's_mov_b32 s{st1}, {f32bits(CSCALE):#x}')
                for i in range(40): a(f'v_mul_f32 v{acc(5*grp,0)+i}, s{st1}, v{acc(5*grp,0)+i}')
                a.lab(f'L_qkv_ns{var}_{grp}')
                for c5 in range(5):
                    cp=5*grp+c5
                    for u in range(2):
                        b=acc(cp,u)
                        a(f'v_cvt_pk_bf16_f32 v{b}, v{b}, v{b+1}')
                        a(f'v_cvt_pk_bf16_f32 v{b+1}, v{b+2}, v{b+3}')
                        a(f'v_mad_u32_u24 v{b+2}, v{vHl+c5}, s{sh}, v{vRs+2*c5+u}')
                        a(f'buffer_store_dwordx2 {vr(b,2)}, v{b+2}, s[{sO}:{sO+3}], s{sb} offen')
            else:
                for c5 in range(5):
                    cp=5*grp+c5
                    b=acc(cp,0)
                    a(f'v_cvt_pk_bf16_f32 v{b}, v{b}, v{b+1}')
                    a(f'v_cvt_pk_bf16_f32 v{b+1}, v{b+2}, v{b+3}')
                    a(f'v_cvt_pk_bf16_f32 v{b+2}, v{b+4}, v{b+5}')
                    a(f'v_cvt_pk_bf16_f32 v{b+3}, v{b+6}, v{b+7}')
                    a(f'buffer_store_dwordx4 {vr(b,4)}, v{vVa+c5}, s[{sO}:{sO+3}], s{sb} offen')
        p.stamp()
        if PROF: a('s_waitcnt vmcnt(0)')
        p.stamp(); p.real(1)
        p.dump(sWV,4)
        a('s_endpgm')
    a.lab(f'L_{name}_end')
    a('s_endpgm')
    return a.txt(), kd(name, vEnd)

first=[False]

NEG_BIG=0xf149f2ca
def gen_attn(U=4):
    a=A(); name='attn_kernel'
    head(a,name)
    p=Prof(a,1)
    sR,sOo=4,8
    sHD,sJ,sWV=12,13,14
    st0,st1,st2,st3=15,16,17,18
    sVm=20
    sIT=22; sBRr=23
    sHB=24
    sN=25; sCnt=26
    sM=28
    sLo=30
    vLane=1; vt0=2; vt1=3; vt2=4; vt3=5
    vK1a=6; vK2a=7; vVa=8
    vDma=9
    vM=10; vRho=11; vKap=12; vOoff=13; vt4=14; vt5=15
    vQA1=16; vQA2=20; vQB1=24; vQB2=28
    vQ1=32; vQ2=36
    vK1=40; vK2=44
    vV=48
    vP=64
    vS=[72,88]
    vO=104
    vC=120
    vMF=136; vML=152
    vCF=168
    vEnd=184
    TILE=2560
    A_OFF=3*40960

    a('s_cmp_ge_u32 s2, 256')
    a(f's_cbranch_scc1 L_{name}_end')
    p.real(0); p.stamp()
    a('s_load_dwordx2 s[2:3], s[0:1], 64' if False else 's_load_dwordx2 s[32:33], s[0:1], 64')
    a(f'v_and_b32 v{vLane}, 63, v0')
    a(f'v_lshrrev_b32 v{vt0}, 6, v0')
    a(f's_and_b32 s{st0}, s2, 7')
    a(f's_lshr_b32 s{st1}, s2, 3')
    a(f'v_readfirstlane_b32 s{sWV}, v{vt0}')
    a(f's_lshl_b32 s{sHD}, s{st0}, 2')
    a(f's_lshr_b32 s{st2}, s{st1}, 3')
    a(f's_add_u32 s{sHD}, s{sHD}, s{st2}')
    a(f's_and_b32 s{sJ}, s{st1}, 7')
    a(f's_mov_b32 s{sVm}, 0xfffff')
    a(f's_mov_b32 s{sVm+1}, 0xfffff')
    a(f's_mov_b32 s{sLo}, -1')
    a(f's_mov_b32 s{sLo+1}, 0')
    a(f'v_lshlrev_b32 v{vDma}, 4, v{vLane}')
    a(f'v_and_b32 v{vRho}, 31, v{vLane}')
    a(f'v_lshlrev_b32 v{vt1}, 3, v{vRho}')
    a(f'v_add_u32 v{vt1}, 1024, v{vt1}')
    a(f'v_mov_b32 v{vt2}, 0x70000000')
    a(f'v_cndmask_b32 v{vt2}, v{vt2}, v{vt1}, s[{sLo}:{sLo+1}]')
    a('s_waitcnt lgkmcnt(0)')
    srd(a,sR,32,33,WS_O)
    a(f's_add_u32 s34, s32, {WS_O}')
    a('s_addc_u32 s35, s33, 0')
    srd(a,sOo,34,35,WS_END-WS_O)
    a(f's_lshl_b32 s{st0}, s{sJ}, 3')
    a(f's_add_u32 s{st0}, s{st0}, s{sWV}')
    a(f's_lshl_b32 s{st1}, s{sHD}, 6')
    a(f's_add_u32 s{st1}, s{st1}, s{st0}')
    a(f's_mul_i32 s{st2}, s{st1}, 1280')
    a(f's_add_u32 s{st3}, s{st2}, {32*64*1280}')
    a(f'buffer_load_dwordx4 {vr(vQA1,4)}, v{vDma}, s[{sR}:{sR+3}], s{st2} offen')
    a(f'buffer_load_dwordx2 {vr(vQA2,2)}, v{vt2}, s[{sR}:{sR+3}], s{st2} offen')
    a(f's_mul_i32 s{sHB}, s{sHD}, {64*TILE}')
    a(f's_add_u32 s{sHB}, s{sHB}, {WS_KV}')
    a(f's_mul_i32 s{st0}, s{sJ}, 20480')
    a(f's_add_u32 s{st0}, s{st0}, s{sHB}')
    a(f's_sub_u32 s{st0}, s{st0}, 20480')
    a(f's_lshl_b32 s{st1}, s{sWV}, 10')
    a(f's_add_u32 s{st0}, s{st0}, s{st1}')
    for m in range(5):
        a(f's_add_u32 m0, s{st1}, {A_OFF+m*8192}')
        a(f'buffer_load_dwordx4 v{vDma}, s[{sR}:{sR+3}], s{st0} offen lds')
        if m<4: a(f's_add_u32 s{st0}, s{st0}, 8192')
    a(f'buffer_load_dwordx4 {vr(vQB1,4)}, v{vDma}, s[{sR}:{sR+3}], s{st3} offen')
    a(f'buffer_load_dwordx2 {vr(vQB2,2)}, v{vt2}, s[{sR}:{sR+3}], s{st3} offen')
    a(f's_add_u32 s{sHB}, s{sHB}, {32*64*TILE}')
    a(f's_mul_i32 s{sN}, s{sJ}, 20480')
    a(f's_add_u32 s{sN}, s{sN}, s{st1}')
    def dma_b(m):
        a(f's_add_u32 s{st0}, s{sHB}, s{sN}')
        a(f's_add_u32 m0, s{st1}, {m*8192}')
        a(f'buffer_load_dwordx4 v{vDma}, s[{sR}:{sR+3}], s{st0} offen lds')
        a(f's_add_u32 s{sN}, s{sN}, 8192')
        a(f's_cmp_ge_u32 s{sN}, 163840')
        a(f's_cselect_b32 s{st0}, 163840, 0')
        a(f's_sub_u32 s{sN}, s{sN}, s{st0}')
    for m in range(15): dma_b(m)
    p.stamp()
    a(f'v_lshrrev_b32 v{vt0}, 5, v{vLane}')
    a(f'v_lshlrev_b32 v{vK1a}, 4, v{vLane}')
    a(f'v_lshlrev_b32 v{vK2a}, 3, v{vRho}')
    a(f'v_add_u32 v{vK2a}, 1024, v{vK2a}')
    a(f'v_mul_u32_u24 v{vVa}, 320, v{vt0}')
    a(f'v_lshl_add_u32 v{vVa}, v{vRho}, 4, v{vVa}')
    a(f'v_add_u32 v{vVa}, 1280, v{vVa}')
    a(f'v_and_b32 v{vt1}, 7, v{vRho}')
    a(f'v_bfe_u32 v{vt2}, v{vRho}, 3, 1')
    a(f'v_lshl_or_b32 v{vt1}, v{vt2}, 4, v{vt1}')
    a(f'v_bfe_u32 v{vt2}, v{vRho}, 4, 1')
    a(f'v_lshl_or_b32 v{vKap}, v{vt2}, 3, v{vt1}')
    for r in range(16):
        base=(r&3)+8*(r>>2)
        kb=((base>>3)&1)<<4 | ((base>>4)&1)<<3 | (base&7)
        a(f'v_lshl_add_u32 v{vt1}, v{vt0}, 2, {kb}')
        a(f'v_cmp_gt_u32 s[{sM}:{sM+1}], v{vt1}, v{vKap}')
        a(f'v_mov_b32 v{vt2}, {NEG_BIG:#x}')
        a('s_nop 0')
        a(f'v_cndmask_b32 v{vMF+r}, v{vt2}, 0, s[{sM}:{sM+1}]')
        a(f'v_cndmask_b32 v{vML+r}, 0, v{vt2}, s[{sM}:{sM+1}]')
    a(f'v_mov_b32 v{vt1}, 0x3f803f80')
    for i in range(16): a(f'v_mov_b32 v{vV+i}, v{vt1}')
    a(f's_lshl_b32 s{st0}, s{sJ}, 3')
    a(f's_add_u32 s{st0}, s{st0}, s{sWV}')
    a(f's_mul_i32 s{st0}, s{st0}, 40960')
    a(f'v_lshrrev_b32 v{vt1}, 4, v{vKap}')
    a(f'v_mul_u32_u24 v{vt1}, 20480, v{vt1}')
    a(f'v_and_b32 v{vt2}, 15, v{vKap}')
    a(f'v_lshl_add_u32 v{vt1}, v{vt2}, 4, v{vt1}')
    a(f'v_add_u32 v{vOoff}, s{st0}, v{vt1}')

    def rd_k1(dst,off): a(f'ds_read_b128 {vr(dst,4)}, v{vK1a} offset:{off}')
    def rd_k2(dst,off): a(f'ds_read_b64 {vr(dst,2)}, v{vK2a} offset:{off}')
    def rd_v(buf,off):
        a(f's_mov_b64 exec, s[{sVm}:{sVm+1}]')
        a(f'ds_read_b128 {vr(vV+8*buf,4)}, v{vVa} offset:{off}')
        a(f'ds_read_b128 {vr(vV+8*buf+4,4)}, v{vVa} offset:{off+640}')
        a('s_mov_b64 exec, -1')
    def qk1(S,C): a(f'v_mfma_f32_32x32x16_bf16 {vr(S,16)}, {vr(vK1,4)}, {vr(vQ1,4)}, {C}')
    def qk2(S): a(f'v_mfma_f32_32x32x8bf16_1k {vr(S,16)}, {vr(vK2,2)}, {vr(vQ2,2)}, {vr(S,16)}')
    def pv(buf,t): a(f'v_mfma_f32_32x32x16_bf16 {vr(vO,16)}, {vr(vV+8*buf+4*t,4)}, {vr(vP+4*t,4)}, {vr(vO,16)}')
    def ex(S,r): a(f'v_exp_f32 v{S+r}, v{S+r}')
    def cv(S,c): a(f'v_cvt_pk_bf16_f32 v{vP+c}, v{S+2*c}, v{S+2*c+1}')
    def rowmax(S,first):
        i=0
        if first:
            a(f'v_max3_f32 v{vM}, v{S}, v{S+1}, v{S+2}'); rest=list(range(3,16))
        else: rest=list(range(16))
        while len(rest)>=2:
            a(f'v_max3_f32 v{vM}, v{vM}, v{S+rest[0]}, v{S+rest[1]}'); rest=rest[2:]
        if rest: a(f'v_max_f32 v{vM}, v{vM}, v{S+rest[0]}')
    def xhalf_max():
        a(f'v_mov_b32 v{vt1}, v{vM}')
        a('s_nop 1')
        a(f'v_permlane32_swap_b32 v{vM}, v{vt1}')
        a('s_nop 1')
        a(f'v_max_f32 v{vM}, v{vM}, v{vt1}')
    def set_addr(base_sgpr_or_imm):
        pass
    def finish(br,lab):
        a(f'v_mov_b32 v{vt1}, v{vO+8}')
        a(f'v_mov_b32 v{vt2}, v{vO+8}')
        a('s_nop 1')
        a(f'v_permlane32_swap_b32 v{vt1}, v{vt2}')
        a('s_nop 1')
        return
    def store_o(br):
        a(f'v_rcp_f32 v{vt3}, v{vt2}')
        a('s_nop 0')
        for i in range(12): a(f'v_mul_f32 v{vO+i}, v{vO+i}, v{vt3}')
        for i in range(6): a(f'v_cvt_pk_bf16_f32 v{vP+i}, v{vO+2*i}, v{vO+2*i+1}')
        a(f's_mul_i32 s{st0}, s{sHD}, 5')
        a(f'v_lshrrev_b32 v{vt0}, 5, v{vLane}')
        for k,qb in enumerate((0,2,4)):
            a(f'v_add_u32 v{vt4}, s{st0}, v{vt0}')
            if qb: a(f'v_add_u32 v{vt4}, {qb}, v{vt4}')
            a(f'v_lshrrev_b32 v{vt5}, 3, v{vt4}')
            a(f'v_lshlrev_b32 v{vt5}, 10, v{vt5}')
            a(f'v_and_b32 v{vt1}, 3, v{vt4}')
            a(f'v_lshl_add_u32 v{vt5}, v{vt1}, 8, v{vt5}')
            a(f'v_bfe_u32 v{vt1}, v{vt4}, 2, 1')
            a(f'v_lshl_add_u32 v{vt5}, v{vt1}, 3, v{vt5}')
            a(f'v_add_u32 v{vt5}, v{vt5}, v{vOoff}')
            if k==2: a(f's_mov_b64 exec, s[{sLo}:{sLo+1}]')
            a(f's_mov_b32 s{st1}, {br*2048*1280}')
            a(f'buffer_store_dwordx2 {vr(vP+2*k,2)}, v{vt5}, s[{sOo}:{sOo+3}], s{st1} offen')
            if k==2: a('s_mov_b64 exec, -1')

    a(f's_waitcnt vmcnt(17)')
    a('s_barrier')
    p.stamp()
    for i in range(4): a(f'v_mov_b32 v{vQ1+i}, v{vQA1+i}')
    for i in range(2): a(f'v_mov_b32 v{vQ2+i}, v{vQA2+i}')
    def simple_qk(S,C,off):
        rd_k1(vK1,off); rd_k2(vK2,off)
        a('s_waitcnt lgkmcnt(0)')
        qk1(S,C); qk2(S)
    a(f's_mul_i32 s{st0}, s{sWV}, {TILE}')
    a(f's_add_u32 s{st0}, s{st0}, {A_OFF}')
    def addr_add(s):
        a(f'v_add_u32 v{vK1a}, s{s}, v{vK1a}')
        a(f'v_add_u32 v{vK2a}, s{s}, v{vK2a}')
        a(f'v_add_u32 v{vVa}, s{s}, v{vVa}')
    def addr_addi(imm):
        a(f'v_add_u32 v{vK1a}, {imm}, v{vK1a}')
        a(f'v_add_u32 v{vK2a}, {imm}, v{vK2a}')
        a(f'v_add_u32 v{vVa}, {imm}, v{vVa}')
    addr_add(st0)
    simple_qk(vS[0],vr(vML,16),8*TILE)
    a('s_nop 15')
    rowmax(vS[0],True)
    a(f's_cmp_eq_u32 s{sJ}, 0')
    a(f's_cselect_b32 s{sCnt}, s{sWV}, 7')
    a(f's_cbranch_scc1 L_a_nofirst1')
    simple_qk(vS[0],vr(vMF,16),0)
    a('s_nop 15')
    rowmax(vS[0],False)
    a.lab('L_a_nofirst1')
    a(f's_sub_u32 s{st0}, 8, s{sCnt}')
    a(f's_mul_i32 s{st0}, s{st0}, {TILE}')
    addr_add(st0)
    a(f's_mov_b32 s{sIT}, s{sCnt}')
    a(f's_cmp_eq_u32 s{sIT}, 0')
    a(f's_cbranch_scc1 L_a_p1done')
    a.lab('L_a_p1')
    simple_qk(vS[0],'0',0)
    addr_addi(TILE)
    a('s_nop 12')
    rowmax(vS[0],False)
    a(f's_sub_u32 s{sIT}, s{sIT}, 1')
    a(f's_cmp_lg_u32 s{sIT}, 0')
    a(f's_cbranch_scc1 L_a_p1')
    a.lab('L_a_p1done')
    xhalf_max()
    for r in range(16): a(f'v_sub_f32 v{vC+r}, 0, v{vM}')
    for r in range(16): a(f'v_mov_b32 v{vO+r}, 0')
    def simple_tile(C,off):
        rd_k1(vK1,off); rd_k2(vK2,off); rd_v(0,off)
        a('s_waitcnt lgkmcnt(2)')
        qk1(vS[0],C); qk2(vS[0])
        a('s_nop 15')
        for r in range(16): ex(vS[0],r)
        for c in range(8): cv(vS[0],c)
        a('s_waitcnt lgkmcnt(0)')
        a('s_nop 0')
        pv(0,0); pv(0,1)
    for r in range(16): a(f'v_sub_f32 v{vCF+r}, v{vML+r}, v{vM}')
    simple_tile(vr(vCF,16),0)
    a(f's_mul_i32 s{st0}, s{sCnt}, {TILE}')
    a(f's_sub_u32 s{st0}, 0, s{st0}')
    addr_add(st0)
    a(f's_cmp_eq_u32 s{sJ}, 0')
    a(f's_cbranch_scc1 L_a_nofirst2')
    for r in range(16): a(f'v_sub_f32 v{vCF+r}, v{vMF+r}, v{vM}')
    addr_addi(-TILE & 0xffffffff)
    simple_tile(vr(vCF,16),0)
    addr_addi(TILE)
    a.lab('L_a_nofirst2')
    a(f's_mov_b32 s{sIT}, s{sCnt}')
    a(f's_cmp_eq_u32 s{sIT}, 0')
    a(f's_cbranch_scc1 L_a_p2done')
    a.lab('L_a_p2')
    simple_tile(vr(vC,16),0)
    addr_addi(TILE)
    a(f's_sub_u32 s{sIT}, s{sIT}, 1')
    a(f's_cmp_lg_u32 s{sIT}, 0')
    a(f's_cbranch_scc1 L_a_p2')
    a.lab('L_a_p2done')
    a('s_nop 15')
    finish(0,'a')
    store_o(0)
    p.stamp()
    a(f's_add_u32 s{st0}, s{sWV}, 8')
    a(f's_mul_i32 s{st0}, s{st0}, {TILE}')
    a(f's_add_u32 s{st0}, s{st0}, {A_OFF}')
    a(f's_sub_u32 s{st0}, 0, s{st0}')
    addr_add(st0)
    a('s_waitcnt vmcnt(3)')
    a('s_barrier')
    a(f's_lshl_b32 s{st1}, s{sWV}, 10')
    for m in range(15,20): dma_b(m)
    for i in range(4): a(f'v_mov_b32 v{vQ1+i}, v{vQB1+i}')
    for i in range(2): a(f'v_mov_b32 v{vQ2+i}, v{vQB2+i}')
    p.stamp()
    simple_qk(vS[0],'0',0)
    a('s_nop 15')
    rowmax(vS[0],True)
    xhalf_max()
    for r in range(16): a(f'v_sub_f32 v{vC+r}, 0, v{vM}')
    for r in range(16): a(f'v_mov_b32 v{vO+r}, 0')
    for i in range(4): a(f'v_mov_b32 v{vP+4+i}, 0')
    qk1(vS[0],vr(vC,16)); qk2(vS[0])
    rd_k1(vK1,TILE); rd_v(0,0); rd_k2(vK2,TILE)
    def tile(t,off,last=False,last2=False):
        cur=vS[t&1]; nxt=vS[(t+1)&1]
        a('s_waitcnt lgkmcnt(0)')
        if not last: qk1(nxt,vr(vC,16))
        if not last and not last2: rd_k1(vK1,off+2*TILE)
        for r in range(0,4): ex(cur,r)
        pv((t+1)&1,1)
        if not last: rd_v((t+1)&1,off+TILE)
        ex(cur,4); ex(cur,5); cv(cur,0); ex(cur,6); cv(cur,1); ex(cur,7)
        if not last: qk2(nxt)
        if not last and not last2: rd_k2(vK2,off+2*TILE)
        ex(cur,8); cv(cur,2); ex(cur,9); cv(cur,3); ex(cur,10); ex(cur,11)
        pv(t&1,0)
        ex(cur,12); ex(cur,13); cv(cur,4); ex(cur,14); cv(cur,5); ex(cur,15); cv(cur,6); cv(cur,7)
    nit=64//U
    a(f's_mov_b32 s{sIT}, 0')
    a.lab('L_b_loop')
    a(f's_cmp_eq_u32 s{sIT}, {44//U}')
    a('s_cbranch_scc0 L_b_nobar')
    a('s_waitcnt vmcnt(0)')
    a('s_barrier')
    a.lab('L_b_nobar')
    for t in range(U): tile(t,t*TILE)
    addr_addi(U*TILE)
    a(f's_add_u32 s{sIT}, s{sIT}, 1')
    a(f's_cmp_lt_u32 s{sIT}, {nit-1}')
    a('s_cbranch_scc1 L_b_loop')
    for t in range(U): tile(t,t*TILE,last=(t==U-1),last2=(t==U-2))
    a('s_nop 1')
    pv((U-1)&1,1)
    a('s_nop 15')
    p.stamp()
    finish(1,'b')
    a(f'v_mov_b32 v{vt3}, {f32bits(2.0**80):#x}')
    a(f'v_cmp_nlt_f32 vcc, v{vt2}, v{vt3}')
    a('s_nop 4')
    a('s_cbranch_vccnz L_b_fallback')
    a.lab('L_b_store')
    store_o(1)
    p.stamp()
    if PROF: a('s_waitcnt vmcnt(0)')
    p.stamp(); p.real(1)
    p.dump(sWV,8)
    a('s_endpgm')
    a.lab('L_b_fallback')
    a(f'v_lshlrev_b32 v{vt4}, 3, v{vRho}')
    a(f'v_add_u32 v{vt4}, 1024, v{vt4}')
    a(f'v_lshrrev_b32 v{vt0}, 5, v{vLane}')
    a(f'v_mul_u32_u24 v{vt5}, 320, v{vt0}')
    a(f'v_lshl_add_u32 v{vt5}, v{vRho}, 4, v{vt5}')
    a(f'v_add_u32 v{vt5}, 1280, v{vt5}')
    a(f'v_mov_b32 v{vM}, {NEG_BIG:#x}')
    a(f's_mov_b32 s{st0}, s{sHB}')
    a(f's_mov_b32 s{sIT}, 64')
    a.lab('L_fb_p1')
    a(f'buffer_load_dwordx4 {vr(vK1,4)}, v{vDma}, s[{sR}:{sR+3}], s{st0} offen')
    a(f'buffer_load_dwordx2 {vr(vK2,2)}, v{vt4}, s[{sR}:{sR+3}], s{st0} offen')
    a('s_waitcnt vmcnt(0)')
    qk1(vS[0],'0'); qk2(vS[0])
    a('s_nop 15')
    rowmax(vS[0],False)
    a(f's_add_u32 s{st0}, s{st0}, {TILE}')
    a(f's_sub_u32 s{sIT}, s{sIT}, 1')
    a(f's_cmp_lg_u32 s{sIT}, 0')
    a('s_cbranch_scc1 L_fb_p1')
    xhalf_max()
    for r in range(16): a(f'v_sub_f32 v{vC+r}, 0, v{vM}')
    for r in range(16): a(f'v_mov_b32 v{vO+r}, 0')
    a(f's_mov_b32 s{st0}, s{sHB}')
    a(f's_mov_b32 s{sIT}, 64')
    a.lab('L_fb_p2')
    a(f'buffer_load_dwordx4 {vr(vK1,4)}, v{vDma}, s[{sR}:{sR+3}], s{st0} offen')
    a(f'buffer_load_dwordx2 {vr(vK2,2)}, v{vt4}, s[{sR}:{sR+3}], s{st0} offen')
    a(f's_mov_b64 exec, s[{sVm}:{sVm+1}]')
    a(f'buffer_load_dwordx4 {vr(vV,4)}, v{vt5}, s[{sR}:{sR+3}], s{st0} offen')
    a(f'buffer_load_dwordx4 {vr(vV+4,4)}, v{vt5}, s[{sR}:{sR+3}], s{st0} offen offset:640')
    a('s_mov_b64 exec, -1')
    a('s_waitcnt vmcnt(0)')
    qk1(vS[0],vr(vC,16)); qk2(vS[0])
    a('s_nop 15')
    for r in range(16): ex(vS[0],r)
    a('s_nop 0')
    for c in range(8): cv(vS[0],c)
    a('s_nop 1')
    pv(0,0); pv(0,1)
    a(f's_add_u32 s{st0}, s{st0}, {TILE}')
    a(f's_sub_u32 s{sIT}, s{sIT}, 1')
    a(f's_cmp_lg_u32 s{sIT}, 0')
    a('s_cbranch_scc1 L_fb_p2')
    a('s_nop 15')
    finish(1,'fb')
    a('s_branch L_b_store')
    a.lab(f'L_{name}_end')
    a('s_endpgm')
    return a.txt(), kd(name, vEnd)

def gen_proj(NPH=5):
    a=A(); name='proj_kernel'
    head(a,name)
    p=Prof(a,2)
    sX,sW,sO=4,8,12
    sBR,sMT,sNT,sWV=26,27,28,29
    st0,st1,st2,st3=41,42,43,44
    sROT=30; sK=31
    vLane=1; vXo=2; vWo=3; vt0=4; vt1=5; vt2=6; vt3=7; vTok=8; vG=9; vTr=10; vOut=11; vWo2=12
    vX=16
    vWf=vX+160
    vAcc=vWf+40
    vEnd=vAcc+40
    assert vEnd<=256
    a('s_cmp_ge_u32 s2, 256')
    a(f's_cbranch_scc1 L_{name}_end')
    p.real(0); p.stamp()
    a('s_load_dwordx2 s[16:17], s[0:1], 16')
    a('s_load_dwordx2 s[18:19], s[0:1], 40')
    a('s_load_dwordx2 s[20:21], s[0:1], 48')
    a('s_load_dwordx2 s[24:25], s[0:1], 64')
    a(f'v_and_b32 v{vLane}, 63, v0')
    a(f'v_lshrrev_b32 v{vt0}, 6, v0')
    a(f's_and_b32 s{st0}, s2, 7')
    a(f's_lshr_b32 s{st1}, s2, 3')
    a(f'v_readfirstlane_b32 s{sWV}, v{vt0}')
    a(f's_lshr_b32 s{sBR}, s{st0}, 2')
    a(f's_bfe_u32 s{st2}, s{st0}, 0x10001')
    a(f's_lshl_b32 s{st2}, s{st2}, 3')
    a(f's_and_b32 s{st3}, s{st1}, 7')
    a(f's_add_u32 s{sMT}, s{st2}, s{st3}')
    a(f's_and_b32 s{st2}, s{st0}, 1')
    a(f's_lshl_b32 s{st2}, s{st2}, 2')
    a(f's_lshr_b32 s{st1}, s{st1}, 3')
    a(f's_add_u32 s{sNT}, s{st2}, s{st1}')
    a(f'v_and_b32 v{vTok}, 15, v{vLane}')
    a(f'v_lshrrev_b32 v{vG}, 4, v{vLane}')
    a(f'v_lshlrev_b32 v{vXo}, 4, v{vLane}')
    a('s_waitcnt lgkmcnt(0)')
    a(f's_cmp_eq_u32 s{sBR}, 0')
    a('s_cselect_b64 s[16:17], s[16:17], s[18:19]')
    srd(a,sW,16,17,640*1280)
    a(f's_mul_i32 s{st0}, s{sBR}, {2048*1280}')
    a(f's_add_u32 s{st0}, s{st0}, {WS_O}')
    a(f's_add_u32 s24, s24, s{st0}')
    a('s_addc_u32 s25, s25, 0')
    srd(a,sX,24,25,2048*1280)
    srd(a,sO,20,21,2048*2560)
    p.stamp()
    a(f's_lshl_b32 s{st0}, s{sMT}, 3')
    a(f's_lshl_b32 s{st1}, s{sWV}, 1')
    a(f's_add_u32 s{st0}, s{st0}, s{st1}')
    a(f's_mul_i32 s32, s{st0}, 20480')
    a(f's_add_u32 s33, s32, 20480')
    a(f's_mul_i32 s34, s{sNT}, 160')
    a(f's_lshl_b32 s35, s{sWV}, 10')
    spp=20//NPH
    for ph in range(NPH):
        for m in range(25*ph//NPH, 25*(ph+1)//NPH):
            a(f's_lshl_b32 s{st0}, s{sWV}, 6')
            a(f's_add_u32 s{st0}, s{st0}, {256*m}')
            a(f'v_add_u32 v{vt0}, s{st0}, v{vLane}')
            a(f'v_mul_u32_u24 v{vt1}, 52429, v{vt0}')
            a(f'v_lshrrev_b32 v{vt1}, 19, v{vt1}')
            a(f'v_mul_u32_u24 v{vt2}, 10, v{vt1}')
            a(f'v_sub_u32 v{vt2}, v{vt0}, v{vt2}')
            a(f'v_mul_u32_u24 v{vt1}, 1280, v{vt1}')
            a(f'v_lshl_add_u32 v{vt1}, v{vt2}, 4, v{vt1}')
            a(f's_add_u32 m0, s35, {4096*m}')
            a(f'buffer_load_dwordx4 v{vt1}, s[{sW}:{sW+3}], s34 offen lds')
        for s in range(spp*ph,spp*(ph+1)):
            for u in range(2):
                a(f'buffer_load_dwordx4 {vr(vX+(s*2+u)*4,4)}, v{vXo}, s[{sX}:{sX+3}], s{32+u} offen offset:{s*1024}' if s*1024<4096 else
                  f'buffer_load_dwordx4 {vr(vX+(s*2+u)*4,4)}, v{vXo}, s[{sX}:{sX+3}], s{36+u} offen offset:{(s%4)*1024}')
            if s%4==3:
                a(f's_add_u32 s36, s32, {(s+1)*1024}')
                a(f's_add_u32 s37, s33, {(s+1)*1024}')
    p.stamp()
    a(f'v_bfe_u32 v{vt0}, v{vLane}, 2, 2')
    a(f'v_lshl_add_u32 v{vt0}, v{vG}, 2, v{vt0}')
    a(f'v_mul_u32_u24 v{vt0}, 160, v{vt0}')
    a(f'v_and_b32 v{vt1}, 3, v{vLane}')
    a(f'v_lshl_add_u32 v{vTr}, v{vt1}, 3, v{vt0}')
    for i in range(40): a(f'v_mov_b32 v{vAcc+i}, 0')
    tot=25+40
    done=0
    for ph in range(NPH):
        nW=25*(ph+1)//NPH-25*ph//NPH
        done+=nW+2*spp
        a(f's_waitcnt vmcnt({tot-done})')
        a('s_barrier')
        if ph==0: p.stamp()
        for s in range(spp*ph,spp*(ph+1)):
            buf=vWf+(s&1)*20
            for cp in range(5):
                off=s*32*160+cp*32
                hi=off//65536
                assert off+16*160<65536+hi*65536 or True
                if off+2560<65536:
                    b=vTr; o=off
                else:
                    b=vt3; o=off-61440
                a(f'ds_read_b64_tr_b16 {vr(buf+cp*4,2)}, v{b} offset:{o}')
                a(f'ds_read_b64_tr_b16 {vr(buf+cp*4+2,2)}, v{b} offset:{o+2560}')
            if s==0: a(f'v_add_u32 v{vt3}, 61440, v{vTr}')
            for cp in range(5):
                a(f's_waitcnt lgkmcnt({2*(4-cp)})')
                for u in range(2):
                    ac=vAcc+(cp*2+u)*4
                    a(f'v_mfma_f32_16x16x32_bf16 {vr(ac,4)}, {vr(buf+cp*4,4)}, {vr(vX+(s*2+u)*4,4)}, {vr(ac,4)}')
    a('s_nop 7')
    p.stamp()
    a(f's_lshl_b32 s{st0}, s{sMT}, 7')
    a(f's_lshl_b32 s{st1}, s{sWV}, 5')
    a(f's_add_u32 s{st0}, s{st0}, s{st1}')
    a(f'v_add_u32 v{vt0}, s{st0}, v{vTok}')
    a(f'v_mul_u32_u24 v{vt0}, 2560, v{vt0}')
    a(f'v_lshl_add_u32 v{vOut}, v{vG}, 3, v{vt0}')
    a(f's_mul_i32 s{st0}, s{sBR}, 1280')
    a(f's_mul_i32 s{st1}, s{sNT}, 160')
    a(f's_add_u32 s{st0}, s{st0}, s{st1}')
    a(f's_add_u32 s{st1}, s{st0}, {16*2560}')
    for cp in range(5):
        for u in range(2):
            b=vAcc+(cp*2+u)*4
            a(f'v_cvt_pk_bf16_f32 v{b}, v{b}, v{b+1}')
            a(f'v_cvt_pk_bf16_f32 v{b+1}, v{b+2}, v{b+3}')
            a(f'buffer_store_dwordx2 {vr(b,2)}, v{vOut}, s[{sO}:{sO+3}], s{st0+u} offen offset:{cp*32}')
    p.stamp()
    if PROF: a('s_waitcnt vmcnt(0)')
    p.stamp(); p.real(1)
    p.dump(sWV,4)
    a('s_endpgm')
    a.lab(f'L_{name}_end')
    a('s_endpgm')
    return a.txt(), kd(name, vEnd)

def assemble(parts, launches):
    hdr=open('cdna_kernels/'+NAME+'.s.ref').read().split('\n')
    out=[]
    for l in hdr:
        if l.startswith('; @launch') or l.startswith('; Override') or l.startswith('; grid='): continue
        if not l.startswith(';'): break
        out.append(l)
    for k,g,b,lds in launches:
        out.append(f'; @launch kernel={k} grid=({g},1,1) block=({b},1,1) lds={lds}')
    out.append('.amdgcn_target "amdgcn-amd-amdhsa--gfx950"')
    out.append('.text')
    s='\n'.join(out)+'\n'
    for code,desc in parts: s+=code
    for code,desc in parts: s+=desc
    return s

if __name__=='__main__':
    if len(sys.argv)>2 and sys.argv[2]=='prof': PROF=True
    kw=eval(sys.argv[3]) if len(sys.argv)>3 else {}
    parts=[gen_qkv(**kw.get('qkv',{})),gen_attn(**kw.get('attn',{})),gen_proj(**kw.get('proj',{}))]
    launches=[('qkv_kernel',256,256,98304),('attn_kernel',256,512,163840),('proj_kernel',256,256,102400)]
    open(sys.argv[1] if len(sys.argv)>1 else 'k.s','w').write(assemble(parts,launches))
```

```python
import sys, math

NAME='concat_heads__sliding_block__mha_block__prompt'
WS_Q=0
WS_KV=2*32*64*1280
WS_O=WS_KV+2*32*64*2560
WS_END=WS_O+2*2048*1280
CSCALE=(20.0**-0.5)*math.log2(math.e)
import struct
def f32bits(x): return struct.unpack('<I',struct.pack('<f',x))[0]

class A:
    def __init__(s): s.l=[]
    def __call__(s,x): s.l.append('  '+x)
    def lab(s,x): s.l.append(x+':')
    def c(s,x): s.l.append('  ; '+x)
    def raw(s,x): s.l.append(x)
    def txt(s): return '\n'.join(s.l)+'\n'

def vr(a,n=1): return f'v{a}' if n==1 else f'v[{a}:{a+n-1}]'
def sr(a,n=1): return f's{a}' if n==1 else f's[{a}:{a+n-1}]'

def kd(name, vgpr, sgpr=96):
    return f'''.section .rodata,"a"
.p2align 6
.amdhsa_kernel {name}
  .amdhsa_next_free_vgpr {vgpr}
  .amdhsa_next_free_sgpr {sgpr}
  .amdhsa_accum_offset {(vgpr+3)//4*4}
  .amdhsa_group_segment_fixed_size 0
  .amdhsa_kernarg_size 72
  .amdhsa_user_sgpr_count 2
  .amdhsa_user_sgpr_kernarg_segment_ptr 1
  .amdhsa_system_sgpr_workgroup_id_x 1
.end_amdhsa_kernel
.text
'''

PROF=False
PROF_BASE=32<<20
class Prof:
    def __init__(s,a,kid): s.a=a; s.n=0; s.kid=kid
    def stamp(s):
        if not PROF: return
        s.a(f's_memtime s[{60+2*s.n}:{61+2*s.n}]'); s.n+=1
    def real(s,idx):
        if not PROF: return
        s.a(f's_memrealtime s[{84+2*idx}:{85+2*idx}]')
    def dump(s,wave_sgpr,nwaves,n=None):
        if not PROF: return
        a=s.a
        n=n or s.n
        a('s_waitcnt lgkmcnt(0) vmcnt(0)')
        a('s_load_dwordx2 s[88:89], s[0:1], 64')
        a(f's_mul_i32 s90, s2, {nwaves}')
        a(f's_add_u32 s90, s90, s{wave_sgpr}')
        a('s_lshl_b32 s90, s90, 6')
        a(f's_add_u32 s90, s90, {PROF_BASE+s.kid*(1<<20)}')
        a('s_waitcnt lgkmcnt(0)')
        a('s_add_u32 s88, s88, s90')
        a('s_addc_u32 s89, s89, 0')
        a('v_mov_b32 v0, 0')
        a('s_mov_b64 exec, 1')
        for i in range(n):
            a(f'v_mov_b32 v1, s{60+2*i}')
            a(f'global_store_dword v0, v1, s[88:89] offset:{4*i}')
        a('v_mov_b32 v1, s84'); a('global_store_dword v0, v1, s[88:89] offset:56')
        a('v_mov_b32 v1, s86'); a('global_store_dword v0, v1, s[88:89] offset:60')
        a('s_waitcnt vmcnt(0)')

def head(a,name):
    a.raw(f'.globl {name}')
    a.raw('.p2align 8')
    a.raw(f'.type {name},@function')
    a.lab(name)

def srd(a, d, lo, hi, nbytes):
    a(f's_mov_b32 s{d}, s{lo}')
    a(f's_and_b32 s{d+1}, s{hi}, 0xffff')
    a(f's_mov_b32 s{d+2}, {nbytes}')
    a(f's_mov_b32 s{d+3}, 0x20000')

def gen_qkv(R=3, D=3, noload=0, SY=1, nowait=False, nobar=False, WP=1):
    a=A(); name='qkv_kernel'
    head(a,name)
    p=Prof(a,0)
    SLOT=49152; XOFF=16384
    sX,sW,sO=4,8,12
    sBR,sMT,sNT,sWV=26,27,28,29
    sKS=31
    sXo=32; sW0=34
    sIT=36; sSlot=37; sLW=38; sLX=39
    sT=40
    st0,st1,st2,st3=41,42,43,44
    sSec=45; sBase=46; sHS=47; sTS=48
    sM=30; sN=33
    vLW=2; vLX=4
    vLane=1; vt0=6; vt1=7; vt2=8; vt3=9; vt4=10; vTok=11; vG=12; vRho=13
    vW0=2; vX0=3; vXh=2; vXc1=3; vXn1=4
    vB0=14
    vBc=19
    vBn=24
    vAd=29
    vWf=(vAd+8+3)//4*4
    vXf=vWf+32
    vAcc=vXf+4*(D+1)
    vEnd=vAcc+128
    assert vEnd<=256, vEnd
    assert 16%(D+1)==0
    def wf(step,c): return vWf+(step&1)*16+c*4
    def xf(i): return vXf+(i%(D+1))*4
    def acc(c,mt): return vAcc+(mt*4+c)*4 if False else vAcc+(c*8+mt)*4

    a('s_cmp_ge_u32 s2, 256')
    a(f's_cbranch_scc1 L_{name}_end')
    p.real(0); p.stamp()
    a('s_load_dwordx4 s[16:19], s[0:1], 0')
    a('s_load_dwordx4 s[20:23], s[0:1], 24')
    a('s_load_dwordx2 s[24:25], s[0:1], 64')
    a(f'v_and_b32 v{vLane}, 63, v0')
    a(f'v_lshrrev_b32 v{vt0}, 6, v0')
    a(f's_and_b32 s{st0}, s2, 7')
    a(f's_lshr_b32 s{st1}, s2, 3')
    a(f'v_readfirstlane_b32 s{sWV}, v{vt0}')
    a(f's_lshr_b32 s{sBR}, s{st0}, 2')
    a(f's_bfe_u32 s{st2}, s{st0}, 0x10001')
    a(f's_lshl_b32 s{st2}, s{st2}, 2')
    a(f's_and_b32 s{st3}, s{st1}, 3')
    a(f's_add_u32 s{sMT}, s{st2}, s{st3}')
    a(f's_and_b32 s{st2}, s{st0}, 1')
    a(f's_lshl_b32 s{st2}, s{st2}, 3')
    a(f's_lshr_b32 s{st1}, s{st1}, 2')
    a(f's_add_u32 s{sNT}, s{st2}, s{st1}')
    a(f's_cmp_ge_u32 s{sNT}, 15')
    a(f's_cbranch_scc1 L_{name}_end')
    a(f's_cmp_ge_u32 s{sWV}, 4')
    a(f's_cbranch_scc1 L_qkv_loader')
    a(f's_and_b32 s{sM}, s{sWV}, 1')
    a(f's_lshr_b32 s{sN}, s{sWV}, 1')
    a(f'v_and_b32 v{vTok}, 15, v{vLane}')
    a(f'v_lshrrev_b32 v{vG}, 4, v{vLane}')
    a(f'v_and_b32 v{vt0}, 3, v{vLane}')
    a(f'v_bfe_u32 v{vt1}, v{vLane}, 2, 2')
    a(f'v_and_b32 v{vt2}, 1, v{vG}')
    a(f'v_lshl_or_b32 v{vt2}, v{vt2}, 2, v{vt1}')
    a(f'v_lshl_add_u32 v{vt3}, v{vG}, 3, v{vt1}')
    a(f'v_lshlrev_b32 v{vt3}, 8, v{vt3}')
    a(f'v_lshl_add_u32 v{vt3}, v{vt0}, 3, v{vt3}')
    a(f's_lshl_b32 s{st0}, s{sN}, 2')
    a(f'v_xor_b32 v{vt2}, s{st0}, v{vt2}')
    for c in range(4):
        a(f'v_xor_b32 v{vt4}, {c}, v{vt2}')
        a(f'v_lshl_add_u32 v{vB0+c}, v{vt4}, 5, v{vt3}')
    a(f'v_lshrrev_b32 v{vt0}, 1, v{vTok}')
    a(f'v_xor_b32 v{vt0}, v{vt0}, v{vG}')
    a(f'v_lshlrev_b32 v{vt0}, 4, v{vt0}')
    a(f'v_lshl_add_u32 v{vt0}, v{vTok}, 7, v{vt0}')
    a(f's_lshl_b32 s{st0}, s{sM}, 14')
    a(f's_add_u32 s{st0}, s{st0}, {XOFF}')
    a(f'v_add_u32 v{vB0+4}, s{st0}, v{vt0}')
    a(f'v_xor_b32 v{vXh}, 64, v{vt0}')
    a(f'v_sub_u32 v{vXh}, v{vXh}, v{vt0}')
    for i in range(5): a(f'v_mov_b32 v{vBc+i}, v{vB0+i}')
    for i in range(128): a(f'v_mov_b32 v{vAcc+i}, 0')
    a(f's_mul_i32 s{sSec}, s{sNT}, 52')
    a(f's_lshr_b32 s{sSec}, s{sSec}, 8')
    a(f's_mul_i32 s{st0}, s{sSec}, 5')
    a(f's_sub_u32 s{st0}, s{sNT}, s{st0}')
    a(f's_lshl_b32 s{st0}, s{st0}, 7')
    a(f's_lshl_b32 s{st1}, s{sN}, 6')
    a(f's_add_u32 s{st0}, s{st0}, s{st1}')
    a(f's_cmp_eq_u32 s{sSec}, 0')
    a(f's_cselect_b32 s{st1}, 0, 1')
    a(f's_cselect_b32 s{st2}, 0, {WS_KV}')
    a(f's_lshl_b32 s{sTS}, 1280, s{st1}')
    a(f's_lshl_b32 s{sHS}, s{sTS}, 6')
    a(f's_lshl_b32 s{sT}, s{sMT}, 3')
    a(f's_lshl_b32 s{st1}, s{sM}, 2')
    a(f's_add_u32 s{sT}, s{sT}, s{st1}')
    a(f's_lshl_b32 s{st1}, s{sBR}, 11')
    a(f's_add_u32 s{st1}, s{st1}, s{sT}')
    a(f's_mul_i32 s{st1}, s{st1}, s{sTS}')
    a(f's_add_u32 s{sBase}, s{st1}, s{st2}')
    a(f's_cmp_eq_u32 s{sSec}, 2')
    a(f's_cbranch_scc1 L_qkv_adV')
    a(f'v_lshrrev_b32 v{vt0}, 3, v{vTok}')
    a(f'v_and_b32 v{vt1}, 7, v{vTok}')
    a(f'v_lshl_add_u32 v{vRho}, v{vt0}, 4, v{vt1}')
    a(f's_lshr_b32 s{st0}, s{st0}, 2')
    for c in range(4):
        a(f'v_add_u32 v{vt0}, s{st0}, v{vG}')
        if c: a(f'v_add_u32 v{vt0}, {4*c}, v{vt0}')
        a(f'v_mul_u32_u24 v{vt1}, 52429, v{vt0}')
        a(f'v_lshrrev_b32 v{vt1}, 18, v{vt1}')
        a(f'v_mul_u32_u24 v{vt2}, 5, v{vt1}')
        a(f'v_sub_u32 v{vt2}, v{vt0}, v{vt2}')
        a(f'v_cmp_eq_u32 s[56:57], 4, v{vt2}')
        a(f'v_mul_u32_u24 v{vt1}, s{sHS}, v{vt1}')
        a(f'v_lshrrev_b32 v{vt3}, 1, v{vt2}')
        a(f'v_lshlrev_b32 v{vt3}, 9, v{vt3}')
        a(f'v_and_b32 v{vt4}, 1, v{vt2}')
        a(f'v_lshl_add_u32 v{vt3}, v{vt4}, 3, v{vt3}')
        a(f'v_add_u32 v{vt1}, v{vt1}, v{vt3}')
        a(f'v_cndmask_b32 v{vt4}, 4, 3, s[56:57]')
        a(f'v_lshlrev_b32 v{vt0}, v{vt4}, v{vRho}')
        a(f'v_add_u32 v{vAd+2*c}, v{vt1}, v{vt0}')
        a(f'v_lshlrev_b32_e64 v{vt0}, v{vt4}, 8')
        a(f'v_add_u32 v{vAd+2*c+1}, v{vAd+2*c}, v{vt0}')
    a('s_branch L_qkv_adD')
    a.lab('L_qkv_adV')
    for c in range(4):
        a(f'v_add_u32 v{vt0}, s{st0}, v{vTok}')
        if c: a(f'v_add_u32 v{vt0}, {16*c}, v{vt0}')
        a(f'v_mul_u32_u24 v{vt1}, 52429, v{vt0}')
        a(f'v_lshrrev_b32 v{vt1}, 20, v{vt1}')
        a(f'v_mul_u32_u24 v{vt2}, 20, v{vt1}')
        a(f'v_sub_u32 v{vt2}, v{vt0}, v{vt2}')
        a(f'v_mul_u32_u24 v{vt1}, {64*2560}, v{vt1}')
        a(f'v_lshl_add_u32 v{vt1}, v{vt2}, 4, v{vt1}')
        a(f'v_mul_u32_u24 v{vt2}, 320, v{vG}')
        a(f'v_add3_u32 v{vAd+2*c}, v{vt1}, v{vt2}, s{sTS}' if False else f'v_add_u32 v{vAd+2*c}, v{vt1}, v{vt2}')
        a(f'v_add_u32 v{vAd+2*c}, 1280, v{vAd+2*c}')
    a.lab('L_qkv_adD')
    a('s_waitcnt lgkmcnt(0)')
    srd(a,sO,24,25,WS_O)

    SYNC=SY
    sNx=49
    def wread(nxt,h,step,c,hh):
        b=(vBn if nxt else vBc)+c
        return f'ds_read_b64_tr_b16 {vr(wf(step,c)+2*hh,2)}, v{b} offset:{h*8192+1024*hh}'
    def xread(nxt,h,mt,buf):
        if h==0: b=(vBn if nxt else vBc)+4
        else: b=vXc1
        return f'ds_read_b128 {vr(xf(buf),4)}, v{b} offset:{mt*2048}'
    a(f's_cmp_eq_u32 s{sSec}, 2')
    a(f's_cbranch_scc1 L_qkv_v1')
    for v in range(2):
        a.lab(f'L_qkv_v{v}')
        p.n=1; p.stamp()
        a('s_barrier')
        p.stamp()
        def body(emit,issued):
            waits=[]
            for st in range(2):
                for mt in range(8):
                    gi=st*8+mt
                    need=[('x',gi)]
                    if mt==0: need.append(('w',st))
                    last=max(len(issued)-1-issued[::-1].index(t) for t in need)
                    y=len(issued)-1-last
                    waits.append(y)
                    if emit:
                        y=min(y,wmin[len(waits)-1]) if wmin else y
                        if WP==2:
                            if mt%2==0:
                                y2=wmin[len(waits)]
                                a(f's_waitcnt lgkmcnt({max(0,min(y, y2-extra[len(waits)-1],15))})')
                        elif not nowait: a(f's_waitcnt lgkmcnt({min(y,15)})')
                    n_before=len(issued)
                    fill=[]
                    g2=gi+D
                    nx=g2>=16; h2=(g2%16)//8; m2=g2%8
                    fill.append((xread(nx,h2,m2,g2),('x',g2%16)))
                    if SYNC<mt<=SYNC+4:
                        c=mt-SYNC-1
                        fill.append((wread(st==1,(st+1)&1,st+1,c,0),('w',(st+1)%2)))
                        fill.append((wread(st==1,(st+1)&1,st+1,c,1),('w',(st+1)%2)))
                    if st==0 and mt==0:
                        fill.append((f's_add_u32 s{sNx}, s{sSlot}, {SLOT}',None))
                        fill.append((f's_cmp_eq_u32 s{sNx}, {R*SLOT}',None))
                        fill.append((f's_cselect_b32 s{sNx}, 0, s{sNx}',None))
                        fill.append((f'v_add_u32 v{vXc1}, v{vBc+4}, v{vXh}',None))
                    if st==0 and 2<=mt<=6:
                        fill.append((f'v_add_u32 v{vBn+mt-2}, s{sNx}, v{vB0+mt-2}',None))
                    if st==1 and mt==7:
                        for i in range(5): fill.append((f'v_mov_b32 v{vBc+i}, v{vBn+i}',None))
                        fill.append((f's_mov_b32 s{sSlot}, s{sNx}',None))
                    for c in range(4):
                        x=xf(gi); w=wf(st,c); ac=acc(c,mt)
                        if emit:
                            if v==0: a(f'v_mfma_f32_16x16x32_bf16 {vr(ac,4)}, {vr(w,4)}, {vr(x,4)}, {vr(ac,4)}')
                            else:    a(f'v_mfma_f32_16x16x32_bf16 {vr(ac,4)}, {vr(x,4)}, {vr(w,4)}, {vr(ac,4)}')
                        k=1 if c<3 else len(fill)
                        while k>0 and fill:
                            t,tag=fill.pop(0); k-=1
                            if emit: a(t)
                            if tag: issued.append(tag)
                    if not emit: extra.append(len(issued)-n_before)
                    if st==0 and mt==SYNC and emit and not nobar: a('s_barrier')
            return waits
        wmin=None
        pro=[('w',0)]*8+[('x',i) for i in range(D)]
        extra=[]
        iss=list(pro); w1=body(False,iss); w2=body(False,iss)
        wmin=[min(x,y) for x,y in zip(w1,w2)]
        a(f's_mov_b32 s{sSlot}, 0')
        for c in range(4):
            a(wread(False,0,0,c,0)); a(wread(False,0,0,c,1))
        for i in range(D): a(xread(False,0,i,i))
        a(f's_mov_b32 s{sIT}, 10')
        a.lab(f'L_qkv_loop{v}')
        body(True,list(pro))
        a(f's_sub_u32 s{sIT}, s{sIT}, 1')
        a(f's_cmp_lg_u32 s{sIT}, 0')
        a(f's_cbranch_scc1 L_qkv_loop{v}')
        a('s_waitcnt lgkmcnt(0)')
        a('s_nop 7')
        p.stamp()
        if v==0:
            a(f's_cmp_lg_u32 s{sSec}, 0')
            a(f's_cbranch_scc1 L_qkv_ns')
            a(f's_mov_b32 s{st1}, {f32bits(CSCALE):#x}')
            for i in range(128): a(f'v_mul_f32 v{vAcc+i}, s{st1}, v{vAcc+i}')
            a.lab('L_qkv_ns')
        for tp in range(4):
            if tp==0: a(f's_mov_b32 s{st0}, s{sBase}')
            else: a(f's_add_u32 s{st0}, s{st0}, s{sTS}')
            for c in range(4):
                if v==0:
                    for u in range(2):
                        b=acc(c,2*tp+u)
                        a(f'v_cvt_pk_bf16_f32 v{b}, v{b}, v{b+1}')
                        a(f'v_cvt_pk_bf16_f32 v{b+1}, v{b+2}, v{b+3}')
                        a(f'buffer_store_dwordx2 {vr(b,2)}, v{vAd+2*c+u}, s[{sO}:{sO+3}], s{st0} offen')
                else:
                    b=acc(c,2*tp)
                    a(f'v_cvt_pk_bf16_f32 v{b}, v{b}, v{b+1}')
                    a(f'v_cvt_pk_bf16_f32 v{b+1}, v{b+2}, v{b+3}')
                    a(f'v_cvt_pk_bf16_f32 v{b+2}, v{b+4}, v{b+5}')
                    a(f'v_cvt_pk_bf16_f32 v{b+3}, v{b+6}, v{b+7}')
                    a(f'buffer_store_dwordx4 {vr(b,4)}, v{vAd+2*c}, s[{sO}:{sO+3}], s{st0} offen')
        p.stamp()
        if PROF: a('s_waitcnt vmcnt(0)')
        p.stamp(); p.real(1)
        p.dump(sWV,8)
        a('s_endpgm')
    a.lab('L_qkv_loader')
    a(f's_sub_u32 s{sWV}, s{sWV}, 4')
    a(f's_mul_i32 s{st3}, s{st3}, 5')
    a(f's_lshr_b32 s{st3}, s{st3}, 1')
    a(f's_mul_i32 s{st1}, s{st1}, 5')
    a(f's_lshr_b32 s{st1}, s{st1}, 2')
    a(f's_add_u32 s{sKS}, s{st3}, s{st1}')
    a(f's_cmp_ge_u32 s{sKS}, 10')
    a(f's_cselect_b32 s{st0}, 10, 0')
    a(f's_sub_u32 s{sKS}, s{sKS}, s{st0}')
    a(f's_lshl_b32 s{sLW}, s{sWV}, 12')
    a(f's_lshl_b32 s{sLX}, s{sWV}, 13')
    a(f's_add_u32 s{sLX}, s{sLX}, {XOFF}')
    a(f'v_lshrrev_b32 v{vt0}, 4, v{vLane}')
    a(f'v_bfe_u32 v{vt1}, v{vLane}, 1, 3')
    a(f'v_and_b32 v{vt2}, 1, v{vLane}')
    a(f's_lshl_b32 s{st2}, s{sWV}, 4')
    a(f's_lshl_b32 s{st1}, s{sNT}, 8')
    for jj in range(2):
        a(f'v_add_u32 v{vt3}, {4*jj}, v{vt0}')
        a(f'v_xor_b32 v{vt3}, v{vt3}, v{vt1}')
        a(f'v_lshl_add_u32 v{vt4}, v{vt3}, 1, v{vt2}')
        a(f'v_lshlrev_b32 v{vt4}, 4, v{vt4}')
        a(f'v_add_u32 v{vLW+jj}, s{st2}, v{vt0}')
        if jj: a(f'v_add_u32 v{vLW+jj}, 8, v{vLW+jj}')
        a(f'v_mul_u32_u24 v{vLW+jj}, 3840, v{vLW+jj}')
        a(f'v_add3_u32 v{vLW+jj}, v{vLW+jj}, v{vt4}, s{st1}')
    a(f'v_lshrrev_b32 v{vt0}, 3, v{vLane}')
    a(f'v_and_b32 v{vt1}, 7, v{vLane}')
    a(f's_lshl_b32 s{st0}, s{sMT}, 8')
    a(f's_lshl_b32 s{st1}, s{sWV}, 6')
    a(f's_add_u32 s{st0}, s{st0}, s{st1}')
    for uu in range(2):
        a(f'v_lshrrev_b32 v{vt2}, 1, v{vt0}')
        if uu: a(f'v_add_u32 v{vt2}, 4, v{vt2}')
        a(f'v_xor_b32 v{vt2}, v{vt2}, v{vt1}')
        a(f'v_add_u32 v{vt3}, s{st0}, v{vt0}')
        if uu: a(f'v_add_u32 v{vt3}, 8, v{vt3}')
        a(f'v_mul_u32_u24 v{vt3}, 1280, v{vt3}')
        a(f'v_lshl_add_u32 v{vLX+uu}, v{vt2}, 4, v{vt3}')
    a('s_waitcnt lgkmcnt(0)')
    a(f's_cmp_eq_u32 s{sBR}, 0')
    a('s_cselect_b64 s[16:17], s[16:17], s[20:21]')
    a('s_cselect_b64 s[18:19], s[18:19], s[22:23]')
    srd(a,sX,16,17,2048*1280)
    srd(a,sW,18,19,640*3840)
    NL=12
    def wstep(xl=True,wl=True):
        a(f's_mul_i32 s{sW0}, s{sKS}, {64*3840}')
        a(f's_lshl_b32 s{sXo}, s{sKS}, 7')
        a(f's_add_u32 s{st0}, s{sSlot}, s{sLW}')
        a(f's_add_u32 s{st1}, s{sSlot}, s{sLX}')
        for j in range(4):
            if wl:
                a(f's_add_u32 m0, s{st0}, {j*1024}')
                if j&1: a(f's_add_u32 s{st2}, s{sW0}, {4*3840}')
                a(f'buffer_load_dwordx4 v{vLW+(j>>1)}, s[{sW}:{sW+3}], s{st2 if j&1 else sW0} offen lds')
            if xl:
                for u in (2*j,2*j+1):
                    a(f's_add_u32 m0, s{st1}, {u*1024}')
                    if u>=2 and u%2==0: a(f's_add_u32 s{st3}, s{sXo}, {(u//2)*20480}')
                    a(f'buffer_load_dwordx4 v{vLX+(u&1)}, s[{sX}:{sX+3}], s{st3 if u>=2 else sXo} offen lds')
        a(f's_add_u32 s{sKS}, s{sKS}, 1')
        a(f's_cmp_eq_u32 s{sKS}, 10')
        a(f's_cselect_b32 s{sKS}, 0, s{sKS}')
        a(f's_add_u32 s{sSlot}, s{sSlot}, {SLOT}')
        a(f's_cmp_eq_u32 s{sSlot}, {R*SLOT}')
        a(f's_cselect_b32 s{sSlot}, 0, s{sSlot}')
    a(f's_mov_b32 s{sSlot}, 0')
    wstep(); wstep()
    a(f's_waitcnt vmcnt({NL})')
    a('s_barrier')
    a(f's_mov_b32 s{sIT}, 0')
    a.lab('L_qkv_ld_loop')
    a('s_waitcnt vmcnt(0)')
    if not nobar: a('s_barrier')
    a(f's_cmp_ge_u32 s{sIT}, 8')
    a('s_cbranch_scc1 L_qkv_ld_skip')
    if noload==0: wstep()
    elif noload==2: wstep(xl=False)
    elif noload==3: wstep(wl=False)
    a.lab('L_qkv_ld_skip')
    a(f's_add_u32 s{sIT}, s{sIT}, 1')
    a(f's_cmp_lt_u32 s{sIT}, 10')
    a('s_cbranch_scc1 L_qkv_ld_loop')
    if PROF:
        a(f's_add_u32 s{sWV}, s{sWV}, 4')
        for i in range(1,8): p.a(f's_mov_b64 s[{60+2*i}:{61+2*i}], s[60:61]')
        p.real(1); p.dump(sWV,8)
    a('s_endpgm')
    a.lab(f'L_{name}_end')
    a('s_endpgm')
    return a.txt(), kd(name, vEnd)

first=[False]

NEG_BIG=0xf149f2ca
def gen_attn(PRIO=8,VONES=False):
    a=A(); name='attn_kernel'
    head(a,name)
    p=Prof(a,1)
    sR,sOo=4,8
    sHD,sJ,sWV=12,13,14
    st0,st1,st2,st3=15,16,17,18
    sVm=20
    sIT=22
    sHB=24
    sN=25; sCnt=26; sSw=27
    sM=28
    sLo=30
    sQA=36; sLd=37
    vLane=1; vt0=2; vt1=3; vt2=4; vt3=5
    vK1a=6; vK2a=7; vVa=8
    vDma=9; vM=10; vRho=11; vKap=12; vOoff=13; vt4=14; vt5=15
    vQ1=16; vQ2=20; vK2=22; vK1=24; vQA1=28; vQA2=32; vQ2o=34
    vV=36; vP=52; vS=[60,76]; vO=92; vC=108; vMF=124; vML=140
    vEnd=156
    TILE=2560

    def vinit():
        a(f'v_cmp_eq_u32 s[38:39], 20, v{vRho}')
        a(f'v_mov_b32 v{vt1}, 0x3f803f80')
        a('s_nop 0')
        a(f'v_cndmask_b32 v{vt1}, {"v%d"%vt1 if VONES else 0}, v{vt1}, s[38:39]')
        for i in range(16): a(f'v_mov_b32 v{vV+i}, v{vt1}')
    a('s_cmp_ge_u32 s2, 256')
    a(f's_cbranch_scc1 L_{name}_end')
    p.real(0); p.stamp()
    a('s_load_dwordx2 s[32:33], s[0:1], 64')
    a(f'v_and_b32 v{vLane}, 63, v0')
    a(f'v_lshrrev_b32 v{vt0}, 6, v0')
    a(f's_and_b32 s{st0}, s2, 7')
    a(f's_lshr_b32 s{st1}, s2, 3')
    a(f'v_readfirstlane_b32 s{sWV}, v{vt0}')
    a(f's_lshl_b32 s{sHD}, s{st0}, 2')
    a(f's_lshr_b32 s{st2}, s{st1}, 3')
    a(f's_add_u32 s{sHD}, s{sHD}, s{st2}')
    a(f's_and_b32 s{sJ}, s{st1}, 7')
    a(f'v_lshlrev_b32 v{vDma}, 4, v{vLane}')
    a(f's_mul_i32 s{sHB}, s{sHD}, {64*TILE}')
    a(f's_add_u32 s{sHB}, s{sHB}, {WS_KV+32*64*TILE}')
    a(f's_cmp_eq_u32 s{sWV}, 8')
    a(f's_cbranch_scc1 L_loader')
    a(f's_mov_b32 s{sVm}, 0xfffff')
    a(f's_mov_b32 s{sVm+1}, 0xfffff')
    a(f's_mov_b32 s{sLo}, -1')
    a(f's_mov_b32 s{sLo+1}, 0')
    a(f'v_and_b32 v{vRho}, 31, v{vLane}')
    a(f'v_lshlrev_b32 v{vt1}, 3, v{vRho}')
    a(f'v_add_u32 v{vK2a}, 1024, v{vt1}')
    a(f'v_mov_b32 v{vt2}, 0x70000000')
    a(f'v_cndmask_b32 v{vQ2o}, v{vt2}, v{vK2a}, s[{sLo}:{sLo+1}]')
    a(f's_lshl_b32 s{st0}, s{sJ}, 3')
    a(f's_add_u32 s{st0}, s{st0}, s{sWV}')
    a(f's_lshl_b32 s{st1}, s{sHD}, 6')
    a(f's_add_u32 s{st1}, s{st1}, s{st0}')
    a(f's_mul_i32 s{sQA}, s{st1}, 1280')
    a(f's_add_u32 s{st3}, s{sQA}, {32*64*1280}')
    a(f's_lshr_b32 s{st0}, s{sJ}, 1')
    a(f's_mul_i32 s{st0}, s{st0}, 40960')
    a(f's_lshl_b32 s{st1}, s{sWV}, 10')
    a(f's_add_u32 s{st0}, s{st0}, s{sHB}')
    a(f's_add_u32 s{st0}, s{st0}, s{st1}')
    a(f's_add_u32 s{st2}, s{st0}, 8192')
    a(f's_mov_b32 m0, s{st1}')
    a('s_waitcnt lgkmcnt(0)')
    srd(a,sR,32,33,WS_O)
    a(f'buffer_load_dwordx4 v{vDma}, s[{sR}:{sR+3}], s{st0} offen lds')
    a(f's_add_u32 m0, s{st1}, 8192')
    a(f'buffer_load_dwordx4 {vr(vQ1,4)}, v{vDma}, s[{sR}:{sR+3}], s{st3} offen')
    a(f'buffer_load_dwordx2 {vr(vQ2,2)}, v{vQ2o}, s[{sR}:{sR+3}], s{st3} offen')
    a(f'buffer_load_dwordx4 v{vDma}, s[{sR}:{sR+3}], s{st2} offen lds')
    a(f's_add_u32 s34, s32, {WS_O}')
    a('s_addc_u32 s35, s33, 0')
    srd(a,sOo,34,35,WS_END-WS_O)
    p.stamp()
    a(f'v_lshrrev_b32 v{vt0}, 5, v{vLane}')
    a(f'v_lshlrev_b32 v{vK1a}, 4, v{vLane}')
    a(f'v_mul_u32_u24 v{vVa}, 320, v{vt0}')
    a(f'v_lshl_add_u32 v{vVa}, v{vRho}, 4, v{vVa}')
    a(f'v_add_u32 v{vVa}, 1280, v{vVa}')
    a(f'v_and_b32 v{vt1}, 7, v{vRho}')
    a(f'v_bfe_u32 v{vt2}, v{vRho}, 3, 1')
    a(f'v_lshl_or_b32 v{vt1}, v{vt2}, 4, v{vt1}')
    a(f'v_bfe_u32 v{vt2}, v{vRho}, 4, 1')
    a(f'v_lshl_or_b32 v{vKap}, v{vt2}, 3, v{vt1}')
    a(f'v_lshlrev_b32 v{vt3}, 2, v{vt0}')
    a(f'v_sub_u32 v{vt3}, v{vKap}, v{vt3}')
    a(f'v_mov_b32 v{vt2}, {NEG_BIG:#x}')
    for r in range(16):
        base=(r&3)+8*(r>>2)
        kb=((base>>3)&1)<<4 | ((base>>4)&1)<<3 | (base&7)
        a(f'v_cmp_gt_i32 s[{sM+2*(r&1)}:{sM+1+2*(r&1)}], {kb}, v{vt3}' if False else f'v_cmp_gt_i32 s[{38+2*(r&3)}:{39+2*(r&3)}], {kb}, v{vt3}')
        if r>=2:
            q=r-2
            a(f'v_cndmask_b32 v{vMF+q}, v{vt2}, 0, s[{38+2*(q&3)}:{39+2*(q&3)}]')
            a(f'v_cndmask_b32 v{vML+q}, 0, v{vt2}, s[{38+2*(q&3)}:{39+2*(q&3)}]')
    a('s_nop 1')
    for q in (14,15):
        a(f'v_cndmask_b32 v{vMF+q}, v{vt2}, 0, s[{38+2*(q&3)}:{39+2*(q&3)}]')
        a(f'v_cndmask_b32 v{vML+q}, 0, v{vt2}, s[{38+2*(q&3)}:{39+2*(q&3)}]')
    a(f's_cmp_lg_u32 s{sJ}, 0')
    a('s_cbranch_scc1 L_mf_ok')
    for r in range(16): a(f'v_mov_b32 v{vMF+r}, v{vt2}')
    a.lab('L_mf_ok')
    vinit()
    a(f's_lshl_b32 s{st0}, s{sJ}, 3')
    a(f's_add_u32 s{st0}, s{st0}, s{sWV}')
    a(f's_mul_i32 s{st0}, s{st0}, 40960')
    a(f'v_lshrrev_b32 v{vt1}, 4, v{vKap}')
    a(f'v_mul_u32_u24 v{vt1}, 20480, v{vt1}')
    a(f'v_and_b32 v{vt2}, 15, v{vKap}')
    a(f'v_lshl_add_u32 v{vt1}, v{vt2}, 4, v{vt1}')
    a(f'v_add_u32 v{vOoff}, s{st0}, v{vt1}')
    for r in range(16): a(f'v_mov_b32 v{vO+r}, 0')
    for i in range(4): a(f'v_mov_b32 v{vP+4+i}, 0')

    def rd_k1(dst,off): a(f'ds_read_b128 {vr(dst,4)}, v{vK1a} offset:{off}')
    def rd_k2(dst,off): a(f'ds_read_b64 {vr(dst,2)}, v{vK2a} offset:{off}')
    def rd_v(buf,off):
        a(f's_mov_b64 exec, s[{sVm}:{sVm+1}]')
        a(f'ds_read_b128 {vr(vV+8*buf,4)}, v{vVa} offset:{off}')
        a(f'ds_read_b128 {vr(vV+8*buf+4,4)}, v{vVa} offset:{off+640}')
        a('s_mov_b64 exec, -1')
    def qk1(S,C,K=None): a(f'v_mfma_f32_32x32x16_bf16 {vr(S,16)}, {vr(vK1 if K is None else K,4)}, {vr(vQ1,4)}, {C}')
    def qk2(S,K=None): a(f'v_mfma_f32_32x32x8bf16_1k {vr(S,16)}, {vr(vK2 if K is None else K,2)}, {vr(vQ2,2)}, {vr(S,16)}')
    def pv(buf,t): a(f'v_mfma_f32_32x32x16_bf16 {vr(vO,16)}, {vr(vV+8*buf+4*t,4)}, {vr(vP+4*t,4)}, {vr(vO,16)}')
    def ex(S,r): a(f'v_exp_f32 v{S+r}, v{S+r}')
    def cv(S,c): a(f'v_cvt_pk_bf16_f32 v{vP+c}, v{S+2*c}, v{S+2*c+1}')
    def rowmax(S,first):
        if first:
            a(f'v_max3_f32 v{vM}, v{S}, v{S+1}, v{S+2}'); rest=list(range(3,16))
        else: rest=list(range(16))
        while len(rest)>=2:
            a(f'v_max3_f32 v{vM}, v{vM}, v{S+rest[0]}, v{S+rest[1]}'); rest=rest[2:]
        if rest: a(f'v_max_f32 v{vM}, v{vM}, v{S+rest[0]}')
    def xhalf_max():
        a(f'v_mov_b32 v{vt1}, v{vM}')
        a('s_nop 1')
        a(f'v_permlane32_swap_b32 v{vM}, v{vt1}')
        a('s_nop 1')
        a(f'v_max_f32 v{vM}, v{vM}, v{vt1}')
    def get_l():
        a(f'v_mov_b32 v{vt1}, v{vO+8}')
        a(f'v_mov_b32 v{vt2}, v{vO+8}')
        a('s_nop 1')
        a(f'v_permlane32_swap_b32 v{vt1}, v{vt2}')
        a('s_nop 1')
    def store_o(br):
        a(f'v_rcp_f32 v{vt3}, v{vt2}')
        a(f's_mul_i32 s{st0}, s{sHD}, 5')
        a(f'v_lshrrev_b32 v{vt0}, 5, v{vLane}')
        for i in range(12): a(f'v_mul_f32 v{vO+i}, v{vO+i}, v{vt3}')
        for i in range(6): a(f'v_cvt_pk_bf16_f32 v{vP+i}, v{vO+2*i}, v{vO+2*i+1}')
        a(f's_mov_b32 s{st1}, {br*2048*1280}')
        for k,qb in enumerate((0,2,4)):
            a(f'v_add_u32 v{vt4}, s{st0}, v{vt0}')
            if qb: a(f'v_add_u32 v{vt4}, {qb}, v{vt4}')
            a(f'v_lshrrev_b32 v{vt5}, 3, v{vt4}')
            a(f'v_lshlrev_b32 v{vt5}, 10, v{vt5}')
            a(f'v_and_b32 v{vt1}, 3, v{vt4}')
            a(f'v_lshl_add_u32 v{vt5}, v{vt1}, 8, v{vt5}')
            a(f'v_bfe_u32 v{vt1}, v{vt4}, 2, 1')
            a(f'v_lshl_add_u32 v{vt5}, v{vt1}, 3, v{vt5}')
            a(f'v_add_u32 v{vt5}, v{vt5}, v{vOoff}')
            if k==2: a(f's_mov_b64 exec, s[{sLo}:{sLo+1}]')
            a(f'buffer_store_dwordx2 {vr(vP+2*k,2)}, v{vt5}, s[{sOo}:{sOo+3}], s{st1} offen')
            if k==2: a('s_mov_b64 exec, -1')
    def addr_add(s):
        a(f'v_add_u32 v{vK1a}, s{s}, v{vK1a}')
        a(f'v_add_u32 v{vK2a}, s{s}, v{vK2a}')
        a(f'v_add_u32 v{vVa}, s{s}, v{vVa}')
    def addr_addi(imm):
        a(f'v_add_u32 v{vK1a}, {imm}, v{vK1a}')
        a(f'v_add_u32 v{vK2a}, {imm}, v{vK2a}')
        a(f'v_add_u32 v{vVa}, {imm}, v{vVa}')
    def tile(t,off,Cn,last=False,last2=False,guard=None,hook=None):
        cur=vS[t&1]; nxt=vS[(t+1)&1]
        def G(fn,nm):
            if guard:
                a(f's_cmp_eq_u32 s{sIT}, 3'); a(f's_cbranch_scc1 {guard}_{nm}'); fn(); a.lab(f'{guard}_{nm}')
            else: fn()
        a('s_waitcnt lgkmcnt(0)')
        if hook: hook()
        if not last:
            if guard and guard.endswith('15'): G(lambda: (qk1(nxt,Cn)),'a')
            else: qk1(nxt,Cn)
        if not last and not last2:
            if guard: G(lambda: rd_k1(vK1,off+2*TILE),'b')
            else: rd_k1(vK1,off+2*TILE)
        for r in range(0,4): ex(cur,r)
        pv((t+1)&1,1)
        if not last:
            if guard and guard.endswith('15'): G(lambda: rd_v((t+1)&1,off+TILE),'c')
            else: rd_v((t+1)&1,off+TILE)
        ex(cur,4); ex(cur,5); cv(cur,0); ex(cur,6); cv(cur,1); ex(cur,7)
        if not last:
            if guard and guard.endswith('15'): G(lambda: qk2(nxt),'d')
            else: qk2(nxt)
        if not last and not last2:
            if guard: G(lambda: rd_k2(vK2,off+2*TILE),'e')
            else: rd_k2(vK2,off+2*TILE)
        ex(cur,8); cv(cur,2); ex(cur,9); cv(cur,3); ex(cur,10); ex(cur,11)
        pv(t&1,0)
        ex(cur,12); ex(cur,13); cv(cur,4); ex(cur,14); cv(cur,5); ex(cur,15); cv(cur,6); cv(cur,7)

    def prio_switch(phase,L):
        a(f's_cmp_lt_u32 s{sWV}, 4')
        a(f's_cbranch_scc{1-phase} {L}_hi')
        a('s_setprio 0')
        a(f's_branch {L}_d')
        a.lab(f'{L}_hi')
        a('s_setprio 1')
        a.lab(f'{L}_d')
    p.stamp()
    a('s_waitcnt vmcnt(0)')
    a('s_barrier')
    p.stamp()
    rd_k1(vK1,0); rd_k2(vK2,0)
    a('s_waitcnt lgkmcnt(0)')
    qk1(vS[0],'0'); qk2(vS[0])
    rd_v(0,0)
    a('s_nop 12')
    rowmax(vS[0],True)
    xhalf_max()
    for r in range(16): a(f'v_sub_f32 v{vC+r}, 0, v{vM}')
    a('s_nop 1')
    qk1(vS[0],vr(vC,16)); qk2(vS[0])
    rd_k1(vK1,TILE); rd_k2(vK2,TILE)
    a(f's_mov_b32 s{sIT}, 0')
    a.lab('L_b_loop')
    for t in range(16):
        hook=None
        if t==4:
            def hook():
                a(f's_cmp_lg_u32 s{sIT}, 0'); a('s_cbranch_scc1 L_b_nb4'); a('s_barrier'); a.lab('L_b_nb4')
        if t==12:
            def hook():
                a(f's_cmp_gt_u32 s{sIT}, 2'); a('s_cbranch_scc1 L_b_nb12'); a('s_barrier')
                a(f's_cmp_lg_u32 s{sIT}, 1'); a('s_cbranch_scc1 L_b_nb12')
                a(f'buffer_load_dwordx4 {vr(vQA1,4)}, v{vDma}, s[{sR}:{sR+3}], s{sQA} offen')
                a(f'buffer_load_dwordx2 {vr(vQA2,2)}, v{vQ2o}, s[{sR}:{sR+3}], s{sQA} offen')
                a.lab('L_b_nb12')
        if PRIO and t%PRIO==0:
            oldhook=hook
            def hook(oldhook=oldhook,t=t):
                if oldhook: oldhook()
                prio_switch((t//PRIO)&1, f'L_pr{t}')
        tile(t,t*TILE,vr(vC,16),guard=(f'L_bg{t}' if t>=14 else None),hook=hook)
    addr_addi(16*TILE)
    if PROF:
        n0=p.n
        for k in range(4):
            a(f's_cmp_lg_u32 s{sIT}, {k}'); a(f's_cbranch_scc1 L_st{k}'); p.stamp(); a.lab(f'L_st{k}')
    a(f's_add_u32 s{sIT}, s{sIT}, 1')
    a(f's_cmp_lt_u32 s{sIT}, 4')
    a('s_cbranch_scc1 L_b_loop')
    a('s_nop 1')
    pv(1,1)
    a('s_nop 15')
    p.stamp()
    get_l()
    a(f'v_mov_b32 v{vt3}, {f32bits(2.0**100):#x}')
    a(f'v_cmp_nlt_f32 vcc, v{vt2}, v{vt3}')
    a('s_nop 4')
    a('s_cbranch_vccnz L_b_fallback')
    a.lab('L_b_store')
    store_o(1)
    p.stamp()
    a(f's_mul_i32 s{st0}, s{sWV}, {TILE}')
    a(f's_sub_u32 s{st0}, s{st0}, {64*TILE}')
    addr_add(st0)
    a('s_waitcnt vmcnt(3)')
    for i in range(4): a(f'v_mov_b32 v{vQ1+i}, v{vQA1+i}')
    for i in range(2): a(f'v_mov_b32 v{vQ2+i}, v{vQA2+i}')
    a(f's_sub_u32 s{sSw}, 8, s{sWV}')
    a(f's_cmp_lg_u32 s{sJ}, 0')
    a(f's_cselect_b32 s{sSw}, 0, s{sSw}')
    p.stamp()
    KR=[(vV,vV+4),(vV+8,vV+12),(vP,vP+4)]
    SB=[vS[0],vS[1],vO]
    def cmid_init(valid_val):
        a(f's_cmp_le_u32 s{sSw}, 1')
        a(f's_cbranch_scc1 L_cm_{valid_val[0]}_v')
        for r in range(16): a(f'v_mov_b32 v{vC+r}, {NEG_BIG:#x}')
        a(f's_branch L_cm_{valid_val[0]}_d')
        a.lab(f'L_cm_{valid_val[0]}_v')
        for r in range(16): a(f'v_mov_b32 v{vC+r}, {valid_val[1]}')
        a.lab(f'L_cm_{valid_val[0]}_d')
    def cmid_switch(tag,t,val):
        a(f's_cmp_lg_u32 s{sSw}, {t}')
        a(f's_cbranch_scc1 L_sw_{tag}_{t}')
        a('s_nop 15')
        for r in range(16): a(f'v_mov_b32 v{vC+r}, {val}')
        a('s_nop 1')
        a.lab(f'L_sw_{tag}_{t}')
    cmid_init(('p1','0'))
    for i in range(3):
        rd_k1(KR[i][0],i*TILE); rd_k2(KR[i][1],i*TILE)
    for b in range(3):
        a('s_waitcnt lgkmcnt(0)')
        for i in range(3):
            t=3*b+i
            if 2<=t<=7: cmid_switch('p1',t,'0')
            C = vr(vMF,16) if t==0 else (vr(vML,16) if t==8 else vr(vC,16))
            qk1(SB[i],C,KR[i][0]); qk2(SB[i],KR[i][1])
        if b<2:
            for i in range(3):
                t=3*(b+1)+i
                rd_k1(KR[i][0],t*TILE); rd_k2(KR[i][1],t*TILE)
        if b==2:
            rd_k1(vK1,0); rd_k2(vK2,0)
        a('s_nop 7')
        for i in range(3):
            if i==2: a('s_nop 3')
            rowmax(SB[i],b==0 and i==0)
    xhalf_max()
    a(f'v_sub_f32 v{vM}, 0, v{vM}')
    for r in range(16): a(f'v_add_f32 v{vMF+r}, v{vMF+r}, v{vM}')
    for r in range(16): a(f'v_add_f32 v{vML+r}, v{vML+r}, v{vM}')
    cmid_init(('p2',f'v{vM}'))
    for r in range(16): a(f'v_mov_b32 v{vO+r}, 0')
    vinit()
    for i in range(4): a(f'v_mov_b32 v{vP+4+i}, 0')
    a('s_waitcnt lgkmcnt(0)')
    qk1(vS[0],vr(vMF,16)); qk2(vS[0])
    rd_k1(vK1,TILE); rd_v(0,0); rd_k2(vK2,TILE)
    for t in range(9):
        hook=None
        tn=t+1
        if 2<=tn<=7:
            def hook(tn=tn): cmid_switch('p2',tn,f'v{vM}')
        Cn = vr(vML,16) if tn==8 else vr(vC,16)
        if PRIO and t%PRIO==0:
            oldhook=hook
            def hook(oldhook=oldhook,t=t):
                if oldhook: oldhook()
                prio_switch((t//PRIO)&1, f'L_apr{t}')
        tile(t,t*TILE,Cn,last=(t==8),last2=(t==7),hook=hook)
    a('s_nop 1')
    pv(0,1)
    a('s_nop 15')
    get_l()
    store_o(0)
    p.stamp()
    if PROF: a('s_waitcnt vmcnt(0)')
    p.stamp(); p.real(1)
    p.dump(sWV,9)
    a('s_endpgm')
    a.lab('L_loader')
    a(f's_lshr_b32 s{sN}, s{sJ}, 1')
    a(f's_mul_i32 s{sN}, s{sN}, 40960')
    a(f's_add_u32 s{sN}, s{sN}, 16384')
    a(f's_mov_b32 s{sLd}, 16384')
    a('s_waitcnt lgkmcnt(0)')
    srd(a,sR,32,33,WS_O)
    lid=[0]
    def load_rows(n):
        lid[0]+=1; L=f'L_ld{lid[0]}'
        a(f's_mov_b32 s{sIT}, {n}')
        a.lab(L)
        a(f's_add_u32 s{st0}, s{sHB}, s{sN}')
        a(f's_mov_b32 m0, s{sLd}')
        a(f's_add_u32 s{st1}, s{st0}, 4096')
        for c in range(4): a(f'buffer_load_dwordx4 v{vDma}, s[{sR}:{sR+3}], s{st0} offen offset:{c*1024} lds')
        a(f's_add_u32 m0, s{sLd}, 4096')
        a(f's_add_u32 s{sN}, s{sN}, 8192')
        for c in range(4): a(f'buffer_load_dwordx4 v{vDma}, s[{sR}:{sR+3}], s{st1} offen offset:{c*1024} lds')
        a(f's_add_u32 s{sLd}, s{sLd}, 8192')
        a(f's_cmp_eq_u32 s{sN}, 163840')
        a(f's_cselect_b32 s{sN}, 0, s{sN}')
        a(f's_sub_u32 s{sIT}, s{sIT}, 1')
        a(f's_cmp_lg_u32 s{sIT}, 0')
        a(f's_cbranch_scc1 {L}')
    a('s_barrier')
    load_rows(3); a('s_waitcnt vmcnt(0)'); a('s_barrier')
    load_rows(5); a('s_waitcnt vmcnt(0)'); a('s_barrier')
    load_rows(5); a('s_waitcnt vmcnt(20)'); load_rows(5); a('s_waitcnt vmcnt(0)'); a('s_barrier')
    a(f's_sub_u32 s{sHB}, s{sHB}, {32*64*TILE+20480}')
    a(f's_mul_i32 s{sN}, s{sJ}, 20480')
    a(f's_add_u32 s{sHB}, s{sHB}, s{sN}')
    a(f's_mov_b32 s{sN}, 0')
    a(f's_mov_b32 s{sLd}, 0')
    load_rows(5); a('s_waitcnt vmcnt(0)'); a('s_barrier')
    if PROF:
        for i in range(1,12): p.a(f's_mov_b64 s[{60+2*i}:{61+2*i}], s[60:61]')
        p.real(1); n0=p.n; p.dump(sWV,9)
    a('s_endpgm')
    a.lab('L_b_fallback')
    a(f'v_lshlrev_b32 v{vt4}, 3, v{vRho}')
    a(f'v_add_u32 v{vt4}, 1024, v{vt4}')
    a(f'v_lshrrev_b32 v{vt0}, 5, v{vLane}')
    a(f'v_mul_u32_u24 v{vt5}, 320, v{vt0}')
    a(f'v_lshl_add_u32 v{vt5}, v{vRho}, 4, v{vt5}')
    a(f'v_add_u32 v{vt5}, 1280, v{vt5}')
    a(f'v_mov_b32 v{vM}, {NEG_BIG:#x}')
    a(f's_mov_b32 s{st0}, s{sHB}')
    a(f's_mov_b32 s{sIT}, 64')
    a.lab('L_fb_p1')
    a(f'buffer_load_dwordx4 {vr(vK1,4)}, v{vDma}, s[{sR}:{sR+3}], s{st0} offen')
    a(f'buffer_load_dwordx2 {vr(vK2,2)}, v{vt4}, s[{sR}:{sR+3}], s{st0} offen')
    a('s_waitcnt vmcnt(0)')
    qk1(vS[0],'0'); qk2(vS[0])
    a('s_nop 15')
    rowmax(vS[0],False)
    a(f's_add_u32 s{st0}, s{st0}, {TILE}')
    a(f's_sub_u32 s{sIT}, s{sIT}, 1')
    a(f's_cmp_lg_u32 s{sIT}, 0')
    a('s_cbranch_scc1 L_fb_p1')
    xhalf_max()
    for r in range(16): a(f'v_sub_f32 v{vC+r}, 0, v{vM}')
    for r in range(16): a(f'v_mov_b32 v{vO+r}, 0')
    a(f's_mov_b32 s{st0}, s{sHB}')
    a(f's_mov_b32 s{sIT}, 64')
    a.lab('L_fb_p2')
    a(f'buffer_load_dwordx4 {vr(vK1,4)}, v{vDma}, s[{sR}:{sR+3}], s{st0} offen')
    a(f'buffer_load_dwordx2 {vr(vK2,2)}, v{vt4}, s[{sR}:{sR+3}], s{st0} offen')
    a(f's_mov_b64 exec, s[{sVm}:{sVm+1}]')
    a(f'buffer_load_dwordx4 {vr(vV,4)}, v{vt5}, s[{sR}:{sR+3}], s{st0} offen')
    a(f'buffer_load_dwordx4 {vr(vV+4,4)}, v{vt5}, s[{sR}:{sR+3}], s{st0} offen offset:640')
    a('s_mov_b64 exec, -1')
    a('s_waitcnt vmcnt(0)')
    qk1(vS[0],vr(vC,16)); qk2(vS[0])
    a('s_nop 15')
    for r in range(16): ex(vS[0],r)
    a('s_nop 0')
    for c in range(8): cv(vS[0],c)
    a('s_nop 1')
    pv(0,0); pv(0,1)
    a(f's_add_u32 s{st0}, s{st0}, {TILE}')
    a(f's_sub_u32 s{sIT}, s{sIT}, 1')
    a(f's_cmp_lg_u32 s{sIT}, 0')
    a('s_cbranch_scc1 L_fb_p2')
    a('s_nop 15')
    get_l()
    a('s_branch L_b_store')
    a.lab(f'L_{name}_end')
    a('s_endpgm')
    return a.txt(), kd(name, vEnd)

def gen_proj(NPH=5):
    a=A(); name='proj_kernel'
    head(a,name)
    p=Prof(a,2)
    sX,sW,sO=4,8,12
    sBR,sMT,sNT,sWV=26,27,28,29
    st0,st1,st2,st3=41,42,43,44
    sROT=30; sPH=31
    vLane=1; vXo=2; vt0=4; vt1=5; vt2=6; vt3=7; vTok=8; vG=9; vTr=10; vOut=11; vTr2=12; vWo=13; vCc=14
    vX=16
    vWf=vX+160
    vAcc=vWf+40
    vEnd=vAcc+40
    assert vEnd<=256
    spp=20//NPH
    a('s_cmp_ge_u32 s2, 256')
    a(f's_cbranch_scc1 L_{name}_end')
    p.real(0); p.stamp()
    a('s_load_dwordx2 s[16:17], s[0:1], 16')
    a('s_load_dwordx2 s[18:19], s[0:1], 40')
    a('s_load_dwordx2 s[20:21], s[0:1], 48')
    a('s_load_dwordx2 s[24:25], s[0:1], 64')
    a(f'v_and_b32 v{vLane}, 63, v0')
    a(f'v_lshrrev_b32 v{vt0}, 6, v0')
    a(f's_and_b32 s{st0}, s2, 7')
    a(f's_lshr_b32 s{st1}, s2, 3')
    a(f'v_readfirstlane_b32 s{sWV}, v{vt0}')
    a(f's_lshr_b32 s{sBR}, s{st0}, 2')
    a(f's_and_b32 s{st2}, s{st0}, 3')
    a(f's_lshl_b32 s{st2}, s{st2}, 2')
    a(f's_and_b32 s{st3}, s{st1}, 3')
    a(f's_add_u32 s{sMT}, s{st2}, s{st3}')
    a(f's_lshr_b32 s{sNT}, s{st1}, 2')
    a(f's_add_u32 s{sROT}, s{sNT}, s{st3}')
    a(f's_cmp_ge_u32 s{sROT}, 10')
    a(f's_cselect_b32 s{st0}, 10, 0')
    a(f's_sub_u32 s{sROT}, s{sROT}, s{st0}')
    a(f's_cmp_ge_u32 s{sROT}, 5')
    a(f's_cselect_b32 s{st0}, 5, 0')
    a(f's_sub_u32 s{sROT}, s{sROT}, s{st0}')
    a(f's_cmp_ge_u32 s{sWV}, 4')
    a(f's_cbranch_scc1 L_proj_loader')
    a(f'v_and_b32 v{vTok}, 15, v{vLane}')
    a(f'v_lshrrev_b32 v{vG}, 4, v{vLane}')
    a(f'v_lshlrev_b32 v{vXo}, 4, v{vLane}')
    a(f's_lshl_b32 s{st0}, s{sMT}, 3')
    a(f's_lshl_b32 s{st1}, s{sWV}, 1')
    a(f's_add_u32 s{st0}, s{st0}, s{st1}')
    a(f's_mul_i32 s32, s{st0}, 20480')
    a(f's_mul_i32 s{st0}, s{sBR}, {2048*1280}')
    a(f's_add_u32 s{st0}, s{st0}, {WS_O}')
    a(f's_mov_b32 s{sPH}, s{sROT}')
    a('s_waitcnt lgkmcnt(0)')
    a(f's_add_u32 s24, s24, s{st0}')
    a('s_addc_u32 s25, s25, 0')
    srd(a,sX,24,25,2048*1280)
    for ph in range(NPH):
        a(f's_mul_i32 s{st0}, s{sPH}, {spp*1024}')
        a(f's_add_u32 s33, s32, s{st0}')
        a(f's_add_u32 s34, s33, 20480')
        for s_ in range(spp):
            st=ph*spp+s_
            for u in range(2):
                a(f'buffer_load_dwordx4 {vr(vX+(st*2+u)*4,4)}, v{vXo}, s[{sX}:{sX+3}], s{33+u} offen offset:{s_*1024}')
        a(f's_add_u32 s{sPH}, s{sPH}, 1')
        a(f's_cmp_eq_u32 s{sPH}, {NPH}')
        a(f's_cselect_b32 s{sPH}, 0, s{sPH}')
    srd(a,sO,20,21,2048*2560)
    p.stamp()
    a(f'v_bfe_u32 v{vt0}, v{vLane}, 2, 2')
    a(f'v_lshl_add_u32 v{vt0}, v{vG}, 2, v{vt0}')
    a(f'v_mul_u32_u24 v{vt0}, 160, v{vt0}')
    a(f'v_and_b32 v{vt1}, 3, v{vLane}')
    a(f'v_lshl_add_u32 v{vTr}, v{vt1}, 3, v{vt0}')
    a(f'v_add_u32 v{vTr2}, 61440, v{vTr}')
    for i in range(40): a(f'v_mov_b32 v{vAcc+i}, 0')
    a(f's_lshl_b32 s{st0}, s{sMT}, 7')
    a(f's_lshl_b32 s{st1}, s{sWV}, 5')
    a(f's_add_u32 s{st0}, s{st0}, s{st1}')
    a(f'v_add_u32 v{vt0}, s{st0}, v{vTok}')
    a(f'v_mul_u32_u24 v{vt0}, 2560, v{vt0}')
    a(f'v_and_b32 v{vt1}, 1, v{vG}')
    a(f'v_lshlrev_b32 v{vt1}, 5, v{vt1}')
    a(f'v_lshrrev_b32 v{vt2}, 1, v{vG}')
    a(f'v_lshl_add_u32 v{vt1}, v{vt2}, 4, v{vt1}')
    a(f'v_add_u32 v{vOut}, v{vt0}, v{vt1}')
    a(f'v_lshl_add_u32 v{vt3}, v{vG}, 3, v{vt0}')
    def trr(s,cp,h):
        off=s*32*160+cp*32+h*2560
        buf=vWf+(s&1)*20+cp*4+2*h
        if off<61440: return f'ds_read_b64_tr_b16 {vr(buf,2)}, v{vTr} offset:{off}'
        return f'ds_read_b64_tr_b16 {vr(buf,2)}, v{vTr2} offset:{off-61440}'
    for ph in range(NPH):
        a(f's_waitcnt vmcnt({2*(20-spp*(ph+1))})')
        a('s_barrier')
        if ph==0: p.stamp()
        for s in range(spp*ph,spp*(ph+1)):
            first=(s%spp==0)
            if first:
                for cp in range(5):
                    a(trr(s,cp,0)); a(trr(s,cp,1))
            nxt=[]
            if (s+1)%spp!=0:
                nxt=[trr(s+1,cp,h) for cp in range(5) for h in range(2)]
            buf=vWf+(s&1)*20
            a(f's_waitcnt lgkmcnt(0)')
            for cp in range(5):
                for u in range(2):
                    ac=vAcc+(cp*2+u)*4
                    a(f'v_mfma_f32_16x16x32_bf16 {vr(ac,4)}, {vr(buf+cp*4,4)}, {vr(vX+(s*2+u)*4,4)}, {vr(ac,4)}')
                    if nxt: a(nxt.pop(0))
    a('s_nop 7')
    p.stamp()
    a(f's_mul_i32 s{st0}, s{sBR}, 1280')
    a(f's_mul_i32 s{st1}, s{sNT}, 160')
    a(f's_add_u32 s{st0}, s{st0}, s{st1}')
    a(f's_add_u32 s{st1}, s{st0}, {16*2560}')
    for u in range(2):
        for cp in range(5):
            b=vAcc+(cp*2+u)*4
            a(f'v_cvt_pk_bf16_f32 v{b}, v{b}, v{b+1}')
            a(f'v_cvt_pk_bf16_f32 v{b+1}, v{b+2}, v{b+3}')
        for cp in (0,2):
            b=vAcc+(cp*2+u)*4; b2=vAcc+((cp+1)*2+u)*4
            a(f'v_mov_b32 v{b+2}, v{b2}')
            a(f'v_mov_b32 v{b+3}, v{b2+1}')
            a('s_nop 1')
            a(f'v_permlane16_swap_b32 v{b}, v{b+2}')
            a(f'v_permlane16_swap_b32 v{b+1}, v{b+3}')
            a('s_nop 1')
            a(f'buffer_store_dwordx4 {vr(b,4)}, v{vOut}, s[{sO}:{sO+3}], s{st0+u} offen offset:{cp*32}')
        b=vAcc+(4*2+u)*4
        a(f'buffer_store_dwordx2 {vr(b,2)}, v{vt3}, s[{sO}:{sO+3}], s{st0+u} offen offset:128')
    p.stamp()
    if PROF: a('s_waitcnt vmcnt(0)')
    p.stamp(); p.real(1)
    p.dump(sWV,8)
    a('s_endpgm')
    a.lab('L_proj_loader')
    a(f's_sub_u32 s{sWV}, s{sWV}, 4')
    a(f's_lshl_b32 s{st0}, s{sWV}, 6')
    a(f'v_add_u32 v{vt0}, s{st0}, v{vLane}')
    a(f'v_mul_u32_u24 v{vt1}, 52429, v{vt0}')
    a(f'v_lshrrev_b32 v{vt1}, 19, v{vt1}')
    a(f'v_mul_u32_u24 v{vt2}, 10, v{vt1}')
    a(f'v_sub_u32 v{vCc}, v{vt0}, v{vt2}')
    a(f'v_mul_u32_u24 v{vt1}, 1280, v{vt1}')
    a(f'v_lshl_add_u32 v{vWo}, v{vCc}, 4, v{vt1}')
    vWm=20
    for m in range(5):
        a(f'v_mov_b32 v{vWm+m}, v{vWo}')
        if m<4:
            a(f'v_add_u32 v{vCc}, 6, v{vCc}')
            a(f'v_cmp_le_u32 s[56:57], 10, v{vCc}')
            a(f'v_add_u32 v{vWo}, {25*1280+96}, v{vWo}')
            a(f'v_add_u32 v{vt0}, {1280-160}, v{vWo}')
            a(f'v_subrev_u32 v{vt1}, 10, v{vCc}')
            a(f'v_cndmask_b32 v{vWo}, v{vWo}, v{vt0}, s[56:57]')
            a(f'v_cndmask_b32 v{vCc}, v{vCc}, v{vt1}, s[56:57]')
    a(f's_mul_i32 s34, s{sNT}, 160')
    a(f's_lshl_b32 s35, s{sWV}, 10')
    a(f's_mov_b32 s{sPH}, s{sROT}')
    a('s_waitcnt lgkmcnt(0)')
    a(f's_cmp_eq_u32 s{sBR}, 0')
    a('s_cselect_b64 s[16:17], s[16:17], s[18:19]')
    srd(a,sW,16,17,640*1280)
    for ph in range(NPH):
        a(f's_mul_i32 s{st0}, s{sPH}, {128*1280}')
        a(f's_add_u32 s{st0}, s{st0}, s34')
        for m in range(5):
            a(f's_add_u32 m0, s35, {ph*20480+m*4096}')
            a(f'buffer_load_dwordx4 v{vWm+m}, s[{sW}:{sW+3}], s{st0} offen lds')
        a(f's_add_u32 s{sPH}, s{sPH}, 1')
        a(f's_cmp_eq_u32 s{sPH}, {NPH}')
        a(f's_cselect_b32 s{sPH}, 0, s{sPH}')
        if ph>=1:
            a('s_waitcnt vmcnt(5)')
            a('s_barrier')
    a('s_waitcnt vmcnt(0)')
    a('s_barrier')
    if PROF:
        a(f's_add_u32 s{sWV}, s{sWV}, 4')
        for i in range(1,8): p.a(f's_mov_b64 s[{60+2*i}:{61+2*i}], s[60:61]')
        p.real(1); p.dump(sWV,8)
    a('s_endpgm')
    a.lab(f'L_{name}_end')
    a('s_endpgm')
    return a.txt(), kd(name, vEnd)

def assemble(parts, launches):
    hdr=open('cdna_kernels/'+NAME+'.s.ref').read().split('\n')
    out=[]
    for l in hdr:
        if l.startswith('; @launch') or l.startswith('; Override') or l.startswith('; grid='): continue
        if not l.startswith(';'): break
        out.append(l)
    for k,g,b,lds in launches:
        out.append(f'; @launch kernel={k} grid=({g},1,1) block=({b},1,1) lds={lds}')
    out.append('.amdgcn_target "amdgcn-amd-amdhsa--gfx950"')
    out.append('.text')
    s='\n'.join(out)+'\n'
    for code,desc in parts: s+=code
    for code,desc in parts: s+=desc
    return s

if __name__=='__main__':
    if len(sys.argv)>2 and sys.argv[2]=='prof': PROF=True
    kw=eval(sys.argv[3]) if len(sys.argv)>3 else {}
    parts=[gen_qkv(**kw.get('qkv',{})),gen_attn(**kw.get('attn',{})),gen_proj(**kw.get('proj',{}))]
    launches=[('qkv_kernel',256,512,147456),('attn_kernel',256,576,163840),('proj_kernel',256,512,102400)]
    open(sys.argv[1] if len(sys.argv)>1 else 'k.s','w').write(assemble(parts,launches))
```

```python
import sys, math

NAME='concat_heads__sliding_block__mha_block__prompt'
WS_Q=0
WS_KV=2*32*64*1280
WS_O=WS_KV+2*32*64*2560
WS_END=WS_O+2*2048*1280
CSCALE=(20.0**-0.5)*math.log2(math.e)
import struct
def f32bits(x): return struct.unpack('<I',struct.pack('<f',x))[0]

class A:
    def __init__(s): s.l=[]
    def __call__(s,x): s.l.append('  '+x)
    def lab(s,x): s.l.append(x+':')
    def c(s,x): s.l.append('  ; '+x)
    def raw(s,x): s.l.append(x)
    def txt(s): return '\n'.join(s.l)+'\n'

def vr(a,n=1): return f'v{a}' if n==1 else f'v[{a}:{a+n-1}]'
def sr(a,n=1): return f's{a}' if n==1 else f's[{a}:{a+n-1}]'

def kd(name, vgpr, sgpr=96):
    return f'''.section .rodata,"a"
.p2align 6
.amdhsa_kernel {name}
  .amdhsa_next_free_vgpr {vgpr}
  .amdhsa_next_free_sgpr {sgpr}
  .amdhsa_accum_offset {(vgpr+3)//4*4}
  .amdhsa_group_segment_fixed_size 0
  .amdhsa_kernarg_size 72
  .amdhsa_user_sgpr_count 2
  .amdhsa_user_sgpr_kernarg_segment_ptr 1
  .amdhsa_system_sgpr_workgroup_id_x 1
.end_amdhsa_kernel
.text
'''

PROF=False
PROF_BASE=32<<20
class Prof:
    def __init__(s,a,kid): s.a=a; s.n=0; s.kid=kid
    def stamp(s):
        if not PROF: return
        s.a(f's_memtime s[{60+2*s.n}:{61+2*s.n}]'); s.n+=1
    def real(s,idx):
        if not PROF: return
        s.a(f's_memrealtime s[{84+2*idx}:{85+2*idx}]')
    def dump(s,wave_sgpr,nwaves,n=None):
        if not PROF: return
        a=s.a
        n=n or s.n
        a('s_waitcnt lgkmcnt(0) vmcnt(0)')
        a('s_load_dwordx2 s[88:89], s[0:1], 64')
        a(f's_mul_i32 s90, s2, {nwaves}')
        a(f's_add_u32 s90, s90, s{wave_sgpr}')
        a('s_lshl_b32 s90, s90, 6')
        a(f's_add_u32 s90, s90, {PROF_BASE+s.kid*(1<<20)}')
        a('s_waitcnt lgkmcnt(0)')
        a('s_add_u32 s88, s88, s90')
        a('s_addc_u32 s89, s89, 0')
        a('v_mov_b32 v0, 0')
        a('s_mov_b64 exec, 1')
        for i in range(n):
            a(f'v_mov_b32 v1, s{60+2*i}')
            a(f'global_store_dword v0, v1, s[88:89] offset:{4*i}')
        a('v_mov_b32 v1, s84'); a('global_store_dword v0, v1, s[88:89] offset:56')
        a('v_mov_b32 v1, s86'); a('global_store_dword v0, v1, s[88:89] offset:60')
        a('s_waitcnt vmcnt(0)')

def head(a,name):
    a.raw(f'.globl {name}')
    a.raw('.p2align 8')
    a.raw(f'.type {name},@function')
    a.lab(name)

def srd(a, d, lo, hi, nbytes):
    a(f's_mov_b32 s{d}, s{lo}')
    a(f's_and_b32 s{d+1}, s{hi}, 0xffff')
    a(f's_mov_b32 s{d+2}, {nbytes}')
    a(f's_mov_b32 s{d+3}, 0x20000')

def gen_qkv(R=3, D=3, noload=0, SY=1, nowait=False, nobar=False, WP=1, SF=''):
    a=A(); name='qkv_kernel'
    head(a,name)
    p=Prof(a,0)
    SLOT=49152; XOFF=16384
    sX,sW,sO=4,8,12
    sBR,sMT,sNT,sWV=26,27,28,29
    sKS=31
    sXo=32; sW0=34
    sIT=36; sSlot=37; sLW=38; sLX=39
    sT=40
    st0,st1,st2,st3=41,42,43,44
    sSec=45; sBase=46; sHS=47; sTS=48
    sM=30; sN=33
    vLW=2; vLX=4
    vLane=1; vt0=6; vt1=7; vt2=8; vt3=9; vt4=10; vTok=11; vG=12; vRho=13
    vW0=2; vX0=3; vXh=2; vXc1=3; vXn1=4
    vB0=14
    vBc=19
    vBn=24
    vAd=29
    vWf=(vAd+8+3)//4*4
    vXf=vWf+32
    vAcc=vXf+4*(D+1)
    vEnd=vAcc+128
    assert vEnd<=256, vEnd
    assert 16%(D+1)==0
    def wf(step,c): return vWf+(step&1)*16+c*4
    def xf(i): return vXf+(i%(D+1))*4
    def acc(c,mt): return vAcc+(mt*4+c)*4 if False else vAcc+(c*8+mt)*4

    a('s_cmp_ge_u32 s2, 256')
    a(f's_cbranch_scc1 L_{name}_end')
    p.real(0); p.stamp()
    a('s_load_dwordx4 s[16:19], s[0:1], 0')
    a('s_load_dwordx4 s[20:23], s[0:1], 24')
    a('s_load_dwordx2 s[24:25], s[0:1], 64')
    a(f'v_and_b32 v{vLane}, 63, v0')
    a(f'v_lshrrev_b32 v{vt0}, 6, v0')
    a(f's_and_b32 s{st0}, s2, 7')
    a(f's_lshr_b32 s{st1}, s2, 3')
    a(f'v_readfirstlane_b32 s{sWV}, v{vt0}')
    a(f's_lshr_b32 s{sBR}, s{st0}, 2')
    a(f's_bfe_u32 s{st2}, s{st0}, 0x10001')
    a(f's_lshl_b32 s{st2}, s{st2}, 2')
    a(f's_and_b32 s{st3}, s{st1}, 3')
    a(f's_add_u32 s{sMT}, s{st2}, s{st3}')
    a(f's_and_b32 s{st2}, s{st0}, 1')
    a(f's_lshl_b32 s{st2}, s{st2}, 3')
    a(f's_lshr_b32 s{st1}, s{st1}, 2')
    a(f's_add_u32 s{sNT}, s{st2}, s{st1}')
    a(f's_cmp_ge_u32 s{sNT}, 15')
    a(f's_cbranch_scc1 L_{name}_end')
    a(f's_cmp_ge_u32 s{sWV}, 4')
    a(f's_cbranch_scc1 L_qkv_loader')
    a(f's_and_b32 s{sM}, s{sWV}, 1')
    a(f's_lshr_b32 s{sN}, s{sWV}, 1')
    a(f'v_and_b32 v{vTok}, 15, v{vLane}')
    a(f'v_lshrrev_b32 v{vG}, 4, v{vLane}')
    a(f'v_and_b32 v{vt0}, 3, v{vLane}')
    a(f'v_bfe_u32 v{vt1}, v{vLane}, 2, 2')
    a(f'v_and_b32 v{vt2}, 1, v{vG}')
    a(f'v_lshl_or_b32 v{vt2}, v{vt2}, 2, v{vt1}')
    a(f'v_lshl_add_u32 v{vt3}, v{vG}, 3, v{vt1}')
    a(f'v_lshlrev_b32 v{vt3}, 8, v{vt3}')
    a(f'v_lshl_add_u32 v{vt3}, v{vt0}, 3, v{vt3}')
    a(f's_lshl_b32 s{st0}, s{sN}, 2')
    a(f'v_xor_b32 v{vt2}, s{st0}, v{vt2}')
    for c in range(4):
        a(f'v_xor_b32 v{vt4}, {c}, v{vt2}')
        a(f'v_lshl_add_u32 v{vB0+c}, v{vt4}, 5, v{vt3}')
    a(f'v_lshrrev_b32 v{vt0}, 1, v{vTok}')
    a(f'v_xor_b32 v{vt0}, v{vt0}, v{vG}')
    a(f'v_lshlrev_b32 v{vt0}, 4, v{vt0}')
    a(f'v_lshl_add_u32 v{vt0}, v{vTok}, 7, v{vt0}')
    a(f's_lshl_b32 s{st0}, s{sM}, 14')
    a(f's_add_u32 s{st0}, s{st0}, {XOFF}')
    a(f'v_add_u32 v{vB0+4}, s{st0}, v{vt0}')
    a(f'v_xor_b32 v{vXh}, 64, v{vt0}')
    a(f'v_sub_u32 v{vXh}, v{vXh}, v{vt0}')
    for i in range(5): a(f'v_mov_b32 v{vBc+i}, v{vB0+i}')
    for i in range(128): a(f'v_mov_b32 v{vAcc+i}, 0')
    a(f's_mul_i32 s{sSec}, s{sNT}, 52')
    a(f's_lshr_b32 s{sSec}, s{sSec}, 8')
    a(f's_mul_i32 s{st0}, s{sSec}, 5')
    a(f's_sub_u32 s{st0}, s{sNT}, s{st0}')
    a(f's_lshl_b32 s{st0}, s{st0}, 7')
    a(f's_lshl_b32 s{st1}, s{sN}, 6')
    a(f's_add_u32 s{st0}, s{st0}, s{st1}')
    a(f's_cmp_eq_u32 s{sSec}, 0')
    a(f's_cselect_b32 s{st1}, 0, 1')
    a(f's_cselect_b32 s{st2}, 0, {WS_KV}')
    a(f's_lshl_b32 s{sTS}, 1280, s{st1}')
    a(f's_lshl_b32 s{sHS}, s{sTS}, 6')
    a(f's_lshl_b32 s{sT}, s{sMT}, 3')
    a(f's_lshl_b32 s{st1}, s{sM}, 2')
    a(f's_add_u32 s{sT}, s{sT}, s{st1}')
    a(f's_lshl_b32 s{st1}, s{sBR}, 11')
    a(f's_add_u32 s{st1}, s{st1}, s{sT}')
    a(f's_mul_i32 s{st1}, s{st1}, s{sTS}')
    a(f's_add_u32 s{sBase}, s{st1}, s{st2}')
    a(f's_cmp_eq_u32 s{sSec}, 2')
    a(f's_cbranch_scc1 L_qkv_adV')
    a(f'v_lshrrev_b32 v{vt0}, 3, v{vTok}')
    a(f'v_and_b32 v{vt1}, 7, v{vTok}')
    a(f'v_lshl_add_u32 v{vRho}, v{vt0}, 4, v{vt1}')
    a(f's_lshr_b32 s{st0}, s{st0}, 2')
    for c in range(4):
        a(f'v_add_u32 v{vt0}, s{st0}, v{vG}')
        if c: a(f'v_add_u32 v{vt0}, {4*c}, v{vt0}')
        a(f'v_mul_u32_u24 v{vt1}, 52429, v{vt0}')
        a(f'v_lshrrev_b32 v{vt1}, 18, v{vt1}')
        a(f'v_mul_u32_u24 v{vt2}, 5, v{vt1}')
        a(f'v_sub_u32 v{vt2}, v{vt0}, v{vt2}')
        a(f'v_cmp_eq_u32 s[56:57], 4, v{vt2}')
        a(f'v_mul_u32_u24 v{vt1}, s{sHS}, v{vt1}')
        a(f'v_lshrrev_b32 v{vt3}, 1, v{vt2}')
        a(f'v_lshlrev_b32 v{vt3}, 9, v{vt3}')
        a(f'v_and_b32 v{vt4}, 1, v{vt2}')
        a(f'v_lshl_add_u32 v{vt3}, v{vt4}, 3, v{vt3}')
        a(f'v_add_u32 v{vt1}, v{vt1}, v{vt3}')
        a(f'v_cndmask_b32 v{vt4}, 4, 3, s[56:57]')
        a(f'v_lshlrev_b32 v{vt0}, v{vt4}, v{vRho}')
        a(f'v_add_u32 v{vAd+2*c}, v{vt1}, v{vt0}')
        a(f'v_lshlrev_b32_e64 v{vt0}, v{vt4}, 8')
        a(f'v_add_u32 v{vAd+2*c+1}, v{vAd+2*c}, v{vt0}')
    a('s_branch L_qkv_adD')
    a.lab('L_qkv_adV')
    for c in range(4):
        a(f'v_add_u32 v{vt0}, s{st0}, v{vTok}')
        if c: a(f'v_add_u32 v{vt0}, {16*c}, v{vt0}')
        a(f'v_mul_u32_u24 v{vt1}, 52429, v{vt0}')
        a(f'v_lshrrev_b32 v{vt1}, 20, v{vt1}')
        a(f'v_mul_u32_u24 v{vt2}, 20, v{vt1}')
        a(f'v_sub_u32 v{vt2}, v{vt0}, v{vt2}')
        a(f'v_mul_u32_u24 v{vt1}, {64*2560}, v{vt1}')
        a(f'v_lshl_add_u32 v{vt1}, v{vt2}, 4, v{vt1}')
        a(f'v_mul_u32_u24 v{vt2}, 320, v{vG}')
        a(f'v_add3_u32 v{vAd+2*c}, v{vt1}, v{vt2}, s{sTS}' if False else f'v_add_u32 v{vAd+2*c}, v{vt1}, v{vt2}')
        a(f'v_add_u32 v{vAd+2*c}, 1280, v{vAd+2*c}')
        a(f'v_mov_b32 v{vAd+2*c+1}, v{vAd+2*c}')
    a.lab('L_qkv_adD')
    a('s_waitcnt lgkmcnt(0)')
    srd(a,sO,24,25,WS_O)

    SYNC=SY
    sNx=49
    def wread(nxt,h,step,c,hh):
        b=(vBn if nxt else vBc)+c
        return f'ds_read_b64_tr_b16 {vr(wf(step,c)+2*hh,2)}, v{b} offset:{h*8192+1024*hh}'
    def xread(nxt,h,mt,buf):
        if h==0: b=(vBn if nxt else vBc)+4
        else: b=vXc1
        return f'ds_read_b128 {vr(xf(buf),4)}, v{b} offset:{mt*2048}'
    a(f's_cmp_eq_u32 s{sSec}, 2')
    a(f's_cbranch_scc1 L_qkv_v1')
    for v in range(2):
        a.lab(f'L_qkv_v{v}')
        p.n=1; p.stamp()
        a('s_barrier')
        p.stamp()
        def body(emit,issued):
            waits=[]
            for st in range(2):
                for mt in range(8):
                    gi=st*8+mt
                    need=[('x',gi)]
                    if mt==0: need.append(('w',st))
                    last=max(len(issued)-1-issued[::-1].index(t) for t in need)
                    y=len(issued)-1-last
                    waits.append(y)
                    if emit:
                        y=min(y,wmin[len(waits)-1]) if wmin else y
                        if WP==2:
                            if mt%2==0:
                                y2=wmin[len(waits)]
                                a(f's_waitcnt lgkmcnt({max(0,min(y, y2-extra[len(waits)-1],15))})')
                        elif not nowait: a(f's_waitcnt lgkmcnt({min(y,15)})')
                    n_before=len(issued)
                    fill=[]
                    g2=gi+D
                    nx=g2>=16; h2=(g2%16)//8; m2=g2%8
                    fill.append((xread(nx,h2,m2,g2),('x',g2%16)))
                    if SYNC<mt<=SYNC+4:
                        c=mt-SYNC-1
                        fill.append((wread(st==1,(st+1)&1,st+1,c,0),('w',(st+1)%2)))
                        fill.append((wread(st==1,(st+1)&1,st+1,c,1),('w',(st+1)%2)))
                    if st==0 and mt==0:
                        fill.append((f's_add_u32 s{sNx}, s{sSlot}, {SLOT}',None))
                        fill.append((f's_cmp_eq_u32 s{sNx}, {R*SLOT}',None))
                        fill.append((f's_cselect_b32 s{sNx}, 0, s{sNx}',None))
                        fill.append((f'v_add_u32 v{vXc1}, v{vBc+4}, v{vXh}',None))
                    if st==0 and 2<=mt<=6:
                        fill.append((f'v_add_u32 v{vBn+mt-2}, s{sNx}, v{vB0+mt-2}',None))
                    if st==1 and mt==7:
                        for i in range(5): fill.append((f'v_mov_b32 v{vBc+i}, v{vBn+i}',None))
                        fill.append((f's_mov_b32 s{sSlot}, s{sNx}',None))
                    for c in range(4):
                        x=xf(gi); w=wf(st,c); ac=acc(c,mt)
                        if emit:
                            if v==0: a(f'v_mfma_f32_16x16x32_bf16 {vr(ac,4)}, {vr(w,4)}, {vr(x,4)}, {vr(ac,4)}')
                            else:    a(f'v_mfma_f32_16x16x32_bf16 {vr(ac,4)}, {vr(x,4)}, {vr(w,4)}, {vr(ac,4)}')
                        k=1 if c<3 else len(fill)
                        while k>0 and fill:
                            t,tag=fill.pop(0); k-=1
                            if emit: a(t)
                            if tag: issued.append(tag)
                    if not emit: extra.append(len(issued)-n_before)
                    if st==0 and mt==SYNC and emit and not nobar: a('s_barrier')
            return waits
        wmin=None
        pro=[('w',0)]*8+[('x',i) for i in range(D)]
        extra=[]
        iss=list(pro); w1=body(False,iss); w2=body(False,iss)
        wmin=[min(x,y) for x,y in zip(w1,w2)]
        a(f's_mov_b32 s{sSlot}, 0')
        for c in range(4):
            a(wread(False,0,0,c,0)); a(wread(False,0,0,c,1))
        for i in range(D): a(xread(False,0,i,i))
        a(f's_mov_b32 s{sIT}, 10')
        a.lab(f'L_qkv_loop{v}')
        body(True,list(pro))
        a(f's_sub_u32 s{sIT}, s{sIT}, 1')
        a(f's_cmp_lg_u32 s{sIT}, 0')
        a(f's_cbranch_scc1 L_qkv_loop{v}')
        a('s_waitcnt lgkmcnt(0)')
        a('s_nop 7')
        p.stamp()
        if v==0:
            a(f's_cmp_lg_u32 s{sSec}, 0')
            a(f's_cbranch_scc1 L_qkv_ns')
            a(f's_mov_b32 s{st1}, {f32bits(CSCALE):#x}')
            for i in range(128): a(f'v_mul_f32 v{vAcc+i}, s{st1}, v{vAcc+i}')
            a.lab('L_qkv_ns')
        for tp in range(4):
            if tp==0: a(f's_mov_b32 s{st0}, s{sBase}')
            else: a(f's_add_u32 s{st0}, s{st0}, s{sTS}')
            for c in range(4):
                if v==0:
                    for u in range(2):
                        b=acc(c,2*tp+u)
                        a(f'v_cvt_pk_bf16_f32 v{b}, v{b}, v{b+1}')
                        a(f'v_cvt_pk_bf16_f32 v{b+1}, v{b+2}, v{b+3}')
                        a(f'buffer_store_dwordx2 {vr(b,2)}, v{vAd+2*c+u}, s[{sO}:{sO+3}], s{st0} offen {SF}')
                else:
                    b=acc(c,2*tp)
                    a(f'v_cvt_pk_bf16_f32 v{b}, v{b}, v{b+1}')
                    a(f'v_cvt_pk_bf16_f32 v{b+1}, v{b+2}, v{b+3}')
                    a(f'v_cvt_pk_bf16_f32 v{b+2}, v{b+4}, v{b+5}')
                    a(f'v_cvt_pk_bf16_f32 v{b+3}, v{b+6}, v{b+7}')
                    a(f'buffer_store_dwordx4 {vr(b,4)}, v{vAd+2*c}, s[{sO}:{sO+3}], s{st0} offen {SF}')
        p.stamp()
        if PROF: a('s_waitcnt vmcnt(0)')
        p.stamp(); p.real(1)
        p.dump(sWV,8)
        a('s_endpgm')
    a.lab('L_qkv_loader')
    a(f's_sub_u32 s{sWV}, s{sWV}, 4')
    a(f's_mul_i32 s{st3}, s{st3}, 5')
    a(f's_lshr_b32 s{st3}, s{st3}, 1')
    a(f's_mul_i32 s{st1}, s{st1}, 5')
    a(f's_lshr_b32 s{st1}, s{st1}, 2')
    a(f's_add_u32 s{sKS}, s{st3}, s{st1}')
    a(f's_cmp_ge_u32 s{sKS}, 10')
    a(f's_cselect_b32 s{st0}, 10, 0')
    a(f's_sub_u32 s{sKS}, s{sKS}, s{st0}')
    a(f's_lshl_b32 s{sLW}, s{sWV}, 12')
    a(f's_lshl_b32 s{sLX}, s{sWV}, 13')
    a(f's_add_u32 s{sLX}, s{sLX}, {XOFF}')
    a(f'v_lshrrev_b32 v{vt0}, 4, v{vLane}')
    a(f'v_bfe_u32 v{vt1}, v{vLane}, 1, 3')
    a(f'v_and_b32 v{vt2}, 1, v{vLane}')
    a(f's_lshl_b32 s{st2}, s{sWV}, 4')
    a(f's_lshl_b32 s{st1}, s{sNT}, 8')
    for jj in range(2):
        a(f'v_add_u32 v{vt3}, {4*jj}, v{vt0}')
        a(f'v_xor_b32 v{vt3}, v{vt3}, v{vt1}')
        a(f'v_lshl_add_u32 v{vt4}, v{vt3}, 1, v{vt2}')
        a(f'v_lshlrev_b32 v{vt4}, 4, v{vt4}')
        a(f'v_add_u32 v{vLW+jj}, s{st2}, v{vt0}')
        if jj: a(f'v_add_u32 v{vLW+jj}, 8, v{vLW+jj}')
        a(f'v_mul_u32_u24 v{vLW+jj}, 3840, v{vLW+jj}')
        a(f'v_add3_u32 v{vLW+jj}, v{vLW+jj}, v{vt4}, s{st1}')
    a(f'v_lshrrev_b32 v{vt0}, 3, v{vLane}')
    a(f'v_and_b32 v{vt1}, 7, v{vLane}')
    a(f's_lshl_b32 s{st0}, s{sMT}, 8')
    a(f's_lshl_b32 s{st1}, s{sWV}, 6')
    a(f's_add_u32 s{st0}, s{st0}, s{st1}')
    for uu in range(2):
        a(f'v_lshrrev_b32 v{vt2}, 1, v{vt0}')
        if uu: a(f'v_add_u32 v{vt2}, 4, v{vt2}')
        a(f'v_xor_b32 v{vt2}, v{vt2}, v{vt1}')
        a(f'v_add_u32 v{vt3}, s{st0}, v{vt0}')
        if uu: a(f'v_add_u32 v{vt3}, 8, v{vt3}')
        a(f'v_mul_u32_u24 v{vt3}, 1280, v{vt3}')
        a(f'v_lshl_add_u32 v{vLX+uu}, v{vt2}, 4, v{vt3}')
    a('s_waitcnt lgkmcnt(0)')
    a(f's_cmp_eq_u32 s{sBR}, 0')
    a('s_cselect_b64 s[16:17], s[16:17], s[20:21]')
    a('s_cselect_b64 s[18:19], s[18:19], s[22:23]')
    srd(a,sX,16,17,2048*1280)
    srd(a,sW,18,19,640*3840)
    NL=12
    def wstep(xl=True,wl=True):
        a(f's_mul_i32 s{sW0}, s{sKS}, {64*3840}')
        a(f's_lshl_b32 s{sXo}, s{sKS}, 7')
        a(f's_add_u32 s{st0}, s{sSlot}, s{sLW}')
        a(f's_add_u32 s{st1}, s{sSlot}, s{sLX}')
        for j in range(4):
            if wl:
                a(f's_add_u32 m0, s{st0}, {j*1024}')
                if j&1: a(f's_add_u32 s{st2}, s{sW0}, {4*3840}')
                a(f'buffer_load_dwordx4 v{vLW+(j>>1)}, s[{sW}:{sW+3}], s{st2 if j&1 else sW0} offen lds')
            if xl:
                for u in (2*j,2*j+1):
                    a(f's_add_u32 m0, s{st1}, {u*1024}')
                    if u>=2 and u%2==0: a(f's_add_u32 s{st3}, s{sXo}, {(u//2)*20480}')
                    a(f'buffer_load_dwordx4 v{vLX+(u&1)}, s[{sX}:{sX+3}], s{st3 if u>=2 else sXo} offen lds')
        a(f's_add_u32 s{sKS}, s{sKS}, 1')
        a(f's_cmp_eq_u32 s{sKS}, 10')
        a(f's_cselect_b32 s{sKS}, 0, s{sKS}')
        a(f's_add_u32 s{sSlot}, s{sSlot}, {SLOT}')
        a(f's_cmp_eq_u32 s{sSlot}, {R*SLOT}')
        a(f's_cselect_b32 s{sSlot}, 0, s{sSlot}')
    a(f's_mov_b32 s{sSlot}, 0')
    wstep(); wstep()
    a(f's_waitcnt vmcnt({NL})')
    a('s_barrier')
    a(f's_mov_b32 s{sIT}, 0')
    a.lab('L_qkv_ld_loop')
    a('s_waitcnt vmcnt(0)')
    if not nobar: a('s_barrier')
    a(f's_cmp_ge_u32 s{sIT}, 8')
    a('s_cbranch_scc1 L_qkv_ld_skip')
    if noload==0: wstep()
    elif noload==2: wstep(xl=False)
    elif noload==3: wstep(wl=False)
    a.lab('L_qkv_ld_skip')
    a(f's_add_u32 s{sIT}, s{sIT}, 1')
    a(f's_cmp_lt_u32 s{sIT}, 10')
    a('s_cbranch_scc1 L_qkv_ld_loop')
    if PROF:
        a(f's_add_u32 s{sWV}, s{sWV}, 4')
        for i in range(1,8): p.a(f's_mov_b64 s[{60+2*i}:{61+2*i}], s[60:61]')
        p.real(1); p.dump(sWV,8)
    a('s_endpgm')
    a.lab(f'L_{name}_end')
    a('s_endpgm')
    return a.txt(), kd(name, vEnd)

first=[False]

NEG_BIG=0xf149f2ca
def gen_attn(PRIO=8,VONES=False):
    a=A(); name='attn_kernel'
    head(a,name)
    p=Prof(a,1)
    sR,sOo=4,8
    sHD,sJ,sWV=12,13,14
    st0,st1,st2,st3=15,16,17,18
    sVm=20
    sIT=22
    sHB=24
    sN=25; sCnt=26; sSw=27
    sM=28
    sLo=30
    sQA=36; sLd=37
    vLane=1; vt0=2; vt1=3; vt2=4; vt3=5
    vK1a=6; vK2a=7; vVa=8
    vDma=9; vM=10; vRho=11; vKap=12; vOoff=13; vt4=14; vt5=15
    vQ1=16; vQ2=20; vK2=22; vK1=24; vQA1=28; vQA2=32; vQ2o=34
    vV=36; vP=52; vS=[60,76]; vO=92; vC=108; vMF=124; vML=140
    vEnd=156
    TILE=2560

    def vinit():
        a(f'v_cmp_eq_u32 s[38:39], 20, v{vRho}')
        a(f'v_mov_b32 v{vt1}, 0x3f803f80')
        a('s_nop 0')
        a(f'v_cndmask_b32 v{vt1}, {"v%d"%vt1 if VONES else 0}, v{vt1}, s[38:39]')
        for i in range(16): a(f'v_mov_b32 v{vV+i}, v{vt1}')
    a('s_cmp_ge_u32 s2, 256')
    a(f's_cbranch_scc1 L_{name}_end')
    p.real(0); p.stamp()
    a('s_load_dwordx2 s[32:33], s[0:1], 64')
    a(f'v_and_b32 v{vLane}, 63, v0')
    a(f'v_lshrrev_b32 v{vt0}, 6, v0')
    a(f's_and_b32 s{st0}, s2, 7')
    a(f's_lshr_b32 s{st1}, s2, 3')
    a(f'v_readfirstlane_b32 s{sWV}, v{vt0}')
    a(f's_lshl_b32 s{sHD}, s{st0}, 2')
    a(f's_lshr_b32 s{st2}, s{st1}, 3')
    a(f's_add_u32 s{sHD}, s{sHD}, s{st2}')
    a(f's_and_b32 s{sJ}, s{st1}, 7')
    a(f'v_lshlrev_b32 v{vDma}, 4, v{vLane}')
    a(f's_mul_i32 s{sHB}, s{sHD}, {64*TILE}')
    a(f's_add_u32 s{sHB}, s{sHB}, {WS_KV+32*64*TILE}')
    a(f's_cmp_eq_u32 s{sWV}, 8')
    a(f's_cbranch_scc1 L_loader')
    a(f's_mov_b32 s{sVm}, 0xfffff')
    a(f's_mov_b32 s{sVm+1}, 0xfffff')
    a(f's_mov_b32 s{sLo}, -1')
    a(f's_mov_b32 s{sLo+1}, 0')
    a(f'v_and_b32 v{vRho}, 31, v{vLane}')
    a(f'v_lshlrev_b32 v{vt1}, 3, v{vRho}')
    a(f'v_add_u32 v{vK2a}, 1024, v{vt1}')
    a(f'v_mov_b32 v{vt2}, 0x70000000')
    a(f'v_cndmask_b32 v{vQ2o}, v{vt2}, v{vK2a}, s[{sLo}:{sLo+1}]')
    a(f's_lshl_b32 s{st0}, s{sJ}, 3')
    a(f's_add_u32 s{st0}, s{st0}, s{sWV}')
    a(f's_lshl_b32 s{st1}, s{sHD}, 6')
    a(f's_add_u32 s{st1}, s{st1}, s{st0}')
    a(f's_mul_i32 s{sQA}, s{st1}, 1280')
    a(f's_add_u32 s{st3}, s{sQA}, {32*64*1280}')
    a(f's_lshr_b32 s{st0}, s{sJ}, 1')
    a(f's_mul_i32 s{st0}, s{st0}, 40960')
    a(f's_lshl_b32 s{st1}, s{sWV}, 10')
    a(f's_add_u32 s{st0}, s{st0}, s{sHB}')
    a(f's_add_u32 s{st0}, s{st0}, s{st1}')
    a(f's_add_u32 s{st2}, s{st0}, 8192')
    a(f's_mov_b32 m0, s{st1}')
    a('s_waitcnt lgkmcnt(0)')
    srd(a,sR,32,33,WS_O)
    a(f'buffer_load_dwordx4 v{vDma}, s[{sR}:{sR+3}], s{st0} offen lds')
    a(f's_add_u32 m0, s{st1}, 8192')
    a(f'buffer_load_dwordx4 {vr(vQ1,4)}, v{vDma}, s[{sR}:{sR+3}], s{st3} offen')
    a(f'buffer_load_dwordx2 {vr(vQ2,2)}, v{vQ2o}, s[{sR}:{sR+3}], s{st3} offen')
    a(f'buffer_load_dwordx4 v{vDma}, s[{sR}:{sR+3}], s{st2} offen lds')
    a(f's_add_u32 s34, s32, {WS_O}')
    a('s_addc_u32 s35, s33, 0')
    srd(a,sOo,34,35,WS_END-WS_O)
    p.stamp()
    a(f'v_lshrrev_b32 v{vt0}, 5, v{vLane}')
    a(f'v_lshlrev_b32 v{vK1a}, 4, v{vLane}')
    a(f'v_mul_u32_u24 v{vVa}, 320, v{vt0}')
    a(f'v_lshl_add_u32 v{vVa}, v{vRho}, 4, v{vVa}')
    a(f'v_add_u32 v{vVa}, 1280, v{vVa}')
    a(f'v_and_b32 v{vt1}, 7, v{vRho}')
    a(f'v_bfe_u32 v{vt2}, v{vRho}, 3, 1')
    a(f'v_lshl_or_b32 v{vt1}, v{vt2}, 4, v{vt1}')
    a(f'v_bfe_u32 v{vt2}, v{vRho}, 4, 1')
    a(f'v_lshl_or_b32 v{vKap}, v{vt2}, 3, v{vt1}')
    a(f'v_lshlrev_b32 v{vt3}, 2, v{vt0}')
    a(f'v_sub_u32 v{vt3}, v{vKap}, v{vt3}')
    a(f'v_mov_b32 v{vt2}, {NEG_BIG:#x}')
    for r in range(16):
        base=(r&3)+8*(r>>2)
        kb=((base>>3)&1)<<4 | ((base>>4)&1)<<3 | (base&7)
        a(f'v_cmp_gt_i32 s[{sM+2*(r&1)}:{sM+1+2*(r&1)}], {kb}, v{vt3}' if False else f'v_cmp_gt_i32 s[{38+2*(r&3)}:{39+2*(r&3)}], {kb}, v{vt3}')
        if r>=2:
            q=r-2
            a(f'v_cndmask_b32 v{vMF+q}, v{vt2}, 0, s[{38+2*(q&3)}:{39+2*(q&3)}]')
            a(f'v_cndmask_b32 v{vML+q}, 0, v{vt2}, s[{38+2*(q&3)}:{39+2*(q&3)}]')
    a('s_nop 1')
    for q in (14,15):
        a(f'v_cndmask_b32 v{vMF+q}, v{vt2}, 0, s[{38+2*(q&3)}:{39+2*(q&3)}]')
        a(f'v_cndmask_b32 v{vML+q}, 0, v{vt2}, s[{38+2*(q&3)}:{39+2*(q&3)}]')
    a(f's_cmp_lg_u32 s{sJ}, 0')
    a('s_cbranch_scc1 L_mf_ok')
    for r in range(16): a(f'v_mov_b32 v{vMF+r}, v{vt2}')
    a.lab('L_mf_ok')
    vinit()
    a(f's_lshl_b32 s{st0}, s{sJ}, 3')
    a(f's_add_u32 s{st0}, s{st0}, s{sWV}')
    a(f's_mul_i32 s{st0}, s{st0}, 40960')
    a(f'v_lshrrev_b32 v{vt1}, 4, v{vKap}')
    a(f'v_mul_u32_u24 v{vt1}, 20480, v{vt1}')
    a(f'v_and_b32 v{vt2}, 15, v{vKap}')
    a(f'v_lshl_add_u32 v{vt1}, v{vt2}, 4, v{vt1}')
    a(f'v_add_u32 v{vOoff}, s{st0}, v{vt1}')
    for r in range(16): a(f'v_mov_b32 v{vO+r}, 0')
    for i in range(4): a(f'v_mov_b32 v{vP+4+i}, 0')

    def rd_k1(dst,off): a(f'ds_read_b128 {vr(dst,4)}, v{vK1a} offset:{off}')
    def rd_k2(dst,off): a(f'ds_read_b64 {vr(dst,2)}, v{vK2a} offset:{off}')
    def rd_v(buf,off):
        a(f's_mov_b64 exec, s[{sVm}:{sVm+1}]')
        a(f'ds_read_b128 {vr(vV+8*buf,4)}, v{vVa} offset:{off}')
        a(f'ds_read_b128 {vr(vV+8*buf+4,4)}, v{vVa} offset:{off+640}')
        a('s_mov_b64 exec, -1')
    def qk1(S,C,K=None): a(f'v_mfma_f32_32x32x16_bf16 {vr(S,16)}, {vr(vK1 if K is None else K,4)}, {vr(vQ1,4)}, {C}')
    def qk2(S,K=None): a(f'v_mfma_f32_32x32x8bf16_1k {vr(S,16)}, {vr(vK2 if K is None else K,2)}, {vr(vQ2,2)}, {vr(S,16)}')
    def pv(buf,t): a(f'v_mfma_f32_32x32x16_bf16 {vr(vO,16)}, {vr(vV+8*buf+4*t,4)}, {vr(vP+4*t,4)}, {vr(vO,16)}')
    def ex(S,r): a(f'v_exp_f32 v{S+r}, v{S+r}')
    def cv(S,c): a(f'v_cvt_pk_bf16_f32 v{vP+c}, v{S+2*c}, v{S+2*c+1}')
    def rowmax(S,first):
        if first:
            a(f'v_max3_f32 v{vM}, v{S}, v{S+1}, v{S+2}'); rest=list(range(3,16))
        else: rest=list(range(16))
        while len(rest)>=2:
            a(f'v_max3_f32 v{vM}, v{vM}, v{S+rest[0]}, v{S+rest[1]}'); rest=rest[2:]
        if rest: a(f'v_max_f32 v{vM}, v{vM}, v{S+rest[0]}')
    def xhalf_max():
        a(f'v_mov_b32 v{vt1}, v{vM}')
        a('s_nop 1')
        a(f'v_permlane32_swap_b32 v{vM}, v{vt1}')
        a('s_nop 1')
        a(f'v_max_f32 v{vM}, v{vM}, v{vt1}')
    def get_l():
        a(f'v_mov_b32 v{vt1}, v{vO+8}')
        a(f'v_mov_b32 v{vt2}, v{vO+8}')
        a('s_nop 1')
        a(f'v_permlane32_swap_b32 v{vt1}, v{vt2}')
        a('s_nop 1')
    def store_o(br):
        a(f'v_rcp_f32 v{vt3}, v{vt2}')
        a(f's_mul_i32 s{st0}, s{sHD}, 5')
        a(f'v_lshrrev_b32 v{vt0}, 5, v{vLane}')
        for i in range(12): a(f'v_mul_f32 v{vO+i}, v{vO+i}, v{vt3}')
        for i in range(6): a(f'v_cvt_pk_bf16_f32 v{vP+i}, v{vO+2*i}, v{vO+2*i+1}')
        a(f's_mov_b32 s{st1}, {br*2048*1280}')
        for k,qb in enumerate((0,2,4)):
            a(f'v_add_u32 v{vt4}, s{st0}, v{vt0}')
            if qb: a(f'v_add_u32 v{vt4}, {qb}, v{vt4}')
            a(f'v_lshrrev_b32 v{vt5}, 3, v{vt4}')
            a(f'v_lshlrev_b32 v{vt5}, 10, v{vt5}')
            a(f'v_and_b32 v{vt1}, 3, v{vt4}')
            a(f'v_lshl_add_u32 v{vt5}, v{vt1}, 8, v{vt5}')
            a(f'v_bfe_u32 v{vt1}, v{vt4}, 2, 1')
            a(f'v_lshl_add_u32 v{vt5}, v{vt1}, 3, v{vt5}')
            a(f'v_add_u32 v{vt5}, v{vt5}, v{vOoff}')
            if k==2: a(f's_mov_b64 exec, s[{sLo}:{sLo+1}]')
            a(f'buffer_store_dwordx2 {vr(vP+2*k,2)}, v{vt5}, s[{sOo}:{sOo+3}], s{st1} offen')
            if k==2: a('s_mov_b64 exec, -1')
    def addr_add(s):
        a(f'v_add_u32 v{vK1a}, s{s}, v{vK1a}')
        a(f'v_add_u32 v{vK2a}, s{s}, v{vK2a}')
        a(f'v_add_u32 v{vVa}, s{s}, v{vVa}')
    def addr_addi(imm):
        a(f'v_add_u32 v{vK1a}, {imm}, v{vK1a}')
        a(f'v_add_u32 v{vK2a}, {imm}, v{vK2a}')
        a(f'v_add_u32 v{vVa}, {imm}, v{vVa}')
    def tile(t,off,Cn,last=False,last2=False,guard=None,hook=None):
        cur=vS[t&1]; nxt=vS[(t+1)&1]
        def G(fn,nm):
            if guard:
                a(f's_cmp_eq_u32 s{sIT}, 3'); a(f's_cbranch_scc1 {guard}_{nm}'); fn(); a.lab(f'{guard}_{nm}')
            else: fn()
        a('s_waitcnt lgkmcnt(0)')
        if hook: hook()
        if not last:
            if guard and guard.endswith('15'): G(lambda: (qk1(nxt,Cn)),'a')
            else: qk1(nxt,Cn)
        if not last and not last2:
            if guard: G(lambda: rd_k1(vK1,off+2*TILE),'b')
            else: rd_k1(vK1,off+2*TILE)
        for r in range(0,4): ex(cur,r)
        pv((t+1)&1,1)
        if not last:
            if guard and guard.endswith('15'): G(lambda: rd_v((t+1)&1,off+TILE),'c')
            else: rd_v((t+1)&1,off+TILE)
        ex(cur,4); ex(cur,5); cv(cur,0); ex(cur,6); cv(cur,1); ex(cur,7)
        if not last:
            if guard and guard.endswith('15'): G(lambda: qk2(nxt),'d')
            else: qk2(nxt)
        if not last and not last2:
            if guard: G(lambda: rd_k2(vK2,off+2*TILE),'e')
            else: rd_k2(vK2,off+2*TILE)
        ex(cur,8); cv(cur,2); ex(cur,9); cv(cur,3); ex(cur,10); ex(cur,11)
        pv(t&1,0)
        ex(cur,12); ex(cur,13); cv(cur,4); ex(cur,14); cv(cur,5); ex(cur,15); cv(cur,6); cv(cur,7)

    def prio_switch(phase,L):
        a(f's_cmp_lt_u32 s{sWV}, 4')
        a(f's_cbranch_scc{1-phase} {L}_hi')
        a('s_setprio 0')
        a(f's_branch {L}_d')
        a.lab(f'{L}_hi')
        a('s_setprio 1')
        a.lab(f'{L}_d')
    p.stamp()
    a('s_waitcnt vmcnt(0)')
    a('s_barrier')
    p.stamp()
    rd_k1(vK1,0); rd_k2(vK2,0)
    a('s_waitcnt lgkmcnt(0)')
    qk1(vS[0],'0'); qk2(vS[0])
    rd_v(0,0)
    a('s_nop 12')
    rowmax(vS[0],True)
    xhalf_max()
    for r in range(16): a(f'v_sub_f32 v{vC+r}, 0, v{vM}')
    a('s_nop 1')
    qk1(vS[0],vr(vC,16)); qk2(vS[0])
    rd_k1(vK1,TILE); rd_k2(vK2,TILE)
    a(f's_mov_b32 s{sIT}, 0')
    a.lab('L_b_loop')
    for t in range(16):
        hook=None
        if t==4:
            def hook():
                a(f's_cmp_lg_u32 s{sIT}, 0'); a('s_cbranch_scc1 L_b_nb4'); a('s_barrier'); a.lab('L_b_nb4')
        if t==12:
            def hook():
                a(f's_cmp_gt_u32 s{sIT}, 2'); a('s_cbranch_scc1 L_b_nb12'); a('s_barrier')
                a(f's_cmp_lg_u32 s{sIT}, 1'); a('s_cbranch_scc1 L_b_nb12')
                a(f'buffer_load_dwordx4 {vr(vQA1,4)}, v{vDma}, s[{sR}:{sR+3}], s{sQA} offen')
                a(f'buffer_load_dwordx2 {vr(vQA2,2)}, v{vQ2o}, s[{sR}:{sR+3}], s{sQA} offen')
                a.lab('L_b_nb12')
        if PRIO and t%PRIO==0:
            oldhook=hook
            def hook(oldhook=oldhook,t=t):
                if oldhook: oldhook()
                prio_switch((t//PRIO)&1, f'L_pr{t}')
        tile(t,t*TILE,vr(vC,16),guard=(f'L_bg{t}' if t>=14 else None),hook=hook)
    addr_addi(16*TILE)
    if PROF:
        n0=p.n
        for k in range(4):
            a(f's_cmp_lg_u32 s{sIT}, {k}'); a(f's_cbranch_scc1 L_st{k}'); p.stamp(); a.lab(f'L_st{k}')
    a(f's_add_u32 s{sIT}, s{sIT}, 1')
    a(f's_cmp_lt_u32 s{sIT}, 4')
    a('s_cbranch_scc1 L_b_loop')
    a('s_nop 1')
    pv(1,1)
    a('s_nop 15')
    p.stamp()
    get_l()
    a(f'v_mov_b32 v{vt3}, {f32bits(2.0**100):#x}')
    a(f'v_cmp_nlt_f32 vcc, v{vt2}, v{vt3}')
    a('s_nop 4')
    a('s_cbranch_vccnz L_b_fallback')
    a.lab('L_b_store')
    store_o(1)
    p.stamp()
    a(f's_mul_i32 s{st0}, s{sWV}, {TILE}')
    a(f's_sub_u32 s{st0}, s{st0}, {64*TILE}')
    addr_add(st0)
    a('s_waitcnt vmcnt(3)')
    for i in range(4): a(f'v_mov_b32 v{vQ1+i}, v{vQA1+i}')
    for i in range(2): a(f'v_mov_b32 v{vQ2+i}, v{vQA2+i}')
    a(f's_sub_u32 s{sSw}, 8, s{sWV}')
    a(f's_cmp_lg_u32 s{sJ}, 0')
    a(f's_cselect_b32 s{sSw}, 0, s{sSw}')
    p.stamp()
    KR=[(vV,vV+4),(vV+8,vV+12),(vP,vP+4)]
    SB=[vS[0],vS[1],vO]
    def cmid_init(valid_val):
        a(f's_cmp_le_u32 s{sSw}, 1')
        a(f's_cbranch_scc1 L_cm_{valid_val[0]}_v')
        for r in range(16): a(f'v_mov_b32 v{vC+r}, {NEG_BIG:#x}')
        a(f's_branch L_cm_{valid_val[0]}_d')
        a.lab(f'L_cm_{valid_val[0]}_v')
        for r in range(16): a(f'v_mov_b32 v{vC+r}, {valid_val[1]}')
        a.lab(f'L_cm_{valid_val[0]}_d')
    def cmid_switch(tag,t,val):
        a(f's_cmp_lg_u32 s{sSw}, {t}')
        a(f's_cbranch_scc1 L_sw_{tag}_{t}')
        a('s_nop 15')
        for r in range(16): a(f'v_mov_b32 v{vC+r}, {val}')
        a('s_nop 1')
        a.lab(f'L_sw_{tag}_{t}')
    cmid_init(('p1','0'))
    for i in range(3):
        rd_k1(KR[i][0],i*TILE); rd_k2(KR[i][1],i*TILE)
    for b in range(3):
        a('s_waitcnt lgkmcnt(0)')
        for i in range(3):
            t=3*b+i
            if 2<=t<=7: cmid_switch('p1',t,'0')
            C = vr(vMF,16) if t==0 else (vr(vML,16) if t==8 else vr(vC,16))
            qk1(SB[i],C,KR[i][0]); qk2(SB[i],KR[i][1])
        if b<2:
            for i in range(3):
                t=3*(b+1)+i
                rd_k1(KR[i][0],t*TILE); rd_k2(KR[i][1],t*TILE)
        if b==2:
            rd_k1(vK1,0); rd_k2(vK2,0)
        a('s_nop 7')
        for i in range(3):
            if i==2: a('s_nop 3')
            rowmax(SB[i],b==0 and i==0)
    xhalf_max()
    a(f'v_sub_f32 v{vM}, 0, v{vM}')
    for r in range(16): a(f'v_add_f32 v{vMF+r}, v{vMF+r}, v{vM}')
    for r in range(16): a(f'v_add_f32 v{vML+r}, v{vML+r}, v{vM}')
    cmid_init(('p2',f'v{vM}'))
    for r in range(16): a(f'v_mov_b32 v{vO+r}, 0')
    vinit()
    for i in range(4): a(f'v_mov_b32 v{vP+4+i}, 0')
    a('s_waitcnt lgkmcnt(0)')
    qk1(vS[0],vr(vMF,16)); qk2(vS[0])
    rd_k1(vK1,TILE); rd_v(0,0); rd_k2(vK2,TILE)
    for t in range(9):
        hook=None
        tn=t+1
        if 2<=tn<=7:
            def hook(tn=tn): cmid_switch('p2',tn,f'v{vM}')
        Cn = vr(vML,16) if tn==8 else vr(vC,16)
        if PRIO and t%PRIO==0:
            oldhook=hook
            def hook(oldhook=oldhook,t=t):
                if oldhook: oldhook()
                prio_switch((t//PRIO)&1, f'L_apr{t}')
        tile(t,t*TILE,Cn,last=(t==8),last2=(t==7),hook=hook)
    a('s_nop 1')
    pv(0,1)
    a('s_nop 15')
    get_l()
    store_o(0)
    p.stamp()
    if PROF: a('s_waitcnt vmcnt(0)')
    p.stamp(); p.real(1)
    p.dump(sWV,9)
    a('s_endpgm')
    a.lab('L_loader')
    a(f's_lshr_b32 s{sN}, s{sJ}, 1')
    a(f's_mul_i32 s{sN}, s{sN}, 40960')
    a(f's_add_u32 s{sN}, s{sN}, 16384')
    a(f's_mov_b32 s{sLd}, 16384')
    a('s_waitcnt lgkmcnt(0)')
    srd(a,sR,32,33,WS_O)
    lid=[0]
    def load_rows(n):
        lid[0]+=1; L=f'L_ld{lid[0]}'
        a(f's_mov_b32 s{sIT}, {n}')
        a.lab(L)
        a(f's_add_u32 s{st0}, s{sHB}, s{sN}')
        a(f's_mov_b32 m0, s{sLd}')
        a(f's_add_u32 s{st1}, s{st0}, 4096')
        for c in range(4): a(f'buffer_load_dwordx4 v{vDma}, s[{sR}:{sR+3}], s{st0} offen offset:{c*1024} lds')
        a(f's_add_u32 m0, s{sLd}, 4096')
        a(f's_add_u32 s{sN}, s{sN}, 8192')
        for c in range(4): a(f'buffer_load_dwordx4 v{vDma}, s[{sR}:{sR+3}], s{st1} offen offset:{c*1024} lds')
        a(f's_add_u32 s{sLd}, s{sLd}, 8192')
        a(f's_cmp_eq_u32 s{sN}, 163840')
        a(f's_cselect_b32 s{sN}, 0, s{sN}')
        a(f's_sub_u32 s{sIT}, s{sIT}, 1')
        a(f's_cmp_lg_u32 s{sIT}, 0')
        a(f's_cbranch_scc1 {L}')
    a('s_barrier')
    load_rows(3); a('s_waitcnt vmcnt(0)'); a('s_barrier')
    load_rows(5); a('s_waitcnt vmcnt(0)'); a('s_barrier')
    load_rows(5); a('s_waitcnt vmcnt(20)'); load_rows(5); a('s_waitcnt vmcnt(0)'); a('s_barrier')
    a(f's_sub_u32 s{sHB}, s{sHB}, {32*64*TILE+20480}')
    a(f's_mul_i32 s{sN}, s{sJ}, 20480')
    a(f's_add_u32 s{sHB}, s{sHB}, s{sN}')
    a(f's_mov_b32 s{sN}, 0')
    a(f's_mov_b32 s{sLd}, 0')
    load_rows(5); a('s_waitcnt vmcnt(0)'); a('s_barrier')
    if PROF:
        for i in range(1,12): p.a(f's_mov_b64 s[{60+2*i}:{61+2*i}], s[60:61]')
        p.real(1); n0=p.n; p.dump(sWV,9)
    a('s_endpgm')
    a.lab('L_b_fallback')
    a(f'v_lshlrev_b32 v{vt4}, 3, v{vRho}')
    a(f'v_add_u32 v{vt4}, 1024, v{vt4}')
    a(f'v_lshrrev_b32 v{vt0}, 5, v{vLane}')
    a(f'v_mul_u32_u24 v{vt5}, 320, v{vt0}')
    a(f'v_lshl_add_u32 v{vt5}, v{vRho}, 4, v{vt5}')
    a(f'v_add_u32 v{vt5}, 1280, v{vt5}')
    a(f'v_mov_b32 v{vM}, {NEG_BIG:#x}')
    a(f's_mov_b32 s{st0}, s{sHB}')
    a(f's_mov_b32 s{sIT}, 64')
    a.lab('L_fb_p1')
    a(f'buffer_load_dwordx4 {vr(vK1,4)}, v{vDma}, s[{sR}:{sR+3}], s{st0} offen')
    a(f'buffer_load_dwordx2 {vr(vK2,2)}, v{vt4}, s[{sR}:{sR+3}], s{st0} offen')
    a('s_waitcnt vmcnt(0)')
    qk1(vS[0],'0'); qk2(vS[0])
    a('s_nop 15')
    rowmax(vS[0],False)
    a(f's_add_u32 s{st0}, s{st0}, {TILE}')
    a(f's_sub_u32 s{sIT}, s{sIT}, 1')
    a(f's_cmp_lg_u32 s{sIT}, 0')
    a('s_cbranch_scc1 L_fb_p1')
    xhalf_max()
    for r in range(16): a(f'v_sub_f32 v{vC+r}, 0, v{vM}')
    for r in range(16): a(f'v_mov_b32 v{vO+r}, 0')
    a(f's_mov_b32 s{st0}, s{sHB}')
    a(f's_mov_b32 s{sIT}, 64')
    a.lab('L_fb_p2')
    a(f'buffer_load_dwordx4 {vr(vK1,4)}, v{vDma}, s[{sR}:{sR+3}], s{st0} offen')
    a(f'buffer_load_dwordx2 {vr(vK2,2)}, v{vt4}, s[{sR}:{sR+3}], s{st0} offen')
    a(f's_mov_b64 exec, s[{sVm}:{sVm+1}]')
    a(f'buffer_load_dwordx4 {vr(vV,4)}, v{vt5}, s[{sR}:{sR+3}], s{st0} offen')
    a(f'buffer_load_dwordx4 {vr(vV+4,4)}, v{vt5}, s[{sR}:{sR+3}], s{st0} offen offset:640')
    a('s_mov_b64 exec, -1')
    a('s_waitcnt vmcnt(0)')
    qk1(vS[0],vr(vC,16)); qk2(vS[0])
    a('s_nop 15')
    for r in range(16): ex(vS[0],r)
    a('s_nop 0')
    for c in range(8): cv(vS[0],c)
    a('s_nop 1')
    pv(0,0); pv(0,1)
    a(f's_add_u32 s{st0}, s{st0}, {TILE}')
    a(f's_sub_u32 s{sIT}, s{sIT}, 1')
    a(f's_cmp_lg_u32 s{sIT}, 0')
    a('s_cbranch_scc1 L_fb_p2')
    a('s_nop 15')
    get_l()
    a('s_branch L_b_store')
    a.lab(f'L_{name}_end')
    a('s_endpgm')
    return a.txt(), kd(name, vEnd)

def gen_proj(NPH=5):
    a=A(); name='proj_kernel'
    head(a,name)
    p=Prof(a,2)
    sX,sW,sO=4,8,12
    sBR,sMT,sNT,sWV=26,27,28,29
    st0,st1,st2,st3=41,42,43,44
    sROT=30; sPH=31
    vLane=1; vXo=2; vt0=4; vt1=5; vt2=6; vt3=7; vTok=8; vG=9; vTr=10; vOut=11; vTr2=12; vWo=13; vCc=14
    vX=16
    vWf=vX+160
    vAcc=vWf+40
    vEnd=vAcc+40
    assert vEnd<=256
    spp=20//NPH
    a('s_cmp_ge_u32 s2, 256')
    a(f's_cbranch_scc1 L_{name}_end')
    p.real(0); p.stamp()
    a('s_load_dwordx2 s[16:17], s[0:1], 16')
    a('s_load_dwordx2 s[18:19], s[0:1], 40')
    a('s_load_dwordx2 s[20:21], s[0:1], 48')
    a('s_load_dwordx2 s[24:25], s[0:1], 64')
    a(f'v_and_b32 v{vLane}, 63, v0')
    a(f'v_lshrrev_b32 v{vt0}, 6, v0')
    a(f's_and_b32 s{st0}, s2, 7')
    a(f's_lshr_b32 s{st1}, s2, 3')
    a(f'v_readfirstlane_b32 s{sWV}, v{vt0}')
    a(f's_lshr_b32 s{sBR}, s{st0}, 2')
    a(f's_and_b32 s{st2}, s{st0}, 3')
    a(f's_lshl_b32 s{st2}, s{st2}, 2')
    a(f's_and_b32 s{st3}, s{st1}, 3')
    a(f's_add_u32 s{sMT}, s{st2}, s{st3}')
    a(f's_lshr_b32 s{sNT}, s{st1}, 2')
    a(f's_add_u32 s{sROT}, s{sNT}, s{st3}')
    a(f's_cmp_ge_u32 s{sROT}, 10')
    a(f's_cselect_b32 s{st0}, 10, 0')
    a(f's_sub_u32 s{sROT}, s{sROT}, s{st0}')
    a(f's_cmp_ge_u32 s{sROT}, 5')
    a(f's_cselect_b32 s{st0}, 5, 0')
    a(f's_sub_u32 s{sROT}, s{sROT}, s{st0}')
    a(f's_cmp_ge_u32 s{sWV}, 4')
    a(f's_cbranch_scc1 L_proj_loader')
    a(f'v_and_b32 v{vTok}, 15, v{vLane}')
    a(f'v_lshrrev_b32 v{vG}, 4, v{vLane}')
    a(f'v_lshlrev_b32 v{vXo}, 4, v{vLane}')
    a(f's_lshl_b32 s{st0}, s{sMT}, 3')
    a(f's_lshl_b32 s{st1}, s{sWV}, 1')
    a(f's_add_u32 s{st0}, s{st0}, s{st1}')
    a(f's_mul_i32 s32, s{st0}, 20480')
    a(f's_mul_i32 s{st0}, s{sBR}, {2048*1280}')
    a(f's_add_u32 s{st0}, s{st0}, {WS_O}')
    a(f's_mov_b32 s{sPH}, s{sROT}')
    a('s_waitcnt lgkmcnt(0)')
    a(f's_add_u32 s24, s24, s{st0}')
    a('s_addc_u32 s25, s25, 0')
    srd(a,sX,24,25,2048*1280)
    for ph in range(NPH):
        a(f's_mul_i32 s{st0}, s{sPH}, {spp*1024}')
        a(f's_add_u32 s33, s32, s{st0}')
        a(f's_add_u32 s34, s33, 20480')
        for s_ in range(spp):
            st=ph*spp+s_
            for u in range(2):
                a(f'buffer_load_dwordx4 {vr(vX+(st*2+u)*4,4)}, v{vXo}, s[{sX}:{sX+3}], s{33+u} offen offset:{s_*1024}')
        a(f's_add_u32 s{sPH}, s{sPH}, 1')
        a(f's_cmp_eq_u32 s{sPH}, {NPH}')
        a(f's_cselect_b32 s{sPH}, 0, s{sPH}')
    srd(a,sO,20,21,2048*2560)
    p.stamp()
    a(f'v_bfe_u32 v{vt0}, v{vLane}, 2, 2')
    a(f'v_lshl_add_u32 v{vt0}, v{vG}, 2, v{vt0}')
    a(f'v_mul_u32_u24 v{vt0}, 160, v{vt0}')
    a(f'v_and_b32 v{vt1}, 3, v{vLane}')
    a(f'v_lshl_add_u32 v{vTr}, v{vt1}, 3, v{vt0}')
    a(f'v_add_u32 v{vTr2}, 61440, v{vTr}')
    for i in range(40): a(f'v_mov_b32 v{vAcc+i}, 0')
    a(f's_lshl_b32 s{st0}, s{sMT}, 7')
    a(f's_lshl_b32 s{st1}, s{sWV}, 5')
    a(f's_add_u32 s{st0}, s{st0}, s{st1}')
    a(f'v_add_u32 v{vt0}, s{st0}, v{vTok}')
    a(f'v_mul_u32_u24 v{vt0}, 2560, v{vt0}')
    a(f'v_and_b32 v{vt1}, 1, v{vG}')
    a(f'v_lshlrev_b32 v{vt1}, 5, v{vt1}')
    a(f'v_lshrrev_b32 v{vt2}, 1, v{vG}')
    a(f'v_lshl_add_u32 v{vt1}, v{vt2}, 4, v{vt1}')
    a(f'v_add_u32 v{vOut}, v{vt0}, v{vt1}')
    a(f'v_lshl_add_u32 v{vt3}, v{vG}, 3, v{vt0}')
    def trr(s,cp,h):
        off=s*32*160+cp*32+h*2560
        buf=vWf+(s&1)*20+cp*4+2*h
        if off<61440: return f'ds_read_b64_tr_b16 {vr(buf,2)}, v{vTr} offset:{off}'
        return f'ds_read_b64_tr_b16 {vr(buf,2)}, v{vTr2} offset:{off-61440}'
    for ph in range(NPH):
        a(f's_waitcnt vmcnt({2*(20-spp*(ph+1))})')
        a('s_barrier')
        if ph==0: p.stamp()
        for s in range(spp*ph,spp*(ph+1)):
            first=(s%spp==0)
            if first:
                for cp in range(5):
                    a(trr(s,cp,0)); a(trr(s,cp,1))
            nxt=[]
            if (s+1)%spp!=0:
                nxt=[trr(s+1,cp,h) for cp in range(5) for h in range(2)]
            buf=vWf+(s&1)*20
            a(f's_waitcnt lgkmcnt(0)')
            for cp in range(5):
                for u in range(2):
                    ac=vAcc+(cp*2+u)*4
                    a(f'v_mfma_f32_16x16x32_bf16 {vr(ac,4)}, {vr(buf+cp*4,4)}, {vr(vX+(s*2+u)*4,4)}, {vr(ac,4)}')
                    if nxt: a(nxt.pop(0))
    a('s_nop 7')
    p.stamp()
    a(f's_mul_i32 s{st0}, s{sBR}, 1280')
    a(f's_mul_i32 s{st1}, s{sNT}, 160')
    a(f's_add_u32 s{st0}, s{st0}, s{st1}')
    a(f's_add_u32 s{st1}, s{st0}, {16*2560}')
    for u in range(2):
        for cp in range(5):
            b=vAcc+(cp*2+u)*4
            a(f'v_cvt_pk_bf16_f32 v{b}, v{b}, v{b+1}')
            a(f'v_cvt_pk_bf16_f32 v{b+1}, v{b+2}, v{b+3}')
        for cp in (0,2):
            b=vAcc+(cp*2+u)*4; b2=vAcc+((cp+1)*2+u)*4
            a(f'v_mov_b32 v{b+2}, v{b2}')
            a(f'v_mov_b32 v{b+3}, v{b2+1}')
            a('s_nop 1')
            a(f'v_permlane16_swap_b32 v{b}, v{b+2}')
            a(f'v_permlane16_swap_b32 v{b+1}, v{b+3}')
            a('s_nop 1')
            a(f'buffer_store_dwordx4 {vr(b,4)}, v{vOut}, s[{sO}:{sO+3}], s{st0+u} offen offset:{cp*32}')
        b=vAcc+(4*2+u)*4
        a(f'buffer_store_dwordx2 {vr(b,2)}, v{vt3}, s[{sO}:{sO+3}], s{st0+u} offen offset:128')
    p.stamp()
    if PROF: a('s_waitcnt vmcnt(0)')
    p.stamp(); p.real(1)
    p.dump(sWV,8)
    a('s_endpgm')
    a.lab('L_proj_loader')
    a(f's_sub_u32 s{sWV}, s{sWV}, 4')
    a(f's_lshl_b32 s{st0}, s{sWV}, 6')
    a(f'v_add_u32 v{vt0}, s{st0}, v{vLane}')
    a(f'v_mul_u32_u24 v{vt1}, 52429, v{vt0}')
    a(f'v_lshrrev_b32 v{vt1}, 19, v{vt1}')
    a(f'v_mul_u32_u24 v{vt2}, 10, v{vt1}')
    a(f'v_sub_u32 v{vCc}, v{vt0}, v{vt2}')
    a(f'v_mul_u32_u24 v{vt1}, 1280, v{vt1}')
    a(f'v_lshl_add_u32 v{vWo}, v{vCc}, 4, v{vt1}')
    vWm=20
    for m in range(5):
        a(f'v_mov_b32 v{vWm+m}, v{vWo}')
        if m<4:
            a(f'v_add_u32 v{vCc}, 6, v{vCc}')
            a(f'v_cmp_le_u32 s[56:57], 10, v{vCc}')
            a(f'v_add_u32 v{vWo}, {25*1280+96}, v{vWo}')
            a(f'v_add_u32 v{vt0}, {1280-160}, v{vWo}')
            a(f'v_subrev_u32 v{vt1}, 10, v{vCc}')
            a(f'v_cndmask_b32 v{vWo}, v{vWo}, v{vt0}, s[56:57]')
            a(f'v_cndmask_b32 v{vCc}, v{vCc}, v{vt1}, s[56:57]')
    a(f's_mul_i32 s34, s{sNT}, 160')
    a(f's_lshl_b32 s35, s{sWV}, 10')
    a(f's_mov_b32 s{sPH}, s{sROT}')
    a('s_waitcnt lgkmcnt(0)')
    a(f's_cmp_eq_u32 s{sBR}, 0')
    a('s_cselect_b64 s[16:17], s[16:17], s[18:19]')
    srd(a,sW,16,17,640*1280)
    for ph in range(NPH):
        a(f's_mul_i32 s{st0}, s{sPH}, {128*1280}')
        a(f's_add_u32 s{st0}, s{st0}, s34')
        for m in range(5):
            a(f's_add_u32 m0, s35, {ph*20480+m*4096}')
            a(f'buffer_load_dwordx4 v{vWm+m}, s[{sW}:{sW+3}], s{st0} offen lds')
        a(f's_add_u32 s{sPH}, s{sPH}, 1')
        a(f's_cmp_eq_u32 s{sPH}, {NPH}')
        a(f's_cselect_b32 s{sPH}, 0, s{sPH}')
        if ph>=1:
            a('s_waitcnt vmcnt(5)')
            a('s_barrier')
    a('s_waitcnt vmcnt(0)')
    a('s_barrier')
    if PROF:
        a(f's_add_u32 s{sWV}, s{sWV}, 4')
        for i in range(1,8): p.a(f's_mov_b64 s[{60+2*i}:{61+2*i}], s[60:61]')
        p.real(1); p.dump(sWV,8)
    a('s_endpgm')
    a.lab(f'L_{name}_end')
    a('s_endpgm')
    return a.txt(), kd(name, vEnd)

def assemble(parts, launches):
    hdr=open('cdna_kernels/'+NAME+'.s.ref').read().split('\n')
    out=[]
    for l in hdr:
        if l.startswith('; @launch') or l.startswith('; Override') or l.startswith('; grid='): continue
        if not l.startswith(';'): break
        out.append(l)
    for k,g,b,lds in launches:
        out.append(f'; @launch kernel={k} grid=({g},1,1) block=({b},1,1) lds={lds}')
    out.append('.amdgcn_target "amdgcn-amd-amdhsa--gfx950"')
    out.append('.text')
    s='\n'.join(out)+'\n'
    for code,desc in parts: s+=code
    for code,desc in parts: s+=desc
    return s

if __name__=='__main__':
    if len(sys.argv)>2 and sys.argv[2]=='prof': PROF=True
    kw=eval(sys.argv[3]) if len(sys.argv)>3 else {}
    parts=[gen_qkv(**kw.get('qkv',{})),gen_attn(**kw.get('attn',{})),gen_proj(**kw.get('proj',{}))]
    launches=[('qkv_kernel',256,512,147456),('attn_kernel',256,576,163840),('proj_kernel',256,512,102400)]
    open(sys.argv[1] if len(sys.argv)>1 else 'k.s','w').write(assemble(parts,launches))
```

```python
import sys, math

NAME='concat_heads__sliding_block__mha_block__prompt'
WS_Q=0
WS_KV=2*32*64*1280
WS_O=WS_KV+2*32*64*2560
WS_END=WS_O+2*2048*1280
CSCALE=(20.0**-0.5)*math.log2(math.e)
import struct
def f32bits(x): return struct.unpack('<I',struct.pack('<f',x))[0]

class A:
    def __init__(s): s.l=[]
    def __call__(s,x): s.l.append('  '+x)
    def lab(s,x): s.l.append(x+':')
    def c(s,x): s.l.append('  ; '+x)
    def raw(s,x): s.l.append(x)
    def txt(s): return '\n'.join(s.l)+'\n'

def vr(a,n=1): return f'v{a}' if n==1 else f'v[{a}:{a+n-1}]'
def sr(a,n=1): return f's{a}' if n==1 else f's[{a}:{a+n-1}]'

def kd(name, vgpr, sgpr=96):
    return f'''.section .rodata,"a"
.p2align 6
.amdhsa_kernel {name}
  .amdhsa_next_free_vgpr {vgpr}
  .amdhsa_next_free_sgpr {sgpr}
  .amdhsa_accum_offset {(vgpr+3)//4*4}
  .amdhsa_group_segment_fixed_size 0
  .amdhsa_kernarg_size 72
  .amdhsa_user_sgpr_count 2
  .amdhsa_user_sgpr_kernarg_segment_ptr 1
  .amdhsa_system_sgpr_workgroup_id_x 1
.end_amdhsa_kernel
.text
'''

PROF=False
PROF_BASE=32<<20
class Prof:
    def __init__(s,a,kid): s.a=a; s.n=0; s.kid=kid
    def stamp(s):
        if not PROF: return
        s.a(f's_memtime s[{60+2*s.n}:{61+2*s.n}]'); s.n+=1
    def real(s,idx):
        if not PROF: return
        s.a(f's_memrealtime s[{84+2*idx}:{85+2*idx}]')
    def dump(s,wave_sgpr,nwaves,n=None):
        if not PROF: return
        a=s.a
        n=n or s.n
        a('s_waitcnt lgkmcnt(0) vmcnt(0)')
        a('s_load_dwordx2 s[88:89], s[0:1], 64')
        a(f's_mul_i32 s90, s2, {nwaves}')
        a(f's_add_u32 s90, s90, s{wave_sgpr}')
        a('s_lshl_b32 s90, s90, 6')
        a(f's_add_u32 s90, s90, {PROF_BASE+s.kid*(1<<20)}')
        a('s_waitcnt lgkmcnt(0)')
        a('s_add_u32 s88, s88, s90')
        a('s_addc_u32 s89, s89, 0')
        a('v_mov_b32 v0, 0')
        a('s_mov_b64 exec, 1')
        for i in range(n):
            a(f'v_mov_b32 v1, s{60+2*i}')
            a(f'global_store_dword v0, v1, s[88:89] offset:{4*i}')
        a('v_mov_b32 v1, s84'); a('global_store_dword v0, v1, s[88:89] offset:56')
        a('v_mov_b32 v1, s86'); a('global_store_dword v0, v1, s[88:89] offset:60')
        a('s_waitcnt vmcnt(0)')

TL=False
def tl_mark(a,kid,idx,inv):
    if not TL: return
    a('s_memrealtime s[92:93]')
    a('s_load_dwordx2 s[88:89], s[0:1], 56')
    a('s_waitcnt lgkmcnt(0)')
    a(f's_sub_u32 s88, s88, {512*kid}')
    a('s_subb_u32 s89, s89, 0')
    if inv: a('s_not_b32 s92, s92')
    a('s_mov_b64 s[90:91], exec')
    a('s_mov_b64 exec, 1')
    a('v_mov_b32 v120, s92')
    a('v_mov_b32 v121, 0')
    a(f'global_atomic_umax v121, v120, s[88:89] offset:{4*(2*kid+idx)}')
    a('s_waitcnt vmcnt(0)')
    a('s_mov_b64 exec, s[90:91]')

def head(a,name):
    a.raw(f'.globl {name}')
    a.raw('.p2align 8')
    a.raw(f'.type {name},@function')
    a.lab(name)

def srd(a, d, lo, hi, nbytes):
    a(f's_mov_b32 s{d}, s{lo}')
    a(f's_and_b32 s{d+1}, s{hi}, 0xffff')
    a(f's_mov_b32 s{d+2}, {nbytes}')
    a(f's_mov_b32 s{d+3}, 0x20000')

def gen_qkv(R=3, D=3, noload=0, SY=1, nowait=False, nobar=False, WP=1, SF=''):
    a=A(); name='qkv_kernel'
    head(a,name)
    p=Prof(a,0)
    SLOT=49152; XOFF=16384
    sX,sW,sO=4,8,12
    sBR,sMT,sNT,sWV=26,27,28,29
    sKS=31
    sXo=32; sW0=34
    sIT=36; sSlot=37; sLW=38; sLX=39
    sT=40
    st0,st1,st2,st3=41,42,43,44
    sSec=45; sBase=46; sHS=47; sTS=48
    sM=30; sN=33
    vLW=2; vLX=4
    vLane=1; vt0=6; vt1=7; vt2=8; vt3=9; vt4=10; vTok=11; vG=12; vRho=13
    vW0=2; vX0=3; vXh=2; vXc1=3; vXn1=4
    vB0=14
    vBc=19
    vBn=24
    vAd=29
    vWf=(vAd+8+3)//4*4
    vXf=vWf+32
    vAcc=vXf+4*(D+1)
    vEnd=vAcc+128
    assert vEnd<=256, vEnd
    assert 16%(D+1)==0
    def wf(step,c): return vWf+(step&1)*16+c*4
    def xf(i): return vXf+(i%(D+1))*4
    def acc(c,mt): return vAcc+(mt*4+c)*4 if False else vAcc+(c*8+mt)*4

    a('s_cmp_ge_u32 s2, 256')
    a(f's_cbranch_scc1 L_{name}_end')
    tl_mark(a,0,0,True)
    p.real(0); p.stamp()
    a('s_load_dwordx4 s[16:19], s[0:1], 0')
    a('s_load_dwordx4 s[20:23], s[0:1], 24')
    a('s_load_dwordx2 s[24:25], s[0:1], 64')
    a(f'v_and_b32 v{vLane}, 63, v0')
    a(f'v_lshrrev_b32 v{vt0}, 6, v0')
    a(f's_and_b32 s{st0}, s2, 7')
    a(f's_lshr_b32 s{st1}, s2, 3')
    a(f'v_readfirstlane_b32 s{sWV}, v{vt0}')
    a(f's_lshr_b32 s{sBR}, s{st0}, 2')
    a(f's_bfe_u32 s{st2}, s{st0}, 0x10001')
    a(f's_lshl_b32 s{st2}, s{st2}, 2')
    a(f's_and_b32 s{st3}, s{st1}, 3')
    a(f's_add_u32 s{sMT}, s{st2}, s{st3}')
    a(f's_and_b32 s{st2}, s{st0}, 1')
    a(f's_lshl_b32 s{st2}, s{st2}, 3')
    a(f's_lshr_b32 s{st1}, s{st1}, 2')
    a(f's_add_u32 s{sNT}, s{st2}, s{st1}')
    a(f's_cmp_ge_u32 s{sNT}, 15')
    a(f's_cbranch_scc1 L_{name}_end')
    a(f's_cmp_ge_u32 s{sWV}, 4')
    a(f's_cbranch_scc1 L_qkv_loader')
    a(f's_and_b32 s{sM}, s{sWV}, 1')
    a(f's_lshr_b32 s{sN}, s{sWV}, 1')
    a(f'v_and_b32 v{vTok}, 15, v{vLane}')
    a(f'v_lshrrev_b32 v{vG}, 4, v{vLane}')
    a(f'v_and_b32 v{vt0}, 3, v{vLane}')
    a(f'v_bfe_u32 v{vt1}, v{vLane}, 2, 2')
    a(f'v_and_b32 v{vt2}, 1, v{vG}')
    a(f'v_lshl_or_b32 v{vt2}, v{vt2}, 2, v{vt1}')
    a(f'v_lshl_add_u32 v{vt3}, v{vG}, 3, v{vt1}')
    a(f'v_lshlrev_b32 v{vt3}, 8, v{vt3}')
    a(f'v_lshl_add_u32 v{vt3}, v{vt0}, 3, v{vt3}')
    a(f's_lshl_b32 s{st0}, s{sN}, 2')
    a(f'v_xor_b32 v{vt2}, s{st0}, v{vt2}')
    for c in range(4):
        a(f'v_xor_b32 v{vt4}, {c}, v{vt2}')
        a(f'v_lshl_add_u32 v{vB0+c}, v{vt4}, 5, v{vt3}')
    a(f'v_lshrrev_b32 v{vt0}, 1, v{vTok}')
    a(f'v_xor_b32 v{vt0}, v{vt0}, v{vG}')
    a(f'v_lshlrev_b32 v{vt0}, 4, v{vt0}')
    a(f'v_lshl_add_u32 v{vt0}, v{vTok}, 7, v{vt0}')
    a(f's_lshl_b32 s{st0}, s{sM}, 14')
    a(f's_add_u32 s{st0}, s{st0}, {XOFF}')
    a(f'v_add_u32 v{vB0+4}, s{st0}, v{vt0}')
    a(f'v_xor_b32 v{vXh}, 64, v{vt0}')
    a(f'v_sub_u32 v{vXh}, v{vXh}, v{vt0}')
    for i in range(5): a(f'v_mov_b32 v{vBc+i}, v{vB0+i}')
    for i in range(128): a(f'v_mov_b32 v{vAcc+i}, 0')
    a(f's_mul_i32 s{sSec}, s{sNT}, 52')
    a(f's_lshr_b32 s{sSec}, s{sSec}, 8')
    a(f's_mul_i32 s{st0}, s{sSec}, 5')
    a(f's_sub_u32 s{st0}, s{sNT}, s{st0}')
    a(f's_lshl_b32 s{st0}, s{st0}, 7')
    a(f's_lshl_b32 s{st1}, s{sN}, 6')
    a(f's_add_u32 s{st0}, s{st0}, s{st1}')
    a(f's_cmp_eq_u32 s{sSec}, 0')
    a(f's_cselect_b32 s{st1}, 0, 1')
    a(f's_cselect_b32 s{st2}, 0, {WS_KV}')
    a(f's_lshl_b32 s{sTS}, 1280, s{st1}')
    a(f's_lshl_b32 s{sHS}, s{sTS}, 6')
    a(f's_lshl_b32 s{sT}, s{sMT}, 3')
    a(f's_lshl_b32 s{st1}, s{sM}, 2')
    a(f's_add_u32 s{sT}, s{sT}, s{st1}')
    a(f's_lshl_b32 s{st1}, s{sBR}, 11')
    a(f's_add_u32 s{st1}, s{st1}, s{sT}')
    a(f's_mul_i32 s{st1}, s{st1}, s{sTS}')
    a(f's_add_u32 s{sBase}, s{st1}, s{st2}')
    a(f's_cmp_eq_u32 s{sSec}, 2')
    a(f's_cbranch_scc1 L_qkv_adV')
    a(f'v_lshrrev_b32 v{vt0}, 3, v{vTok}')
    a(f'v_and_b32 v{vt1}, 7, v{vTok}')
    a(f'v_lshl_add_u32 v{vRho}, v{vt0}, 4, v{vt1}')
    a(f's_lshr_b32 s{st0}, s{st0}, 2')
    for c in range(4):
        a(f'v_add_u32 v{vt0}, s{st0}, v{vG}')
        if c: a(f'v_add_u32 v{vt0}, {4*c}, v{vt0}')
        a(f'v_mul_u32_u24 v{vt1}, 52429, v{vt0}')
        a(f'v_lshrrev_b32 v{vt1}, 18, v{vt1}')
        a(f'v_mul_u32_u24 v{vt2}, 5, v{vt1}')
        a(f'v_sub_u32 v{vt2}, v{vt0}, v{vt2}')
        a(f'v_cmp_eq_u32 s[56:57], 4, v{vt2}')
        a(f'v_mul_u32_u24 v{vt1}, s{sHS}, v{vt1}')
        a(f'v_lshrrev_b32 v{vt3}, 1, v{vt2}')
        a(f'v_lshlrev_b32 v{vt3}, 9, v{vt3}')
        a(f'v_and_b32 v{vt4}, 1, v{vt2}')
        a(f'v_lshl_add_u32 v{vt3}, v{vt4}, 3, v{vt3}')
        a(f'v_add_u32 v{vt1}, v{vt1}, v{vt3}')
        a(f'v_cndmask_b32 v{vt4}, 4, 3, s[56:57]')
        a(f'v_lshlrev_b32 v{vt0}, v{vt4}, v{vRho}')
        a(f'v_add_u32 v{vAd+2*c}, v{vt1}, v{vt0}')
        a(f'v_lshlrev_b32_e64 v{vt0}, v{vt4}, 8')
        a(f'v_add_u32 v{vAd+2*c+1}, v{vAd+2*c}, v{vt0}')
    a('s_branch L_qkv_adD')
    a.lab('L_qkv_adV')
    for c in range(4):
        a(f'v_add_u32 v{vt0}, s{st0}, v{vTok}')
        if c: a(f'v_add_u32 v{vt0}, {16*c}, v{vt0}')
        a(f'v_mul_u32_u24 v{vt1}, 52429, v{vt0}')
        a(f'v_lshrrev_b32 v{vt1}, 20, v{vt1}')
        a(f'v_mul_u32_u24 v{vt2}, 20, v{vt1}')
        a(f'v_sub_u32 v{vt2}, v{vt0}, v{vt2}')
        a(f'v_mul_u32_u24 v{vt1}, {64*2560}, v{vt1}')
        a(f'v_lshl_add_u32 v{vt1}, v{vt2}, 4, v{vt1}')
        a(f'v_mul_u32_u24 v{vt2}, 320, v{vG}')
        a(f'v_add3_u32 v{vAd+2*c}, v{vt1}, v{vt2}, s{sTS}' if False else f'v_add_u32 v{vAd+2*c}, v{vt1}, v{vt2}')
        a(f'v_add_u32 v{vAd+2*c}, 1280, v{vAd+2*c}')
        a(f'v_mov_b32 v{vAd+2*c+1}, v{vAd+2*c}')
    a.lab('L_qkv_adD')
    a('s_waitcnt lgkmcnt(0)')
    srd(a,sO,24,25,WS_O)

    SYNC=SY
    sNx=49
    def wread(nxt,h,step,c,hh):
        b=(vBn if nxt else vBc)+c
        return f'ds_read_b64_tr_b16 {vr(wf(step,c)+2*hh,2)}, v{b} offset:{h*8192+1024*hh}'
    def xread(nxt,h,mt,buf):
        if h==0: b=(vBn if nxt else vBc)+4
        else: b=vXc1
        return f'ds_read_b128 {vr(xf(buf),4)}, v{b} offset:{mt*2048}'
    a(f's_cmp_eq_u32 s{sSec}, 2')
    a(f's_cbranch_scc1 L_qkv_v1')
    for v in range(2):
        a.lab(f'L_qkv_v{v}')
        p.n=1; p.stamp()
        a('s_barrier')
        p.stamp()
        def body(emit,issued):
            waits=[]
            for st in range(2):
                for mt in range(8):
                    gi=st*8+mt
                    need=[('x',gi)]
                    if mt==0: need.append(('w',st))
                    last=max(len(issued)-1-issued[::-1].index(t) for t in need)
                    y=len(issued)-1-last
                    waits.append(y)
                    if emit:
                        y=min(y,wmin[len(waits)-1]) if wmin else y
                        if WP==2:
                            if mt%2==0:
                                y2=wmin[len(waits)]
                                a(f's_waitcnt lgkmcnt({max(0,min(y, y2-extra[len(waits)-1],15))})')
                        elif not nowait: a(f's_waitcnt lgkmcnt({min(y,15)})')
                    n_before=len(issued)
                    fill=[]
                    g2=gi+D
                    nx=g2>=16; h2=(g2%16)//8; m2=g2%8
                    fill.append((xread(nx,h2,m2,g2),('x',g2%16)))
                    if SYNC<mt<=SYNC+4:
                        c=mt-SYNC-1
                        fill.append((wread(st==1,(st+1)&1,st+1,c,0),('w',(st+1)%2)))
                        fill.append((wread(st==1,(st+1)&1,st+1,c,1),('w',(st+1)%2)))
                    if st==0 and mt==0:
                        fill.append((f's_add_u32 s{sNx}, s{sSlot}, {SLOT}',None))
                        fill.append((f's_cmp_eq_u32 s{sNx}, {R*SLOT}',None))
                        fill.append((f's_cselect_b32 s{sNx}, 0, s{sNx}',None))
                        fill.append((f'v_add_u32 v{vXc1}, v{vBc+4}, v{vXh}',None))
                    if st==0 and 2<=mt<=6:
                        fill.append((f'v_add_u32 v{vBn+mt-2}, s{sNx}, v{vB0+mt-2}',None))
                    if st==1 and mt==7:
                        for i in range(5): fill.append((f'v_mov_b32 v{vBc+i}, v{vBn+i}',None))
                        fill.append((f's_mov_b32 s{sSlot}, s{sNx}',None))
                    for c in range(4):
                        x=xf(gi); w=wf(st,c); ac=acc(c,mt)
                        if emit:
                            if v==0: a(f'v_mfma_f32_16x16x32_bf16 {vr(ac,4)}, {vr(w,4)}, {vr(x,4)}, {vr(ac,4)}')
                            else:    a(f'v_mfma_f32_16x16x32_bf16 {vr(ac,4)}, {vr(x,4)}, {vr(w,4)}, {vr(ac,4)}')
                        k=1 if c<3 else len(fill)
                        while k>0 and fill:
                            t,tag=fill.pop(0); k-=1
                            if emit: a(t)
                            if tag: issued.append(tag)
                    if not emit: extra.append(len(issued)-n_before)
                    if st==0 and mt==SYNC and emit and not nobar: a('s_barrier')
            return waits
        wmin=None
        pro=[('w',0)]*8+[('x',i) for i in range(D)]
        extra=[]
        iss=list(pro); w1=body(False,iss); w2=body(False,iss)
        wmin=[min(x,y) for x,y in zip(w1,w2)]
        a(f's_mov_b32 s{sSlot}, 0')
        for c in range(4):
            a(wread(False,0,0,c,0)); a(wread(False,0,0,c,1))
        for i in range(D): a(xread(False,0,i,i))
        a(f's_mov_b32 s{sIT}, 10')
        a.lab(f'L_qkv_loop{v}')
        body(True,list(pro))
        a(f's_sub_u32 s{sIT}, s{sIT}, 1')
        a(f's_cmp_lg_u32 s{sIT}, 0')
        a(f's_cbranch_scc1 L_qkv_loop{v}')
        a('s_waitcnt lgkmcnt(0)')
        a('s_nop 7')
        p.stamp()
        if v==0:
            a(f's_cmp_lg_u32 s{sSec}, 0')
            a(f's_cbranch_scc1 L_qkv_ns')
            a(f's_mov_b32 s{st1}, {f32bits(CSCALE):#x}')
            for i in range(128): a(f'v_mul_f32 v{vAcc+i}, s{st1}, v{vAcc+i}')
            a.lab('L_qkv_ns')
        for tp in range(4):
            if tp==0: a(f's_mov_b32 s{st0}, s{sBase}')
            else: a(f's_add_u32 s{st0}, s{st0}, s{sTS}')
            for c in range(4):
                if v==0:
                    for u in range(2):
                        b=acc(c,2*tp+u)
                        a(f'v_cvt_pk_bf16_f32 v{b}, v{b}, v{b+1}')
                        a(f'v_cvt_pk_bf16_f32 v{b+1}, v{b+2}, v{b+3}')
                        a(f'buffer_store_dwordx2 {vr(b,2)}, v{vAd+2*c+u}, s[{sO}:{sO+3}], s{st0} offen {SF}')
                else:
                    b=acc(c,2*tp)
                    a(f'v_cvt_pk_bf16_f32 v{b}, v{b}, v{b+1}')
                    a(f'v_cvt_pk_bf16_f32 v{b+1}, v{b+2}, v{b+3}')
                    a(f'v_cvt_pk_bf16_f32 v{b+2}, v{b+4}, v{b+5}')
                    a(f'v_cvt_pk_bf16_f32 v{b+3}, v{b+6}, v{b+7}')
                    a(f'buffer_store_dwordx4 {vr(b,4)}, v{vAd+2*c}, s[{sO}:{sO+3}], s{st0} offen {SF}')
        p.stamp()
        if PROF: a('s_waitcnt vmcnt(0)')
        p.stamp(); p.real(1)
        p.dump(sWV,8)
        if TL: a('s_waitcnt vmcnt(0)')
        tl_mark(a,0,1,False)
        a('s_endpgm')
    a.lab('L_qkv_loader')
    a(f's_sub_u32 s{sWV}, s{sWV}, 4')
    a(f's_mul_i32 s{st3}, s{st3}, 5')
    a(f's_lshr_b32 s{st3}, s{st3}, 1')
    a(f's_mul_i32 s{st1}, s{st1}, 5')
    a(f's_lshr_b32 s{st1}, s{st1}, 2')
    a(f's_add_u32 s{sKS}, s{st3}, s{st1}')
    a(f's_cmp_ge_u32 s{sKS}, 10')
    a(f's_cselect_b32 s{st0}, 10, 0')
    a(f's_sub_u32 s{sKS}, s{sKS}, s{st0}')
    a(f's_lshl_b32 s{sLW}, s{sWV}, 12')
    a(f's_lshl_b32 s{sLX}, s{sWV}, 13')
    a(f's_add_u32 s{sLX}, s{sLX}, {XOFF}')
    a(f'v_lshrrev_b32 v{vt0}, 4, v{vLane}')
    a(f'v_bfe_u32 v{vt1}, v{vLane}, 1, 3')
    a(f'v_and_b32 v{vt2}, 1, v{vLane}')
    a(f's_lshl_b32 s{st2}, s{sWV}, 4')
    a(f's_lshl_b32 s{st1}, s{sNT}, 8')
    for jj in range(2):
        a(f'v_add_u32 v{vt3}, {4*jj}, v{vt0}')
        a(f'v_xor_b32 v{vt3}, v{vt3}, v{vt1}')
        a(f'v_lshl_add_u32 v{vt4}, v{vt3}, 1, v{vt2}')
        a(f'v_lshlrev_b32 v{vt4}, 4, v{vt4}')
        a(f'v_add_u32 v{vLW+jj}, s{st2}, v{vt0}')
        if jj: a(f'v_add_u32 v{vLW+jj}, 8, v{vLW+jj}')
        a(f'v_mul_u32_u24 v{vLW+jj}, 3840, v{vLW+jj}')
        a(f'v_add3_u32 v{vLW+jj}, v{vLW+jj}, v{vt4}, s{st1}')
    a(f'v_lshrrev_b32 v{vt0}, 3, v{vLane}')
    a(f'v_and_b32 v{vt1}, 7, v{vLane}')
    a(f's_lshl_b32 s{st0}, s{sMT}, 8')
    a(f's_lshl_b32 s{st1}, s{sWV}, 6')
    a(f's_add_u32 s{st0}, s{st0}, s{st1}')
    for uu in range(2):
        a(f'v_lshrrev_b32 v{vt2}, 1, v{vt0}')
        if uu: a(f'v_add_u32 v{vt2}, 4, v{vt2}')
        a(f'v_xor_b32 v{vt2}, v{vt2}, v{vt1}')
        a(f'v_add_u32 v{vt3}, s{st0}, v{vt0}')
        if uu: a(f'v_add_u32 v{vt3}, 8, v{vt3}')
        a(f'v_mul_u32_u24 v{vt3}, 1280, v{vt3}')
        a(f'v_lshl_add_u32 v{vLX+uu}, v{vt2}, 4, v{vt3}')
    a('s_waitcnt lgkmcnt(0)')
    a(f's_cmp_eq_u32 s{sBR}, 0')
    a('s_cselect_b64 s[16:17], s[16:17], s[20:21]')
    a('s_cselect_b64 s[18:19], s[18:19], s[22:23]')
    srd(a,sX,16,17,2048*1280)
    srd(a,sW,18,19,640*3840)
    NL=12
    def wstep(xl=True,wl=True):
        a(f's_mul_i32 s{sW0}, s{sKS}, {64*3840}')
        a(f's_lshl_b32 s{sXo}, s{sKS}, 7')
        a(f's_add_u32 s{st0}, s{sSlot}, s{sLW}')
        a(f's_add_u32 s{st1}, s{sSlot}, s{sLX}')
        for j in range(4):
            if wl:
                a(f's_add_u32 m0, s{st0}, {j*1024}')
                if j&1: a(f's_add_u32 s{st2}, s{sW0}, {4*3840}')
                a(f'buffer_load_dwordx4 v{vLW+(j>>1)}, s[{sW}:{sW+3}], s{st2 if j&1 else sW0} offen lds')
            if xl:
                for u in (2*j,2*j+1):
                    a(f's_add_u32 m0, s{st1}, {u*1024}')
                    if u>=2 and u%2==0: a(f's_add_u32 s{st3}, s{sXo}, {(u//2)*20480}')
                    a(f'buffer_load_dwordx4 v{vLX+(u&1)}, s[{sX}:{sX+3}], s{st3 if u>=2 else sXo} offen lds')
        a(f's_add_u32 s{sKS}, s{sKS}, 1')
        a(f's_cmp_eq_u32 s{sKS}, 10')
        a(f's_cselect_b32 s{sKS}, 0, s{sKS}')
        a(f's_add_u32 s{sSlot}, s{sSlot}, {SLOT}')
        a(f's_cmp_eq_u32 s{sSlot}, {R*SLOT}')
        a(f's_cselect_b32 s{sSlot}, 0, s{sSlot}')
    a(f's_mov_b32 s{sSlot}, 0')
    wstep(); wstep()
    a(f's_waitcnt vmcnt({NL})')
    a('s_barrier')
    a(f's_mov_b32 s{sIT}, 0')
    a.lab('L_qkv_ld_loop')
    a('s_waitcnt vmcnt(0)')
    if not nobar: a('s_barrier')
    a(f's_cmp_ge_u32 s{sIT}, 8')
    a('s_cbranch_scc1 L_qkv_ld_skip')
    if noload==0: wstep()
    elif noload==2: wstep(xl=False)
    elif noload==3: wstep(wl=False)
    a.lab('L_qkv_ld_skip')
    a(f's_add_u32 s{sIT}, s{sIT}, 1')
    a(f's_cmp_lt_u32 s{sIT}, 10')
    a('s_cbranch_scc1 L_qkv_ld_loop')
    if PROF:
        a(f's_add_u32 s{sWV}, s{sWV}, 4')
        for i in range(1,8): p.a(f's_mov_b64 s[{60+2*i}:{61+2*i}], s[60:61]')
        p.real(1); p.dump(sWV,8)
    a('s_endpgm')
    a.lab(f'L_{name}_end')
    a('s_endpgm')
    return a.txt(), kd(name, vEnd)

first=[False]

NEG_BIG=0xf149f2ca
def gen_attn(PRIO=8,VONES=False):
    a=A(); name='attn_kernel'
    head(a,name)
    p=Prof(a,1)
    sR,sOo=4,8
    sHD,sJ,sWV=12,13,14
    st0,st1,st2,st3=15,16,17,18
    sVm=20
    sIT=22
    sHB=24
    sN=25; sCnt=26; sSw=27
    sM=28
    sLo=30
    sQA=36; sLd=37
    vLane=1; vt0=2; vt1=3; vt2=4; vt3=5
    vK1a=6; vK2a=7; vVa=8
    vDma=9; vM=10; vRho=11; vKap=12; vOoff=13; vt4=14; vt5=15
    vQ1=16; vQ2=20; vK2=22; vK1=24; vQA1=28; vQA2=32; vQ2o=34
    vV=36; vP=52; vS=[60,76]; vO=92; vC=108; vMF=124; vML=140
    vEnd=156
    TILE=2560

    def vinit():
        a(f'v_cmp_eq_u32 s[38:39], 20, v{vRho}')
        a(f'v_mov_b32 v{vt1}, 0x3f803f80')
        a('s_nop 0')
        a(f'v_cndmask_b32 v{vt1}, {"v%d"%vt1 if VONES else 0}, v{vt1}, s[38:39]')
        for i in range(16): a(f'v_mov_b32 v{vV+i}, v{vt1}')
    a('s_cmp_ge_u32 s2, 256')
    a(f's_cbranch_scc1 L_{name}_end')
    tl_mark(a,1,0,True)
    p.real(0); p.stamp()
    a('s_load_dwordx2 s[32:33], s[0:1], 64')
    a(f'v_and_b32 v{vLane}, 63, v0')
    a(f'v_lshrrev_b32 v{vt0}, 6, v0')
    a(f's_and_b32 s{st0}, s2, 7')
    a(f's_lshr_b32 s{st1}, s2, 3')
    a(f'v_readfirstlane_b32 s{sWV}, v{vt0}')
    a(f's_lshl_b32 s{sHD}, s{st0}, 2')
    a(f's_lshr_b32 s{st2}, s{st1}, 3')
    a(f's_add_u32 s{sHD}, s{sHD}, s{st2}')
    a(f's_and_b32 s{sJ}, s{st1}, 7')
    a(f'v_lshlrev_b32 v{vDma}, 4, v{vLane}')
    a(f's_mul_i32 s{sHB}, s{sHD}, {64*TILE}')
    a(f's_add_u32 s{sHB}, s{sHB}, {WS_KV+32*64*TILE}')
    a(f's_cmp_eq_u32 s{sWV}, 8')
    a(f's_cbranch_scc1 L_loader')
    a(f's_mov_b32 s{sVm}, 0xfffff')
    a(f's_mov_b32 s{sVm+1}, 0xfffff')
    a(f's_mov_b32 s{sLo}, -1')
    a(f's_mov_b32 s{sLo+1}, 0')
    a(f'v_and_b32 v{vRho}, 31, v{vLane}')
    a(f'v_lshlrev_b32 v{vt1}, 3, v{vRho}')
    a(f'v_add_u32 v{vK2a}, 1024, v{vt1}')
    a(f'v_mov_b32 v{vt2}, 0x70000000')
    a(f'v_cndmask_b32 v{vQ2o}, v{vt2}, v{vK2a}, s[{sLo}:{sLo+1}]')
    a(f's_lshl_b32 s{st0}, s{sJ}, 3')
    a(f's_add_u32 s{st0}, s{st0}, s{sWV}')
    a(f's_lshl_b32 s{st1}, s{sHD}, 6')
    a(f's_add_u32 s{st1}, s{st1}, s{st0}')
    a(f's_mul_i32 s{sQA}, s{st1}, 1280')
    a(f's_add_u32 s{st3}, s{sQA}, {32*64*1280}')
    a(f's_lshr_b32 s{st0}, s{sJ}, 1')
    a(f's_mul_i32 s{st0}, s{st0}, 40960')
    a(f's_lshl_b32 s{st1}, s{sWV}, 10')
    a(f's_add_u32 s{st0}, s{st0}, s{sHB}')
    a(f's_add_u32 s{st0}, s{st0}, s{st1}')
    a(f's_add_u32 s{st2}, s{st0}, 8192')
    a(f's_mov_b32 m0, s{st1}')
    a('s_waitcnt lgkmcnt(0)')
    srd(a,sR,32,33,WS_O)
    a(f'buffer_load_dwordx4 v{vDma}, s[{sR}:{sR+3}], s{st0} offen lds')
    a(f's_add_u32 m0, s{st1}, 8192')
    a(f'buffer_load_dwordx4 {vr(vQ1,4)}, v{vDma}, s[{sR}:{sR+3}], s{st3} offen')
    a(f'buffer_load_dwordx2 {vr(vQ2,2)}, v{vQ2o}, s[{sR}:{sR+3}], s{st3} offen')
    a(f'buffer_load_dwordx4 v{vDma}, s[{sR}:{sR+3}], s{st2} offen lds')
    a(f's_add_u32 s34, s32, {WS_O}')
    a('s_addc_u32 s35, s33, 0')
    srd(a,sOo,34,35,WS_END-WS_O)
    p.stamp()
    a(f'v_lshrrev_b32 v{vt0}, 5, v{vLane}')
    a(f'v_lshlrev_b32 v{vK1a}, 4, v{vLane}')
    a(f'v_mul_u32_u24 v{vVa}, 320, v{vt0}')
    a(f'v_lshl_add_u32 v{vVa}, v{vRho}, 4, v{vVa}')
    a(f'v_add_u32 v{vVa}, 1280, v{vVa}')
    a(f'v_and_b32 v{vt1}, 7, v{vRho}')
    a(f'v_bfe_u32 v{vt2}, v{vRho}, 3, 1')
    a(f'v_lshl_or_b32 v{vt1}, v{vt2}, 4, v{vt1}')
    a(f'v_bfe_u32 v{vt2}, v{vRho}, 4, 1')
    a(f'v_lshl_or_b32 v{vKap}, v{vt2}, 3, v{vt1}')
    a(f'v_lshlrev_b32 v{vt3}, 2, v{vt0}')
    a(f'v_sub_u32 v{vt3}, v{vKap}, v{vt3}')
    a(f'v_mov_b32 v{vt2}, {NEG_BIG:#x}')
    for r in range(16):
        base=(r&3)+8*(r>>2)
        kb=((base>>3)&1)<<4 | ((base>>4)&1)<<3 | (base&7)
        a(f'v_cmp_gt_i32 s[{sM+2*(r&1)}:{sM+1+2*(r&1)}], {kb}, v{vt3}' if False else f'v_cmp_gt_i32 s[{38+2*(r&3)}:{39+2*(r&3)}], {kb}, v{vt3}')
        if r>=2:
            q=r-2
            a(f'v_cndmask_b32 v{vMF+q}, v{vt2}, 0, s[{38+2*(q&3)}:{39+2*(q&3)}]')
            a(f'v_cndmask_b32 v{vML+q}, 0, v{vt2}, s[{38+2*(q&3)}:{39+2*(q&3)}]')
    a('s_nop 1')
    for q in (14,15):
        a(f'v_cndmask_b32 v{vMF+q}, v{vt2}, 0, s[{38+2*(q&3)}:{39+2*(q&3)}]')
        a(f'v_cndmask_b32 v{vML+q}, 0, v{vt2}, s[{38+2*(q&3)}:{39+2*(q&3)}]')
    a(f's_cmp_lg_u32 s{sJ}, 0')
    a('s_cbranch_scc1 L_mf_ok')
    for r in range(16): a(f'v_mov_b32 v{vMF+r}, v{vt2}')
    a.lab('L_mf_ok')
    vinit()
    a(f's_lshl_b32 s{st0}, s{sJ}, 3')
    a(f's_add_u32 s{st0}, s{st0}, s{sWV}')
    a(f's_mul_i32 s{st0}, s{st0}, 40960')
    a(f'v_lshrrev_b32 v{vt1}, 4, v{vKap}')
    a(f'v_mul_u32_u24 v{vt1}, 20480, v{vt1}')
    a(f'v_and_b32 v{vt2}, 15, v{vKap}')
    a(f'v_lshl_add_u32 v{vt1}, v{vt2}, 4, v{vt1}')
    a(f'v_add_u32 v{vOoff}, s{st0}, v{vt1}')
    for r in range(16): a(f'v_mov_b32 v{vO+r}, 0')
    for i in range(4): a(f'v_mov_b32 v{vP+4+i}, 0')

    def rd_k1(dst,off): a(f'ds_read_b128 {vr(dst,4)}, v{vK1a} offset:{off}')
    def rd_k2(dst,off): a(f'ds_read_b64 {vr(dst,2)}, v{vK2a} offset:{off}')
    def rd_v(buf,off):
        a(f's_mov_b64 exec, s[{sVm}:{sVm+1}]')
        a(f'ds_read_b128 {vr(vV+8*buf,4)}, v{vVa} offset:{off}')
        a(f'ds_read_b128 {vr(vV+8*buf+4,4)}, v{vVa} offset:{off+640}')
        a('s_mov_b64 exec, -1')
    def qk1(S,C,K=None): a(f'v_mfma_f32_32x32x16_bf16 {vr(S,16)}, {vr(vK1 if K is None else K,4)}, {vr(vQ1,4)}, {C}')
    def qk2(S,K=None): a(f'v_mfma_f32_32x32x8bf16_1k {vr(S,16)}, {vr(vK2 if K is None else K,2)}, {vr(vQ2,2)}, {vr(S,16)}')
    def pv(buf,t): a(f'v_mfma_f32_32x32x16_bf16 {vr(vO,16)}, {vr(vV+8*buf+4*t,4)}, {vr(vP+4*t,4)}, {vr(vO,16)}')
    def ex(S,r): a(f'v_exp_f32 v{S+r}, v{S+r}')
    def cv(S,c): a(f'v_cvt_pk_bf16_f32 v{vP+c}, v{S+2*c}, v{S+2*c+1}')
    def rowmax(S,first):
        if first:
            a(f'v_max3_f32 v{vM}, v{S}, v{S+1}, v{S+2}'); rest=list(range(3,16))
        else: rest=list(range(16))
        while len(rest)>=2:
            a(f'v_max3_f32 v{vM}, v{vM}, v{S+rest[0]}, v{S+rest[1]}'); rest=rest[2:]
        if rest: a(f'v_max_f32 v{vM}, v{vM}, v{S+rest[0]}')
    def xhalf_max():
        a(f'v_mov_b32 v{vt1}, v{vM}')
        a('s_nop 1')
        a(f'v_permlane32_swap_b32 v{vM}, v{vt1}')
        a('s_nop 1')
        a(f'v_max_f32 v{vM}, v{vM}, v{vt1}')
    def get_l():
        a(f'v_mov_b32 v{vt1}, v{vO+8}')
        a(f'v_mov_b32 v{vt2}, v{vO+8}')
        a('s_nop 1')
        a(f'v_permlane32_swap_b32 v{vt1}, v{vt2}')
        a('s_nop 1')
    def store_o(br):
        a(f'v_rcp_f32 v{vt3}, v{vt2}')
        a(f's_mul_i32 s{st0}, s{sHD}, 5')
        a(f'v_lshrrev_b32 v{vt0}, 5, v{vLane}')
        for i in range(12): a(f'v_mul_f32 v{vO+i}, v{vO+i}, v{vt3}')
        for i in range(6): a(f'v_cvt_pk_bf16_f32 v{vP+i}, v{vO+2*i}, v{vO+2*i+1}')
        a(f's_mov_b32 s{st1}, {br*2048*1280}')
        for k,qb in enumerate((0,2,4)):
            a(f'v_add_u32 v{vt4}, s{st0}, v{vt0}')
            if qb: a(f'v_add_u32 v{vt4}, {qb}, v{vt4}')
            a(f'v_lshrrev_b32 v{vt5}, 3, v{vt4}')
            a(f'v_lshlrev_b32 v{vt5}, 10, v{vt5}')
            a(f'v_and_b32 v{vt1}, 3, v{vt4}')
            a(f'v_lshl_add_u32 v{vt5}, v{vt1}, 8, v{vt5}')
            a(f'v_bfe_u32 v{vt1}, v{vt4}, 2, 1')
            a(f'v_lshl_add_u32 v{vt5}, v{vt1}, 3, v{vt5}')
            a(f'v_add_u32 v{vt5}, v{vt5}, v{vOoff}')
            if k==2: a(f's_mov_b64 exec, s[{sLo}:{sLo+1}]')
            a(f'buffer_store_dwordx2 {vr(vP+2*k,2)}, v{vt5}, s[{sOo}:{sOo+3}], s{st1} offen')
            if k==2: a('s_mov_b64 exec, -1')
    def addr_add(s):
        a(f'v_add_u32 v{vK1a}, s{s}, v{vK1a}')
        a(f'v_add_u32 v{vK2a}, s{s}, v{vK2a}')
        a(f'v_add_u32 v{vVa}, s{s}, v{vVa}')
    def addr_addi(imm):
        a(f'v_add_u32 v{vK1a}, {imm}, v{vK1a}')
        a(f'v_add_u32 v{vK2a}, {imm}, v{vK2a}')
        a(f'v_add_u32 v{vVa}, {imm}, v{vVa}')
    def tile(t,off,Cn,last=False,last2=False,guard=None,hook=None):
        cur=vS[t&1]; nxt=vS[(t+1)&1]
        def G(fn,nm):
            if guard:
                a(f's_cmp_eq_u32 s{sIT}, 3'); a(f's_cbranch_scc1 {guard}_{nm}'); fn(); a.lab(f'{guard}_{nm}')
            else: fn()
        a('s_waitcnt lgkmcnt(0)')
        if hook: hook()
        if not last:
            if guard and guard.endswith('15'): G(lambda: (qk1(nxt,Cn)),'a')
            else: qk1(nxt,Cn)
        if not last and not last2:
            if guard: G(lambda: rd_k1(vK1,off+2*TILE),'b')
            else: rd_k1(vK1,off+2*TILE)
        for r in range(0,4): ex(cur,r)
        pv((t+1)&1,1)
        if not last:
            if guard and guard.endswith('15'): G(lambda: rd_v((t+1)&1,off+TILE),'c')
            else: rd_v((t+1)&1,off+TILE)
        ex(cur,4); ex(cur,5); cv(cur,0); ex(cur,6); cv(cur,1); ex(cur,7)
        if not last:
            if guard and guard.endswith('15'): G(lambda: qk2(nxt),'d')
            else: qk2(nxt)
        if not last and not last2:
            if guard: G(lambda: rd_k2(vK2,off+2*TILE),'e')
            else: rd_k2(vK2,off+2*TILE)
        ex(cur,8); cv(cur,2); ex(cur,9); cv(cur,3); ex(cur,10); ex(cur,11)
        pv(t&1,0)
        ex(cur,12); ex(cur,13); cv(cur,4); ex(cur,14); cv(cur,5); ex(cur,15); cv(cur,6); cv(cur,7)

    def prio_switch(phase,L):
        a(f's_cmp_lt_u32 s{sWV}, 4')
        a(f's_cbranch_scc{1-phase} {L}_hi')
        a('s_setprio 0')
        a(f's_branch {L}_d')
        a.lab(f'{L}_hi')
        a('s_setprio 1')
        a.lab(f'{L}_d')
    p.stamp()
    a('s_waitcnt vmcnt(0)')
    a('s_barrier')
    p.stamp()
    rd_k1(vK1,0); rd_k2(vK2,0)
    a('s_waitcnt lgkmcnt(0)')
    qk1(vS[0],'0'); qk2(vS[0])
    rd_v(0,0)
    a('s_nop 12')
    rowmax(vS[0],True)
    xhalf_max()
    for r in range(16): a(f'v_sub_f32 v{vC+r}, 0, v{vM}')
    a('s_nop 1')
    qk1(vS[0],vr(vC,16)); qk2(vS[0])
    rd_k1(vK1,TILE); rd_k2(vK2,TILE)
    a(f's_mov_b32 s{sIT}, 0')
    a.lab('L_b_loop')
    for t in range(16):
        hook=None
        if t==4:
            def hook():
                a(f's_cmp_lg_u32 s{sIT}, 0'); a('s_cbranch_scc1 L_b_nb4'); a('s_barrier'); a.lab('L_b_nb4')
        if t==12:
            def hook():
                a(f's_cmp_gt_u32 s{sIT}, 2'); a('s_cbranch_scc1 L_b_nb12'); a('s_barrier')
                a(f's_cmp_lg_u32 s{sIT}, 1'); a('s_cbranch_scc1 L_b_nb12')
                a(f'buffer_load_dwordx4 {vr(vQA1,4)}, v{vDma}, s[{sR}:{sR+3}], s{sQA} offen')
                a(f'buffer_load_dwordx2 {vr(vQA2,2)}, v{vQ2o}, s[{sR}:{sR+3}], s{sQA} offen')
                a.lab('L_b_nb12')
        if PRIO and t%PRIO==0:
            oldhook=hook
            def hook(oldhook=oldhook,t=t):
                if oldhook: oldhook()
                prio_switch((t//PRIO)&1, f'L_pr{t}')
        tile(t,t*TILE,vr(vC,16),guard=(f'L_bg{t}' if t>=14 else None),hook=hook)
    addr_addi(16*TILE)
    if PROF:
        n0=p.n
        for k in range(4):
            a(f's_cmp_lg_u32 s{sIT}, {k}'); a(f's_cbranch_scc1 L_st{k}'); p.stamp(); a.lab(f'L_st{k}')
    a(f's_add_u32 s{sIT}, s{sIT}, 1')
    a(f's_cmp_lt_u32 s{sIT}, 4')
    a('s_cbranch_scc1 L_b_loop')
    a('s_nop 1')
    pv(1,1)
    a('s_nop 15')
    p.stamp()
    get_l()
    a(f'v_mov_b32 v{vt3}, {f32bits(2.0**100):#x}')
    a(f'v_cmp_nlt_f32 vcc, v{vt2}, v{vt3}')
    a('s_nop 4')
    a('s_cbranch_vccnz L_b_fallback')
    a.lab('L_b_store')
    store_o(1)
    p.stamp()
    a(f's_mul_i32 s{st0}, s{sWV}, {TILE}')
    a(f's_sub_u32 s{st0}, s{st0}, {64*TILE}')
    addr_add(st0)
    a('s_waitcnt vmcnt(3)')
    for i in range(4): a(f'v_mov_b32 v{vQ1+i}, v{vQA1+i}')
    for i in range(2): a(f'v_mov_b32 v{vQ2+i}, v{vQA2+i}')
    a(f's_sub_u32 s{sSw}, 8, s{sWV}')
    a(f's_cmp_lg_u32 s{sJ}, 0')
    a(f's_cselect_b32 s{sSw}, 0, s{sSw}')
    p.stamp()
    KR=[(vV,vV+4),(vV+8,vV+12),(vP,vP+4)]
    SB=[vS[0],vS[1],vO]
    def cmid_init(valid_val):
        a(f's_cmp_le_u32 s{sSw}, 1')
        a(f's_cbranch_scc1 L_cm_{valid_val[0]}_v')
        for r in range(16): a(f'v_mov_b32 v{vC+r}, {NEG_BIG:#x}')
        a(f's_branch L_cm_{valid_val[0]}_d')
        a.lab(f'L_cm_{valid_val[0]}_v')
        for r in range(16): a(f'v_mov_b32 v{vC+r}, {valid_val[1]}')
        a.lab(f'L_cm_{valid_val[0]}_d')
    def cmid_switch(tag,t,val):
        a(f's_cmp_lg_u32 s{sSw}, {t}')
        a(f's_cbranch_scc1 L_sw_{tag}_{t}')
        a('s_nop 15')
        for r in range(16): a(f'v_mov_b32 v{vC+r}, {val}')
        a('s_nop 1')
        a.lab(f'L_sw_{tag}_{t}')
    cmid_init(('p1','0'))
    for i in range(3):
        rd_k1(KR[i][0],i*TILE); rd_k2(KR[i][1],i*TILE)
    for b in range(3):
        a('s_waitcnt lgkmcnt(0)')
        for i in range(3):
            t=3*b+i
            if 2<=t<=7: cmid_switch('p1',t,'0')
            C = vr(vMF,16) if t==0 else (vr(vML,16) if t==8 else vr(vC,16))
            qk1(SB[i],C,KR[i][0]); qk2(SB[i],KR[i][1])
        if b<2:
            for i in range(3):
                t=3*(b+1)+i
                rd_k1(KR[i][0],t*TILE); rd_k2(KR[i][1],t*TILE)
        if b==2:
            rd_k1(vK1,0); rd_k2(vK2,0)
        a('s_nop 7')
        for i in range(3):
            if i==2: a('s_nop 3')
            rowmax(SB[i],b==0 and i==0)
    xhalf_max()
    a(f'v_sub_f32 v{vM}, 0, v{vM}')
    for r in range(16): a(f'v_add_f32 v{vMF+r}, v{vMF+r}, v{vM}')
    for r in range(16): a(f'v_add_f32 v{vML+r}, v{vML+r}, v{vM}')
    cmid_init(('p2',f'v{vM}'))
    for r in range(16): a(f'v_mov_b32 v{vO+r}, 0')
    vinit()
    for i in range(4): a(f'v_mov_b32 v{vP+4+i}, 0')
    a('s_waitcnt lgkmcnt(0)')
    qk1(vS[0],vr(vMF,16)); qk2(vS[0])
    rd_k1(vK1,TILE); rd_v(0,0); rd_k2(vK2,TILE)
    for t in range(9):
        hook=None
        tn=t+1
        if 2<=tn<=7:
            def hook(tn=tn): cmid_switch('p2',tn,f'v{vM}')
        Cn = vr(vML,16) if tn==8 else vr(vC,16)
        if PRIO and t%PRIO==0:
            oldhook=hook
            def hook(oldhook=oldhook,t=t):
                if oldhook: oldhook()
                prio_switch((t//PRIO)&1, f'L_apr{t}')
        tile(t,t*TILE,Cn,last=(t==8),last2=(t==7),hook=hook)
    a('s_nop 1')
    pv(0,1)
    a('s_nop 15')
    get_l()
    store_o(0)
    p.stamp()
    if PROF: a('s_waitcnt vmcnt(0)')
    p.stamp(); p.real(1)
    p.dump(sWV,9)
    if TL: a('s_waitcnt vmcnt(0)')
    tl_mark(a,1,1,False)
    a('s_endpgm')
    a.lab('L_loader')
    a(f's_lshr_b32 s{sN}, s{sJ}, 1')
    a(f's_mul_i32 s{sN}, s{sN}, 40960')
    a(f's_add_u32 s{sN}, s{sN}, 16384')
    a(f's_mov_b32 s{sLd}, 16384')
    a('s_waitcnt lgkmcnt(0)')
    srd(a,sR,32,33,WS_O)
    lid=[0]
    def load_rows(n):
        lid[0]+=1; L=f'L_ld{lid[0]}'
        a(f's_mov_b32 s{sIT}, {n}')
        a.lab(L)
        a(f's_add_u32 s{st0}, s{sHB}, s{sN}')
        a(f's_mov_b32 m0, s{sLd}')
        a(f's_add_u32 s{st1}, s{st0}, 4096')
        for c in range(4): a(f'buffer_load_dwordx4 v{vDma}, s[{sR}:{sR+3}], s{st0} offen offset:{c*1024} lds')
        a(f's_add_u32 m0, s{sLd}, 4096')
        a(f's_add_u32 s{sN}, s{sN}, 8192')
        for c in range(4): a(f'buffer_load_dwordx4 v{vDma}, s[{sR}:{sR+3}], s{st1} offen offset:{c*1024} lds')
        a(f's_add_u32 s{sLd}, s{sLd}, 8192')
        a(f's_cmp_eq_u32 s{sN}, 163840')
        a(f's_cselect_b32 s{sN}, 0, s{sN}')
        a(f's_sub_u32 s{sIT}, s{sIT}, 1')
        a(f's_cmp_lg_u32 s{sIT}, 0')
        a(f's_cbranch_scc1 {L}')
    a('s_barrier')
    load_rows(3); a('s_waitcnt vmcnt(0)'); a('s_barrier')
    load_rows(5); a('s_waitcnt vmcnt(0)'); a('s_barrier')
    load_rows(5); a('s_waitcnt vmcnt(20)'); load_rows(5); a('s_waitcnt vmcnt(0)'); a('s_barrier')
    a(f's_sub_u32 s{sHB}, s{sHB}, {32*64*TILE+20480}')
    a(f's_mul_i32 s{sN}, s{sJ}, 20480')
    a(f's_add_u32 s{sHB}, s{sHB}, s{sN}')
    a(f's_mov_b32 s{sN}, 0')
    a(f's_mov_b32 s{sLd}, 0')
    load_rows(5); a('s_waitcnt vmcnt(0)'); a('s_barrier')
    if PROF:
        for i in range(1,12): p.a(f's_mov_b64 s[{60+2*i}:{61+2*i}], s[60:61]')
        p.real(1); n0=p.n; p.dump(sWV,9)
    a('s_endpgm')
    a.lab('L_b_fallback')
    a(f'v_lshlrev_b32 v{vt4}, 3, v{vRho}')
    a(f'v_add_u32 v{vt4}, 1024, v{vt4}')
    a(f'v_lshrrev_b32 v{vt0}, 5, v{vLane}')
    a(f'v_mul_u32_u24 v{vt5}, 320, v{vt0}')
    a(f'v_lshl_add_u32 v{vt5}, v{vRho}, 4, v{vt5}')
    a(f'v_add_u32 v{vt5}, 1280, v{vt5}')
    a(f'v_mov_b32 v{vM}, {NEG_BIG:#x}')
    a(f's_mov_b32 s{st0}, s{sHB}')
    a(f's_mov_b32 s{sIT}, 64')
    a.lab('L_fb_p1')
    a(f'buffer_load_dwordx4 {vr(vK1,4)}, v{vDma}, s[{sR}:{sR+3}], s{st0} offen')
    a(f'buffer_load_dwordx2 {vr(vK2,2)}, v{vt4}, s[{sR}:{sR+3}], s{st0} offen')
    a('s_waitcnt vmcnt(0)')
    qk1(vS[0],'0'); qk2(vS[0])
    a('s_nop 15')
    rowmax(vS[0],False)
    a(f's_add_u32 s{st0}, s{st0}, {TILE}')
    a(f's_sub_u32 s{sIT}, s{sIT}, 1')
    a(f's_cmp_lg_u32 s{sIT}, 0')
    a('s_cbranch_scc1 L_fb_p1')
    xhalf_max()
    for r in range(16): a(f'v_sub_f32 v{vC+r}, 0, v{vM}')
    for r in range(16): a(f'v_mov_b32 v{vO+r}, 0')
    a(f's_mov_b32 s{st0}, s{sHB}')
    a(f's_mov_b32 s{sIT}, 64')
    a.lab('L_fb_p2')
    a(f'buffer_load_dwordx4 {vr(vK1,4)}, v{vDma}, s[{sR}:{sR+3}], s{st0} offen')
    a(f'buffer_load_dwordx2 {vr(vK2,2)}, v{vt4}, s[{sR}:{sR+3}], s{st0} offen')
    a(f's_mov_b64 exec, s[{sVm}:{sVm+1}]')
    a(f'buffer_load_dwordx4 {vr(vV,4)}, v{vt5}, s[{sR}:{sR+3}], s{st0} offen')
    a(f'buffer_load_dwordx4 {vr(vV+4,4)}, v{vt5}, s[{sR}:{sR+3}], s{st0} offen offset:640')
    a('s_mov_b64 exec, -1')
    a('s_waitcnt vmcnt(0)')
    qk1(vS[0],vr(vC,16)); qk2(vS[0])
    a('s_nop 15')
    for r in range(16): ex(vS[0],r)
    a('s_nop 0')
    for c in range(8): cv(vS[0],c)
    a('s_nop 1')
    pv(0,0); pv(0,1)
    a(f's_add_u32 s{st0}, s{st0}, {TILE}')
    a(f's_sub_u32 s{sIT}, s{sIT}, 1')
    a(f's_cmp_lg_u32 s{sIT}, 0')
    a('s_cbranch_scc1 L_fb_p2')
    a('s_nop 15')
    get_l()
    a('s_branch L_b_store')
    a.lab(f'L_{name}_end')
    a('s_endpgm')
    return a.txt(), kd(name, vEnd)

def gen_proj(NPH=5):
    a=A(); name='proj_kernel'
    head(a,name)
    p=Prof(a,2)
    sX,sW,sO=4,8,12
    sBR,sMT,sNT,sWV=26,27,28,29
    st0,st1,st2,st3=41,42,43,44
    sROT=30; sPH=31
    vLane=1; vXo=2; vt0=4; vt1=5; vt2=6; vt3=7; vTok=8; vG=9; vTr=10; vOut=11; vTr2=12; vWo=13; vCc=14
    vX=16
    vWf=vX+160
    vAcc=vWf+40
    vEnd=vAcc+40
    assert vEnd<=256
    spp=20//NPH
    a('s_cmp_ge_u32 s2, 256')
    a(f's_cbranch_scc1 L_{name}_end')
    tl_mark(a,2,0,True)
    p.real(0); p.stamp()
    a('s_load_dwordx2 s[16:17], s[0:1], 16')
    a('s_load_dwordx2 s[18:19], s[0:1], 40')
    a('s_load_dwordx2 s[20:21], s[0:1], 48')
    a('s_load_dwordx2 s[24:25], s[0:1], 64')
    a(f'v_and_b32 v{vLane}, 63, v0')
    a(f'v_lshrrev_b32 v{vt0}, 6, v0')
    a(f's_and_b32 s{st0}, s2, 7')
    a(f's_lshr_b32 s{st1}, s2, 3')
    a(f'v_readfirstlane_b32 s{sWV}, v{vt0}')
    a(f's_lshr_b32 s{sBR}, s{st0}, 2')
    a(f's_and_b32 s{st2}, s{st0}, 3')
    a(f's_lshl_b32 s{st2}, s{st2}, 2')
    a(f's_and_b32 s{st3}, s{st1}, 3')
    a(f's_add_u32 s{sMT}, s{st2}, s{st3}')
    a(f's_lshr_b32 s{sNT}, s{st1}, 2')
    a(f's_add_u32 s{sROT}, s{sNT}, s{st3}')
    a(f's_cmp_ge_u32 s{sROT}, 10')
    a(f's_cselect_b32 s{st0}, 10, 0')
    a(f's_sub_u32 s{sROT}, s{sROT}, s{st0}')
    a(f's_cmp_ge_u32 s{sROT}, 5')
    a(f's_cselect_b32 s{st0}, 5, 0')
    a(f's_sub_u32 s{sROT}, s{sROT}, s{st0}')
    a(f's_cmp_ge_u32 s{sWV}, 4')
    a(f's_cbranch_scc1 L_proj_loader')
    a(f'v_and_b32 v{vTok}, 15, v{vLane}')
    a(f'v_lshrrev_b32 v{vG}, 4, v{vLane}')
    a(f'v_lshlrev_b32 v{vXo}, 4, v{vLane}')
    a(f's_lshl_b32 s{st0}, s{sMT}, 3')
    a(f's_lshl_b32 s{st1}, s{sWV}, 1')
    a(f's_add_u32 s{st0}, s{st0}, s{st1}')
    a(f's_mul_i32 s32, s{st0}, 20480')
    a(f's_mul_i32 s{st0}, s{sBR}, {2048*1280}')
    a(f's_add_u32 s{st0}, s{st0}, {WS_O}')
    a(f's_mov_b32 s{sPH}, s{sROT}')
    a('s_waitcnt lgkmcnt(0)')
    a(f's_add_u32 s24, s24, s{st0}')
    a('s_addc_u32 s25, s25, 0')
    srd(a,sX,24,25,2048*1280)
    for ph in range(NPH):
        a(f's_mul_i32 s{st0}, s{sPH}, {spp*1024}')
        a(f's_add_u32 s33, s32, s{st0}')
        a(f's_add_u32 s34, s33, 20480')
        for s_ in range(spp):
            st=ph*spp+s_
            for u in range(2):
                a(f'buffer_load_dwordx4 {vr(vX+(st*2+u)*4,4)}, v{vXo}, s[{sX}:{sX+3}], s{33+u} offen offset:{s_*1024}')
        a(f's_add_u32 s{sPH}, s{sPH}, 1')
        a(f's_cmp_eq_u32 s{sPH}, {NPH}')
        a(f's_cselect_b32 s{sPH}, 0, s{sPH}')
    srd(a,sO,20,21,2048*2560)
    p.stamp()
    a(f'v_bfe_u32 v{vt0}, v{vLane}, 2, 2')
    a(f'v_lshl_add_u32 v{vt0}, v{vG}, 2, v{vt0}')
    a(f'v_mul_u32_u24 v{vt0}, 160, v{vt0}')
    a(f'v_and_b32 v{vt1}, 3, v{vLane}')
    a(f'v_lshl_add_u32 v{vTr}, v{vt1}, 3, v{vt0}')
    a(f'v_add_u32 v{vTr2}, 61440, v{vTr}')
    for i in range(40): a(f'v_mov_b32 v{vAcc+i}, 0')
    a(f's_lshl_b32 s{st0}, s{sMT}, 7')
    a(f's_lshl_b32 s{st1}, s{sWV}, 5')
    a(f's_add_u32 s{st0}, s{st0}, s{st1}')
    a(f'v_add_u32 v{vt0}, s{st0}, v{vTok}')
    a(f'v_mul_u32_u24 v{vt0}, 2560, v{vt0}')
    a(f'v_and_b32 v{vt1}, 1, v{vG}')
    a(f'v_lshlrev_b32 v{vt1}, 5, v{vt1}')
    a(f'v_lshrrev_b32 v{vt2}, 1, v{vG}')
    a(f'v_lshl_add_u32 v{vt1}, v{vt2}, 4, v{vt1}')
    a(f'v_add_u32 v{vOut}, v{vt0}, v{vt1}')
    a(f'v_lshl_add_u32 v{vt3}, v{vG}, 3, v{vt0}')
    def trr(s,cp,h):
        off=s*32*160+cp*32+h*2560
        buf=vWf+(s&1)*20+cp*4+2*h
        if off<61440: return f'ds_read_b64_tr_b16 {vr(buf,2)}, v{vTr} offset:{off}'
        return f'ds_read_b64_tr_b16 {vr(buf,2)}, v{vTr2} offset:{off-61440}'
    for ph in range(NPH):
        a(f's_waitcnt vmcnt({2*(20-spp*(ph+1))})')
        a('s_barrier')
        if ph==0: p.stamp()
        for s in range(spp*ph,spp*(ph+1)):
            first=(s%spp==0)
            if first:
                for cp in range(5):
                    a(trr(s,cp,0)); a(trr(s,cp,1))
            nxt=[]
            if (s+1)%spp!=0:
                nxt=[trr(s+1,cp,h) for cp in range(5) for h in range(2)]
            buf=vWf+(s&1)*20
            a(f's_waitcnt lgkmcnt(0)')
            for cp in range(5):
                for u in range(2):
                    ac=vAcc+(cp*2+u)*4
                    a(f'v_mfma_f32_16x16x32_bf16 {vr(ac,4)}, {vr(buf+cp*4,4)}, {vr(vX+(s*2+u)*4,4)}, {vr(ac,4)}')
                    if nxt: a(nxt.pop(0))
    a('s_nop 7')
    p.stamp()
    a(f's_mul_i32 s{st0}, s{sBR}, 1280')
    a(f's_mul_i32 s{st1}, s{sNT}, 160')
    a(f's_add_u32 s{st0}, s{st0}, s{st1}')
    a(f's_add_u32 s{st1}, s{st0}, {16*2560}')
    for u in range(2):
        for cp in range(5):
            b=vAcc+(cp*2+u)*4
            a(f'v_cvt_pk_bf16_f32 v{b}, v{b}, v{b+1}')
            a(f'v_cvt_pk_bf16_f32 v{b+1}, v{b+2}, v{b+3}')
        for cp in (0,2):
            b=vAcc+(cp*2+u)*4; b2=vAcc+((cp+1)*2+u)*4
            a(f'v_mov_b32 v{b+2}, v{b2}')
            a(f'v_mov_b32 v{b+3}, v{b2+1}')
            a('s_nop 1')
            a(f'v_permlane16_swap_b32 v{b}, v{b+2}')
            a(f'v_permlane16_swap_b32 v{b+1}, v{b+3}')
            a('s_nop 1')
            a(f'buffer_store_dwordx4 {vr(b,4)}, v{vOut}, s[{sO}:{sO+3}], s{st0+u} offen offset:{cp*32}')
        b=vAcc+(4*2+u)*4
        a(f'buffer_store_dwordx2 {vr(b,2)}, v{vt3}, s[{sO}:{sO+3}], s{st0+u} offen offset:128')
    p.stamp()
    if PROF: a('s_waitcnt vmcnt(0)')
    p.stamp(); p.real(1)
    p.dump(sWV,8)
    if TL: a('s_waitcnt vmcnt(0)')
    tl_mark(a,2,1,False)
    a('s_endpgm')
    a.lab('L_proj_loader')
    a(f's_sub_u32 s{sWV}, s{sWV}, 4')
    a(f's_lshl_b32 s{st0}, s{sWV}, 6')
    a(f'v_add_u32 v{vt0}, s{st0}, v{vLane}')
    a(f'v_mul_u32_u24 v{vt1}, 52429, v{vt0}')
    a(f'v_lshrrev_b32 v{vt1}, 19, v{vt1}')
    a(f'v_mul_u32_u24 v{vt2}, 10, v{vt1}')
    a(f'v_sub_u32 v{vCc}, v{vt0}, v{vt2}')
    a(f'v_mul_u32_u24 v{vt1}, 1280, v{vt1}')
    a(f'v_lshl_add_u32 v{vWo}, v{vCc}, 4, v{vt1}')
    vWm=20
    for m in range(5):
        a(f'v_mov_b32 v{vWm+m}, v{vWo}')
        if m<4:
            a(f'v_add_u32 v{vCc}, 6, v{vCc}')
            a(f'v_cmp_le_u32 s[56:57], 10, v{vCc}')
            a(f'v_add_u32 v{vWo}, {25*1280+96}, v{vWo}')
            a(f'v_add_u32 v{vt0}, {1280-160}, v{vWo}')
            a(f'v_subrev_u32 v{vt1}, 10, v{vCc}')
            a(f'v_cndmask_b32 v{vWo}, v{vWo}, v{vt0}, s[56:57]')
            a(f'v_cndmask_b32 v{vCc}, v{vCc}, v{vt1}, s[56:57]')
    a(f's_mul_i32 s34, s{sNT}, 160')
    a(f's_lshl_b32 s35, s{sWV}, 10')
    a(f's_mov_b32 s{sPH}, s{sROT}')
    a('s_waitcnt lgkmcnt(0)')
    a(f's_cmp_eq_u32 s{sBR}, 0')
    a('s_cselect_b64 s[16:17], s[16:17], s[18:19]')
    srd(a,sW,16,17,640*1280)
    for ph in range(NPH):
        a(f's_mul_i32 s{st0}, s{sPH}, {128*1280}')
        a(f's_add_u32 s{st0}, s{st0}, s34')
        for m in range(5):
            a(f's_add_u32 m0, s35, {ph*20480+m*4096}')
            a(f'buffer_load_dwordx4 v{vWm+m}, s[{sW}:{sW+3}], s{st0} offen lds')
        a(f's_add_u32 s{sPH}, s{sPH}, 1')
        a(f's_cmp_eq_u32 s{sPH}, {NPH}')
        a(f's_cselect_b32 s{sPH}, 0, s{sPH}')
        if ph>=1:
            a('s_waitcnt vmcnt(5)')
            a('s_barrier')
    a('s_waitcnt vmcnt(0)')
    a('s_barrier')
    if PROF:
        a(f's_add_u32 s{sWV}, s{sWV}, 4')
        for i in range(1,8): p.a(f's_mov_b64 s[{60+2*i}:{61+2*i}], s[60:61]')
        p.real(1); p.dump(sWV,8)
    a('s_endpgm')
    a.lab(f'L_{name}_end')
    a('s_endpgm')
    return a.txt(), kd(name, vEnd)

def assemble(parts, launches):
    hdr=open('cdna_kernels/'+NAME+'.s.ref').read().split('\n')
    out=[]
    for l in hdr:
        if l.startswith('; @launch') or l.startswith('; Override') or l.startswith('; grid='): continue
        if not l.startswith(';'): break
        out.append(l)
    for k,g,b,lds in launches:
        out.append(f'; @launch kernel={k} grid=({g},1,1) block=({b},1,1) lds={lds}')
    out.append('.amdgcn_target "amdgcn-amd-amdhsa--gfx950"')
    out.append('.text')
    s='\n'.join(out)+'\n'
    for code,desc in parts: s+=code
    for code,desc in parts: s+=desc
    return s

if __name__=='__main__':
    if len(sys.argv)>2 and sys.argv[2]=='prof': PROF=True
    if len(sys.argv)>2 and sys.argv[2]=='tl': TL=True
    kw=eval(sys.argv[3]) if len(sys.argv)>3 else {}
    parts=[gen_qkv(**kw.get('qkv',{})),gen_attn(**kw.get('attn',{})),gen_proj(**kw.get('proj',{}))]
    launches=[('qkv_kernel',256,512,147456),('attn_kernel',256,576,163840),('proj_kernel',256,512,102400)]
    open(sys.argv[1] if len(sys.argv)>1 else 'k.s','w').write(assemble(parts,launches))
```

```python
import sys, math, struct
NAME='concat_heads__sliding_block__mha_block__prompt'
KNAME=NAME+'_kernel'
WS_Q=0
WS_KV=2*32*64*1280
WS_O=WS_KV+2*32*64*2560
WS_END=WS_O+2*2048*1280
CSCALE=(20.0**-0.5)*math.log2(math.e)
NEG_BIG=0xf149f2ca
def f32bits(x): return struct.unpack('<I',struct.pack('<f',x))[0]
class A:
    def __init__(s): s.l=[]
    def __call__(s,x): s.l.append('  '+x)
    def lab(s,x): s.l.append(x+':')
    def raw(s,x): s.l.append(x)
    def txt(s): return '\n'.join(s.l)+'\n'
def vr(a,n=1): return f'v{a}' if n==1 else f'v[{a}:{a+n-1}]'
PROF=False
PROF_BASE=32<<20
NST=16
class Prof:
    def __init__(s,a): s.a=a; s.n=0
    def stamp(s,i=None):
        if not PROF: return
        if i is None: i=s.n
        s.n=max(s.n,i+1)
        assert i<14
        s.a(f's_memtime s[{60+2*i}:{61+2*i}]')
    def real(s,idx):
        if PROF: s.a(f's_memrealtime s[{88+2*idx}:{89+2*idx}]')
    def dump(s):
        if not PROF: return
        a=s.a
        a('s_waitcnt lgkmcnt(0) vmcnt(0)')
        a(f's_lshl_b32 s92, s{sWG}, 3')
        a(f's_add_u32 s92, s92, s{sWV}')
        a('s_lshl_b32 s92, s92, 6')
        a(f's_add_u32 s92, s92, {PROF_BASE}')
        a(f's_add_u32 s94, s{sWS}, s92')
        a(f's_addc_u32 s95, s{sWS+1}, 0')
        a('v_mov_b32 v0, 0')
        a('s_mov_b64 exec, 1')
        for i in range(14):
            a(f'v_mov_b32 v1, s{60+2*i}')
            a(f'global_store_dword v0, v1, s[94:95] offset:{4*i}')
        a('v_mov_b32 v1, s88'); a('global_store_dword v0, v1, s[94:95] offset:56')
        a('v_mov_b32 v1, s90'); a('global_store_dword v0, v1, s[94:95] offset:60')
        a('s_waitcnt vmcnt(0)')
sWG=96; sWV=97; sDBG=98; sWS=100
def srd(a, d, lo, hi, nbytes):
    a(f's_mov_b32 s{d}, s{lo}')
    a(f's_and_b32 s{d+1}, s{hi}, 0xffff')
    a(f's_mov_b32 s{d+2}, {nbytes}')
    a(f's_mov_b32 s{d+3}, 0x20000')

SC='sc1'

def phase1(a,p,D=3,SY=1):
    R=3; SLOT=49152; XOFF=16384
    sX,sW,sO=4,8,12
    sBR,sMT,sNT=26,27,28
    sKS=31; sXo=32; sW0=34; sIT=36; sSlot=37; sLW=38; sLX=39; sT=40
    st0,st1,st2,st3=41,42,43,44
    sSec=45; sBase=46; sHS=47; sTS=48; sNx=49; sM=30; sN=33; sLd=29
    vLane=1; vt0=6; vt1=7; vt2=8; vt3=9; vt4=10; vTok=11; vG=12; vRho=13
    vLW=2; vLX=4; vXh=2; vXc1=3
    vB0=14; vBc=19; vBn=24; vAd=29
    vWf=(vAd+8+3)//4*4; vXf=vWf+32; vAcc=vXf+4*(D+1); vEnd=vAcc+128
    assert vEnd<=256 and 16%(D+1)==0
    def wf(step,c): return vWf+(step&1)*16+c*4
    def xf(i): return vXf+(i%(D+1))*4
    def acc(c,mt): return vAcc+(c*8+mt)*4
    a('s_load_dwordx4 s[16:19], s[0:1], 0')
    a('s_load_dwordx4 s[20:23], s[0:1], 24')
    a(f'v_and_b32 v{vLane}, 63, v0')
    a(f's_and_b32 s{st0}, s{sWG}, 7')
    a(f's_lshr_b32 s{st1}, s{sWG}, 3')
    a(f's_lshr_b32 s{sBR}, s{st0}, 2')
    a(f's_bfe_u32 s{st2}, s{st0}, 0x10001')
    a(f's_lshl_b32 s{st2}, s{st2}, 2')
    a(f's_and_b32 s{st3}, s{st1}, 3')
    a(f's_add_u32 s{sMT}, s{st2}, s{st3}')
    a(f's_and_b32 s{st2}, s{st0}, 1')
    a(f's_lshl_b32 s{st2}, s{st2}, 3')
    a(f's_lshr_b32 s{st1}, s{st1}, 2')
    a(f's_add_u32 s{sNT}, s{st2}, s{st1}')
    a(f's_cmp_ge_u32 s{sNT}, 15')
    a(f's_cbranch_scc1 L_p1_skip')
    a(f's_cmp_ge_u32 s{sWV}, 4')
    a(f's_cbranch_scc1 L_p1_loader')
    a(f's_and_b32 s{sM}, s{sWV}, 1')
    a(f's_lshr_b32 s{sN}, s{sWV}, 1')
    a(f'v_and_b32 v{vTok}, 15, v{vLane}')
    a(f'v_lshrrev_b32 v{vG}, 4, v{vLane}')
    a(f'v_and_b32 v{vt0}, 3, v{vLane}')
    a(f'v_bfe_u32 v{vt1}, v{vLane}, 2, 2')
    a(f'v_and_b32 v{vt2}, 1, v{vG}')
    a(f'v_lshl_or_b32 v{vt2}, v{vt2}, 2, v{vt1}')
    a(f'v_lshl_add_u32 v{vt3}, v{vG}, 3, v{vt1}')
    a(f'v_lshlrev_b32 v{vt3}, 8, v{vt3}')
    a(f'v_lshl_add_u32 v{vt3}, v{vt0}, 3, v{vt3}')
    a(f's_lshl_b32 s{st0}, s{sN}, 2')
    a(f'v_xor_b32 v{vt2}, s{st0}, v{vt2}')
    for c in range(4):
        a(f'v_xor_b32 v{vt4}, {c}, v{vt2}')
        a(f'v_lshl_add_u32 v{vB0+c}, v{vt4}, 5, v{vt3}')
    a(f'v_lshrrev_b32 v{vt0}, 1, v{vTok}')
    a(f'v_xor_b32 v{vt0}, v{vt0}, v{vG}')
    a(f'v_lshlrev_b32 v{vt0}, 4, v{vt0}')
    a(f'v_lshl_add_u32 v{vt0}, v{vTok}, 7, v{vt0}')
    a(f's_lshl_b32 s{st0}, s{sM}, 14')
    a(f's_add_u32 s{st0}, s{st0}, {XOFF}')
    a(f'v_add_u32 v{vB0+4}, s{st0}, v{vt0}')
    a(f'v_xor_b32 v{vXh}, 64, v{vt0}')
    a(f'v_sub_u32 v{vXh}, v{vXh}, v{vt0}')
    for i in range(5): a(f'v_mov_b32 v{vBc+i}, v{vB0+i}')
    for i in range(128): a(f'v_mov_b32 v{vAcc+i}, 0')
    a(f's_mul_i32 s{sSec}, s{sNT}, 52')
    a(f's_lshr_b32 s{sSec}, s{sSec}, 8')
    a(f's_mul_i32 s{st0}, s{sSec}, 5')
    a(f's_sub_u32 s{st0}, s{sNT}, s{st0}')
    a(f's_lshl_b32 s{st0}, s{st0}, 7')
    a(f's_lshl_b32 s{st1}, s{sN}, 6')
    a(f's_add_u32 s{st0}, s{st0}, s{st1}')
    a(f's_cmp_eq_u32 s{sSec}, 0')
    a(f's_cselect_b32 s{st1}, 0, 1')
    a(f's_cselect_b32 s{st2}, 0, {WS_KV}')
    a(f's_lshl_b32 s{sTS}, 1280, s{st1}')
    a(f's_lshl_b32 s{sHS}, s{sTS}, 6')
    a(f's_lshl_b32 s{sT}, s{sMT}, 3')
    a(f's_lshl_b32 s{st1}, s{sM}, 2')
    a(f's_add_u32 s{sT}, s{sT}, s{st1}')
    a(f's_lshl_b32 s{st1}, s{sBR}, 11')
    a(f's_add_u32 s{st1}, s{st1}, s{sT}')
    a(f's_mul_i32 s{st1}, s{st1}, s{sTS}')
    a(f's_add_u32 s{sBase}, s{st1}, s{st2}')
    a(f's_cmp_eq_u32 s{sSec}, 2')
    a(f's_cbranch_scc1 L_p1_adV')
    a(f'v_lshrrev_b32 v{vt0}, 3, v{vTok}')
    a(f'v_and_b32 v{vt1}, 7, v{vTok}')
    a(f'v_lshl_add_u32 v{vRho}, v{vt0}, 4, v{vt1}')
    a(f's_lshr_b32 s{st0}, s{st0}, 2')
    for c in range(4):
        a(f'v_add_u32 v{vt0}, s{st0}, v{vG}')
        if c: a(f'v_add_u32 v{vt0}, {4*c}, v{vt0}')
        a(f'v_mul_u32_u24 v{vt1}, 52429, v{vt0}')
        a(f'v_lshrrev_b32 v{vt1}, 18, v{vt1}')
        a(f'v_mul_u32_u24 v{vt2}, 5, v{vt1}')
        a(f'v_sub_u32 v{vt2}, v{vt0}, v{vt2}')
        a(f'v_cmp_eq_u32 s[56:57], 4, v{vt2}')
        a(f'v_mul_u32_u24 v{vt1}, s{sHS}, v{vt1}')
        a(f'v_lshrrev_b32 v{vt3}, 1, v{vt2}')
        a(f'v_lshlrev_b32 v{vt3}, 9, v{vt3}')
        a(f'v_and_b32 v{vt4}, 1, v{vt2}')
        a(f'v_lshl_add_u32 v{vt3}, v{vt4}, 3, v{vt3}')
        a(f'v_add_u32 v{vt1}, v{vt1}, v{vt3}')
        a(f'v_cndmask_b32 v{vt4}, 4, 3, s[56:57]')
        a(f'v_lshlrev_b32 v{vt0}, v{vt4}, v{vRho}')
        a(f'v_add_u32 v{vAd+2*c}, v{vt1}, v{vt0}')
        a(f'v_lshlrev_b32_e64 v{vt0}, v{vt4}, 8')
        a(f'v_add_u32 v{vAd+2*c+1}, v{vAd+2*c}, v{vt0}')
    a('s_branch L_p1_adD')
    a.lab('L_p1_adV')
    for c in range(4):
        a(f'v_add_u32 v{vt0}, s{st0}, v{vTok}')
        if c: a(f'v_add_u32 v{vt0}, {16*c}, v{vt0}')
        a(f'v_mul_u32_u24 v{vt1}, 52429, v{vt0}')
        a(f'v_lshrrev_b32 v{vt1}, 20, v{vt1}')
        a(f'v_mul_u32_u24 v{vt2}, 20, v{vt1}')
        a(f'v_sub_u32 v{vt2}, v{vt0}, v{vt2}')
        a(f'v_mul_u32_u24 v{vt1}, {64*2560}, v{vt1}')
        a(f'v_lshl_add_u32 v{vt1}, v{vt2}, 4, v{vt1}')
        a(f'v_mul_u32_u24 v{vt2}, 320, v{vG}')
        a(f'v_add_u32 v{vAd+2*c}, v{vt1}, v{vt2}')
        a(f'v_add_u32 v{vAd+2*c}, 1280, v{vAd+2*c}')
        a(f'v_mov_b32 v{vAd+2*c+1}, v{vAd+2*c}')
    a.lab('L_p1_adD')
    a('s_waitcnt lgkmcnt(0)')
    srd(a,sO,sWS,sWS+1,WS_O)
    SYNC=SY
    def wread(nxt,h,step,c,hh):
        b=(vBn if nxt else vBc)+c
        return f'ds_read_b64_tr_b16 {vr(wf(step,c)+2*hh,2)}, v{b} offset:{h*8192+1024*hh}'
    def xread(nxt,h,mt,buf):
        b=((vBn if nxt else vBc)+4) if h==0 else vXc1
        return f'ds_read_b128 {vr(xf(buf),4)}, v{b} offset:{mt*2048}'
    a(f's_cmp_eq_u32 s{sSec}, 2')
    a(f's_cbranch_scc1 L_p1_v1')
    for v in range(2):
        a.lab(f'L_p1_v{v}')
        p.stamp(1)
        a('s_barrier')
        p.stamp(2)
        def body(emit,issued):
            waits=[]
            for st in range(2):
                for mt in range(8):
                    gi=st*8+mt
                    need=[('x',gi)]
                    if mt==0: need.append(('w',st))
                    last=max(len(issued)-1-issued[::-1].index(t) for t in need)
                    y=len(issued)-1-last
                    waits.append(y)
                    if emit:
                        y=min(y,wmin[len(waits)-1])
                        a(f's_waitcnt lgkmcnt({min(y,15)})')
                    fill=[]
                    g2=gi+D; nx=g2>=16; h2=(g2%16)//8; m2=g2%8
                    fill.append((xread(nx,h2,m2,g2),('x',g2%16)))
                    if SYNC<mt<=SYNC+4:
                        c=mt-SYNC-1
                        fill.append((wread(st==1,(st+1)&1,st+1,c,0),('w',(st+1)%2)))
                        fill.append((wread(st==1,(st+1)&1,st+1,c,1),('w',(st+1)%2)))
                    if st==0 and mt==0:
                        fill.append((f's_add_u32 s{sNx}, s{sSlot}, {SLOT}',None))
                        fill.append((f's_cmp_eq_u32 s{sNx}, {R*SLOT}',None))
                        fill.append((f's_cselect_b32 s{sNx}, 0, s{sNx}',None))
                        fill.append((f'v_add_u32 v{vXc1}, v{vBc+4}, v{vXh}',None))
                    if st==0 and 2<=mt<=6:
                        fill.append((f'v_add_u32 v{vBn+mt-2}, s{sNx}, v{vB0+mt-2}',None))
                    if st==1 and mt==7:
                        for i in range(5): fill.append((f'v_mov_b32 v{vBc+i}, v{vBn+i}',None))
                        fill.append((f's_mov_b32 s{sSlot}, s{sNx}',None))
                    for c in range(4):
                        x=xf(gi); w=wf(st,c); ac=acc(c,mt)
                        if emit:
                            if v==0: a(f'v_mfma_f32_16x16x32_bf16 {vr(ac,4)}, {vr(w,4)}, {vr(x,4)}, {vr(ac,4)}')
                            else:    a(f'v_mfma_f32_16x16x32_bf16 {vr(ac,4)}, {vr(x,4)}, {vr(w,4)}, {vr(ac,4)}')
                        k=1 if c<3 else len(fill)
                        while k>0 and fill:
                            t,tag=fill.pop(0); k-=1
                            if emit: a(t)
                            if tag: issued.append(tag)
                    if st==0 and mt==SYNC and emit: a('s_barrier')
            return waits
        pro=[('w',0)]*8+[('x',i) for i in range(D)]
        iss=list(pro); w1=body(False,iss); w2=body(False,iss)
        wmin=[min(x,y) for x,y in zip(w1,w2)]
        a(f's_mov_b32 s{sSlot}, 0')
        for c in range(4):
            a(wread(False,0,0,c,0)); a(wread(False,0,0,c,1))
        for i in range(D): a(xread(False,0,i,i))
        a(f's_mov_b32 s{sIT}, 10')
        a.lab(f'L_p1_loop{v}')
        body(True,list(pro))
        a(f's_sub_u32 s{sIT}, s{sIT}, 1')
        a(f's_cmp_lg_u32 s{sIT}, 0')
        a(f's_cbranch_scc1 L_p1_loop{v}')
        a('s_waitcnt lgkmcnt(0)')
        a('s_nop 7')
        p.stamp(3)
        if v==0:
            a(f's_cmp_lg_u32 s{sSec}, 0')
            a(f's_cbranch_scc1 L_p1_ns')
            a(f's_mov_b32 s{st1}, {f32bits(CSCALE):#x}')
            for i in range(128): a(f'v_mul_f32 v{vAcc+i}, s{st1}, v{vAcc+i}')
            a.lab('L_p1_ns')
        for tp in range(4):
            if tp==0: a(f's_mov_b32 s{st0}, s{sBase}')
            else: a(f's_add_u32 s{st0}, s{st0}, s{sTS}')
            for c in range(4):
                if v==0:
                    for u in range(2):
                        b=acc(c,2*tp+u)
                        a(f'v_cvt_pk_bf16_f32 v{b}, v{b}, v{b+1}')
                        a(f'v_cvt_pk_bf16_f32 v{b+1}, v{b+2}, v{b+3}')
                        a(f'buffer_store_dwordx2 {vr(b,2)}, v{vAd+2*c+u}, s[{sO}:{sO+3}], s{st0} offen {SC}')
                else:
                    b=acc(c,2*tp)
                    a(f'v_cvt_pk_bf16_f32 v{b}, v{b}, v{b+1}')
                    a(f'v_cvt_pk_bf16_f32 v{b+1}, v{b+2}, v{b+3}')
                    a(f'v_cvt_pk_bf16_f32 v{b+2}, v{b+4}, v{b+5}')
                    a(f'v_cvt_pk_bf16_f32 v{b+3}, v{b+6}, v{b+7}')
                    a(f'buffer_store_dwordx4 {vr(b,4)}, v{vAd+2*c}, s[{sO}:{sO+3}], s{st0} offen {SC}')
        a('s_waitcnt vmcnt(0)')
        a('s_branch L_p1_end')
    a.lab('L_p1_loader')
    a(f's_sub_u32 s{sLd}, s{sWV}, 4')
    a(f's_mul_i32 s{st3}, s{st3}, 5')
    a(f's_lshr_b32 s{st3}, s{st3}, 1')
    a(f's_mul_i32 s{st1}, s{st1}, 5')
    a(f's_lshr_b32 s{st1}, s{st1}, 2')
    a(f's_add_u32 s{sKS}, s{st3}, s{st1}')
    a(f's_cmp_ge_u32 s{sKS}, 10')
    a(f's_cselect_b32 s{st0}, 10, 0')
    a(f's_sub_u32 s{sKS}, s{sKS}, s{st0}')
    a(f's_lshl_b32 s{sLW}, s{sLd}, 12')
    a(f's_lshl_b32 s{sLX}, s{sLd}, 13')
    a(f's_add_u32 s{sLX}, s{sLX}, {XOFF}')
    a(f'v_lshrrev_b32 v{vt0}, 4, v{vLane}')
    a(f'v_bfe_u32 v{vt1}, v{vLane}, 1, 3')
    a(f'v_and_b32 v{vt2}, 1, v{vLane}')
    a(f's_lshl_b32 s{st2}, s{sLd}, 4')
    a(f's_lshl_b32 s{st1}, s{sNT}, 8')
    for jj in range(2):
        a(f'v_add_u32 v{vt3}, {4*jj}, v{vt0}')
        a(f'v_xor_b32 v{vt3}, v{vt3}, v{vt1}')
        a(f'v_lshl_add_u32 v{vt4}, v{vt3}, 1, v{vt2}')
        a(f'v_lshlrev_b32 v{vt4}, 4, v{vt4}')
        a(f'v_add_u32 v{vLW+jj}, s{st2}, v{vt0}')
        if jj: a(f'v_add_u32 v{vLW+jj}, 8, v{vLW+jj}')
        a(f'v_mul_u32_u24 v{vLW+jj}, 3840, v{vLW+jj}')
        a(f'v_add3_u32 v{vLW+jj}, v{vLW+jj}, v{vt4}, s{st1}')
    a(f'v_lshrrev_b32 v{vt0}, 3, v{vLane}')
    a(f'v_and_b32 v{vt1}, 7, v{vLane}')
    a(f's_lshl_b32 s{st0}, s{sMT}, 8')
    a(f's_lshl_b32 s{st1}, s{sLd}, 6')
    a(f's_add_u32 s{st0}, s{st0}, s{st1}')
    for uu in range(2):
        a(f'v_lshrrev_b32 v{vt2}, 1, v{vt0}')
        if uu: a(f'v_add_u32 v{vt2}, 4, v{vt2}')
        a(f'v_xor_b32 v{vt2}, v{vt2}, v{vt1}')
        a(f'v_add_u32 v{vt3}, s{st0}, v{vt0}')
        if uu: a(f'v_add_u32 v{vt3}, 8, v{vt3}')
        a(f'v_mul_u32_u24 v{vt3}, 1280, v{vt3}')
        a(f'v_lshl_add_u32 v{vLX+uu}, v{vt2}, 4, v{vt3}')
    a('s_waitcnt lgkmcnt(0)')
    a(f's_cmp_eq_u32 s{sBR}, 0')
    a('s_cselect_b64 s[16:17], s[16:17], s[20:21]')
    a('s_cselect_b64 s[18:19], s[18:19], s[22:23]')
    srd(a,sX,16,17,2048*1280)
    srd(a,sW,18,19,640*3840)
    NL=12
    def wstep():
        a(f's_mul_i32 s{sW0}, s{sKS}, {64*3840}')
        a(f's_lshl_b32 s{sXo}, s{sKS}, 7')
        a(f's_add_u32 s{st0}, s{sSlot}, s{sLW}')
        a(f's_add_u32 s{st1}, s{sSlot}, s{sLX}')
        for j in range(4):
            a(f's_add_u32 m0, s{st0}, {j*1024}')
            if j&1: a(f's_add_u32 s{st2}, s{sW0}, {4*3840}')
            a(f'buffer_load_dwordx4 v{vLW+(j>>1)}, s[{sW}:{sW+3}], s{st2 if j&1 else sW0} offen lds')
            for u in (2*j,2*j+1):
                a(f's_add_u32 m0, s{st1}, {u*1024}')
                if u>=2 and u%2==0: a(f's_add_u32 s{st3}, s{sXo}, {(u//2)*20480}')
                a(f'buffer_load_dwordx4 v{vLX+(u&1)}, s[{sX}:{sX+3}], s{st3 if u>=2 else sXo} offen lds')
        a(f's_add_u32 s{sKS}, s{sKS}, 1')
        a(f's_cmp_eq_u32 s{sKS}, 10')
        a(f's_cselect_b32 s{sKS}, 0, s{sKS}')
        a(f's_add_u32 s{sSlot}, s{sSlot}, {SLOT}')
        a(f's_cmp_eq_u32 s{sSlot}, {R*SLOT}')
        a(f's_cselect_b32 s{sSlot}, 0, s{sSlot}')
    a(f's_mov_b32 s{sSlot}, 0')
    wstep(); wstep()
    a(f's_waitcnt vmcnt({NL})')
    a('s_barrier')
    a(f's_mov_b32 s{sIT}, 0')
    a.lab('L_p1_ld_loop')
    a('s_waitcnt vmcnt(0)')
    a('s_barrier')
    a(f's_cmp_ge_u32 s{sIT}, 8')
    a('s_cbranch_scc1 L_p1_ld_skip')
    wstep()
    a.lab('L_p1_ld_skip')
    a(f's_add_u32 s{sIT}, s{sIT}, 1')
    a(f's_cmp_lt_u32 s{sIT}, 10')
    a('s_cbranch_scc1 L_p1_ld_loop')
    a.lab('L_p1_end')
    a('s_barrier')
    p.stamp(4)
    a(f's_cmp_lg_u32 s{sWV}, 0')
    a('s_cbranch_scc1 L_p1_skip')
    a(f's_mul_i32 s{st0}, s{sBR}, 15')
    a(f's_add_u32 s{st0}, s{st0}, s{sNT}')
    a(f's_lshl_b32 s{st0}, s{st0}, 2')
    a('s_mov_b64 exec, 1')
    a(f'v_mov_b32 v2, s{st0}')
    a('v_mov_b32 v3, 1')
    a(f'global_atomic_add v2, v3, s[{sDBG}:{sDBG+1}] sc1')
    a('s_mov_b64 exec, -1')
    a.lab('L_p1_skip')
    return vEnd

def poll(a,tag,maskreg,thresh,off,vtmp):
    a(f'v_lshlrev_b32 v{vtmp}, 2, v1')
    a(f'v_and_b32 v{vtmp}, 0x7c, v{vtmp}')
    a('s_mov_b32 s58, 0x40000')
    a.lab(f'L_poll_{tag}')
    a(f'global_load_dword v{vtmp+1}, v{vtmp}, s[{sDBG}:{sDBG+1}] offset:{off} sc1')
    a('s_waitcnt vmcnt(0)')
    a(f'v_cmp_le_u32 vcc, {thresh}, v{vtmp+1}')
    a('s_nop 4')
    a(f's_and_b32 s59, vcc_lo, s{maskreg}')
    a(f's_cmp_eq_u32 s59, s{maskreg}')
    a(f's_cbranch_scc1 L_polld_{tag}')
    a('s_sleep 2')
    a('s_sub_u32 s58, s58, 1')
    a('s_cmp_lg_u32 s58, 0')
    a(f's_cbranch_scc1 L_poll_{tag}')
    a.lab(f'L_polld_{tag}')

def phase2(a,p,PRIO=4):
    TILE=2560; HALF=81920; WOFF=40960; SCR=40960
    sR,sOo,sWo=4,8,12
    sHD,sJ,sQP,sKH=16,17,18,19
    st0,st1,st2,st3=20,21,22,23
    sVm=24; sLo=26
    sIT=28; sHB=29; sHBw=30; sOl=31; sOh=32; sLl=33; sQA=34; sSw=35; sAg=36; sOB=37; sOA=38; sNeed=39
    sTm=40
    sWn=48
    vLane=1; vt0=2; vt1=3; vt2=4; vt3=5; vK1a=6; vK2a=7; vVa=8; vDma=9; vM=10; vRho=11; vKap=12; vOoff=13; vt4=14; vt5=15
    vQa1=16; vQa2=20; vQb2=22; vQb1=24; vK1=28; vK2=32; vQ2o=34; vMb=35
    vV=36; vP=52; vQA2=60; vWo=62; vCc=63
    vSa=64; vSb=80; vOa=96; vOb=112; vCa=128; vCb=144; vMF=160; vML=176; vQA1=192
    vEnd=196
    a(f's_load_dwordx2 s[50:51], s[0:1], 16')
    a(f's_load_dwordx2 s[52:53], s[0:1], 40')
    a(f's_and_b32 s{st0}, s{sWG}, 7')
    a(f's_lshr_b32 s{st1}, s{sWG}, 3')
    a(f's_lshl_b32 s{sHD}, s{st0}, 2')
    a(f's_lshr_b32 s{st2}, s{st1}, 3')
    a(f's_add_u32 s{sHD}, s{sHD}, s{st2}')
    a(f's_and_b32 s{sJ}, s{st1}, 7')
    a(f's_and_b32 s{sQP}, s{sWV}, 3')
    a(f's_lshr_b32 s{sKH}, s{sWV}, 2')
    a(f'v_lshlrev_b32 v{vDma}, 4, v{vLane}')
    a(f's_mul_i32 s{sHB}, s{sHD}, {64*TILE}')
    a(f's_add_u32 s{sAg}, s{sHB}, {WS_KV-20480}')
    a(f's_add_u32 s{sHB}, s{sHB}, {WS_KV+32*64*TILE}')
    a(f's_lshl_b32 s{st1}, s{sWV}, 10')
    a(f's_add_u32 s{sHBw}, s{sHB}, s{st1}')
    a(f's_mul_i32 s{st0}, s{sJ}, 20480')
    a(f's_add_u32 s{sAg}, s{sAg}, s{st0}')
    a(f's_add_u32 s{sAg}, s{sAg}, s{st1}')
    a(f's_lshr_b32 s{sOl}, s{sJ}, 1')
    a(f's_mul_i32 s{sOl}, s{sOl}, 40960')
    a(f's_add_u32 s{sOh}, s{sOl}, {HALF}')
    a(f's_cmp_ge_u32 s{sOh}, 163840')
    a(f's_cselect_b32 s{st0}, 163840, 0')
    a(f's_sub_u32 s{sOh}, s{sOh}, s{st0}')
    a(f's_mov_b32 s{sLl}, s{st1}')
    a(f's_mov_b32 s{sVm}, 0xfffff')
    a(f's_mov_b32 s{sVm+1}, 0xfffff')
    a(f's_mov_b32 s{sLo}, -1')
    a(f's_mov_b32 s{sLo+1}, 0')
    a(f'v_and_b32 v{vRho}, 31, v{vLane}')
    a(f'v_lshlrev_b32 v{vt1}, 3, v{vRho}')
    a(f'v_add_u32 v{vK2a}, 1024, v{vt1}')
    a(f'v_mov_b32 v{vt2}, 0x70000000')
    a(f'v_cndmask_b32 v{vQ2o}, v{vt2}, v{vK2a}, s[{sLo}:{sLo+1}]')
    a(f's_lshl_b32 s{st0}, s{sJ}, 3')
    a(f's_lshl_b32 s{st1}, s{sHD}, 6')
    a(f's_add_u32 s{st1}, s{st1}, s{st0}')
    a(f's_add_u32 s{st2}, s{st1}, s{sWV}')
    a(f's_mul_i32 s{sQA}, s{st2}, 1280')
    a(f's_lshl_b32 s{st2}, s{sQP}, 1')
    a(f's_add_u32 s{st2}, s{st2}, s{st1}')
    a(f's_mul_i32 s54, s{st2}, 1280')
    a(f's_add_u32 s54, s54, {32*64*1280}')
    a(f's_add_u32 s55, s54, 1280')
    a(f's_lshl_b32 s{st2}, s{sQP}, 1')
    a(f's_add_u32 s{st2}, s{st2}, s{sKH}')
    a(f's_add_u32 s{st2}, s{st2}, s{st0}')
    a(f's_mul_i32 s{sOB}, s{st2}, 40960')
    a(f's_add_u32 s{sOB}, s{sOB}, {2048*1280}')
    a(f's_add_u32 s{st2}, s{st0}, s{sWV}')
    a(f's_mul_i32 s{sOA}, s{st2}, 40960')
    a(f's_mul_i32 s{st0}, s{sHD}, 20')
    a(f's_lshr_b32 s{st1}, s{st0}, 7')
    a(f's_add_u32 s{st0}, s{st0}, 19')
    a(f's_lshr_b32 s{st0}, s{st0}, 7')
    a(f's_lshl_b32 s{st1}, 1, s{st1}')
    a(f's_lshl_b32 s{st0}, 1, s{st0}')
    a(f's_or_b32 s{st0}, s{st0}, s{st1}')
    a(f's_mul_i32 s{st0}, s{st0}, {1+32+1024}')
    a(f's_mul_i32 s{sNeed}, s{st0}, {1+32768}')
    srd(a,sR,sWS,sWS+1,WS_O)
    a(f's_add_u32 s56, s{sWS}, {WS_O}')
    a(f's_addc_u32 s57, s{sWS+1}, 0')
    srd(a,sOo,56,57,WS_END-WS_O)
    a(f'v_lshrrev_b32 v{vt0}, 5, v{vLane}')
    a(f'v_lshlrev_b32 v{vK1a}, 4, v{vLane}')
    a(f'v_mul_u32_u24 v{vVa}, 320, v{vt0}')
    a(f'v_lshl_add_u32 v{vVa}, v{vRho}, 4, v{vVa}')
    a(f'v_add_u32 v{vVa}, 1280, v{vVa}')
    a(f'v_and_b32 v{vt1}, 7, v{vRho}')
    a(f'v_bfe_u32 v{vt2}, v{vRho}, 3, 1')
    a(f'v_lshl_or_b32 v{vt1}, v{vt2}, 4, v{vt1}')
    a(f'v_bfe_u32 v{vt2}, v{vRho}, 4, 1')
    a(f'v_lshl_or_b32 v{vKap}, v{vt2}, 3, v{vt1}')
    a(f'v_lshlrev_b32 v{vt3}, 2, v{vt0}')
    a(f'v_sub_u32 v{vt3}, v{vKap}, v{vt3}')
    a(f'v_mov_b32 v{vt2}, {NEG_BIG:#x}')
    for r in range(16):
        base=(r&3)+8*(r>>2)
        kb=((base>>3)&1)<<4 | ((base>>4)&1)<<3 | (base&7)
        a(f'v_cmp_gt_i32 s[{sTm+2*(r&3)}:{sTm+1+2*(r&3)}], {kb}, v{vt3}')
        if r>=2:
            q=r-2
            a(f'v_cndmask_b32 v{vMF+q}, v{vt2}, 0, s[{sTm+2*(q&3)}:{sTm+1+2*(q&3)}]')
            a(f'v_cndmask_b32 v{vML+q}, 0, v{vt2}, s[{sTm+2*(q&3)}:{sTm+1+2*(q&3)}]')
    a('s_nop 1')
    for q in (14,15):
        a(f'v_cndmask_b32 v{vMF+q}, v{vt2}, 0, s[{sTm+2*(q&3)}:{sTm+1+2*(q&3)}]')
        a(f'v_cndmask_b32 v{vML+q}, 0, v{vt2}, s[{sTm+2*(q&3)}:{sTm+1+2*(q&3)}]')
    a(f's_cmp_lg_u32 s{sJ}, 0')
    a('s_cbranch_scc1 L_mf_ok')
    for r in range(16): a(f'v_mov_b32 v{vMF+r}, v{vt2}')
    a.lab('L_mf_ok')
    def vinit():
        a(f'v_cmp_eq_u32 s[{sTm}:{sTm+1}], 20, v{vRho}')
        a(f'v_mov_b32 v{vt1}, 0x3f803f80')
        a('s_nop 0')
        a(f'v_cndmask_b32 v{vt1}, 0, v{vt1}, s[{sTm}:{sTm+1}]')
        for i in range(16): a(f'v_mov_b32 v{vV+i}, v{vt1}')
    vinit()
    a(f'v_lshrrev_b32 v{vt1}, 4, v{vKap}')
    a(f'v_mul_u32_u24 v{vt1}, 20480, v{vt1}')
    a(f'v_and_b32 v{vt2}, 15, v{vKap}')
    a(f'v_lshl_add_u32 v{vOoff}, v{vt2}, 4, v{vt1}')
    for r in range(16): a(f'v_mov_b32 v{vOa+r}, 0')
    for r in range(16): a(f'v_mov_b32 v{vOb+r}, 0')
    for i in range(4): a(f'v_mov_b32 v{vP+4+i}, 0')
    a(f's_lshl_b32 s{st0}, s{sWV}, 6')
    a(f'v_add_u32 v{vt0}, s{st0}, v{vLane}')
    a(f'v_mul_u32_u24 v{vt1}, 52429, v{vt0}')
    a(f'v_lshrrev_b32 v{vt1}, 19, v{vt1}')
    a(f'v_mul_u32_u24 v{vt2}, 10, v{vt1}')
    a(f'v_sub_u32 v{vCc}, v{vt0}, v{vt2}')
    a(f'v_mul_u32_u24 v{vt1}, 1280, v{vt1}')
    a(f'v_lshl_add_u32 v{vWo}, v{vCc}, 4, v{vt1}')
    a(f's_and_b32 s{sWn}, s{sHD}, 7')
    a(f's_mul_i32 s{sWn}, s{sWn}, 160')
    a('s_waitcnt lgkmcnt(0)')
    a(f's_cmp_lt_u32 s{sHD}, 16')
    a('s_cselect_b64 s[50:51], s[50:51], s[52:53]')
    srd(a,sWo,50,51,640*1280)
    p.stamp(5)
    a(f's_cmp_lg_u32 s{sWV}, 0')
    a('s_cbranch_scc1 L_p2_go')
    poll(a,'p2',sNeed,8,0,vt0)
    a.lab('L_p2_go')
    a('s_barrier')
    p.stamp(6)

    def rd_k1(dst,off): a(f'ds_read_b128 {vr(dst,4)}, v{vK1a} offset:{off}')
    def rd_k2(dst,off): a(f'ds_read_b64 {vr(dst,2)}, v{vK2a} offset:{off}')
    def rd_v(buf,off):
        a(f's_mov_b64 exec, s[{sVm}:{sVm+1}]')
        a(f'ds_read_b128 {vr(vV+8*buf,4)}, v{vVa} offset:{off}')
        a(f'ds_read_b128 {vr(vV+8*buf+4,4)}, v{vVa} offset:{off+640}')
        a('s_mov_b64 exec, -1')
    def qk1(S,C,Q1,K=None): a(f'v_mfma_f32_32x32x16_bf16 {vr(S,16)}, {vr(vK1 if K is None else K,4)}, {vr(Q1,4)}, {C}')
    def qk2(S,Q2,K=None): a(f'v_mfma_f32_32x32x8bf16_1k {vr(S,16)}, {vr(vK2 if K is None else K,2)}, {vr(Q2,2)}, {vr(S,16)}')
    def pv(O,buf,t): a(f'v_mfma_f32_32x32x16_bf16 {vr(O,16)}, {vr(vV+8*buf+4*t,4)}, {vr(vP+4*t,4)}, {vr(O,16)}')
    def ex(S,r): a(f'v_exp_f32 v{S+r}, v{S+r}')
    def cv(S,c): a(f'v_cvt_pk_bf16_f32 v{vP+c}, v{S+2*c}, v{S+2*c+1}')
    def rowmax(M,S,first):
        if first:
            a(f'v_max3_f32 v{M}, v{S}, v{S+1}, v{S+2}'); rest=list(range(3,16))
        else: rest=list(range(16))
        while len(rest)>=2:
            a(f'v_max3_f32 v{M}, v{M}, v{S+rest[0]}, v{S+rest[1]}'); rest=rest[2:]
        if rest: a(f'v_max_f32 v{M}, v{M}, v{S+rest[0]}')
    def xhalf_max(M):
        a(f'v_mov_b32 v{vt1}, v{M}')
        a('s_nop 1')
        a(f'v_permlane32_swap_b32 v{M}, v{vt1}')
        a('s_nop 1')
        a(f'v_max_f32 v{M}, v{M}, v{vt1}')
    def get_l():
        a(f'v_mov_b32 v{vt1}, v{vOa+8}')
        a(f'v_mov_b32 v{vt2}, v{vOa+8}')
        a('s_nop 1')
        a(f'v_permlane32_swap_b32 v{vt1}, v{vt2}')
        a('s_nop 1')
    def store_o(soff):
        a(f'v_rcp_f32 v{vt3}, v{vt2}')
        a(f's_mul_i32 s{st0}, s{sHD}, 5')
        a(f'v_lshrrev_b32 v{vt0}, 5, v{vLane}')
        for i in range(12): a(f'v_mul_f32 v{vOa+i}, v{vOa+i}, v{vt3}')
        for i in range(6): a(f'v_cvt_pk_bf16_f32 v{vSa+i}, v{vOa+2*i}, v{vOa+2*i+1}')
        for k,qb in enumerate((0,2,4)):
            a(f'v_add_u32 v{vt4}, s{st0}, v{vt0}')
            if qb: a(f'v_add_u32 v{vt4}, {qb}, v{vt4}')
            a(f'v_lshrrev_b32 v{vt5}, 3, v{vt4}')
            a(f'v_lshlrev_b32 v{vt5}, 10, v{vt5}')
            a(f'v_and_b32 v{vt1}, 3, v{vt4}')
            a(f'v_lshl_add_u32 v{vt5}, v{vt1}, 8, v{vt5}')
            a(f'v_bfe_u32 v{vt1}, v{vt4}, 2, 1')
            a(f'v_lshl_add_u32 v{vt5}, v{vt1}, 3, v{vt5}')
            a(f'v_add_u32 v{vt5}, v{vt5}, v{vOoff}')
            if k==2: a(f's_mov_b64 exec, s[{sLo}:{sLo+1}]')
            a(f'buffer_store_dwordx2 {vr(vSa+2*k,2)}, v{vt5}, s[{sOo}:{sOo+3}], s{soff} offen {SC}')
            if k==2: a('s_mov_b64 exec, -1')
    def addr_add(s):
        for r in (vK1a,vK2a,vVa): a(f'v_add_u32 v{r}, s{s}, v{r}')
    def addr_addi(imm):
        for r in (vK1a,vK2a,vVa): a(f'v_add_u32 v{r}, {imm}, v{r}')
    def wrapinc(s):
        a(f's_add_u32 s{s}, s{s}, 8192')
        a(f's_cmp_eq_u32 s{s}, 163840')
        a(f's_cselect_b32 s{s}, 0, s{s}')
    def dma_pair():
        a(f's_add_u32 s{st0}, s{sHBw}, s{sOl}')
        a(f's_mov_b32 m0, s{sLl}')
        a(f's_add_u32 s{st1}, s{sHBw}, s{sOh}')
        a(f'buffer_load_dwordx4 v{vDma}, s[{sR}:{sR+3}], s{st0} offen {SC} lds')
        a(f's_add_u32 m0, s{sLl}, {HALF}')
        wrapinc(sOl)
        a(f'buffer_load_dwordx4 v{vDma}, s[{sR}:{sR+3}], s{st1} offen {SC} lds')
        wrapinc(sOh)
        a(f's_add_u32 s{sLl}, s{sLl}, 8192')
    def prio_switch(phase,L):
        a(f's_cmp_lt_u32 s{sWV}, 4')
        a(f's_cbranch_scc{1-phase} {L}_hi')
        a('s_setprio 0')
        a(f's_branch {L}_d')
        a.lab(f'{L}_hi')
        a('s_setprio 1')
        a.lab(f'{L}_d')
    def expgroups(cur,A_,B_,C_,D_):
        A_()
        for r in range(0,4): ex(cur,r)
        B_()
        ex(cur,4); ex(cur,5); cv(cur,0); ex(cur,6); cv(cur,1); ex(cur,7)
        C_()
        ex(cur,8); cv(cur,2); ex(cur,9); cv(cur,3); ex(cur,10); ex(cur,11)
        D_()
        ex(cur,12); ex(cur,13); cv(cur,4); ex(cur,14); cv(cur,5); ex(cur,15); cv(cur,6); cv(cur,7)

    dma_pair()
    a(f'buffer_load_dwordx4 {vr(vQa1,4)}, v{vDma}, s[{sR}:{sR+3}], s54 offen {SC}')
    a(f'buffer_load_dwordx2 {vr(vQa2,2)}, v{vQ2o}, s[{sR}:{sR+3}], s54 offen {SC}')
    a(f'buffer_load_dwordx4 {vr(vQb1,4)}, v{vDma}, s[{sR}:{sR+3}], s55 offen {SC}')
    a(f'buffer_load_dwordx2 {vr(vQb2,2)}, v{vQ2o}, s[{sR}:{sR+3}], s55 offen {SC}')
    dma_pair()
    a('s_waitcnt vmcnt(2)')
    a('s_barrier')
    p.stamp(7)
    rd_k1(vK1,0); rd_k2(vK2,0)
    a('s_waitcnt lgkmcnt(0)')
    qk1(vSa,'0',vQa1); qk2(vSa,vQa2)
    qk1(vSb,'0',vQb1); qk2(vSb,vQb2)
    a(f's_mul_i32 s{st0}, s{sKH}, {HALF}')
    addr_add(st0)
    rd_k1(vK1,0); rd_k2(vK2,0); rd_v(0,0)
    a('s_nop 7')
    rowmax(vM,vSa,True)
    rowmax(vMb,vSb,True)
    xhalf_max(vM); xhalf_max(vMb)
    for r in range(16): a(f'v_sub_f32 v{vCa+r}, 0, v{vM}')
    for r in range(16): a(f'v_sub_f32 v{vCb+r}, 0, v{vMb}')
    a('s_waitcnt lgkmcnt(0)')
    qk1(vSa,vr(vCa,16),vQa1); qk2(vSa,vQa2)
    a(f's_mov_b32 s{sIT}, 0')
    a.lab('L_b_loop')
    def cond(it,L,fn,op='lg'):
        a(f's_cmp_{op}_u32 s{sIT}, {it}'); a(f's_cbranch_scc1 {L}'); fn(); a.lab(L)
    def arow(r):
        a(f's_lshl_b32 s{st1}, s{sWV}, 10')
        a(f's_add_u32 m0, s{st1}, {r*8192}')
        a(f's_add_u32 s{st0}, s{sAg}, {r*8192}')
        a(f'buffer_load_dwordx4 v{vDma}, s[{sR}:{sR+3}], s{st0} offen {SC} lds')
    for pp in range(8):
        off=pp*TILE
        def h0(pp=pp):
            if pp==2: a('s_waitcnt vmcnt(4)'); a('s_barrier')
            if pp==5: a('s_waitcnt vmcnt(6)'); a('s_barrier')
            dma_pair()
        cond(0,f'L_h0_{pp}',h0)
        if pp==3: cond(1,'L_h1_3',lambda: (a('s_waitcnt vmcnt(0)'),a('s_barrier')))
        if 1<=pp<=5:
            def h2(pp=pp):
                if pp==1: a('s_barrier')
                arow(pp-1)
            cond(2,f'L_h2_{pp}',h2)
        if pp==6:
            cond(2,'L_h2_6',lambda: (a(f'buffer_load_dwordx4 {vr(vQA1,4)}, v{vDma}, s[{sR}:{sR+3}], s{sQA} offen {SC}'),
                                     a(f'buffer_load_dwordx2 {vr(vQA2,2)}, v{vQ2o}, s[{sR}:{sR+3}], s{sQA} offen {SC}')))
        if pp==5: cond(3,'L_h3_5',lambda: a('s_barrier'))
        if PRIO and pp%PRIO==0: prio_switch((pp//PRIO)&1,f'L_pr{pp}')
        lastt=(pp==7)
        def G(fn,L):
            if lastt:
                a(f's_cmp_eq_u32 s{sIT}, 3'); a(f's_cbranch_scc1 {L}'); fn(); a.lab(L)
            else: fn()
        expgroups(vSa,
            lambda: (qk1(vSb,vr(vCb,16),vQb1), G(lambda: rd_k1(vK1,off+TILE),'L_ga1')),
            lambda: (pv(vOb,(pp+1)&1,1), G(lambda: rd_v((pp+1)&1,off+TILE),'L_ga2')),
            lambda: (qk2(vSb,vQb2), G(lambda: rd_k2(vK2,off+TILE),'L_ga3')),
            lambda: pv(vOa,pp&1,0))
        a('s_waitcnt lgkmcnt(0)')
        expgroups(vSb,
            lambda: G(lambda: qk1(vSa,vr(vCa,16),vQa1),'L_gb1'),
            lambda: pv(vOa,pp&1,1),
            lambda: G(lambda: qk2(vSa,vQa2),'L_gb2'),
            lambda: pv(vOb,pp&1,0))
    addr_addi(8*TILE)
    a(f's_add_u32 s{sIT}, s{sIT}, 1')
    a(f's_cmp_lt_u32 s{sIT}, 4')
    a('s_cbranch_scc1 L_b_loop')
    a('s_nop 1')
    pv(vOb,1,1)
    a('s_setprio 0')
    a('s_nop 15')
    p.stamp(8)
    a(f's_lshl_b32 s{st0}, s{sQP}, 1')
    a(f's_cmp_eq_u32 s{sKH}, 0')
    a('s_cbranch_scc0 L_mg_hi')
    a(f's_add_u32 s{st1}, s{st0}, 1')
    a(f's_mul_i32 s{st1}, s{st1}, 3072')
    a(f's_add_u32 s{st1}, s{st1}, {SCR}')
    a(f'v_add_u32 v{vt4}, s{st1}, v{vDma}')
    for i in range(3): a(f'ds_write_b128 v{vt4}, {vr(vOb+4*i,4)} offset:{1024*i}')
    a(f's_mul_i32 s{st1}, s{st0}, 3072')
    a('s_branch L_mg_d')
    a.lab('L_mg_hi')
    a(f's_mul_i32 s{st1}, s{st0}, 3072')
    a(f's_add_u32 s{st1}, s{st1}, {SCR}')
    a(f'v_add_u32 v{vt4}, s{st1}, v{vDma}')
    for i in range(3): a(f'ds_write_b128 v{vt4}, {vr(vOa+4*i,4)} offset:{1024*i}')
    for i in range(12): a(f'v_mov_b32 v{vOa+i}, v{vOb+i}')
    for i in range(4): a(f'v_mov_b32 v{vQa1+i}, v{vQb1+i}')
    for i in range(2): a(f'v_mov_b32 v{vQa2+i}, v{vQb2+i}')
    a(f's_add_u32 s{st1}, s{st0}, 1')
    a(f's_mul_i32 s{st1}, s{st1}, 3072')
    a.lab('L_mg_d')
    a(f's_add_u32 s{st1}, s{st1}, {SCR}')
    a(f'v_add_u32 v{vt4}, s{st1}, v{vDma}')
    a('s_waitcnt lgkmcnt(0) vmcnt(0)')
    a('s_barrier')
    for i in range(3): a(f'ds_read_b128 {vr(vSa+4*i,4)}, v{vt4} offset:{1024*i}')
    a('s_waitcnt lgkmcnt(0)')
    a('s_barrier')
    for i in range(12): a(f'v_add_f32 v{vOa+i}, v{vOa+i}, v{vSa+i}')
    get_l()
    a(f'v_mov_b32 v{vt3}, {f32bits(2.0**100):#x}')
    a(f'v_cmp_nlt_f32 vcc, v{vt2}, v{vt3}')
    a('s_nop 4')
    a('s_cbranch_vccnz L_b_fallback')
    a.lab('L_b_store')
    store_o(sOB)
    p.stamp(9)
    a(f's_mul_i32 s{st0}, s{sWV}, {TILE}')
    a(f's_mul_i32 s{st1}, s{sKH}, {HALF}')
    a(f's_sub_u32 s{st0}, s{st0}, s{st1}')
    a(f's_sub_u32 s{st0}, s{st0}, {32*TILE}')
    addr_add(st0)
    for i in range(4): a(f'v_mov_b32 v{vQa1+i}, v{vQA1+i}')
    for i in range(2): a(f'v_mov_b32 v{vQa2+i}, v{vQA2+i}')
    a(f's_sub_u32 s{sSw}, 8, s{sWV}')
    a(f's_cmp_lg_u32 s{sJ}, 0')
    a(f's_cselect_b32 s{sSw}, 0, s{sSw}')
    vC=vCa; vO=vOa; vS=[vSa,vSb]
    KR=[(vV,vV+4),(vV+8,vV+12),(vP,vP+4)]
    SB=[vSa,vSb,vOa]
    def cmid_init(tag,val):
        a(f's_cmp_le_u32 s{sSw}, 1')
        a(f's_cbranch_scc1 L_cm_{tag}_v')
        for r in range(16): a(f'v_mov_b32 v{vC+r}, {NEG_BIG:#x}')
        a(f's_branch L_cm_{tag}_d')
        a.lab(f'L_cm_{tag}_v')
        for r in range(16): a(f'v_mov_b32 v{vC+r}, {val}')
        a.lab(f'L_cm_{tag}_d')
    def cmid_switch(tag,t,val):
        a(f's_cmp_lg_u32 s{sSw}, {t}')
        a(f's_cbranch_scc1 L_sw_{tag}_{t}')
        a('s_nop 15')
        for r in range(16): a(f'v_mov_b32 v{vC+r}, {val}')
        a('s_nop 1')
        a.lab(f'L_sw_{tag}_{t}')
    wocnt=[0]
    def wo_dma():
        m=wocnt[0]; wocnt[0]+=1
        a(f's_lshl_b32 s{st1}, s{sWV}, 10')
        a(f's_add_u32 m0, s{st1}, {WOFF+m*8192}')
        a(f'buffer_load_dwordx4 v{vWo}, s[{sWo}:{sWo+3}], s{sWn} offen lds')
        if m<12:
            a(f'v_add_u32 v{vCc}, 2, v{vCc}')
            a(f'v_cmp_le_u32 s[{sTm}:{sTm+1}], 10, v{vCc}')
            a(f'v_add_u32 v{vWo}, {51*1280+32}, v{vWo}')
            a(f'v_add_u32 v{vt4}, {1280-160}, v{vWo}')
            a(f'v_subrev_u32 v{vt5}, 10, v{vCc}')
            a(f'v_cndmask_b32 v{vWo}, v{vWo}, v{vt4}, s[{sTm}:{sTm+1}]')
            a(f'v_cndmask_b32 v{vCc}, v{vCc}, v{vt5}, s[{sTm}:{sTm+1}]')
    cmid_init('p1','0')
    for i in range(3):
        rd_k1(KR[i][0],i*TILE); rd_k2(KR[i][1],i*TILE)
    for b in range(3):
        a('s_waitcnt lgkmcnt(0)')
        for i in range(3):
            t=3*b+i
            if 2<=t<=7: cmid_switch('p1',t,'0')
            C = vr(vMF,16) if t==0 else (vr(vML,16) if t==8 else vr(vC,16))
            qk1(SB[i],C,vQa1,KR[i][0]); qk2(SB[i],vQa2,KR[i][1])
        if b<2:
            for i in range(3):
                t=3*(b+1)+i
                rd_k1(KR[i][0],t*TILE); rd_k2(KR[i][1],t*TILE)
        if b==2:
            rd_k1(vK1,0); rd_k2(vK2,0)
        wo_dma()
        a('s_nop 3')
        for i in range(3):
            if i==2: a('s_nop 3')
            rowmax(vM,SB[i],b==0 and i==0)
    xhalf_max(vM)
    a(f'v_sub_f32 v{vM}, 0, v{vM}')
    for r in range(16): a(f'v_add_f32 v{vMF+r}, v{vMF+r}, v{vM}')
    for r in range(16): a(f'v_add_f32 v{vML+r}, v{vML+r}, v{vM}')
    cmid_init('p2',f'v{vM}')
    for r in range(16): a(f'v_mov_b32 v{vO+r}, 0')
    vinit()
    for i in range(4): a(f'v_mov_b32 v{vP+4+i}, 0')
    a('s_waitcnt lgkmcnt(0)')
    qk1(vS[0],vr(vMF,16),vQa1); qk2(vS[0],vQa2)
    rd_k1(vK1,TILE); rd_v(0,0); rd_k2(vK2,TILE)
    for t in range(9):
        last=(t==8); last2=(t==7); tn=t+1
        cur=vS[t&1]; nxt=vS[(t+1)&1]; off=t*TILE
        Cn = vr(vML,16) if tn==8 else vr(vC,16)
        a('s_waitcnt lgkmcnt(0)')
        if 2<=tn<=7: cmid_switch('p2',tn,f'v{vM}')
        if PRIO and t%PRIO==0: prio_switch((t//PRIO)&1,f'L_apr{t}')
        wo_dma()
        if t==0: wo_dma()
        def A_():
            if not last: qk1(nxt,Cn,vQa1)
            if not last and not last2: rd_k1(vK1,off+2*TILE)
        def B_():
            pv(vO,(t+1)&1,1)
            if not last: rd_v((t+1)&1,off+TILE)
        def C_():
            if not last: qk2(nxt,vQa2)
            if not last and not last2: rd_k2(vK2,off+2*TILE)
        expgroups(cur,A_,B_,C_,lambda: pv(vO,t&1,0))
    assert wocnt[0]==13
    a('s_nop 1')
    pv(vO,0,1)
    a('s_setprio 0')
    a('s_nop 15')
    get_l()
    store_o(sOA)
    p.stamp(10)
    a('s_waitcnt vmcnt(0)')
    a('s_barrier')
    p.stamp(11)
    a(f's_cmp_lg_u32 s{sWV}, 0')
    a('s_cbranch_scc1 L_p2_nosig')
    a(f's_lshl_b32 s{st0}, s{sJ}, 2')
    a(f's_add_u32 s{st0}, s{st0}, 128')
    a('s_mov_b64 exec, 1')
    a(f'v_mov_b32 v2, s{st0}')
    a('v_mov_b32 v3, 1')
    a(f'global_atomic_add v2, v3, s[{sDBG}:{sDBG+1}] sc1')
    a('s_mov_b64 exec, -1')
    a.lab('L_p2_nosig')
    a('s_branch L_p3')
    a.lab('L_b_fallback')
    a(f'v_lshlrev_b32 v{vt4}, 3, v{vRho}')
    a(f'v_add_u32 v{vt4}, 1024, v{vt4}')
    a(f'v_lshrrev_b32 v{vt0}, 5, v{vLane}')
    a(f'v_mul_u32_u24 v{vt5}, 320, v{vt0}')
    a(f'v_lshl_add_u32 v{vt5}, v{vRho}, 4, v{vt5}')
    a(f'v_add_u32 v{vt5}, 1280, v{vt5}')
    a(f'v_mov_b32 v{vM}, {NEG_BIG:#x}')
    a(f's_mov_b32 s{st0}, s{sHB}')
    a(f's_mov_b32 s{sIT}, 64')
    a.lab('L_fb_p1')
    a(f'buffer_load_dwordx4 {vr(vK1,4)}, v{vDma}, s[{sR}:{sR+3}], s{st0} offen {SC}')
    a(f'buffer_load_dwordx2 {vr(vK2,2)}, v{vt4}, s[{sR}:{sR+3}], s{st0} offen {SC}')
    a('s_waitcnt vmcnt(0)')
    qk1(vSa,'0',vQa1); qk2(vSa,vQa2)
    a('s_nop 15')
    rowmax(vM,vSa,False)
    a(f's_add_u32 s{st0}, s{st0}, {TILE}')
    a(f's_sub_u32 s{sIT}, s{sIT}, 1')
    a(f's_cmp_lg_u32 s{sIT}, 0')
    a('s_cbranch_scc1 L_fb_p1')
    xhalf_max(vM)
    for r in range(16): a(f'v_sub_f32 v{vCa+r}, 0, v{vM}')
    for r in range(16): a(f'v_mov_b32 v{vOa+r}, 0')
    a(f's_mov_b32 s{st0}, s{sHB}')
    a(f's_mov_b32 s{sIT}, 64')
    a.lab('L_fb_p2')
    a(f'buffer_load_dwordx4 {vr(vK1,4)}, v{vDma}, s[{sR}:{sR+3}], s{st0} offen {SC}')
    a(f'buffer_load_dwordx2 {vr(vK2,2)}, v{vt4}, s[{sR}:{sR+3}], s{st0} offen {SC}')
    a(f's_mov_b64 exec, s[{sVm}:{sVm+1}]')
    a(f'buffer_load_dwordx4 {vr(vV,4)}, v{vt5}, s[{sR}:{sR+3}], s{st0} offen {SC}')
    a(f'buffer_load_dwordx4 {vr(vV+4,4)}, v{vt5}, s[{sR}:{sR+3}], s{st0} offen offset:640 {SC}')
    a('s_mov_b64 exec, -1')
    a('s_waitcnt vmcnt(0)')
    qk1(vSa,vr(vCa,16),vQa1); qk2(vSa,vQa2)
    a('s_nop 15')
    for r in range(16): ex(vSa,r)
    a('s_nop 0')
    for c in range(8): cv(vSa,c)
    a('s_nop 1')
    pv(vOa,0,0); pv(vOa,0,1)
    a(f's_add_u32 s{st0}, s{st0}, {TILE}')
    a(f's_sub_u32 s{sIT}, s{sIT}, 1')
    a(f's_cmp_lg_u32 s{sIT}, 0')
    a('s_cbranch_scc1 L_fb_p2')
    a('s_nop 15')
    get_l()
    a('s_branch L_b_store')
    return vEnd, dict(sHD=sHD,sJ=sJ)

def phase3(a,p,info):
    WOFF=40960; NPH=5; spp=4
    sHD,sJ=info['sHD'],info['sJ']
    sX,sO=4,8
    st0,st1,st2,st3=20,21,22,23
    sPH=28; sBR=29; sMT=30; sNT=31; sNeed=39
    vLane=1; vXo=2; vt0=4; vt1=5; vt2=6; vt3=7; vTok=8; vG=9; vTr=10; vOut=11; vTp=12
    vX=16; vWf=vX+160; vAcc=vWf+40; vEnd=vAcc+40
    a.lab('L_p3')
    a(f's_cmp_ge_u32 s{sWV}, 4')
    a('s_cbranch_scc1 L_done')
    a('s_load_dwordx2 s[50:51], s[0:1], 48')
    a(f's_lshr_b32 s{sBR}, s{sHD}, 4')
    a(f's_bfe_u32 s{st0}, s{sHD}, 0x10003')
    a(f's_lshl_b32 s{sMT}, s{sJ}, 1')
    a(f's_add_u32 s{sMT}, s{sMT}, s{st0}')
    a(f's_and_b32 s{sNT}, s{sHD}, 7')
    a(f's_and_b32 s{sPH}, s{sHD}, 3')
    a(f'v_and_b32 v{vTok}, 15, v{vLane}')
    a(f'v_lshrrev_b32 v{vG}, 4, v{vLane}')
    a(f'v_lshlrev_b32 v{vXo}, 4, v{vLane}')
    a(f's_lshl_b32 s{st0}, s{sMT}, 3')
    a(f's_lshl_b32 s{st1}, s{sWV}, 1')
    a(f's_add_u32 s{st0}, s{st0}, s{st1}')
    a(f's_mul_i32 s32, s{st0}, 20480')
    a(f's_mul_i32 s{st0}, s{sBR}, {2048*1280}')
    a(f's_add_u32 s{st0}, s{st0}, {WS_O}')
    a(f's_add_u32 s52, s{sWS}, s{st0}')
    a(f's_addc_u32 s53, s{sWS+1}, 0')
    srd(a,sX,52,53,2048*1280)
    a(f'v_bfe_u32 v{vt0}, v{vLane}, 2, 2')
    a(f'v_lshl_add_u32 v{vt0}, v{vG}, 2, v{vt0}')
    a(f'v_mul_u32_u24 v{vt0}, 160, v{vt0}')
    a(f'v_and_b32 v{vt1}, 3, v{vLane}')
    a(f'v_lshl_add_u32 v{vTr}, v{vt1}, 3, v{vt0}')
    a(f'v_add_u32 v{vTr}, {WOFF}, v{vTr}')
    for i in range(40): a(f'v_mov_b32 v{vAcc+i}, 0')
    a(f's_lshl_b32 s{st0}, s{sMT}, 7')
    a(f's_lshl_b32 s{st1}, s{sWV}, 5')
    a(f's_add_u32 s{st0}, s{st0}, s{st1}')
    a(f'v_add_u32 v{vt0}, s{st0}, v{vTok}')
    a(f'v_mul_u32_u24 v{vt0}, 2560, v{vt0}')
    a(f'v_and_b32 v{vt1}, 1, v{vG}')
    a(f'v_lshlrev_b32 v{vt1}, 5, v{vt1}')
    a(f'v_lshrrev_b32 v{vt2}, 1, v{vG}')
    a(f'v_lshl_add_u32 v{vt1}, v{vt2}, 4, v{vt1}')
    a(f'v_add_u32 v{vOut}, v{vt0}, v{vt1}')
    a(f'v_lshl_add_u32 v{vt3}, v{vG}, 3, v{vt0}')
    a(f's_cmp_lg_u32 s{sWV}, 0')
    a('s_cbranch_scc1 L_p3_go')
    a(f's_lshl_b32 s{sNeed}, 1, s{sJ}')
    poll(a,'p3',sNeed,32,128,13)
    a.lab('L_p3_go')
    a('s_barrier')
    p.stamp(12)
    a(f's_mov_b32 s33, s{sPH}')
    for ph in range(NPH):
        a(f's_mul_i32 s{st0}, s33, {spp*1024}')
        a(f's_add_u32 s34, s32, s{st0}')
        a(f's_add_u32 s35, s34, 20480')
        for s_ in range(spp):
            st=ph*spp+s_
            for u in range(2):
                a(f'buffer_load_dwordx4 {vr(vX+(st*2+u)*4,4)}, v{vXo}, s[{sX}:{sX+3}], s{34+u} offen offset:{s_*1024} {SC}')
        a('s_add_u32 s33, s33, 1')
        a(f's_cmp_eq_u32 s33, {NPH}')
        a('s_cselect_b32 s33, 0, s33')
    a('s_waitcnt lgkmcnt(0)')
    srd(a,sO,50,51,2048*2560)
    def trr(s,cp,h):
        s_=s%spp
        buf=vWf+(s&1)*20+cp*4+2*h
        return f'ds_read_b64_tr_b16 {vr(buf,2)}, v{vTp+((s//spp)&1)} offset:{s_*5120+cp*32+h*2560}'
    def setp(ph):
        a(f's_mul_i32 s{st0}, s{sPH}, {spp*5120}')
        a(f'v_add_u32 v{vTp+(ph&1)}, s{st0}, v{vTr}')
        a(f's_add_u32 s{sPH}, s{sPH}, 1')
        a(f's_cmp_eq_u32 s{sPH}, {NPH}')
        a(f's_cselect_b32 s{sPH}, 0, s{sPH}')
    setp(0)
    for cp in range(5):
        a(trr(0,cp,0)); a(trr(0,cp,1))
    for s in range(20):
        if s%spp==0 and s//spp+1<NPH: setp(s//spp+1)
        nxt=[trr(s+1,cp,h) for cp in range(5) for h in range(2)] if s+1<20 else []
        buf=vWf+(s&1)*20
        a(f's_waitcnt lgkmcnt(0) vmcnt({2*(19-s)})')
        for cp in range(5):
            for u in range(2):
                ac=vAcc+(cp*2+u)*4
                a(f'v_mfma_f32_16x16x32_bf16 {vr(ac,4)}, {vr(buf+cp*4,4)}, {vr(vX+(s*2+u)*4,4)}, {vr(ac,4)}')
                if nxt: a(nxt.pop(0))
    a('s_nop 7')
    p.stamp(13)
    a(f's_mul_i32 s{st0}, s{sBR}, 1280')
    a(f's_mul_i32 s{st1}, s{sNT}, 160')
    a(f's_add_u32 s{st0}, s{st0}, s{st1}')
    a(f's_add_u32 s{st1}, s{st0}, {16*2560}')
    for u in range(2):
        for cp in range(5):
            b=vAcc+(cp*2+u)*4
            a(f'v_cvt_pk_bf16_f32 v{b}, v{b}, v{b+1}')
            a(f'v_cvt_pk_bf16_f32 v{b+1}, v{b+2}, v{b+3}')
        for cp in (0,2):
            b=vAcc+(cp*2+u)*4; b2=vAcc+((cp+1)*2+u)*4
            a(f'v_mov_b32 v{b+2}, v{b2}')
            a(f'v_mov_b32 v{b+3}, v{b2+1}')
            a('s_nop 1')
            a(f'v_permlane16_swap_b32 v{b}, v{b+2}')
            a(f'v_permlane16_swap_b32 v{b+1}, v{b+3}')
            a('s_nop 1')
            a(f'buffer_store_dwordx4 {vr(b,4)}, v{vOut}, s[{sO}:{sO+3}], s{st0+u} offen offset:{cp*32}')
        b=vAcc+(4*2+u)*4
        a(f'buffer_store_dwordx2 {vr(b,2)}, v{vt3}, s[{sO}:{sO+3}], s{st0+u} offen offset:128')
    return vEnd

def build(**kw):
    a=A(); p=Prof(a)
    a.raw(f'.globl {KNAME}'); a.raw('.p2align 8'); a.raw(f'.type {KNAME},@function'); a.lab(KNAME)
    a('s_cmp_ge_u32 s2, 256')
    a('s_cbranch_scc1 L_exit')
    p.real(0); p.stamp(0)
    a(f's_load_dwordx4 s[{sDBG}:{sDBG+3}], s[0:1], 56' if False else f's_load_dwordx2 s[{sDBG}:{sDBG+1}], s[0:1], 56')
    a(f's_load_dwordx2 s[{sWS}:{sWS+1}], s[0:1], 64')
    a(f's_mov_b32 s{sWG}, s2')
    a('v_lshrrev_b32 v2, 6, v0')
    a('s_nop 0')
    a(f'v_readfirstlane_b32 s{sWV}, v2')
    a('s_waitcnt lgkmcnt(0)')
    v1=phase1(a,p,**kw.get('p1',{}))
    v2,info=phase2(a,p,**kw.get('p2',{}))
    v3=phase3(a,p,info)
    a.lab('L_done')
    if PROF:
        a('s_waitcnt vmcnt(0)')
        p.real(1); p.dump()
    a('s_endpgm')
    a.lab('L_exit')
    a('s_endpgm')
    vg=max(v1,v2,v3)
    desc=f'''.section .rodata,"a"
.p2align 6
.amdhsa_kernel {KNAME}
  .amdhsa_next_free_vgpr {vg}
  .amdhsa_next_free_sgpr 102
  .amdhsa_accum_offset {(vg+3)//4*4}
  .amdhsa_group_segment_fixed_size 0
  .amdhsa_kernarg_size 72
  .amdhsa_user_sgpr_count 2
  .amdhsa_user_sgpr_kernarg_segment_ptr 1
  .amdhsa_system_sgpr_workgroup_id_x 1
.end_amdhsa_kernel
'''
    hdr=open('cdna_kernels/'+NAME+'.s.ref').read().split('\n')
    out=[]
    for l in hdr:
        if l.startswith('; @launch'): out.append('; @launch grid=(256,1,1) block=(512,1,1) lds=163840'); continue
        if not l.startswith(';'): break
        out.append(l)
    out.append('.amdgcn_target "amdgcn-amd-amdhsa--gfx950"'); out.append('.text')
    return '\n'.join(out)+'\n'+a.txt()+desc

if __name__=='__main__':
    if len(sys.argv)>2 and sys.argv[2]=='prof': PROF=True
    kw=eval(sys.argv[3]) if len(sys.argv)>3 else {}
    open(sys.argv[1],'w').write(build(**kw))
```

```python
import sys, math, struct
NAME='concat_heads__sliding_block__mha_block__prompt'
KNAME=NAME+'_kernel'
WS_Q=0
WS_KV=2*32*64*1280
WS_O=WS_KV+2*32*64*2560
WS_END=WS_O+2*2048*1280
WS_FLG=WS_END
CSCALE=(20.0**-0.5)*math.log2(math.e)
NEG_BIG=0xf149f2ca
def f32bits(x): return struct.unpack('<I',struct.pack('<f',x))[0]
class A:
    def __init__(s): s.l=[]
    def __call__(s,x): s.l.append('  '+x)
    def lab(s,x): s.l.append(x+':')
    def raw(s,x): s.l.append(x)
    def txt(s): return '\n'.join(s.l)+'\n'
def vr(a,n=1): return f'v{a}' if n==1 else f'v[{a}:{a+n-1}]'
PROF=False
PROF_BASE=32<<20
NST=16
class Prof:
    def __init__(s,a): s.a=a; s.n=0
    def stamp(s,i=None):
        if not PROF: return
        if i is None: i=s.n
        s.n=max(s.n,i+1)
        assert i<14
        s.a(f's_memtime s[{60+2*i}:{61+2*i}]')
    def real(s,idx):
        if PROF: s.a(f's_memrealtime s[{88+2*idx}:{89+2*idx}]')
    def dump(s):
        if not PROF: return
        a=s.a
        a('s_waitcnt lgkmcnt(0) vmcnt(0)')
        a(f's_lshl_b32 s92, s{sWG}, 3')
        a(f's_add_u32 s92, s92, s{sWV}')
        a('s_lshl_b32 s92, s92, 6')
        a(f's_add_u32 s92, s92, {PROF_BASE}')
        a(f's_add_u32 s94, s{sWS}, s92')
        a(f's_addc_u32 s95, s{sWS+1}, 0')
        a('v_mov_b32 v0, 0')
        a('s_mov_b64 exec, 1')
        for i in range(14):
            a(f'v_mov_b32 v1, s{60+2*i}')
            a(f'global_store_dword v0, v1, s[94:95] offset:{4*i}')
        a('v_mov_b32 v1, s88'); a('global_store_dword v0, v1, s[94:95] offset:56')
        a('v_mov_b32 v1, s90'); a('global_store_dword v0, v1, s[94:95] offset:60')
        a('s_waitcnt vmcnt(0)')
sWG=96; sWV=97; sDBG=98; sWS=100; sTOK=59
def srd(a, d, lo, hi, nbytes):
    a(f's_mov_b32 s{d}, s{lo}')
    a(f's_and_b32 s{d+1}, s{hi}, 0xffff')
    a(f's_mov_b32 s{d+2}, {nbytes}')
    a(f's_mov_b32 s{d+3}, 0x20000')

SC='sc1'
SL='sc1'

def phase1(a,p,D=3,SY=1):
    R=3; SLOT=49152; XOFF=16384
    sX,sW,sO=4,8,12
    sBR,sMT,sNT=26,27,28
    sKS=31; sXo=32; sW0=34; sIT=36; sSlot=37; sLW=38; sLX=39; sT=40
    st0,st1,st2,st3=41,42,43,44
    sSec=45; sBase=46; sHS=47; sTS=48; sNx=49; sM=30; sN=33; sLd=29
    vLane=1; vt0=6; vt1=7; vt2=8; vt3=9; vt4=10; vTok=11; vG=12; vRho=13
    vLW=2; vLX=4; vXh=2; vXc1=3
    vB0=14; vBc=19; vBn=24; vAd=29
    vWf=(vAd+8+3)//4*4; vXf=vWf+32; vAcc=vXf+4*(D+1); vEnd=vAcc+128
    assert vEnd<=256 and 16%(D+1)==0
    def wf(step,c): return vWf+(step&1)*16+c*4
    def xf(i): return vXf+(i%(D+1))*4
    def acc(c,mt): return vAcc+(c*8+mt)*4
    a(f'v_and_b32 v{vLane}, 63, v0')
    a(f's_and_b32 s{st0}, s{sWG}, 7')
    a(f's_lshr_b32 s{st1}, s{sWG}, 3')
    a(f's_lshr_b32 s{sBR}, s{st0}, 2')
    a(f's_bfe_u32 s{st2}, s{st0}, 0x10001')
    a(f's_lshl_b32 s{st2}, s{st2}, 2')
    a(f's_and_b32 s{st3}, s{st1}, 3')
    a(f's_add_u32 s{sMT}, s{st2}, s{st3}')
    a(f's_and_b32 s{st2}, s{st0}, 1')
    a(f's_lshl_b32 s{st2}, s{st2}, 3')
    a(f's_lshr_b32 s{st1}, s{st1}, 2')
    a(f's_add_u32 s{sNT}, s{st2}, s{st1}')
    a(f's_cmp_ge_u32 s{sNT}, 15')
    a(f's_cbranch_scc1 L_p1_skip')
    a(f's_cmp_ge_u32 s{sWV}, 4')
    a(f's_cbranch_scc1 L_p1_loader')
    a(f's_and_b32 s{sM}, s{sWV}, 1')
    a(f's_lshr_b32 s{sN}, s{sWV}, 1')
    a(f'v_and_b32 v{vTok}, 15, v{vLane}')
    a(f'v_lshrrev_b32 v{vG}, 4, v{vLane}')
    a(f'v_and_b32 v{vt0}, 3, v{vLane}')
    a(f'v_bfe_u32 v{vt1}, v{vLane}, 2, 2')
    a(f'v_and_b32 v{vt2}, 1, v{vG}')
    a(f'v_lshl_or_b32 v{vt2}, v{vt2}, 2, v{vt1}')
    a(f'v_lshl_add_u32 v{vt3}, v{vG}, 3, v{vt1}')
    a(f'v_lshlrev_b32 v{vt3}, 8, v{vt3}')
    a(f'v_lshl_add_u32 v{vt3}, v{vt0}, 3, v{vt3}')
    a(f's_lshl_b32 s{st0}, s{sN}, 2')
    a(f'v_xor_b32 v{vt2}, s{st0}, v{vt2}')
    for c in range(4):
        a(f'v_xor_b32 v{vt4}, {c}, v{vt2}')
        a(f'v_lshl_add_u32 v{vB0+c}, v{vt4}, 5, v{vt3}')
    a(f'v_lshrrev_b32 v{vt0}, 1, v{vTok}')
    a(f'v_xor_b32 v{vt0}, v{vt0}, v{vG}')
    a(f'v_lshlrev_b32 v{vt0}, 4, v{vt0}')
    a(f'v_lshl_add_u32 v{vt0}, v{vTok}, 7, v{vt0}')
    a(f's_lshl_b32 s{st0}, s{sM}, 14')
    a(f's_add_u32 s{st0}, s{st0}, {XOFF}')
    a(f'v_add_u32 v{vB0+4}, s{st0}, v{vt0}')
    a(f'v_xor_b32 v{vXh}, 64, v{vt0}')
    a(f'v_sub_u32 v{vXh}, v{vXh}, v{vt0}')
    for i in range(5): a(f'v_mov_b32 v{vBc+i}, v{vB0+i}')
    for i in range(128): a(f'v_mov_b32 v{vAcc+i}, 0')
    a(f's_mul_i32 s{sSec}, s{sNT}, 52')
    a(f's_lshr_b32 s{sSec}, s{sSec}, 8')
    a(f's_mul_i32 s{st0}, s{sSec}, 5')
    a(f's_sub_u32 s{st0}, s{sNT}, s{st0}')
    a(f's_lshl_b32 s{st0}, s{st0}, 7')
    a(f's_lshl_b32 s{st1}, s{sN}, 6')
    a(f's_add_u32 s{st0}, s{st0}, s{st1}')
    a(f's_cmp_eq_u32 s{sSec}, 0')
    a(f's_cselect_b32 s{st1}, 0, 1')
    a(f's_cselect_b32 s{st2}, 0, {WS_KV}')
    a(f's_lshl_b32 s{sTS}, 1280, s{st1}')
    a(f's_lshl_b32 s{sHS}, s{sTS}, 6')
    a(f's_lshl_b32 s{sT}, s{sMT}, 3')
    a(f's_lshl_b32 s{st1}, s{sM}, 2')
    a(f's_add_u32 s{sT}, s{sT}, s{st1}')
    a(f's_lshl_b32 s{st1}, s{sBR}, 11')
    a(f's_add_u32 s{st1}, s{st1}, s{sT}')
    a(f's_mul_i32 s{st1}, s{st1}, s{sTS}')
    a(f's_add_u32 s{sBase}, s{st1}, s{st2}')
    a(f's_cmp_eq_u32 s{sSec}, 2')
    a(f's_cbranch_scc1 L_p1_adV')
    a(f'v_lshrrev_b32 v{vt0}, 3, v{vTok}')
    a(f'v_lshlrev_b32 v{vRho}, 7, v{vt0}')
    a(f'v_bfe_u32 v{vt0}, v{vTok}, 1, 1')
    a(f'v_lshl_or_b32 v{vRho}, v{vt0}, 6, v{vRho}')
    a(f'v_bfe_u32 v{vt0}, v{vTok}, 2, 1')
    a(f'v_lshl_or_b32 v{vRho}, v{vt0}, 5, v{vRho}')
    a(f'v_and_b32 v{vt0}, 1, v{vTok}')
    a(f'v_lshl_or_b32 v{vRho}, v{vt0}, 4, v{vRho}')
    a(f's_lshr_b32 s{st0}, s{st0}, 2')
    for c in range(4):
        a(f'v_add_u32 v{vt0}, s{st0}, v{vG}')
        if c: a(f'v_add_u32 v{vt0}, {4*c}, v{vt0}')
        a(f'v_mul_u32_u24 v{vt1}, 52429, v{vt0}')
        a(f'v_lshrrev_b32 v{vt1}, 18, v{vt1}')
        a(f'v_mul_u32_u24 v{vt2}, 5, v{vt1}')
        a(f'v_sub_u32 v{vt2}, v{vt0}, v{vt2}')
        a(f'v_mul_u32_u24 v{vt1}, s{sHS}, v{vt1}')
        a(f'v_and_b32 v{vt3}, 1, v{vt2}')
        a(f'v_lshlrev_b32 v{vt3}, 9, v{vt3}')
        a(f'v_lshrrev_b32 v{vt4}, 1, v{vt2}')
        a(f'v_cmp_eq_u32 s[56:57], 4, v{vt2}')
        a(f'v_lshl_add_u32 v{vt3}, v{vt4}, 8, v{vt3}')
        a(f'v_add_u32 v{vt4}, 512, v{vt3}')
        a(f'v_add_u32 v{vt1}, v{vt1}, v{vRho}')
        a(f'v_cndmask_b32 v{vt3}, v{vt3}, v{vt4}, s[56:57]')
        a(f'v_add_u32 v{vAd+c}, v{vt1}, v{vt3}')
    a('s_branch L_p1_adD')
    a.lab('L_p1_adV')
    for c in range(4):
        a(f'v_add_u32 v{vt0}, s{st0}, v{vTok}')
        if c: a(f'v_add_u32 v{vt0}, {16*c}, v{vt0}')
        a(f'v_mul_u32_u24 v{vt1}, 52429, v{vt0}')
        a(f'v_lshrrev_b32 v{vt1}, 20, v{vt1}')
        a(f'v_mul_u32_u24 v{vt2}, 20, v{vt1}')
        a(f'v_sub_u32 v{vt2}, v{vt0}, v{vt2}')
        a(f'v_mul_u32_u24 v{vt1}, {64*2560}, v{vt1}')
        a(f'v_lshl_add_u32 v{vt1}, v{vt2}, 6, v{vt1}')
        a(f'v_bfe_u32 v{vt2}, v{vt2}, 2, 2')
        a(f'v_xor_b32 v{vt2}, v{vt2}, v{vG}')
        a(f'v_lshl_add_u32 v{vt1}, v{vt2}, 4, v{vt1}')
        a(f'v_add_u32 v{vAd+c}, 1280, v{vt1}')
    a.lab('L_p1_adD')
    a('s_waitcnt lgkmcnt(0)')
    srd(a,sO,sWS,sWS+1,WS_O)
    SYNC=SY
    def wread(nxt,h,step,c,hh):
        b=(vBn if nxt else vBc)+c
        return f'ds_read_b64_tr_b16 {vr(wf(step,c)+2*hh,2)}, v{b} offset:{h*8192+1024*hh}'
    def xread(nxt,h,mt,buf):
        b=((vBn if nxt else vBc)+4) if h==0 else vXc1
        return f'ds_read_b128 {vr(xf(buf),4)}, v{b} offset:{mt*2048}'
    a(f's_cmp_eq_u32 s{sSec}, 2')
    a(f's_cbranch_scc1 L_p1_v1')
    for v in range(2):
        a.lab(f'L_p1_v{v}')
        p.stamp(1)
        a('s_barrier')
        p.stamp(2)
        def body(emit,issued):
            waits=[]
            for st in range(2):
                for mt in range(8):
                    gi=st*8+mt
                    need=[('x',gi)]
                    if mt==0: need.append(('w',st))
                    last=max(len(issued)-1-issued[::-1].index(t) for t in need)
                    y=len(issued)-1-last
                    waits.append(y)
                    if emit:
                        y=min(y,wmin[len(waits)-1])
                        a(f's_waitcnt lgkmcnt({min(y,15)})')
                    fill=[]
                    g2=gi+D; nx=g2>=16; h2=(g2%16)//8; m2=g2%8
                    fill.append((xread(nx,h2,m2,g2),('x',g2%16)))
                    if SYNC<mt<=SYNC+4:
                        c=mt-SYNC-1
                        fill.append((wread(st==1,(st+1)&1,st+1,c,0),('w',(st+1)%2)))
                        fill.append((wread(st==1,(st+1)&1,st+1,c,1),('w',(st+1)%2)))
                    if st==0 and mt==0:
                        fill.append((f's_add_u32 s{sNx}, s{sSlot}, {SLOT}',None))
                        fill.append((f's_cmp_eq_u32 s{sNx}, {R*SLOT}',None))
                        fill.append((f's_cselect_b32 s{sNx}, 0, s{sNx}',None))
                        fill.append((f'v_add_u32 v{vXc1}, v{vBc+4}, v{vXh}',None))
                    if st==0 and 2<=mt<=6:
                        fill.append((f'v_add_u32 v{vBn+mt-2}, s{sNx}, v{vB0+mt-2}',None))
                    if st==1 and mt==7:
                        for i in range(5): fill.append((f'v_mov_b32 v{vBc+i}, v{vBn+i}',None))
                        fill.append((f's_mov_b32 s{sSlot}, s{sNx}',None))
                    for c in range(4):
                        x=xf(gi); w=wf(st,c); ac=acc(c,mt)
                        if emit:
                            if v==0: a(f'v_mfma_f32_16x16x32_bf16 {vr(ac,4)}, {vr(w,4)}, {vr(x,4)}, {vr(ac,4)}')
                            else:    a(f'v_mfma_f32_16x16x32_bf16 {vr(ac,4)}, {vr(x,4)}, {vr(w,4)}, {vr(ac,4)}')
                        k=1 if c<3 else len(fill)
                        while k>0 and fill:
                            t,tag=fill.pop(0); k-=1
                            if emit: a(t)
                            if tag: issued.append(tag)
                    if st==0 and mt==SYNC and emit: a('s_barrier')
            return waits
        pro=[('w',0)]*8+[('x',i) for i in range(D)]
        iss=list(pro); w1=body(False,iss); w2=body(False,iss)
        wmin=[min(x,y) for x,y in zip(w1,w2)]
        a(f's_mov_b32 s{sSlot}, 0')
        for c in range(4):
            a(wread(False,0,0,c,0)); a(wread(False,0,0,c,1))
        for i in range(D): a(xread(False,0,i,i))
        a(f's_mov_b32 s{sIT}, 10')
        a.lab(f'L_p1_loop{v}')
        body(True,list(pro))
        a(f's_sub_u32 s{sIT}, s{sIT}, 1')
        a(f's_cmp_lg_u32 s{sIT}, 0')
        a(f's_cbranch_scc1 L_p1_loop{v}')
        a('s_waitcnt lgkmcnt(0)')
        a('s_nop 7')
        p.stamp(3)
        if v==0:
            a(f's_cmp_lg_u32 s{sSec}, 0')
            a(f's_cbranch_scc1 L_p1_ns')
            a(f's_mov_b32 s{st1}, {f32bits(CSCALE):#x}')
            for i in range(128): a(f'v_mul_f32 v{vAcc+i}, s{st1}, v{vAcc+i}')
            a.lab('L_p1_ns')
        for tp in range(4):
            if tp==0: a(f's_mov_b32 s{st0}, s{sBase}')
            else: a(f's_add_u32 s{st0}, s{st0}, s{sTS}')
            for c in range(4):
                b=acc(c,2*tp)
                if v==0:
                    a(f'v_cvt_pk_bf16_f32 v{b}, v{b}, v{b+1}')
                    a(f'v_cvt_pk_bf16_f32 v{b+1}, v{b+2}, v{b+3}')
                    a(f'v_cvt_pk_bf16_f32 v{b+2}, v{b+4}, v{b+5}')
                    a(f'v_cvt_pk_bf16_f32 v{b+3}, v{b+6}, v{b+7}')
                else:
                    a(f'v_cvt_pk_bf16_f32 v{b}, v{b}, v{b+4}')
                    a(f'v_cvt_pk_bf16_f32 v{b+1}, v{b+1}, v{b+5}')
                    a(f'v_cvt_pk_bf16_f32 v{b+2}, v{b+2}, v{b+6}')
                    a(f'v_cvt_pk_bf16_f32 v{b+3}, v{b+3}, v{b+7}')
                a(f'buffer_store_dwordx4 {vr(b,4)}, v{vAd+c}, s[{sO}:{sO+3}], s{st0} offen {SC}')
        a('s_waitcnt vmcnt(0)')
        a('s_branch L_p1_end')
    a.lab('L_p1_loader')
    a(f's_sub_u32 s{sLd}, s{sWV}, 4')
    a(f's_mul_i32 s{st3}, s{st3}, 5')
    a(f's_lshr_b32 s{st3}, s{st3}, 1')
    a(f's_mul_i32 s{st1}, s{st1}, 5')
    a(f's_lshr_b32 s{st1}, s{st1}, 2')
    a(f's_add_u32 s{sKS}, s{st3}, s{st1}')
    a(f's_cmp_ge_u32 s{sKS}, 10')
    a(f's_cselect_b32 s{st0}, 10, 0')
    a(f's_sub_u32 s{sKS}, s{sKS}, s{st0}')
    a(f's_lshl_b32 s{sLW}, s{sLd}, 12')
    a(f's_lshl_b32 s{sLX}, s{sLd}, 13')
    a(f's_add_u32 s{sLX}, s{sLX}, {XOFF}')
    a(f'v_lshrrev_b32 v{vt0}, 4, v{vLane}')
    a(f'v_bfe_u32 v{vt1}, v{vLane}, 1, 3')
    a(f'v_and_b32 v{vt2}, 1, v{vLane}')
    a(f's_lshl_b32 s{st2}, s{sLd}, 4')
    a(f's_lshl_b32 s{st1}, s{sNT}, 8')
    for jj in range(2):
        a(f'v_add_u32 v{vt3}, {4*jj}, v{vt0}')
        a(f'v_xor_b32 v{vt3}, v{vt3}, v{vt1}')
        a(f'v_lshl_add_u32 v{vt4}, v{vt3}, 1, v{vt2}')
        a(f'v_lshlrev_b32 v{vt4}, 4, v{vt4}')
        a(f'v_add_u32 v{vLW+jj}, s{st2}, v{vt0}')
        if jj: a(f'v_add_u32 v{vLW+jj}, 8, v{vLW+jj}')
        a(f'v_mul_u32_u24 v{vLW+jj}, 3840, v{vLW+jj}')
        a(f'v_add3_u32 v{vLW+jj}, v{vLW+jj}, v{vt4}, s{st1}')
    a(f'v_lshrrev_b32 v{vt0}, 3, v{vLane}')
    a(f'v_and_b32 v{vt1}, 7, v{vLane}')
    a(f's_lshl_b32 s{st0}, s{sMT}, 8')
    a(f's_lshl_b32 s{st1}, s{sLd}, 6')
    a(f's_add_u32 s{st0}, s{st0}, s{st1}')
    for uu in range(2):
        a(f'v_lshrrev_b32 v{vt2}, 1, v{vt0}')
        if uu: a(f'v_add_u32 v{vt2}, 4, v{vt2}')
        a(f'v_xor_b32 v{vt2}, v{vt2}, v{vt1}')
        a(f'v_add_u32 v{vt3}, s{st0}, v{vt0}')
        if uu: a(f'v_add_u32 v{vt3}, 8, v{vt3}')
        a(f'v_mul_u32_u24 v{vt3}, 1280, v{vt3}')
        a(f'v_lshl_add_u32 v{vLX+uu}, v{vt2}, 4, v{vt3}')
    a('s_waitcnt lgkmcnt(0)')
    a(f's_cmp_eq_u32 s{sBR}, 0')
    a('s_cselect_b64 s[16:17], s[16:17], s[20:21]')
    a('s_cselect_b64 s[18:19], s[18:19], s[22:23]')
    srd(a,sX,16,17,2048*1280)
    srd(a,sW,18,19,640*3840)
    NL=12
    def wstep():
        a(f's_mul_i32 s{sW0}, s{sKS}, {64*3840}')
        a(f's_lshl_b32 s{sXo}, s{sKS}, 7')
        a(f's_add_u32 s{st0}, s{sSlot}, s{sLW}')
        a(f's_add_u32 s{st1}, s{sSlot}, s{sLX}')
        for j in range(4):
            a(f's_add_u32 m0, s{st0}, {j*1024}')
            if j&1: a(f's_add_u32 s{st2}, s{sW0}, {4*3840}')
            a(f'buffer_load_dwordx4 v{vLW+(j>>1)}, s[{sW}:{sW+3}], s{st2 if j&1 else sW0} offen lds')
            for u in (2*j,2*j+1):
                a(f's_add_u32 m0, s{st1}, {u*1024}')
                if u>=2 and u%2==0: a(f's_add_u32 s{st3}, s{sXo}, {(u//2)*20480}')
                a(f'buffer_load_dwordx4 v{vLX+(u&1)}, s[{sX}:{sX+3}], s{st3 if u>=2 else sXo} offen lds')
        a(f's_add_u32 s{sKS}, s{sKS}, 1')
        a(f's_cmp_eq_u32 s{sKS}, 10')
        a(f's_cselect_b32 s{sKS}, 0, s{sKS}')
        a(f's_add_u32 s{sSlot}, s{sSlot}, {SLOT}')
        a(f's_cmp_eq_u32 s{sSlot}, {R*SLOT}')
        a(f's_cselect_b32 s{sSlot}, 0, s{sSlot}')
    a(f's_mov_b32 s{sSlot}, 0')
    wstep(); wstep()
    a(f's_waitcnt vmcnt({NL})')
    a('s_barrier')
    a(f's_mov_b32 s{sIT}, 0')
    a.lab('L_p1_ld_loop')
    a('s_waitcnt vmcnt(0)')
    a('s_barrier')
    a(f's_cmp_ge_u32 s{sIT}, 8')
    a('s_cbranch_scc1 L_p1_ld_skip')
    wstep()
    a.lab('L_p1_ld_skip')
    a(f's_add_u32 s{sIT}, s{sIT}, 1')
    a(f's_cmp_lt_u32 s{sIT}, 10')
    a('s_cbranch_scc1 L_p1_ld_loop')
    gettok(a,'p1')
    a.lab('L_p1_end')
    a('s_barrier')
    p.stamp(4)
    a(f's_cmp_lg_u32 s{sWV}, 4')
    a('s_cbranch_scc1 L_p1_done')
    a(f's_mul_i32 s{st0}, s{sBR}, 15')
    a(f's_add_u32 s{st0}, s{st0}, s{sNT}')
    a(f's_lshl_b32 s{st0}, s{st0}, 3')
    a(f's_add_u32 s{st0}, s{st0}, s{sMT}')
    a(f's_lshl_b32 s{st0}, s{st0}, 7')
    setflag(a,st0)
    a('s_branch L_p1_done')
    a.lab('L_p1_skip')
    a('s_waitcnt lgkmcnt(0)')
    gettok(a,'p1s')
    a.lab('L_p1_done')
    return vEnd

def gettok(a,tag):
    a(f's_cmp_lg_u32 s{sWV}, 4')
    a(f's_cbranch_scc1 L_tokd_{tag}')
    a('s_mov_b32 s58, 0x40000')
    a('v_mov_b32 v2, 0')
    a.lab(f'L_tok_{tag}')
    a(f'global_load_dword v3, v2, s[{sDBG}:{sDBG+1}] sc1')
    a('s_waitcnt vmcnt(0)')
    a(f'v_readfirstlane_b32 s{sTOK}, v3')
    a('s_nop 3')
    a(f's_cmp_lg_u32 s{sTOK}, 0')
    a(f's_cbranch_scc1 L_tokd_{tag}')
    a('s_sleep 4')
    a('s_sub_u32 s58, s58, 1')
    a('s_cmp_lg_u32 s58, 0')
    a(f's_cbranch_scc1 L_tok_{tag}')
    a.lab(f'L_tokd_{tag}')
def setflag(a,soff):
    a(f's_add_u32 s{soff}, s{soff}, {WS_FLG}')
    a('s_mov_b64 exec, 1')
    a(f'v_mov_b32 v2, s{soff}')
    a(f'v_mov_b32 v3, s{sTOK}')
    a(f'global_store_dword v2, v3, s[{sWS}:{sWS+1}] sc1')
    a('s_mov_b64 exec, -1')
def poll2(a,tag,va,vb,mask):
    a('s_mov_b32 s58, 0x40000')
    a.lab(f'L_poll_{tag}')
    a(f'global_load_dword v3, v{va}, s[{sWS}:{sWS+1}] sc1')
    a(f'global_load_dword v4, v{vb}, s[{sWS}:{sWS+1}] sc1')
    a('s_waitcnt vmcnt(0)')
    a(f'v_cmp_eq_u32 s[56:57], s{sTOK}, v3')
    a(f'v_cmp_eq_u32 vcc, s{sTOK}, v4')
    a('s_nop 4')
    a('s_and_b64 s[56:57], s[56:57], vcc')
    a(f's_and_b32 s56, s56, {mask&0xffffffff:#x}')
    a(f's_and_b32 s57, s57, {mask>>32:#x}')
    a(f's_cmp_lg_u32 s56, {mask&0xffffffff:#x}')
    a(f's_cbranch_scc1 L_polln_{tag}')
    a(f's_cmp_eq_u32 s57, {mask>>32:#x}')
    a(f's_cbranch_scc1 L_polld_{tag}')
    a.lab(f'L_polln_{tag}')
    a('s_sleep 1')
    a('s_sub_u32 s58, s58, 1')
    a('s_cmp_lg_u32 s58, 0')
    a(f's_cbranch_scc1 L_poll_{tag}')
    a.lab(f'L_polld_{tag}')
def poll(a,tag,vaddr,offs,mask):
    a('s_mov_b32 s58, 0x40000')
    a.lab(f'L_poll_{tag}')
    for i,o in enumerate(offs):
        a(f'global_load_dword v{vaddr+1+i}, v{vaddr}, s[{sWS}:{sWS+1}] offset:{o} sc1')
    a('s_waitcnt vmcnt(0)')
    a(f'v_cmp_eq_u32 s[56:57], s{sTOK}, v{vaddr+1}')
    if len(offs)>1:
        a(f'v_cmp_eq_u32 vcc, s{sTOK}, v{vaddr+2}')
        a('s_nop 4')
        a('s_and_b64 s[56:57], s[56:57], vcc')
    else:
        a('s_nop 4')
    a(f's_and_b32 s56, s56, {mask&0xffffffff:#x}')
    a(f's_and_b32 s57, s57, {mask>>32:#x}')
    a(f's_cmp_lg_u32 s56, {mask&0xffffffff:#x}')
    a(f's_cbranch_scc1 L_polln_{tag}')
    a(f's_cmp_eq_u32 s57, {mask>>32:#x}')
    a(f's_cbranch_scc1 L_polld_{tag}')
    a.lab(f'L_polln_{tag}')
    a('s_sleep 2')
    a('s_sub_u32 s58, s58, 1')
    a('s_cmp_lg_u32 s58, 0')
    a(f's_cbranch_scc1 L_poll_{tag}')
    a.lab(f'L_polld_{tag}')

def phase2(a,p,PRIO=4):
    TILE=2560; HALF=81920; WOFF=40960; SCR=40960
    sR,sOo,sWo=4,8,12
    sHD,sJ,sQP,sKH=16,17,18,19
    st0,st1,st2,st3=20,21,22,23
    sVm=24; sLo=26
    sIT=28; sHB=29; sHBw=30; sOl=31; sOh=32; sLl=33; sQA=34; sSw=35; sAg=36; sOB=37; sOA=38; sNeed=39
    sTm=40
    sWn=48
    vLane=1; vt0=2; vt1=3; vt2=4; vt3=5; vK1a=6; vK2a=7; vVa=8; vDma=9; vM=10; vRho=11; vKap=12; vOoff=13; vt4=14; vt5=15
    vQa1=16; vQa2=20; vQb2=22; vQb1=24; vK1=28; vK2=32; vQ2o=34; vMb=35
    vV=36; vP=52; vQA2=60; vWo=62; vCc=63; vVb=196; vQ1o=197
    vSa=64; vSb=80; vOa=96; vOb=112; vCa=128; vCb=144; vMF=160; vML=176; vQA1=192
    vEnd=198
    a(f's_load_dwordx2 s[50:51], s[0:1], 16')
    a(f's_load_dwordx2 s[52:53], s[0:1], 40')
    a(f's_and_b32 s{st0}, s{sWG}, 7')
    a(f's_lshr_b32 s{st1}, s{sWG}, 3')
    a(f's_lshl_b32 s{sHD}, s{st0}, 2')
    a(f's_lshr_b32 s{st2}, s{st1}, 3')
    a(f's_add_u32 s{sHD}, s{sHD}, s{st2}')
    a(f's_and_b32 s{sJ}, s{st1}, 7')
    a(f's_and_b32 s{sQP}, s{sWV}, 3')
    a(f's_lshr_b32 s{sKH}, s{sWV}, 2')
    a(f'v_lshlrev_b32 v{vDma}, 4, v{vLane}')
    a(f's_mul_i32 s{sHB}, s{sHD}, {64*TILE}')
    a(f's_add_u32 s{sAg}, s{sHB}, {WS_KV-20480}')
    a(f's_add_u32 s{sHB}, s{sHB}, {WS_KV+32*64*TILE}')
    a(f's_lshl_b32 s{st1}, s{sWV}, 10')
    a(f's_add_u32 s{sHBw}, s{sHB}, s{st1}')
    a(f's_mul_i32 s{st0}, s{sJ}, 20480')
    a(f's_add_u32 s{sAg}, s{sAg}, s{st0}')
    a(f's_add_u32 s{sAg}, s{sAg}, s{st1}')
    a(f's_lshr_b32 s{sOl}, s{sJ}, 1')
    a(f's_mul_i32 s{sOl}, s{sOl}, 40960')
    a(f's_add_u32 s{sOh}, s{sOl}, {HALF}')
    a(f's_cmp_ge_u32 s{sOh}, 163840')
    a(f's_cselect_b32 s{st0}, 163840, 0')
    a(f's_sub_u32 s{sOh}, s{sOh}, s{st0}')
    a(f's_mov_b32 s{sLl}, s{st1}')
    a(f's_mov_b32 s{sVm}, 0xfffff')
    a(f's_mov_b32 s{sVm+1}, 0xfffff')
    a(f's_mov_b32 s{sLo}, -1')
    a(f's_mov_b32 s{sLo+1}, 0')
    a(f'v_and_b32 v{vRho}, 31, v{vLane}')
    a(f'v_lshlrev_b32 v{vt1}, 3, v{vRho}')
    a(f'v_add_u32 v{vK2a}, 1024, v{vt1}')
    a(f'v_mov_b32 v{vt2}, 0x70000000')
    a(f'v_cndmask_b32 v{vQ2o}, v{vt2}, v{vK2a}, s[{sLo}:{sLo+1}]')
    a(f's_lshl_b32 s{st0}, s{sJ}, 3')
    a(f's_lshl_b32 s{st1}, s{sHD}, 6')
    a(f's_add_u32 s{st1}, s{st1}, s{st0}')
    a(f's_add_u32 s{st2}, s{st1}, s{sWV}')
    a(f's_mul_i32 s{sQA}, s{st2}, 1280')
    a(f's_lshl_b32 s{st2}, s{sQP}, 1')
    a(f's_add_u32 s{st2}, s{st2}, s{st1}')
    a(f's_mul_i32 s54, s{st2}, 1280')
    a(f's_add_u32 s54, s54, {32*64*1280}')
    a(f's_add_u32 s55, s54, 1280')
    a(f's_lshl_b32 s{st2}, s{sQP}, 1')
    a(f's_add_u32 s{st2}, s{st2}, s{sKH}')
    a(f's_add_u32 s{st2}, s{st2}, s{st0}')
    a(f's_mul_i32 s{sOB}, s{st2}, 40960')
    a(f's_add_u32 s{sOB}, s{sOB}, {2048*1280}')
    a(f's_add_u32 s{st2}, s{st0}, s{sWV}')
    a(f's_mul_i32 s{sOA}, s{st2}, 40960')
    srd(a,sR,sWS,sWS+1,WS_O)
    a(f's_add_u32 s56, s{sWS}, {WS_O}')
    a(f's_addc_u32 s57, s{sWS+1}, 0')
    srd(a,sOo,56,57,WS_END-WS_O)
    a(f'v_lshrrev_b32 v{vt0}, 5, v{vLane}')
    a(f'v_lshlrev_b32 v{vK1a}, 3, v{vRho}')
    a(f'v_lshl_add_u32 v{vK1a}, v{vt0}, 8, v{vK1a}')
    a(f'v_mov_b32 v{vQ1o}, v{vK1a}')
    a(f'v_bfe_u32 v{vt1}, v{vRho}, 2, 2')
    a(f'v_xor_b32 v{vt1}, v{vt1}, v{vt0}')
    a(f'v_lshlrev_b32 v{vt1}, 4, v{vt1}')
    a(f'v_lshl_add_u32 v{vVa}, v{vRho}, 6, v{vt1}')
    a(f'v_add_u32 v{vVa}, 1280, v{vVa}')
    a(f'v_xor_b32 v{vVb}, 32, v{vVa}')
    a(f'v_and_b32 v{vt1}, 1, v{vRho}')
    a(f'v_lshlrev_b32 v{vKap}, 4, v{vt1}')
    a(f'v_lshrrev_b32 v{vt1}, 4, v{vRho}')
    a(f'v_lshl_or_b32 v{vKap}, v{vt1}, 3, v{vKap}')
    a(f'v_and_b32 v{vt1}, 4, v{vRho}')
    a(f'v_or_b32 v{vKap}, v{vKap}, v{vt1}')
    a(f'v_bfe_u32 v{vt1}, v{vRho}, 3, 1')
    a(f'v_lshl_or_b32 v{vKap}, v{vt1}, 1, v{vKap}')
    a(f'v_bfe_u32 v{vt1}, v{vRho}, 1, 1')
    a(f'v_or_b32 v{vKap}, v{vKap}, v{vt1}')
    a(f'v_lshlrev_b32 v{vt3}, 2, v{vt0}')
    a(f'v_sub_u32 v{vt3}, v{vKap}, v{vt3}')
    a(f'v_mov_b32 v{vt2}, {NEG_BIG:#x}')
    for r in range(16):
        base=(r&3)+8*(r>>2)
        kb=16*(r&1)+8*((r>>3)&1)+2*((r>>2)&1)+((r>>1)&1)
        a(f'v_cmp_gt_i32 s[{sTm+2*(r&3)}:{sTm+1+2*(r&3)}], {kb}, v{vt3}')
        if r>=2:
            q=r-2
            a(f'v_cndmask_b32 v{vMF+q}, v{vt2}, 0, s[{sTm+2*(q&3)}:{sTm+1+2*(q&3)}]')
            a(f'v_cndmask_b32 v{vML+q}, 0, v{vt2}, s[{sTm+2*(q&3)}:{sTm+1+2*(q&3)}]')
    a('s_nop 1')
    for q in (14,15):
        a(f'v_cndmask_b32 v{vMF+q}, v{vt2}, 0, s[{sTm+2*(q&3)}:{sTm+1+2*(q&3)}]')
        a(f'v_cndmask_b32 v{vML+q}, 0, v{vt2}, s[{sTm+2*(q&3)}:{sTm+1+2*(q&3)}]')
    a(f's_cmp_lg_u32 s{sJ}, 0')
    a('s_cbranch_scc1 L_mf_ok')
    for r in range(16): a(f'v_mov_b32 v{vMF+r}, v{vt2}')
    a.lab('L_mf_ok')
    def vinit():
        a(f'v_cmp_eq_u32 s[{sTm}:{sTm+1}], 20, v{vRho}')
        a(f'v_mov_b32 v{vt1}, 0x3f803f80')
        a('s_nop 0')
        a(f'v_cndmask_b32 v{vt1}, 0, v{vt1}, s[{sTm}:{sTm+1}]')
        for i in range(16): a(f'v_mov_b32 v{vV+i}, v{vt1}')
    vinit()
    a(f'v_lshrrev_b32 v{vt1}, 4, v{vKap}')
    a(f'v_mul_u32_u24 v{vt1}, 20480, v{vt1}')
    a(f'v_and_b32 v{vt2}, 15, v{vKap}')
    a(f'v_lshl_add_u32 v{vOoff}, v{vt2}, 4, v{vt1}')
    for r in range(16): a(f'v_mov_b32 v{vOa+r}, 0')
    for r in range(16): a(f'v_mov_b32 v{vOb+r}, 0')
    for i in range(4): a(f'v_mov_b32 v{vP+4+i}, 0')
    a(f's_lshl_b32 s{st0}, s{sWV}, 6')
    a(f'v_add_u32 v{vt0}, s{st0}, v{vLane}')
    a(f'v_mul_u32_u24 v{vt1}, 52429, v{vt0}')
    a(f'v_lshrrev_b32 v{vt1}, 19, v{vt1}')
    a(f'v_mul_u32_u24 v{vt2}, 10, v{vt1}')
    a(f'v_sub_u32 v{vCc}, v{vt0}, v{vt2}')
    a(f'v_mul_u32_u24 v{vt1}, 1280, v{vt1}')
    a(f'v_lshl_add_u32 v{vWo}, v{vCc}, 4, v{vt1}')
    a(f's_and_b32 s{sWn}, s{sHD}, 7')
    a(f's_mul_i32 s{sWn}, s{sWn}, 160')
    a('s_waitcnt lgkmcnt(0)')
    a(f's_cmp_lt_u32 s{sHD}, 16')
    a('s_cselect_b64 s[50:51], s[50:51], s[52:53]')
    srd(a,sWo,50,51,640*1280)
    p.stamp(5)
    a(f's_cmp_lg_u32 s{sWV}, 4')
    a('s_cbranch_scc1 L_p2_go')
    a(f's_mul_i32 s{st0}, s{sHD}, 20')
    a(f's_lshr_b32 s{st1}, s{st0}, 7')
    a(f's_add_u32 s{st0}, s{st0}, 19')
    a(f's_lshr_b32 s{st0}, s{st0}, 7')
    a(f's_sub_u32 s{st0}, s{st0}, s{st1}')
    a(f'v_lshrrev_b32 v{vt0}, 4, v{vLane}')
    a(f'v_min_u32 v{vt0}, 2, v{vt0}')
    a(f'v_mul_u32_u24 v{vt0}, 5, v{vt0}')
    a(f'v_bfe_u32 v{vt1}, v{vLane}, 3, 1')
    a(f'v_mul_u32_u24 v{vt1}, s{st0}, v{vt1}')
    a(f'v_add3_u32 v{vt0}, v{vt0}, v{vt1}, s{st1}')
    a(f'v_lshlrev_b32 v{vt0}, 10, v{vt0}')
    a(f'v_and_b32 v{vt1}, 7, v{vLane}')
    a(f'v_lshl_add_u32 v{vt0}, v{vt1}, 7, v{vt0}')
    a(f'v_add_u32 v{vt0}, {WS_FLG}, v{vt0}')
    a(f'v_add_u32 v{vt5}, {15*1024}, v{vt0}')
    poll2(a,'p2',vt0,vt5,(1<<48)-1)
    a.lab('L_p2_go')
    a('s_barrier')
    p.stamp(6)

    def rd_k1(dst,off):
        assert off%512==0 and off//512+1<256
        a(f'ds_read2st64_b64 {vr(dst,4)}, v{vK1a} offset0:{off//512} offset1:{off//512+1}')
    def rd_k2(dst,off): a(f'ds_read_b64 {vr(dst,2)}, v{vK2a} offset:{off}')
    def rd_v(buf,off):
        a(f's_mov_b64 exec, s[{sVm}:{sVm+1}]')
        a(f'ds_read_b128 {vr(vV+8*buf,4)}, v{vVa} offset:{off}')
        a(f'ds_read_b128 {vr(vV+8*buf+4,4)}, v{vVb} offset:{off}')
        a('s_mov_b64 exec, -1')
    def qk1(S,C,Q1,K=None): a(f'v_mfma_f32_32x32x16_bf16 {vr(S,16)}, {vr(vK1 if K is None else K,4)}, {vr(Q1,4)}, {C}')
    def qk2(S,Q2,K=None): a(f'v_mfma_f32_32x32x8bf16_1k {vr(S,16)}, {vr(vK2 if K is None else K,2)}, {vr(Q2,2)}, {vr(S,16)}')
    def pv(O,buf,t): a(f'v_mfma_f32_32x32x16_bf16 {vr(O,16)}, {vr(vV+8*buf+4*t,4)}, {vr(vP+4*t,4)}, {vr(O,16)}')
    def ex(S,r): a(f'v_exp_f32 v{S+r}, v{S+r}')
    def cv(S,c): a(f'v_cvt_pk_bf16_f32 v{vP+c}, v{S+2*c}, v{S+2*c+1}')
    def rowmax(M,S,first):
        if first:
            a(f'v_max3_f32 v{M}, v{S}, v{S+1}, v{S+2}'); rest=list(range(3,16))
        else: rest=list(range(16))
        while len(rest)>=2:
            a(f'v_max3_f32 v{M}, v{M}, v{S+rest[0]}, v{S+rest[1]}'); rest=rest[2:]
        if rest: a(f'v_max_f32 v{M}, v{M}, v{S+rest[0]}')
    def xhalf_max(M):
        a(f'v_mov_b32 v{vt1}, v{M}')
        a('s_nop 1')
        a(f'v_permlane32_swap_b32 v{M}, v{vt1}')
        a('s_nop 1')
        a(f'v_max_f32 v{M}, v{M}, v{vt1}')
    def get_l():
        a(f'v_mov_b32 v{vt1}, v{vOa+8}')
        a(f'v_mov_b32 v{vt2}, v{vOa+8}')
        a('s_nop 1')
        a(f'v_permlane32_swap_b32 v{vt1}, v{vt2}')
        a('s_nop 1')
    def store_o(soff):
        a(f'v_rcp_f32 v{vt3}, v{vt2}')
        a(f's_mul_i32 s{st0}, s{sHD}, 5')
        a(f'v_lshrrev_b32 v{vt0}, 5, v{vLane}')
        for i in range(12): a(f'v_mul_f32 v{vOa+i}, v{vOa+i}, v{vt3}')
        for i in range(6): a(f'v_cvt_pk_bf16_f32 v{vSa+i}, v{vOa+2*i}, v{vOa+2*i+1}')
        for k,qb in enumerate((0,2,4)):
            a(f'v_add_u32 v{vt4}, s{st0}, v{vt0}')
            if qb: a(f'v_add_u32 v{vt4}, {qb}, v{vt4}')
            a(f'v_lshrrev_b32 v{vt5}, 3, v{vt4}')
            a(f'v_lshlrev_b32 v{vt5}, 10, v{vt5}')
            a(f'v_and_b32 v{vt1}, 3, v{vt4}')
            a(f'v_lshl_add_u32 v{vt5}, v{vt1}, 8, v{vt5}')
            a(f'v_bfe_u32 v{vt1}, v{vt4}, 2, 1')
            a(f'v_lshl_add_u32 v{vt5}, v{vt1}, 3, v{vt5}')
            a(f'v_add_u32 v{vt5}, v{vt5}, v{vOoff}')
            if k==2: a(f's_mov_b64 exec, s[{sLo}:{sLo+1}]')
            a(f'buffer_store_dwordx2 {vr(vSa+2*k,2)}, v{vt5}, s[{sOo}:{sOo+3}], s{soff} offen {SC}')
            if k==2: a('s_mov_b64 exec, -1')
    def addr_add(s):
        for r in (vK1a,vK2a,vVa,vVb): a(f'v_add_u32 v{r}, s{s}, v{r}')
    def addr_addi(imm):
        for r in (vK1a,vK2a,vVa,vVb): a(f'v_add_u32 v{r}, {imm}, v{r}')
    def wrapinc(s):
        a(f's_add_u32 s{s}, s{s}, 8192')
        a(f's_cmp_eq_u32 s{s}, 163840')
        a(f's_cselect_b32 s{s}, 0, s{s}')
    def dma_pair():
        a(f's_add_u32 s{st0}, s{sHBw}, s{sOl}')
        a(f's_mov_b32 m0, s{sLl}')
        a(f's_add_u32 s{st1}, s{sHBw}, s{sOh}')
        a(f'buffer_load_dwordx4 v{vDma}, s[{sR}:{sR+3}], s{st0} offen {SL} lds')
        a(f's_add_u32 m0, s{sLl}, {HALF}')
        wrapinc(sOl)
        a(f'buffer_load_dwordx4 v{vDma}, s[{sR}:{sR+3}], s{st1} offen {SL} lds')
        wrapinc(sOh)
        a(f's_add_u32 s{sLl}, s{sLl}, 8192')
    def prio_switch(phase,L):
        a(f's_cmp_lt_u32 s{sWV}, 4')
        a(f's_cbranch_scc{1-phase} {L}_hi')
        a('s_setprio 0')
        a(f's_branch {L}_d')
        a.lab(f'{L}_hi')
        a('s_setprio 1')
        a.lab(f'{L}_d')
    def expgroups(cur,A_,B_,C_,D_):
        A_()
        for r in range(0,4): ex(cur,r)
        B_()
        ex(cur,4); ex(cur,5); cv(cur,0); ex(cur,6); cv(cur,1); ex(cur,7)
        C_()
        ex(cur,8); cv(cur,2); ex(cur,9); cv(cur,3); ex(cur,10); ex(cur,11)
        D_()
        ex(cur,12); ex(cur,13); cv(cur,4); ex(cur,14); cv(cur,5); ex(cur,15); cv(cur,6); cv(cur,7)

    dma_pair()
    a(f'buffer_load_dwordx2 {vr(vQa1,2)}, v{vQ1o}, s[{sR}:{sR+3}], s54 offen {SL}'); a(f'buffer_load_dwordx2 {vr(vQa1+2,2)}, v{vQ1o}, s[{sR}:{sR+3}], s54 offen offset:512 {SL}')
    a(f'buffer_load_dwordx2 {vr(vQa2,2)}, v{vQ2o}, s[{sR}:{sR+3}], s54 offen {SL}')
    a(f'buffer_load_dwordx2 {vr(vQb1,2)}, v{vQ1o}, s[{sR}:{sR+3}], s55 offen {SL}'); a(f'buffer_load_dwordx2 {vr(vQb1+2,2)}, v{vQ1o}, s[{sR}:{sR+3}], s55 offen offset:512 {SL}')
    a(f'buffer_load_dwordx2 {vr(vQb2,2)}, v{vQ2o}, s[{sR}:{sR+3}], s55 offen {SL}')
    dma_pair()
    a('s_waitcnt vmcnt(2)')
    a('s_barrier')
    p.stamp(7)
    rd_k1(vK1,0); rd_k2(vK2,0)
    a('s_waitcnt lgkmcnt(0)')
    qk1(vSa,'0',vQa1); qk2(vSa,vQa2)
    qk1(vSb,'0',vQb1); qk2(vSb,vQb2)
    a(f's_mul_i32 s{st0}, s{sKH}, {HALF}')
    addr_add(st0)
    rd_k1(vK1,0); rd_k2(vK2,0); rd_v(0,0)
    a('s_nop 7')
    rowmax(vM,vSa,True)
    rowmax(vMb,vSb,True)
    xhalf_max(vM); xhalf_max(vMb)
    for r in range(16): a(f'v_sub_f32 v{vCa+r}, 0, v{vM}')
    for r in range(16): a(f'v_sub_f32 v{vCb+r}, 0, v{vMb}')
    a('s_waitcnt lgkmcnt(0)')
    qk1(vSa,vr(vCa,16),vQa1); qk2(vSa,vQa2)
    a(f's_mov_b32 s{sIT}, 0')
    a.lab('L_b_loop')
    def cond(it,L,fn,op='lg'):
        a(f's_cmp_{op}_u32 s{sIT}, {it}'); a(f's_cbranch_scc1 {L}'); fn(); a.lab(L)
    def arow(r):
        a(f's_lshl_b32 s{st1}, s{sWV}, 10')
        a(f's_add_u32 m0, s{st1}, {r*8192}')
        a(f's_add_u32 s{st0}, s{sAg}, {r*8192}')
        a(f'buffer_load_dwordx4 v{vDma}, s[{sR}:{sR+3}], s{st0} offen {SL} lds')
    for pp in range(8):
        off=pp*TILE
        def h0(pp=pp):
            if pp==2: a('s_waitcnt vmcnt(4)'); a('s_barrier')
            if pp==5: a('s_waitcnt vmcnt(6)'); a('s_barrier')
            dma_pair()
        cond(0,f'L_h0_{pp}',h0)
        if pp==3: cond(1,'L_h1_3',lambda: (a('s_waitcnt vmcnt(0)'),a('s_barrier')))
        if 1<=pp<=5:
            def h2(pp=pp):
                if pp==1: a('s_barrier')
                arow(pp-1)
            cond(2,f'L_h2_{pp}',h2)
        if pp==6:
            cond(2,'L_h2_6',lambda: (a(f'buffer_load_dwordx2 {vr(vQA1,2)}, v{vQ1o}, s[{sR}:{sR+3}], s{sQA} offen {SL}'),
                                     a(f'buffer_load_dwordx2 {vr(vQA1+2,2)}, v{vQ1o}, s[{sR}:{sR+3}], s{sQA} offen offset:512 {SL}'),
                                     a(f'buffer_load_dwordx2 {vr(vQA2,2)}, v{vQ2o}, s[{sR}:{sR+3}], s{sQA} offen {SL}')))
        if pp==5: cond(3,'L_h3_5',lambda: a('s_barrier'))
        if PRIO and pp%PRIO==0: prio_switch((pp//PRIO)&1,f'L_pr{pp}')
        lastt=(pp==7)
        def G(fn,L):
            if lastt:
                a(f's_cmp_eq_u32 s{sIT}, 3'); a(f's_cbranch_scc1 {L}'); fn(); a.lab(L)
            else: fn()
        expgroups(vSa,
            lambda: (qk1(vSb,vr(vCb,16),vQb1), G(lambda: rd_k1(vK1,off+TILE),'L_ga1')),
            lambda: (pv(vOb,(pp+1)&1,1), G(lambda: rd_v((pp+1)&1,off+TILE),'L_ga2')),
            lambda: (qk2(vSb,vQb2), G(lambda: rd_k2(vK2,off+TILE),'L_ga3')),
            lambda: pv(vOa,pp&1,0))
        a('s_waitcnt lgkmcnt(0)')
        expgroups(vSb,
            lambda: G(lambda: qk1(vSa,vr(vCa,16),vQa1),'L_gb1'),
            lambda: pv(vOa,pp&1,1),
            lambda: G(lambda: qk2(vSa,vQa2),'L_gb2'),
            lambda: pv(vOb,pp&1,0))
    addr_addi(8*TILE)
    a(f's_add_u32 s{sIT}, s{sIT}, 1')
    a(f's_cmp_lt_u32 s{sIT}, 4')
    a('s_cbranch_scc1 L_b_loop')
    a('s_nop 1')
    pv(vOb,1,1)
    a('s_setprio 0')
    a('s_nop 15')
    p.stamp(8)
    a(f's_lshl_b32 s{st0}, s{sQP}, 1')
    a(f's_cmp_eq_u32 s{sKH}, 0')
    a('s_cbranch_scc0 L_mg_hi')
    a(f's_add_u32 s{st1}, s{st0}, 1')
    a(f's_mul_i32 s{st1}, s{st1}, 3072')
    a(f's_add_u32 s{st1}, s{st1}, {SCR}')
    a(f'v_add_u32 v{vt4}, s{st1}, v{vDma}')
    for i in range(3): a(f'ds_write_b128 v{vt4}, {vr(vOb+4*i,4)} offset:{1024*i}')
    a(f's_mul_i32 s{st1}, s{st0}, 3072')
    a('s_branch L_mg_d')
    a.lab('L_mg_hi')
    a(f's_mul_i32 s{st1}, s{st0}, 3072')
    a(f's_add_u32 s{st1}, s{st1}, {SCR}')
    a(f'v_add_u32 v{vt4}, s{st1}, v{vDma}')
    for i in range(3): a(f'ds_write_b128 v{vt4}, {vr(vOa+4*i,4)} offset:{1024*i}')
    for i in range(12): a(f'v_mov_b32 v{vOa+i}, v{vOb+i}')
    for i in range(4): a(f'v_mov_b32 v{vQa1+i}, v{vQb1+i}')
    for i in range(2): a(f'v_mov_b32 v{vQa2+i}, v{vQb2+i}')
    a(f's_add_u32 s{st1}, s{st0}, 1')
    a(f's_mul_i32 s{st1}, s{st1}, 3072')
    a.lab('L_mg_d')
    a(f's_add_u32 s{st1}, s{st1}, {SCR}')
    a(f'v_add_u32 v{vt4}, s{st1}, v{vDma}')
    a('s_waitcnt lgkmcnt(0) vmcnt(0)')
    a('s_barrier')
    for i in range(3): a(f'ds_read_b128 {vr(vSa+4*i,4)}, v{vt4} offset:{1024*i}')
    a('s_waitcnt lgkmcnt(0)')
    a('s_barrier')
    for i in range(12): a(f'v_add_f32 v{vOa+i}, v{vOa+i}, v{vSa+i}')
    get_l()
    a(f'v_mov_b32 v{vt3}, {f32bits(2.0**100):#x}')
    a(f'v_cmp_nlt_f32 vcc, v{vt2}, v{vt3}')
    a('s_nop 4')
    a('s_cbranch_vccnz L_b_fallback')
    a.lab('L_b_store')
    store_o(sOB)
    p.stamp(9)
    a(f's_mul_i32 s{st0}, s{sWV}, {TILE}')
    a(f's_mul_i32 s{st1}, s{sKH}, {HALF}')
    a(f's_sub_u32 s{st0}, s{st0}, s{st1}')
    a(f's_sub_u32 s{st0}, s{st0}, {32*TILE}')
    addr_add(st0)
    for i in range(4): a(f'v_mov_b32 v{vQa1+i}, v{vQA1+i}')
    for i in range(2): a(f'v_mov_b32 v{vQa2+i}, v{vQA2+i}')
    a(f's_sub_u32 s{sSw}, 8, s{sWV}')
    a(f's_cmp_lg_u32 s{sJ}, 0')
    a(f's_cselect_b32 s{sSw}, 0, s{sSw}')
    vC=vCa; vO=vOa; vS=[vSa,vSb]
    KR=[(vV,vV+4),(vV+8,vV+12),(vP,vP+4)]
    SB=[vSa,vSb,vOa]
    def cmid_init(tag,val):
        a(f's_cmp_le_u32 s{sSw}, 1')
        a(f's_cbranch_scc1 L_cm_{tag}_v')
        for r in range(16): a(f'v_mov_b32 v{vC+r}, {NEG_BIG:#x}')
        a(f's_branch L_cm_{tag}_d')
        a.lab(f'L_cm_{tag}_v')
        for r in range(16): a(f'v_mov_b32 v{vC+r}, {val}')
        a.lab(f'L_cm_{tag}_d')
    def cmid_switch(tag,t,val):
        a(f's_cmp_lg_u32 s{sSw}, {t}')
        a(f's_cbranch_scc1 L_sw_{tag}_{t}')
        a('s_nop 15')
        for r in range(16): a(f'v_mov_b32 v{vC+r}, {val}')
        a('s_nop 1')
        a.lab(f'L_sw_{tag}_{t}')
    wocnt=[0]
    def wo_dma():
        m=wocnt[0]; wocnt[0]+=1
        a(f's_lshl_b32 s{st1}, s{sWV}, 10')
        a(f's_add_u32 m0, s{st1}, {WOFF+m*8192}')
        a(f'buffer_load_dwordx4 v{vWo}, s[{sWo}:{sWo+3}], s{sWn} offen lds')
        if m<12:
            a(f'v_add_u32 v{vCc}, 2, v{vCc}')
            a(f'v_cmp_le_u32 s[{sTm}:{sTm+1}], 10, v{vCc}')
            a(f'v_add_u32 v{vWo}, {51*1280+32}, v{vWo}')
            a(f'v_add_u32 v{vt4}, {1280-160}, v{vWo}')
            a(f'v_subrev_u32 v{vt5}, 10, v{vCc}')
            a(f'v_cndmask_b32 v{vWo}, v{vWo}, v{vt4}, s[{sTm}:{sTm+1}]')
            a(f'v_cndmask_b32 v{vCc}, v{vCc}, v{vt5}, s[{sTm}:{sTm+1}]')
    cmid_init('p1','0')
    for i in range(3):
        rd_k1(KR[i][0],i*TILE); rd_k2(KR[i][1],i*TILE)
    for b in range(3):
        a('s_waitcnt lgkmcnt(0)')
        for i in range(3):
            t=3*b+i
            if 2<=t<=7: cmid_switch('p1',t,'0')
            C = vr(vMF,16) if t==0 else (vr(vML,16) if t==8 else vr(vC,16))
            qk1(SB[i],C,vQa1,KR[i][0]); qk2(SB[i],vQa2,KR[i][1])
        if b<2:
            for i in range(3):
                t=3*(b+1)+i
                rd_k1(KR[i][0],t*TILE); rd_k2(KR[i][1],t*TILE)
        if b==2:
            rd_k1(vK1,0); rd_k2(vK2,0)
        wo_dma()
        a('s_nop 3')
        for i in range(3):
            if i==2: a('s_nop 3')
            rowmax(vM,SB[i],b==0 and i==0)
    xhalf_max(vM)
    a(f'v_sub_f32 v{vM}, 0, v{vM}')
    for r in range(16): a(f'v_add_f32 v{vMF+r}, v{vMF+r}, v{vM}')
    for r in range(16): a(f'v_add_f32 v{vML+r}, v{vML+r}, v{vM}')
    cmid_init('p2',f'v{vM}')
    for r in range(16): a(f'v_mov_b32 v{vO+r}, 0')
    vinit()
    for i in range(4): a(f'v_mov_b32 v{vP+4+i}, 0')
    a('s_waitcnt lgkmcnt(0)')
    qk1(vS[0],vr(vMF,16),vQa1); qk2(vS[0],vQa2)
    rd_k1(vK1,TILE); rd_v(0,0); rd_k2(vK2,TILE)
    for t in range(9):
        last=(t==8); last2=(t==7); tn=t+1
        cur=vS[t&1]; nxt=vS[(t+1)&1]; off=t*TILE
        Cn = vr(vML,16) if tn==8 else vr(vC,16)
        a('s_waitcnt lgkmcnt(0)')
        if 2<=tn<=7: cmid_switch('p2',tn,f'v{vM}')
        if PRIO and t%PRIO==0: prio_switch((t//PRIO)&1,f'L_apr{t}')
        wo_dma()
        if t==0: wo_dma()
        def A_():
            if not last: qk1(nxt,Cn,vQa1)
            if not last and not last2: rd_k1(vK1,off+2*TILE)
        def B_():
            pv(vO,(t+1)&1,1)
            if not last: rd_v((t+1)&1,off+TILE)
        def C_():
            if not last: qk2(nxt,vQa2)
            if not last and not last2: rd_k2(vK2,off+2*TILE)
        expgroups(cur,A_,B_,C_,lambda: pv(vO,t&1,0))
    assert wocnt[0]==13
    a('s_nop 1')
    pv(vO,0,1)
    a('s_setprio 0')
    a('s_nop 15')
    get_l()
    store_o(sOA)
    p.stamp(10)
    a('s_waitcnt vmcnt(0)')
    a('s_barrier')
    p.stamp(11)
    a(f's_cmp_lg_u32 s{sWV}, 4')
    a('s_cbranch_scc1 L_p3')
    a(f's_lshl_b32 s{st0}, s{sJ}, 5')
    a(f's_add_u32 s{st0}, s{st0}, s{sHD}')
    a(f's_lshl_b32 s{st0}, s{st0}, 7')
    a(f's_add_u32 s{st0}, s{st0}, 32768')
    setflag(a,st0)
    a(f's_lshl_b32 s{st0}, s{sJ}, 12')
    a(f's_add_u32 s{st0}, s{st0}, {WS_FLG+32768}')
    a(f'v_and_b32 v{vt0}, 31, v{vLane}')
    a(f'v_lshlrev_b32 v{vt0}, 7, v{vt0}')
    a(f'v_add_u32 v{vt0}, s{st0}, v{vt0}')
    poll(a,'p3',vt0,[0],(1<<32)-1)
    a('s_barrier')
    a('s_branch L_done')
    a.lab('L_b_fallback')
    a(f'v_lshlrev_b32 v{vt4}, 3, v{vRho}')
    a(f'v_add_u32 v{vt4}, 1024, v{vt4}')
    a(f'v_lshrrev_b32 v{vt0}, 5, v{vLane}')
    a(f'v_bfe_u32 v{vt5}, v{vRho}, 2, 2')
    a(f'v_xor_b32 v{vt5}, v{vt5}, v{vt0}')
    a(f'v_lshlrev_b32 v{vt5}, 4, v{vt5}')
    a(f'v_lshl_add_u32 v{vt5}, v{vRho}, 6, v{vt5}')
    a(f'v_add_u32 v{vt5}, 1280, v{vt5}')
    a(f'v_xor_b32 v{vt0}, 32, v{vt5}')
    a(f'v_mov_b32 v{vM}, {NEG_BIG:#x}')
    a(f's_mov_b32 s{st0}, s{sHB}')
    a(f's_mov_b32 s{sIT}, 64')
    a.lab('L_fb_p1')
    a(f'buffer_load_dwordx2 {vr(vK1,2)}, v{vQ1o}, s[{sR}:{sR+3}], s{st0} offen {SL}')
    a(f'buffer_load_dwordx2 {vr(vK1+2,2)}, v{vQ1o}, s[{sR}:{sR+3}], s{st0} offen offset:512 {SL}')
    a(f'buffer_load_dwordx2 {vr(vK2,2)}, v{vt4}, s[{sR}:{sR+3}], s{st0} offen {SL}')
    a('s_waitcnt vmcnt(0)')
    qk1(vSa,'0',vQa1); qk2(vSa,vQa2)
    a('s_nop 15')
    rowmax(vM,vSa,False)
    a(f's_add_u32 s{st0}, s{st0}, {TILE}')
    a(f's_sub_u32 s{sIT}, s{sIT}, 1')
    a(f's_cmp_lg_u32 s{sIT}, 0')
    a('s_cbranch_scc1 L_fb_p1')
    xhalf_max(vM)
    for r in range(16): a(f'v_sub_f32 v{vCa+r}, 0, v{vM}')
    for r in range(16): a(f'v_mov_b32 v{vOa+r}, 0')
    a(f's_mov_b32 s{st0}, s{sHB}')
    a(f's_mov_b32 s{sIT}, 64')
    a.lab('L_fb_p2')
    a(f'buffer_load_dwordx2 {vr(vK1,2)}, v{vQ1o}, s[{sR}:{sR+3}], s{st0} offen {SL}')
    a(f'buffer_load_dwordx2 {vr(vK1+2,2)}, v{vQ1o}, s[{sR}:{sR+3}], s{st0} offen offset:512 {SL}')
    a(f'buffer_load_dwordx2 {vr(vK2,2)}, v{vt4}, s[{sR}:{sR+3}], s{st0} offen {SL}')
    a(f's_mov_b64 exec, s[{sVm}:{sVm+1}]')
    a(f'buffer_load_dwordx4 {vr(vV,4)}, v{vt5}, s[{sR}:{sR+3}], s{st0} offen {SL}')
    a(f'buffer_load_dwordx4 {vr(vV+4,4)}, v{vt0}, s[{sR}:{sR+3}], s{st0} offen {SL}')
    a('s_mov_b64 exec, -1')
    a('s_waitcnt vmcnt(0)')
    qk1(vSa,vr(vCa,16),vQa1); qk2(vSa,vQa2)
    a('s_nop 15')
    for r in range(16): ex(vSa,r)
    a('s_nop 0')
    for c in range(8): cv(vSa,c)
    a('s_nop 1')
    pv(vOa,0,0); pv(vOa,0,1)
    a(f's_add_u32 s{st0}, s{st0}, {TILE}')
    a(f's_sub_u32 s{sIT}, s{sIT}, 1')
    a(f's_cmp_lg_u32 s{sIT}, 0')
    a('s_cbranch_scc1 L_fb_p2')
    a('s_nop 15')
    get_l()
    a('s_branch L_b_store')
    return vEnd, dict(sHD=sHD,sJ=sJ)

def phase3(a,p,info):
    WOFF=40960; NPH=5; spp=4
    sHD,sJ=info['sHD'],info['sJ']
    sX,sO=4,8
    st0,st1,st2,st3=20,21,22,23
    sPH=28; sBR=29; sMT=30; sNT=31; sNeed=39
    vLane=1; vXo=2; vt0=4; vt1=5; vt2=6; vt3=7; vTok=8; vG=9; vTr=10; vOut=11; vTp=12
    vX=16; vWf=vX+160; vAcc=vWf+40; vEnd=vAcc+40
    a.lab('L_p3')
    a(f's_cmp_ge_u32 s{sWV}, 4')
    a('s_cbranch_scc1 L_done')
    a('s_load_dwordx2 s[50:51], s[0:1], 48')
    a(f's_lshr_b32 s{sBR}, s{sHD}, 4')
    a(f's_bfe_u32 s{st0}, s{sHD}, 0x10003')
    a(f's_lshl_b32 s{sMT}, s{sJ}, 1')
    a(f's_add_u32 s{sMT}, s{sMT}, s{st0}')
    a(f's_and_b32 s{sNT}, s{sHD}, 7')
    a(f's_and_b32 s{sPH}, s{sHD}, 3')
    a(f'v_and_b32 v{vTok}, 15, v{vLane}')
    a(f'v_lshrrev_b32 v{vG}, 4, v{vLane}')
    a(f'v_lshlrev_b32 v{vXo}, 4, v{vLane}')
    a(f's_lshl_b32 s{st0}, s{sMT}, 3')
    a(f's_lshl_b32 s{st1}, s{sWV}, 1')
    a(f's_add_u32 s{st0}, s{st0}, s{st1}')
    a(f's_mul_i32 s32, s{st0}, 20480')
    a(f's_mul_i32 s{st0}, s{sBR}, {2048*1280}')
    a(f's_add_u32 s{st0}, s{st0}, {WS_O}')
    a(f's_add_u32 s52, s{sWS}, s{st0}')
    a(f's_addc_u32 s53, s{sWS+1}, 0')
    srd(a,sX,52,53,2048*1280)
    a(f'v_bfe_u32 v{vt0}, v{vLane}, 2, 2')
    a(f'v_lshl_add_u32 v{vt0}, v{vG}, 2, v{vt0}')
    a(f'v_mul_u32_u24 v{vt0}, 160, v{vt0}')
    a(f'v_and_b32 v{vt1}, 3, v{vLane}')
    a(f'v_lshl_add_u32 v{vTr}, v{vt1}, 3, v{vt0}')
    a(f'v_add_u32 v{vTr}, {WOFF}, v{vTr}')
    for i in range(40): a(f'v_mov_b32 v{vAcc+i}, 0')
    a(f's_lshl_b32 s{st0}, s{sMT}, 7')
    a(f's_lshl_b32 s{st1}, s{sWV}, 5')
    a(f's_add_u32 s{st0}, s{st0}, s{st1}')
    a(f'v_add_u32 v{vt0}, s{st0}, v{vTok}')
    a(f'v_mul_u32_u24 v{vt0}, 2560, v{vt0}')
    a(f'v_and_b32 v{vt1}, 1, v{vG}')
    a(f'v_lshlrev_b32 v{vt1}, 5, v{vt1}')
    a(f'v_lshrrev_b32 v{vt2}, 1, v{vG}')
    a(f'v_lshl_add_u32 v{vt1}, v{vt2}, 4, v{vt1}')
    a(f'v_add_u32 v{vOut}, v{vt0}, v{vt1}')
    a(f'v_lshl_add_u32 v{vt3}, v{vG}, 3, v{vt0}')
    a('s_barrier')
    p.stamp(12)
    a(f's_mov_b32 s33, s{sPH}')
    for ph in range(NPH):
        a(f's_mul_i32 s{st0}, s33, {spp*1024}')
        a(f's_add_u32 s34, s32, s{st0}')
        a(f's_add_u32 s35, s34, 20480')
        for s_ in range(spp):
            st=ph*spp+s_
            for u in range(2):
                a(f'buffer_load_dwordx4 {vr(vX+(st*2+u)*4,4)}, v{vXo}, s[{sX}:{sX+3}], s{34+u} offen offset:{s_*1024} {SL}')
        a('s_add_u32 s33, s33, 1')
        a(f's_cmp_eq_u32 s33, {NPH}')
        a('s_cselect_b32 s33, 0, s33')
    a('s_waitcnt lgkmcnt(0)')
    srd(a,sO,50,51,2048*2560)
    def trr(s,cp,h):
        s_=s%spp
        buf=vWf+(s&1)*20+cp*4+2*h
        return f'ds_read_b64_tr_b16 {vr(buf,2)}, v{vTp+((s//spp)&1)} offset:{s_*5120+cp*32+h*2560}'
    def setp(ph):
        a(f's_mul_i32 s{st0}, s{sPH}, {spp*5120}')
        a(f'v_add_u32 v{vTp+(ph&1)}, s{st0}, v{vTr}')
        a(f's_add_u32 s{sPH}, s{sPH}, 1')
        a(f's_cmp_eq_u32 s{sPH}, {NPH}')
        a(f's_cselect_b32 s{sPH}, 0, s{sPH}')
    setp(0)
    for cp in range(5):
        a(trr(0,cp,0)); a(trr(0,cp,1))
    for s in range(20):
        if s%spp==0 and s//spp+1<NPH: setp(s//spp+1)
        nxt=[trr(s+1,cp,h) for cp in range(5) for h in range(2)] if s+1<20 else []
        buf=vWf+(s&1)*20
        a(f's_waitcnt lgkmcnt(0) vmcnt({2*(19-s)})')
        for cp in range(5):
            for u in range(2):
                ac=vAcc+(cp*2+u)*4
                a(f'v_mfma_f32_16x16x32_bf16 {vr(ac,4)}, {vr(buf+cp*4,4)}, {vr(vX+(s*2+u)*4,4)}, {vr(ac,4)}')
                if nxt: a(nxt.pop(0))
    a('s_nop 7')
    p.stamp(13)
    a(f's_mul_i32 s{st0}, s{sBR}, 1280')
    a(f's_mul_i32 s{st1}, s{sNT}, 160')
    a(f's_add_u32 s{st0}, s{st0}, s{st1}')
    a(f's_add_u32 s{st1}, s{st0}, {16*2560}')
    for u in range(2):
        for cp in range(5):
            b=vAcc+(cp*2+u)*4
            a(f'v_cvt_pk_bf16_f32 v{b}, v{b}, v{b+1}')
            a(f'v_cvt_pk_bf16_f32 v{b+1}, v{b+2}, v{b+3}')
        for cp in (0,2):
            b=vAcc+(cp*2+u)*4; b2=vAcc+((cp+1)*2+u)*4
            a(f'v_mov_b32 v{b+2}, v{b2}')
            a(f'v_mov_b32 v{b+3}, v{b2+1}')
            a('s_nop 1')
            a(f'v_permlane16_swap_b32 v{b}, v{b+2}')
            a(f'v_permlane16_swap_b32 v{b+1}, v{b+3}')
            a('s_nop 1')
            a(f'buffer_store_dwordx4 {vr(b,4)}, v{vOut}, s[{sO}:{sO+3}], s{st0+u} offen offset:{cp*32}')
        b=vAcc+(4*2+u)*4
        a(f'buffer_store_dwordx2 {vr(b,2)}, v{vt3}, s[{sO}:{sO+3}], s{st0+u} offen offset:128')
    return vEnd

def build(**kw):
    a=A(); p=Prof(a)
    a.raw(f'.globl {KNAME}'); a.raw('.p2align 8'); a.raw(f'.type {KNAME},@function'); a.lab(KNAME)
    a('s_cmp_ge_u32 s2, 256')
    a('s_cbranch_scc1 L_exit')
    p.real(0); p.stamp(0)
    a(f's_load_dwordx4 s[{sDBG}:{sDBG+3}], s[0:1], 56' if False else f's_load_dwordx2 s[{sDBG}:{sDBG+1}], s[0:1], 56')
    a(f's_load_dwordx2 s[{sWS}:{sWS+1}], s[0:1], 64')
    a('s_load_dwordx4 s[16:19], s[0:1], 0')
    a('s_load_dwordx4 s[20:23], s[0:1], 24')
    a(f's_mov_b32 s{sWG}, s2')
    a('v_lshrrev_b32 v2, 6, v0')
    a('s_nop 0')
    a(f'v_readfirstlane_b32 s{sWV}, v2')
    a(f's_cmp_lg_u32 s{sWG}, 0')
    a('s_cbranch_scc1 L_notok')
    a(f's_cmp_lg_u32 s{sWV}, 4')
    a('s_cbranch_scc1 L_notok')
    a('s_memrealtime s[56:57]')
    a('s_waitcnt lgkmcnt(0)')
    a('s_or_b32 s56, s56, 1')
    a('s_mov_b64 exec, 1')
    a('v_mov_b32 v2, 0')
    a('v_mov_b32 v3, s56')
    a(f'global_store_dword v2, v3, s[{sDBG}:{sDBG+1}] sc1')
    a('s_mov_b64 exec, -1')
    a.lab('L_notok')
    v1=phase1(a,p,**kw.get('p1',{}))
    v2,info=phase2(a,p,**kw.get('p2',{}))
    v3=phase3(a,p,info)
    a.lab('L_done')
    if PROF:
        a('s_waitcnt vmcnt(0)')
        p.real(1); p.dump()
    a('s_endpgm')
    a.lab('L_exit')
    a('s_endpgm')
    vg=max(v1,v2,v3)
    desc=f'''.section .rodata,"a"
.p2align 6
.amdhsa_kernel {KNAME}
  .amdhsa_next_free_vgpr {vg}
  .amdhsa_next_free_sgpr 102
  .amdhsa_accum_offset {(vg+3)//4*4}
  .amdhsa_group_segment_fixed_size 0
  .amdhsa_kernarg_size 72
  .amdhsa_user_sgpr_count 2
  .amdhsa_user_sgpr_kernarg_segment_ptr 1
  .amdhsa_system_sgpr_workgroup_id_x 1
.end_amdhsa_kernel
'''
    hdr=open('cdna_kernels/'+NAME+'.s.ref').read().split('\n')
    out=[]
    for l in hdr:
        if l.startswith('; @launch'): out.append('; @launch grid=(256,1,1) block=(512,1,1) lds=163840'); continue
        if not l.startswith(';'): break
        out.append(l)
    out.append('.amdgcn_target "amdgcn-amd-amdhsa--gfx950"'); out.append('.text')
    return '\n'.join(out)+'\n'+a.txt()+desc

if __name__=='__main__':
    if len(sys.argv)>2 and sys.argv[2]=='prof': PROF=True
    kw=eval(sys.argv[3]) if len(sys.argv)>3 else {}
    if 'SL' in kw: SL=kw.pop('SL')
    if 'SC' in kw: SC=kw.pop('SC')
    open(sys.argv[1],'w').write(build(**kw))
```

```python
import sys, math, struct
NAME='concat_heads__sliding_block__mha_block__prompt'
KNAME=NAME+'_kernel'
WS_Q=0
WS_KV=2*32*64*1280
WS_O=WS_KV+2*32*64*2560
WS_END=WS_O+2*2048*1280
WS_FLG=WS_END
CSCALE=(20.0**-0.5)*math.log2(math.e)
NEG_BIG=0xf149f2ca
def f32bits(x): return struct.unpack('<I',struct.pack('<f',x))[0]
class A:
    def __init__(s): s.l=[]
    def __call__(s,x): s.l.append('  '+x)
    def lab(s,x): s.l.append(x+':')
    def raw(s,x): s.l.append(x)
    def txt(s): return '\n'.join(s.l)+'\n'
def vr(a,n=1): return f'v{a}' if n==1 else f'v[{a}:{a+n-1}]'
PROF=False
BPROF=False
CPF=True
RT=False
PROF_BASE=32<<20
NST=16
class Prof:
    def __init__(s,a): s.a=a; s.n=0
    def stamp(s,i=None,force=False):
        if not PROF: return
        if BPROF==2 and not force and i not in (0,7,8): return
        if i is None: i=s.n
        s.n=max(s.n,i+1)
        assert i<14
        s.a(f's_memrealtime s[{60+2*i}:{61+2*i}]' if RT else f's_memtime s[{60+2*i}:{61+2*i}]')
    def real(s,idx):
        if PROF: s.a(f's_memrealtime s[{88+2*idx}:{89+2*idx}]')
    def dump(s):
        if not PROF: return
        a=s.a
        a('s_waitcnt lgkmcnt(0) vmcnt(0)')
        a(f's_lshl_b32 s92, s{sWG}, 3')
        a(f's_add_u32 s92, s92, s{sWV}')
        a('s_lshl_b32 s92, s92, 6')
        a(f's_add_u32 s92, s92, {PROF_BASE}')
        a(f's_add_u32 s94, s{sWS}, s92')
        a(f's_addc_u32 s95, s{sWS+1}, 0')
        a('v_mov_b32 v0, 0')
        a('s_mov_b64 exec, 1')
        for i in range(14):
            a(f'v_mov_b32 v1, s{60+2*i}')
            a(f'global_store_dword v0, v1, s[94:95] offset:{4*i}')
        a('v_mov_b32 v1, s88'); a('global_store_dword v0, v1, s[94:95] offset:56')
        a('v_mov_b32 v1, s90'); a('global_store_dword v0, v1, s[94:95] offset:60')
        a('s_waitcnt vmcnt(0)')
sWG=96; sWV=97; sDBG=98; sWS=100; sTOK=59
def srd(a, d, lo, hi, nbytes):
    a(f's_mov_b32 s{d}, s{lo}')
    a(f's_and_b32 s{d+1}, s{hi}, 0xffff')
    a(f's_mov_b32 s{d+2}, {nbytes}')
    a(f's_mov_b32 s{d+3}, 0x20000')

SC='sc1'
SL=''

def phase1(a,p,D=3,SY=1):
    R=3; SLOT=49152; XOFF=16384
    sX,sW,sO=4,8,12
    sBR,sMT,sNT=26,27,28
    sKS=31; sXo=32; sW0=34; sIT=36; sSlot=37; sLW=38; sLX=39; sT=40
    st0,st1,st2,st3=41,42,43,44
    sSec=45; sBase=46; sHS=47; sTS=48; sNx=49; sM=30; sN=33; sLd=29
    vLane=1; vt0=6; vt1=7; vt2=8; vt3=9; vt4=10; vTok=11; vG=12; vRho=13
    vLW=2; vLX=4; vXh=2; vXc1=3
    vB0=14; vBc=19; vBn=24; vAd=29
    vWf=(vAd+8+3)//4*4; vXf=vWf+32; vAcc=vXf+4*(D+1); vEnd=vAcc+128
    assert vEnd<=256 and 16%(D+1)==0
    def wf(step,c): return vWf+(step&1)*16+c*4
    def xf(i): return vXf+(i%(D+1))*4
    def acc(c,mt): return vAcc+(c*8+mt)*4
    a(f'v_and_b32 v{vLane}, 63, v0')
    a(f's_and_b32 s{st0}, s{sWG}, 7')
    a(f's_lshr_b32 s{st1}, s{sWG}, 3')
    a(f's_lshr_b32 s{sBR}, s{st0}, 2')
    a(f's_bfe_u32 s{st2}, s{st0}, 0x10001')
    a(f's_lshl_b32 s{st2}, s{st2}, 2')
    a(f's_and_b32 s{st3}, s{st1}, 3')
    a(f's_add_u32 s{sMT}, s{st2}, s{st3}')
    a(f's_and_b32 s{st2}, s{st0}, 1')
    a(f's_lshl_b32 s{st2}, s{st2}, 3')
    a(f's_lshr_b32 s{st1}, s{st1}, 2')
    a(f's_add_u32 s{sNT}, s{st2}, s{st1}')
    a(f's_cmp_ge_u32 s{sNT}, 15')
    a(f's_cbranch_scc1 L_p1_skip')
    a(f's_cmp_ge_u32 s{sWV}, 4')
    a(f's_cbranch_scc1 L_p1_loader')
    a(f's_and_b32 s{sM}, s{sWV}, 1')
    a(f's_lshr_b32 s{sN}, s{sWV}, 1')
    a(f'v_and_b32 v{vTok}, 15, v{vLane}')
    a(f'v_lshrrev_b32 v{vG}, 4, v{vLane}')
    a(f'v_and_b32 v{vt0}, 3, v{vLane}')
    a(f'v_bfe_u32 v{vt1}, v{vLane}, 2, 2')
    a(f'v_and_b32 v{vt2}, 1, v{vG}')
    a(f'v_lshl_or_b32 v{vt2}, v{vt2}, 2, v{vt1}')
    a(f'v_lshl_add_u32 v{vt3}, v{vG}, 3, v{vt1}')
    a(f'v_lshlrev_b32 v{vt3}, 8, v{vt3}')
    a(f'v_lshl_add_u32 v{vt3}, v{vt0}, 3, v{vt3}')
    a(f's_lshl_b32 s{st0}, s{sN}, 2')
    a(f'v_xor_b32 v{vt2}, s{st0}, v{vt2}')
    for c in range(4):
        a(f'v_xor_b32 v{vt4}, {c}, v{vt2}')
        a(f'v_lshl_add_u32 v{vB0+c}, v{vt4}, 5, v{vt3}')
    a(f'v_lshrrev_b32 v{vt0}, 1, v{vTok}')
    a(f'v_xor_b32 v{vt0}, v{vt0}, v{vG}')
    a(f'v_lshlrev_b32 v{vt0}, 4, v{vt0}')
    a(f'v_lshl_add_u32 v{vt0}, v{vTok}, 7, v{vt0}')
    a(f's_lshl_b32 s{st0}, s{sM}, 14')
    a(f's_add_u32 s{st0}, s{st0}, {XOFF}')
    a(f'v_add_u32 v{vB0+4}, s{st0}, v{vt0}')
    a(f'v_xor_b32 v{vXh}, 64, v{vt0}')
    a(f'v_sub_u32 v{vXh}, v{vXh}, v{vt0}')
    for i in range(5): a(f'v_mov_b32 v{vBc+i}, v{vB0+i}')
    for i in range(128): a(f'v_mov_b32 v{vAcc+i}, 0')
    a(f's_mul_i32 s{sSec}, s{sNT}, 52')
    a(f's_lshr_b32 s{sSec}, s{sSec}, 8')
    a(f's_mul_i32 s{st0}, s{sSec}, 5')
    a(f's_sub_u32 s{st0}, s{sNT}, s{st0}')
    a(f's_lshl_b32 s{st0}, s{st0}, 7')
    a(f's_lshl_b32 s{st1}, s{sN}, 6')
    a(f's_add_u32 s{st0}, s{st0}, s{st1}')
    a(f's_cmp_eq_u32 s{sSec}, 0')
    a(f's_cselect_b32 s{st1}, 0, 1')
    a(f's_cselect_b32 s{st2}, 0, {WS_KV}')
    a(f's_lshl_b32 s{sTS}, 1280, s{st1}')
    a(f's_lshl_b32 s{sHS}, s{sTS}, 6')
    a(f's_lshl_b32 s{sT}, s{sMT}, 3')
    a(f's_lshl_b32 s{st1}, s{sM}, 2')
    a(f's_add_u32 s{sT}, s{sT}, s{st1}')
    a(f's_lshl_b32 s{st1}, s{sBR}, 11')
    a(f's_add_u32 s{st1}, s{st1}, s{sT}')
    a(f's_mul_i32 s{st1}, s{st1}, s{sTS}')
    a(f's_add_u32 s{sBase}, s{st1}, s{st2}')
    a(f's_cmp_eq_u32 s{sSec}, 2')
    a(f's_cbranch_scc1 L_p1_adV')
    a(f'v_lshrrev_b32 v{vt0}, 3, v{vTok}')
    a(f'v_lshlrev_b32 v{vRho}, 7, v{vt0}')
    a(f'v_bfe_u32 v{vt0}, v{vTok}, 1, 1')
    a(f'v_lshl_or_b32 v{vRho}, v{vt0}, 6, v{vRho}')
    a(f'v_bfe_u32 v{vt0}, v{vTok}, 2, 1')
    a(f'v_lshl_or_b32 v{vRho}, v{vt0}, 5, v{vRho}')
    a(f'v_and_b32 v{vt0}, 1, v{vTok}')
    a(f'v_lshl_or_b32 v{vRho}, v{vt0}, 4, v{vRho}')
    a(f's_lshr_b32 s{st0}, s{st0}, 2')
    for c in range(4):
        a(f'v_add_u32 v{vt0}, s{st0}, v{vG}')
        if c: a(f'v_add_u32 v{vt0}, {4*c}, v{vt0}')
        a(f'v_mul_u32_u24 v{vt1}, 52429, v{vt0}')
        a(f'v_lshrrev_b32 v{vt1}, 18, v{vt1}')
        a(f'v_mul_u32_u24 v{vt2}, 5, v{vt1}')
        a(f'v_sub_u32 v{vt2}, v{vt0}, v{vt2}')
        a(f'v_mul_u32_u24 v{vt1}, s{sHS}, v{vt1}')
        a(f'v_and_b32 v{vt3}, 1, v{vt2}')
        a(f'v_lshlrev_b32 v{vt3}, 9, v{vt3}')
        a(f'v_lshrrev_b32 v{vt4}, 1, v{vt2}')
        a(f'v_cmp_eq_u32 s[56:57], 4, v{vt2}')
        a(f'v_lshl_add_u32 v{vt3}, v{vt4}, 8, v{vt3}')
        a(f'v_add_u32 v{vt4}, 512, v{vt3}')
        a(f'v_add_u32 v{vt1}, v{vt1}, v{vRho}')
        a(f'v_cndmask_b32 v{vt3}, v{vt3}, v{vt4}, s[56:57]')
        a(f'v_add_u32 v{vAd+c}, v{vt1}, v{vt3}')
    a('s_branch L_p1_adD')
    a.lab('L_p1_adV')
    for c in range(4):
        a(f'v_add_u32 v{vt0}, s{st0}, v{vTok}')
        if c: a(f'v_add_u32 v{vt0}, {16*c}, v{vt0}')
        a(f'v_mul_u32_u24 v{vt1}, 52429, v{vt0}')
        a(f'v_lshrrev_b32 v{vt1}, 20, v{vt1}')
        a(f'v_mul_u32_u24 v{vt2}, 20, v{vt1}')
        a(f'v_sub_u32 v{vt2}, v{vt0}, v{vt2}')
        a(f'v_mul_u32_u24 v{vt1}, {64*2560}, v{vt1}')
        a(f'v_lshl_add_u32 v{vt1}, v{vt2}, 6, v{vt1}')
        a(f'v_bfe_u32 v{vt2}, v{vt2}, 2, 2')
        a(f'v_xor_b32 v{vt2}, v{vt2}, v{vG}')
        a(f'v_lshl_add_u32 v{vt1}, v{vt2}, 4, v{vt1}')
        a(f'v_add_u32 v{vAd+c}, 1280, v{vt1}')
    a.lab('L_p1_adD')
    a('s_waitcnt lgkmcnt(0)')
    srd(a,sO,sWS,sWS+1,WS_O)
    SYNC=SY
    def wread(nxt,h,step,c,hh):
        b=(vBn if nxt else vBc)+c
        return f'ds_read_b64_tr_b16 {vr(wf(step,c)+2*hh,2)}, v{b} offset:{h*8192+1024*hh}'
    def xread(nxt,h,mt,buf):
        b=((vBn if nxt else vBc)+4) if h==0 else vXc1
        return f'ds_read_b128 {vr(xf(buf),4)}, v{b} offset:{mt*2048}'
    a(f's_cmp_eq_u32 s{sSec}, 2')
    a(f's_cbranch_scc1 L_p1_v1')
    for v in range(2):
        a.lab(f'L_p1_v{v}')
        p.stamp(1)
        a('s_barrier')
        p.stamp(2)
        def body(emit,issued):
            waits=[]
            for st in range(2):
                for mt in range(8):
                    gi=st*8+mt
                    need=[('x',gi)]
                    if mt==0: need.append(('w',st))
                    last=max(len(issued)-1-issued[::-1].index(t) for t in need)
                    y=len(issued)-1-last
                    waits.append(y)
                    if emit:
                        y=min(y,wmin[len(waits)-1])
                        a(f's_waitcnt lgkmcnt({min(y,15)})')
                    fill=[]
                    g2=gi+D; nx=g2>=16; h2=(g2%16)//8; m2=g2%8
                    fill.append((xread(nx,h2,m2,g2),('x',g2%16)))
                    if SYNC<mt<=SYNC+4:
                        c=mt-SYNC-1
                        fill.append((wread(st==1,(st+1)&1,st+1,c,0),('w',(st+1)%2)))
                        fill.append((wread(st==1,(st+1)&1,st+1,c,1),('w',(st+1)%2)))
                    if st==0 and mt==0:
                        fill.append((f's_add_u32 s{sNx}, s{sSlot}, {SLOT}',None))
                        fill.append((f's_cmp_eq_u32 s{sNx}, {R*SLOT}',None))
                        fill.append((f's_cselect_b32 s{sNx}, 0, s{sNx}',None))
                        fill.append((f'v_add_u32 v{vXc1}, v{vBc+4}, v{vXh}',None))
                    if st==0 and 2<=mt<=6:
                        fill.append((f'v_add_u32 v{vBn+mt-2}, s{sNx}, v{vB0+mt-2}',None))
                    if st==1 and mt==7:
                        for i in range(5): fill.append((f'v_mov_b32 v{vBc+i}, v{vBn+i}',None))
                        fill.append((f's_mov_b32 s{sSlot}, s{sNx}',None))
                    for c in range(4):
                        x=xf(gi); w=wf(st,c); ac=acc(c,mt)
                        if emit:
                            if v==0: a(f'v_mfma_f32_16x16x32_bf16 {vr(ac,4)}, {vr(w,4)}, {vr(x,4)}, {vr(ac,4)}')
                            else:    a(f'v_mfma_f32_16x16x32_bf16 {vr(ac,4)}, {vr(x,4)}, {vr(w,4)}, {vr(ac,4)}')
                        k=1 if c<3 else len(fill)
                        while k>0 and fill:
                            t,tag=fill.pop(0); k-=1
                            if emit: a(t)
                            if tag: issued.append(tag)
                    if st==0 and mt==SYNC and emit: a('s_barrier')
            return waits
        pro=[('w',0)]*8+[('x',i) for i in range(D)]
        iss=list(pro); w1=body(False,iss); w2=body(False,iss)
        wmin=[min(x,y) for x,y in zip(w1,w2)]
        a(f's_mov_b32 s{sSlot}, 0')
        for c in range(4):
            a(wread(False,0,0,c,0)); a(wread(False,0,0,c,1))
        for i in range(D): a(xread(False,0,i,i))
        a(f's_mov_b32 s{sIT}, 10')
        a.lab(f'L_p1_loop{v}')
        body(True,list(pro))
        a(f's_sub_u32 s{sIT}, s{sIT}, 1')
        a(f's_cmp_lg_u32 s{sIT}, 0')
        a(f's_cbranch_scc1 L_p1_loop{v}')
        a('s_waitcnt lgkmcnt(0)')
        a('s_nop 7')
        p.stamp(3)
        if v==0:
            a(f's_cmp_lg_u32 s{sSec}, 0')
            a(f's_cbranch_scc1 L_p1_ns')
            a(f's_mov_b32 s{st1}, {f32bits(CSCALE):#x}')
            for i in range(128): a(f'v_mul_f32 v{vAcc+i}, s{st1}, v{vAcc+i}')
            a.lab('L_p1_ns')
        for tp in range(4):
            if tp==0: a(f's_mov_b32 s{st0}, s{sBase}')
            else: a(f's_add_u32 s{st0}, s{st0}, s{sTS}')
            for c in range(4):
                b=acc(c,2*tp)
                if v==0:
                    a(f'v_cvt_pk_bf16_f32 v{b}, v{b}, v{b+1}')
                    a(f'v_cvt_pk_bf16_f32 v{b+1}, v{b+2}, v{b+3}')
                    a(f'v_cvt_pk_bf16_f32 v{b+2}, v{b+4}, v{b+5}')
                    a(f'v_cvt_pk_bf16_f32 v{b+3}, v{b+6}, v{b+7}')
                else:
                    a(f'v_cvt_pk_bf16_f32 v{b}, v{b}, v{b+4}')
                    a(f'v_cvt_pk_bf16_f32 v{b+1}, v{b+1}, v{b+5}')
                    a(f'v_cvt_pk_bf16_f32 v{b+2}, v{b+2}, v{b+6}')
                    a(f'v_cvt_pk_bf16_f32 v{b+3}, v{b+3}, v{b+7}')
                a(f'buffer_store_dwordx4 {vr(b,4)}, v{vAd+c}, s[{sO}:{sO+3}], s{st0} offen {SC}')
        a('s_waitcnt vmcnt(0)')
        a('s_branch L_p1_end')
    a.lab('L_p1_loader')
    a(f's_sub_u32 s{sLd}, s{sWV}, 4')
    a(f's_mul_i32 s{st3}, s{st3}, 5')
    a(f's_lshr_b32 s{st3}, s{st3}, 1')
    a(f's_mul_i32 s{st1}, s{st1}, 5')
    a(f's_lshr_b32 s{st1}, s{st1}, 2')
    a(f's_add_u32 s{sKS}, s{st3}, s{st1}')
    a(f's_cmp_ge_u32 s{sKS}, 10')
    a(f's_cselect_b32 s{st0}, 10, 0')
    a(f's_sub_u32 s{sKS}, s{sKS}, s{st0}')
    a(f's_lshl_b32 s{sLW}, s{sLd}, 12')
    a(f's_lshl_b32 s{sLX}, s{sLd}, 13')
    a(f's_add_u32 s{sLX}, s{sLX}, {XOFF}')
    a(f'v_lshrrev_b32 v{vt0}, 4, v{vLane}')
    a(f'v_bfe_u32 v{vt1}, v{vLane}, 1, 3')
    a(f'v_and_b32 v{vt2}, 1, v{vLane}')
    a(f's_lshl_b32 s{st2}, s{sLd}, 4')
    a(f's_lshl_b32 s{st1}, s{sNT}, 8')
    for jj in range(2):
        a(f'v_add_u32 v{vt3}, {4*jj}, v{vt0}')
        a(f'v_xor_b32 v{vt3}, v{vt3}, v{vt1}')
        a(f'v_lshl_add_u32 v{vt4}, v{vt3}, 1, v{vt2}')
        a(f'v_lshlrev_b32 v{vt4}, 4, v{vt4}')
        a(f'v_add_u32 v{vLW+jj}, s{st2}, v{vt0}')
        if jj: a(f'v_add_u32 v{vLW+jj}, 8, v{vLW+jj}')
        a(f'v_mul_u32_u24 v{vLW+jj}, 3840, v{vLW+jj}')
        a(f'v_add3_u32 v{vLW+jj}, v{vLW+jj}, v{vt4}, s{st1}')
    a(f'v_lshrrev_b32 v{vt0}, 3, v{vLane}')
    a(f'v_and_b32 v{vt1}, 7, v{vLane}')
    a(f's_lshl_b32 s{st0}, s{sMT}, 8')
    a(f's_lshl_b32 s{st1}, s{sLd}, 6')
    a(f's_add_u32 s{st0}, s{st0}, s{st1}')
    for uu in range(2):
        a(f'v_lshrrev_b32 v{vt2}, 1, v{vt0}')
        if uu: a(f'v_add_u32 v{vt2}, 4, v{vt2}')
        a(f'v_xor_b32 v{vt2}, v{vt2}, v{vt1}')
        a(f'v_add_u32 v{vt3}, s{st0}, v{vt0}')
        if uu: a(f'v_add_u32 v{vt3}, 8, v{vt3}')
        a(f'v_mul_u32_u24 v{vt3}, 1280, v{vt3}')
        a(f'v_lshl_add_u32 v{vLX+uu}, v{vt2}, 4, v{vt3}')
    a('s_waitcnt lgkmcnt(0)')
    a(f's_cmp_eq_u32 s{sBR}, 0')
    a('s_cselect_b64 s[16:17], s[16:17], s[20:21]')
    a('s_cselect_b64 s[18:19], s[18:19], s[22:23]')
    srd(a,sX,16,17,2048*1280)
    srd(a,sW,18,19,640*3840)
    NL=12
    def wstep():
        a(f's_mul_i32 s{sW0}, s{sKS}, {64*3840}')
        a(f's_lshl_b32 s{sXo}, s{sKS}, 7')
        a(f's_add_u32 s{st0}, s{sSlot}, s{sLW}')
        a(f's_add_u32 s{st1}, s{sSlot}, s{sLX}')
        for j in range(4):
            a(f's_add_u32 m0, s{st0}, {j*1024}')
            if j&1: a(f's_add_u32 s{st2}, s{sW0}, {4*3840}')
            a(f'buffer_load_dwordx4 v{vLW+(j>>1)}, s[{sW}:{sW+3}], s{st2 if j&1 else sW0} offen lds')
            for u in (2*j,2*j+1):
                a(f's_add_u32 m0, s{st1}, {u*1024}')
                if u>=2 and u%2==0: a(f's_add_u32 s{st3}, s{sXo}, {(u//2)*20480}')
                a(f'buffer_load_dwordx4 v{vLX+(u&1)}, s[{sX}:{sX+3}], s{st3 if u>=2 else sXo} offen lds')
        a(f's_add_u32 s{sKS}, s{sKS}, 1')
        a(f's_cmp_eq_u32 s{sKS}, 10')
        a(f's_cselect_b32 s{sKS}, 0, s{sKS}')
        a(f's_add_u32 s{sSlot}, s{sSlot}, {SLOT}')
        a(f's_cmp_eq_u32 s{sSlot}, {R*SLOT}')
        a(f's_cselect_b32 s{sSlot}, 0, s{sSlot}')
    a(f's_mov_b32 s{sSlot}, 0')
    wstep(); wstep()
    a(f's_waitcnt vmcnt({NL})')
    a('s_barrier')
    a(f's_mov_b32 s{sIT}, 0')
    a.lab('L_p1_ld_loop')
    a('s_waitcnt vmcnt(0)')
    a('s_barrier')
    a(f's_cmp_ge_u32 s{sIT}, 8')
    a('s_cbranch_scc1 L_p1_ld_skip')
    wstep()
    a.lab('L_p1_ld_skip')
    a(f's_add_u32 s{sIT}, s{sIT}, 1')
    a(f's_cmp_lt_u32 s{sIT}, 10')
    a('s_cbranch_scc1 L_p1_ld_loop')
    gettok(a,'p1')
    a.lab('L_p1_end')
    a('s_barrier')
    p.stamp(4)
    a(f's_cmp_lg_u32 s{sWV}, 4')
    a('s_cbranch_scc1 L_p1_done')
    a(f's_mul_i32 s{st0}, s{sBR}, 15')
    a(f's_add_u32 s{st0}, s{st0}, s{sNT}')
    a(f's_lshl_b32 s{st0}, s{st0}, 3')
    a(f's_add_u32 s{st0}, s{st0}, s{sMT}')
    a(f's_lshl_b32 s{st0}, s{st0}, 7')
    setflag(a,st0)
    a('s_branch L_p1_done')
    a.lab('L_p1_skip')
    a('s_waitcnt lgkmcnt(0)')
    gettok(a,'p1s')
    a.lab('L_p1_done')
    return vEnd

def gettok(a,tag):
    a(f's_cmp_lg_u32 s{sWV}, 4')
    a(f's_cbranch_scc1 L_tokd_{tag}')
    a('s_mov_b32 s58, 0x40000')
    a('v_mov_b32 v2, 0')
    a.lab(f'L_tok_{tag}')
    a(f'global_load_dword v3, v2, s[{sDBG}:{sDBG+1}] sc1')
    a('s_waitcnt vmcnt(0)')
    a(f'v_readfirstlane_b32 s{sTOK}, v3')
    a('s_nop 3')
    a(f's_cmp_lg_u32 s{sTOK}, 0')
    a(f's_cbranch_scc1 L_tokd_{tag}')
    a('s_sleep 4')
    a('s_sub_u32 s58, s58, 1')
    a('s_cmp_lg_u32 s58, 0')
    a(f's_cbranch_scc1 L_tok_{tag}')
    a.lab(f'L_tokd_{tag}')
def setflag(a,soff):
    a(f's_add_u32 s{soff}, s{soff}, {WS_FLG}')
    a('s_mov_b64 exec, 1')
    a(f'v_mov_b32 v2, s{soff}')
    a(f'v_mov_b32 v3, s{sTOK}')
    a(f'global_store_dword v2, v3, s[{sWS}:{sWS+1}] sc1')
    a('s_mov_b64 exec, -1')
def poll2(a,tag,va,vb,mask):
    a('s_mov_b32 s58, 0x40000')
    a.lab(f'L_poll_{tag}')
    a(f'global_load_dword v3, v{va}, s[{sWS}:{sWS+1}] sc1')
    a(f'global_load_dword v4, v{vb}, s[{sWS}:{sWS+1}] sc1')
    a('s_waitcnt vmcnt(0)')
    a(f'v_cmp_eq_u32 s[56:57], s{sTOK}, v3')
    a(f'v_cmp_eq_u32 vcc, s{sTOK}, v4')
    a('s_nop 4')
    a('s_and_b64 s[56:57], s[56:57], vcc')
    a(f's_and_b32 s56, s56, {mask&0xffffffff:#x}')
    a(f's_and_b32 s57, s57, {mask>>32:#x}')
    a(f's_cmp_lg_u32 s56, {mask&0xffffffff:#x}')
    a(f's_cbranch_scc1 L_polln_{tag}')
    a(f's_cmp_eq_u32 s57, {mask>>32:#x}')
    a(f's_cbranch_scc1 L_polld_{tag}')
    a.lab(f'L_polln_{tag}')
    a('s_sleep 1')
    a('s_sub_u32 s58, s58, 1')
    a('s_cmp_lg_u32 s58, 0')
    a(f's_cbranch_scc1 L_poll_{tag}')
    a.lab(f'L_polld_{tag}')
def poll(a,tag,vaddr,offs,mask):
    a('s_mov_b32 s58, 0x40000')
    a.lab(f'L_poll_{tag}')
    for i,o in enumerate(offs):
        a(f'global_load_dword v{vaddr+1+i}, v{vaddr}, s[{sWS}:{sWS+1}] offset:{o} sc1')
    a('s_waitcnt vmcnt(0)')
    a(f'v_cmp_eq_u32 s[56:57], s{sTOK}, v{vaddr+1}')
    if len(offs)>1:
        a(f'v_cmp_eq_u32 vcc, s{sTOK}, v{vaddr+2}')
        a('s_nop 4')
        a('s_and_b64 s[56:57], s[56:57], vcc')
    else:
        a('s_nop 4')
    a(f's_and_b32 s56, s56, {mask&0xffffffff:#x}')
    a(f's_and_b32 s57, s57, {mask>>32:#x}')
    a(f's_cmp_lg_u32 s56, {mask&0xffffffff:#x}')
    a(f's_cbranch_scc1 L_polln_{tag}')
    a(f's_cmp_eq_u32 s57, {mask>>32:#x}')
    a(f's_cbranch_scc1 L_polld_{tag}')
    a.lab(f'L_polln_{tag}')
    a('s_sleep 2')
    a('s_sub_u32 s58, s58, 1')
    a('s_cmp_lg_u32 s58, 0')
    a(f's_cbranch_scc1 L_poll_{tag}')
    a.lab(f'L_polld_{tag}')

def phase2(a,p,PRIO=0,BSH=0,NOHOOK=0,SPRIO=0):
    TILE=2560; HALF=81920; WOFF=40960; SCR=40960
    sR,sOo,sWo=4,8,12
    sHD,sJ,sQP,sKH=16,17,18,19
    st0,st1,st2,st3=20,21,22,23
    sVm=24; sLo=26
    sIT=28; sHB=29; sHBw=30; sOl=31; sOh=32; sLl=33; sQA=34; sSw=35; sAg=36; sOB=37; sOA=38; sNeed=39
    sTm=40
    sWn=48
    vLane=1; vt0=2; vt1=3; vt2=4; vt3=5; vK1a=6; vK2a=7; vVa=8; vDma=9; vM=10; vRho=11; vKap=12; vOoff=13; vt4=14; vt5=15
    vQa1=16; vQa2=20; vQb2=22; vQb1=24; vK1=28; vK2=32; vQ2o=34; vMb=35
    vV=36; vP=52; vQA2=60; vWo=62; vCc=63; vVb=196; vQ1o=197
    vSa=64; vSb=80; vOa=96; vOb=112; vCa=128; vCb=144; vMF=160; vML=176; vQA1=192
    vEnd=198
    a(f's_load_dwordx2 s[50:51], s[0:1], 16')
    a(f's_load_dwordx2 s[52:53], s[0:1], 40')
    a(f's_and_b32 s{st0}, s{sWG}, 7')
    a(f's_lshr_b32 s{st1}, s{sWG}, 3')
    a(f's_lshl_b32 s{sHD}, s{st0}, 2')
    a(f's_lshr_b32 s{st2}, s{st1}, 3')
    a(f's_add_u32 s{sHD}, s{sHD}, s{st2}')
    a(f's_and_b32 s{sJ}, s{st1}, 7')
    a(f's_and_b32 s{sQP}, s{sWV}, 3')
    a(f's_lshr_b32 s{sKH}, s{sWV}, 2')
    a(f'v_lshlrev_b32 v{vDma}, 4, v{vLane}')
    a(f's_mul_i32 s{sHB}, s{sHD}, {64*TILE}')
    a(f's_add_u32 s{sAg}, s{sHB}, {WS_KV-20480}')
    a(f's_add_u32 s{sHB}, s{sHB}, {WS_KV+32*64*TILE}')
    a(f's_lshl_b32 s{st1}, s{sWV}, 10')
    a(f's_add_u32 s{sHBw}, s{sHB}, s{st1}')
    a(f's_mul_i32 s{st0}, s{sJ}, 20480')
    a(f's_add_u32 s{sAg}, s{sAg}, s{st0}')
    a(f's_add_u32 s{sAg}, s{sAg}, s{st1}')
    a(f's_lshr_b32 s{sOl}, s{sJ}, 1')
    a(f's_mul_i32 s{sOl}, s{sOl}, 40960')
    a(f's_add_u32 s{sOh}, s{sOl}, {HALF}')
    a(f's_cmp_ge_u32 s{sOh}, 163840')
    a(f's_cselect_b32 s{st0}, 163840, 0')
    a(f's_sub_u32 s{sOh}, s{sOh}, s{st0}')
    a(f's_mov_b32 s{sLl}, s{st1}')
    a(f's_mov_b32 s{sVm}, 0xfffff')
    a(f's_mov_b32 s{sVm+1}, 0xfffff')
    a(f's_mov_b32 s{sLo}, -1')
    a(f's_mov_b32 s{sLo+1}, 0')
    a(f'v_and_b32 v{vRho}, 31, v{vLane}')
    a(f'v_lshlrev_b32 v{vt1}, 3, v{vRho}')
    a(f'v_add_u32 v{vK2a}, 1024, v{vt1}')
    a(f'v_mov_b32 v{vt2}, 0x70000000')
    a(f'v_cndmask_b32 v{vQ2o}, v{vt2}, v{vK2a}, s[{sLo}:{sLo+1}]')
    a(f's_lshl_b32 s{st0}, s{sJ}, 3')
    a(f's_lshl_b32 s{st1}, s{sHD}, 6')
    a(f's_add_u32 s{st1}, s{st1}, s{st0}')
    a(f's_add_u32 s{st2}, s{st1}, s{sWV}')
    a(f's_mul_i32 s{sQA}, s{st2}, 1280')
    a(f's_lshl_b32 s{st2}, s{sQP}, 1')
    a(f's_add_u32 s{st2}, s{st2}, s{st1}')
    a(f's_mul_i32 s54, s{st2}, 1280')
    a(f's_add_u32 s54, s54, {32*64*1280}')
    a(f's_add_u32 s55, s54, 1280')
    a(f's_lshl_b32 s{st2}, s{sQP}, 1')
    a(f's_add_u32 s{st2}, s{st2}, s{sKH}')
    a(f's_add_u32 s{st2}, s{st2}, s{st0}')
    a(f's_mul_i32 s{sOB}, s{st2}, 40960')
    a(f's_add_u32 s{sOB}, s{sOB}, {2048*1280}')
    a(f's_add_u32 s{st2}, s{st0}, s{sWV}')
    a(f's_mul_i32 s{sOA}, s{st2}, 40960')
    srd(a,sR,sWS,sWS+1,WS_O)
    a(f's_add_u32 s56, s{sWS}, {WS_O}')
    a(f's_addc_u32 s57, s{sWS+1}, 0')
    srd(a,sOo,56,57,WS_END-WS_O)
    a(f'v_lshrrev_b32 v{vt0}, 5, v{vLane}')
    a(f'v_lshlrev_b32 v{vK1a}, 3, v{vRho}')
    a(f'v_lshl_add_u32 v{vK1a}, v{vt0}, 8, v{vK1a}')
    a(f'v_mov_b32 v{vQ1o}, v{vK1a}')
    a(f'v_bfe_u32 v{vt1}, v{vRho}, 2, 2')
    a(f'v_xor_b32 v{vt1}, v{vt1}, v{vt0}')
    a(f'v_lshlrev_b32 v{vt1}, 4, v{vt1}')
    a(f'v_lshl_add_u32 v{vVa}, v{vRho}, 6, v{vt1}')
    a(f'v_add_u32 v{vVa}, 1280, v{vVa}')
    a(f'v_xor_b32 v{vVb}, 32, v{vVa}')
    a(f'v_and_b32 v{vt1}, 1, v{vRho}')
    a(f'v_lshlrev_b32 v{vKap}, 4, v{vt1}')
    a(f'v_lshrrev_b32 v{vt1}, 4, v{vRho}')
    a(f'v_lshl_or_b32 v{vKap}, v{vt1}, 3, v{vKap}')
    a(f'v_and_b32 v{vt1}, 4, v{vRho}')
    a(f'v_or_b32 v{vKap}, v{vKap}, v{vt1}')
    a(f'v_bfe_u32 v{vt1}, v{vRho}, 3, 1')
    a(f'v_lshl_or_b32 v{vKap}, v{vt1}, 1, v{vKap}')
    a(f'v_bfe_u32 v{vt1}, v{vRho}, 1, 1')
    a(f'v_or_b32 v{vKap}, v{vKap}, v{vt1}')
    a(f'v_lshlrev_b32 v{vt3}, 2, v{vt0}')
    a(f'v_sub_u32 v{vt3}, v{vKap}, v{vt3}')
    a(f'v_mov_b32 v{vt2}, {NEG_BIG:#x}')
    for r in range(16):
        base=(r&3)+8*(r>>2)
        kb=16*(r&1)+8*((r>>3)&1)+2*((r>>2)&1)+((r>>1)&1)
        a(f'v_cmp_gt_i32 s[{sTm+2*(r&3)}:{sTm+1+2*(r&3)}], {kb}, v{vt3}')
        if r>=2:
            q=r-2
            a(f'v_cndmask_b32 v{vMF+q}, v{vt2}, 0, s[{sTm+2*(q&3)}:{sTm+1+2*(q&3)}]')
            a(f'v_cndmask_b32 v{vML+q}, 0, v{vt2}, s[{sTm+2*(q&3)}:{sTm+1+2*(q&3)}]')
    a('s_nop 1')
    for q in (14,15):
        a(f'v_cndmask_b32 v{vMF+q}, v{vt2}, 0, s[{sTm+2*(q&3)}:{sTm+1+2*(q&3)}]')
        a(f'v_cndmask_b32 v{vML+q}, 0, v{vt2}, s[{sTm+2*(q&3)}:{sTm+1+2*(q&3)}]')
    a(f's_cmp_lg_u32 s{sJ}, 0')
    a('s_cbranch_scc1 L_mf_ok')
    for r in range(16): a(f'v_mov_b32 v{vMF+r}, v{vt2}')
    a.lab('L_mf_ok')
    def vinit():
        a(f'v_cmp_eq_u32 s[{sTm}:{sTm+1}], 20, v{vRho}')
        a(f'v_mov_b32 v{vt1}, 0x3f803f80')
        a('s_nop 0')
        a(f'v_cndmask_b32 v{vt1}, 0, v{vt1}, s[{sTm}:{sTm+1}]')
        for i in range(16): a(f'v_mov_b32 v{vV+i}, v{vt1}')
    vinit()
    a(f'v_lshrrev_b32 v{vt1}, 4, v{vKap}')
    a(f'v_mul_u32_u24 v{vt1}, 20480, v{vt1}')
    a(f'v_and_b32 v{vt2}, 15, v{vKap}')
    a(f'v_lshl_add_u32 v{vOoff}, v{vt2}, 4, v{vt1}')
    for r in range(16): a(f'v_mov_b32 v{vOa+r}, 0')
    for r in range(16): a(f'v_mov_b32 v{vOb+r}, 0')
    for i in range(4): a(f'v_mov_b32 v{vP+4+i}, 0')
    a(f's_lshl_b32 s{st0}, s{sWV}, 6')
    a(f'v_add_u32 v{vt0}, s{st0}, v{vLane}')
    a(f'v_mul_u32_u24 v{vt1}, 52429, v{vt0}')
    a(f'v_lshrrev_b32 v{vt1}, 19, v{vt1}')
    a(f'v_mul_u32_u24 v{vt2}, 10, v{vt1}')
    a(f'v_sub_u32 v{vCc}, v{vt0}, v{vt2}')
    a(f'v_mul_u32_u24 v{vt1}, 1280, v{vt1}')
    a(f'v_lshl_add_u32 v{vWo}, v{vCc}, 4, v{vt1}')
    a(f's_and_b32 s{sWn}, s{sHD}, 7')
    a(f's_mul_i32 s{sWn}, s{sWn}, 160')
    a('s_waitcnt lgkmcnt(0)')
    a(f's_cmp_lt_u32 s{sHD}, 16')
    a('s_cselect_b64 s[50:51], s[50:51], s[52:53]')
    srd(a,sWo,50,51,640*1280)
    p.stamp(5)
    a(f's_cmp_lg_u32 s{sWV}, 4')
    a('s_cbranch_scc1 L_p2_go')
    a(f's_mul_i32 s{st0}, s{sHD}, 20')
    a(f's_lshr_b32 s{st1}, s{st0}, 7')
    a(f's_add_u32 s{st0}, s{st0}, 19')
    a(f's_lshr_b32 s{st0}, s{st0}, 7')
    a(f's_sub_u32 s{st0}, s{st0}, s{st1}')
    a(f'v_lshrrev_b32 v{vt0}, 4, v{vLane}')
    a(f'v_min_u32 v{vt0}, 2, v{vt0}')
    a(f'v_mul_u32_u24 v{vt0}, 5, v{vt0}')
    a(f'v_bfe_u32 v{vt1}, v{vLane}, 3, 1')
    a(f'v_mul_u32_u24 v{vt1}, s{st0}, v{vt1}')
    a(f'v_add3_u32 v{vt0}, v{vt0}, v{vt1}, s{st1}')
    a(f'v_lshlrev_b32 v{vt0}, 10, v{vt0}')
    a(f'v_and_b32 v{vt1}, 7, v{vLane}')
    a(f'v_lshl_add_u32 v{vt0}, v{vt1}, 7, v{vt0}')
    a(f'v_add_u32 v{vt0}, {WS_FLG}, v{vt0}')
    a(f'v_add_u32 v{vt5}, {15*1024}, v{vt0}')
    poll2(a,'p2',vt0,vt5,(1<<48)-1)
    a.lab('L_p2_go')
    a('s_barrier')
    p.stamp(6)

    def rd_k1(dst,off):
        assert off%512==0 and off//512+1<256
        a(f'ds_read2st64_b64 {vr(dst,4)}, v{vK1a} offset0:{off//512} offset1:{off//512+1}')
    def rd_k2(dst,off): a(f'ds_read_b64 {vr(dst,2)}, v{vK2a} offset:{off}')
    def rd_v(buf,off):
        a(f's_mov_b64 exec, s[{sVm}:{sVm+1}]')
        a(f'ds_read_b128 {vr(vV+8*buf,4)}, v{vVa} offset:{off}')
        a(f'ds_read_b128 {vr(vV+8*buf+4,4)}, v{vVb} offset:{off}')
        a('s_mov_b64 exec, -1')
    def qk1(S,C,Q1,K=None): a(f'v_mfma_f32_32x32x16_bf16 {vr(S,16)}, {vr(vK1 if K is None else K,4)}, {vr(Q1,4)}, {C}')
    def qk2(S,Q2,K=None): a(f'v_mfma_f32_32x32x8bf16_1k {vr(S,16)}, {vr(vK2 if K is None else K,2)}, {vr(Q2,2)}, {vr(S,16)}')
    def pv(O,buf,t): a(f'v_mfma_f32_32x32x16_bf16 {vr(O,16)}, {vr(vV+8*buf+4*t,4)}, {vr(vP+4*t,4)}, {vr(O,16)}')
    def ex(S,r): a(f'v_exp_f32 v{S+r}, v{S+r}')
    def cv(S,c): a(f'v_cvt_pk_bf16_f32 v{vP+c}, v{S+2*c}, v{S+2*c+1}')
    def rowmax(M,S,first):
        if first:
            a(f'v_max3_f32 v{M}, v{S}, v{S+1}, v{S+2}'); rest=list(range(3,16))
        else: rest=list(range(16))
        while len(rest)>=2:
            a(f'v_max3_f32 v{M}, v{M}, v{S+rest[0]}, v{S+rest[1]}'); rest=rest[2:]
        if rest: a(f'v_max_f32 v{M}, v{M}, v{S+rest[0]}')
    def xhalf_max(M):
        a(f'v_mov_b32 v{vt1}, v{M}')
        a('s_nop 1')
        a(f'v_permlane32_swap_b32 v{M}, v{vt1}')
        a('s_nop 1')
        a(f'v_max_f32 v{M}, v{M}, v{vt1}')
    def get_l():
        a(f'v_mov_b32 v{vt1}, v{vOa+8}')
        a(f'v_mov_b32 v{vt2}, v{vOa+8}')
        a('s_nop 1')
        a(f'v_permlane32_swap_b32 v{vt1}, v{vt2}')
        a('s_nop 1')
    def store_o(soff):
        a(f'v_rcp_f32 v{vt3}, v{vt2}')
        a(f's_mul_i32 s{st0}, s{sHD}, 5')
        a(f'v_lshrrev_b32 v{vt0}, 5, v{vLane}')
        for i in range(12): a(f'v_mul_f32 v{vOa+i}, v{vOa+i}, v{vt3}')
        for i in range(6): a(f'v_cvt_pk_bf16_f32 v{vSa+i}, v{vOa+2*i}, v{vOa+2*i+1}')
        for k,qb in enumerate((0,2,4)):
            a(f'v_add_u32 v{vt4}, s{st0}, v{vt0}')
            if qb: a(f'v_add_u32 v{vt4}, {qb}, v{vt4}')
            a(f'v_lshrrev_b32 v{vt5}, 3, v{vt4}')
            a(f'v_lshlrev_b32 v{vt5}, 10, v{vt5}')
            a(f'v_and_b32 v{vt1}, 3, v{vt4}')
            a(f'v_lshl_add_u32 v{vt5}, v{vt1}, 8, v{vt5}')
            a(f'v_bfe_u32 v{vt1}, v{vt4}, 2, 1')
            a(f'v_lshl_add_u32 v{vt5}, v{vt1}, 3, v{vt5}')
            a(f'v_add_u32 v{vt5}, v{vt5}, v{vOoff}')
            if k==2: a(f's_mov_b64 exec, s[{sLo}:{sLo+1}]')
            a(f'buffer_store_dwordx2 {vr(vSa+2*k,2)}, v{vt5}, s[{sOo}:{sOo+3}], s{soff} offen {SC}')
            if k==2: a('s_mov_b64 exec, -1')
    def addr_add(s):
        for r in (vK1a,vK2a,vVa,vVb): a(f'v_add_u32 v{r}, s{s}, v{r}')
    def addr_addi(imm):
        for r in (vK1a,vK2a,vVa,vVb): a(f'v_add_u32 v{r}, {imm}, v{r}')
    def wrapinc(s):
        a(f's_add_u32 s{s}, s{s}, 8192')
        a(f's_cmp_eq_u32 s{s}, 163840')
        a(f's_cselect_b32 s{s}, 0, s{s}')
    def dma_pair():
        a(f's_add_u32 s{st0}, s{sHBw}, s{sOl}')
        a(f's_mov_b32 m0, s{sLl}')
        a(f's_add_u32 s{st1}, s{sHBw}, s{sOh}')
        a(f'buffer_load_dwordx4 v{vDma}, s[{sR}:{sR+3}], s{st0} offen {SL} lds')
        a(f's_add_u32 m0, s{sLl}, {HALF}')
        wrapinc(sOl)
        a(f'buffer_load_dwordx4 v{vDma}, s[{sR}:{sR+3}], s{st1} offen {SL} lds')
        wrapinc(sOh)
        a(f's_add_u32 s{sLl}, s{sLl}, 8192')
    def prio_switch(phase,L):
        a(f's_cmp_lt_u32 s{sWV}, 4')
        a(f's_cbranch_scc{1-phase} {L}_hi')
        a('s_setprio 0')
        a(f's_branch {L}_d')
        a.lab(f'{L}_hi')
        a('s_setprio 1')
        a.lab(f'{L}_d')
    def expgroups(cur,A_,B_,C_,D_):
        A_()
        for r in range(0,4): ex(cur,r)
        B_()
        ex(cur,4); ex(cur,5); cv(cur,0); ex(cur,6); cv(cur,1); ex(cur,7)
        C_()
        ex(cur,8); cv(cur,2); ex(cur,9); cv(cur,3); ex(cur,10); ex(cur,11)
        D_()
        ex(cur,12); ex(cur,13); cv(cur,4); ex(cur,14); cv(cur,5); ex(cur,15); cv(cur,6); cv(cur,7)

    dma_pair()
    a(f'buffer_load_dwordx2 {vr(vQa1,2)}, v{vQ1o}, s[{sR}:{sR+3}], s54 offen {SL}'); a(f'buffer_load_dwordx2 {vr(vQa1+2,2)}, v{vQ1o}, s[{sR}:{sR+3}], s54 offen offset:512 {SL}')
    a(f'buffer_load_dwordx2 {vr(vQa2,2)}, v{vQ2o}, s[{sR}:{sR+3}], s54 offen {SL}')
    a(f'buffer_load_dwordx2 {vr(vQb1,2)}, v{vQ1o}, s[{sR}:{sR+3}], s55 offen {SL}'); a(f'buffer_load_dwordx2 {vr(vQb1+2,2)}, v{vQ1o}, s[{sR}:{sR+3}], s55 offen offset:512 {SL}')
    a(f'buffer_load_dwordx2 {vr(vQb2,2)}, v{vQ2o}, s[{sR}:{sR+3}], s55 offen {SL}')
    dma_pair()
    if NOHOOK:
        for _ in range(8): dma_pair()
        a('s_waitcnt vmcnt(0)')
    a('s_waitcnt vmcnt(2)')
    a('s_barrier')
    p.stamp(7)
    rd_k1(vK1,0); rd_k2(vK2,0)
    a('s_waitcnt lgkmcnt(0)')
    qk1(vSa,'0',vQa1); qk2(vSa,vQa2)
    qk1(vSb,'0',vQb1); qk2(vSb,vQb2)
    a(f's_mul_i32 s{st0}, s{sKH}, {HALF}')
    addr_add(st0)
    rd_k1(vK1,0); rd_k2(vK2,0); rd_v(0,0)
    a('s_nop 7')
    rowmax(vM,vSa,True)
    rowmax(vMb,vSb,True)
    xhalf_max(vM); xhalf_max(vMb)
    for r in range(16): a(f'v_sub_f32 v{vCa+r}, 0, v{vM}')
    for r in range(16): a(f'v_sub_f32 v{vCb+r}, 0, v{vMb}')
    a('s_waitcnt lgkmcnt(0)')
    qk1(vSa,vr(vCa,16),vQa1); qk2(vSa,vQa2)
    a(f's_mov_b32 s{sIT}, 0')
    if SPRIO:
        a(f's_cmp_lt_u32 s{sWV}, 4'); a('s_cbranch_scc1 L_sp'); a('s_setprio 1'); a.lab('L_sp')
    a.raw('.p2align 6')
    for _ in range(BSH): a('s_nop 0')
    a.lab('L_b_loop')
    ool=[]
    def bs(i):
        if BPROF==2: p.stamp(i,force=True)
    def cond(it,L,fn,op='lg'):
        if NOHOOK==1: return
        if NOHOOK==2 and it==0: return
        a(f's_cmp_eq_u32 s{sIT}, {it}'); a(f's_cbranch_scc1 {L}'); a.lab(L+'_r')
        ool.append((L,fn))
    def arow(r):
        a(f's_lshl_b32 s{st1}, s{sWV}, 10')
        a(f's_add_u32 m0, s{st1}, {r*8192}')
        a(f's_add_u32 s{st0}, s{sAg}, {r*8192}')
        a(f'buffer_load_dwordx4 v{vDma}, s[{sR}:{sR+3}], s{st0} offen {SL} lds')
    for pp in range(8):
        off=pp*TILE
        def h0(pp=pp):
            if pp==2: bs(1); a('s_waitcnt vmcnt(4)'); a('s_barrier'); bs(2)
            if pp==5: bs(3); a('s_waitcnt vmcnt(6)'); a('s_barrier'); bs(4)
            dma_pair()
        cond(0,f'L_h0_{pp}',h0)
        if pp==3: cond(1,'L_h1_3',lambda: (bs(5),a('s_waitcnt vmcnt(0)'),a('s_barrier'),bs(6)))
        if 1<=pp<=5:
            def h2(pp=pp):
                if pp==1: bs(9); a('s_barrier'); bs(10)
                arow(pp-1)
            cond(2,f'L_h2_{pp}',h2)
        if pp==6:
            cond(2,'L_h2_6',lambda: (a(f'buffer_load_dwordx2 {vr(vQA1,2)}, v{vQ1o}, s[{sR}:{sR+3}], s{sQA} offen {SL}'),
                                     a(f'buffer_load_dwordx2 {vr(vQA1+2,2)}, v{vQ1o}, s[{sR}:{sR+3}], s{sQA} offen offset:512 {SL}'),
                                     a(f'buffer_load_dwordx2 {vr(vQA2,2)}, v{vQ2o}, s[{sR}:{sR+3}], s{sQA} offen {SL}')))
        if pp==5: cond(3,'L_h3_5',lambda: (bs(11),a('s_barrier'),bs(12)))
        if PRIO and pp%PRIO==0: prio_switch((pp//PRIO)&1,f'L_pr{pp}')
        lastt=(pp==7)
        def G(fn,L):
            if lastt:
                a(f's_cmp_eq_u32 s{sIT}, 3'); a(f's_cbranch_scc1 {L}'); fn(); a.lab(L)
            else: fn()
        expgroups(vSa,
            lambda: (qk1(vSb,vr(vCb,16),vQb1), G(lambda: rd_k1(vK1,off+TILE),'L_ga1')),
            lambda: (pv(vOb,(pp+1)&1,1), G(lambda: rd_v((pp+1)&1,off+TILE),'L_ga2')),
            lambda: (qk2(vSb,vQb2), G(lambda: rd_k2(vK2,off+TILE),'L_ga3')),
            lambda: pv(vOa,pp&1,0))
        a('s_waitcnt lgkmcnt(0)')
        expgroups(vSb,
            lambda: G(lambda: qk1(vSa,vr(vCa,16),vQa1),'L_gb1'),
            lambda: pv(vOa,pp&1,1),
            lambda: G(lambda: qk2(vSa,vQa2),'L_gb2'),
            lambda: pv(vOb,pp&1,0))
    addr_addi(8*TILE)
    if PROF and BPROF==1:
        for k in range(4):
            a(f's_cmp_lg_u32 s{sIT}, {k}'); a(f's_cbranch_scc1 L_st{k}'); p.stamp(1+k); a.lab(f'L_st{k}')
    a(f's_add_u32 s{sIT}, s{sIT}, 1')
    a(f's_cmp_lt_u32 s{sIT}, 4')
    a('s_cbranch_scc1 L_b_loop')
    a('s_nop 1')
    pv(vOb,1,1)
    a('s_setprio 0')
    a('s_nop 15')
    p.stamp(8)
    a(f's_lshl_b32 s{st0}, s{sQP}, 1')
    a(f's_cmp_eq_u32 s{sKH}, 0')
    a('s_cbranch_scc0 L_mg_hi')
    a(f's_add_u32 s{st1}, s{st0}, 1')
    a(f's_mul_i32 s{st1}, s{st1}, 3072')
    a(f's_add_u32 s{st1}, s{st1}, {SCR}')
    a(f'v_add_u32 v{vt4}, s{st1}, v{vDma}')
    for i in range(3): a(f'ds_write_b128 v{vt4}, {vr(vOb+4*i,4)} offset:{1024*i}')
    a(f's_mul_i32 s{st1}, s{st0}, 3072')
    a('s_branch L_mg_d')
    a.lab('L_mg_hi')
    a(f's_mul_i32 s{st1}, s{st0}, 3072')
    a(f's_add_u32 s{st1}, s{st1}, {SCR}')
    a(f'v_add_u32 v{vt4}, s{st1}, v{vDma}')
    for i in range(3): a(f'ds_write_b128 v{vt4}, {vr(vOa+4*i,4)} offset:{1024*i}')
    for i in range(12): a(f'v_mov_b32 v{vOa+i}, v{vOb+i}')
    for i in range(4): a(f'v_mov_b32 v{vQa1+i}, v{vQb1+i}')
    for i in range(2): a(f'v_mov_b32 v{vQa2+i}, v{vQb2+i}')
    a(f's_add_u32 s{st1}, s{st0}, 1')
    a(f's_mul_i32 s{st1}, s{st1}, 3072')
    a.lab('L_mg_d')
    a(f's_add_u32 s{st1}, s{st1}, {SCR}')
    a(f'v_add_u32 v{vt4}, s{st1}, v{vDma}')
    a('s_waitcnt lgkmcnt(0) vmcnt(0)')
    a('s_barrier')
    for i in range(3): a(f'ds_read_b128 {vr(vSa+4*i,4)}, v{vt4} offset:{1024*i}')
    a('s_waitcnt lgkmcnt(0)')
    a('s_barrier')
    for i in range(12): a(f'v_add_f32 v{vOa+i}, v{vOa+i}, v{vSa+i}')
    get_l()
    a(f'v_mov_b32 v{vt3}, {f32bits(2.0**100):#x}')
    a(f'v_cmp_nlt_f32 vcc, v{vt2}, v{vt3}')
    a('s_nop 4')
    a('s_cbranch_vccnz L_b_fallback')
    a.lab('L_b_store')
    store_o(sOB)
    p.stamp(9)
    a(f's_mul_i32 s{st0}, s{sWV}, {TILE}')
    a(f's_mul_i32 s{st1}, s{sKH}, {HALF}')
    a(f's_sub_u32 s{st0}, s{st0}, s{st1}')
    a(f's_sub_u32 s{st0}, s{st0}, {32*TILE}')
    addr_add(st0)
    for i in range(4): a(f'v_mov_b32 v{vQa1+i}, v{vQA1+i}')
    for i in range(2): a(f'v_mov_b32 v{vQa2+i}, v{vQA2+i}')
    a(f's_sub_u32 s{sSw}, 8, s{sWV}')
    a(f's_cmp_lg_u32 s{sJ}, 0')
    a(f's_cselect_b32 s{sSw}, 0, s{sSw}')
    vC=vCa; vO=vOa; vS=[vSa,vSb]
    KR=[(vV,vV+4),(vV+8,vV+12),(vP,vP+4)]
    SB=[vSa,vSb,vOa]
    def cmid_init(tag,val):
        a(f's_cmp_le_u32 s{sSw}, 1')
        a(f's_cbranch_scc1 L_cm_{tag}_v')
        for r in range(16): a(f'v_mov_b32 v{vC+r}, {NEG_BIG:#x}')
        a(f's_branch L_cm_{tag}_d')
        a.lab(f'L_cm_{tag}_v')
        for r in range(16): a(f'v_mov_b32 v{vC+r}, {val}')
        a.lab(f'L_cm_{tag}_d')
    def cmid_switch(tag,t,val):
        L=f'L_sw_{tag}_{t}'
        a(f's_cmp_eq_u32 s{sSw}, {t}')
        a(f's_cbranch_scc1 {L}')
        a.lab(L+'_r')
        def fn():
            a('s_nop 15')
            for r in range(16): a(f'v_mov_b32 v{vC+r}, {val}')
            a('s_nop 1')
        ool.append((L,fn))
    wocnt=[0]
    def wo_dma():
        m=wocnt[0]; wocnt[0]+=1
        a(f's_lshl_b32 s{st1}, s{sWV}, 10')
        a(f's_add_u32 m0, s{st1}, {WOFF+m*8192}')
        a(f'buffer_load_dwordx4 v{vWo}, s[{sWo}:{sWo+3}], s{sWn} offen lds')
        if m<12:
            a(f'v_add_u32 v{vCc}, 2, v{vCc}')
            a(f'v_cmp_le_u32 s[{sTm}:{sTm+1}], 10, v{vCc}')
            a(f'v_add_u32 v{vWo}, {51*1280+32}, v{vWo}')
            a(f'v_add_u32 v{vt4}, {1280-160}, v{vWo}')
            a(f'v_subrev_u32 v{vt5}, 10, v{vCc}')
            a(f'v_cndmask_b32 v{vWo}, v{vWo}, v{vt4}, s[{sTm}:{sTm+1}]')
            a(f'v_cndmask_b32 v{vCc}, v{vCc}, v{vt5}, s[{sTm}:{sTm+1}]')
    cmid_init('p1','0')
    for i in range(3):
        rd_k1(KR[i][0],i*TILE); rd_k2(KR[i][1],i*TILE)
    for b in range(3):
        a('s_waitcnt lgkmcnt(0)')
        for i in range(3):
            t=3*b+i
            if 2<=t<=7: cmid_switch('p1',t,'0')
            C = vr(vMF,16) if t==0 else (vr(vML,16) if t==8 else vr(vC,16))
            qk1(SB[i],C,vQa1,KR[i][0]); qk2(SB[i],vQa2,KR[i][1])
        if b<2:
            for i in range(3):
                t=3*(b+1)+i
                rd_k1(KR[i][0],t*TILE); rd_k2(KR[i][1],t*TILE)
        if b==2:
            rd_k1(vK1,0); rd_k2(vK2,0)
        wo_dma()
        a('s_nop 3')
        for i in range(3):
            if i==2: a('s_nop 3')
            rowmax(vM,SB[i],b==0 and i==0)
    xhalf_max(vM)
    a(f'v_sub_f32 v{vM}, 0, v{vM}')
    for r in range(16): a(f'v_add_f32 v{vMF+r}, v{vMF+r}, v{vM}')
    for r in range(16): a(f'v_add_f32 v{vML+r}, v{vML+r}, v{vM}')
    cmid_init('p2',f'v{vM}')
    for r in range(16): a(f'v_mov_b32 v{vO+r}, 0')
    vinit()
    for i in range(4): a(f'v_mov_b32 v{vP+4+i}, 0')
    a('s_waitcnt lgkmcnt(0)')
    qk1(vS[0],vr(vMF,16),vQa1); qk2(vS[0],vQa2)
    rd_k1(vK1,TILE); rd_v(0,0); rd_k2(vK2,TILE)
    for t in range(9):
        last=(t==8); last2=(t==7); tn=t+1
        cur=vS[t&1]; nxt=vS[(t+1)&1]; off=t*TILE
        Cn = vr(vML,16) if tn==8 else vr(vC,16)
        a('s_waitcnt lgkmcnt(0)')
        if 2<=tn<=7: cmid_switch('p2',tn,f'v{vM}')
        if PRIO and t%PRIO==0: prio_switch((t//PRIO)&1,f'L_apr{t}')
        wo_dma()
        if t==0: wo_dma()
        def A_():
            if not last: qk1(nxt,Cn,vQa1)
            if not last and not last2: rd_k1(vK1,off+2*TILE)
        def B_():
            pv(vO,(t+1)&1,1)
            if not last: rd_v((t+1)&1,off+TILE)
        def C_():
            if not last: qk2(nxt,vQa2)
            if not last and not last2: rd_k2(vK2,off+2*TILE)
        expgroups(cur,A_,B_,C_,lambda: pv(vO,t&1,0))
    assert wocnt[0]==13
    a('s_nop 1')
    pv(vO,0,1)
    a('s_setprio 0')
    a('s_nop 15')
    get_l()
    store_o(sOA)
    p.stamp(10)
    a('s_waitcnt vmcnt(0)')
    a('s_barrier')
    p.stamp(11)
    a(f's_cmp_lg_u32 s{sWV}, 4')
    a('s_cbranch_scc1 L_p3')
    a(f's_lshl_b32 s{st0}, s{sJ}, 5')
    a(f's_add_u32 s{st0}, s{st0}, s{sHD}')
    a(f's_lshl_b32 s{st0}, s{st0}, 7')
    a(f's_add_u32 s{st0}, s{st0}, 32768')
    setflag(a,st0)
    a(f's_lshl_b32 s{st0}, s{sJ}, 12')
    a(f's_add_u32 s{st0}, s{st0}, {WS_FLG+32768}')
    a(f'v_and_b32 v{vt0}, 31, v{vLane}')
    a(f'v_lshlrev_b32 v{vt0}, 7, v{vt0}')
    a(f'v_add_u32 v{vt0}, s{st0}, v{vt0}')
    poll(a,'p3',vt0,[0],(1<<32)-1)
    a('s_barrier')
    a('s_branch L_done')
    for L,fn in ool:
        a.lab(L); fn(); a(f's_branch {L}_r')
    a.lab('L_b_fallback')
    a(f'v_lshlrev_b32 v{vt4}, 3, v{vRho}')
    a(f'v_add_u32 v{vt4}, 1024, v{vt4}')
    a(f'v_lshrrev_b32 v{vt0}, 5, v{vLane}')
    a(f'v_bfe_u32 v{vt5}, v{vRho}, 2, 2')
    a(f'v_xor_b32 v{vt5}, v{vt5}, v{vt0}')
    a(f'v_lshlrev_b32 v{vt5}, 4, v{vt5}')
    a(f'v_lshl_add_u32 v{vt5}, v{vRho}, 6, v{vt5}')
    a(f'v_add_u32 v{vt5}, 1280, v{vt5}')
    a(f'v_xor_b32 v{vt0}, 32, v{vt5}')
    a(f'v_mov_b32 v{vM}, {NEG_BIG:#x}')
    a(f's_mov_b32 s{st0}, s{sHB}')
    a(f's_mov_b32 s{sIT}, 64')
    a.lab('L_fb_p1')
    a(f'buffer_load_dwordx2 {vr(vK1,2)}, v{vQ1o}, s[{sR}:{sR+3}], s{st0} offen {SL}')
    a(f'buffer_load_dwordx2 {vr(vK1+2,2)}, v{vQ1o}, s[{sR}:{sR+3}], s{st0} offen offset:512 {SL}')
    a(f'buffer_load_dwordx2 {vr(vK2,2)}, v{vt4}, s[{sR}:{sR+3}], s{st0} offen {SL}')
    a('s_waitcnt vmcnt(0)')
    qk1(vSa,'0',vQa1); qk2(vSa,vQa2)
    a('s_nop 15')
    rowmax(vM,vSa,False)
    a(f's_add_u32 s{st0}, s{st0}, {TILE}')
    a(f's_sub_u32 s{sIT}, s{sIT}, 1')
    a(f's_cmp_lg_u32 s{sIT}, 0')
    a('s_cbranch_scc1 L_fb_p1')
    xhalf_max(vM)
    for r in range(16): a(f'v_sub_f32 v{vCa+r}, 0, v{vM}')
    for r in range(16): a(f'v_mov_b32 v{vOa+r}, 0')
    a(f's_mov_b32 s{st0}, s{sHB}')
    a(f's_mov_b32 s{sIT}, 64')
    a.lab('L_fb_p2')
    a(f'buffer_load_dwordx2 {vr(vK1,2)}, v{vQ1o}, s[{sR}:{sR+3}], s{st0} offen {SL}')
    a(f'buffer_load_dwordx2 {vr(vK1+2,2)}, v{vQ1o}, s[{sR}:{sR+3}], s{st0} offen offset:512 {SL}')
    a(f'buffer_load_dwordx2 {vr(vK2,2)}, v{vt4}, s[{sR}:{sR+3}], s{st0} offen {SL}')
    a(f's_mov_b64 exec, s[{sVm}:{sVm+1}]')
    a(f'buffer_load_dwordx4 {vr(vV,4)}, v{vt5}, s[{sR}:{sR+3}], s{st0} offen {SL}')
    a(f'buffer_load_dwordx4 {vr(vV+4,4)}, v{vt0}, s[{sR}:{sR+3}], s{st0} offen {SL}')
    a('s_mov_b64 exec, -1')
    a('s_waitcnt vmcnt(0)')
    qk1(vSa,vr(vCa,16),vQa1); qk2(vSa,vQa2)
    a('s_nop 15')
    for r in range(16): ex(vSa,r)
    a('s_nop 0')
    for c in range(8): cv(vSa,c)
    a('s_nop 1')
    pv(vOa,0,0); pv(vOa,0,1)
    a(f's_add_u32 s{st0}, s{st0}, {TILE}')
    a(f's_sub_u32 s{sIT}, s{sIT}, 1')
    a(f's_cmp_lg_u32 s{sIT}, 0')
    a('s_cbranch_scc1 L_fb_p2')
    a('s_nop 15')
    get_l()
    a('s_branch L_b_store')
    return vEnd, dict(sHD=sHD,sJ=sJ)

def phase3(a,p,info):
    WOFF=40960; NPH=5; spp=4
    sHD,sJ=info['sHD'],info['sJ']
    sX,sO=4,8
    st0,st1,st2,st3=20,21,22,23
    sPH=28; sBR=29; sMT=30; sNT=31; sNeed=39
    vLane=1; vXo=2; vt0=4; vt1=5; vt2=6; vt3=7; vTok=8; vG=9; vTr=10; vOut=11; vTp=12
    vX=16; vWf=vX+160; vAcc=vWf+40; vEnd=vAcc+40
    a.lab('L_p3')
    a(f's_cmp_ge_u32 s{sWV}, 4')
    a('s_cbranch_scc1 L_done')
    a('s_load_dwordx2 s[50:51], s[0:1], 48')
    a(f's_lshr_b32 s{sBR}, s{sHD}, 4')
    a(f's_bfe_u32 s{st0}, s{sHD}, 0x10003')
    a(f's_lshl_b32 s{sMT}, s{sJ}, 1')
    a(f's_add_u32 s{sMT}, s{sMT}, s{st0}')
    a(f's_and_b32 s{sNT}, s{sHD}, 7')
    a(f's_and_b32 s{sPH}, s{sHD}, 3')
    a(f'v_and_b32 v{vTok}, 15, v{vLane}')
    a(f'v_lshrrev_b32 v{vG}, 4, v{vLane}')
    a(f'v_lshlrev_b32 v{vXo}, 4, v{vLane}')
    a(f's_lshl_b32 s{st0}, s{sMT}, 3')
    a(f's_lshl_b32 s{st1}, s{sWV}, 1')
    a(f's_add_u32 s{st0}, s{st0}, s{st1}')
    a(f's_mul_i32 s32, s{st0}, 20480')
    a(f's_mul_i32 s{st0}, s{sBR}, {2048*1280}')
    a(f's_add_u32 s{st0}, s{st0}, {WS_O}')
    a(f's_add_u32 s52, s{sWS}, s{st0}')
    a(f's_addc_u32 s53, s{sWS+1}, 0')
    srd(a,sX,52,53,2048*1280)
    a(f'v_bfe_u32 v{vt0}, v{vLane}, 2, 2')
    a(f'v_lshl_add_u32 v{vt0}, v{vG}, 2, v{vt0}')
    a(f'v_mul_u32_u24 v{vt0}, 160, v{vt0}')
    a(f'v_and_b32 v{vt1}, 3, v{vLane}')
    a(f'v_lshl_add_u32 v{vTr}, v{vt1}, 3, v{vt0}')
    a(f'v_add_u32 v{vTr}, {WOFF}, v{vTr}')
    for i in range(40): a(f'v_mov_b32 v{vAcc+i}, 0')
    a(f's_lshl_b32 s{st0}, s{sMT}, 7')
    a(f's_lshl_b32 s{st1}, s{sWV}, 5')
    a(f's_add_u32 s{st0}, s{st0}, s{st1}')
    a(f'v_add_u32 v{vt0}, s{st0}, v{vTok}')
    a(f'v_mul_u32_u24 v{vt0}, 2560, v{vt0}')
    a(f'v_and_b32 v{vt1}, 1, v{vG}')
    a(f'v_lshlrev_b32 v{vt1}, 5, v{vt1}')
    a(f'v_lshrrev_b32 v{vt2}, 1, v{vG}')
    a(f'v_lshl_add_u32 v{vt1}, v{vt2}, 4, v{vt1}')
    a(f'v_add_u32 v{vOut}, v{vt0}, v{vt1}')
    a(f'v_lshl_add_u32 v{vt3}, v{vG}, 3, v{vt0}')
    a('s_barrier')
    p.stamp(12)
    a(f's_mov_b32 s33, s{sPH}')
    for ph in range(NPH):
        a(f's_mul_i32 s{st0}, s33, {spp*1024}')
        a(f's_add_u32 s34, s32, s{st0}')
        a(f's_add_u32 s35, s34, 20480')
        for s_ in range(spp):
            st=ph*spp+s_
            for u in range(2):
                a(f'buffer_load_dwordx4 {vr(vX+(st*2+u)*4,4)}, v{vXo}, s[{sX}:{sX+3}], s{34+u} offen offset:{s_*1024} {SL}')
        a('s_add_u32 s33, s33, 1')
        a(f's_cmp_eq_u32 s33, {NPH}')
        a('s_cselect_b32 s33, 0, s33')
    a('s_waitcnt lgkmcnt(0)')
    srd(a,sO,50,51,2048*2560)
    def trr(s,cp,h):
        s_=s%spp
        buf=vWf+(s&1)*20+cp*4+2*h
        return f'ds_read_b64_tr_b16 {vr(buf,2)}, v{vTp+((s//spp)&1)} offset:{s_*5120+cp*32+h*2560}'
    def setp(ph):
        a(f's_mul_i32 s{st0}, s{sPH}, {spp*5120}')
        a(f'v_add_u32 v{vTp+(ph&1)}, s{st0}, v{vTr}')
        a(f's_add_u32 s{sPH}, s{sPH}, 1')
        a(f's_cmp_eq_u32 s{sPH}, {NPH}')
        a(f's_cselect_b32 s{sPH}, 0, s{sPH}')
    setp(0)
    for cp in range(5):
        a(trr(0,cp,0)); a(trr(0,cp,1))
    for s in range(20):
        if s%spp==0 and s//spp+1<NPH: setp(s//spp+1)
        nxt=[trr(s+1,cp,h) for cp in range(5) for h in range(2)] if s+1<20 else []
        buf=vWf+(s&1)*20
        a(f's_waitcnt lgkmcnt(0) vmcnt({2*(19-s)})')
        for cp in range(5):
            for u in range(2):
                ac=vAcc+(cp*2+u)*4
                a(f'v_mfma_f32_16x16x32_bf16 {vr(ac,4)}, {vr(buf+cp*4,4)}, {vr(vX+(s*2+u)*4,4)}, {vr(ac,4)}')
                if nxt: a(nxt.pop(0))
    a('s_nop 7')
    p.stamp(13)
    a(f's_mul_i32 s{st0}, s{sBR}, 1280')
    a(f's_mul_i32 s{st1}, s{sNT}, 160')
    a(f's_add_u32 s{st0}, s{st0}, s{st1}')
    a(f's_add_u32 s{st1}, s{st0}, {16*2560}')
    for u in range(2):
        for cp in range(5):
            b=vAcc+(cp*2+u)*4
            a(f'v_cvt_pk_bf16_f32 v{b}, v{b}, v{b+1}')
            a(f'v_cvt_pk_bf16_f32 v{b+1}, v{b+2}, v{b+3}')
        for cp in (0,2):
            b=vAcc+(cp*2+u)*4; b2=vAcc+((cp+1)*2+u)*4
            a(f'v_mov_b32 v{b+2}, v{b2}')
            a(f'v_mov_b32 v{b+3}, v{b2+1}')
            a('s_nop 1')
            a(f'v_permlane16_swap_b32 v{b}, v{b+2}')
            a(f'v_permlane16_swap_b32 v{b+1}, v{b+3}')
            a('s_nop 1')
            a(f'buffer_store_dwordx4 {vr(b,4)}, v{vOut}, s[{sO}:{sO+3}], s{st0+u} offen offset:{cp*32}')
        b=vAcc+(4*2+u)*4
        a(f'buffer_store_dwordx2 {vr(b,2)}, v{vt3}, s[{sO}:{sO+3}], s{st0+u} offen offset:128')
    return vEnd

def build(**kw):
    a=A(); p=Prof(a)
    a.raw(f'.globl {KNAME}'); a.raw('.p2align 8'); a.raw(f'.type {KNAME},@function'); a.lab(KNAME)
    a('s_cmp_ge_u32 s2, 256')
    a('s_cbranch_scc1 L_exit')
    p.real(0); p.stamp(0)
    a(f's_load_dwordx4 s[{sDBG}:{sDBG+3}], s[0:1], 56' if False else f's_load_dwordx2 s[{sDBG}:{sDBG+1}], s[0:1], 56')
    a(f's_load_dwordx2 s[{sWS}:{sWS+1}], s[0:1], 64')
    a('s_load_dwordx4 s[16:19], s[0:1], 0')
    a('s_load_dwordx4 s[20:23], s[0:1], 24')
    a(f's_mov_b32 s{sWG}, s2')
    a('v_lshrrev_b32 v2, 6, v0')
    a('s_nop 0')
    a(f'v_readfirstlane_b32 s{sWV}, v2')
    a(f's_cmp_lg_u32 s{sWG}, 0')
    a('s_cbranch_scc1 L_notok')
    a(f's_cmp_lg_u32 s{sWV}, 4')
    a('s_cbranch_scc1 L_notok')
    a('s_memrealtime s[56:57]')
    a('s_waitcnt lgkmcnt(0)')
    a('s_or_b32 s56, s56, 1')
    a('s_mov_b64 exec, 1')
    a('v_mov_b32 v2, 0')
    a('v_mov_b32 v3, s56')
    a(f'global_store_dword v2, v3, s[{sDBG}:{sDBG+1}] sc1')
    a('s_mov_b64 exec, -1')
    a.lab('L_notok')
    if CPF:
        a(f's_cmp_lg_u32 s{sWV}, 5')
        a('s_cbranch_scc1 L_nocpf')
        a('s_getpc_b64 s[56:57]')
        a.lab('L_pc')
        a(f's_lshr_b32 s58, s{sWG}, 3')
        a('s_and_b32 s58, s58, 31')
        a('s_lshl_b32 s58, s58, 10')
        a('v_and_b32 v2, 63, v0')
        a('v_lshlrev_b32 v2, 4, v2')
        a('v_add_u32 v2, s58, v2')
        a(f'v_min_u32 v2, CODE_BYTES-16, v2')
        a('global_load_dwordx4 v[240:243], v2, s[56:57]')
        a.lab('L_nocpf')
    v1=phase1(a,p,**kw.get('p1',{}))
    v2,info=phase2(a,p,**kw.get('p2',{}))
    v3=phase3(a,p,info)
    a.lab('L_done')
    if PROF:
        a('s_waitcnt vmcnt(0)')
        p.real(1); p.dump()
    a('s_endpgm')
    a.lab('L_exit')
    a('s_endpgm')
    a.lab('L_code_end')
    a.raw('.set CODE_BYTES, (L_code_end - L_pc) & 0xfffffff0' if CPF else '')
    vg=max(v1,v2,v3,244 if CPF else 0)
    desc=f'''.section .rodata,"a"
.p2align 6
.amdhsa_kernel {KNAME}
  .amdhsa_next_free_vgpr {vg}
  .amdhsa_next_free_sgpr 102
  .amdhsa_accum_offset {(vg+3)//4*4}
  .amdhsa_group_segment_fixed_size 0
  .amdhsa_kernarg_size 72
  .amdhsa_user_sgpr_count 2
  .amdhsa_user_sgpr_kernarg_segment_ptr 1
  .amdhsa_system_sgpr_workgroup_id_x 1
.end_amdhsa_kernel
'''
    hdr=open('cdna_kernels/'+NAME+'.s.ref').read().split('\n')
    out=[]
    for l in hdr:
        if l.startswith('; @launch'): out.append('; @launch grid=(256,1,1) block=(512,1,1) lds=163840'); continue
        if not l.startswith(';'): break
        out.append(l)
    out.append('.amdgcn_target "amdgcn-amd-amdhsa--gfx950"'); out.append('.text')
    return '\n'.join(out)+'\n'+a.txt()+desc

if __name__=='__main__':
    if len(sys.argv)>2 and sys.argv[2]=='prof': PROF=True
    kw=eval(sys.argv[3]) if len(sys.argv)>3 else {}
    if 'CPF' in kw: CPF=kw.pop('CPF')
    if 'RT' in kw: RT=kw.pop('RT')
    if 'BPROF' in kw: BPROF=kw.pop('BPROF')
    if 'SL' in kw: SL=kw.pop('SL')
    if 'SC' in kw: SC=kw.pop('SC')
    open(sys.argv[1],'w').write(build(**kw))
```

```python
import sys, math, struct
NAME='concat_heads__sliding_block__mha_block__prompt'
KNAME=NAME+'_kernel'
WS_Q=0
WS_KV=2*32*64*1280
WS_O=WS_KV+2*32*64*2560
WS_END=WS_O+2*2048*1280
WS_FLG=WS_END
CSCALE=(20.0**-0.5)*math.log2(math.e)
NEG_BIG=0xf149f2ca
def f32bits(x): return struct.unpack('<I',struct.pack('<f',x))[0]
class A:
    def __init__(s): s.l=[]
    def __call__(s,x): s.l.append('  '+x)
    def lab(s,x): s.l.append(x+':')
    def raw(s,x): s.l.append(x)
    def txt(s): return '\n'.join(s.l)+'\n'
def vr(a,n=1): return f'v{a}' if n==1 else f'v[{a}:{a+n-1}]'
PROF=False
BPROF=False
CPF=True
RT=False
PROF_BASE=32<<20
NST=16
class Prof:
    def __init__(s,a): s.a=a; s.n=0
    def stamp(s,i=None,force=False):
        if not PROF: return
        if BPROF==2 and not force and i not in (0,7,8): return
        if i is None: i=s.n
        s.n=max(s.n,i+1)
        assert i<14
        s.a(f's_memrealtime s[{60+2*i}:{61+2*i}]' if RT else f's_memtime s[{60+2*i}:{61+2*i}]')
    def real(s,idx):
        if PROF: s.a(f's_memrealtime s[{88+2*idx}:{89+2*idx}]')
    def dump(s):
        if not PROF: return
        a=s.a
        a('s_waitcnt lgkmcnt(0) vmcnt(0)')
        a(f's_lshl_b32 s92, s{sWG}, 3')
        a(f's_add_u32 s92, s92, s{sWV}')
        a('s_lshl_b32 s92, s92, 6')
        a(f's_add_u32 s92, s92, {PROF_BASE}')
        a(f's_add_u32 s94, s{sWS}, s92')
        a(f's_addc_u32 s95, s{sWS+1}, 0')
        a('v_mov_b32 v0, 0')
        a('s_mov_b64 exec, 1')
        for i in range(14):
            a(f'v_mov_b32 v1, s{60+2*i}')
            a(f'global_store_dword v0, v1, s[94:95] offset:{4*i}')
        a('v_mov_b32 v1, s88'); a('global_store_dword v0, v1, s[94:95] offset:56')
        a('v_mov_b32 v1, s90'); a('global_store_dword v0, v1, s[94:95] offset:60')
        a('s_waitcnt vmcnt(0)')
sWG=96; sWV=97; sDBG=98; sWS=100; sTOK=59
def srd(a, d, lo, hi, nbytes):
    a(f's_mov_b32 s{d}, s{lo}')
    a(f's_and_b32 s{d+1}, s{hi}, 0xffff')
    a(f's_mov_b32 s{d+2}, {nbytes}')
    a(f's_mov_b32 s{d+3}, 0x20000')

SC='sc1'
SL=''

def phase1(a,p,D=3,SY=1):
    R=3; SLOT=49152; XOFF=16384
    sX,sW,sO=4,8,12
    sBR,sMT,sNT=26,27,28
    sKS=31; sXo=32; sW0=34; sIT=36; sSlot=37; sLW=38; sLX=39; sT=40
    st0,st1,st2,st3=41,42,43,44
    sSec=45; sBase=46; sHS=47; sTS=48; sNx=49; sM=30; sN=33; sLd=29
    vLane=1; vt0=6; vt1=7; vt2=8; vt3=9; vt4=10; vTok=11; vG=12; vRho=13
    vLW=2; vLX=4; vXh=2; vXc1=3
    vB0=14; vBc=19; vBn=24; vAd=29
    vWf=(vAd+8+3)//4*4; vXf=vWf+32; vAcc=vXf+4*(D+1); vEnd=vAcc+128
    assert vEnd<=256 and 16%(D+1)==0
    def wf(step,c): return vWf+(step&1)*16+c*4
    def xf(i): return vXf+(i%(D+1))*4
    def acc(c,mt): return vAcc+(c*8+mt)*4
    a(f'v_and_b32 v{vLane}, 63, v0')
    a(f's_and_b32 s{st0}, s{sWG}, 7')
    a(f's_lshr_b32 s{st1}, s{sWG}, 3')
    a(f's_lshr_b32 s{sBR}, s{st0}, 2')
    a(f's_bfe_u32 s{st2}, s{st0}, 0x10001')
    a(f's_lshl_b32 s{st2}, s{st2}, 2')
    a(f's_and_b32 s{st3}, s{st1}, 3')
    a(f's_add_u32 s{sMT}, s{st2}, s{st3}')
    a(f's_and_b32 s{st2}, s{st0}, 1')
    a(f's_lshl_b32 s{st2}, s{st2}, 3')
    a(f's_lshr_b32 s{st1}, s{st1}, 2')
    a(f's_add_u32 s{sNT}, s{st2}, s{st1}')
    a(f's_cmp_ge_u32 s{sNT}, 15')
    a(f's_cbranch_scc1 L_p1_skip')
    a(f's_cmp_ge_u32 s{sWV}, 4')
    a(f's_cbranch_scc1 L_p1_loader')
    a(f's_and_b32 s{sM}, s{sWV}, 1')
    a(f's_lshr_b32 s{sN}, s{sWV}, 1')
    a(f'v_and_b32 v{vTok}, 15, v{vLane}')
    a(f'v_lshrrev_b32 v{vG}, 4, v{vLane}')
    a(f'v_and_b32 v{vt0}, 3, v{vLane}')
    a(f'v_bfe_u32 v{vt1}, v{vLane}, 2, 2')
    a(f'v_and_b32 v{vt2}, 1, v{vG}')
    a(f'v_lshl_or_b32 v{vt2}, v{vt2}, 2, v{vt1}')
    a(f'v_lshl_add_u32 v{vt3}, v{vG}, 3, v{vt1}')
    a(f'v_lshlrev_b32 v{vt3}, 8, v{vt3}')
    a(f'v_lshl_add_u32 v{vt3}, v{vt0}, 3, v{vt3}')
    a(f's_lshl_b32 s{st0}, s{sN}, 2')
    a(f'v_xor_b32 v{vt2}, s{st0}, v{vt2}')
    for c in range(4):
        a(f'v_xor_b32 v{vt4}, {c}, v{vt2}')
        a(f'v_lshl_add_u32 v{vB0+c}, v{vt4}, 5, v{vt3}')
    a(f'v_lshrrev_b32 v{vt0}, 1, v{vTok}')
    a(f'v_xor_b32 v{vt0}, v{vt0}, v{vG}')
    a(f'v_lshlrev_b32 v{vt0}, 4, v{vt0}')
    a(f'v_lshl_add_u32 v{vt0}, v{vTok}, 7, v{vt0}')
    a(f's_lshl_b32 s{st0}, s{sM}, 14')
    a(f's_add_u32 s{st0}, s{st0}, {XOFF}')
    a(f'v_add_u32 v{vB0+4}, s{st0}, v{vt0}')
    a(f'v_xor_b32 v{vXh}, 64, v{vt0}')
    a(f'v_sub_u32 v{vXh}, v{vXh}, v{vt0}')
    for i in range(5): a(f'v_mov_b32 v{vBc+i}, v{vB0+i}')
    for i in range(128): a(f'v_mov_b32 v{vAcc+i}, 0')
    a(f's_mul_i32 s{sSec}, s{sNT}, 52')
    a(f's_lshr_b32 s{sSec}, s{sSec}, 8')
    a(f's_mul_i32 s{st0}, s{sSec}, 5')
    a(f's_sub_u32 s{st0}, s{sNT}, s{st0}')
    a(f's_lshl_b32 s{st0}, s{st0}, 7')
    a(f's_lshl_b32 s{st1}, s{sN}, 6')
    a(f's_add_u32 s{st0}, s{st0}, s{st1}')
    a(f's_cmp_eq_u32 s{sSec}, 0')
    a(f's_cselect_b32 s{st1}, 0, 1')
    a(f's_cselect_b32 s{st2}, 0, {WS_KV}')
    a(f's_lshl_b32 s{sTS}, 1280, s{st1}')
    a(f's_lshl_b32 s{sHS}, s{sTS}, 6')
    a(f's_lshl_b32 s{sT}, s{sMT}, 3')
    a(f's_lshl_b32 s{st1}, s{sM}, 2')
    a(f's_add_u32 s{sT}, s{sT}, s{st1}')
    a(f's_lshl_b32 s{st1}, s{sBR}, 11')
    a(f's_add_u32 s{st1}, s{st1}, s{sT}')
    a(f's_mul_i32 s{st1}, s{st1}, s{sTS}')
    a(f's_add_u32 s{sBase}, s{st1}, s{st2}')
    a(f's_cmp_eq_u32 s{sSec}, 2')
    a(f's_cbranch_scc1 L_p1_adV')
    a(f'v_lshrrev_b32 v{vt0}, 3, v{vTok}')
    a(f'v_lshlrev_b32 v{vRho}, 7, v{vt0}')
    a(f'v_bfe_u32 v{vt0}, v{vTok}, 1, 1')
    a(f'v_lshl_or_b32 v{vRho}, v{vt0}, 6, v{vRho}')
    a(f'v_bfe_u32 v{vt0}, v{vTok}, 2, 1')
    a(f'v_lshl_or_b32 v{vRho}, v{vt0}, 5, v{vRho}')
    a(f'v_and_b32 v{vt0}, 1, v{vTok}')
    a(f'v_lshl_or_b32 v{vRho}, v{vt0}, 4, v{vRho}')
    a(f's_lshr_b32 s{st0}, s{st0}, 2')
    for c in range(4):
        a(f'v_add_u32 v{vt0}, s{st0}, v{vG}')
        if c: a(f'v_add_u32 v{vt0}, {4*c}, v{vt0}')
        a(f'v_mul_u32_u24 v{vt1}, 52429, v{vt0}')
        a(f'v_lshrrev_b32 v{vt1}, 18, v{vt1}')
        a(f'v_mul_u32_u24 v{vt2}, 5, v{vt1}')
        a(f'v_sub_u32 v{vt2}, v{vt0}, v{vt2}')
        a(f'v_mul_u32_u24 v{vt1}, s{sHS}, v{vt1}')
        a(f'v_and_b32 v{vt3}, 1, v{vt2}')
        a(f'v_lshlrev_b32 v{vt3}, 9, v{vt3}')
        a(f'v_lshrrev_b32 v{vt4}, 1, v{vt2}')
        a(f'v_cmp_eq_u32 s[56:57], 4, v{vt2}')
        a(f'v_lshl_add_u32 v{vt3}, v{vt4}, 8, v{vt3}')
        a(f'v_add_u32 v{vt4}, 512, v{vt3}')
        a(f'v_add_u32 v{vt1}, v{vt1}, v{vRho}')
        a(f'v_cndmask_b32 v{vt3}, v{vt3}, v{vt4}, s[56:57]')
        a(f'v_add_u32 v{vAd+c}, v{vt1}, v{vt3}')
    a('s_branch L_p1_adD')
    a.lab('L_p1_adV')
    for c in range(4):
        a(f'v_add_u32 v{vt0}, s{st0}, v{vTok}')
        if c: a(f'v_add_u32 v{vt0}, {16*c}, v{vt0}')
        a(f'v_mul_u32_u24 v{vt1}, 52429, v{vt0}')
        a(f'v_lshrrev_b32 v{vt1}, 20, v{vt1}')
        a(f'v_mul_u32_u24 v{vt2}, 20, v{vt1}')
        a(f'v_sub_u32 v{vt2}, v{vt0}, v{vt2}')
        a(f'v_mul_u32_u24 v{vt1}, {64*2560}, v{vt1}')
        a(f'v_lshl_add_u32 v{vt1}, v{vt2}, 6, v{vt1}')
        a(f'v_bfe_u32 v{vt2}, v{vt2}, 2, 2')
        a(f'v_xor_b32 v{vt2}, v{vt2}, v{vG}')
        a(f'v_lshl_add_u32 v{vt1}, v{vt2}, 4, v{vt1}')
        a(f'v_add_u32 v{vAd+c}, 1280, v{vt1}')
    a.lab('L_p1_adD')
    a('s_waitcnt lgkmcnt(0)')
    srd(a,sO,sWS,sWS+1,WS_O)
    SYNC=SY
    def wread(nxt,h,step,c,hh):
        b=(vBn if nxt else vBc)+c
        return f'ds_read_b64_tr_b16 {vr(wf(step,c)+2*hh,2)}, v{b} offset:{h*8192+1024*hh}'
    def xread(nxt,h,mt,buf):
        b=((vBn if nxt else vBc)+4) if h==0 else vXc1
        return f'ds_read_b128 {vr(xf(buf),4)}, v{b} offset:{mt*2048}'
    a(f's_cmp_eq_u32 s{sSec}, 2')
    a(f's_cbranch_scc1 L_p1_v1')
    for v in range(2):
        a.lab(f'L_p1_v{v}')
        p.stamp(1)
        a('s_barrier')
        p.stamp(2)
        def body(emit,issued):
            waits=[]
            for st in range(2):
                for mt in range(8):
                    gi=st*8+mt
                    need=[('x',gi)]
                    if mt==0: need.append(('w',st))
                    last=max(len(issued)-1-issued[::-1].index(t) for t in need)
                    y=len(issued)-1-last
                    waits.append(y)
                    if emit:
                        y=min(y,wmin[len(waits)-1])
                        a(f's_waitcnt lgkmcnt({min(y,15)})')
                    fill=[]
                    g2=gi+D; nx=g2>=16; h2=(g2%16)//8; m2=g2%8
                    fill.append((xread(nx,h2,m2,g2),('x',g2%16)))
                    if SYNC<mt<=SYNC+4:
                        c=mt-SYNC-1
                        fill.append((wread(st==1,(st+1)&1,st+1,c,0),('w',(st+1)%2)))
                        fill.append((wread(st==1,(st+1)&1,st+1,c,1),('w',(st+1)%2)))
                    if st==0 and mt==0:
                        fill.append((f's_add_u32 s{sNx}, s{sSlot}, {SLOT}',None))
                        fill.append((f's_cmp_eq_u32 s{sNx}, {R*SLOT}',None))
                        fill.append((f's_cselect_b32 s{sNx}, 0, s{sNx}',None))
                        fill.append((f'v_add_u32 v{vXc1}, v{vBc+4}, v{vXh}',None))
                    if st==0 and 2<=mt<=6:
                        fill.append((f'v_add_u32 v{vBn+mt-2}, s{sNx}, v{vB0+mt-2}',None))
                    if st==1 and mt==7:
                        for i in range(5): fill.append((f'v_mov_b32 v{vBc+i}, v{vBn+i}',None))
                        fill.append((f's_mov_b32 s{sSlot}, s{sNx}',None))
                    for c in range(4):
                        x=xf(gi); w=wf(st,c); ac=acc(c,mt)
                        if emit:
                            if v==0: a(f'v_mfma_f32_16x16x32_bf16 {vr(ac,4)}, {vr(w,4)}, {vr(x,4)}, {vr(ac,4)}')
                            else:    a(f'v_mfma_f32_16x16x32_bf16 {vr(ac,4)}, {vr(x,4)}, {vr(w,4)}, {vr(ac,4)}')
                        k=1 if c<3 else len(fill)
                        while k>0 and fill:
                            t,tag=fill.pop(0); k-=1
                            if emit: a(t)
                            if tag: issued.append(tag)
                    if st==0 and mt==SYNC and emit: a('s_barrier')
            return waits
        pro=[('w',0)]*8+[('x',i) for i in range(D)]
        iss=list(pro); w1=body(False,iss); w2=body(False,iss)
        wmin=[min(x,y) for x,y in zip(w1,w2)]
        a(f's_mov_b32 s{sSlot}, 0')
        for c in range(4):
            a(wread(False,0,0,c,0)); a(wread(False,0,0,c,1))
        for i in range(D): a(xread(False,0,i,i))
        a(f's_mov_b32 s{sIT}, 10')
        a.lab(f'L_p1_loop{v}')
        body(True,list(pro))
        a(f's_sub_u32 s{sIT}, s{sIT}, 1')
        a(f's_cmp_lg_u32 s{sIT}, 0')
        a(f's_cbranch_scc1 L_p1_loop{v}')
        a('s_waitcnt lgkmcnt(0)')
        a('s_nop 7')
        p.stamp(3)
        if v==0:
            a(f's_cmp_lg_u32 s{sSec}, 0')
            a(f's_cbranch_scc1 L_p1_ns')
            a(f's_mov_b32 s{st1}, {f32bits(CSCALE):#x}')
            for i in range(128): a(f'v_mul_f32 v{vAcc+i}, s{st1}, v{vAcc+i}')
            a.lab('L_p1_ns')
        for tp in range(4):
            if tp==0: a(f's_mov_b32 s{st0}, s{sBase}')
            else: a(f's_add_u32 s{st0}, s{st0}, s{sTS}')
            for c in range(4):
                b=acc(c,2*tp)
                if v==0:
                    a(f'v_cvt_pk_bf16_f32 v{b}, v{b}, v{b+1}')
                    a(f'v_cvt_pk_bf16_f32 v{b+1}, v{b+2}, v{b+3}')
                    a(f'v_cvt_pk_bf16_f32 v{b+2}, v{b+4}, v{b+5}')
                    a(f'v_cvt_pk_bf16_f32 v{b+3}, v{b+6}, v{b+7}')
                else:
                    a(f'v_cvt_pk_bf16_f32 v{b}, v{b}, v{b+4}')
                    a(f'v_cvt_pk_bf16_f32 v{b+1}, v{b+1}, v{b+5}')
                    a(f'v_cvt_pk_bf16_f32 v{b+2}, v{b+2}, v{b+6}')
                    a(f'v_cvt_pk_bf16_f32 v{b+3}, v{b+3}, v{b+7}')
                a(f'buffer_store_dwordx4 {vr(b,4)}, v{vAd+c}, s[{sO}:{sO+3}], s{st0} offen {SC}')
        a('s_branch L_p1_done')
    a.lab('L_p1_loader')
    a(f's_sub_u32 s{sLd}, s{sWV}, 4')
    a(f's_mul_i32 s{st3}, s{st3}, 5')
    a(f's_lshr_b32 s{st3}, s{st3}, 1')
    a(f's_mul_i32 s{st1}, s{st1}, 5')
    a(f's_lshr_b32 s{st1}, s{st1}, 2')
    a(f's_add_u32 s{sKS}, s{st3}, s{st1}')
    a(f's_cmp_ge_u32 s{sKS}, 10')
    a(f's_cselect_b32 s{st0}, 10, 0')
    a(f's_sub_u32 s{sKS}, s{sKS}, s{st0}')
    a(f's_lshl_b32 s{sLW}, s{sLd}, 12')
    a(f's_lshl_b32 s{sLX}, s{sLd}, 13')
    a(f's_add_u32 s{sLX}, s{sLX}, {XOFF}')
    a(f'v_lshrrev_b32 v{vt0}, 4, v{vLane}')
    a(f'v_bfe_u32 v{vt1}, v{vLane}, 1, 3')
    a(f'v_and_b32 v{vt2}, 1, v{vLane}')
    a(f's_lshl_b32 s{st2}, s{sLd}, 4')
    a(f's_lshl_b32 s{st1}, s{sNT}, 8')
    for jj in range(2):
        a(f'v_add_u32 v{vt3}, {4*jj}, v{vt0}')
        a(f'v_xor_b32 v{vt3}, v{vt3}, v{vt1}')
        a(f'v_lshl_add_u32 v{vt4}, v{vt3}, 1, v{vt2}')
        a(f'v_lshlrev_b32 v{vt4}, 4, v{vt4}')
        a(f'v_add_u32 v{vLW+jj}, s{st2}, v{vt0}')
        if jj: a(f'v_add_u32 v{vLW+jj}, 8, v{vLW+jj}')
        a(f'v_mul_u32_u24 v{vLW+jj}, 3840, v{vLW+jj}')
        a(f'v_add3_u32 v{vLW+jj}, v{vLW+jj}, v{vt4}, s{st1}')
    a(f'v_lshrrev_b32 v{vt0}, 3, v{vLane}')
    a(f'v_and_b32 v{vt1}, 7, v{vLane}')
    a(f's_lshl_b32 s{st0}, s{sMT}, 8')
    a(f's_lshl_b32 s{st1}, s{sLd}, 6')
    a(f's_add_u32 s{st0}, s{st0}, s{st1}')
    for uu in range(2):
        a(f'v_lshrrev_b32 v{vt2}, 1, v{vt0}')
        if uu: a(f'v_add_u32 v{vt2}, 4, v{vt2}')
        a(f'v_xor_b32 v{vt2}, v{vt2}, v{vt1}')
        a(f'v_add_u32 v{vt3}, s{st0}, v{vt0}')
        if uu: a(f'v_add_u32 v{vt3}, 8, v{vt3}')
        a(f'v_mul_u32_u24 v{vt3}, 1280, v{vt3}')
        a(f'v_lshl_add_u32 v{vLX+uu}, v{vt2}, 4, v{vt3}')
    a('s_waitcnt lgkmcnt(0)')
    a(f's_cmp_eq_u32 s{sBR}, 0')
    a('s_cselect_b64 s[16:17], s[16:17], s[20:21]')
    a('s_cselect_b64 s[18:19], s[18:19], s[22:23]')
    srd(a,sX,16,17,2048*1280)
    srd(a,sW,18,19,640*3840)
    NL=12
    def wstep():
        a(f's_mul_i32 s{sW0}, s{sKS}, {64*3840}')
        a(f's_lshl_b32 s{sXo}, s{sKS}, 7')
        a(f's_add_u32 s{st0}, s{sSlot}, s{sLW}')
        a(f's_add_u32 s{st1}, s{sSlot}, s{sLX}')
        for j in range(4):
            a(f's_add_u32 m0, s{st0}, {j*1024}')
            if j&1: a(f's_add_u32 s{st2}, s{sW0}, {4*3840}')
            a(f'buffer_load_dwordx4 v{vLW+(j>>1)}, s[{sW}:{sW+3}], s{st2 if j&1 else sW0} offen lds')
            for u in (2*j,2*j+1):
                a(f's_add_u32 m0, s{st1}, {u*1024}')
                if u>=2 and u%2==0: a(f's_add_u32 s{st3}, s{sXo}, {(u//2)*20480}')
                a(f'buffer_load_dwordx4 v{vLX+(u&1)}, s[{sX}:{sX+3}], s{st3 if u>=2 else sXo} offen lds')
        a(f's_add_u32 s{sKS}, s{sKS}, 1')
        a(f's_cmp_eq_u32 s{sKS}, 10')
        a(f's_cselect_b32 s{sKS}, 0, s{sKS}')
        a(f's_add_u32 s{sSlot}, s{sSlot}, {SLOT}')
        a(f's_cmp_eq_u32 s{sSlot}, {R*SLOT}')
        a(f's_cselect_b32 s{sSlot}, 0, s{sSlot}')
    a(f's_mov_b32 s{sSlot}, 0')
    wstep(); wstep()
    a(f's_waitcnt vmcnt({NL})')
    a('s_barrier')
    a(f's_mov_b32 s{sIT}, 0')
    a.lab('L_p1_ld_loop')
    a('s_waitcnt vmcnt(0)')
    a('s_barrier')
    a(f's_cmp_ge_u32 s{sIT}, 8')
    a('s_cbranch_scc1 L_p1_ld_skip')
    wstep()
    a.lab('L_p1_ld_skip')
    a(f's_add_u32 s{sIT}, s{sIT}, 1')
    a(f's_cmp_lt_u32 s{sIT}, 10')
    a('s_cbranch_scc1 L_p1_ld_loop')
    gettok(a,'p1')
    a(f's_mul_i32 s49, s{sBR}, 15')
    a(f's_add_u32 s49, s49, s{sNT}')
    a(f's_lshl_b32 s49, s49, 3')
    a(f's_add_u32 s49, s49, s{sMT}')
    a(f's_lshl_b32 s49, s49, 7')
    a('s_branch L_p1_done')
    a.lab('L_p1_skip')
    a('s_waitcnt lgkmcnt(0)')
    gettok(a,'p1s')
    a('s_mov_b32 s49, -1')
    a.lab('L_p1_done')
    return vEnd

def gettok(a,tag):
    a(f's_cmp_lg_u32 s{sWV}, 4')
    a(f's_cbranch_scc1 L_tokd_{tag}')
    a('s_mov_b32 s58, 0x40000')
    a('v_mov_b32 v2, 0')
    a.lab(f'L_tok_{tag}')
    a(f'global_load_dword v3, v2, s[{sDBG}:{sDBG+1}] sc1')
    a('s_waitcnt vmcnt(0)')
    a(f'v_readfirstlane_b32 s{sTOK}, v3')
    a('s_nop 3')
    a(f's_cmp_lg_u32 s{sTOK}, 0')
    a(f's_cbranch_scc1 L_tokd_{tag}')
    a('s_sleep 4')
    a('s_sub_u32 s58, s58, 1')
    a('s_cmp_lg_u32 s58, 0')
    a(f's_cbranch_scc1 L_tok_{tag}')
    a.lab(f'L_tokd_{tag}')
def setflag(a,soff):
    a(f's_add_u32 s{soff}, s{soff}, {WS_FLG}')
    a('s_mov_b64 exec, 1')
    a(f'v_mov_b32 v2, s{soff}')
    a(f'v_mov_b32 v3, s{sTOK}')
    a(f'global_store_dword v2, v3, s[{sWS}:{sWS+1}] sc1')
    a('s_mov_b64 exec, -1')
def poll2(a,tag,va,vb,mask):
    a('s_mov_b32 s58, 0x40000')
    a.lab(f'L_poll_{tag}')
    a(f'global_load_dword v3, v{va}, s[{sWS}:{sWS+1}] sc1')
    a(f'global_load_dword v4, v{vb}, s[{sWS}:{sWS+1}] sc1')
    a('s_waitcnt vmcnt(0)')
    a(f'v_cmp_eq_u32 s[56:57], s{sTOK}, v3')
    a(f'v_cmp_eq_u32 vcc, s{sTOK}, v4')
    a('s_nop 4')
    a('s_and_b64 s[56:57], s[56:57], vcc')
    a(f's_and_b32 s56, s56, {mask&0xffffffff:#x}')
    a(f's_and_b32 s57, s57, {mask>>32:#x}')
    a(f's_cmp_lg_u32 s56, {mask&0xffffffff:#x}')
    a(f's_cbranch_scc1 L_polln_{tag}')
    a(f's_cmp_eq_u32 s57, {mask>>32:#x}')
    a(f's_cbranch_scc1 L_polld_{tag}')
    a.lab(f'L_polln_{tag}')
    a('s_sleep 1')
    a('s_sub_u32 s58, s58, 1')
    a('s_cmp_lg_u32 s58, 0')
    a(f's_cbranch_scc1 L_poll_{tag}')
    a.lab(f'L_polld_{tag}')
def poll(a,tag,vaddr,offs,mask):
    a('s_mov_b32 s58, 0x40000')
    a.lab(f'L_poll_{tag}')
    for i,o in enumerate(offs):
        a(f'global_load_dword v{vaddr+1+i}, v{vaddr}, s[{sWS}:{sWS+1}] offset:{o} sc1')
    a('s_waitcnt vmcnt(0)')
    a(f'v_cmp_eq_u32 s[56:57], s{sTOK}, v{vaddr+1}')
    if len(offs)>1:
        a(f'v_cmp_eq_u32 vcc, s{sTOK}, v{vaddr+2}')
        a('s_nop 4')
        a('s_and_b64 s[56:57], s[56:57], vcc')
    else:
        a('s_nop 4')
    a(f's_and_b32 s56, s56, {mask&0xffffffff:#x}')
    a(f's_and_b32 s57, s57, {mask>>32:#x}')
    a(f's_cmp_lg_u32 s56, {mask&0xffffffff:#x}')
    a(f's_cbranch_scc1 L_polln_{tag}')
    a(f's_cmp_eq_u32 s57, {mask>>32:#x}')
    a(f's_cbranch_scc1 L_polld_{tag}')
    a.lab(f'L_polln_{tag}')
    a('s_sleep 2')
    a('s_sub_u32 s58, s58, 1')
    a('s_cmp_lg_u32 s58, 0')
    a(f's_cbranch_scc1 L_poll_{tag}')
    a.lab(f'L_polld_{tag}')

def phase2(a,p,PRIO=0,BSH=0,NOHOOK=0,SPRIO=0):
    TILE=2560; HALF=81920; WOFF=40960; SCR=81920
    sR,sOo,sWo=4,8,12
    sHD,sJ,sQP,sKH=16,17,18,19
    st0,st1,st2,st3=20,21,22,23
    sVm=24; sLo=26
    sIT=28; sHB=29; sHBw=30; sOl=31; sOh=32; sLl=33; sQA=34; sSw=35; sAg=36; sOB=37; sOA=38; sNeed=39
    sTm=40
    sKV=44
    sOff=31; sInc=32
    sWn=48
    sWl=39
    vLane=1; vt0=2; vt1=3; vt2=4; vt3=5; vK1a=6; vK2a=7; vVa=8; vDma=9; vM=10; vRho=11; vKap=12; vOoff=13; vt4=14; vt5=15
    vQa1=16; vQa2=20; vQb2=22; vQb1=24; vK1=28; vK2=32; vQ2o=34; vMb=35
    vV=36; vP=52; vQA2=60; vWo=62; vCc=63; vVb=196; vQ1o=197
    vSa=64; vSb=80; vOa=96; vOb=112; vCa=128; vCb=144; vMF=160; vML=176; vQA1=192
    vEnd=198
    a(f's_load_dwordx2 s[50:51], s[0:1], 16')
    a(f's_load_dwordx2 s[52:53], s[0:1], 40')
    a(f's_and_b32 s{st0}, s{sWG}, 7')
    a(f's_lshr_b32 s{st1}, s{sWG}, 3')
    a(f's_lshl_b32 s{sHD}, s{st0}, 2')
    a(f's_lshr_b32 s{st2}, s{st1}, 3')
    a(f's_add_u32 s{sHD}, s{sHD}, s{st2}')
    a(f's_and_b32 s{sJ}, s{st1}, 7')
    a(f's_and_b32 s{sQP}, s{sWV}, 3')
    a(f's_lshr_b32 s{sKH}, s{sWV}, 2')
    a(f'v_lshlrev_b32 v{vDma}, 4, v{vLane}')
    a(f's_mul_i32 s{sHB}, s{sHD}, {64*TILE}')
    a(f's_add_u32 s{sAg}, s{sHB}, {WS_KV-20480}')
    a(f's_add_u32 s{sHB}, s{sHB}, {WS_KV+32*64*TILE}')
    a(f's_lshl_b32 s{st1}, s{sWV}, 10')
    a(f's_add_u32 s{sHBw}, s{sHB}, s{st1}')
    a(f's_mul_i32 s{st0}, s{sJ}, 20480')
    a(f's_add_u32 s{sAg}, s{sAg}, s{st0}')
    a(f's_mov_b32 s{sVm}, 0xfffff')
    a(f's_mov_b32 s{sVm+1}, 0xfffff')
    a(f's_mov_b32 s{sLo}, -1')
    a(f's_mov_b32 s{sLo+1}, 0')
    a(f'v_and_b32 v{vRho}, 31, v{vLane}')
    a(f'v_lshlrev_b32 v{vt1}, 3, v{vRho}')
    a(f'v_add_u32 v{vK2a}, 1024, v{vt1}')
    a(f'v_mov_b32 v{vt2}, 0x70000000')
    a(f'v_cndmask_b32 v{vQ2o}, v{vt2}, v{vK2a}, s[{sLo}:{sLo+1}]')
    a(f's_lshl_b32 s{st0}, s{sJ}, 3')
    a(f's_lshl_b32 s{st1}, s{sHD}, 6')
    a(f's_add_u32 s{st1}, s{st1}, s{st0}')
    a(f's_add_u32 s{st2}, s{st1}, s{sWV}')
    a(f's_mul_i32 s{sQA}, s{st2}, 1280')
    a(f's_lshl_b32 s{st2}, s{sQP}, 1')
    a(f's_add_u32 s{st2}, s{st2}, s{st1}')
    a(f's_mul_i32 s54, s{st2}, 1280')
    a(f's_add_u32 s54, s54, {32*64*1280}')
    a(f's_add_u32 s55, s54, 1280')
    a(f's_lshl_b32 s{st2}, s{sQP}, 1')
    a(f's_add_u32 s{st2}, s{st2}, s{sKH}')
    a(f's_add_u32 s{st2}, s{st2}, s{st0}')
    a(f's_mul_i32 s{sOB}, s{st2}, 40960')
    a(f's_add_u32 s{sOB}, s{sOB}, {2048*1280}')
    a(f's_add_u32 s{st2}, s{st0}, s{sWV}')
    a(f's_mul_i32 s{sOA}, s{st2}, 40960')
    srd(a,sR,sWS,sWS+1,WS_O)
    a(f's_add_u32 s56, s{sWS}, {WS_O}')
    a(f's_addc_u32 s57, s{sWS+1}, 0')
    srd(a,sOo,56,57,WS_END-WS_O)
    a(f'v_lshrrev_b32 v{vt0}, 5, v{vLane}')
    a(f'v_lshlrev_b32 v{vK1a}, 3, v{vRho}')
    a(f'v_lshl_add_u32 v{vK1a}, v{vt0}, 8, v{vK1a}')
    a(f'v_mov_b32 v{vQ1o}, v{vK1a}')
    a(f'v_bfe_u32 v{vt1}, v{vRho}, 2, 2')
    a(f'v_xor_b32 v{vt1}, v{vt1}, v{vt0}')
    a(f'v_lshlrev_b32 v{vt1}, 4, v{vt1}')
    a(f'v_lshl_add_u32 v{vVa}, v{vRho}, 6, v{vt1}')
    a(f'v_add_u32 v{vVa}, 1280, v{vVa}')
    a(f'v_xor_b32 v{vVb}, 32, v{vVa}')
    a(f'v_and_b32 v{vt1}, 1, v{vRho}')
    a(f'v_lshlrev_b32 v{vKap}, 4, v{vt1}')
    a(f'v_lshrrev_b32 v{vt1}, 4, v{vRho}')
    a(f'v_lshl_or_b32 v{vKap}, v{vt1}, 3, v{vKap}')
    a(f'v_and_b32 v{vt1}, 4, v{vRho}')
    a(f'v_or_b32 v{vKap}, v{vKap}, v{vt1}')
    a(f'v_bfe_u32 v{vt1}, v{vRho}, 3, 1')
    a(f'v_lshl_or_b32 v{vKap}, v{vt1}, 1, v{vKap}')
    a(f'v_bfe_u32 v{vt1}, v{vRho}, 1, 1')
    a(f'v_or_b32 v{vKap}, v{vKap}, v{vt1}')
    a(f'v_lshlrev_b32 v{vt3}, 2, v{vt0}')
    a(f'v_sub_u32 v{vt3}, v{vKap}, v{vt3}')
    a(f'v_mov_b32 v{vt2}, {NEG_BIG:#x}')
    for r in range(16):
        base=(r&3)+8*(r>>2)
        kb=16*(r&1)+8*((r>>3)&1)+2*((r>>2)&1)+((r>>1)&1)
        a(f'v_cmp_gt_i32 s[{sTm+2*(r&3)}:{sTm+1+2*(r&3)}], {kb}, v{vt3}')
        if r>=2:
            q=r-2
            a(f'v_cndmask_b32 v{vMF+q}, v{vt2}, 0, s[{sTm+2*(q&3)}:{sTm+1+2*(q&3)}]')
            a(f'v_cndmask_b32 v{vML+q}, 0, v{vt2}, s[{sTm+2*(q&3)}:{sTm+1+2*(q&3)}]')
    a('s_nop 1')
    for q in (14,15):
        a(f'v_cndmask_b32 v{vMF+q}, v{vt2}, 0, s[{sTm+2*(q&3)}:{sTm+1+2*(q&3)}]')
        a(f'v_cndmask_b32 v{vML+q}, 0, v{vt2}, s[{sTm+2*(q&3)}:{sTm+1+2*(q&3)}]')
    a(f's_cmp_lg_u32 s{sJ}, 0')
    a('s_cbranch_scc1 L_mf_ok')
    for r in range(16): a(f'v_mov_b32 v{vMF+r}, v{vt2}')
    a.lab('L_mf_ok')
    a(f's_add_u32 s{sKV}, s{sWS}, s{sHB}')
    a(f's_addc_u32 s{sKV+1}, s{sWS+1}, 0')
    a(f's_and_b32 s{sKV+1}, s{sKV+1}, 0xffff')
    a(f's_mov_b32 s{sKV+2}, 163840')
    a(f's_mov_b32 s{sKV+3}, 0x20000')
    a(f's_lshl_b32 s{sOff}, s{sWV}, 10')
    a(f's_mov_b32 s{sInc}, {HALF}')
    a(f's_mov_b32 s{sInc+1}, {(8192-HALF)&0xffffffff}')
    def vinit():
        a(f'v_cmp_eq_u32 s[{sTm}:{sTm+1}], 20, v{vRho}')
        a(f'v_mov_b32 v{vt1}, 0x3f803f80')
        a('s_nop 0')
        a(f'v_cndmask_b32 v{vt1}, 0, v{vt1}, s[{sTm}:{sTm+1}]')
        for i in range(16): a(f'v_mov_b32 v{vV+i}, v{vt1}')
    vinit()
    a(f'v_lshrrev_b32 v{vt1}, 4, v{vKap}')
    a(f'v_mul_u32_u24 v{vt1}, 20480, v{vt1}')
    a(f'v_and_b32 v{vt2}, 15, v{vKap}')
    a(f'v_lshl_add_u32 v{vOoff}, v{vt2}, 4, v{vt1}')
    for r in range(16): a(f'v_mov_b32 v{vOa+r}, 0')
    for r in range(16): a(f'v_mov_b32 v{vOb+r}, 0')
    for i in range(4): a(f'v_mov_b32 v{vP+4+i}, 0')
    a(f's_lshl_b32 s{st0}, s{sWV}, 6')
    a(f'v_add_u32 v{vt0}, s{st0}, v{vLane}')
    a(f'v_mul_u32_u24 v{vt1}, 52429, v{vt0}')
    a(f'v_lshrrev_b32 v{vt1}, 19, v{vt1}')
    a(f'v_mul_u32_u24 v{vt2}, 10, v{vt1}')
    a(f'v_sub_u32 v{vCc}, v{vt0}, v{vt2}')
    a(f'v_mul_u32_u24 v{vt1}, 1280, v{vt1}')
    a(f'v_lshl_add_u32 v{vWo}, v{vCc}, 4, v{vt1}')
    a(f's_lshl_b32 s{sWl}, s{sWV}, 10')
    a(f's_add_u32 s{sWl}, s{sWl}, {WOFF}')
    a(f's_and_b32 s{sWn}, s{sHD}, 7')
    a(f's_mul_i32 s{sWn}, s{sWn}, 160')
    a('s_waitcnt lgkmcnt(0)')
    a(f's_cmp_lt_u32 s{sHD}, 16')
    a('s_cselect_b64 s[50:51], s[50:51], s[52:53]')
    srd(a,sWo,50,51,640*1280)
    p.stamp(5)
    a('s_waitcnt vmcnt(0)')
    a('s_barrier')
    p.stamp(4)
    a(f's_cmp_lg_u32 s{sWV}, 4')
    a('s_cbranch_scc1 L_p2_go')
    a('s_cmp_eq_u32 s49, -1')
    a('s_cbranch_scc1 L_p2_nofl')
    setflag(a,49)
    a.lab('L_p2_nofl')
    a(f's_mul_i32 s{st0}, s{sHD}, 20')
    a(f's_lshr_b32 s{st1}, s{st0}, 7')
    a(f's_add_u32 s{st0}, s{st0}, 19')
    a(f's_lshr_b32 s{st0}, s{st0}, 7')
    a(f's_sub_u32 s{st0}, s{st0}, s{st1}')
    a(f'v_lshrrev_b32 v{vt0}, 4, v{vLane}')
    a(f'v_min_u32 v{vt0}, 2, v{vt0}')
    a(f'v_mul_u32_u24 v{vt0}, 5, v{vt0}')
    a(f'v_bfe_u32 v{vt1}, v{vLane}, 3, 1')
    a(f'v_mul_u32_u24 v{vt1}, s{st0}, v{vt1}')
    a(f'v_add3_u32 v{vt0}, v{vt0}, v{vt1}, s{st1}')
    a(f'v_lshlrev_b32 v{vt0}, 10, v{vt0}')
    a(f'v_and_b32 v{vt1}, 7, v{vLane}')
    a(f'v_lshl_add_u32 v{vt0}, v{vt1}, 7, v{vt0}')
    a(f'v_add_u32 v{vt0}, {WS_FLG}, v{vt0}')
    a(f'v_add_u32 v{vt5}, {15*1024}, v{vt0}')
    poll2(a,'p2',vt0,vt5,(1<<48)-1)
    a.lab('L_p2_go')
    a('s_barrier')
    p.stamp(6)

    def rd_k1(dst,off):
        assert off%512==0 and off//512+1<256
        a(f'ds_read2st64_b64 {vr(dst,4)}, v{vK1a} offset0:{off//512} offset1:{off//512+1}')
    def rd_k2(dst,off): a(f'ds_read_b64 {vr(dst,2)}, v{vK2a} offset:{off}')
    def rd_v(buf,off):
        a(f's_mov_b64 exec, s[{sVm}:{sVm+1}]')
        a(f'ds_read_b128 {vr(vV+8*buf,4)}, v{vVa} offset:{off}')
        a(f'ds_read_b128 {vr(vV+8*buf+4,4)}, v{vVb} offset:{off}')
        a('s_mov_b64 exec, -1')
    def qk1(S,C,Q1,K=None): a(f'v_mfma_f32_32x32x16_bf16 {vr(S,16)}, {vr(vK1 if K is None else K,4)}, {vr(Q1,4)}, {C}')
    def qk2(S,Q2,K=None): a(f'v_mfma_f32_32x32x8bf16_1k {vr(S,16)}, {vr(vK2 if K is None else K,2)}, {vr(Q2,2)}, {vr(S,16)}')
    def pv(O,buf,t): a(f'v_mfma_f32_32x32x16_bf16 {vr(O,16)}, {vr(vV+8*buf+4*t,4)}, {vr(vP+4*t,4)}, {vr(O,16)}')
    def ex(S,r): a(f'v_exp_f32 v{S+r}, v{S+r}')
    def cv(S,c): a(f'v_cvt_pk_bf16_f32 v{vP+c}, v{S+2*c}, v{S+2*c+1}')
    def rowmax(M,S,first):
        if first:
            a(f'v_max3_f32 v{M}, v{S}, v{S+1}, v{S+2}'); rest=list(range(3,16))
        else: rest=list(range(16))
        while len(rest)>=2:
            a(f'v_max3_f32 v{M}, v{M}, v{S+rest[0]}, v{S+rest[1]}'); rest=rest[2:]
        if rest: a(f'v_max_f32 v{M}, v{M}, v{S+rest[0]}')
    def xhalf_max(M):
        a(f'v_mov_b32 v{vt1}, v{M}')
        a('s_nop 1')
        a(f'v_permlane32_swap_b32 v{M}, v{vt1}')
        a('s_nop 1')
        a(f'v_max_f32 v{M}, v{M}, v{vt1}')
    def get_l():
        a(f'v_mov_b32 v{vt1}, v{vOa+8}')
        a(f'v_mov_b32 v{vt2}, v{vOa+8}')
        a('s_nop 1')
        a(f'v_permlane32_swap_b32 v{vt1}, v{vt2}')
        a('s_nop 1')
    def store_o(soff):
        a(f'v_rcp_f32 v{vt3}, v{vt2}')
        a(f's_mul_i32 s{st0}, s{sHD}, 5')
        a(f'v_lshrrev_b32 v{vt0}, 5, v{vLane}')
        for i in range(12): a(f'v_mul_f32 v{vOa+i}, v{vOa+i}, v{vt3}')
        for i in range(6): a(f'v_cvt_pk_bf16_f32 v{vSa+i}, v{vOa+2*i}, v{vOa+2*i+1}')
        for k,qb in enumerate((0,2,4)):
            a(f'v_add_u32 v{vt4}, s{st0}, v{vt0}')
            if qb: a(f'v_add_u32 v{vt4}, {qb}, v{vt4}')
            a(f'v_lshrrev_b32 v{vt5}, 3, v{vt4}')
            a(f'v_lshlrev_b32 v{vt5}, 10, v{vt5}')
            a(f'v_and_b32 v{vt1}, 3, v{vt4}')
            a(f'v_lshl_add_u32 v{vt5}, v{vt1}, 8, v{vt5}')
            a(f'v_bfe_u32 v{vt1}, v{vt4}, 2, 1')
            a(f'v_lshl_add_u32 v{vt5}, v{vt1}, 3, v{vt5}')
            a(f'v_add_u32 v{vt5}, v{vt5}, v{vOoff}')
            if k==2: a(f's_mov_b64 exec, s[{sLo}:{sLo+1}]')
            a(f'buffer_store_dwordx2 {vr(vSa+2*k,2)}, v{vt5}, s[{sOo}:{sOo+3}], s{soff} offen {SC}')
            if k==2: a('s_mov_b64 exec, -1')
    def addr_add(s):
        for r in (vK1a,vK2a,vVa,vVb): a(f'v_add_u32 v{r}, s{s}, v{r}')
    def addr_addi(imm):
        for r in (vK1a,vK2a,vVa,vVb): a(f'v_add_u32 v{r}, {imm}, v{r}')
    def dma_row(k):
        a(f's_mov_b32 m0, s{sOff}')
        a(f'buffer_load_dwordx4 v{vDma}, s[{sKV}:{sKV+3}], s{sOff} offen {SL} lds')
        a(f's_add_u32 s{sOff}, s{sOff}, s{sInc+(k&1)}')
    def dma_pair():
        dma_row(0); dma_row(1)
    def prio_switch(phase,L):
        a(f's_cmp_lt_u32 s{sWV}, 4')
        a(f's_cbranch_scc{1-phase} {L}_hi')
        a('s_setprio 0')
        a(f's_branch {L}_d')
        a.lab(f'{L}_hi')
        a('s_setprio 1')
        a.lab(f'{L}_d')
    def expgroups(cur,A_,B_,C_,D_):
        A_()
        for r in range(0,4): ex(cur,r)
        B_()
        ex(cur,4); ex(cur,5); cv(cur,0); ex(cur,6); cv(cur,1); ex(cur,7)
        C_()
        ex(cur,8); cv(cur,2); ex(cur,9); cv(cur,3); ex(cur,10); ex(cur,11)
        D_()
        ex(cur,12); ex(cur,13); cv(cur,4); ex(cur,14); cv(cur,5); ex(cur,15); cv(cur,6); cv(cur,7)

    dma_pair()
    a(f'buffer_load_dwordx2 {vr(vQa1,2)}, v{vQ1o}, s[{sR}:{sR+3}], s54 offen {SL}'); a(f'buffer_load_dwordx2 {vr(vQa1+2,2)}, v{vQ1o}, s[{sR}:{sR+3}], s54 offen offset:512 {SL}')
    a(f'buffer_load_dwordx2 {vr(vQa2,2)}, v{vQ2o}, s[{sR}:{sR+3}], s54 offen {SL}')
    a(f'buffer_load_dwordx2 {vr(vQb1,2)}, v{vQ1o}, s[{sR}:{sR+3}], s55 offen {SL}'); a(f'buffer_load_dwordx2 {vr(vQb1+2,2)}, v{vQ1o}, s[{sR}:{sR+3}], s55 offen offset:512 {SL}')
    a(f'buffer_load_dwordx2 {vr(vQb2,2)}, v{vQ2o}, s[{sR}:{sR+3}], s55 offen {SL}')
    dma_pair()
    if NOHOOK:
        for _ in range(8): dma_pair()
        a('s_waitcnt vmcnt(0)')
    a('s_waitcnt vmcnt(2)')
    a('s_barrier')
    p.stamp(7)
    rd_k1(vK1,0); rd_k2(vK2,0)
    a('s_waitcnt lgkmcnt(0)')
    qk1(vSa,'0',vQa1); qk2(vSa,vQa2)
    qk1(vSb,'0',vQb1); qk2(vSb,vQb2)
    a(f's_mul_i32 s{st0}, s{sKH}, {HALF}')
    addr_add(st0)
    rd_k1(vK1,0); rd_k2(vK2,0); rd_v(0,0)
    a('s_nop 7')
    rowmax(vM,vSa,True)
    rowmax(vMb,vSb,True)
    xhalf_max(vM); xhalf_max(vMb)
    for r in range(16): a(f'v_sub_f32 v{vCa+r}, 0, v{vM}')
    for r in range(16): a(f'v_sub_f32 v{vCb+r}, 0, v{vMb}')
    a('s_waitcnt lgkmcnt(0)')
    qk1(vSa,vr(vCa,16),vQa1); qk2(vSa,vQa2)
    a(f's_mov_b32 s{sIT}, 0')
    if SPRIO:
        a(f's_cmp_lt_u32 s{sWV}, 4'); a('s_cbranch_scc1 L_sp'); a('s_setprio 1'); a.lab('L_sp')
    a.raw('.p2align 6')
    for _ in range(BSH): a('s_nop 0')
    a.lab('L_b_loop')
    ool=[]
    def cond(it,L,fn):
        a(f's_cmp_eq_u32 s{sIT}, {it}'); a(f's_cbranch_scc1 {L}'); a.lab(L+'_r')
        ool.append((L,fn))
    for pp in range(8):
        off=pp*TILE
        if pp==2: cond(0,'L_h02',lambda: (a('s_waitcnt vmcnt(2)'),a('s_barrier')))
        if pp==5:
            a(f's_cmp_lg_u32 s{sIT}, 2'); a('s_cbranch_scc1 L_h5'); a.lab('L_h5_r')
            def h5():
                a(f's_cmp_eq_u32 s{sIT}, 0'); a('s_cbranch_scc1 L_h5a')
                a(f's_cmp_eq_u32 s{sIT}, 3'); a('s_cbranch_scc1 L_h5b')
                a('s_waitcnt vmcnt(1)'); a('s_barrier'); a('s_branch L_h5_r')
                a.lab('L_h5b')
                a(f's_mov_b32 s{sOff}, 200000'); a(f's_mov_b32 s{sInc}, 0'); a(f's_mov_b32 s{sInc+1}, 0'); a('s_branch L_h5_r')
                a.lab('L_h5a'); a('s_waitcnt vmcnt(3)'); a('s_barrier')
            ool.append(('L_h5',h5))
        dma_row(pp)
        expgroups(vSa,
            lambda: (qk1(vSb,vr(vCb,16),vQb1), rd_k1(vK1,off+TILE)),
            lambda: (pv(vOb,(pp+1)&1,1), rd_v((pp+1)&1,off+TILE)),
            lambda: (qk2(vSb,vQb2), rd_k2(vK2,off+TILE)),
            lambda: pv(vOa,pp&1,0))
        a('s_waitcnt lgkmcnt(0)')
        expgroups(vSb,
            lambda: qk1(vSa,vr(vCa,16),vQa1),
            lambda: pv(vOa,pp&1,1),
            lambda: qk2(vSa,vQa2),
            lambda: pv(vOb,pp&1,0))
    a(f's_cmp_eq_u32 s{sIT}, 3'); a('s_cbranch_scc1 L_b_exit')
    a(f's_cmp_eq_u32 s{sIT}, 1'); a('s_cbranch_scc1 L_bb1')
    a(f's_cmp_eq_u32 s{sIT}, 2'); a('s_cbranch_scc1 L_bb2')
    a('s_waitcnt vmcnt(2)'); a('s_barrier')
    a.lab('L_bb_r')
    def bb1():
        a(f's_mov_b32 s{sKV+2}, 0')
        a('s_branch L_bb_r')
    def bb2():
        a('s_waitcnt vmcnt(0)'); a('s_barrier')
        a(f's_add_u32 s{sKV}, s{sWS}, s{sAg}')
        a(f's_addc_u32 s{sKV+1}, s{sWS+1}, 0')
        a(f's_and_b32 s{sKV+1}, s{sKV+1}, 0xffff')
        a(f's_mov_b32 s{sKV+2}, 40960')
        a(f's_lshl_b32 s{sOff}, s{sWV}, 10')
        a(f's_mov_b32 s{sInc}, 8192')
        a(f's_mov_b32 s{sInc+1}, 8192')
        a(f'buffer_load_dwordx2 {vr(vQA1,2)}, v{vQ1o}, s[{sR}:{sR+3}], s{sQA} offen {SL}')
        a(f'buffer_load_dwordx2 {vr(vQA1+2,2)}, v{vQ1o}, s[{sR}:{sR+3}], s{sQA} offen offset:512 {SL}')
        a(f'buffer_load_dwordx2 {vr(vQA2,2)}, v{vQ2o}, s[{sR}:{sR+3}], s{sQA} offen {SL}')
        a('s_branch L_bb_r')
    ool.append(('L_bb1',bb1)); ool.append(('L_bb2',bb2))
    addr_addi(8*TILE)
    if PROF and BPROF==1:
        for k in range(4):
            a(f's_cmp_lg_u32 s{sIT}, {k}'); a(f's_cbranch_scc1 L_st{k}'); p.stamp(1+k); a.lab(f'L_st{k}')
    a(f's_add_u32 s{sIT}, s{sIT}, 1')
    a('s_branch L_b_loop')
    a.lab('L_b_exit')
    addr_addi(8*TILE)
    a('s_nop 1')
    pv(vOb,1,1)
    a('s_setprio 0')
    a('s_nop 15')
    p.stamp(8)
    a(f's_lshl_b32 s{st0}, s{sQP}, 1')
    a(f's_cmp_eq_u32 s{sKH}, 0')
    a('s_cbranch_scc0 L_mg_hi')
    a(f's_add_u32 s{st1}, s{st0}, 1')
    a(f's_mul_i32 s{st1}, s{st1}, 3072')
    a(f's_add_u32 s{st1}, s{st1}, {SCR}')
    a(f'v_add_u32 v{vt4}, s{st1}, v{vDma}')
    for i in range(3): a(f'ds_write_b128 v{vt4}, {vr(vOb+4*i,4)} offset:{1024*i}')
    a(f's_mul_i32 s{st1}, s{st0}, 3072')
    a('s_branch L_mg_d')
    a.lab('L_mg_hi')
    a(f's_mul_i32 s{st1}, s{st0}, 3072')
    a(f's_add_u32 s{st1}, s{st1}, {SCR}')
    a(f'v_add_u32 v{vt4}, s{st1}, v{vDma}')
    for i in range(3): a(f'ds_write_b128 v{vt4}, {vr(vOa+4*i,4)} offset:{1024*i}')
    for i in range(12): a(f'v_mov_b32 v{vOa+i}, v{vOb+i}')
    for i in range(4): a(f'v_mov_b32 v{vQa1+i}, v{vQb1+i}')
    for i in range(2): a(f'v_mov_b32 v{vQa2+i}, v{vQb2+i}')
    a(f's_add_u32 s{st1}, s{st0}, 1')
    a(f's_mul_i32 s{st1}, s{st1}, 3072')
    a.lab('L_mg_d')
    a(f's_add_u32 s{st1}, s{st1}, {SCR}')
    a(f'v_add_u32 v{vt4}, s{st1}, v{vDma}')
    a('s_waitcnt lgkmcnt(0) vmcnt(0)')
    a('s_barrier')
    for i in range(3): a(f'ds_read_b128 {vr(vSa+4*i,4)}, v{vt4} offset:{1024*i}')
    a('s_waitcnt lgkmcnt(0)')
    a('s_barrier')
    for i in range(12): a(f'v_add_f32 v{vOa+i}, v{vOa+i}, v{vSa+i}')
    get_l()
    a(f'v_mov_b32 v{vt3}, {f32bits(2.0**100):#x}')
    a(f'v_cmp_nlt_f32 vcc, v{vt2}, v{vt3}')
    a('s_nop 4')
    a('s_cbranch_vccnz L_b_fallback')
    a.lab('L_b_store')
    store_o(sOB)
    p.stamp(9)
    a(f's_mul_i32 s{st0}, s{sWV}, {TILE}')
    a(f's_mul_i32 s{st1}, s{sKH}, {HALF}')
    a(f's_sub_u32 s{st0}, s{st0}, s{st1}')
    a(f's_sub_u32 s{st0}, s{st0}, {32*TILE}')
    addr_add(st0)
    for i in range(4): a(f'v_mov_b32 v{vQa1+i}, v{vQA1+i}')
    for i in range(2): a(f'v_mov_b32 v{vQa2+i}, v{vQA2+i}')
    a(f's_sub_u32 s{sSw}, 8, s{sWV}')
    a(f's_cmp_lg_u32 s{sJ}, 0')
    a(f's_cselect_b32 s{sSw}, 0, s{sSw}')
    vC=vCa; vO=vOa; vS=[vSa,vSb]
    KR=[(vV,vV+4),(vV+8,vV+12),(vP,vP+4)]
    SB=[vSa,vSb,vOa]
    def cmid_init(tag,val):
        a(f's_cmp_le_u32 s{sSw}, 1')
        a(f's_cbranch_scc1 L_cm_{tag}_v')
        for r in range(16): a(f'v_mov_b32 v{vC+r}, {NEG_BIG:#x}')
        a(f's_branch L_cm_{tag}_d')
        a.lab(f'L_cm_{tag}_v')
        for r in range(16): a(f'v_mov_b32 v{vC+r}, {val}')
        a.lab(f'L_cm_{tag}_d')
    def cmid_switch(tag,t,val):
        L=f'L_sw_{tag}_{t}'
        a(f's_cmp_eq_u32 s{sSw}, {t}')
        a(f's_cbranch_scc1 {L}')
        a.lab(L+'_r')
        def fn():
            a('s_nop 15')
            for r in range(16): a(f'v_mov_b32 v{vC+r}, {val}')
            a('s_nop 1')
        ool.append((L,fn))
    wocnt=[0]
    def wo_dma():
        if wocnt[0]>=10: return
        n=wocnt[0]; wocnt[0]+=1
        a(f's_cmp_lt_u32 s{sWV}, 5')
        a(f's_cbranch_scc0 L_wo{n}')
        for k in range(2):
            a(f's_mov_b32 m0, s{sWl}')
            a(f's_add_u32 s{sWl}, s{sWl}, 5120')
            a(f'buffer_load_dwordx4 v{vWo}, s[{sWo}:{sWo+3}], s{sWn} offen lds')
            a(f's_add_u32 s{sWn}, s{sWn}, 40960')
        a.lab(f'L_wo{n}')
    cmid_init('p1','0')
    for i in range(3):
        rd_k1(KR[i][0],i*TILE); rd_k2(KR[i][1],i*TILE)
    for b in range(3):
        a('s_waitcnt lgkmcnt(0)')
        for i in range(3):
            t=3*b+i
            if 2<=t<=7: cmid_switch('p1',t,'0')
            C = vr(vMF,16) if t==0 else (vr(vML,16) if t==8 else vr(vC,16))
            qk1(SB[i],C,vQa1,KR[i][0]); qk2(SB[i],vQa2,KR[i][1])
        if b<2:
            for i in range(3):
                t=3*(b+1)+i
                rd_k1(KR[i][0],t*TILE); rd_k2(KR[i][1],t*TILE)
        if b==2:
            rd_k1(vK1,0); rd_k2(vK2,0)
        wo_dma()
        a('s_nop 3')
        for i in range(3):
            if i==2: a('s_nop 3')
            rowmax(vM,SB[i],b==0 and i==0)
    xhalf_max(vM)
    a(f'v_sub_f32 v{vM}, 0, v{vM}')
    for r in range(16): a(f'v_add_f32 v{vMF+r}, v{vMF+r}, v{vM}')
    for r in range(16): a(f'v_add_f32 v{vML+r}, v{vML+r}, v{vM}')
    cmid_init('p2',f'v{vM}')
    for r in range(16): a(f'v_mov_b32 v{vO+r}, 0')
    vinit()
    for i in range(4): a(f'v_mov_b32 v{vP+4+i}, 0')
    a('s_waitcnt lgkmcnt(0)')
    qk1(vS[0],vr(vMF,16),vQa1); qk2(vS[0],vQa2)
    rd_k1(vK1,TILE); rd_v(0,0); rd_k2(vK2,TILE)
    for t in range(9):
        last=(t==8); last2=(t==7); tn=t+1
        cur=vS[t&1]; nxt=vS[(t+1)&1]; off=t*TILE
        Cn = vr(vML,16) if tn==8 else vr(vC,16)
        a('s_waitcnt lgkmcnt(0)')
        if 2<=tn<=7: cmid_switch('p2',tn,f'v{vM}')
        if PRIO and t%PRIO==0: prio_switch((t//PRIO)&1,f'L_apr{t}')
        wo_dma()
        def A_():
            if not last: qk1(nxt,Cn,vQa1)
            if not last and not last2: rd_k1(vK1,off+2*TILE)
        def B_():
            pv(vO,(t+1)&1,1)
            if not last: rd_v((t+1)&1,off+TILE)
        def C_():
            if not last: qk2(nxt,vQa2)
            if not last and not last2: rd_k2(vK2,off+2*TILE)
        expgroups(cur,A_,B_,C_,lambda: pv(vO,t&1,0))
    assert wocnt[0]==10
    a('s_nop 1')
    pv(vO,0,1)
    a('s_setprio 0')
    a('s_nop 15')
    get_l()
    store_o(sOA)
    p.stamp(10)
    a('s_waitcnt vmcnt(0)')
    a('s_barrier')
    p.stamp(11)
    a(f's_cmp_lg_u32 s{sWV}, 4')
    a('s_cbranch_scc1 L_p3')
    a(f's_lshl_b32 s{st0}, s{sJ}, 5')
    a(f's_add_u32 s{st0}, s{st0}, s{sHD}')
    a(f's_lshl_b32 s{st0}, s{st0}, 7')
    a(f's_add_u32 s{st0}, s{st0}, 32768')
    setflag(a,st0)
    a(f's_lshl_b32 s{st0}, s{sJ}, 12')
    a(f's_add_u32 s{st0}, s{st0}, {WS_FLG+32768}')
    a(f'v_and_b32 v{vt0}, 31, v{vLane}')
    a(f'v_lshlrev_b32 v{vt0}, 7, v{vt0}')
    a(f'v_add_u32 v{vt0}, s{st0}, v{vt0}')
    poll(a,'p3',vt0,[0],(1<<32)-1)
    a('s_barrier')
    a('s_branch L_done')
    for L,fn in ool:
        a.lab(L); fn()
        if not L.startswith('L_bb'): a(f's_branch {L}_r')
    a.lab('L_b_fallback')
    a(f'v_lshlrev_b32 v{vt4}, 3, v{vRho}')
    a(f'v_add_u32 v{vt4}, 1024, v{vt4}')
    a(f'v_lshrrev_b32 v{vt0}, 5, v{vLane}')
    a(f'v_bfe_u32 v{vt5}, v{vRho}, 2, 2')
    a(f'v_xor_b32 v{vt5}, v{vt5}, v{vt0}')
    a(f'v_lshlrev_b32 v{vt5}, 4, v{vt5}')
    a(f'v_lshl_add_u32 v{vt5}, v{vRho}, 6, v{vt5}')
    a(f'v_add_u32 v{vt5}, 1280, v{vt5}')
    a(f'v_xor_b32 v{vt0}, 32, v{vt5}')
    a(f'v_mov_b32 v{vM}, {NEG_BIG:#x}')
    a(f's_mov_b32 s{st0}, s{sHB}')
    a(f's_mov_b32 s{sIT}, 64')
    a.lab('L_fb_p1')
    a(f'buffer_load_dwordx2 {vr(vK1,2)}, v{vQ1o}, s[{sR}:{sR+3}], s{st0} offen {SL}')
    a(f'buffer_load_dwordx2 {vr(vK1+2,2)}, v{vQ1o}, s[{sR}:{sR+3}], s{st0} offen offset:512 {SL}')
    a(f'buffer_load_dwordx2 {vr(vK2,2)}, v{vt4}, s[{sR}:{sR+3}], s{st0} offen {SL}')
    a('s_waitcnt vmcnt(0)')
    qk1(vSa,'0',vQa1); qk2(vSa,vQa2)
    a('s_nop 15')
    rowmax(vM,vSa,False)
    a(f's_add_u32 s{st0}, s{st0}, {TILE}')
    a(f's_sub_u32 s{sIT}, s{sIT}, 1')
    a(f's_cmp_lg_u32 s{sIT}, 0')
    a('s_cbranch_scc1 L_fb_p1')
    xhalf_max(vM)
    for r in range(16): a(f'v_sub_f32 v{vCa+r}, 0, v{vM}')
    for r in range(16): a(f'v_mov_b32 v{vOa+r}, 0')
    a(f's_mov_b32 s{st0}, s{sHB}')
    a(f's_mov_b32 s{sIT}, 64')
    a.lab('L_fb_p2')
    a(f'buffer_load_dwordx2 {vr(vK1,2)}, v{vQ1o}, s[{sR}:{sR+3}], s{st0} offen {SL}')
    a(f'buffer_load_dwordx2 {vr(vK1+2,2)}, v{vQ1o}, s[{sR}:{sR+3}], s{st0} offen offset:512 {SL}')
    a(f'buffer_load_dwordx2 {vr(vK2,2)}, v{vt4}, s[{sR}:{sR+3}], s{st0} offen {SL}')
    a(f's_mov_b64 exec, s[{sVm}:{sVm+1}]')
    a(f'buffer_load_dwordx4 {vr(vV,4)}, v{vt5}, s[{sR}:{sR+3}], s{st0} offen {SL}')
    a(f'buffer_load_dwordx4 {vr(vV+4,4)}, v{vt0}, s[{sR}:{sR+3}], s{st0} offen {SL}')
    a('s_mov_b64 exec, -1')
    a('s_waitcnt vmcnt(0)')
    qk1(vSa,vr(vCa,16),vQa1); qk2(vSa,vQa2)
    a('s_nop 15')
    for r in range(16): ex(vSa,r)
    a('s_nop 0')
    for c in range(8): cv(vSa,c)
    a('s_nop 1')
    pv(vOa,0,0); pv(vOa,0,1)
    a(f's_add_u32 s{st0}, s{st0}, {TILE}')
    a(f's_sub_u32 s{sIT}, s{sIT}, 1')
    a(f's_cmp_lg_u32 s{sIT}, 0')
    a('s_cbranch_scc1 L_fb_p2')
    a('s_nop 15')
    get_l()
    a('s_branch L_b_store')
    return vEnd, dict(sHD=sHD,sJ=sJ)

def phase3(a,p,info):
    WOFF=40960; NPH=5; spp=4
    sHD,sJ=info['sHD'],info['sJ']
    sX,sO=4,8
    st0,st1,st2,st3=20,21,22,23
    sPH=28; sBR=29; sMT=30; sNT=31; sNeed=39
    vLane=1; vXo=2; vt0=4; vt1=5; vt2=6; vt3=7; vTok=8; vG=9; vTr=10; vOut=11; vTp=12
    vX=16; vWf=vX+160; vAcc=vWf+40; vEnd=vAcc+40
    a.lab('L_p3')
    a(f's_cmp_ge_u32 s{sWV}, 4')
    a('s_cbranch_scc1 L_done')
    a('s_load_dwordx2 s[50:51], s[0:1], 48')
    a(f's_lshr_b32 s{sBR}, s{sHD}, 4')
    a(f's_bfe_u32 s{st0}, s{sHD}, 0x10003')
    a(f's_lshl_b32 s{sMT}, s{sJ}, 1')
    a(f's_add_u32 s{sMT}, s{sMT}, s{st0}')
    a(f's_and_b32 s{sNT}, s{sHD}, 7')
    a(f's_and_b32 s{sPH}, s{sHD}, 3')
    a(f'v_and_b32 v{vTok}, 15, v{vLane}')
    a(f'v_lshrrev_b32 v{vG}, 4, v{vLane}')
    a(f'v_lshlrev_b32 v{vXo}, 4, v{vLane}')
    a(f's_lshl_b32 s{st0}, s{sMT}, 3')
    a(f's_lshl_b32 s{st1}, s{sWV}, 1')
    a(f's_add_u32 s{st0}, s{st0}, s{st1}')
    a(f's_mul_i32 s32, s{st0}, 20480')
    a(f's_mul_i32 s{st0}, s{sBR}, {2048*1280}')
    a(f's_add_u32 s{st0}, s{st0}, {WS_O}')
    a(f's_add_u32 s52, s{sWS}, s{st0}')
    a(f's_addc_u32 s53, s{sWS+1}, 0')
    srd(a,sX,52,53,2048*1280)
    a(f'v_bfe_u32 v{vt0}, v{vLane}, 2, 2')
    a(f'v_lshl_add_u32 v{vt0}, v{vG}, 2, v{vt0}')
    a(f'v_mul_u32_u24 v{vt0}, 160, v{vt0}')
    a(f'v_and_b32 v{vt1}, 3, v{vLane}')
    a(f'v_lshl_add_u32 v{vTr}, v{vt1}, 3, v{vt0}')
    a(f'v_add_u32 v{vTr}, {WOFF}, v{vTr}')
    for i in range(40): a(f'v_mov_b32 v{vAcc+i}, 0')
    a(f's_lshl_b32 s{st0}, s{sMT}, 7')
    a(f's_lshl_b32 s{st1}, s{sWV}, 5')
    a(f's_add_u32 s{st0}, s{st0}, s{st1}')
    a(f'v_add_u32 v{vt0}, s{st0}, v{vTok}')
    a(f'v_mul_u32_u24 v{vt0}, 2560, v{vt0}')
    a(f'v_and_b32 v{vt1}, 1, v{vG}')
    a(f'v_lshlrev_b32 v{vt1}, 5, v{vt1}')
    a(f'v_lshrrev_b32 v{vt2}, 1, v{vG}')
    a(f'v_lshl_add_u32 v{vt1}, v{vt2}, 4, v{vt1}')
    a(f'v_add_u32 v{vOut}, v{vt0}, v{vt1}')
    a(f'v_lshl_add_u32 v{vt3}, v{vG}, 3, v{vt0}')
    a('s_barrier')
    p.stamp(12)
    a(f's_mov_b32 s33, s{sPH}')
    for ph in range(NPH):
        a(f's_mul_i32 s{st0}, s33, {spp*1024}')
        a(f's_add_u32 s34, s32, s{st0}')
        a(f's_add_u32 s35, s34, 20480')
        for s_ in range(spp):
            st=ph*spp+s_
            for u in range(2):
                a(f'buffer_load_dwordx4 {vr(vX+(st*2+u)*4,4)}, v{vXo}, s[{sX}:{sX+3}], s{34+u} offen offset:{s_*1024} {SL}')
        a('s_add_u32 s33, s33, 1')
        a(f's_cmp_eq_u32 s33, {NPH}')
        a('s_cselect_b32 s33, 0, s33')
    a('s_waitcnt lgkmcnt(0)')
    srd(a,sO,50,51,2048*2560)
    def trr(s,cp,h):
        s_=s%spp
        buf=vWf+(s&1)*20+cp*4+2*h
        return f'ds_read_b64_tr_b16 {vr(buf,2)}, v{vTp+((s//spp)&1)} offset:{s_*5120+cp*32+h*2560}'
    def setp(ph):
        a(f's_mul_i32 s{st0}, s{sPH}, {spp*5120}')
        a(f'v_add_u32 v{vTp+(ph&1)}, s{st0}, v{vTr}')
        a(f's_add_u32 s{sPH}, s{sPH}, 1')
        a(f's_cmp_eq_u32 s{sPH}, {NPH}')
        a(f's_cselect_b32 s{sPH}, 0, s{sPH}')
    setp(0)
    for cp in range(5):
        a(trr(0,cp,0)); a(trr(0,cp,1))
    for s in range(20):
        if s%spp==0 and s//spp+1<NPH: setp(s//spp+1)
        nxt=[trr(s+1,cp,h) for cp in range(5) for h in range(2)] if s+1<20 else []
        buf=vWf+(s&1)*20
        a(f's_waitcnt lgkmcnt(0) vmcnt({2*(19-s)})')
        k=0
        for cp in range(5):
            for u in range(2):
                ac=vAcc+(cp*2+u)*4
                a(f'v_mfma_f32_16x16x32_bf16 {vr(ac,4)}, {vr(buf+cp*4,4)}, {vr(vX+(s*2+u)*4,4)}, {vr(ac,4)}')
                for _ in range(2 if k<5 else 0):
                    if nxt: a(nxt.pop(0))
                k+=1
    a('s_nop 7')
    p.stamp(13)
    a(f's_mul_i32 s{st0}, s{sBR}, 1280')
    a(f's_mul_i32 s{st1}, s{sNT}, 160')
    a(f's_add_u32 s{st0}, s{st0}, s{st1}')
    a(f's_add_u32 s{st1}, s{st0}, {16*2560}')
    for u in range(2):
        for cp in range(5):
            b=vAcc+(cp*2+u)*4
            a(f'v_cvt_pk_bf16_f32 v{b}, v{b}, v{b+1}')
            a(f'v_cvt_pk_bf16_f32 v{b+1}, v{b+2}, v{b+3}')
        for cp in (0,2):
            b=vAcc+(cp*2+u)*4; b2=vAcc+((cp+1)*2+u)*4
            a(f'v_mov_b32 v{b+2}, v{b2}')
            a(f'v_mov_b32 v{b+3}, v{b2+1}')
            a('s_nop 1')
            a(f'v_permlane16_swap_b32 v{b}, v{b+2}')
            a(f'v_permlane16_swap_b32 v{b+1}, v{b+3}')
            a('s_nop 1')
            a(f'buffer_store_dwordx4 {vr(b,4)}, v{vOut}, s[{sO}:{sO+3}], s{st0+u} offen offset:{cp*32}')
        b=vAcc+(4*2+u)*4
        a(f'buffer_store_dwordx2 {vr(b,2)}, v{vt3}, s[{sO}:{sO+3}], s{st0+u} offen offset:128')
    return vEnd

def build(**kw):
    a=A(); p=Prof(a)
    a.raw(f'.globl {KNAME}'); a.raw('.p2align 8'); a.raw(f'.type {KNAME},@function'); a.lab(KNAME)
    a('s_cmp_ge_u32 s2, 256')
    a('s_cbranch_scc1 L_exit')
    p.real(0); p.stamp(0)
    a(f's_load_dwordx4 s[{sDBG}:{sDBG+3}], s[0:1], 56' if False else f's_load_dwordx2 s[{sDBG}:{sDBG+1}], s[0:1], 56')
    a(f's_load_dwordx2 s[{sWS}:{sWS+1}], s[0:1], 64')
    a('s_load_dwordx4 s[16:19], s[0:1], 0')
    a('s_load_dwordx4 s[20:23], s[0:1], 24')
    a(f's_mov_b32 s{sWG}, s2')
    a('v_lshrrev_b32 v2, 6, v0')
    a('s_nop 0')
    a(f'v_readfirstlane_b32 s{sWV}, v2')
    a(f's_cmp_lg_u32 s{sWG}, 0')
    a('s_cbranch_scc1 L_notok')
    a(f's_cmp_lg_u32 s{sWV}, 4')
    a('s_cbranch_scc1 L_notok')
    a('s_memrealtime s[56:57]')
    a('s_waitcnt lgkmcnt(0)')
    a('s_or_b32 s56, s56, 1')
    a('s_mov_b64 exec, 1')
    a('v_mov_b32 v2, 0')
    a('v_mov_b32 v3, s56')
    a(f'global_store_dword v2, v3, s[{sDBG}:{sDBG+1}] sc1')
    a('s_mov_b64 exec, -1')
    a.lab('L_notok')
    if CPF:
        a(f's_cmp_lg_u32 s{sWV}, 5')
        a('s_cbranch_scc1 L_nocpf')
        a('s_getpc_b64 s[56:57]')
        a.lab('L_pc')
        a(f's_lshr_b32 s58, s{sWG}, 3')
        a('s_and_b32 s58, s58, 31')
        a('s_lshl_b32 s58, s58, 10')
        a('v_and_b32 v2, 63, v0')
        a('v_lshlrev_b32 v2, 4, v2')
        a('v_add_u32 v2, s58, v2')
        a(f'v_min_u32 v2, CODE_BYTES-16, v2')
        a('global_load_dwordx4 v[240:243], v2, s[56:57]')
        a.lab('L_nocpf')
    v1=phase1(a,p,**kw.get('p1',{}))
    v2,info=phase2(a,p,**kw.get('p2',{}))
    v3=phase3(a,p,info)
    a.lab('L_done')
    if PROF:
        a('s_waitcnt vmcnt(0)')
        p.real(1); p.dump()
    a('s_endpgm')
    a.lab('L_exit')
    a('s_endpgm')
    a.lab('L_code_end')
    a.raw('.set CODE_BYTES, (L_code_end - L_pc) & 0xfffffff0' if CPF else '')
    vg=max(v1,v2,v3,244 if CPF else 0)
    desc=f'''.section .rodata,"a"
.p2align 6
.amdhsa_kernel {KNAME}
  .amdhsa_next_free_vgpr {vg}
  .amdhsa_next_free_sgpr 102
  .amdhsa_accum_offset {(vg+3)//4*4}
  .amdhsa_group_segment_fixed_size 0
  .amdhsa_kernarg_size 72
  .amdhsa_user_sgpr_count 2
  .amdhsa_user_sgpr_kernarg_segment_ptr 1
  .amdhsa_system_sgpr_workgroup_id_x 1
.end_amdhsa_kernel
'''
    hdr=open('cdna_kernels/'+NAME+'.s.ref').read().split('\n')
    out=[]
    for l in hdr:
        if l.startswith('; @launch'): out.append('; @launch grid=(256,1,1) block=(512,1,1) lds=163840'); continue
        if not l.startswith(';'): break
        out.append(l)
    out.append('.amdgcn_target "amdgcn-amd-amdhsa--gfx950"'); out.append('.text')
    return '\n'.join(out)+'\n'+a.txt()+desc

if __name__=='__main__':
    if len(sys.argv)>2 and sys.argv[2]=='prof': PROF=True
    kw=eval(sys.argv[3]) if len(sys.argv)>3 else {}
    if 'CPF' in kw: CPF=kw.pop('CPF')
    if 'RT' in kw: RT=kw.pop('RT')
    if 'BPROF' in kw: BPROF=kw.pop('BPROF')
    if 'SL' in kw: SL=kw.pop('SL')
    if 'SC' in kw: SC=kw.pop('SC')
    open(sys.argv[1],'w').write(build(**kw))
```

```python
import sys, math, struct
NAME='concat_heads__sliding_block__mha_block__prompt'
KNAME=NAME+'_kernel'
WS_Q=0
WS_KV=2*32*64*1280
WS_O=WS_KV+2*32*64*2560
WS_END=WS_O+2*2048*1280
WS_FLG=WS_END
CSCALE=(20.0**-0.5)*math.log2(math.e)
NEG_BIG=0xf149f2ca
def f32bits(x): return struct.unpack('<I',struct.pack('<f',x))[0]
class A:
    def __init__(s): s.l=[]
    def __call__(s,x): s.l.append('  '+x)
    def lab(s,x): s.l.append(x+':')
    def raw(s,x): s.l.append(x)
    def txt(s): return '\n'.join(s.l)+'\n'
def vr(a,n=1): return f'v{a}' if n==1 else f'v[{a}:{a+n-1}]'
PROF=False
BPROF=False
CPF=True
RT=False
PROF_BASE=32<<20
NST=16
class Prof:
    def __init__(s,a): s.a=a; s.n=0
    def stamp(s,i=None,force=False):
        if not PROF: return
        if BPROF==2 and not force and i not in (0,7,8): return
        if BPROF==3 and not force and i not in (0,12,13): return
        if i is None: i=s.n
        s.n=max(s.n,i+1)
        assert i<14
        s.a(f's_memrealtime s[{60+2*i}:{61+2*i}]' if RT else f's_memtime s[{60+2*i}:{61+2*i}]')
    def real(s,idx):
        if PROF: s.a(f's_memrealtime s[{88+2*idx}:{89+2*idx}]')
    def dump(s):
        if not PROF: return
        a=s.a
        a('s_waitcnt lgkmcnt(0) vmcnt(0)')
        a(f's_lshl_b32 s92, s{sWG}, 3')
        a(f's_add_u32 s92, s92, s{sWV}')
        a('s_lshl_b32 s92, s92, 6')
        a(f's_add_u32 s92, s92, {PROF_BASE}')
        a(f's_add_u32 s94, s{sWS}, s92')
        a(f's_addc_u32 s95, s{sWS+1}, 0')
        a('v_mov_b32 v0, 0')
        a('s_mov_b64 exec, 1')
        for i in range(14):
            a(f'v_mov_b32 v1, s{60+2*i}')
            a(f'global_store_dword v0, v1, s[94:95] offset:{4*i}')
        a('v_mov_b32 v1, s88'); a('global_store_dword v0, v1, s[94:95] offset:56')
        a('v_mov_b32 v1, s90'); a('global_store_dword v0, v1, s[94:95] offset:60')
        a('s_waitcnt vmcnt(0)')
sWG=96; sWV=97; sDBG=98; sWS=100; sTOK=59
def srd(a, d, lo, hi, nbytes):
    a(f's_mov_b32 s{d}, s{lo}')
    a(f's_and_b32 s{d+1}, s{hi}, 0xffff')
    a(f's_mov_b32 s{d+2}, {nbytes}')
    a(f's_mov_b32 s{d+3}, 0x20000')

SC='sc1'
SL=''

TILE=2560; HALF=81920
def head_j(a,sH,sJ_,t0,t1):
    a(f's_and_b32 s{t0}, s{sWG}, 7')
    a(f's_lshr_b32 s{t1}, s{sWG}, 3')
    a(f's_lshl_b32 s{sH}, s{t0}, 2')
    a(f's_lshr_b32 s{t0}, s{t1}, 3')
    a(f's_add_u32 s{sH}, s{sH}, s{t0}')
    a(f's_and_b32 s{sJ_}, s{t1}, 7')
def q_issue(a):
    head_j(a,50,51,52,53)
    a('s_lshl_b32 s50, s50, 6')
    a('s_lshl_b32 s51, s51, 3')
    a('s_add_u32 s50, s50, s51')
    a(f's_and_b32 s51, s{sWV}, 3')
    a('s_lshl_b32 s51, s51, 1')
    a('s_add_u32 s50, s50, s51')
    a('s_mul_i32 s50, s50, 1280')
    a(f's_add_u32 s50, s50, {32*64*1280}')
    a('s_add_u32 s51, s50, 1280')
    srd(a,52,sWS,sWS+1,WS_O)
    a('v_and_b32 v2, 31, v1')
    a('v_lshlrev_b32 v2, 3, v2')
    a('v_lshrrev_b32 v3, 5, v1')
    a('v_lshl_add_u32 v3, v3, 8, v2')
    a('v_add_u32 v2, 1024, v2')
    a('v_mov_b32 v4, 0x70000000')
    a('v_cmp_gt_u32 s[56:57], 32, v1')
    a('s_nop 1')
    a('v_cndmask_b32 v2, v4, v2, s[56:57]')
    for (r1,r2,so) in ((16,20,50),(24,22,51)):
        a(f'buffer_load_dwordx2 v[{r1}:{r1+1}], v3, s[52:55], s{so} offen {SL}')
        a(f'buffer_load_dwordx2 v[{r1+2}:{r1+3}], v3, s[52:55], s{so} offen offset:512 {SL}')
        a(f'buffer_load_dwordx2 v[{r2}:{r2+1}], v2, s[52:55], s{so} offen {SL}')
def kv_first(a,pieces,nw_shift):
    head_j(a,50,51,52,53)
    a(f's_mul_i32 s50, s50, {64*TILE}')
    a(f's_add_u32 s50, s50, {WS_KV+32*64*TILE}')
    a(f's_add_u32 s52, s{sWS}, s50')
    a(f's_addc_u32 s53, s{sWS+1}, 0')
    a('s_and_b32 s53, s53, 0xffff')
    a('s_mov_b32 s54, 163840')
    a('s_mov_b32 s55, 0x20000')
    a('v_lshlrev_b32 v2, 4, v1')
    for row in (0,HALF,8192,HALF+8192):
        for pc in pieces:
            a(f's_add_u32 s50, s{pc[0]}, {row+pc[1]}')
            a('s_mov_b32 m0, s50')
            a(f'buffer_load_dwordx4 v2, s[52:55], s50 offen {SL} lds')
def poll_f1(a,tag,br):
    head_j(a,50,51,52,53)
    a('s_mul_i32 s50, s50, 20')
    a('s_lshr_b32 s51, s50, 7')
    a('s_add_u32 s50, s50, 19')
    a('s_lshr_b32 s50, s50, 7')
    a('s_sub_u32 s50, s50, s51')
    a('v_bfe_u32 v2, v1, 4, 1')
    a('v_mul_u32_u24 v2, s50, v2')
    a('v_add_u32 v2, s51, v2')
    a('v_lshrrev_b32 v5, 5, v1')
    a('v_mul_u32_u24 v5, 5, v5')
    a('v_add_u32 v5, v5, v2')
    a('v_add_u32 v14, 10, v2')
    a('v_and_b32 v2, 15, v1')
    a('v_lshl_add_u32 v5, v5, 4, v2')
    a('v_lshl_add_u32 v14, v14, 4, v2')
    a('v_lshlrev_b32 v5, 7, v5')
    a('v_lshlrev_b32 v14, 7, v14')
    a(f'v_add_u32 v5, {WS_FLG+br*15*16*128}, v5')
    a(f'v_add_u32 v14, {WS_FLG+br*15*16*128}, v14')
    poll2(a,tag,5,14,(1<<64)-1)

def phase1(a,p,D=3,SY=1,LP=''):
    R=4; XOFF=16384
    sX,sW,sO=4,8,12
    sBR,sMT,sNT=26,27,28
    sKS=31; sXo=32; sW0=34; sIT=36; sSlot=37; sLW=38; sLX=39; sT=40
    st0,st1,st2,st3=41,42,43,44
    sSec=45; sBase=46; sHS=47; sTS=48; sNx=30; sM=29; sN=33; sIdx=35
    vLane=1; vt0=6; vt1=7; vt2=8; vt3=9; vt4=10; vTok=11; vG=12; vRho=13
    vLW=8; vLX=10; vXh=2; vXc1=3
    vB0=14; vBc=19; vBn=24; vAd=29
    vWf=36; vXf=vWf+32; vAcc=vXf+4*(D+1); vEnd=vAcc+128
    assert vEnd<=256 and 8%(D+1)==0
    def wf(step,c): return vWf+(step&1)*16+c*4
    def xf(i): return vXf+(i%(D+1))*4
    def acc(t,c,mt): return vAcc+t*64+(c*4+mt)*4
    def slotbase(dst,idx):
        a(f's_lshl_b32 s{dst}, s{idx}, 15')
        a(f's_lshr_b32 s{st3}, s{idx}, 1')
        a(f's_lshl_b32 s{st3}, s{st3}, 14')
        a(f's_add_u32 s{dst}, s{dst}, s{st3}')
        a(f's_add_u32 s{dst}, s{dst}, 16384')
    a(f'v_and_b32 v{vLane}, 63, v0')
    a(f's_and_b32 s{st0}, s{sWG}, 7')
    a(f's_lshr_b32 s{st1}, s{sWG}, 3')
    a(f's_and_b32 s{st2}, s{st0}, 1')
    a(f's_lshl_b32 s{st2}, s{st2}, 3')
    a(f's_and_b32 s{st3}, s{st1}, 7')
    a(f's_add_u32 s{sMT}, s{st2}, s{st3}')
    a(f's_lshr_b32 s{st2}, s{st0}, 1')
    a(f's_lshl_b32 s{st2}, s{st2}, 2')
    a(f's_lshr_b32 s{st1}, s{st1}, 3')
    a(f's_add_u32 s{sNT}, s{st2}, s{st1}')
    a(f's_cmp_ge_u32 s{sNT}, 15')
    a(f's_cbranch_scc1 L_p1_skip')
    a(f's_cmp_ge_u32 s{sWV}, 4')
    a(f's_cbranch_scc1 L_p1_loader')
    a(f's_and_b32 s{sM}, s{sWV}, 1')
    a(f's_lshr_b32 s{sN}, s{sWV}, 1')
    a(f'v_and_b32 v{vTok}, 15, v{vLane}')
    a(f'v_lshrrev_b32 v{vG}, 4, v{vLane}')
    a(f'v_and_b32 v{vt0}, 3, v{vLane}')
    a(f'v_bfe_u32 v{vt1}, v{vLane}, 2, 2')
    a(f'v_and_b32 v{vt2}, 1, v{vG}')
    a(f'v_lshl_or_b32 v{vt2}, v{vt2}, 2, v{vt1}')
    a(f'v_lshl_add_u32 v{vt3}, v{vG}, 3, v{vt1}')
    a(f'v_lshlrev_b32 v{vt3}, 8, v{vt3}')
    a(f'v_lshl_add_u32 v{vt3}, v{vt0}, 3, v{vt3}')
    a(f's_lshl_b32 s{st0}, s{sN}, 2')
    a(f'v_xor_b32 v{vt2}, s{st0}, v{vt2}')
    for c in range(4):
        a(f'v_xor_b32 v{vt4}, {c}, v{vt2}')
        a(f'v_lshl_add_u32 v{vB0+c}, v{vt4}, 5, v{vt3}')
    a(f'v_lshrrev_b32 v{vt0}, 1, v{vTok}')
    a(f'v_xor_b32 v{vt0}, v{vt0}, v{vG}')
    a(f'v_lshlrev_b32 v{vt0}, 4, v{vt0}')
    a(f'v_lshl_add_u32 v{vt0}, v{vTok}, 7, v{vt0}')
    a(f's_lshl_b32 s{st0}, s{sM}, 13')
    a(f's_add_u32 s{st0}, s{st0}, {XOFF}')
    a(f'v_add_u32 v{vB0+4}, s{st0}, v{vt0}')
    a(f'v_xor_b32 v{vXh}, 64, v{vt0}')
    a(f'v_sub_u32 v{vXh}, v{vXh}, v{vt0}')
    for i in range(5): a(f'v_add_u32 v{vBc+i}, 16384, v{vB0+i}')
    for i in range(128): a(f'v_mov_b32 v{vAcc+i}, 0')
    a(f's_mul_i32 s{sSec}, s{sNT}, 52')
    a(f's_lshr_b32 s{sSec}, s{sSec}, 8')
    a(f's_mul_i32 s{st0}, s{sSec}, 5')
    a(f's_sub_u32 s{st0}, s{sNT}, s{st0}')
    a(f's_lshl_b32 s{st0}, s{st0}, 7')
    a(f's_lshl_b32 s{st1}, s{sN}, 6')
    a(f's_add_u32 s{st0}, s{st0}, s{st1}')
    a(f's_cmp_eq_u32 s{sSec}, 0')
    a(f's_cselect_b32 s{st1}, 0, 1')
    a(f's_cselect_b32 s{st2}, 0, {WS_KV}')
    a(f's_lshl_b32 s{sTS}, 1280, s{st1}')
    a(f's_lshl_b32 s{sHS}, s{sTS}, 6')
    a(f's_lshl_b32 s{sT}, s{sMT}, 2')
    a(f's_lshl_b32 s{st1}, s{sM}, 1')
    a(f's_add_u32 s{sT}, s{sT}, s{st1}')
    a(f's_mul_i32 s{st1}, s{sT}, s{sTS}')
    a(f's_add_u32 s{sBase}, s{st1}, s{st2}')
    a(f's_cmp_eq_u32 s{sSec}, 2')
    a(f's_cbranch_scc1 L_p1_adV')
    a(f'v_lshrrev_b32 v{vt0}, 3, v{vTok}')
    a(f'v_lshlrev_b32 v{vRho}, 7, v{vt0}')
    a(f'v_bfe_u32 v{vt0}, v{vTok}, 1, 1')
    a(f'v_lshl_or_b32 v{vRho}, v{vt0}, 6, v{vRho}')
    a(f'v_bfe_u32 v{vt0}, v{vTok}, 2, 1')
    a(f'v_lshl_or_b32 v{vRho}, v{vt0}, 5, v{vRho}')
    a(f'v_and_b32 v{vt0}, 1, v{vTok}')
    a(f'v_lshl_or_b32 v{vRho}, v{vt0}, 4, v{vRho}')
    a(f's_lshr_b32 s{st0}, s{st0}, 2')
    for c in range(4):
        a(f'v_add_u32 v{vt0}, s{st0}, v{vG}')
        if c: a(f'v_add_u32 v{vt0}, {4*c}, v{vt0}')
        a(f'v_mul_u32_u24 v{vt1}, 52429, v{vt0}')
        a(f'v_lshrrev_b32 v{vt1}, 18, v{vt1}')
        a(f'v_mul_u32_u24 v{vt2}, 5, v{vt1}')
        a(f'v_sub_u32 v{vt2}, v{vt0}, v{vt2}')
        a(f'v_mul_u32_u24 v{vt1}, s{sHS}, v{vt1}')
        a(f'v_and_b32 v{vt3}, 1, v{vt2}')
        a(f'v_lshlrev_b32 v{vt3}, 9, v{vt3}')
        a(f'v_lshrrev_b32 v{vt4}, 1, v{vt2}')
        a(f'v_cmp_eq_u32 s[56:57], 4, v{vt2}')
        a(f'v_lshl_add_u32 v{vt3}, v{vt4}, 8, v{vt3}')
        a(f'v_add_u32 v{vt4}, 512, v{vt3}')
        a(f'v_add_u32 v{vt1}, v{vt1}, v{vRho}')
        a(f'v_cndmask_b32 v{vt3}, v{vt3}, v{vt4}, s[56:57]')
        a(f'v_add_u32 v{vAd+c}, v{vt1}, v{vt3}')
    a('s_branch L_p1_adD')
    a.lab('L_p1_adV')
    for c in range(4):
        a(f'v_add_u32 v{vt0}, s{st0}, v{vTok}')
        if c: a(f'v_add_u32 v{vt0}, {16*c}, v{vt0}')
        a(f'v_mul_u32_u24 v{vt1}, 52429, v{vt0}')
        a(f'v_lshrrev_b32 v{vt1}, 20, v{vt1}')
        a(f'v_mul_u32_u24 v{vt2}, 20, v{vt1}')
        a(f'v_sub_u32 v{vt2}, v{vt0}, v{vt2}')
        a(f'v_mul_u32_u24 v{vt1}, {64*2560}, v{vt1}')
        a(f'v_lshl_add_u32 v{vt1}, v{vt2}, 6, v{vt1}')
        a(f'v_bfe_u32 v{vt2}, v{vt2}, 2, 2')
        a(f'v_xor_b32 v{vt2}, v{vt2}, v{vG}')
        a(f'v_lshl_add_u32 v{vt1}, v{vt2}, 4, v{vt1}')
        a(f'v_add_u32 v{vAd+c}, 1280, v{vt1}')
    a.lab('L_p1_adD')
    a('s_waitcnt lgkmcnt(0)')
    srd(a,sO,sWS,sWS+1,WS_O)
    def wread(nxt,h,step,c,hh):
        b=(vBn if nxt else vBc)+c
        return f'ds_read_b64_tr_b16 {vr(wf(step,c)+2*hh,2)}, v{b} offset:{h*8192+1024*hh}'
    def xread(nxt,h,mt,buf):
        b=((vBn if nxt else vBc)+4) if h==0 else vXc1
        return f'ds_read_b128 {vr(xf(buf),4)}, v{b} offset:{mt*2048}'
    def epilogue(v,t,br):
        if v==0:
            a(f's_cmp_lg_u32 s{sSec}, 0')
            a(f's_cbranch_scc1 L_p1_ns{t}')
            a(f's_mov_b32 s{st1}, {f32bits(CSCALE):#x}')
            for i in range(64): a(f'v_mul_f32 v{vAcc+64*t+i}, s{st1}, v{vAcc+64*t+i}')
            a.lab(f'L_p1_ns{t}')
        a(f's_lshl_b32 s{st0}, s{sTS}, 11')
        a(f's_mul_i32 s{st0}, s{st0}, {br}')
        a(f's_add_u32 s{st0}, s{st0}, s{sBase}')
        for tp in range(2):
            if tp: a(f's_add_u32 s{st0}, s{st0}, s{sTS}')
            for c in range(4):
                b=acc(t,c,2*tp)
                if v==0:
                    a(f'v_cvt_pk_bf16_f32 v{b}, v{b}, v{b+1}')
                    a(f'v_cvt_pk_bf16_f32 v{b+1}, v{b+2}, v{b+3}')
                    a(f'v_cvt_pk_bf16_f32 v{b+2}, v{b+4}, v{b+5}')
                    a(f'v_cvt_pk_bf16_f32 v{b+3}, v{b+6}, v{b+7}')
                else:
                    a(f'v_cvt_pk_bf16_f32 v{b}, v{b}, v{b+4}')
                    a(f'v_cvt_pk_bf16_f32 v{b+1}, v{b+1}, v{b+5}')
                    a(f'v_cvt_pk_bf16_f32 v{b+2}, v{b+2}, v{b+6}')
                    a(f'v_cvt_pk_bf16_f32 v{b+3}, v{b+3}, v{b+7}')
                a(f'buffer_store_dwordx4 {vr(b,4)}, v{vAd+c}, s[{sO}:{sO+3}], s{st0} offen {SC}')
    a(f's_cmp_eq_u32 s{sSec}, 2')
    a(f's_cbranch_scc1 L_p1_v1')
    for v in range(2):
        a.lab(f'L_p1_v{v}')
        p.stamp(1)
        a('s_barrier')
        p.stamp(2)
        def body(emit,issued,t):
            waits=[]
            for st in range(2):
                for mt in range(4):
                    gi=st*4+mt
                    need=[('x',gi)]
                    if mt==0: need.append(('w',st))
                    last=max(len(issued)-1-issued[::-1].index(tg) for tg in need)
                    y=len(issued)-1-last
                    waits.append(y)
                    if emit:
                        y=min(y,wmin[len(waits)-1])
                        a(f's_waitcnt lgkmcnt({min(y,15)})')
                    fill=[]
                    g2=gi+D; nx=g2>=8; h2=(g2%8)//4; m2=g2%4
                    fill.append((xread(nx,h2,m2,g2),('x',g2%8)))
                    wm={0:(0,1),1:(2,3)} if st==1 else {0:(0,1),1:(2,3)}
                    if mt in wm:
                        for c in wm[mt]:
                            fill.append((wread(st==1,(st+1)&1,st+1,c,0),('w',(st+1)%2)))
                            fill.append((wread(st==1,(st+1)&1,st+1,c,1),('w',(st+1)%2)))
                    if st==0 and mt==0:
                        fill.append((f'v_add_u32 v{vXc1}, v{vBc+4}, v{vXh}',None))
                    if st==0 and mt==2:
                        fill.append((f's_add_u32 s{sIdx}, s{sIdx}, 1',None))
                        fill.append((f's_and_b32 s{sIdx}, s{sIdx}, 3',None))
                        fill.append((f's_lshl_b32 s{sNx}, s{sIdx}, 15',None))
                        fill.append((f's_lshr_b32 s{st3}, s{sIdx}, 1',None))
                        fill.append((f's_lshl_b32 s{st3}, s{st3}, 14',None))
                        fill.append((f's_add_u32 s{sNx}, s{sNx}, s{st3}',None))
                        fill.append((f's_add_u32 s{sNx}, s{sNx}, 16384',None))
                    if st==0 and mt==3:
                        for i in range(5): fill.append((f'v_add_u32 v{vBn+i}, s{sNx}, v{vB0+i}',None))
                    if st==1 and mt==3:
                        for i in range(5): fill.append((f'v_mov_b32 v{vBc+i}, v{vBn+i}',None))
                    for c in range(4):
                        x=xf(gi); w=wf(st,c); ac=acc(t,c,mt)
                        if emit:
                            if v==0: a(f'v_mfma_f32_16x16x32_bf16 {vr(ac,4)}, {vr(w,4)}, {vr(x,4)}, {vr(ac,4)}')
                            else:    a(f'v_mfma_f32_16x16x32_bf16 {vr(ac,4)}, {vr(x,4)}, {vr(w,4)}, {vr(ac,4)}')
                        k=1 if c<3 else len(fill)
                        if len(fill)>4 and c<3: k=2
                        while k>0 and fill:
                            tx,tag=fill.pop(0); k-=1
                            if emit: a(tx)
                            if tag: issued.append(tag)
                    if st==0 and mt==SY and emit:
                        if t==1:
                            a(f's_cmp_eq_u32 s{sIT}, 8'); a(f's_cbranch_scc0 L_p1_nw{v}'); a('s_waitcnt vmcnt(0)'); a.lab(f'L_p1_nw{v}')
                        a('s_barrier')
            return waits
        pro=[('w',0)]*8+[('x',i) for i in range(D)]
        iss=list(pro); w1=body(False,iss,0); w2=body(False,iss,0)
        wmin=[min(x,y) for x,y in zip(w1,w2)]
        a(f's_mov_b32 s{sIdx}, 0')
        for c in range(4):
            a(wread(False,0,0,c,0)); a(wread(False,0,0,c,1))
        for i in range(D): a(xread(False,0,i,i))
        for t in range(2):
            a(f's_mov_b32 s{sIT}, 10')
            a.lab(f'L_p1_loop{v}_{t}')
            body(True,list(pro),t)
            a(f's_sub_u32 s{sIT}, s{sIT}, 1')
            a(f's_cmp_lg_u32 s{sIT}, 0')
            a(f's_cbranch_scc1 L_p1_loop{v}_{t}')
            a('s_nop 7')
            if t==0:
                epilogue(v,0,1) if v==0 else epilogue(v,0,1)
            else:
                p.stamp(3)
                a('s_waitcnt lgkmcnt(0)')
                q_issue(a)
                epilogue(v,1,0)
        a('s_mov_b32 s49, 8')
        a('s_branch L_p1_done')
    a.lab('L_p1_loader')
    sLd=29
    a(f's_sub_u32 s{sLd}, s{sWV}, 4')
    a(f's_mul_i32 s{st3}, s{st3}, 5')
    a(f's_lshr_b32 s{st3}, s{st3}, 2')
    a(f's_mul_i32 s{st1}, s{st1}, 5')
    a(f's_lshr_b32 s{st1}, s{st1}, 1')
    a(f's_add_u32 s{sKS}, s{st3}, s{st1}')
    a(f's_cmp_ge_u32 s{sKS}, 10')
    a(f's_cselect_b32 s{st0}, 10, 0')
    a(f's_sub_u32 s{sKS}, s{sKS}, s{st0}')
    a(f's_lshl_b32 s{sLW}, s{sLd}, 12')
    a(f's_lshl_b32 s{sLX}, s{sLd}, 12')
    a(f's_add_u32 s{sLX}, s{sLX}, {XOFF}')
    a(f'v_lshrrev_b32 v{vt0}, 4, v{vLane}')
    a(f'v_bfe_u32 v{vt1}, v{vLane}, 1, 3')
    a(f'v_and_b32 v2, 1, v{vLane}')
    a(f's_lshl_b32 s{st2}, s{sLd}, 4')
    a(f's_lshl_b32 s{st1}, s{sNT}, 8')
    for jj in range(2):
        a(f'v_add_u32 v3, {4*jj}, v{vt0}')
        a(f'v_xor_b32 v3, v3, v{vt1}')
        a(f'v_lshl_add_u32 v4, v3, 1, v2')
        a(f'v_lshlrev_b32 v4, 4, v4')
        a(f'v_add_u32 v{vLW+jj}, s{st2}, v{vt0}')
        if jj: a(f'v_add_u32 v{vLW+jj}, 8, v{vLW+jj}')
        a(f'v_mul_u32_u24 v{vLW+jj}, 3840, v{vLW+jj}')
        a(f'v_add3_u32 v{vLW+jj}, v{vLW+jj}, v4, s{st1}')
    a(f'v_lshrrev_b32 v{vt0}, 3, v{vLane}')
    a(f'v_and_b32 v{vt1}, 7, v{vLane}')
    a(f's_lshl_b32 s{st0}, s{sMT}, 7')
    a(f's_lshl_b32 s{st1}, s{sLd}, 5')
    a(f's_add_u32 s{st0}, s{st0}, s{st1}')
    for uu in range(2):
        a(f'v_lshrrev_b32 v2, 1, v{vt0}')
        if uu: a(f'v_add_u32 v2, 4, v2')
        a(f'v_xor_b32 v2, v2, v{vt1}')
        a(f'v_add_u32 v3, s{st0}, v{vt0}')
        if uu: a(f'v_add_u32 v3, 8, v3')
        a(f'v_mul_u32_u24 v3, 1280, v3')
        a(f'v_lshl_add_u32 v{vLX+uu}, v2, 4, v3')
    a('s_waitcnt lgkmcnt(0)')
    srd(a,sX,20,21,2048*1280)
    srd(a,sW,22,23,640*3840)
    NL=8
    def wstep():
        a(f's_mul_i32 s{sW0}, s{sKS}, {64*3840}')
        a(f's_lshl_b32 s{sXo}, s{sKS}, 7')
        slotbase(sSlot,sIdx)
        a(f's_add_u32 s{st0}, s{sSlot}, s{sLW}')
        a(f's_add_u32 s{st1}, s{sSlot}, s{sLX}')
        for j in range(4):
            a(f's_add_u32 m0, s{st0}, {j*1024}')
            if j&1: a(f's_add_u32 s{st2}, s{sW0}, {4*3840}')
            a(f'buffer_load_dwordx4 v{vLW+(j>>1)}, s[{sW}:{sW+3}], s{st2 if j&1 else sW0} offen {LP} lds')
            a(f's_add_u32 m0, s{st1}, {j*1024}')
            if j==2: a(f's_add_u32 s{sXo}, s{sXo}, 20480')
            a(f'buffer_load_dwordx4 v{vLX+(j&1)}, s[{sX}:{sX+3}], s{sXo} offen {LP} lds')
        a(f's_add_u32 s{sKS}, s{sKS}, 1')
        a(f's_cmp_eq_u32 s{sKS}, 10')
        a(f's_cselect_b32 s{sKS}, 0, s{sKS}')
        a(f's_add_u32 s{sIdx}, s{sIdx}, 1')
        a(f's_and_b32 s{sIdx}, s{sIdx}, 3')
    a(f's_mov_b32 s{sIdx}, 0')
    wstep(); wstep(); wstep()
    a(f's_waitcnt vmcnt({2*NL})')
    a('s_barrier')
    a(f's_mov_b32 s{sIT}, 0')
    a.lab('L_p1_ld_loop')
    a(f's_cmp_ge_u32 s{sIT}, 18'); a('s_cbranch_scc1 L_p1_ld_w0')
    a(f's_waitcnt vmcnt({NL})')
    a('s_branch L_p1_ld_w1')
    a.lab('L_p1_ld_w0')
    a('s_waitcnt vmcnt(0)')
    a(f's_cmp_lg_u32 s{sIT}, 18'); a('s_cbranch_scc1 L_p1_ld_w1')
    a(f's_cmp_lg_u32 s{sWV}, 4'); a('s_cbranch_scc1 L_p1_ld_w1')
    poll_f1(a,'b',1)
    a.lab('L_p1_ld_w1')
    a('s_barrier')
    a(f's_cmp_lg_u32 s{sWV}, 4'); a('s_cbranch_scc1 L_p1_ld_h1')
    a(f's_cmp_lg_u32 s{sIT}, 8'); a('s_cbranch_scc1 L_p1_ld_h0')
    gettok(a,'p1',None)
    a.lab('L_p1_ld_h0')
    a(f's_cmp_lg_u32 s{sIT}, 12'); a('s_cbranch_scc1 L_p1_ld_h1')
    a(f's_add_u32 s50, s{sNT}, 15')
    a('s_lshl_b32 s50, s50, 4')
    a(f's_add_u32 s50, s50, s{sMT}')
    a('s_lshl_b32 s50, s50, 7')
    setflag(a,50)
    a.lab('L_p1_ld_h1')
    a(f's_cmp_lg_u32 s{sIT}, 7'); a('s_cbranch_scc1 L_p1_ld_h2')
    srd(a,sX,16,17,2048*1280)
    srd(a,sW,18,19,640*3840)
    a.lab('L_p1_ld_h2')
    a(f's_cmp_ge_u32 s{sIT}, 17'); a('s_cbranch_scc1 L_p1_ld_skip')
    wstep()
    a.lab('L_p1_ld_skip')
    a(f's_cmp_lg_u32 s{sIT}, 18'); a('s_cbranch_scc1 L_p1_ld_h3')
    a(f's_lshl_b32 s48, s{sLd}, 11')
    kv_first(a,[(48,0),(48,1024)],0)
    q_issue(a)
    a.lab('L_p1_ld_h3')
    a(f's_add_u32 s{sIT}, s{sIT}, 1')
    a(f's_cmp_lt_u32 s{sIT}, 20')
    a('s_cbranch_scc1 L_p1_ld_loop')
    a(f's_lshl_b32 s49, s{sNT}, 4')
    a(f's_add_u32 s49, s49, s{sMT}')
    a('s_lshl_b32 s49, s49, 7')
    a('s_or_b32 s49, s49, 0x80000000')
    a('s_branch L_p1_done')
    a.lab('L_p1_skip')
    a('s_waitcnt lgkmcnt(0)')
    a(f's_cmp_lg_u32 s{sWV}, 4'); a('s_cbranch_scc1 L_p1_sk1')
    gettok(a,'p1s',None)
    poll_f1(a,'bs',1)
    a.lab('L_p1_sk1')
    a('s_barrier')
    a(f's_lshl_b32 s48, s{sWV}, 10')
    kv_first(a,[(48,0)],0)
    q_issue(a)
    a('s_mov_b32 s49, 0')
    a.lab('L_p1_done')
    return vEnd

def gettok(a,tag,wave=4):
    if wave is not None:
        a(f's_cmp_lg_u32 s{sWV}, {wave}')
        a(f's_cbranch_scc1 L_tokd_{tag}')
    a('s_mov_b32 s58, 0x40000')
    a('v_mov_b32 v2, 0')
    a.lab(f'L_tok_{tag}')
    a(f'global_load_dword v3, v2, s[{sDBG}:{sDBG+1}] sc1')
    a('s_waitcnt vmcnt(0)')
    a(f'v_readfirstlane_b32 s{sTOK}, v3')
    a('s_nop 3')
    a(f's_cmp_lg_u32 s{sTOK}, 0')
    a(f's_cbranch_scc1 L_tokd_{tag}')
    a('s_sleep 4')
    a('s_sub_u32 s58, s58, 1')
    a('s_cmp_lg_u32 s58, 0')
    a(f's_cbranch_scc1 L_tok_{tag}')
    a.lab(f'L_tokd_{tag}')
def setflag(a,soff):
    a(f's_add_u32 s{soff}, s{soff}, {WS_FLG}')
    a('s_mov_b64 exec, 1')
    a(f'v_mov_b32 v2, s{soff}')
    a(f'v_mov_b32 v3, s{sTOK}')
    a(f'global_store_dword v2, v3, s[{sWS}:{sWS+1}] sc1')
    a('s_mov_b64 exec, -1')
def poll2(a,tag,va,vb,mask):
    a('s_mov_b32 s58, 0x40000')
    a.lab(f'L_poll_{tag}')
    a(f'global_load_dword v3, v{va}, s[{sWS}:{sWS+1}] sc1')
    a(f'global_load_dword v4, v{vb}, s[{sWS}:{sWS+1}] sc1')
    a('s_waitcnt vmcnt(0)')
    a(f'v_cmp_eq_u32 s[56:57], s{sTOK}, v3')
    a(f'v_cmp_eq_u32 vcc, s{sTOK}, v4')
    a('s_nop 4')
    a('s_and_b64 s[56:57], s[56:57], vcc')
    a(f's_and_b32 s56, s56, {mask&0xffffffff:#x}')
    a(f's_and_b32 s57, s57, {mask>>32:#x}')
    a(f's_cmp_lg_u32 s56, {mask&0xffffffff:#x}')
    a(f's_cbranch_scc1 L_polln_{tag}')
    a(f's_cmp_eq_u32 s57, {mask>>32:#x}')
    a(f's_cbranch_scc1 L_polld_{tag}')
    a.lab(f'L_polln_{tag}')
    a('s_sleep 1')
    a('s_sub_u32 s58, s58, 1')
    a('s_cmp_lg_u32 s58, 0')
    a(f's_cbranch_scc1 L_poll_{tag}')
    a.lab(f'L_polld_{tag}')
def poll(a,tag,vaddr,offs,mask):
    a('s_mov_b32 s58, 0x40000')
    a.lab(f'L_poll_{tag}')
    for i,o in enumerate(offs):
        a(f'global_load_dword v{vaddr+1+i}, v{vaddr}, s[{sWS}:{sWS+1}] offset:{o} sc1')
    a('s_waitcnt vmcnt(0)')
    a(f'v_cmp_eq_u32 s[56:57], s{sTOK}, v{vaddr+1}')
    if len(offs)>1:
        a(f'v_cmp_eq_u32 vcc, s{sTOK}, v{vaddr+2}')
        a('s_nop 4')
        a('s_and_b64 s[56:57], s[56:57], vcc')
    else:
        a('s_nop 4')
    a(f's_and_b32 s56, s56, {mask&0xffffffff:#x}')
    a(f's_and_b32 s57, s57, {mask>>32:#x}')
    a(f's_cmp_lg_u32 s56, {mask&0xffffffff:#x}')
    a(f's_cbranch_scc1 L_polln_{tag}')
    a(f's_cmp_eq_u32 s57, {mask>>32:#x}')
    a(f's_cbranch_scc1 L_polld_{tag}')
    a.lab(f'L_polln_{tag}')
    a('s_sleep 2')
    a('s_sub_u32 s58, s58, 1')
    a('s_cmp_lg_u32 s58, 0')
    a(f's_cbranch_scc1 L_poll_{tag}')
    a.lab(f'L_polld_{tag}')

def phase2(a,p,PRIO=0,BSH=0,NOHOOK=0,SPRIO=0):
    TILE=2560; HALF=81920; WOFF=40960; SCR=81920
    sR,sOo,sWo=4,8,12
    sHD,sJ,sQP,sKH=16,17,18,19
    st0,st1,st2,st3=20,21,22,23
    sVm=24; sLo=26
    sIT=28; sHB=29; sHBw=30; sOl=31; sOh=32; sLl=33; sQA=34; sSw=35; sAg=36; sOB=37; sOA=50; sNeed=39
    sTm=40
    sKV=44
    sOff=31; sInc=32
    sWn=48
    sWl=39
    vLane=1; vt0=2; vt1=3; vt2=4; vt3=5; vK1a=6; vK2a=7; vVa=8; vDma=9; vM=10; vRho=11; vKap=12; vOoff=13; vt4=14; vt5=15
    vQa1=16; vQa2=20; vQb2=22; vQb1=24; vK1=28; vK2=32; vQ2o=34; vMb=35
    vV=36; vP=52; vQA2=60; vWo=62; vCc=63; vVb=196; vQ1o=197; vOo2=198
    vSa=64; vSb=80; vOa=96; vOb=112; vCa=128; vCb=144; vMF=160; vML=176; vQA1=192
    vEnd=199
    a(f's_load_dwordx2 s[50:51], s[0:1], 16')
    a(f's_load_dwordx2 s[52:53], s[0:1], 40')
    a(f's_and_b32 s{st0}, s{sWG}, 7')
    a(f's_lshr_b32 s{st1}, s{sWG}, 3')
    a(f's_lshl_b32 s{sHD}, s{st0}, 2')
    a(f's_lshr_b32 s{st2}, s{st1}, 3')
    a(f's_add_u32 s{sHD}, s{sHD}, s{st2}')
    a(f's_and_b32 s{sJ}, s{st1}, 7')
    a(f's_and_b32 s{sQP}, s{sWV}, 3')
    a(f's_lshr_b32 s{sKH}, s{sWV}, 2')
    a(f'v_lshlrev_b32 v{vDma}, 4, v{vLane}')
    a(f's_mul_i32 s{sHB}, s{sHD}, {64*TILE}')
    a(f's_add_u32 s{sAg}, s{sHB}, {WS_KV-20480}')
    a(f's_add_u32 s{sHB}, s{sHB}, {WS_KV+32*64*TILE}')
    a(f's_lshl_b32 s{st1}, s{sWV}, 10')
    a(f's_add_u32 s{sHBw}, s{sHB}, s{st1}')
    a(f's_mul_i32 s{st0}, s{sJ}, 20480')
    a(f's_add_u32 s{sAg}, s{sAg}, s{st0}')
    a(f's_mov_b32 s{sVm}, 0xfffff')
    a(f's_mov_b32 s{sVm+1}, 0xfffff')
    a(f's_mov_b32 s{sLo}, -1')
    a(f's_mov_b32 s{sLo+1}, 0')
    a(f'v_and_b32 v{vRho}, 31, v{vLane}')
    a(f'v_lshlrev_b32 v{vt1}, 3, v{vRho}')
    a(f'v_add_u32 v{vK2a}, 1024, v{vt1}')
    a(f'v_mov_b32 v{vt2}, 0x70000000')
    a(f'v_cndmask_b32 v{vQ2o}, v{vt2}, v{vK2a}, s[{sLo}:{sLo+1}]')
    a(f's_lshl_b32 s{st0}, s{sJ}, 3')
    a(f's_lshl_b32 s{st1}, s{sHD}, 6')
    a(f's_add_u32 s{st1}, s{st1}, s{st0}')
    a(f's_add_u32 s{st2}, s{st1}, s{sWV}')
    a(f's_mul_i32 s{sQA}, s{st2}, 1280')
    a(f's_lshl_b32 s{st2}, s{sQP}, 1')
    a(f's_add_u32 s{st2}, s{st2}, s{st1}')
    a(f's_mul_i32 s54, s{st2}, 1280')
    a(f's_add_u32 s54, s54, {32*64*1280}')
    a(f's_add_u32 s55, s54, 1280')
    a(f's_lshl_b32 s{st2}, s{sQP}, 1')
    a(f's_add_u32 s{st2}, s{st2}, s{sKH}')
    a(f's_add_u32 s{st2}, s{st2}, s{st0}')
    a(f's_lshl_b32 s{sOB}, s{st2}, 15')
    a(f's_add_u32 s{sOB}, s{sOB}, {2048*1280}')
    a(f's_lshl_b32 s{sOB+1}, s{st2}, 13')
    a(f's_add_u32 s{sOB+1}, s{sOB+1}, {2048*1280+128*16384}')
    srd(a,sR,sWS,sWS+1,WS_O)
    a(f's_add_u32 s56, s{sWS}, {WS_O}')
    a(f's_addc_u32 s57, s{sWS+1}, 0')
    srd(a,sOo,56,57,WS_END-WS_O)
    a(f'v_lshrrev_b32 v{vt0}, 5, v{vLane}')
    a(f'v_lshlrev_b32 v{vK1a}, 3, v{vRho}')
    a(f'v_lshl_add_u32 v{vK1a}, v{vt0}, 8, v{vK1a}')
    a(f'v_mov_b32 v{vQ1o}, v{vK1a}')
    a(f'v_bfe_u32 v{vt1}, v{vRho}, 2, 2')
    a(f'v_xor_b32 v{vt1}, v{vt1}, v{vt0}')
    a(f'v_lshlrev_b32 v{vt1}, 4, v{vt1}')
    a(f'v_lshl_add_u32 v{vVa}, v{vRho}, 6, v{vt1}')
    a(f'v_add_u32 v{vVa}, 1280, v{vVa}')
    a(f'v_xor_b32 v{vVb}, 32, v{vVa}')
    a(f'v_and_b32 v{vt1}, 1, v{vRho}')
    a(f'v_lshlrev_b32 v{vKap}, 4, v{vt1}')
    a(f'v_lshrrev_b32 v{vt1}, 4, v{vRho}')
    a(f'v_lshl_or_b32 v{vKap}, v{vt1}, 3, v{vKap}')
    a(f'v_and_b32 v{vt1}, 4, v{vRho}')
    a(f'v_or_b32 v{vKap}, v{vKap}, v{vt1}')
    a(f'v_bfe_u32 v{vt1}, v{vRho}, 3, 1')
    a(f'v_lshl_or_b32 v{vKap}, v{vt1}, 1, v{vKap}')
    a(f'v_bfe_u32 v{vt1}, v{vRho}, 1, 1')
    a(f'v_or_b32 v{vKap}, v{vKap}, v{vt1}')
    a(f'v_lshlrev_b32 v{vt3}, 2, v{vt0}')
    a(f'v_sub_u32 v{vt3}, v{vKap}, v{vt3}')
    a(f'v_mov_b32 v{vt2}, {NEG_BIG:#x}')
    for r in range(16):
        base=(r&3)+8*(r>>2)
        kb=16*(r&1)+8*((r>>3)&1)+2*((r>>2)&1)+((r>>1)&1)
        a(f'v_cmp_gt_i32 s[{sTm+2*(r&3)}:{sTm+1+2*(r&3)}], {kb}, v{vt3}')
        if r>=2:
            q=r-2
            a(f'v_cndmask_b32 v{vMF+q}, v{vt2}, 0, s[{sTm+2*(q&3)}:{sTm+1+2*(q&3)}]')
            a(f'v_cndmask_b32 v{vML+q}, 0, v{vt2}, s[{sTm+2*(q&3)}:{sTm+1+2*(q&3)}]')
    a('s_nop 1')
    for q in (14,15):
        a(f'v_cndmask_b32 v{vMF+q}, v{vt2}, 0, s[{sTm+2*(q&3)}:{sTm+1+2*(q&3)}]')
        a(f'v_cndmask_b32 v{vML+q}, 0, v{vt2}, s[{sTm+2*(q&3)}:{sTm+1+2*(q&3)}]')
    a(f's_cmp_lg_u32 s{sJ}, 0')
    a('s_cbranch_scc1 L_mf_ok')
    for r in range(16): a(f'v_mov_b32 v{vMF+r}, v{vt2}')
    a.lab('L_mf_ok')
    a(f's_add_u32 s{sKV}, s{sWS}, s{sHB}')
    a(f's_addc_u32 s{sKV+1}, s{sWS+1}, 0')
    a(f's_and_b32 s{sKV+1}, s{sKV+1}, 0xffff')
    a(f's_mov_b32 s{sKV+2}, 163840')
    a(f's_mov_b32 s{sKV+3}, 0x20000')
    a(f's_lshl_b32 s{sOff}, s{sWV}, 10')
    a(f's_add_u32 s{sOff}, s{sOff}, 16384')
    a(f's_mov_b32 s{sInc}, {HALF}')
    a(f's_mov_b32 s{sInc+1}, {(8192-HALF)&0xffffffff}')
    def vinit():
        a(f'v_cmp_eq_u32 s[{sTm}:{sTm+1}], 20, v{vRho}')
        a(f'v_mov_b32 v{vt1}, 0x3f803f80')
        a('s_nop 0')
        a(f'v_cndmask_b32 v{vt1}, 0, v{vt1}, s[{sTm}:{sTm+1}]')
        for i in range(16): a(f'v_mov_b32 v{vV+i}, v{vt1}')
    vinit()
    a(f'v_lshrrev_b32 v{vt1}, 4, v{vKap}')
    a(f'v_and_b32 v{vt2}, 15, v{vKap}')
    a(f'v_lshlrev_b32 v{vOoff}, 14, v{vt1}')
    a(f'v_lshl_add_u32 v{vOoff}, v{vt2}, 4, v{vOoff}')
    a(f'v_lshrrev_b32 v{vt3}, 5, v{vLane}')
    a(f'v_lshl_add_u32 v{vOoff}, v{vt3}, 8, v{vOoff}')
    a(f'v_lshlrev_b32 v{vOo2}, 12, v{vt1}')
    a(f'v_lshl_add_u32 v{vOo2}, v{vt2}, 3, v{vOo2}')
    for r in range(16): a(f'v_mov_b32 v{vOa+r}, 0')
    for r in range(16): a(f'v_mov_b32 v{vOb+r}, 0')
    for i in range(4): a(f'v_mov_b32 v{vP+4+i}, 0')
    a(f's_lshl_b32 s{st0}, s{sWV}, 6')
    a(f'v_add_u32 v{vt0}, s{st0}, v{vLane}')
    a(f'v_mul_u32_u24 v{vt1}, 52429, v{vt0}')
    a(f'v_lshrrev_b32 v{vt1}, 19, v{vt1}')
    a(f'v_mul_u32_u24 v{vt2}, 10, v{vt1}')
    a(f'v_sub_u32 v{vCc}, v{vt0}, v{vt2}')
    a(f'v_mul_u32_u24 v{vt1}, 1280, v{vt1}')
    a(f'v_lshl_add_u32 v{vWo}, v{vCc}, 4, v{vt1}')
    a(f's_lshl_b32 s{sWl}, s{sWV}, 10')
    a(f's_add_u32 s{sWl}, s{sWl}, {WOFF}')
    a(f's_and_b32 s{sWn}, s{sHD}, 7')
    a(f's_mul_i32 s{sWn}, s{sWn}, 160')
    a('s_waitcnt lgkmcnt(0)')
    a(f's_cmp_lt_u32 s{sHD}, 16')
    a('s_cselect_b64 s[50:51], s[50:51], s[52:53]')
    srd(a,sWo,50,51,640*1280)
    p.stamp(5)

    def rd_k1(dst,off):
        assert off%512==0 and off//512+1<256
        a(f'ds_read2st64_b64 {vr(dst,4)}, v{vK1a} offset0:{off//512} offset1:{off//512+1}')
    def rd_k2(dst,off): a(f'ds_read_b64 {vr(dst,2)}, v{vK2a} offset:{off}')
    def rd_v(buf,off):
        a(f's_mov_b64 exec, s[{sVm}:{sVm+1}]')
        a(f'ds_read_b128 {vr(vV+8*buf,4)}, v{vVa} offset:{off}')
        a(f'ds_read_b128 {vr(vV+8*buf+4,4)}, v{vVb} offset:{off}')
        a('s_mov_b64 exec, -1')
    def qk1(S,C,Q1,K=None): a(f'v_mfma_f32_32x32x16_bf16 {vr(S,16)}, {vr(vK1 if K is None else K,4)}, {vr(Q1,4)}, {C}')
    def qk2(S,Q2,K=None): a(f'v_mfma_f32_32x32x8bf16_1k {vr(S,16)}, {vr(vK2 if K is None else K,2)}, {vr(Q2,2)}, {vr(S,16)}')
    def pv(O,buf,t): a(f'v_mfma_f32_32x32x16_bf16 {vr(O,16)}, {vr(vV+8*buf+4*t,4)}, {vr(vP+4*t,4)}, {vr(O,16)}')
    def ex(S,r): a(f'v_exp_f32 v{S+r}, v{S+r}')
    def cv(S,c): a(f'v_cvt_pk_bf16_f32 v{vP+c}, v{S+2*c}, v{S+2*c+1}')
    def rowmax(M,S,first):
        if first:
            a(f'v_max3_f32 v{M}, v{S}, v{S+1}, v{S+2}'); rest=list(range(3,16))
        else: rest=list(range(16))
        while len(rest)>=2:
            a(f'v_max3_f32 v{M}, v{M}, v{S+rest[0]}, v{S+rest[1]}'); rest=rest[2:]
        if rest: a(f'v_max_f32 v{M}, v{M}, v{S+rest[0]}')
    def xhalf_max(M):
        a(f'v_mov_b32 v{vt1}, v{M}')
        a('s_nop 1')
        a(f'v_permlane32_swap_b32 v{M}, v{vt1}')
        a('s_nop 1')
        a(f'v_max_f32 v{M}, v{M}, v{vt1}')
    def get_l():
        a(f'v_mov_b32 v{vt1}, v{vOa+8}')
        a(f'v_mov_b32 v{vt2}, v{vOa+8}')
        a('s_nop 1')
        a(f'v_permlane32_swap_b32 v{vt1}, v{vt2}')
        a('s_nop 1')
    def store_o(soff):
        a(f'v_rcp_f32 v{vt3}, v{vt2}')
        a(f's_lshr_b32 s{st0}, s{sHD}, 1')
        a(f's_lshl_b32 s{st0}, s{st0}, 10')
        a(f's_and_b32 s{st1}, s{sHD}, 1')
        a(f's_lshl_b32 s{st1}, s{st1}, 9')
        a(f's_add_u32 s{st0}, s{st0}, s{st1}')
        a(f's_add_u32 s{st0}, s{st0}, s{soff}')
        for i in range(12): a(f'v_mul_f32 v{vOa+i}, v{vOa+i}, v{vt3}')
        for i in range(6): a(f'v_cvt_pk_bf16_f32 v{vSa+i}, v{vOa+2*i}, v{vOa+2*i+1}')
        a(f'buffer_store_dwordx4 {vr(vSa,4)}, v{vOoff}, s[{sOo}:{sOo+3}], s{st0} offen {SC}')
        a(f's_lshl_b32 s{st0}, s{sHD}, 7')
        a(f's_add_u32 s{st0}, s{st0}, s{soff+1}')
        a(f's_mov_b64 exec, s[{sLo}:{sLo+1}]')
        a(f'buffer_store_dwordx2 {vr(vSa+4,2)}, v{vOo2}, s[{sOo}:{sOo+3}], s{st0} offen {SC}')
        a('s_mov_b64 exec, -1')
    def addr_add(s):
        for r in (vK1a,vK2a,vVa,vVb): a(f'v_add_u32 v{r}, s{s}, v{r}')
    def addr_addi(imm):
        for r in (vK1a,vK2a,vVa,vVb): a(f'v_add_u32 v{r}, {imm}, v{r}')
    def dma_row(k):
        a(f's_mov_b32 m0, s{sOff}')
        a(f'buffer_load_dwordx4 v{vDma}, s[{sKV}:{sKV+3}], s{sOff} offen {SL} lds')
        a(f's_add_u32 s{sOff}, s{sOff}, s{sInc+(k&1)}')
    def dma_pair():
        dma_row(0); dma_row(1)
    def prio_switch(phase,L):
        a(f's_cmp_lt_u32 s{sWV}, 4')
        a(f's_cbranch_scc{1-phase} {L}_hi')
        a('s_setprio 0')
        a(f's_branch {L}_d')
        a.lab(f'{L}_hi')
        a('s_setprio 1')
        a.lab(f'{L}_d')
    def expgroups(cur,A_,B_,C_,D_):
        A_()
        for r in range(0,4): ex(cur,r)
        B_()
        ex(cur,4); ex(cur,5); cv(cur,0); ex(cur,6); cv(cur,1); ex(cur,7)
        C_()
        ex(cur,8); cv(cur,2); ex(cur,9); cv(cur,3); ex(cur,10); ex(cur,11)
        D_()
        ex(cur,12); ex(cur,13); cv(cur,4); ex(cur,14); cv(cur,5); ex(cur,15); cv(cur,6); cv(cur,7)

    a('s_cmp_eq_u32 s49, 8')
    a('s_cbranch_scc1 L_p2_w8')
    a('s_waitcnt vmcnt(0)')
    a('s_branch L_p2_wd')
    a.lab('L_p2_w8')
    a('s_waitcnt vmcnt(8)')
    a.lab('L_p2_wd')
    a('s_barrier')
    p.stamp(7)
    rd_k1(vK1,0); rd_k2(vK2,0)
    a('s_waitcnt lgkmcnt(0)')
    qk1(vSa,'0',vQa1); qk2(vSa,vQa2)
    qk1(vSb,'0',vQb1); qk2(vSb,vQb2)
    a(f's_mul_i32 s{st0}, s{sKH}, {HALF}')
    addr_add(st0)
    rd_k1(vK1,0); rd_k2(vK2,0); rd_v(0,0)
    a('s_nop 7')
    rowmax(vM,vSa,True)
    rowmax(vMb,vSb,True)
    xhalf_max(vM); xhalf_max(vMb)
    for r in range(16): a(f'v_sub_f32 v{vCa+r}, 0, v{vM}')
    for r in range(16): a(f'v_sub_f32 v{vCb+r}, 0, v{vMb}')
    a('s_waitcnt lgkmcnt(0)')
    qk1(vSa,vr(vCa,16),vQa1); qk2(vSa,vQa2)
    a(f's_mov_b32 s{sIT}, 0')
    if SPRIO:
        a(f's_cmp_lt_u32 s{sWV}, 4'); a('s_cbranch_scc1 L_sp'); a('s_setprio 1'); a.lab('L_sp')
    a.raw('.p2align 6')
    for _ in range(BSH): a('s_nop 0')
    a.lab('L_b_loop')
    ool=[]
    def cond(it,L,fn):
        a(f's_cmp_eq_u32 s{sIT}, {it}'); a(f's_cbranch_scc1 {L}'); a.lab(L+'_r')
        ool.append((L,fn))
    for pp in range(8):
        off=pp*TILE
        if pp==2:
            def h02():
                a('s_waitcnt vmcnt(2)'); a('s_barrier')
                a(f's_cmp_lg_u32 s{sWV}, 4'); a('s_cbranch_scc1 L_h02_r')
                a('s_cmp_lt_i32 s49, 0'); a('s_cbranch_scc0 L_h02_r')
                a('s_and_b32 s50, s49, 0x7fffffff')
                setflag(a,50)
            cond(0,'L_h02',h02)
        if pp==5:
            a(f's_cmp_lg_u32 s{sIT}, 2'); a('s_cbranch_scc1 L_h5'); a.lab('L_h5_r')
            def h5():
                a(f's_cmp_eq_u32 s{sIT}, 0'); a('s_cbranch_scc1 L_h5a')
                a(f's_cmp_eq_u32 s{sIT}, 3'); a('s_cbranch_scc1 L_h5b')
                a('s_waitcnt vmcnt(1)'); a('s_barrier'); a('s_branch L_h5_r')
                a.lab('L_h5b')
                a(f's_mov_b32 s{sOff}, 200000'); a(f's_mov_b32 s{sInc}, 0'); a(f's_mov_b32 s{sInc+1}, 0'); a('s_branch L_h5_r')
                a.lab('L_h5a'); a('s_waitcnt vmcnt(3)'); a('s_barrier')
            ool.append(('L_h5',h5))
        dma_row(pp)
        expgroups(vSa,
            lambda: (qk1(vSb,vr(vCb,16),vQb1), rd_k1(vK1,off+TILE)),
            lambda: (pv(vOb,(pp+1)&1,1), rd_v((pp+1)&1,off+TILE)),
            lambda: (qk2(vSb,vQb2), rd_k2(vK2,off+TILE)),
            lambda: pv(vOa,pp&1,0))
        a('s_waitcnt lgkmcnt(0)')
        expgroups(vSb,
            lambda: qk1(vSa,vr(vCa,16),vQa1),
            lambda: pv(vOa,pp&1,1),
            lambda: qk2(vSa,vQa2),
            lambda: pv(vOb,pp&1,0))
    a(f's_cmp_eq_u32 s{sIT}, 3'); a('s_cbranch_scc1 L_b_exit')
    a(f's_cmp_eq_u32 s{sIT}, 1'); a('s_cbranch_scc1 L_bb1')
    a(f's_cmp_eq_u32 s{sIT}, 2'); a('s_cbranch_scc1 L_bb2')
    a('s_waitcnt vmcnt(2)'); a('s_barrier')
    a.lab('L_bb_r')
    def bb1():
        a(f's_mov_b32 s{sKV+2}, 0')
        gettok(a,'a',0)
        a('s_branch L_bb_r')
    def bb2():
        a(f's_cmp_lg_u32 s{sWV}, 0'); a('s_cbranch_scc1 L_bb2a')
        poll_f1(a,'a',0)
        a.lab('L_bb2a')
        a('s_waitcnt vmcnt(0)'); a('s_barrier')
        a(f's_add_u32 s{sKV}, s{sWS}, s{sAg}')
        a(f's_addc_u32 s{sKV+1}, s{sWS+1}, 0')
        a(f's_and_b32 s{sKV+1}, s{sKV+1}, 0xffff')
        a(f's_mov_b32 s{sKV+2}, 40960')
        a(f's_lshl_b32 s{sOff}, s{sWV}, 10')
        a(f's_mov_b32 s{sInc}, 8192')
        a(f's_mov_b32 s{sInc+1}, 8192')
        a(f'buffer_load_dwordx2 {vr(vQA1,2)}, v{vQ1o}, s[{sR}:{sR+3}], s{sQA} offen {SL}')
        a(f'buffer_load_dwordx2 {vr(vQA1+2,2)}, v{vQ1o}, s[{sR}:{sR+3}], s{sQA} offen offset:512 {SL}')
        a(f'buffer_load_dwordx2 {vr(vQA2,2)}, v{vQ2o}, s[{sR}:{sR+3}], s{sQA} offen {SL}')
        a('s_branch L_bb_r')
    ool.append(('L_bb1',bb1)); ool.append(('L_bb2',bb2))
    addr_addi(8*TILE)
    if PROF and BPROF==1:
        for k in range(4):
            a(f's_cmp_lg_u32 s{sIT}, {k}'); a(f's_cbranch_scc1 L_st{k}'); p.stamp(1+k); a.lab(f'L_st{k}')
    a(f's_add_u32 s{sIT}, s{sIT}, 1')
    a('s_branch L_b_loop')
    a.lab('L_b_exit')
    addr_addi(8*TILE)
    a('s_nop 1')
    pv(vOb,1,1)
    a('s_setprio 0')
    a('s_nop 15')
    p.stamp(8)
    a(f's_lshl_b32 s{st0}, s{sQP}, 1')
    a(f's_cmp_eq_u32 s{sKH}, 0')
    a('s_cbranch_scc0 L_mg_hi')
    a(f's_add_u32 s{st1}, s{st0}, 1')
    a(f's_mul_i32 s{st1}, s{st1}, 3072')
    a(f's_add_u32 s{st1}, s{st1}, {SCR}')
    a(f'v_add_u32 v{vt4}, s{st1}, v{vDma}')
    for i in range(3): a(f'ds_write_b128 v{vt4}, {vr(vOb+4*i,4)} offset:{1024*i}')
    a(f's_mul_i32 s{st1}, s{st0}, 3072')
    a('s_branch L_mg_d')
    a.lab('L_mg_hi')
    a(f's_mul_i32 s{st1}, s{st0}, 3072')
    a(f's_add_u32 s{st1}, s{st1}, {SCR}')
    a(f'v_add_u32 v{vt4}, s{st1}, v{vDma}')
    for i in range(3): a(f'ds_write_b128 v{vt4}, {vr(vOa+4*i,4)} offset:{1024*i}')
    for i in range(12): a(f'v_mov_b32 v{vOa+i}, v{vOb+i}')
    for i in range(4): a(f'v_mov_b32 v{vQa1+i}, v{vQb1+i}')
    for i in range(2): a(f'v_mov_b32 v{vQa2+i}, v{vQb2+i}')
    a(f's_add_u32 s{st1}, s{st0}, 1')
    a(f's_mul_i32 s{st1}, s{st1}, 3072')
    a.lab('L_mg_d')
    a(f's_add_u32 s{st1}, s{st1}, {SCR}')
    a(f'v_add_u32 v{vt4}, s{st1}, v{vDma}')
    a('s_waitcnt lgkmcnt(0) vmcnt(0)')
    a('s_barrier')
    for i in range(3): a(f'ds_read_b128 {vr(vSa+4*i,4)}, v{vt4} offset:{1024*i}')
    a('s_waitcnt lgkmcnt(0)')
    a('s_barrier')
    for i in range(12): a(f'v_add_f32 v{vOa+i}, v{vOa+i}, v{vSa+i}')
    get_l()
    a(f'v_mov_b32 v{vt3}, {f32bits(2.0**100):#x}')
    a(f'v_cmp_nlt_f32 vcc, v{vt2}, v{vt3}')
    a('s_nop 4')
    a('s_cbranch_vccnz L_b_fallback')
    a.lab('L_b_store')
    store_o(sOB)
    p.stamp(9)
    a(f's_mul_i32 s{st0}, s{sWV}, {TILE}')
    a(f's_mul_i32 s{st1}, s{sKH}, {HALF}')
    a(f's_sub_u32 s{st0}, s{st0}, s{st1}')
    a(f's_sub_u32 s{st0}, s{st0}, {32*TILE}')
    addr_add(st0)
    a(f's_lshl_b32 s{st0}, s{sJ}, 3')
    a(f's_add_u32 s{st2}, s{st0}, s{sWV}')
    a(f's_lshl_b32 s{sOA}, s{st2}, 15')
    a(f's_lshl_b32 s{sOA+1}, s{st2}, 13')
    a(f's_add_u32 s{sOA+1}, s{sOA+1}, {128*16384}')
    for i in range(4): a(f'v_mov_b32 v{vQa1+i}, v{vQA1+i}')
    for i in range(2): a(f'v_mov_b32 v{vQa2+i}, v{vQA2+i}')
    a(f's_sub_u32 s{sSw}, 8, s{sWV}')
    a(f's_cmp_lg_u32 s{sJ}, 0')
    a(f's_cselect_b32 s{sSw}, 0, s{sSw}')
    vC=vCa; vO=vOa; vS=[vSa,vSb]
    KR=[(vV,vV+4),(vV+8,vV+12),(vP,vP+4)]
    SB=[vSa,vSb,vOa]
    def cmid_init(tag,val):
        a(f's_cmp_le_u32 s{sSw}, 1')
        a(f's_cbranch_scc1 L_cm_{tag}_v')
        for r in range(16): a(f'v_mov_b32 v{vC+r}, {NEG_BIG:#x}')
        a(f's_branch L_cm_{tag}_d')
        a.lab(f'L_cm_{tag}_v')
        for r in range(16): a(f'v_mov_b32 v{vC+r}, {val}')
        a.lab(f'L_cm_{tag}_d')
    def cmid_switch(tag,t,val):
        L=f'L_sw_{tag}_{t}'
        a(f's_cmp_eq_u32 s{sSw}, {t}')
        a(f's_cbranch_scc1 {L}')
        a.lab(L+'_r')
        def fn():
            a('s_nop 15')
            for r in range(16): a(f'v_mov_b32 v{vC+r}, {val}')
            a('s_nop 1')
        ool.append((L,fn))
    wocnt=[0]
    def wo_dma():
        if wocnt[0]>=10: return
        n=wocnt[0]; wocnt[0]+=1
        a(f's_cmp_lt_u32 s{sWV}, 5')
        a(f's_cbranch_scc0 L_wo{n}')
        for k in range(2):
            a(f's_mov_b32 m0, s{sWl}')
            a(f's_add_u32 s{sWl}, s{sWl}, 5120')
            a(f'buffer_load_dwordx4 v{vWo}, s[{sWo}:{sWo+3}], s{sWn} offen lds')
            a(f's_add_u32 s{sWn}, s{sWn}, 40960')
        a.lab(f'L_wo{n}')
    cmid_init('p1','0')
    for i in range(3):
        rd_k1(KR[i][0],i*TILE); rd_k2(KR[i][1],i*TILE)
    for b in range(3):
        a('s_waitcnt lgkmcnt(0)')
        for i in range(3):
            t=3*b+i
            if 2<=t<=7: cmid_switch('p1',t,'0')
            C = vr(vMF,16) if t==0 else (vr(vML,16) if t==8 else vr(vC,16))
            qk1(SB[i],C,vQa1,KR[i][0]); qk2(SB[i],vQa2,KR[i][1])
        if b<2:
            for i in range(3):
                t=3*(b+1)+i
                rd_k1(KR[i][0],t*TILE); rd_k2(KR[i][1],t*TILE)
        if b==2:
            rd_k1(vK1,0); rd_k2(vK2,0)
        wo_dma()
        a('s_nop 3')
        for i in range(3):
            if i==2: a('s_nop 3')
            rowmax(vM,SB[i],b==0 and i==0)
    xhalf_max(vM)
    a(f'v_sub_f32 v{vM}, 0, v{vM}')
    for r in range(16): a(f'v_add_f32 v{vMF+r}, v{vMF+r}, v{vM}')
    for r in range(16): a(f'v_add_f32 v{vML+r}, v{vML+r}, v{vM}')
    cmid_init('p2',f'v{vM}')
    for r in range(16): a(f'v_mov_b32 v{vO+r}, 0')
    vinit()
    for i in range(4): a(f'v_mov_b32 v{vP+4+i}, 0')
    a('s_waitcnt lgkmcnt(0)')
    qk1(vS[0],vr(vMF,16),vQa1); qk2(vS[0],vQa2)
    rd_k1(vK1,TILE); rd_v(0,0); rd_k2(vK2,TILE)
    for t in range(9):
        last=(t==8); last2=(t==7); tn=t+1
        cur=vS[t&1]; nxt=vS[(t+1)&1]; off=t*TILE
        Cn = vr(vML,16) if tn==8 else vr(vC,16)
        a('s_waitcnt lgkmcnt(0)')
        if 2<=tn<=7: cmid_switch('p2',tn,f'v{vM}')
        if PRIO and t%PRIO==0: prio_switch((t//PRIO)&1,f'L_apr{t}')
        wo_dma()
        def A_():
            if not last: qk1(nxt,Cn,vQa1)
            if not last and not last2: rd_k1(vK1,off+2*TILE)
        def B_():
            pv(vO,(t+1)&1,1)
            if not last: rd_v((t+1)&1,off+TILE)
        def C_():
            if not last: qk2(nxt,vQa2)
            if not last and not last2: rd_k2(vK2,off+2*TILE)
        expgroups(cur,A_,B_,C_,lambda: pv(vO,t&1,0))
    assert wocnt[0]==10
    a('s_nop 1')
    pv(vO,0,1)
    a('s_setprio 0')
    a('s_nop 15')
    get_l()
    store_o(sOA)
    p.stamp(10)
    a('s_waitcnt vmcnt(0)')
    a('s_barrier')
    p.stamp(11)
    a(f's_cmp_lg_u32 s{sWV}, 4')
    a('s_cbranch_scc1 L_p3')
    a(f's_lshl_b32 s{st0}, s{sJ}, 5')
    a(f's_add_u32 s{st0}, s{st0}, s{sHD}')
    a(f's_lshl_b32 s{st0}, s{st0}, 7')
    a(f's_add_u32 s{st0}, s{st0}, 65536')
    setflag(a,st0)
    a(f's_lshl_b32 s{st0}, s{sJ}, 12')
    a(f's_add_u32 s{st0}, s{st0}, {WS_FLG+65536}')
    a(f'v_and_b32 v{vt0}, 31, v{vLane}')
    a(f'v_lshlrev_b32 v{vt0}, 7, v{vt0}')
    a(f'v_add_u32 v{vt0}, s{st0}, v{vt0}')
    poll(a,'p3',vt0,[0],(1<<32)-1)
    a('s_barrier')
    a('s_branch L_done')
    for L,fn in ool:
        a.lab(L); fn()
        if not L.startswith('L_bb'): a(f's_branch {L}_r')
    a.lab('L_b_fallback')
    a(f'v_lshlrev_b32 v{vt4}, 3, v{vRho}')
    a(f'v_add_u32 v{vt4}, 1024, v{vt4}')
    a(f'v_lshrrev_b32 v{vt0}, 5, v{vLane}')
    a(f'v_bfe_u32 v{vt5}, v{vRho}, 2, 2')
    a(f'v_xor_b32 v{vt5}, v{vt5}, v{vt0}')
    a(f'v_lshlrev_b32 v{vt5}, 4, v{vt5}')
    a(f'v_lshl_add_u32 v{vt5}, v{vRho}, 6, v{vt5}')
    a(f'v_add_u32 v{vt5}, 1280, v{vt5}')
    a(f'v_xor_b32 v{vt0}, 32, v{vt5}')
    a(f'v_mov_b32 v{vM}, {NEG_BIG:#x}')
    a(f's_mov_b32 s{st0}, s{sHB}')
    a(f's_mov_b32 s{sIT}, 64')
    a.lab('L_fb_p1')
    a(f'buffer_load_dwordx2 {vr(vK1,2)}, v{vQ1o}, s[{sR}:{sR+3}], s{st0} offen {SL}')
    a(f'buffer_load_dwordx2 {vr(vK1+2,2)}, v{vQ1o}, s[{sR}:{sR+3}], s{st0} offen offset:512 {SL}')
    a(f'buffer_load_dwordx2 {vr(vK2,2)}, v{vt4}, s[{sR}:{sR+3}], s{st0} offen {SL}')
    a('s_waitcnt vmcnt(0)')
    qk1(vSa,'0',vQa1); qk2(vSa,vQa2)
    a('s_nop 15')
    rowmax(vM,vSa,False)
    a(f's_add_u32 s{st0}, s{st0}, {TILE}')
    a(f's_sub_u32 s{sIT}, s{sIT}, 1')
    a(f's_cmp_lg_u32 s{sIT}, 0')
    a('s_cbranch_scc1 L_fb_p1')
    xhalf_max(vM)
    for r in range(16): a(f'v_sub_f32 v{vCa+r}, 0, v{vM}')
    for r in range(16): a(f'v_mov_b32 v{vOa+r}, 0')
    a(f's_mov_b32 s{st0}, s{sHB}')
    a(f's_mov_b32 s{sIT}, 64')
    a.lab('L_fb_p2')
    a(f'buffer_load_dwordx2 {vr(vK1,2)}, v{vQ1o}, s[{sR}:{sR+3}], s{st0} offen {SL}')
    a(f'buffer_load_dwordx2 {vr(vK1+2,2)}, v{vQ1o}, s[{sR}:{sR+3}], s{st0} offen offset:512 {SL}')
    a(f'buffer_load_dwordx2 {vr(vK2,2)}, v{vt4}, s[{sR}:{sR+3}], s{st0} offen {SL}')
    a(f's_mov_b64 exec, s[{sVm}:{sVm+1}]')
    a(f'buffer_load_dwordx4 {vr(vV,4)}, v{vt5}, s[{sR}:{sR+3}], s{st0} offen {SL}')
    a(f'buffer_load_dwordx4 {vr(vV+4,4)}, v{vt0}, s[{sR}:{sR+3}], s{st0} offen {SL}')
    a('s_mov_b64 exec, -1')
    a('s_waitcnt vmcnt(0)')
    qk1(vSa,vr(vCa,16),vQa1); qk2(vSa,vQa2)
    a('s_nop 15')
    for r in range(16): ex(vSa,r)
    a('s_nop 0')
    for c in range(8): cv(vSa,c)
    a('s_nop 1')
    pv(vOa,0,0); pv(vOa,0,1)
    a(f's_add_u32 s{st0}, s{st0}, {TILE}')
    a(f's_sub_u32 s{sIT}, s{sIT}, 1')
    a(f's_cmp_lg_u32 s{sIT}, 0')
    a('s_cbranch_scc1 L_fb_p2')
    a('s_nop 15')
    get_l()
    a('s_branch L_b_store')
    return vEnd, dict(sHD=sHD,sJ=sJ)

def phase3(a,p,info,ROT3=3,XD=6):
    WOFF=40960
    sHD,sJ=info['sHD'],info['sJ']
    sX,sO=4,8
    st0,st1,st2,st3=20,21,22,23
    sPH=28; sBR=29; sMT=30; sNT=31
    vLane=1; vXo=2; vt0=4; vt1=5; vt2=6; vt3=7; vTok=8; vG=9; vTr=10; vOut=11; vTp=12; vTq=14; vX2=3
    vX=16; vWf=vX+160; vAcc=vWf+40; vEnd=vAcc+40
    a.lab('L_p3')
    a(f's_cmp_ge_u32 s{sWV}, 4')
    a('s_cbranch_scc1 L_done')
    a('s_load_dwordx2 s[50:51], s[0:1], 48')
    a(f's_lshr_b32 s{sBR}, s{sHD}, 4')
    a(f's_bfe_u32 s{st0}, s{sHD}, 0x10003')
    a(f's_lshl_b32 s{sMT}, s{sJ}, 1')
    a(f's_add_u32 s{sMT}, s{sMT}, s{st0}')
    a(f's_and_b32 s{sNT}, s{sHD}, 7')
    a(f's_and_b32 s{sPH}, s{sHD}, {ROT3}')
    a(f'v_and_b32 v{vTok}, 15, v{vLane}')
    a(f'v_lshrrev_b32 v{vG}, 4, v{vLane}')
    a(f'v_lshlrev_b32 v{vXo}, 4, v{vLane}')
    a(f'v_lshlrev_b32 v{vX2}, 3, v{vLane}')
    a(f's_lshl_b32 s{st0}, s{sMT}, 3')
    a(f's_lshl_b32 s{st1}, s{sWV}, 1')
    a(f's_add_u32 s{st0}, s{st0}, s{st1}')
    a(f's_lshl_b32 s32, s{st0}, 14')
    a(f's_lshl_b32 s36, s{st0}, 12')
    a(f's_add_u32 s36, s36, {128*16384}')
    a(f's_add_u32 s37, s36, 4096')
    a(f's_mul_i32 s{st0}, s{sBR}, {2048*1280}')
    a(f's_add_u32 s{st0}, s{st0}, {WS_O}')
    a(f's_add_u32 s52, s{sWS}, s{st0}')
    a(f's_addc_u32 s53, s{sWS+1}, 0')
    srd(a,sX,52,53,2048*1280)
    a(f'v_bfe_u32 v{vt0}, v{vLane}, 2, 2')
    a(f'v_mul_u32_u24 v{vt0}, 160, v{vt0}')
    a(f'v_and_b32 v{vt1}, 3, v{vLane}')
    a(f'v_lshl_add_u32 v{vt0}, v{vt1}, 3, v{vt0}')
    a(f'v_add_u32 v{vt0}, {WOFF}, v{vt0}')
    a(f'v_lshrrev_b32 v{vt1}, 1, v{vG}')
    a(f'v_mul_u32_u24 v{vt1}, 5, v{vt1}')
    a(f'v_and_b32 v{vt2}, 1, v{vG}')
    a(f'v_add_u32 v{vt1}, v{vt1}, v{vt2}')
    a(f'v_mul_u32_u24 v{vt1}, 640, v{vt1}')
    a(f'v_add_u32 v{vTr}, v{vt0}, v{vt1}')
    a(f'v_mul_u32_u24 v{vt1}, {5*640}, v{vG}')
    a(f'v_add3_u32 v{vTq}, v{vt0}, v{vt1}, 0')
    a(f'v_add_u32 v{vTq}, {4*640}, v{vTq}')
    for i in range(40): a(f'v_mov_b32 v{vAcc+i}, 0')
    a(f's_lshl_b32 s{st0}, s{sMT}, 7')
    a(f's_lshl_b32 s{st1}, s{sWV}, 5')
    a(f's_add_u32 s{st0}, s{st0}, s{st1}')
    a(f'v_add_u32 v{vt0}, s{st0}, v{vTok}')
    a(f'v_mul_u32_u24 v{vt0}, 2560, v{vt0}')
    a(f'v_and_b32 v{vt1}, 1, v{vG}')
    a(f'v_lshlrev_b32 v{vt1}, 5, v{vt1}')
    a(f'v_lshrrev_b32 v{vt2}, 1, v{vG}')
    a(f'v_lshl_add_u32 v{vt1}, v{vt2}, 4, v{vt1}')
    a(f'v_add_u32 v{vOut}, v{vt0}, v{vt1}')
    a(f'v_lshl_add_u32 v{vt3}, v{vG}, 3, v{vt0}')
    a('s_barrier')
    p.stamp(12)
    a(f's_mov_b32 s33, s{sPH}')
    for ph in range(4):
        a(f's_lshl_b32 s{st0}, s33, 12')
        a(f's_add_u32 s{40+2*ph}, s32, s{st0}')
        a(f's_add_u32 s{41+2*ph}, s{40+2*ph}, 16384')
        a('s_add_u32 s33, s33, 1')
        a('s_and_b32 s33, s33, 3')
    def xloads(st):
        L=[]
        if st<16:
            for u in range(2):
                L.append(f'buffer_load_dwordx4 {vr(vX+(st*2+u)*4,4)}, v{vXo}, s[{sX}:{sX+3}], s{40+2*(st//4)+u} offen offset:{(st%4)*1024} {SL}')
        elif st<20:
            for u in range(2):
                for hh in range(2):
                    L.append(f'buffer_load_dwordx2 {vr(vX+(st*2+u)*4+2*hh,2)}, v{vX2}, s[{sX}:{sX+3}], s{36+u} offen offset:{(st-16)*1024+hh*512} {SL}')
        return L
    for st in range(XD):
        for l in xloads(st): a(l)
    if BPROF==3: p.stamp(1,force=True)
    a('s_waitcnt lgkmcnt(0)')
    srd(a,sO,50,51,2048*2560)
    def trr(s,cp,h):
        buf=vWf+(s&1)*20+cp*4+2*h
        if s<16: return f'ds_read_b64_tr_b16 {vr(buf,2)}, v{vTp+((s//4)&1)} offset:{(s%4)*6400+cp*32+h*1280}'
        o=(s-16)*25600+cp*32+h*12800
        if o<65536: return f'ds_read_b64_tr_b16 {vr(buf,2)}, v{vTq} offset:{o}'
        return f'ds_read_b64_tr_b16 {vr(buf,2)}, v{vTq+1} offset:{o-51200}'
    def setp(ph):
        a(f's_mul_i32 s{st0}, s{sPH}, {4*6400}')
        a(f'v_add_u32 v{vTp+(ph&1)}, s{st0}, v{vTr}')
        a(f's_add_u32 s{sPH}, s{sPH}, 1')
        a(f's_and_b32 s{sPH}, s{sPH}, 3')
    a(f'v_add_u32 v{vTq+1}, 51200, v{vTq}')
    setp(0)
    for cp in range(5):
        a(trr(0,cp,0)); a(trr(0,cp,1))
    nl=lambda st: len(xloads(st))
    for s in range(20):
        if s%4==0 and s//4+1<4: setp(s//4+1)
        nxt=[trr(s+1,cp,h) for cp in range(5) for h in range(2)] if s+1<20 else []
        xl=xloads(s+XD)
        buf=vWf+(s&1)*20
        younger=sum(nl(t) for t in range(s+1,min(s+XD,20)))
        a(f's_waitcnt lgkmcnt(0) vmcnt({younger})')
        if BPROF==3 and s in (0,4,8,12,16,19): p.stamp(2+(0,4,8,12,16,19).index(s),force=True)
        k=0
        for cp in range(5):
            for u in range(2):
                ac=vAcc+(cp*2+u)*4
                a(f'v_mfma_f32_16x16x32_bf16 {vr(ac,4)}, {vr(buf+cp*4,4)}, {vr(vX+(s*2+u)*4,4)}, {vr(ac,4)}')
                for _ in range(2 if k<5 else 0):
                    if nxt: a(nxt.pop(0))
                if k>=5 and xl: a(xl.pop(0))
                k+=1
        assert not xl
    a('s_nop 7')
    p.stamp(13)
    a(f's_mul_i32 s{st0}, s{sBR}, 1280')
    a(f's_mul_i32 s{st1}, s{sNT}, 160')
    a(f's_add_u32 s{st0}, s{st0}, s{st1}')
    a(f's_add_u32 s{st1}, s{st0}, {16*2560}')
    for u in range(2):
        for cp in range(5):
            b=vAcc+(cp*2+u)*4
            a(f'v_cvt_pk_bf16_f32 v{b}, v{b}, v{b+1}')
            a(f'v_cvt_pk_bf16_f32 v{b+1}, v{b+2}, v{b+3}')
        for cp in (0,2):
            b=vAcc+(cp*2+u)*4; b2=vAcc+((cp+1)*2+u)*4
            a(f'v_mov_b32 v{b+2}, v{b2}')
            a(f'v_mov_b32 v{b+3}, v{b2+1}')
            a('s_nop 1')
            a(f'v_permlane16_swap_b32 v{b}, v{b+2}')
            a(f'v_permlane16_swap_b32 v{b+1}, v{b+3}')
            a('s_nop 1')
            a(f'buffer_store_dwordx4 {vr(b,4)}, v{vOut}, s[{sO}:{sO+3}], s{st0+u} offen offset:{cp*32}')
        b=vAcc+(4*2+u)*4
        a(f'buffer_store_dwordx2 {vr(b,2)}, v{vt3}, s[{sO}:{sO+3}], s{st0+u} offen offset:128')
    return vEnd

def build(**kw):
    a=A(); p=Prof(a)
    a.raw(f'.globl {KNAME}'); a.raw('.p2align 8'); a.raw(f'.type {KNAME},@function'); a.lab(KNAME)
    a('s_cmp_ge_u32 s2, 256')
    a('s_cbranch_scc1 L_exit')
    p.real(0); p.stamp(0)
    a(f's_load_dwordx4 s[{sDBG}:{sDBG+3}], s[0:1], 56' if False else f's_load_dwordx2 s[{sDBG}:{sDBG+1}], s[0:1], 56')
    a(f's_load_dwordx2 s[{sWS}:{sWS+1}], s[0:1], 64')
    a('s_load_dwordx4 s[16:19], s[0:1], 0')
    a('s_load_dwordx4 s[20:23], s[0:1], 24')
    a(f's_mov_b32 s{sWG}, s2')
    a('v_lshrrev_b32 v2, 6, v0')
    a('s_nop 0')
    a(f'v_readfirstlane_b32 s{sWV}, v2')
    a(f's_cmp_lg_u32 s{sWG}, 0')
    a('s_cbranch_scc1 L_notok')
    a(f's_cmp_lg_u32 s{sWV}, 4')
    a('s_cbranch_scc1 L_notok')
    a('s_memrealtime s[56:57]')
    a('s_waitcnt lgkmcnt(0)')
    a('s_or_b32 s56, s56, 1')
    a('s_mov_b64 exec, 1')
    a('v_mov_b32 v2, 0')
    a('v_mov_b32 v3, s56')
    a(f'global_store_dword v2, v3, s[{sDBG}:{sDBG+1}] sc1')
    a('s_mov_b64 exec, -1')
    a.lab('L_notok')
    if CPF:
        a(f's_cmp_lg_u32 s{sWV}, 5')
        a('s_cbranch_scc1 L_nocpf')
        a('s_getpc_b64 s[56:57]')
        a.lab('L_pc')
        a(f's_lshr_b32 s58, s{sWG}, 3')
        a('s_and_b32 s58, s58, 31')
        a('s_lshl_b32 s58, s58, 10')
        a('v_and_b32 v2, 63, v0')
        a('v_lshlrev_b32 v2, 4, v2')
        a('v_add_u32 v2, s58, v2')
        a(f'v_min_u32 v2, CODE_BYTES-16, v2')
        a('global_load_dwordx4 v[240:243], v2, s[56:57]')
        a.lab('L_nocpf')
    v1=phase1(a,p,**kw.get('p1',{}))
    v2,info=phase2(a,p,**kw.get('p2',{}))
    v3=phase3(a,p,info,**kw.get('p3',{}))
    a.lab('L_done')
    if PROF:
        a('s_waitcnt vmcnt(0)')
        p.real(1); p.dump()
    a('s_endpgm')
    a.lab('L_exit')
    a('s_endpgm')
    a.lab('L_code_end')
    a.raw('.set CODE_BYTES, (L_code_end - L_pc) & 0xfffffff0' if CPF else '')
    vg=max(v1,v2,v3,244 if CPF else 0)
    desc=f'''.section .rodata,"a"
.p2align 6
.amdhsa_kernel {KNAME}
  .amdhsa_next_free_vgpr {vg}
  .amdhsa_next_free_sgpr 102
  .amdhsa_accum_offset {(vg+3)//4*4}
  .amdhsa_group_segment_fixed_size 0
  .amdhsa_kernarg_size 72
  .amdhsa_user_sgpr_count 2
  .amdhsa_user_sgpr_kernarg_segment_ptr 1
  .amdhsa_system_sgpr_workgroup_id_x 1
.end_amdhsa_kernel
'''
    hdr=open('cdna_kernels/'+NAME+'.s.ref').read().split('\n')
    out=[]
    for l in hdr:
        if l.startswith('; @launch'): out.append('; @launch grid=(256,1,1) block=(512,1,1) lds=163840'); continue
        if not l.startswith(';'): break
        out.append(l)
    out.append('.amdgcn_target "amdgcn-amd-amdhsa--gfx950"'); out.append('.text')
    return '\n'.join(out)+'\n'+a.txt()+desc

if __name__=='__main__':
    if len(sys.argv)>2 and sys.argv[2]=='prof': PROF=True
    kw=eval(sys.argv[3]) if len(sys.argv)>3 else {}
    if 'CPF' in kw: CPF=kw.pop('CPF')
    if 'RT' in kw: RT=kw.pop('RT')
    if 'BPROF' in kw: BPROF=kw.pop('BPROF')
    if 'SL' in kw: SL=kw.pop('SL')
    if 'SC' in kw: SC=kw.pop('SC')
    open(sys.argv[1],'w').write(build(**kw))
```

```python
import sys, math, struct
NAME='concat_heads__sliding_block__mha_block__prompt'
KNAME=NAME+'_kernel'
WS_Q=0
WS_KV=2*32*64*1280
WS_O=WS_KV+2*32*64*2560
WS_END=WS_O+2*2048*1280
WS_FLG=WS_END
CSCALE=(20.0**-0.5)*math.log2(math.e)
NEG_BIG=0xf149f2ca
def f32bits(x): return struct.unpack('<I',struct.pack('<f',x))[0]
class A:
    def __init__(s): s.l=[]
    def __call__(s,x): s.l.append('  '+x)
    def lab(s,x): s.l.append(x+':')
    def raw(s,x): s.l.append(x)
    def txt(s): return '\n'.join(s.l)+'\n'
def vr(a,n=1): return f'v{a}' if n==1 else f'v[{a}:{a+n-1}]'
PROF=False
BPROF=False
CPF=True
RT=False
PROF_BASE=32<<20
NST=16
class Prof:
    def __init__(s,a): s.a=a; s.n=0
    def stamp(s,i=None,force=False):
        if not PROF: return
        if BPROF==2 and not force and i not in (0,7,8): return
        if BPROF==3 and not force and i not in (0,12,13): return
        if i is None: i=s.n
        s.n=max(s.n,i+1)
        assert i<14
        s.a(f's_memrealtime s[{60+2*i}:{61+2*i}]' if RT else f's_memtime s[{60+2*i}:{61+2*i}]')
    def real(s,idx):
        if PROF: s.a(f's_memrealtime s[{88+2*idx}:{89+2*idx}]')
    def dump(s):
        if not PROF: return
        a=s.a
        a('s_waitcnt lgkmcnt(0) vmcnt(0)')
        a(f's_lshl_b32 s92, s{sWG}, 3')
        a(f's_add_u32 s92, s92, s{sWV}')
        a('s_lshl_b32 s92, s92, 6')
        a(f's_add_u32 s92, s92, {PROF_BASE}')
        a(f's_add_u32 s94, s{sWS}, s92')
        a(f's_addc_u32 s95, s{sWS+1}, 0')
        a('v_mov_b32 v0, 0')
        a('s_mov_b64 exec, 1')
        for i in range(14):
            a(f'v_mov_b32 v1, s{60+2*i}')
            a(f'global_store_dword v0, v1, s[94:95] offset:{4*i}')
        a('v_mov_b32 v1, s88'); a('global_store_dword v0, v1, s[94:95] offset:56')
        a('v_mov_b32 v1, s90'); a('global_store_dword v0, v1, s[94:95] offset:60')
        a('s_waitcnt vmcnt(0)')
sWG=96; sWV=97; sDBG=98; sWS=100; sTOK=59
def srd(a, d, lo, hi, nbytes):
    a(f's_mov_b32 s{d}, s{lo}')
    a(f's_and_b32 s{d+1}, s{hi}, 0xffff')
    a(f's_mov_b32 s{d+2}, {nbytes}')
    a(f's_mov_b32 s{d+3}, 0x20000')

SC='sc1'
SL=''
SO=''

TILE=2560; HALF=81920
def head_j(a,sH,sJ_,t0,t1):
    a(f's_and_b32 s{t0}, s{sWG}, 7')
    a(f's_lshr_b32 s{t1}, s{sWG}, 3')
    a(f's_lshl_b32 s{sH}, s{t0}, 2')
    a(f's_lshr_b32 s{t0}, s{t1}, 3')
    a(f's_add_u32 s{sH}, s{sH}, s{t0}')
    a(f's_and_b32 s{sJ_}, s{t1}, 7')
def q_issue(a):
    head_j(a,50,51,52,53)
    a('s_lshl_b32 s50, s50, 6')
    a('s_lshl_b32 s51, s51, 3')
    a('s_add_u32 s50, s50, s51')
    a(f's_and_b32 s51, s{sWV}, 3')
    a('s_lshl_b32 s51, s51, 1')
    a('s_add_u32 s50, s50, s51')
    a('s_mul_i32 s50, s50, 1280')
    a(f's_add_u32 s50, s50, {32*64*1280}')
    a('s_add_u32 s51, s50, 1280')
    srd(a,52,sWS,sWS+1,WS_O)
    a('v_and_b32 v2, 31, v1')
    a('v_lshlrev_b32 v2, 3, v2')
    a('v_lshrrev_b32 v3, 5, v1')
    a('v_lshl_add_u32 v3, v3, 8, v2')
    a('v_add_u32 v2, 1024, v2')
    a('v_mov_b32 v4, 0x70000000')
    a('v_cmp_gt_u32 s[56:57], 32, v1')
    a('s_nop 1')
    a('v_cndmask_b32 v2, v4, v2, s[56:57]')
    for (r1,r2,so) in ((16,20,50),(24,22,51)):
        a(f'buffer_load_dwordx2 v[{r1}:{r1+1}], v3, s[52:55], s{so} offen {SL}')
        a(f'buffer_load_dwordx2 v[{r1+2}:{r1+3}], v3, s[52:55], s{so} offen offset:512 {SL}')
        a(f'buffer_load_dwordx2 v[{r2}:{r2+1}], v2, s[52:55], s{so} offen {SL}')
def kv_first(a,pieces,nw_shift):
    head_j(a,50,51,52,53)
    a(f's_mul_i32 s50, s50, {64*TILE}')
    a(f's_add_u32 s50, s50, {WS_KV+32*64*TILE}')
    a(f's_add_u32 s52, s{sWS}, s50')
    a(f's_addc_u32 s53, s{sWS+1}, 0')
    a('s_and_b32 s53, s53, 0xffff')
    a('s_mov_b32 s54, 163840')
    a('s_mov_b32 s55, 0x20000')
    a('v_lshlrev_b32 v2, 4, v1')
    for row in (0,HALF,8192,HALF+8192):
        for pc in pieces:
            a(f's_add_u32 s50, s{pc[0]}, {row+pc[1]}')
            a('s_mov_b32 m0, s50')
            a(f'buffer_load_dwordx4 v2, s[52:55], s50 offen {SL} lds')
def poll_f1(a,tag,br):
    head_j(a,50,51,52,53)
    a('s_mul_i32 s50, s50, 20')
    a('s_lshr_b32 s51, s50, 7')
    a('s_add_u32 s50, s50, 19')
    a('s_lshr_b32 s50, s50, 7')
    a('s_sub_u32 s50, s50, s51')
    a('v_bfe_u32 v2, v1, 4, 1')
    a('v_mul_u32_u24 v2, s50, v2')
    a('v_add_u32 v2, s51, v2')
    a('v_lshrrev_b32 v5, 5, v1')
    a('v_mul_u32_u24 v5, 5, v5')
    a('v_add_u32 v5, v5, v2')
    a('v_add_u32 v14, 10, v2')
    a('v_and_b32 v2, 15, v1')
    a('v_lshl_add_u32 v5, v5, 4, v2')
    a('v_lshl_add_u32 v14, v14, 4, v2')
    a('v_lshlrev_b32 v5, 7, v5')
    a('v_lshlrev_b32 v14, 7, v14')
    a(f'v_add_u32 v5, {WS_FLG+br*15*16*128}, v5')
    a(f'v_add_u32 v14, {WS_FLG+br*15*16*128}, v14')
    poll2(a,tag,5,14,(1<<64)-1)

def phase1(a,p,D=3,SY=1,LP=''):
    R=4; XOFF=16384
    sX,sW,sO=4,8,12
    sBR,sMT,sNT=26,27,28
    sKS=31; sXo=32; sW0=34; sIT=36; sSlot=37; sLW=38; sLX=39; sT=40
    st0,st1,st2,st3=41,42,43,44
    sSec=45; sBase=46; sHS=47; sTS=48; sNx=30; sM=29; sN=33; sIdx=35
    vLane=1; vt0=6; vt1=7; vt2=8; vt3=9; vt4=10; vTok=11; vG=12; vRho=13
    vLW=8; vLX=10; vXh=2; vXc1=3
    vB0=14; vBc=19; vBn=24; vAd=29
    vWf=36; vXf=vWf+32; vAcc=vXf+4*(D+1); vEnd=vAcc+128
    assert vEnd<=256 and 8%(D+1)==0
    def wf(step,c): return vWf+(step&1)*16+c*4
    def xf(i): return vXf+(i%(D+1))*4
    def acc(t,c,mt): return vAcc+t*64+(c*4+mt)*4
    def slotbase(dst,idx):
        a(f's_lshl_b32 s{dst}, s{idx}, 15')
        a(f's_lshr_b32 s{st3}, s{idx}, 1')
        a(f's_lshl_b32 s{st3}, s{st3}, 14')
        a(f's_add_u32 s{dst}, s{dst}, s{st3}')
        a(f's_add_u32 s{dst}, s{dst}, 16384')
    a(f'v_and_b32 v{vLane}, 63, v0')
    a(f's_and_b32 s{st0}, s{sWG}, 7')
    a(f's_lshr_b32 s{st1}, s{sWG}, 3')
    a(f's_and_b32 s{st2}, s{st0}, 1')
    a(f's_lshl_b32 s{st2}, s{st2}, 3')
    a(f's_and_b32 s{st3}, s{st1}, 7')
    a(f's_add_u32 s{sMT}, s{st2}, s{st3}')
    a(f's_lshr_b32 s{st2}, s{st0}, 1')
    a(f's_lshl_b32 s{st2}, s{st2}, 2')
    a(f's_lshr_b32 s{st1}, s{st1}, 3')
    a(f's_add_u32 s{sNT}, s{st2}, s{st1}')
    a(f's_cmp_ge_u32 s{sNT}, 15')
    a(f's_cbranch_scc1 L_p1_skip')
    a(f's_cmp_ge_u32 s{sWV}, 4')
    a(f's_cbranch_scc1 L_p1_loader')
    a(f's_and_b32 s{sM}, s{sWV}, 1')
    a(f's_lshr_b32 s{sN}, s{sWV}, 1')
    a(f'v_and_b32 v{vTok}, 15, v{vLane}')
    a(f'v_lshrrev_b32 v{vG}, 4, v{vLane}')
    a(f'v_and_b32 v{vt0}, 3, v{vLane}')
    a(f'v_bfe_u32 v{vt1}, v{vLane}, 2, 2')
    a(f'v_and_b32 v{vt2}, 1, v{vG}')
    a(f'v_lshl_or_b32 v{vt2}, v{vt2}, 2, v{vt1}')
    a(f'v_lshl_add_u32 v{vt3}, v{vG}, 3, v{vt1}')
    a(f'v_lshlrev_b32 v{vt3}, 8, v{vt3}')
    a(f'v_lshl_add_u32 v{vt3}, v{vt0}, 3, v{vt3}')
    a(f's_lshl_b32 s{st0}, s{sN}, 2')
    a(f'v_xor_b32 v{vt2}, s{st0}, v{vt2}')
    for c in range(4):
        a(f'v_xor_b32 v{vt4}, {c}, v{vt2}')
        a(f'v_lshl_add_u32 v{vB0+c}, v{vt4}, 5, v{vt3}')
    a(f'v_lshrrev_b32 v{vt0}, 1, v{vTok}')
    a(f'v_xor_b32 v{vt0}, v{vt0}, v{vG}')
    a(f'v_lshlrev_b32 v{vt0}, 4, v{vt0}')
    a(f'v_lshl_add_u32 v{vt0}, v{vTok}, 7, v{vt0}')
    a(f's_lshl_b32 s{st0}, s{sM}, 13')
    a(f's_add_u32 s{st0}, s{st0}, {XOFF}')
    a(f'v_add_u32 v{vB0+4}, s{st0}, v{vt0}')
    a(f'v_xor_b32 v{vXh}, 64, v{vt0}')
    a(f'v_sub_u32 v{vXh}, v{vXh}, v{vt0}')
    for i in range(5): a(f'v_add_u32 v{vBc+i}, 16384, v{vB0+i}')
    for i in range(128): a(f'v_mov_b32 v{vAcc+i}, 0')
    a(f's_mul_i32 s{sSec}, s{sNT}, 52')
    a(f's_lshr_b32 s{sSec}, s{sSec}, 8')
    a(f's_mul_i32 s{st0}, s{sSec}, 5')
    a(f's_sub_u32 s{st0}, s{sNT}, s{st0}')
    a(f's_lshl_b32 s{st0}, s{st0}, 7')
    a(f's_lshl_b32 s{st1}, s{sN}, 6')
    a(f's_add_u32 s{st0}, s{st0}, s{st1}')
    a(f's_cmp_eq_u32 s{sSec}, 0')
    a(f's_cselect_b32 s{st1}, 0, 1')
    a(f's_cselect_b32 s{st2}, 0, {WS_KV}')
    a(f's_lshl_b32 s{sTS}, 1280, s{st1}')
    a(f's_lshl_b32 s{sHS}, s{sTS}, 6')
    a(f's_lshl_b32 s{sT}, s{sMT}, 2')
    a(f's_lshl_b32 s{st1}, s{sM}, 1')
    a(f's_add_u32 s{sT}, s{sT}, s{st1}')
    a(f's_mul_i32 s{st1}, s{sT}, s{sTS}')
    a(f's_add_u32 s{sBase}, s{st1}, s{st2}')
    a(f's_cmp_eq_u32 s{sSec}, 2')
    a(f's_cbranch_scc1 L_p1_adV')
    a(f'v_lshrrev_b32 v{vt0}, 3, v{vTok}')
    a(f'v_lshlrev_b32 v{vRho}, 7, v{vt0}')
    a(f'v_bfe_u32 v{vt0}, v{vTok}, 1, 1')
    a(f'v_lshl_or_b32 v{vRho}, v{vt0}, 6, v{vRho}')
    a(f'v_bfe_u32 v{vt0}, v{vTok}, 2, 1')
    a(f'v_lshl_or_b32 v{vRho}, v{vt0}, 5, v{vRho}')
    a(f'v_and_b32 v{vt0}, 1, v{vTok}')
    a(f'v_lshl_or_b32 v{vRho}, v{vt0}, 4, v{vRho}')
    a(f's_lshr_b32 s{st0}, s{st0}, 2')
    for c in range(4):
        a(f'v_add_u32 v{vt0}, s{st0}, v{vG}')
        if c: a(f'v_add_u32 v{vt0}, {4*c}, v{vt0}')
        a(f'v_mul_u32_u24 v{vt1}, 52429, v{vt0}')
        a(f'v_lshrrev_b32 v{vt1}, 18, v{vt1}')
        a(f'v_mul_u32_u24 v{vt2}, 5, v{vt1}')
        a(f'v_sub_u32 v{vt2}, v{vt0}, v{vt2}')
        a(f'v_mul_u32_u24 v{vt1}, s{sHS}, v{vt1}')
        a(f'v_and_b32 v{vt3}, 1, v{vt2}')
        a(f'v_lshlrev_b32 v{vt3}, 9, v{vt3}')
        a(f'v_lshrrev_b32 v{vt4}, 1, v{vt2}')
        a(f'v_cmp_eq_u32 s[56:57], 4, v{vt2}')
        a(f'v_lshl_add_u32 v{vt3}, v{vt4}, 8, v{vt3}')
        a(f'v_add_u32 v{vt4}, 512, v{vt3}')
        a(f'v_add_u32 v{vt1}, v{vt1}, v{vRho}')
        a(f'v_cndmask_b32 v{vt3}, v{vt3}, v{vt4}, s[56:57]')
        a(f'v_add_u32 v{vAd+c}, v{vt1}, v{vt3}')
    a('s_branch L_p1_adD')
    a.lab('L_p1_adV')
    for c in range(4):
        a(f'v_add_u32 v{vt0}, s{st0}, v{vTok}')
        if c: a(f'v_add_u32 v{vt0}, {16*c}, v{vt0}')
        a(f'v_mul_u32_u24 v{vt1}, 52429, v{vt0}')
        a(f'v_lshrrev_b32 v{vt1}, 20, v{vt1}')
        a(f'v_mul_u32_u24 v{vt2}, 20, v{vt1}')
        a(f'v_sub_u32 v{vt2}, v{vt0}, v{vt2}')
        a(f'v_mul_u32_u24 v{vt1}, {64*2560}, v{vt1}')
        a(f'v_lshl_add_u32 v{vt1}, v{vt2}, 6, v{vt1}')
        a(f'v_bfe_u32 v{vt2}, v{vt2}, 2, 2')
        a(f'v_xor_b32 v{vt2}, v{vt2}, v{vG}')
        a(f'v_lshl_add_u32 v{vt1}, v{vt2}, 4, v{vt1}')
        a(f'v_add_u32 v{vAd+c}, 1280, v{vt1}')
    a.lab('L_p1_adD')
    a('s_waitcnt lgkmcnt(0)')
    srd(a,sO,sWS,sWS+1,WS_O)
    def wread(nxt,h,step,c,hh):
        b=(vBn if nxt else vBc)+c
        return f'ds_read_b64_tr_b16 {vr(wf(step,c)+2*hh,2)}, v{b} offset:{h*8192+1024*hh}'
    def xread(nxt,h,mt,buf):
        b=((vBn if nxt else vBc)+4) if h==0 else vXc1
        return f'ds_read_b128 {vr(xf(buf),4)}, v{b} offset:{mt*2048}'
    def epilogue(v,t,br):
        if v==0:
            a(f's_cmp_lg_u32 s{sSec}, 0')
            a(f's_cbranch_scc1 L_p1_ns{t}')
            a(f's_mov_b32 s{st1}, {f32bits(CSCALE):#x}')
            for i in range(64): a(f'v_mul_f32 v{vAcc+64*t+i}, s{st1}, v{vAcc+64*t+i}')
            a.lab(f'L_p1_ns{t}')
        a(f's_lshl_b32 s{st0}, s{sTS}, 11')
        a(f's_mul_i32 s{st0}, s{st0}, {br}')
        a(f's_add_u32 s{st0}, s{st0}, s{sBase}')
        for tp in range(2):
            if tp: a(f's_add_u32 s{st0}, s{st0}, s{sTS}')
            for c in range(4):
                b=acc(t,c,2*tp)
                if v==0:
                    a(f'v_cvt_pk_bf16_f32 v{b}, v{b}, v{b+1}')
                    a(f'v_cvt_pk_bf16_f32 v{b+1}, v{b+2}, v{b+3}')
                    a(f'v_cvt_pk_bf16_f32 v{b+2}, v{b+4}, v{b+5}')
                    a(f'v_cvt_pk_bf16_f32 v{b+3}, v{b+6}, v{b+7}')
                else:
                    a(f'v_cvt_pk_bf16_f32 v{b}, v{b}, v{b+4}')
                    a(f'v_cvt_pk_bf16_f32 v{b+1}, v{b+1}, v{b+5}')
                    a(f'v_cvt_pk_bf16_f32 v{b+2}, v{b+2}, v{b+6}')
                    a(f'v_cvt_pk_bf16_f32 v{b+3}, v{b+3}, v{b+7}')
                a(f'buffer_store_dwordx4 {vr(b,4)}, v{vAd+c}, s[{sO}:{sO+3}], s{st0} offen {SC}')
    a(f's_cmp_eq_u32 s{sSec}, 2')
    a(f's_cbranch_scc1 L_p1_v1')
    for v in range(2):
        a.lab(f'L_p1_v{v}')
        p.stamp(1)
        a('s_barrier')
        p.stamp(2)
        def body(emit,issued,t):
            waits=[]
            for st in range(2):
                for mt in range(4):
                    gi=st*4+mt
                    need=[('x',gi)]
                    if mt==0: need.append(('w',st))
                    last=max(len(issued)-1-issued[::-1].index(tg) for tg in need)
                    y=len(issued)-1-last
                    waits.append(y)
                    if emit:
                        y=min(y,wmin[len(waits)-1])
                        a(f's_waitcnt lgkmcnt({min(y,15)})')
                    fill=[]
                    g2=gi+D; nx=g2>=8; h2=(g2%8)//4; m2=g2%4
                    fill.append((xread(nx,h2,m2,g2),('x',g2%8)))
                    wm={0:(0,1),1:(2,3)} if st==1 else {0:(0,1),1:(2,3)}
                    if mt in wm:
                        for c in wm[mt]:
                            fill.append((wread(st==1,(st+1)&1,st+1,c,0),('w',(st+1)%2)))
                            fill.append((wread(st==1,(st+1)&1,st+1,c,1),('w',(st+1)%2)))
                    if st==0 and mt==0:
                        fill.append((f'v_add_u32 v{vXc1}, v{vBc+4}, v{vXh}',None))
                    if st==0 and mt==2:
                        fill.append((f's_add_u32 s{sIdx}, s{sIdx}, 1',None))
                        fill.append((f's_and_b32 s{sIdx}, s{sIdx}, 3',None))
                        fill.append((f's_lshl_b32 s{sNx}, s{sIdx}, 15',None))
                        fill.append((f's_lshr_b32 s{st3}, s{sIdx}, 1',None))
                        fill.append((f's_lshl_b32 s{st3}, s{st3}, 14',None))
                        fill.append((f's_add_u32 s{sNx}, s{sNx}, s{st3}',None))
                        fill.append((f's_add_u32 s{sNx}, s{sNx}, 16384',None))
                    if st==0 and mt==3:
                        for i in range(5): fill.append((f'v_add_u32 v{vBn+i}, s{sNx}, v{vB0+i}',None))
                    if st==1 and mt==3:
                        for i in range(5): fill.append((f'v_mov_b32 v{vBc+i}, v{vBn+i}',None))
                    for c in range(4):
                        x=xf(gi); w=wf(st,c); ac=acc(t,c,mt)
                        if emit:
                            if v==0: a(f'v_mfma_f32_16x16x32_bf16 {vr(ac,4)}, {vr(w,4)}, {vr(x,4)}, {vr(ac,4)}')
                            else:    a(f'v_mfma_f32_16x16x32_bf16 {vr(ac,4)}, {vr(x,4)}, {vr(w,4)}, {vr(ac,4)}')
                        k=1 if c<3 else len(fill)
                        if len(fill)>4 and c<3: k=2
                        while k>0 and fill:
                            tx,tag=fill.pop(0); k-=1
                            if emit: a(tx)
                            if tag: issued.append(tag)
                    if st==0 and mt==SY and emit:
                        if t==1:
                            a(f's_cmp_eq_u32 s{sIT}, 8'); a(f's_cbranch_scc0 L_p1_nw{v}'); a('s_waitcnt vmcnt(0)'); a.lab(f'L_p1_nw{v}')
                        a('s_barrier')
            return waits
        pro=[('w',0)]*8+[('x',i) for i in range(D)]
        iss=list(pro); w1=body(False,iss,0); w2=body(False,iss,0)
        wmin=[min(x,y) for x,y in zip(w1,w2)]
        a(f's_mov_b32 s{sIdx}, 0')
        for c in range(4):
            a(wread(False,0,0,c,0)); a(wread(False,0,0,c,1))
        for i in range(D): a(xread(False,0,i,i))
        for t in range(2):
            a(f's_mov_b32 s{sIT}, 10')
            a.lab(f'L_p1_loop{v}_{t}')
            body(True,list(pro),t)
            a(f's_sub_u32 s{sIT}, s{sIT}, 1')
            a(f's_cmp_lg_u32 s{sIT}, 0')
            a(f's_cbranch_scc1 L_p1_loop{v}_{t}')
            a('s_nop 7')
            if t==0:
                epilogue(v,0,1) if v==0 else epilogue(v,0,1)
            else:
                p.stamp(3)
                a('s_waitcnt lgkmcnt(0)')
                q_issue(a)
                epilogue(v,1,0)
        a('s_mov_b32 s49, 8')
        a('s_branch L_p1_done')
    a.lab('L_p1_loader')
    sLd=29
    a(f's_sub_u32 s{sLd}, s{sWV}, 4')
    a(f's_mul_i32 s{st3}, s{st3}, 5')
    a(f's_lshr_b32 s{st3}, s{st3}, 2')
    a(f's_mul_i32 s{st1}, s{st1}, 5')
    a(f's_lshr_b32 s{st1}, s{st1}, 1')
    a(f's_add_u32 s{sKS}, s{st3}, s{st1}')
    a(f's_cmp_ge_u32 s{sKS}, 10')
    a(f's_cselect_b32 s{st0}, 10, 0')
    a(f's_sub_u32 s{sKS}, s{sKS}, s{st0}')
    a(f's_lshl_b32 s{sLW}, s{sLd}, 12')
    a(f's_lshl_b32 s{sLX}, s{sLd}, 12')
    a(f's_add_u32 s{sLX}, s{sLX}, {XOFF}')
    a(f'v_lshrrev_b32 v{vt0}, 4, v{vLane}')
    a(f'v_bfe_u32 v{vt1}, v{vLane}, 1, 3')
    a(f'v_and_b32 v2, 1, v{vLane}')
    a(f's_lshl_b32 s{st2}, s{sLd}, 4')
    a(f's_lshl_b32 s{st1}, s{sNT}, 8')
    for jj in range(2):
        a(f'v_add_u32 v3, {4*jj}, v{vt0}')
        a(f'v_xor_b32 v3, v3, v{vt1}')
        a(f'v_lshl_add_u32 v4, v3, 1, v2')
        a(f'v_lshlrev_b32 v4, 4, v4')
        a(f'v_add_u32 v{vLW+jj}, s{st2}, v{vt0}')
        if jj: a(f'v_add_u32 v{vLW+jj}, 8, v{vLW+jj}')
        a(f'v_mul_u32_u24 v{vLW+jj}, 3840, v{vLW+jj}')
        a(f'v_add3_u32 v{vLW+jj}, v{vLW+jj}, v4, s{st1}')
    a(f'v_lshrrev_b32 v{vt0}, 3, v{vLane}')
    a(f'v_and_b32 v{vt1}, 7, v{vLane}')
    a(f's_lshl_b32 s{st0}, s{sMT}, 7')
    a(f's_lshl_b32 s{st1}, s{sLd}, 5')
    a(f's_add_u32 s{st0}, s{st0}, s{st1}')
    for uu in range(2):
        a(f'v_lshrrev_b32 v2, 1, v{vt0}')
        if uu: a(f'v_add_u32 v2, 4, v2')
        a(f'v_xor_b32 v2, v2, v{vt1}')
        a(f'v_add_u32 v3, s{st0}, v{vt0}')
        if uu: a(f'v_add_u32 v3, 8, v3')
        a(f'v_mul_u32_u24 v3, 1280, v3')
        a(f'v_lshl_add_u32 v{vLX+uu}, v2, 4, v3')
    a('s_waitcnt lgkmcnt(0)')
    srd(a,sX,20,21,2048*1280)
    srd(a,sW,22,23,640*3840)
    NL=8
    def wstep():
        a(f's_mul_i32 s{sW0}, s{sKS}, {64*3840}')
        a(f's_lshl_b32 s{sXo}, s{sKS}, 7')
        slotbase(sSlot,sIdx)
        a(f's_add_u32 s{st0}, s{sSlot}, s{sLW}')
        a(f's_add_u32 s{st1}, s{sSlot}, s{sLX}')
        for j in range(4):
            a(f's_add_u32 m0, s{st0}, {j*1024}')
            if j&1: a(f's_add_u32 s{st2}, s{sW0}, {4*3840}')
            a(f'buffer_load_dwordx4 v{vLW+(j>>1)}, s[{sW}:{sW+3}], s{st2 if j&1 else sW0} offen {LP} lds')
            a(f's_add_u32 m0, s{st1}, {j*1024}')
            if j==2: a(f's_add_u32 s{sXo}, s{sXo}, 20480')
            a(f'buffer_load_dwordx4 v{vLX+(j&1)}, s[{sX}:{sX+3}], s{sXo} offen {LP} lds')
        a(f's_add_u32 s{sKS}, s{sKS}, 1')
        a(f's_cmp_eq_u32 s{sKS}, 10')
        a(f's_cselect_b32 s{sKS}, 0, s{sKS}')
        a(f's_add_u32 s{sIdx}, s{sIdx}, 1')
        a(f's_and_b32 s{sIdx}, s{sIdx}, 3')
    a(f's_mov_b32 s{sIdx}, 0')
    wstep(); wstep(); wstep()
    a(f's_waitcnt vmcnt({2*NL})')
    a('s_barrier')
    a(f's_mov_b32 s{sIT}, 0')
    a.lab('L_p1_ld_loop')
    a(f's_cmp_ge_u32 s{sIT}, 18'); a('s_cbranch_scc1 L_p1_ld_w0')
    a(f's_waitcnt vmcnt({NL})')
    a('s_branch L_p1_ld_w1')
    a.lab('L_p1_ld_w0')
    a('s_waitcnt vmcnt(0)')
    a(f's_cmp_lg_u32 s{sIT}, 18'); a('s_cbranch_scc1 L_p1_ld_w1')
    a(f's_cmp_lg_u32 s{sWV}, 4'); a('s_cbranch_scc1 L_p1_ld_w1')
    poll_f1(a,'b',1)
    a.lab('L_p1_ld_w1')
    a('s_barrier')
    a(f's_cmp_lg_u32 s{sWV}, 4'); a('s_cbranch_scc1 L_p1_ld_h1')
    a(f's_cmp_lg_u32 s{sIT}, 8'); a('s_cbranch_scc1 L_p1_ld_h0')
    gettok(a,'p1',None)
    a.lab('L_p1_ld_h0')
    a(f's_cmp_lg_u32 s{sIT}, 12'); a('s_cbranch_scc1 L_p1_ld_h1')
    a(f's_add_u32 s50, s{sNT}, 15')
    a('s_lshl_b32 s50, s50, 4')
    a(f's_add_u32 s50, s50, s{sMT}')
    a('s_lshl_b32 s50, s50, 7')
    setflag(a,50)
    a.lab('L_p1_ld_h1')
    a(f's_cmp_lg_u32 s{sIT}, 7'); a('s_cbranch_scc1 L_p1_ld_h2')
    srd(a,sX,16,17,2048*1280)
    srd(a,sW,18,19,640*3840)
    a.lab('L_p1_ld_h2')
    a(f's_cmp_ge_u32 s{sIT}, 17'); a('s_cbranch_scc1 L_p1_ld_skip')
    wstep()
    a.lab('L_p1_ld_skip')
    a(f's_cmp_lg_u32 s{sIT}, 18'); a('s_cbranch_scc1 L_p1_ld_h3')
    a(f's_lshl_b32 s48, s{sLd}, 11')
    kv_first(a,[(48,0),(48,1024)],0)
    q_issue(a)
    a.lab('L_p1_ld_h3')
    a(f's_add_u32 s{sIT}, s{sIT}, 1')
    a(f's_cmp_lt_u32 s{sIT}, 20')
    a('s_cbranch_scc1 L_p1_ld_loop')
    a(f's_lshl_b32 s49, s{sNT}, 4')
    a(f's_add_u32 s49, s49, s{sMT}')
    a('s_lshl_b32 s49, s49, 7')
    a('s_or_b32 s49, s49, 0x80000000')
    a('s_branch L_p1_done')
    a.lab('L_p1_skip')
    a('s_waitcnt lgkmcnt(0)')
    a(f's_cmp_lg_u32 s{sWV}, 4'); a('s_cbranch_scc1 L_p1_sk1')
    gettok(a,'p1s',None)
    poll_f1(a,'bs',1)
    a.lab('L_p1_sk1')
    a('s_barrier')
    a(f's_lshl_b32 s48, s{sWV}, 10')
    kv_first(a,[(48,0)],0)
    q_issue(a)
    a('s_mov_b32 s49, 0')
    a.lab('L_p1_done')
    return vEnd

def gettok(a,tag,wave=4):
    if wave is not None:
        a(f's_cmp_lg_u32 s{sWV}, {wave}')
        a(f's_cbranch_scc1 L_tokd_{tag}')
    a('s_mov_b32 s58, 0x40000')
    a('v_mov_b32 v2, 0')
    a.lab(f'L_tok_{tag}')
    a(f'global_load_dword v3, v2, s[{sDBG}:{sDBG+1}] sc1')
    a('s_waitcnt vmcnt(0)')
    a(f'v_readfirstlane_b32 s{sTOK}, v3')
    a('s_nop 3')
    a(f's_cmp_lg_u32 s{sTOK}, 0')
    a(f's_cbranch_scc1 L_tokd_{tag}')
    a('s_sleep 4')
    a('s_sub_u32 s58, s58, 1')
    a('s_cmp_lg_u32 s58, 0')
    a(f's_cbranch_scc1 L_tok_{tag}')
    a.lab(f'L_tokd_{tag}')
def setflag(a,soff):
    a(f's_add_u32 s{soff}, s{soff}, {WS_FLG}')
    a('s_mov_b64 exec, 1')
    a(f'v_mov_b32 v2, s{soff}')
    a(f'v_mov_b32 v3, s{sTOK}')
    a(f'global_store_dword v2, v3, s[{sWS}:{sWS+1}] sc1')
    a('s_mov_b64 exec, -1')
def poll2(a,tag,va,vb,mask):
    a('s_mov_b32 s58, 0x40000')
    a.lab(f'L_poll_{tag}')
    a(f'global_load_dword v3, v{va}, s[{sWS}:{sWS+1}] sc1')
    a(f'global_load_dword v4, v{vb}, s[{sWS}:{sWS+1}] sc1')
    a('s_waitcnt vmcnt(0)')
    a(f'v_cmp_eq_u32 s[56:57], s{sTOK}, v3')
    a(f'v_cmp_eq_u32 vcc, s{sTOK}, v4')
    a('s_nop 4')
    a('s_and_b64 s[56:57], s[56:57], vcc')
    a(f's_and_b32 s56, s56, {mask&0xffffffff:#x}')
    a(f's_and_b32 s57, s57, {mask>>32:#x}')
    a(f's_cmp_lg_u32 s56, {mask&0xffffffff:#x}')
    a(f's_cbranch_scc1 L_polln_{tag}')
    a(f's_cmp_eq_u32 s57, {mask>>32:#x}')
    a(f's_cbranch_scc1 L_polld_{tag}')
    a.lab(f'L_polln_{tag}')
    a('s_sleep 1')
    a('s_sub_u32 s58, s58, 1')
    a('s_cmp_lg_u32 s58, 0')
    a(f's_cbranch_scc1 L_poll_{tag}')
    a.lab(f'L_polld_{tag}')
def poll(a,tag,vaddr,offs,mask):
    a('s_mov_b32 s58, 0x40000')
    a.lab(f'L_poll_{tag}')
    for i,o in enumerate(offs):
        a(f'global_load_dword v{vaddr+1+i}, v{vaddr}, s[{sWS}:{sWS+1}] offset:{o} sc1')
    a('s_waitcnt vmcnt(0)')
    a(f'v_cmp_eq_u32 s[56:57], s{sTOK}, v{vaddr+1}')
    if len(offs)>1:
        a(f'v_cmp_eq_u32 vcc, s{sTOK}, v{vaddr+2}')
        a('s_nop 4')
        a('s_and_b64 s[56:57], s[56:57], vcc')
    else:
        a('s_nop 4')
    a(f's_and_b32 s56, s56, {mask&0xffffffff:#x}')
    a(f's_and_b32 s57, s57, {mask>>32:#x}')
    a(f's_cmp_lg_u32 s56, {mask&0xffffffff:#x}')
    a(f's_cbranch_scc1 L_polln_{tag}')
    a(f's_cmp_eq_u32 s57, {mask>>32:#x}')
    a(f's_cbranch_scc1 L_polld_{tag}')
    a.lab(f'L_polln_{tag}')
    a('s_sleep 2')
    a('s_sub_u32 s58, s58, 1')
    a('s_cmp_lg_u32 s58, 0')
    a(f's_cbranch_scc1 L_poll_{tag}')
    a.lab(f'L_polld_{tag}')

def phase2(a,p,PRIO=0,BSH=0,NOHOOK=0,SPRIO=0):
    TILE=2560; HALF=81920; WOFF=40960; SCR=81920
    sR,sOo,sWo=4,8,12
    sHD,sJ,sQP,sKH=16,17,18,19
    st0,st1,st2,st3=20,21,22,23
    sVm=24; sLo=26
    sIT=28; sHB=29; sHBw=30; sOl=31; sOh=32; sLl=33; sQA=34; sSw=35; sAg=36; sOB=37; sOA=50; sNeed=39
    sTm=40
    sKV=44
    sOff=31; sInc=32
    sWn=48
    sWl=39
    vLane=1; vt0=2; vt1=3; vt2=4; vt3=5; vK1a=6; vK2a=7; vVa=8; vDma=9; vM=10; vRho=11; vKap=12; vOoff=13; vt4=14; vt5=15
    vQa1=16; vQa2=20; vQb2=22; vQb1=24; vK1=28; vK2=32; vQ2o=34; vMb=35
    vV=36; vP=52; vQA2=60; vWo=62; vCc=63; vVb=196; vQ1o=197; vOo2=198
    vSa=64; vSb=80; vOa=96; vOb=112; vCa=128; vCb=144; vMF=160; vML=176; vQA1=192
    vEnd=199
    a(f's_load_dwordx2 s[50:51], s[0:1], 16')
    a(f's_load_dwordx2 s[52:53], s[0:1], 40')
    a(f's_and_b32 s{st0}, s{sWG}, 7')
    a(f's_lshr_b32 s{st1}, s{sWG}, 3')
    a(f's_lshl_b32 s{sHD}, s{st0}, 2')
    a(f's_lshr_b32 s{st2}, s{st1}, 3')
    a(f's_add_u32 s{sHD}, s{sHD}, s{st2}')
    a(f's_and_b32 s{sJ}, s{st1}, 7')
    a(f's_and_b32 s{sQP}, s{sWV}, 3')
    a(f's_lshr_b32 s{sKH}, s{sWV}, 2')
    a(f'v_lshlrev_b32 v{vDma}, 4, v{vLane}')
    a(f's_mul_i32 s{sHB}, s{sHD}, {64*TILE}')
    a(f's_add_u32 s{sAg}, s{sHB}, {WS_KV-20480}')
    a(f's_add_u32 s{sHB}, s{sHB}, {WS_KV+32*64*TILE}')
    a(f's_lshl_b32 s{st1}, s{sWV}, 10')
    a(f's_add_u32 s{sHBw}, s{sHB}, s{st1}')
    a(f's_mul_i32 s{st0}, s{sJ}, 20480')
    a(f's_add_u32 s{sAg}, s{sAg}, s{st0}')
    a(f's_mov_b32 s{sVm}, 0xfffff')
    a(f's_mov_b32 s{sVm+1}, 0xfffff')
    a(f's_mov_b32 s{sLo}, -1')
    a(f's_mov_b32 s{sLo+1}, 0')
    a(f'v_and_b32 v{vRho}, 31, v{vLane}')
    a(f'v_lshlrev_b32 v{vt1}, 3, v{vRho}')
    a(f'v_add_u32 v{vK2a}, 1024, v{vt1}')
    a(f'v_mov_b32 v{vt2}, 0x70000000')
    a(f'v_cndmask_b32 v{vQ2o}, v{vt2}, v{vK2a}, s[{sLo}:{sLo+1}]')
    a(f's_lshl_b32 s{st0}, s{sJ}, 3')
    a(f's_lshl_b32 s{st1}, s{sHD}, 6')
    a(f's_add_u32 s{st1}, s{st1}, s{st0}')
    a(f's_add_u32 s{st2}, s{st1}, s{sWV}')
    a(f's_mul_i32 s{sQA}, s{st2}, 1280')
    a(f's_lshl_b32 s{st2}, s{sQP}, 1')
    a(f's_add_u32 s{st2}, s{st2}, s{st1}')
    a(f's_mul_i32 s54, s{st2}, 1280')
    a(f's_add_u32 s54, s54, {32*64*1280}')
    a(f's_add_u32 s55, s54, 1280')
    a(f's_lshl_b32 s{st2}, s{sQP}, 1')
    a(f's_add_u32 s{st2}, s{st2}, s{sKH}')
    a(f's_add_u32 s{st2}, s{st2}, s{st0}')
    a(f's_lshl_b32 s{sOB}, s{st2}, 15')
    a(f's_add_u32 s{sOB}, s{sOB}, {2048*1280}')
    a(f's_lshl_b32 s{sOB+1}, s{st2}, 13')
    a(f's_add_u32 s{sOB+1}, s{sOB+1}, {2048*1280+128*16384}')
    srd(a,sR,sWS,sWS+1,WS_O)
    a(f's_add_u32 s56, s{sWS}, {WS_O}')
    a(f's_addc_u32 s57, s{sWS+1}, 0')
    srd(a,sOo,56,57,WS_END-WS_O)
    a(f'v_lshrrev_b32 v{vt0}, 5, v{vLane}')
    a(f'v_lshlrev_b32 v{vK1a}, 3, v{vRho}')
    a(f'v_lshl_add_u32 v{vK1a}, v{vt0}, 8, v{vK1a}')
    a(f'v_mov_b32 v{vQ1o}, v{vK1a}')
    a(f'v_bfe_u32 v{vt1}, v{vRho}, 2, 2')
    a(f'v_xor_b32 v{vt1}, v{vt1}, v{vt0}')
    a(f'v_lshlrev_b32 v{vt1}, 4, v{vt1}')
    a(f'v_lshl_add_u32 v{vVa}, v{vRho}, 6, v{vt1}')
    a(f'v_add_u32 v{vVa}, 1280, v{vVa}')
    a(f'v_xor_b32 v{vVb}, 32, v{vVa}')
    a(f'v_and_b32 v{vt1}, 1, v{vRho}')
    a(f'v_lshlrev_b32 v{vKap}, 4, v{vt1}')
    a(f'v_lshrrev_b32 v{vt1}, 4, v{vRho}')
    a(f'v_lshl_or_b32 v{vKap}, v{vt1}, 3, v{vKap}')
    a(f'v_and_b32 v{vt1}, 4, v{vRho}')
    a(f'v_or_b32 v{vKap}, v{vKap}, v{vt1}')
    a(f'v_bfe_u32 v{vt1}, v{vRho}, 3, 1')
    a(f'v_lshl_or_b32 v{vKap}, v{vt1}, 1, v{vKap}')
    a(f'v_bfe_u32 v{vt1}, v{vRho}, 1, 1')
    a(f'v_or_b32 v{vKap}, v{vKap}, v{vt1}')
    a(f'v_lshlrev_b32 v{vt3}, 2, v{vt0}')
    a(f'v_sub_u32 v{vt3}, v{vKap}, v{vt3}')
    a(f'v_mov_b32 v{vt2}, {NEG_BIG:#x}')
    for r in range(16):
        base=(r&3)+8*(r>>2)
        kb=16*(r&1)+8*((r>>3)&1)+2*((r>>2)&1)+((r>>1)&1)
        a(f'v_cmp_gt_i32 s[{sTm+2*(r&3)}:{sTm+1+2*(r&3)}], {kb}, v{vt3}')
        if r>=2:
            q=r-2
            a(f'v_cndmask_b32 v{vMF+q}, v{vt2}, 0, s[{sTm+2*(q&3)}:{sTm+1+2*(q&3)}]')
            a(f'v_cndmask_b32 v{vML+q}, 0, v{vt2}, s[{sTm+2*(q&3)}:{sTm+1+2*(q&3)}]')
    a('s_nop 1')
    for q in (14,15):
        a(f'v_cndmask_b32 v{vMF+q}, v{vt2}, 0, s[{sTm+2*(q&3)}:{sTm+1+2*(q&3)}]')
        a(f'v_cndmask_b32 v{vML+q}, 0, v{vt2}, s[{sTm+2*(q&3)}:{sTm+1+2*(q&3)}]')
    a(f's_cmp_lg_u32 s{sJ}, 0')
    a('s_cbranch_scc1 L_mf_ok')
    for r in range(16): a(f'v_mov_b32 v{vMF+r}, v{vt2}')
    a.lab('L_mf_ok')
    a(f's_add_u32 s{sKV}, s{sWS}, s{sHB}')
    a(f's_addc_u32 s{sKV+1}, s{sWS+1}, 0')
    a(f's_and_b32 s{sKV+1}, s{sKV+1}, 0xffff')
    a(f's_mov_b32 s{sKV+2}, 163840')
    a(f's_mov_b32 s{sKV+3}, 0x20000')
    a(f's_lshl_b32 s{sOff}, s{sWV}, 10')
    a(f's_add_u32 s{sOff}, s{sOff}, 16384')
    a(f's_mov_b32 s{sInc}, {HALF}')
    a(f's_mov_b32 s{sInc+1}, {(8192-HALF)&0xffffffff}')
    def vinit():
        a(f'v_cmp_eq_u32 s[{sTm}:{sTm+1}], 20, v{vRho}')
        a(f'v_mov_b32 v{vt1}, 0x3f803f80')
        a('s_nop 0')
        a(f'v_cndmask_b32 v{vt1}, 0, v{vt1}, s[{sTm}:{sTm+1}]')
        for i in range(16): a(f'v_mov_b32 v{vV+i}, v{vt1}')
    vinit()
    a(f'v_lshrrev_b32 v{vt1}, 4, v{vKap}')
    a(f'v_and_b32 v{vt2}, 15, v{vKap}')
    a(f'v_lshlrev_b32 v{vOoff}, 14, v{vt1}')
    a(f'v_lshl_add_u32 v{vOoff}, v{vt2}, 4, v{vOoff}')
    a(f'v_lshrrev_b32 v{vt3}, 5, v{vLane}')
    a(f'v_lshl_add_u32 v{vOoff}, v{vt3}, 8, v{vOoff}')
    a(f'v_lshlrev_b32 v{vOo2}, 12, v{vt1}')
    a(f'v_lshl_add_u32 v{vOo2}, v{vt2}, 3, v{vOo2}')
    for r in range(16): a(f'v_mov_b32 v{vOa+r}, 0')
    for r in range(16): a(f'v_mov_b32 v{vOb+r}, 0')
    for i in range(4): a(f'v_mov_b32 v{vP+4+i}, 0')
    a(f's_lshl_b32 s{st0}, s{sWV}, 6')
    a(f'v_add_u32 v{vt0}, s{st0}, v{vLane}')
    a(f'v_mul_u32_u24 v{vt1}, 52429, v{vt0}')
    a(f'v_lshrrev_b32 v{vt1}, 19, v{vt1}')
    a(f'v_mul_u32_u24 v{vt2}, 10, v{vt1}')
    a(f'v_sub_u32 v{vCc}, v{vt0}, v{vt2}')
    a(f'v_mul_u32_u24 v{vt1}, 1280, v{vt1}')
    a(f'v_lshl_add_u32 v{vWo}, v{vCc}, 4, v{vt1}')
    a(f's_lshl_b32 s{sWl}, s{sWV}, 10')
    a(f's_add_u32 s{sWl}, s{sWl}, {WOFF}')
    a(f's_and_b32 s{sWn}, s{sHD}, 7')
    a(f's_mul_i32 s{sWn}, s{sWn}, 160')
    a('s_waitcnt lgkmcnt(0)')
    a(f's_cmp_lt_u32 s{sHD}, 16')
    a('s_cselect_b64 s[50:51], s[50:51], s[52:53]')
    srd(a,sWo,50,51,640*1280)
    p.stamp(5)

    def rd_k1(dst,off):
        assert off%512==0 and off//512+1<256
        a(f'ds_read2st64_b64 {vr(dst,4)}, v{vK1a} offset0:{off//512} offset1:{off//512+1}')
    def rd_k2(dst,off): a(f'ds_read_b64 {vr(dst,2)}, v{vK2a} offset:{off}')
    def rd_v(buf,off):
        a(f's_mov_b64 exec, s[{sVm}:{sVm+1}]')
        a(f'ds_read_b128 {vr(vV+8*buf,4)}, v{vVa} offset:{off}')
        a(f'ds_read_b128 {vr(vV+8*buf+4,4)}, v{vVb} offset:{off}')
        a('s_mov_b64 exec, -1')
    def qk1(S,C,Q1,K=None): a(f'v_mfma_f32_32x32x16_bf16 {vr(S,16)}, {vr(vK1 if K is None else K,4)}, {vr(Q1,4)}, {C}')
    def qk2(S,Q2,K=None): a(f'v_mfma_f32_32x32x8bf16_1k {vr(S,16)}, {vr(vK2 if K is None else K,2)}, {vr(Q2,2)}, {vr(S,16)}')
    def pv(O,buf,t): a(f'v_mfma_f32_32x32x16_bf16 {vr(O,16)}, {vr(vV+8*buf+4*t,4)}, {vr(vP+4*t,4)}, {vr(O,16)}')
    def ex(S,r): a(f'v_exp_f32 v{S+r}, v{S+r}')
    def cv(S,c): a(f'v_cvt_pk_bf16_f32 v{vP+c}, v{S+2*c}, v{S+2*c+1}')
    def rowmax(M,S,first):
        if first:
            a(f'v_max3_f32 v{M}, v{S}, v{S+1}, v{S+2}'); rest=list(range(3,16))
        else: rest=list(range(16))
        while len(rest)>=2:
            a(f'v_max3_f32 v{M}, v{M}, v{S+rest[0]}, v{S+rest[1]}'); rest=rest[2:]
        if rest: a(f'v_max_f32 v{M}, v{M}, v{S+rest[0]}')
    def xhalf_max(M):
        a(f'v_mov_b32 v{vt1}, v{M}')
        a('s_nop 1')
        a(f'v_permlane32_swap_b32 v{M}, v{vt1}')
        a('s_nop 1')
        a(f'v_max_f32 v{M}, v{M}, v{vt1}')
    def get_l():
        a(f'v_mov_b32 v{vt1}, v{vOa+8}')
        a(f'v_mov_b32 v{vt2}, v{vOa+8}')
        a('s_nop 1')
        a(f'v_permlane32_swap_b32 v{vt1}, v{vt2}')
        a('s_nop 1')
    def store_o(soff):
        a(f'v_rcp_f32 v{vt3}, v{vt2}')
        a(f's_lshr_b32 s{st0}, s{sHD}, 1')
        a(f's_lshl_b32 s{st0}, s{st0}, 10')
        a(f's_and_b32 s{st1}, s{sHD}, 1')
        a(f's_lshl_b32 s{st1}, s{st1}, 9')
        a(f's_add_u32 s{st0}, s{st0}, s{st1}')
        a(f's_add_u32 s{st0}, s{st0}, s{soff}')
        for i in range(12): a(f'v_mul_f32 v{vOa+i}, v{vOa+i}, v{vt3}')
        for i in range(6): a(f'v_cvt_pk_bf16_f32 v{vSa+i}, v{vOa+2*i}, v{vOa+2*i+1}')
        a(f'buffer_store_dwordx4 {vr(vSa,4)}, v{vOoff}, s[{sOo}:{sOo+3}], s{st0} offen {SC}')
        a(f's_lshl_b32 s{st0}, s{sHD}, 7')
        a(f's_add_u32 s{st0}, s{st0}, s{soff+1}')
        a(f's_mov_b64 exec, s[{sLo}:{sLo+1}]')
        a(f'buffer_store_dwordx2 {vr(vSa+4,2)}, v{vOo2}, s[{sOo}:{sOo+3}], s{st0} offen {SC}')
        a('s_mov_b64 exec, -1')
    def addr_add(s):
        for r in (vK1a,vK2a,vVa,vVb): a(f'v_add_u32 v{r}, s{s}, v{r}')
    def addr_addi(imm):
        for r in (vK1a,vK2a,vVa,vVb): a(f'v_add_u32 v{r}, {imm}, v{r}')
    def dma_row(k):
        a(f's_mov_b32 m0, s{sOff}')
        a(f'buffer_load_dwordx4 v{vDma}, s[{sKV}:{sKV+3}], s{sOff} offen {SL} lds')
        a(f's_add_u32 s{sOff}, s{sOff}, s{sInc+(k&1)}')
    def dma_pair():
        dma_row(0); dma_row(1)
    def prio_switch(phase,L):
        a(f's_cmp_lt_u32 s{sWV}, 4')
        a(f's_cbranch_scc{1-phase} {L}_hi')
        a('s_setprio 0')
        a(f's_branch {L}_d')
        a.lab(f'{L}_hi')
        a('s_setprio 1')
        a.lab(f'{L}_d')
    def expgroups(cur,A_,B_,C_,D_):
        A_()
        for r in range(0,4): ex(cur,r)
        B_()
        ex(cur,4); ex(cur,5); cv(cur,0); ex(cur,6); cv(cur,1); ex(cur,7)
        C_()
        ex(cur,8); cv(cur,2); ex(cur,9); cv(cur,3); ex(cur,10); ex(cur,11)
        D_()
        ex(cur,12); ex(cur,13); cv(cur,4); ex(cur,14); cv(cur,5); ex(cur,15); cv(cur,6); cv(cur,7)

    a('s_cmp_eq_u32 s49, 8')
    a('s_cbranch_scc1 L_p2_w8')
    a('s_waitcnt vmcnt(0)')
    a('s_branch L_p2_wd')
    a.lab('L_p2_w8')
    a('s_waitcnt vmcnt(8)')
    a.lab('L_p2_wd')
    a('s_barrier')
    p.stamp(7)
    rd_k1(vK1,0); rd_k2(vK2,0)
    a('s_waitcnt lgkmcnt(0)')
    qk1(vSa,'0',vQa1); qk2(vSa,vQa2)
    qk1(vSb,'0',vQb1); qk2(vSb,vQb2)
    a(f's_mul_i32 s{st0}, s{sKH}, {HALF}')
    addr_add(st0)
    rd_k1(vK1,0); rd_k2(vK2,0); rd_v(0,0)
    a('s_nop 7')
    rowmax(vM,vSa,True)
    rowmax(vMb,vSb,True)
    xhalf_max(vM); xhalf_max(vMb)
    for r in range(16): a(f'v_sub_f32 v{vCa+r}, 0, v{vM}')
    for r in range(16): a(f'v_sub_f32 v{vCb+r}, 0, v{vMb}')
    a('s_waitcnt lgkmcnt(0)')
    qk1(vSa,vr(vCa,16),vQa1); qk2(vSa,vQa2)
    a(f's_mov_b32 s{sIT}, 0')
    if SPRIO:
        a(f's_cmp_lt_u32 s{sWV}, 4'); a('s_cbranch_scc1 L_sp'); a('s_setprio 1'); a.lab('L_sp')
    a.raw('.p2align 6')
    for _ in range(BSH): a('s_nop 0')
    a.lab('L_b_loop')
    ool=[]
    def cond(it,L,fn):
        a(f's_cmp_eq_u32 s{sIT}, {it}'); a(f's_cbranch_scc1 {L}'); a.lab(L+'_r')
        ool.append((L,fn))
    for pp in range(8):
        off=pp*TILE
        if pp==2:
            def h02():
                a('s_waitcnt vmcnt(2)'); a('s_barrier')
                a(f's_cmp_lg_u32 s{sWV}, 4'); a('s_cbranch_scc1 L_h02_r')
                a('s_cmp_lt_i32 s49, 0'); a('s_cbranch_scc0 L_h02_r')
                a('s_and_b32 s50, s49, 0x7fffffff')
                setflag(a,50)
            cond(0,'L_h02',h02)
        if pp==5:
            a(f's_cmp_lg_u32 s{sIT}, 2'); a('s_cbranch_scc1 L_h5'); a.lab('L_h5_r')
            def h5():
                a(f's_cmp_eq_u32 s{sIT}, 0'); a('s_cbranch_scc1 L_h5a')
                a(f's_cmp_eq_u32 s{sIT}, 3'); a('s_cbranch_scc1 L_h5b')
                a('s_waitcnt vmcnt(1)'); a('s_barrier'); a('s_branch L_h5_r')
                a.lab('L_h5b')
                a(f's_mov_b32 s{sOff}, 200000'); a(f's_mov_b32 s{sInc}, 0'); a(f's_mov_b32 s{sInc+1}, 0'); a('s_branch L_h5_r')
                a.lab('L_h5a'); a('s_waitcnt vmcnt(3)'); a('s_barrier')
            ool.append(('L_h5',h5))
        dma_row(pp)
        expgroups(vSa,
            lambda: (qk1(vSb,vr(vCb,16),vQb1), rd_k1(vK1,off+TILE)),
            lambda: (pv(vOb,(pp+1)&1,1), rd_v((pp+1)&1,off+TILE)),
            lambda: (qk2(vSb,vQb2), rd_k2(vK2,off+TILE)),
            lambda: pv(vOa,pp&1,0))
        a('s_waitcnt lgkmcnt(0)')
        expgroups(vSb,
            lambda: qk1(vSa,vr(vCa,16),vQa1),
            lambda: pv(vOa,pp&1,1),
            lambda: qk2(vSa,vQa2),
            lambda: pv(vOb,pp&1,0))
    a(f's_cmp_eq_u32 s{sIT}, 3'); a('s_cbranch_scc1 L_b_exit')
    a(f's_cmp_eq_u32 s{sIT}, 1'); a('s_cbranch_scc1 L_bb1')
    a(f's_cmp_eq_u32 s{sIT}, 2'); a('s_cbranch_scc1 L_bb2')
    a('s_waitcnt vmcnt(2)'); a('s_barrier')
    a.lab('L_bb_r')
    def bb1():
        a(f's_mov_b32 s{sKV+2}, 0')
        gettok(a,'a',0)
        a('s_branch L_bb_r')
    def bb2():
        a(f's_cmp_lg_u32 s{sWV}, 0'); a('s_cbranch_scc1 L_bb2a')
        poll_f1(a,'a',0)
        a.lab('L_bb2a')
        a('s_waitcnt vmcnt(0)'); a('s_barrier')
        a(f's_add_u32 s{sKV}, s{sWS}, s{sAg}')
        a(f's_addc_u32 s{sKV+1}, s{sWS+1}, 0')
        a(f's_and_b32 s{sKV+1}, s{sKV+1}, 0xffff')
        a(f's_mov_b32 s{sKV+2}, 40960')
        a(f's_lshl_b32 s{sOff}, s{sWV}, 10')
        a(f's_mov_b32 s{sInc}, 8192')
        a(f's_mov_b32 s{sInc+1}, 8192')
        a(f'buffer_load_dwordx2 {vr(vQA1,2)}, v{vQ1o}, s[{sR}:{sR+3}], s{sQA} offen {SL}')
        a(f'buffer_load_dwordx2 {vr(vQA1+2,2)}, v{vQ1o}, s[{sR}:{sR+3}], s{sQA} offen offset:512 {SL}')
        a(f'buffer_load_dwordx2 {vr(vQA2,2)}, v{vQ2o}, s[{sR}:{sR+3}], s{sQA} offen {SL}')
        a('s_branch L_bb_r')
    ool.append(('L_bb1',bb1)); ool.append(('L_bb2',bb2))
    addr_addi(8*TILE)
    if PROF and BPROF==1:
        for k in range(4):
            a(f's_cmp_lg_u32 s{sIT}, {k}'); a(f's_cbranch_scc1 L_st{k}'); p.stamp(1+k); a.lab(f'L_st{k}')
    a(f's_add_u32 s{sIT}, s{sIT}, 1')
    a('s_branch L_b_loop')
    a.lab('L_b_exit')
    addr_addi(8*TILE)
    a('s_nop 1')
    pv(vOb,1,1)
    a('s_setprio 0')
    a('s_nop 15')
    p.stamp(8)
    a(f's_lshl_b32 s{st0}, s{sQP}, 1')
    a(f's_cmp_eq_u32 s{sKH}, 0')
    a('s_cbranch_scc0 L_mg_hi')
    a(f's_add_u32 s{st1}, s{st0}, 1')
    a(f's_mul_i32 s{st1}, s{st1}, 3072')
    a(f's_add_u32 s{st1}, s{st1}, {SCR}')
    a(f'v_add_u32 v{vt4}, s{st1}, v{vDma}')
    for i in range(3): a(f'ds_write_b128 v{vt4}, {vr(vOb+4*i,4)} offset:{1024*i}')
    a(f's_mul_i32 s{st1}, s{st0}, 3072')
    a('s_branch L_mg_d')
    a.lab('L_mg_hi')
    a(f's_mul_i32 s{st1}, s{st0}, 3072')
    a(f's_add_u32 s{st1}, s{st1}, {SCR}')
    a(f'v_add_u32 v{vt4}, s{st1}, v{vDma}')
    for i in range(3): a(f'ds_write_b128 v{vt4}, {vr(vOa+4*i,4)} offset:{1024*i}')
    for i in range(12): a(f'v_mov_b32 v{vOa+i}, v{vOb+i}')
    for i in range(4): a(f'v_mov_b32 v{vQa1+i}, v{vQb1+i}')
    for i in range(2): a(f'v_mov_b32 v{vQa2+i}, v{vQb2+i}')
    a(f's_add_u32 s{st1}, s{st0}, 1')
    a(f's_mul_i32 s{st1}, s{st1}, 3072')
    a.lab('L_mg_d')
    a(f's_add_u32 s{st1}, s{st1}, {SCR}')
    a(f'v_add_u32 v{vt4}, s{st1}, v{vDma}')
    a('s_waitcnt lgkmcnt(0) vmcnt(0)')
    a('s_barrier')
    for i in range(3): a(f'ds_read_b128 {vr(vSa+4*i,4)}, v{vt4} offset:{1024*i}')
    a('s_waitcnt lgkmcnt(0)')
    a('s_barrier')
    for i in range(12): a(f'v_add_f32 v{vOa+i}, v{vOa+i}, v{vSa+i}')
    get_l()
    a(f'v_mov_b32 v{vt3}, {f32bits(2.0**100):#x}')
    a(f'v_cmp_nlt_f32 vcc, v{vt2}, v{vt3}')
    a('s_nop 4')
    a('s_cbranch_vccnz L_b_fallback')
    a.lab('L_b_store')
    store_o(sOB)
    p.stamp(9)
    a(f's_mul_i32 s{st0}, s{sWV}, {TILE}')
    a(f's_mul_i32 s{st1}, s{sKH}, {HALF}')
    a(f's_sub_u32 s{st0}, s{st0}, s{st1}')
    a(f's_sub_u32 s{st0}, s{st0}, {32*TILE}')
    addr_add(st0)
    a(f's_lshl_b32 s{st0}, s{sJ}, 3')
    a(f's_add_u32 s{st2}, s{st0}, s{sWV}')
    a(f's_lshl_b32 s{sOA}, s{st2}, 15')
    a(f's_lshl_b32 s{sOA+1}, s{st2}, 13')
    a(f's_add_u32 s{sOA+1}, s{sOA+1}, {128*16384}')
    for i in range(4): a(f'v_mov_b32 v{vQa1+i}, v{vQA1+i}')
    for i in range(2): a(f'v_mov_b32 v{vQa2+i}, v{vQA2+i}')
    a(f's_sub_u32 s{sSw}, 8, s{sWV}')
    a(f's_cmp_lg_u32 s{sJ}, 0')
    a(f's_cselect_b32 s{sSw}, 0, s{sSw}')
    vC=vCa; vO=vOa; vS=[vSa,vSb]
    KR=[(vV,vV+4),(vV+8,vV+12),(vP,vP+4)]
    SB=[vSa,vSb,vOa]
    def cmid_init(tag,val):
        a(f's_cmp_le_u32 s{sSw}, 1')
        a(f's_cbranch_scc1 L_cm_{tag}_v')
        for r in range(16): a(f'v_mov_b32 v{vC+r}, {NEG_BIG:#x}')
        a(f's_branch L_cm_{tag}_d')
        a.lab(f'L_cm_{tag}_v')
        for r in range(16): a(f'v_mov_b32 v{vC+r}, {val}')
        a.lab(f'L_cm_{tag}_d')
    def cmid_switch(tag,t,val):
        L=f'L_sw_{tag}_{t}'
        a(f's_cmp_eq_u32 s{sSw}, {t}')
        a(f's_cbranch_scc1 {L}')
        a.lab(L+'_r')
        def fn():
            a('s_nop 15')
            for r in range(16): a(f'v_mov_b32 v{vC+r}, {val}')
            a('s_nop 1')
        ool.append((L,fn))
    wocnt=[0]
    def wo_dma():
        if wocnt[0]>=10: return
        n=wocnt[0]; wocnt[0]+=1
        a(f's_cmp_lt_u32 s{sWV}, 5')
        a(f's_cbranch_scc0 L_wo{n}')
        for k in range(2):
            a(f's_mov_b32 m0, s{sWl}')
            a(f's_add_u32 s{sWl}, s{sWl}, 5120')
            a(f'buffer_load_dwordx4 v{vWo}, s[{sWo}:{sWo+3}], s{sWn} offen lds')
            a(f's_add_u32 s{sWn}, s{sWn}, 40960')
        a.lab(f'L_wo{n}')
    cmid_init('p1','0')
    for i in range(3):
        rd_k1(KR[i][0],i*TILE); rd_k2(KR[i][1],i*TILE)
    for b in range(3):
        a('s_waitcnt lgkmcnt(0)')
        for i in range(3):
            t=3*b+i
            if 2<=t<=7: cmid_switch('p1',t,'0')
            C = vr(vMF,16) if t==0 else (vr(vML,16) if t==8 else vr(vC,16))
            qk1(SB[i],C,vQa1,KR[i][0]); qk2(SB[i],vQa2,KR[i][1])
        if b<2:
            for i in range(3):
                t=3*(b+1)+i
                rd_k1(KR[i][0],t*TILE); rd_k2(KR[i][1],t*TILE)
        if b==2:
            rd_k1(vK1,0); rd_k2(vK2,0)
        wo_dma()
        a('s_nop 3')
        for i in range(3):
            if i==2: a('s_nop 3')
            rowmax(vM,SB[i],b==0 and i==0)
    xhalf_max(vM)
    a(f'v_sub_f32 v{vM}, 0, v{vM}')
    for r in range(16): a(f'v_add_f32 v{vMF+r}, v{vMF+r}, v{vM}')
    for r in range(16): a(f'v_add_f32 v{vML+r}, v{vML+r}, v{vM}')
    cmid_init('p2',f'v{vM}')
    for r in range(16): a(f'v_mov_b32 v{vO+r}, 0')
    vinit()
    for i in range(4): a(f'v_mov_b32 v{vP+4+i}, 0')
    a('s_waitcnt lgkmcnt(0)')
    qk1(vS[0],vr(vMF,16),vQa1); qk2(vS[0],vQa2)
    rd_k1(vK1,TILE); rd_v(0,0); rd_k2(vK2,TILE)
    for t in range(9):
        last=(t==8); last2=(t==7); tn=t+1
        cur=vS[t&1]; nxt=vS[(t+1)&1]; off=t*TILE
        Cn = vr(vML,16) if tn==8 else vr(vC,16)
        a('s_waitcnt lgkmcnt(0)')
        if 2<=tn<=7: cmid_switch('p2',tn,f'v{vM}')
        if PRIO and t%PRIO==0: prio_switch((t//PRIO)&1,f'L_apr{t}')
        wo_dma()
        def A_():
            if not last: qk1(nxt,Cn,vQa1)
            if not last and not last2: rd_k1(vK1,off+2*TILE)
        def B_():
            pv(vO,(t+1)&1,1)
            if not last: rd_v((t+1)&1,off+TILE)
        def C_():
            if not last: qk2(nxt,vQa2)
            if not last and not last2: rd_k2(vK2,off+2*TILE)
        expgroups(cur,A_,B_,C_,lambda: pv(vO,t&1,0))
    assert wocnt[0]==10
    a('s_nop 1')
    pv(vO,0,1)
    a('s_setprio 0')
    a('s_nop 15')
    get_l()
    store_o(sOA)
    p.stamp(10)
    a('s_waitcnt vmcnt(0)')
    a('s_barrier')
    p.stamp(11)
    a(f's_cmp_lg_u32 s{sWV}, 4')
    a('s_cbranch_scc1 L_p3')
    a(f's_lshl_b32 s{st0}, s{sJ}, 5')
    a(f's_add_u32 s{st0}, s{st0}, s{sHD}')
    a(f's_lshl_b32 s{st0}, s{st0}, 7')
    a(f's_add_u32 s{st0}, s{st0}, 65536')
    setflag(a,st0)
    a(f's_lshl_b32 s{st0}, s{sJ}, 12')
    a(f's_add_u32 s{st0}, s{st0}, {WS_FLG+65536}')
    a(f'v_and_b32 v{vt0}, 31, v{vLane}')
    a(f'v_lshlrev_b32 v{vt0}, 7, v{vt0}')
    a(f'v_add_u32 v{vt0}, s{st0}, v{vt0}')
    poll(a,'p3',vt0,[0],(1<<32)-1)
    a('s_barrier')
    a('s_branch L_done')
    for L,fn in ool:
        a.lab(L); fn()
        if not L.startswith('L_bb'): a(f's_branch {L}_r')
    a.lab('L_b_fallback')
    a(f'v_lshlrev_b32 v{vt4}, 3, v{vRho}')
    a(f'v_add_u32 v{vt4}, 1024, v{vt4}')
    a(f'v_lshrrev_b32 v{vt0}, 5, v{vLane}')
    a(f'v_bfe_u32 v{vt5}, v{vRho}, 2, 2')
    a(f'v_xor_b32 v{vt5}, v{vt5}, v{vt0}')
    a(f'v_lshlrev_b32 v{vt5}, 4, v{vt5}')
    a(f'v_lshl_add_u32 v{vt5}, v{vRho}, 6, v{vt5}')
    a(f'v_add_u32 v{vt5}, 1280, v{vt5}')
    a(f'v_xor_b32 v{vt0}, 32, v{vt5}')
    a(f'v_mov_b32 v{vM}, {NEG_BIG:#x}')
    a(f's_mov_b32 s{st0}, s{sHB}')
    a(f's_mov_b32 s{sIT}, 64')
    a.lab('L_fb_p1')
    a(f'buffer_load_dwordx2 {vr(vK1,2)}, v{vQ1o}, s[{sR}:{sR+3}], s{st0} offen {SL}')
    a(f'buffer_load_dwordx2 {vr(vK1+2,2)}, v{vQ1o}, s[{sR}:{sR+3}], s{st0} offen offset:512 {SL}')
    a(f'buffer_load_dwordx2 {vr(vK2,2)}, v{vt4}, s[{sR}:{sR+3}], s{st0} offen {SL}')
    a('s_waitcnt vmcnt(0)')
    qk1(vSa,'0',vQa1); qk2(vSa,vQa2)
    a('s_nop 15')
    rowmax(vM,vSa,False)
    a(f's_add_u32 s{st0}, s{st0}, {TILE}')
    a(f's_sub_u32 s{sIT}, s{sIT}, 1')
    a(f's_cmp_lg_u32 s{sIT}, 0')
    a('s_cbranch_scc1 L_fb_p1')
    xhalf_max(vM)
    for r in range(16): a(f'v_sub_f32 v{vCa+r}, 0, v{vM}')
    for r in range(16): a(f'v_mov_b32 v{vOa+r}, 0')
    a(f's_mov_b32 s{st0}, s{sHB}')
    a(f's_mov_b32 s{sIT}, 64')
    a.lab('L_fb_p2')
    a(f'buffer_load_dwordx2 {vr(vK1,2)}, v{vQ1o}, s[{sR}:{sR+3}], s{st0} offen {SL}')
    a(f'buffer_load_dwordx2 {vr(vK1+2,2)}, v{vQ1o}, s[{sR}:{sR+3}], s{st0} offen offset:512 {SL}')
    a(f'buffer_load_dwordx2 {vr(vK2,2)}, v{vt4}, s[{sR}:{sR+3}], s{st0} offen {SL}')
    a(f's_mov_b64 exec, s[{sVm}:{sVm+1}]')
    a(f'buffer_load_dwordx4 {vr(vV,4)}, v{vt5}, s[{sR}:{sR+3}], s{st0} offen {SL}')
    a(f'buffer_load_dwordx4 {vr(vV+4,4)}, v{vt0}, s[{sR}:{sR+3}], s{st0} offen {SL}')
    a('s_mov_b64 exec, -1')
    a('s_waitcnt vmcnt(0)')
    qk1(vSa,vr(vCa,16),vQa1); qk2(vSa,vQa2)
    a('s_nop 15')
    for r in range(16): ex(vSa,r)
    a('s_nop 0')
    for c in range(8): cv(vSa,c)
    a('s_nop 1')
    pv(vOa,0,0); pv(vOa,0,1)
    a(f's_add_u32 s{st0}, s{st0}, {TILE}')
    a(f's_sub_u32 s{sIT}, s{sIT}, 1')
    a(f's_cmp_lg_u32 s{sIT}, 0')
    a('s_cbranch_scc1 L_fb_p2')
    a('s_nop 15')
    get_l()
    a('s_branch L_b_store')
    return vEnd, dict(sHD=sHD,sJ=sJ)

def phase3(a,p,info,ROT3=3,XD=6):
    WOFF=40960
    sHD,sJ=info['sHD'],info['sJ']
    sX,sO=4,8
    st0,st1,st2,st3=20,21,22,23
    sPH=28; sBR=29; sMT=30; sNT=31
    vLane=1; vXo=2; vt0=4; vt1=5; vt2=6; vt3=7; vTok=8; vG=9; vTr=10; vOut=11; vTp=12; vTq=14; vX2=3
    vX=16; vWf=vX+160; vAcc=vWf+40; vEnd=vAcc+40
    a.lab('L_p3')
    a(f's_cmp_ge_u32 s{sWV}, 4')
    a('s_cbranch_scc1 L_done')
    a('s_load_dwordx2 s[50:51], s[0:1], 48')
    a(f's_lshr_b32 s{sBR}, s{sHD}, 4')
    a(f's_bfe_u32 s{st0}, s{sHD}, 0x10003')
    a(f's_lshl_b32 s{sMT}, s{sJ}, 1')
    a(f's_add_u32 s{sMT}, s{sMT}, s{st0}')
    a(f's_and_b32 s{sNT}, s{sHD}, 7')
    a(f's_and_b32 s{sPH}, s{sHD}, {ROT3}')
    a(f'v_and_b32 v{vTok}, 15, v{vLane}')
    a(f'v_lshrrev_b32 v{vG}, 4, v{vLane}')
    a(f'v_lshlrev_b32 v{vXo}, 4, v{vLane}')
    a(f'v_lshlrev_b32 v{vX2}, 3, v{vLane}')
    a(f's_lshl_b32 s{st0}, s{sMT}, 3')
    a(f's_lshl_b32 s{st1}, s{sWV}, 1')
    a(f's_add_u32 s{st0}, s{st0}, s{st1}')
    a(f's_lshl_b32 s32, s{st0}, 14')
    a(f's_lshl_b32 s36, s{st0}, 12')
    a(f's_add_u32 s36, s36, {128*16384}')
    a(f's_add_u32 s37, s36, 4096')
    a(f's_mul_i32 s{st0}, s{sBR}, {2048*1280}')
    a(f's_add_u32 s{st0}, s{st0}, {WS_O}')
    a(f's_add_u32 s52, s{sWS}, s{st0}')
    a(f's_addc_u32 s53, s{sWS+1}, 0')
    srd(a,sX,52,53,2048*1280)
    a(f'v_bfe_u32 v{vt0}, v{vLane}, 2, 2')
    a(f'v_mul_u32_u24 v{vt0}, 160, v{vt0}')
    a(f'v_and_b32 v{vt1}, 3, v{vLane}')
    a(f'v_lshl_add_u32 v{vt0}, v{vt1}, 3, v{vt0}')
    a(f'v_add_u32 v{vt0}, {WOFF}, v{vt0}')
    a(f'v_lshrrev_b32 v{vt1}, 1, v{vG}')
    a(f'v_mul_u32_u24 v{vt1}, 5, v{vt1}')
    a(f'v_and_b32 v{vt2}, 1, v{vG}')
    a(f'v_add_u32 v{vt1}, v{vt1}, v{vt2}')
    a(f'v_mul_u32_u24 v{vt1}, 640, v{vt1}')
    a(f'v_add_u32 v{vTr}, v{vt0}, v{vt1}')
    a(f'v_mul_u32_u24 v{vt1}, {5*640}, v{vG}')
    a(f'v_add3_u32 v{vTq}, v{vt0}, v{vt1}, 0')
    a(f'v_add_u32 v{vTq}, {4*640}, v{vTq}')
    for i in range(40): a(f'v_mov_b32 v{vAcc+i}, 0')
    a(f's_lshl_b32 s{st0}, s{sMT}, 7')
    a(f's_lshl_b32 s{st1}, s{sWV}, 5')
    a(f's_add_u32 s{st0}, s{st0}, s{st1}')
    a(f'v_add_u32 v{vt0}, s{st0}, v{vTok}')
    a(f'v_mul_u32_u24 v{vt0}, 2560, v{vt0}')
    a(f'v_and_b32 v{vt1}, 1, v{vG}')
    a(f'v_lshlrev_b32 v{vt1}, 5, v{vt1}')
    a(f'v_lshrrev_b32 v{vt2}, 1, v{vG}')
    a(f'v_lshl_add_u32 v{vt1}, v{vt2}, 4, v{vt1}')
    a(f'v_add_u32 v{vOut}, v{vt0}, v{vt1}')
    a(f'v_lshl_add_u32 v{vt3}, v{vG}, 3, v{vt0}')
    a('s_barrier')
    p.stamp(12)
    a(f's_mov_b32 s33, s{sPH}')
    for ph in range(4):
        a(f's_lshl_b32 s{st0}, s33, 12')
        a(f's_add_u32 s{40+2*ph}, s32, s{st0}')
        a(f's_add_u32 s{41+2*ph}, s{40+2*ph}, 16384')
        a('s_add_u32 s33, s33, 1')
        a('s_and_b32 s33, s33, 3')
    def xloads(st):
        L=[]
        if st<16:
            for u in range(2):
                L.append(f'buffer_load_dwordx4 {vr(vX+(st*2+u)*4,4)}, v{vXo}, s[{sX}:{sX+3}], s{40+2*(st//4)+u} offen offset:{(st%4)*1024} {SL}')
        elif st<20:
            for u in range(2):
                for hh in range(2):
                    L.append(f'buffer_load_dwordx2 {vr(vX+(st*2+u)*4+2*hh,2)}, v{vX2}, s[{sX}:{sX+3}], s{36+u} offen offset:{(st-16)*1024+hh*512} {SL}')
        return L
    for st in range(XD):
        for l in xloads(st): a(l)
    if BPROF==3: p.stamp(1,force=True)
    a('s_waitcnt lgkmcnt(0)')
    srd(a,sO,50,51,2048*2560)
    def trr(s,cp,h):
        buf=vWf+(s&1)*20+cp*4+2*h
        if s<16: return f'ds_read_b64_tr_b16 {vr(buf,2)}, v{vTp+((s//4)&1)} offset:{(s%4)*6400+cp*32+h*1280}'
        o=(s-16)*25600+cp*32+h*12800
        if o<65536: return f'ds_read_b64_tr_b16 {vr(buf,2)}, v{vTq} offset:{o}'
        return f'ds_read_b64_tr_b16 {vr(buf,2)}, v{vTq+1} offset:{o-51200}'
    def setp(ph):
        a(f's_mul_i32 s{st0}, s{sPH}, {4*6400}')
        a(f'v_add_u32 v{vTp+(ph&1)}, s{st0}, v{vTr}')
        a(f's_add_u32 s{sPH}, s{sPH}, 1')
        a(f's_and_b32 s{sPH}, s{sPH}, 3')
    a(f'v_add_u32 v{vTq+1}, 51200, v{vTq}')
    setp(0)
    for cp in range(5):
        a(trr(0,cp,0)); a(trr(0,cp,1))
    nl=lambda st: len(xloads(st))
    for s in range(20):
        if s%4==0 and s//4+1<4: setp(s//4+1)
        nxt=[trr(s+1,cp,h) for cp in range(5) for h in range(2)] if s+1<20 else []
        xl=xloads(s+XD)
        buf=vWf+(s&1)*20
        younger=sum(nl(t) for t in range(s+1,min(s+XD,20)))
        a(f's_waitcnt lgkmcnt(0) vmcnt({younger})')
        if BPROF==3 and s in (0,4,8,12,16,19): p.stamp(2+(0,4,8,12,16,19).index(s),force=True)
        k=0
        for cp in range(5):
            for u in range(2):
                ac=vAcc+(cp*2+u)*4
                a(f'v_mfma_f32_16x16x32_bf16 {vr(ac,4)}, {vr(buf+cp*4,4)}, {vr(vX+(s*2+u)*4,4)}, {vr(ac,4)}')
                for _ in range(2 if k<5 else 0):
                    if nxt: a(nxt.pop(0))
                if k>=5 and xl: a(xl.pop(0))
                k+=1
        assert not xl
    a('s_nop 7')
    p.stamp(13)
    a(f's_mul_i32 s{st0}, s{sBR}, 1280')
    a(f's_mul_i32 s{st1}, s{sNT}, 160')
    a(f's_add_u32 s{st0}, s{st0}, s{st1}')
    a(f's_add_u32 s{st1}, s{st0}, {16*2560}')
    for u in range(2):
        for cp in range(5):
            b=vAcc+(cp*2+u)*4
            a(f'v_cvt_pk_bf16_f32 v{b}, v{b}, v{b+1}')
            a(f'v_cvt_pk_bf16_f32 v{b+1}, v{b+2}, v{b+3}')
        for cp in (0,2):
            b=vAcc+(cp*2+u)*4; b2=vAcc+((cp+1)*2+u)*4
            a(f'v_mov_b32 v{b+2}, v{b2}')
            a(f'v_mov_b32 v{b+3}, v{b2+1}')
            a('s_nop 1')
            a(f'v_permlane16_swap_b32 v{b}, v{b+2}')
            a(f'v_permlane16_swap_b32 v{b+1}, v{b+3}')
            a('s_nop 1')
            a(f'buffer_store_dwordx4 {vr(b,4)}, v{vOut}, s[{sO}:{sO+3}], s{st0+u} offen offset:{cp*32} {SO}')
        b=vAcc+(4*2+u)*4
        a(f'buffer_store_dwordx2 {vr(b,2)}, v{vt3}, s[{sO}:{sO+3}], s{st0+u} offen offset:128 {SO}')
    return vEnd

def build(**kw):
    a=A(); p=Prof(a)
    a.raw(f'.globl {KNAME}'); a.raw('.p2align 8'); a.raw(f'.type {KNAME},@function'); a.lab(KNAME)
    a('s_cmp_ge_u32 s2, 256')
    a('s_cbranch_scc1 L_exit')
    p.real(0); p.stamp(0)
    a(f's_load_dwordx4 s[{sDBG}:{sDBG+3}], s[0:1], 56' if False else f's_load_dwordx2 s[{sDBG}:{sDBG+1}], s[0:1], 56')
    a(f's_load_dwordx2 s[{sWS}:{sWS+1}], s[0:1], 64')
    a('s_load_dwordx4 s[16:19], s[0:1], 0')
    a('s_load_dwordx4 s[20:23], s[0:1], 24')
    a(f's_mov_b32 s{sWG}, s2')
    a('v_lshrrev_b32 v2, 6, v0')
    a('s_nop 0')
    a(f'v_readfirstlane_b32 s{sWV}, v2')
    a(f's_cmp_lg_u32 s{sWG}, 0')
    a('s_cbranch_scc1 L_notok')
    a(f's_cmp_lg_u32 s{sWV}, 4')
    a('s_cbranch_scc1 L_notok')
    a('s_memrealtime s[56:57]')
    a('s_waitcnt lgkmcnt(0)')
    a('s_or_b32 s56, s56, 1')
    a('s_mov_b64 exec, 1')
    a('v_mov_b32 v2, 0')
    a('v_mov_b32 v3, s56')
    a(f'global_store_dword v2, v3, s[{sDBG}:{sDBG+1}] sc1')
    a('s_mov_b64 exec, -1')
    a.lab('L_notok')
    if CPF:
        a(f's_cmp_lg_u32 s{sWV}, 5')
        a('s_cbranch_scc1 L_nocpf')
        a('s_getpc_b64 s[56:57]')
        a.lab('L_pc')
        a(f's_lshr_b32 s58, s{sWG}, 3')
        a('s_and_b32 s58, s58, 31')
        a('s_lshl_b32 s58, s58, 10')
        a('v_and_b32 v2, 63, v0')
        a('v_lshlrev_b32 v2, 4, v2')
        a('v_add_u32 v2, s58, v2')
        a(f'v_min_u32 v2, CODE_BYTES-16, v2')
        a('global_load_dwordx4 v[240:243], v2, s[56:57]')
        a.lab('L_nocpf')
    v1=phase1(a,p,**kw.get('p1',{}))
    v2,info=phase2(a,p,**kw.get('p2',{}))
    v3=phase3(a,p,info,**kw.get('p3',{}))
    a.lab('L_done')
    if PROF:
        a('s_waitcnt vmcnt(0)')
        p.real(1); p.dump()
    a('s_endpgm')
    a.lab('L_exit')
    a('s_endpgm')
    a.lab('L_code_end')
    a.raw('.set CODE_BYTES, (L_code_end - L_pc) & 0xfffffff0' if CPF else '')
    vg=max(v1,v2,v3,244 if CPF else 0)
    desc=f'''.section .rodata,"a"
.p2align 6
.amdhsa_kernel {KNAME}
  .amdhsa_next_free_vgpr {vg}
  .amdhsa_next_free_sgpr 102
  .amdhsa_accum_offset {(vg+3)//4*4}
  .amdhsa_group_segment_fixed_size 0
  .amdhsa_kernarg_size 72
  .amdhsa_user_sgpr_count 2
  .amdhsa_user_sgpr_kernarg_segment_ptr 1
  .amdhsa_system_sgpr_workgroup_id_x 1
.end_amdhsa_kernel
'''
    hdr=open('cdna_kernels/'+NAME+'.s.ref').read().split('\n')
    out=[]
    for l in hdr:
        if l.startswith('; @launch'): out.append('; @launch grid=(256,1,1) block=(512,1,1) lds=163840'); continue
        if not l.startswith(';'): break
        out.append(l)
    out.append('.amdgcn_target "amdgcn-amd-amdhsa--gfx950"'); out.append('.text')
    return '\n'.join(out)+'\n'+a.txt()+desc

if __name__=='__main__':
    if len(sys.argv)>2 and sys.argv[2]=='prof': PROF=True
    kw=eval(sys.argv[3]) if len(sys.argv)>3 else {}
    if 'CPF' in kw: CPF=kw.pop('CPF')
    if 'RT' in kw: RT=kw.pop('RT')
    if 'BPROF' in kw: BPROF=kw.pop('BPROF')
    if 'SO' in kw: SO=kw.pop('SO')
    if 'SL' in kw: SL=kw.pop('SL')
    if 'SC' in kw: SC=kw.pop('SC')
    open(sys.argv[1],'w').write(build(**kw))
```

```python
import sys, math, struct
NAME='concat_heads__sliding_block__mha_block__prompt'
KNAME=NAME+'_kernel'
WS_Q=0
WS_KV=2*32*64*1280
WS_O=WS_KV+2*32*64*2560
WS_END=WS_O+2*2048*1280
WS_FLG=WS_END
CSCALE=(20.0**-0.5)*math.log2(math.e)
NEG_BIG=0xf149f2ca
def f32bits(x): return struct.unpack('<I',struct.pack('<f',x))[0]
class A:
    def __init__(s): s.l=[]
    def __call__(s,x): s.l.append('  '+x)
    def lab(s,x): s.l.append(x+':')
    def raw(s,x): s.l.append(x)
    def txt(s): return '\n'.join(s.l)+'\n'
def vr(a,n=1): return f'v{a}' if n==1 else f'v[{a}:{a+n-1}]'
PROF=False
BPROF=False
CPF=True
RT=False
PROF_BASE=32<<20
NST=16
class Prof:
    def __init__(s,a): s.a=a; s.n=0
    def stamp(s,i=None,force=False):
        if not PROF: return
        if BPROF==2 and not force and i not in (0,7,8): return
        if BPROF==3 and not force and i not in (0,12,13): return
        if i is None: i=s.n
        s.n=max(s.n,i+1)
        assert i<14
        s.a(f's_memrealtime s[{60+2*i}:{61+2*i}]' if RT else f's_memtime s[{60+2*i}:{61+2*i}]')
    def real(s,idx):
        if PROF: s.a(f's_memrealtime s[{88+2*idx}:{89+2*idx}]')
    def dump(s):
        if not PROF: return
        a=s.a
        a('s_waitcnt lgkmcnt(0) vmcnt(0)')
        a(f's_lshl_b32 s92, s{sWG}, 3')
        a(f's_add_u32 s92, s92, s{sWV}')
        a('s_lshl_b32 s92, s92, 6')
        a(f's_add_u32 s92, s92, {PROF_BASE}')
        a(f's_add_u32 s94, s{sWS}, s92')
        a(f's_addc_u32 s95, s{sWS+1}, 0')
        a('v_mov_b32 v0, 0')
        a('s_mov_b64 exec, 1')
        for i in range(14):
            a(f'v_mov_b32 v1, s{60+2*i}')
            a(f'global_store_dword v0, v1, s[94:95] offset:{4*i}')
        a('v_mov_b32 v1, s88'); a('global_store_dword v0, v1, s[94:95] offset:56')
        a('v_mov_b32 v1, s90'); a('global_store_dword v0, v1, s[94:95] offset:60')
        a('s_waitcnt vmcnt(0)')
sWG=96; sWV=97; sDBG=98; sWS=100; sTOK=59
def srd(a, d, lo, hi, nbytes):
    a(f's_mov_b32 s{d}, s{lo}')
    a(f's_and_b32 s{d+1}, s{hi}, 0xffff')
    a(f's_mov_b32 s{d+2}, {nbytes}')
    a(f's_mov_b32 s{d+3}, 0x20000')

SC='sc1'
SL=''
SO=''

TILE=2560; HALF=81920
def head_j(a,sH,sJ_,t0,t1):
    a(f's_and_b32 s{t0}, s{sWG}, 7')
    a(f's_lshr_b32 s{t1}, s{sWG}, 3')
    a(f's_lshl_b32 s{sH}, s{t0}, 2')
    a(f's_lshr_b32 s{t0}, s{t1}, 3')
    a(f's_add_u32 s{sH}, s{sH}, s{t0}')
    a(f's_and_b32 s{sJ_}, s{t1}, 7')
def q_issue(a):
    head_j(a,50,51,52,53)
    a('s_lshl_b32 s50, s50, 6')
    a('s_lshl_b32 s51, s51, 3')
    a('s_add_u32 s50, s50, s51')
    a(f's_and_b32 s51, s{sWV}, 3')
    a('s_lshl_b32 s51, s51, 1')
    a('s_add_u32 s50, s50, s51')
    a('s_mul_i32 s50, s50, 1280')
    a(f's_add_u32 s50, s50, {32*64*1280}')
    a('s_add_u32 s51, s50, 1280')
    srd(a,52,sWS,sWS+1,WS_O)
    a('v_and_b32 v2, 31, v1')
    a('v_lshlrev_b32 v2, 3, v2')
    a('v_lshrrev_b32 v3, 5, v1')
    a('v_lshl_add_u32 v3, v3, 8, v2')
    a('v_lshrrev_b32 v4, 5, v1')
    a('v_mul_u32_u24 v4, 1280, v4')
    a('v_add3_u32 v2, v2, v4, 0')
    a('v_add_u32 v2, 1024, v2')
    for (r1,so) in ((16,50),(24,51)):
        a(f'buffer_load_dwordx2 v[{r1}:{r1+1}], v3, s[52:55], s{so} offen {SL}')
        a(f'buffer_load_dwordx2 v[{r1+2}:{r1+3}], v3, s[52:55], s{so} offen offset:512 {SL}')
    a(f'buffer_load_dwordx2 v[20:21], v2, s[52:55], s50 offen {SL}')
def kv_first(a,pieces,rows=(0,HALF,8192,HALF+8192)):
    head_j(a,50,51,52,53)
    a(f's_mul_i32 s50, s50, {64*TILE}')
    a(f's_add_u32 s50, s50, {WS_KV+32*64*TILE}')
    a(f's_add_u32 s52, s{sWS}, s50')
    a(f's_addc_u32 s53, s{sWS+1}, 0')
    a('s_and_b32 s53, s53, 0xffff')
    a('s_mov_b32 s54, 163840')
    a('s_mov_b32 s55, 0x20000')
    a('v_lshlrev_b32 v2, 4, v1')
    for row in rows:
        for pc in pieces:
            a(f's_add_u32 s50, s{pc[0]}, {row+pc[1]}')
            a('s_mov_b32 m0, s50')
            a(f'buffer_load_dwordx4 v2, s[52:55], s50 offen {SL} lds')
def poll_f1(a,tag,br):
    head_j(a,50,51,52,53)
    a('s_mul_i32 s50, s50, 20')
    a('s_lshr_b32 s51, s50, 7')
    a('s_add_u32 s50, s50, 19')
    a('s_lshr_b32 s50, s50, 7')
    a('s_sub_u32 s50, s50, s51')
    a('v_bfe_u32 v2, v1, 4, 1')
    a('v_mul_u32_u24 v2, s50, v2')
    a('v_add_u32 v2, s51, v2')
    a('v_lshrrev_b32 v5, 5, v1')
    a('v_mul_u32_u24 v5, 5, v5')
    a('v_add_u32 v5, v5, v2')
    a('v_add_u32 v14, 10, v2')
    a('v_and_b32 v2, 15, v1')
    a('v_lshl_add_u32 v5, v5, 4, v2')
    a('v_lshl_add_u32 v14, v14, 4, v2')
    a('v_lshlrev_b32 v5, 7, v5')
    a('v_lshlrev_b32 v14, 7, v14')
    a(f'v_add_u32 v5, {WS_FLG+br*15*16*128}, v5')
    a(f'v_add_u32 v14, {WS_FLG+br*15*16*128}, v14')
    poll2(a,tag,5,14,(1<<64)-1)

def phase1(a,p,D=3,SY=1,LP=''):
    R=4; XOFF=16384
    sX,sW,sO=4,8,12
    sBR,sMT,sNT=26,27,28
    sKS=31; sXo=32; sW0=34; sIT=36; sSlot=37; sLW=38; sLX=39; sT=40
    st0,st1,st2,st3=41,42,43,44
    sSec=45; sBase=46; sHS=47; sTS=48; sNx=30; sM=29; sN=33; sIdx=35
    vLane=1; vt0=6; vt1=7; vt2=8; vt3=9; vt4=10; vTok=11; vG=12; vRho=13
    vLW=8; vLX=10; vXh=2; vXc1=3
    vB0=14; vBc=19; vBn=24; vAd=29
    vWf=36; vXf=vWf+32; vAcc=vXf+4*(D+1); vEnd=vAcc+128
    assert vEnd<=256 and 8%(D+1)==0
    def wf(step,c): return vWf+(step&1)*16+c*4
    def xf(i): return vXf+(i%(D+1))*4
    def acc(t,c,mt): return vAcc+t*64+(c*4+mt)*4
    def slotbase(dst,idx):
        a(f's_lshl_b32 s{dst}, s{idx}, 15')
        a(f's_lshr_b32 s{st3}, s{idx}, 1')
        a(f's_lshl_b32 s{st3}, s{st3}, 14')
        a(f's_add_u32 s{dst}, s{dst}, s{st3}')
        a(f's_add_u32 s{dst}, s{dst}, 16384')
    a(f'v_and_b32 v{vLane}, 63, v0')
    a(f's_and_b32 s{st0}, s{sWG}, 7')
    a(f's_lshr_b32 s{st1}, s{sWG}, 3')
    a(f's_and_b32 s{st2}, s{st0}, 1')
    a(f's_lshl_b32 s{st2}, s{st2}, 3')
    a(f's_and_b32 s{st3}, s{st1}, 7')
    a(f's_add_u32 s{sMT}, s{st2}, s{st3}')
    a(f's_lshr_b32 s{st2}, s{st0}, 1')
    a(f's_lshl_b32 s{st2}, s{st2}, 2')
    a(f's_lshr_b32 s{st1}, s{st1}, 3')
    a(f's_add_u32 s{sNT}, s{st2}, s{st1}')
    a(f's_cmp_ge_u32 s{sNT}, 15')
    a(f's_cbranch_scc1 L_p1_skip')
    a(f's_cmp_ge_u32 s{sWV}, 4')
    a(f's_cbranch_scc1 L_p1_loader')
    a(f's_and_b32 s{sM}, s{sWV}, 1')
    a(f's_lshr_b32 s{sN}, s{sWV}, 1')
    a(f'v_and_b32 v{vTok}, 15, v{vLane}')
    a(f'v_lshrrev_b32 v{vG}, 4, v{vLane}')
    a(f'v_and_b32 v{vt0}, 3, v{vLane}')
    a(f'v_bfe_u32 v{vt1}, v{vLane}, 2, 2')
    a(f'v_and_b32 v{vt2}, 1, v{vG}')
    a(f'v_lshl_or_b32 v{vt2}, v{vt2}, 2, v{vt1}')
    a(f'v_lshl_add_u32 v{vt3}, v{vG}, 3, v{vt1}')
    a(f'v_lshlrev_b32 v{vt3}, 8, v{vt3}')
    a(f'v_lshl_add_u32 v{vt3}, v{vt0}, 3, v{vt3}')
    a(f's_lshl_b32 s{st0}, s{sN}, 2')
    a(f'v_xor_b32 v{vt2}, s{st0}, v{vt2}')
    for c in range(4):
        a(f'v_xor_b32 v{vt4}, {c}, v{vt2}')
        a(f'v_lshl_add_u32 v{vB0+c}, v{vt4}, 5, v{vt3}')
    a(f'v_lshrrev_b32 v{vt0}, 1, v{vTok}')
    a(f'v_xor_b32 v{vt0}, v{vt0}, v{vG}')
    a(f'v_lshlrev_b32 v{vt0}, 4, v{vt0}')
    a(f'v_lshl_add_u32 v{vt0}, v{vTok}, 7, v{vt0}')
    a(f's_lshl_b32 s{st0}, s{sM}, 13')
    a(f's_add_u32 s{st0}, s{st0}, {XOFF}')
    a(f'v_add_u32 v{vB0+4}, s{st0}, v{vt0}')
    a(f'v_xor_b32 v{vXh}, 64, v{vt0}')
    a(f'v_sub_u32 v{vXh}, v{vXh}, v{vt0}')
    for i in range(5): a(f'v_add_u32 v{vBc+i}, 16384, v{vB0+i}')
    for i in range(128): a(f'v_mov_b32 v{vAcc+i}, 0')
    a(f's_mul_i32 s{sSec}, s{sNT}, 52')
    a(f's_lshr_b32 s{sSec}, s{sSec}, 8')
    a(f's_mul_i32 s{st0}, s{sSec}, 5')
    a(f's_sub_u32 s{st0}, s{sNT}, s{st0}')
    a(f's_lshl_b32 s{st0}, s{st0}, 7')
    a(f's_lshl_b32 s{st1}, s{sN}, 6')
    a(f's_add_u32 s{st0}, s{st0}, s{st1}')
    a(f's_cmp_eq_u32 s{sSec}, 0')
    a(f's_cselect_b32 s{st1}, 0, 1')
    a(f's_cselect_b32 s{st2}, 0, {WS_KV}')
    a(f's_lshl_b32 s{sTS}, 1280, s{st1}')
    a(f's_lshl_b32 s{sHS}, s{sTS}, 6')
    a(f's_lshl_b32 s{sT}, s{sMT}, 2')
    a(f's_lshl_b32 s{st1}, s{sM}, 1')
    a(f's_add_u32 s{sT}, s{sT}, s{st1}')
    a(f's_mul_i32 s{st1}, s{sT}, s{sTS}')
    a(f's_add_u32 s{sBase}, s{st1}, s{st2}')
    a(f's_cmp_eq_u32 s{sSec}, 2')
    a(f's_cbranch_scc1 L_p1_adV')
    a(f'v_lshrrev_b32 v{vt0}, 3, v{vTok}')
    a(f'v_lshlrev_b32 v{vRho}, 7, v{vt0}')
    a(f'v_bfe_u32 v{vt0}, v{vTok}, 1, 1')
    a(f'v_lshl_or_b32 v{vRho}, v{vt0}, 6, v{vRho}')
    a(f'v_bfe_u32 v{vt0}, v{vTok}, 2, 1')
    a(f'v_lshl_or_b32 v{vRho}, v{vt0}, 5, v{vRho}')
    a(f'v_and_b32 v{vt0}, 1, v{vTok}')
    a(f'v_lshl_or_b32 v{vRho}, v{vt0}, 4, v{vRho}')
    a(f's_lshr_b32 s{st0}, s{st0}, 2')
    for c in range(4):
        a(f'v_add_u32 v{vt0}, s{st0}, v{vG}')
        if c: a(f'v_add_u32 v{vt0}, {4*c}, v{vt0}')
        a(f'v_mul_u32_u24 v{vt1}, 52429, v{vt0}')
        a(f'v_lshrrev_b32 v{vt1}, 18, v{vt1}')
        a(f'v_mul_u32_u24 v{vt2}, 5, v{vt1}')
        a(f'v_sub_u32 v{vt2}, v{vt0}, v{vt2}')
        a(f'v_mul_u32_u24 v{vt1}, s{sHS}, v{vt1}')
        a(f'v_and_b32 v{vt3}, 1, v{vt2}')
        a(f'v_lshlrev_b32 v{vt3}, 9, v{vt3}')
        a(f'v_lshrrev_b32 v{vt4}, 1, v{vt2}')
        a(f'v_cmp_eq_u32 s[56:57], 4, v{vt2}')
        a(f'v_lshl_add_u32 v{vt3}, v{vt4}, 8, v{vt3}')
        a(f'v_add_u32 v{vt4}, 512, v{vt3}')
        a(f'v_add_u32 v{vt1}, v{vt1}, v{vRho}')
        a(f'v_cndmask_b32 v{vt3}, v{vt3}, v{vt4}, s[56:57]')
        a(f'v_add_u32 v{vAd+c}, v{vt1}, v{vt3}')
    a('s_branch L_p1_adD')
    a.lab('L_p1_adV')
    for c in range(4):
        a(f'v_add_u32 v{vt0}, s{st0}, v{vTok}')
        if c: a(f'v_add_u32 v{vt0}, {16*c}, v{vt0}')
        a(f'v_mul_u32_u24 v{vt1}, 52429, v{vt0}')
        a(f'v_lshrrev_b32 v{vt1}, 20, v{vt1}')
        a(f'v_mul_u32_u24 v{vt2}, 20, v{vt1}')
        a(f'v_sub_u32 v{vt2}, v{vt0}, v{vt2}')
        a(f'v_mul_u32_u24 v{vt1}, {64*2560}, v{vt1}')
        a(f'v_lshl_add_u32 v{vt1}, v{vt2}, 6, v{vt1}')
        a(f'v_bfe_u32 v{vt2}, v{vt2}, 2, 2')
        a(f'v_xor_b32 v{vt2}, v{vt2}, v{vG}')
        a(f'v_lshl_add_u32 v{vt1}, v{vt2}, 4, v{vt1}')
        a(f'v_add_u32 v{vAd+c}, 1280, v{vt1}')
    a.lab('L_p1_adD')
    a('s_waitcnt lgkmcnt(0)')
    srd(a,sO,sWS,sWS+1,WS_O)
    def wread(nxt,h,step,c,hh):
        b=(vBn if nxt else vBc)+c
        return f'ds_read_b64_tr_b16 {vr(wf(step,c)+2*hh,2)}, v{b} offset:{h*8192+1024*hh}'
    def xread(nxt,h,mt,buf):
        b=((vBn if nxt else vBc)+4) if h==0 else vXc1
        return f'ds_read_b128 {vr(xf(buf),4)}, v{b} offset:{mt*2048}'
    def epilogue(v,t,br):
        if v==0:
            a(f's_cmp_lg_u32 s{sSec}, 0')
            a(f's_cbranch_scc1 L_p1_ns{t}')
            a(f's_mov_b32 s{st1}, {f32bits(CSCALE):#x}')
            for i in range(64): a(f'v_mul_f32 v{vAcc+64*t+i}, s{st1}, v{vAcc+64*t+i}')
            a.lab(f'L_p1_ns{t}')
        a(f's_lshl_b32 s{st0}, s{sTS}, 11')
        a(f's_mul_i32 s{st0}, s{st0}, {br}')
        a(f's_add_u32 s{st0}, s{st0}, s{sBase}')
        for tp in range(2):
            if tp: a(f's_add_u32 s{st0}, s{st0}, s{sTS}')
            for c in range(4):
                b=acc(t,c,2*tp)
                if v==0:
                    a(f'v_cvt_pk_bf16_f32 v{b}, v{b}, v{b+1}')
                    a(f'v_cvt_pk_bf16_f32 v{b+1}, v{b+2}, v{b+3}')
                    a(f'v_cvt_pk_bf16_f32 v{b+2}, v{b+4}, v{b+5}')
                    a(f'v_cvt_pk_bf16_f32 v{b+3}, v{b+6}, v{b+7}')
                else:
                    a(f'v_cvt_pk_bf16_f32 v{b}, v{b}, v{b+4}')
                    a(f'v_cvt_pk_bf16_f32 v{b+1}, v{b+1}, v{b+5}')
                    a(f'v_cvt_pk_bf16_f32 v{b+2}, v{b+2}, v{b+6}')
                    a(f'v_cvt_pk_bf16_f32 v{b+3}, v{b+3}, v{b+7}')
                a(f'buffer_store_dwordx4 {vr(b,4)}, v{vAd+c}, s[{sO}:{sO+3}], s{st0} offen {SC}')
    a(f's_cmp_eq_u32 s{sSec}, 2')
    a(f's_cbranch_scc1 L_p1_v1')
    for v in range(2):
        a.lab(f'L_p1_v{v}')
        p.stamp(1)
        a('s_barrier')
        p.stamp(2)
        def body(emit,issued,t):
            waits=[]
            for st in range(2):
                for mt in range(4):
                    gi=st*4+mt
                    need=[('x',gi)]
                    if mt==0: need.append(('w',st))
                    last=max(len(issued)-1-issued[::-1].index(tg) for tg in need)
                    y=len(issued)-1-last
                    waits.append(y)
                    if emit:
                        y=min(y,wmin[len(waits)-1])
                        a(f's_waitcnt lgkmcnt({min(y,15)})')
                    fill=[]
                    g2=gi+D; nx=g2>=8; h2=(g2%8)//4; m2=g2%4
                    fill.append((xread(nx,h2,m2,g2),('x',g2%8)))
                    wm={0:(0,1),1:(2,3)} if st==1 else {0:(0,1),1:(2,3)}
                    if mt in wm:
                        for c in wm[mt]:
                            fill.append((wread(st==1,(st+1)&1,st+1,c,0),('w',(st+1)%2)))
                            fill.append((wread(st==1,(st+1)&1,st+1,c,1),('w',(st+1)%2)))
                    if st==0 and mt==0:
                        fill.append((f'v_add_u32 v{vXc1}, v{vBc+4}, v{vXh}',None))
                    if st==0 and mt==2:
                        fill.append((f's_add_u32 s{sIdx}, s{sIdx}, 1',None))
                        fill.append((f's_and_b32 s{sIdx}, s{sIdx}, 3',None))
                        fill.append((f's_lshl_b32 s{sNx}, s{sIdx}, 15',None))
                        fill.append((f's_lshr_b32 s{st3}, s{sIdx}, 1',None))
                        fill.append((f's_lshl_b32 s{st3}, s{st3}, 14',None))
                        fill.append((f's_add_u32 s{sNx}, s{sNx}, s{st3}',None))
                        fill.append((f's_add_u32 s{sNx}, s{sNx}, 16384',None))
                    if st==0 and mt==3:
                        for i in range(5): fill.append((f'v_add_u32 v{vBn+i}, s{sNx}, v{vB0+i}',None))
                    if st==1 and mt==3:
                        for i in range(5): fill.append((f'v_mov_b32 v{vBc+i}, v{vBn+i}',None))
                    for c in range(4):
                        x=xf(gi); w=wf(st,c); ac=acc(t,c,mt)
                        if emit:
                            if v==0: a(f'v_mfma_f32_16x16x32_bf16 {vr(ac,4)}, {vr(w,4)}, {vr(x,4)}, {vr(ac,4)}')
                            else:    a(f'v_mfma_f32_16x16x32_bf16 {vr(ac,4)}, {vr(x,4)}, {vr(w,4)}, {vr(ac,4)}')
                        k=1 if c<3 else len(fill)
                        if len(fill)>4 and c<3: k=2
                        while k>0 and fill:
                            tx,tag=fill.pop(0); k-=1
                            if emit: a(tx)
                            if tag: issued.append(tag)
                    if st==0 and mt==SY and emit:
                        if t==1:
                            a(f's_cmp_eq_u32 s{sIT}, 8'); a(f's_cbranch_scc0 L_p1_nw{v}'); a('s_waitcnt vmcnt(0)'); a.lab(f'L_p1_nw{v}')
                        a('s_barrier')
            return waits
        pro=[('w',0)]*8+[('x',i) for i in range(D)]
        iss=list(pro); w1=body(False,iss,0); w2=body(False,iss,0)
        wmin=[min(x,y) for x,y in zip(w1,w2)]
        a(f's_mov_b32 s{sIdx}, 0')
        for c in range(4):
            a(wread(False,0,0,c,0)); a(wread(False,0,0,c,1))
        for i in range(D): a(xread(False,0,i,i))
        for t in range(2):
            a(f's_mov_b32 s{sIT}, 10')
            a.lab(f'L_p1_loop{v}_{t}')
            body(True,list(pro),t)
            a(f's_sub_u32 s{sIT}, s{sIT}, 1')
            a(f's_cmp_lg_u32 s{sIT}, 0')
            a(f's_cbranch_scc1 L_p1_loop{v}_{t}')
            a('s_nop 7')
            if t==0:
                epilogue(v,0,1) if v==0 else epilogue(v,0,1)
            else:
                p.stamp(3)
                a('s_waitcnt lgkmcnt(0)')
                q_issue(a)
                epilogue(v,1,0)
        a('s_mov_b32 s49, 8')
        a('s_branch L_p1_done')
    a.lab('L_p1_loader')
    sLd=29
    a(f's_sub_u32 s{sLd}, s{sWV}, 4')
    a(f's_mul_i32 s{st3}, s{st3}, 5')
    a(f's_lshr_b32 s{st3}, s{st3}, 2')
    a(f's_mul_i32 s{st1}, s{st1}, 5')
    a(f's_lshr_b32 s{st1}, s{st1}, 1')
    a(f's_add_u32 s{sKS}, s{st3}, s{st1}')
    a(f's_cmp_ge_u32 s{sKS}, 10')
    a(f's_cselect_b32 s{st0}, 10, 0')
    a(f's_sub_u32 s{sKS}, s{sKS}, s{st0}')
    a(f's_lshl_b32 s{sLW}, s{sLd}, 12')
    a(f's_lshl_b32 s{sLX}, s{sLd}, 12')
    a(f's_add_u32 s{sLX}, s{sLX}, {XOFF}')
    a(f'v_lshrrev_b32 v{vt0}, 4, v{vLane}')
    a(f'v_bfe_u32 v{vt1}, v{vLane}, 1, 3')
    a(f'v_and_b32 v2, 1, v{vLane}')
    a(f's_lshl_b32 s{st2}, s{sLd}, 4')
    a(f's_lshl_b32 s{st1}, s{sNT}, 8')
    for jj in range(2):
        a(f'v_add_u32 v3, {4*jj}, v{vt0}')
        a(f'v_xor_b32 v3, v3, v{vt1}')
        a(f'v_lshl_add_u32 v4, v3, 1, v2')
        a(f'v_lshlrev_b32 v4, 4, v4')
        a(f'v_add_u32 v{vLW+jj}, s{st2}, v{vt0}')
        if jj: a(f'v_add_u32 v{vLW+jj}, 8, v{vLW+jj}')
        a(f'v_mul_u32_u24 v{vLW+jj}, 3840, v{vLW+jj}')
        a(f'v_add3_u32 v{vLW+jj}, v{vLW+jj}, v4, s{st1}')
    a(f'v_lshrrev_b32 v{vt0}, 3, v{vLane}')
    a(f'v_and_b32 v{vt1}, 7, v{vLane}')
    a(f's_lshl_b32 s{st0}, s{sMT}, 7')
    a(f's_lshl_b32 s{st1}, s{sLd}, 5')
    a(f's_add_u32 s{st0}, s{st0}, s{st1}')
    for uu in range(2):
        a(f'v_lshrrev_b32 v2, 1, v{vt0}')
        if uu: a(f'v_add_u32 v2, 4, v2')
        a(f'v_xor_b32 v2, v2, v{vt1}')
        a(f'v_add_u32 v3, s{st0}, v{vt0}')
        if uu: a(f'v_add_u32 v3, 8, v3')
        a(f'v_mul_u32_u24 v3, 1280, v3')
        a(f'v_lshl_add_u32 v{vLX+uu}, v2, 4, v3')
    a('s_waitcnt lgkmcnt(0)')
    srd(a,sX,20,21,2048*1280)
    srd(a,sW,22,23,640*3840)
    NL=8
    def wstep():
        a(f's_mul_i32 s{sW0}, s{sKS}, {64*3840}')
        a(f's_lshl_b32 s{sXo}, s{sKS}, 7')
        slotbase(sSlot,sIdx)
        a(f's_add_u32 s{st0}, s{sSlot}, s{sLW}')
        a(f's_add_u32 s{st1}, s{sSlot}, s{sLX}')
        for j in range(4):
            a(f's_add_u32 m0, s{st0}, {j*1024}')
            if j&1: a(f's_add_u32 s{st2}, s{sW0}, {4*3840}')
            a(f'buffer_load_dwordx4 v{vLW+(j>>1)}, s[{sW}:{sW+3}], s{st2 if j&1 else sW0} offen {LP} lds')
            a(f's_add_u32 m0, s{st1}, {j*1024}')
            if j==2: a(f's_add_u32 s{sXo}, s{sXo}, 20480')
            a(f'buffer_load_dwordx4 v{vLX+(j&1)}, s[{sX}:{sX+3}], s{sXo} offen {LP} lds')
        a(f's_add_u32 s{sKS}, s{sKS}, 1')
        a(f's_cmp_eq_u32 s{sKS}, 10')
        a(f's_cselect_b32 s{sKS}, 0, s{sKS}')
        a(f's_add_u32 s{sIdx}, s{sIdx}, 1')
        a(f's_and_b32 s{sIdx}, s{sIdx}, 3')
    a(f's_mov_b32 s{sIdx}, 0')
    wstep(); wstep(); wstep()
    a(f's_waitcnt vmcnt({2*NL})')
    a('s_barrier')
    a(f's_mov_b32 s{sIT}, 0')
    a.lab('L_p1_ld_loop')
    a(f's_cmp_ge_u32 s{sIT}, 18'); a('s_cbranch_scc1 L_p1_ld_w0')
    a(f's_waitcnt vmcnt({NL})')
    a('s_branch L_p1_ld_w1')
    a.lab('L_p1_ld_w0')
    a(f's_cmp_lg_u32 s{sIT}, 18'); a('s_cbranch_scc1 L_p1_ld_w1')
    a('s_waitcnt vmcnt(0)')
    a(f's_cmp_lg_u32 s{sWV}, 4'); a('s_cbranch_scc1 L_p1_ld_w1')
    poll_f1(a,'b',1)
    a.lab('L_p1_ld_w1')
    a('s_barrier')
    a(f's_cmp_lg_u32 s{sWV}, 4'); a('s_cbranch_scc1 L_p1_ld_h1')
    a(f's_cmp_lg_u32 s{sIT}, 8'); a('s_cbranch_scc1 L_p1_ld_h0')
    gettok(a,'p1',None)
    a.lab('L_p1_ld_h0')
    a(f's_cmp_lg_u32 s{sIT}, 12'); a('s_cbranch_scc1 L_p1_ld_h1')
    a(f's_add_u32 s50, s{sNT}, 15')
    a('s_lshl_b32 s50, s50, 4')
    a(f's_add_u32 s50, s50, s{sMT}')
    a('s_lshl_b32 s50, s50, 7')
    setflag(a,50)
    a.lab('L_p1_ld_h1')
    a(f's_cmp_lg_u32 s{sIT}, 7'); a('s_cbranch_scc1 L_p1_ld_h2')
    srd(a,sX,16,17,2048*1280)
    srd(a,sW,18,19,640*3840)
    a.lab('L_p1_ld_h2')
    a(f's_cmp_ge_u32 s{sIT}, 17'); a('s_cbranch_scc1 L_p1_ld_skip')
    wstep()
    a.lab('L_p1_ld_skip')
    a(f's_cmp_lg_u32 s{sIT}, 18'); a('s_cbranch_scc1 L_p1_ld_h3')
    a(f's_lshl_b32 s48, s{sLd}, 11')
    q_issue(a)
    kv_first(a,[(48,0),(48,1024)],(0,HALF,8192,HALF+8192,16384,24576,32768))
    a.lab('L_p1_ld_h3')
    a(f's_cmp_lg_u32 s{sIT}, 19'); a('s_cbranch_scc1 L_p1_ld_h4')
    kv_first(a,[(48,0),(48,1024)],(HALF+16384,HALF+24576,HALF+32768))
    a.lab('L_p1_ld_h4')
    a(f's_add_u32 s{sIT}, s{sIT}, 1')
    a(f's_cmp_lt_u32 s{sIT}, 20')
    a('s_cbranch_scc1 L_p1_ld_loop')
    a(f's_lshl_b32 s49, s{sNT}, 4')
    a(f's_add_u32 s49, s49, s{sMT}')
    a('s_lshl_b32 s49, s49, 7')
    a('s_or_b32 s49, s49, 0x80000000')
    a('s_branch L_p1_done')
    a.lab('L_p1_skip')
    a('s_waitcnt lgkmcnt(0)')
    a(f's_cmp_lg_u32 s{sWV}, 4'); a('s_cbranch_scc1 L_p1_sk1')
    gettok(a,'p1s',None)
    poll_f1(a,'bs',1)
    a.lab('L_p1_sk1')
    a('s_barrier')
    a(f's_lshl_b32 s48, s{sWV}, 10')
    q_issue(a)
    kv_first(a,[(48,0)],(0,HALF,8192,HALF+8192,16384,24576,32768,HALF+16384,HALF+24576,HALF+32768))
    a('s_mov_b32 s49, 0')
    a.lab('L_p1_done')
    return vEnd

def gettok(a,tag,wave=4):
    if wave is not None:
        a(f's_cmp_lg_u32 s{sWV}, {wave}')
        a(f's_cbranch_scc1 L_tokd_{tag}')
    a('s_mov_b32 s58, 0x40000')
    a('v_mov_b32 v2, 0')
    a.lab(f'L_tok_{tag}')
    a(f'global_load_dword v3, v2, s[{sDBG}:{sDBG+1}] sc1')
    a('s_waitcnt vmcnt(0)')
    a(f'v_readfirstlane_b32 s{sTOK}, v3')
    a('s_nop 3')
    a(f's_cmp_lg_u32 s{sTOK}, 0')
    a(f's_cbranch_scc1 L_tokd_{tag}')
    a('s_sleep 4')
    a('s_sub_u32 s58, s58, 1')
    a('s_cmp_lg_u32 s58, 0')
    a(f's_cbranch_scc1 L_tok_{tag}')
    a.lab(f'L_tokd_{tag}')
def setflag(a,soff):
    a(f's_add_u32 s{soff}, s{soff}, {WS_FLG}')
    a('s_mov_b64 exec, 1')
    a(f'v_mov_b32 v2, s{soff}')
    a(f'v_mov_b32 v3, s{sTOK}')
    a(f'global_store_dword v2, v3, s[{sWS}:{sWS+1}] sc1')
    a('s_mov_b64 exec, -1')
def poll2(a,tag,va,vb,mask):
    a('s_mov_b32 s58, 0x40000')
    a.lab(f'L_poll_{tag}')
    a(f'global_load_dword v3, v{va}, s[{sWS}:{sWS+1}] sc1')
    a(f'global_load_dword v4, v{vb}, s[{sWS}:{sWS+1}] sc1')
    a('s_waitcnt vmcnt(0)')
    a(f'v_cmp_eq_u32 s[56:57], s{sTOK}, v3')
    a(f'v_cmp_eq_u32 vcc, s{sTOK}, v4')
    a('s_nop 4')
    a('s_and_b64 s[56:57], s[56:57], vcc')
    a(f's_and_b32 s56, s56, {mask&0xffffffff:#x}')
    a(f's_and_b32 s57, s57, {mask>>32:#x}')
    a(f's_cmp_lg_u32 s56, {mask&0xffffffff:#x}')
    a(f's_cbranch_scc1 L_polln_{tag}')
    a(f's_cmp_eq_u32 s57, {mask>>32:#x}')
    a(f's_cbranch_scc1 L_polld_{tag}')
    a.lab(f'L_polln_{tag}')
    a('s_sleep 1')
    a('s_sub_u32 s58, s58, 1')
    a('s_cmp_lg_u32 s58, 0')
    a(f's_cbranch_scc1 L_poll_{tag}')
    a.lab(f'L_polld_{tag}')
def poll(a,tag,vaddr,offs,mask):
    a('s_mov_b32 s58, 0x40000')
    a.lab(f'L_poll_{tag}')
    for i,o in enumerate(offs):
        a(f'global_load_dword v{vaddr+1+i}, v{vaddr}, s[{sWS}:{sWS+1}] offset:{o} sc1')
    a('s_waitcnt vmcnt(0)')
    a(f'v_cmp_eq_u32 s[56:57], s{sTOK}, v{vaddr+1}')
    if len(offs)>1:
        a(f'v_cmp_eq_u32 vcc, s{sTOK}, v{vaddr+2}')
        a('s_nop 4')
        a('s_and_b64 s[56:57], s[56:57], vcc')
    else:
        a('s_nop 4')
    a(f's_and_b32 s56, s56, {mask&0xffffffff:#x}')
    a(f's_and_b32 s57, s57, {mask>>32:#x}')
    a(f's_cmp_lg_u32 s56, {mask&0xffffffff:#x}')
    a(f's_cbranch_scc1 L_polln_{tag}')
    a(f's_cmp_eq_u32 s57, {mask>>32:#x}')
    a(f's_cbranch_scc1 L_polld_{tag}')
    a.lab(f'L_polln_{tag}')
    a('s_sleep 2')
    a('s_sub_u32 s58, s58, 1')
    a('s_cmp_lg_u32 s58, 0')
    a(f's_cbranch_scc1 L_poll_{tag}')
    a.lab(f'L_polld_{tag}')

def phase2(a,p,PRIO=0,BSH=0,NOHOOK=0,SPRIO=0):
    TILE=2560; HALF=81920; WOFF=40960; SCR=81920
    sR,sOo,sWo=4,8,12
    sHD,sJ,sQP,sKH=16,17,18,19
    st0,st1,st2,st3=20,21,22,23
    sVm=24; sLo=26
    sIT=28; sHB=29; sHBw=30; sOl=31; sOh=32; sLl=33; sQA=34; sSw=35; sAg=36; sOB=37; sOA=50; sNeed=39
    sTm=40
    sKV=44
    sOff=31; sInc=32
    sWn=48
    sWl=39
    vLane=1; vt0=2; vt1=3; vt2=4; vt3=5; vK1a=6; vK2a=7; vVa=8; vDma=9; vM=10; vRho=11; vKap=12; vOoff=13; vt4=14; vt5=15
    vQa1=16; vQab=20; vQa2=22; vQb1=24; vK1=28; vK2=32; vQ2o=34; vMb=35
    vV=36; vP=52; vQA2=60; vWo=62; vCc=63; vVb=196; vQ1o=197; vOo2=198
    vSa=64; vSb=80; vOa=96; vOb=112; vCa=128; vCb=144; vMF=160; vML=176; vQA1=192
    vS1=200
    vEnd=232
    a(f's_load_dwordx2 s[50:51], s[0:1], 16')
    a(f's_load_dwordx2 s[52:53], s[0:1], 40')
    a(f's_and_b32 s{st0}, s{sWG}, 7')
    a(f's_lshr_b32 s{st1}, s{sWG}, 3')
    a(f's_lshl_b32 s{sHD}, s{st0}, 2')
    a(f's_lshr_b32 s{st2}, s{st1}, 3')
    a(f's_add_u32 s{sHD}, s{sHD}, s{st2}')
    a(f's_and_b32 s{sJ}, s{st1}, 7')
    a(f's_and_b32 s{sQP}, s{sWV}, 3')
    a(f's_lshr_b32 s{sKH}, s{sWV}, 2')
    a(f'v_lshlrev_b32 v{vDma}, 4, v{vLane}')
    a(f's_mul_i32 s{sHB}, s{sHD}, {64*TILE}')
    a(f's_add_u32 s{sAg}, s{sHB}, {WS_KV-20480}')
    a(f's_add_u32 s{sHB}, s{sHB}, {WS_KV+32*64*TILE}')
    a(f's_lshl_b32 s{st1}, s{sWV}, 10')
    a(f's_add_u32 s{sHBw}, s{sHB}, s{st1}')
    a(f's_mul_i32 s{st0}, s{sJ}, 20480')
    a(f's_add_u32 s{sAg}, s{sAg}, s{st0}')
    a(f's_mov_b32 s{sVm}, 0xfffff')
    a(f's_mov_b32 s{sVm+1}, 0xfffff')
    a(f's_mov_b32 s{sLo}, -1')
    a(f's_mov_b32 s{sLo+1}, 0')
    a(f'v_and_b32 v{vRho}, 31, v{vLane}')
    a(f'v_lshlrev_b32 v{vt1}, 3, v{vRho}')
    a(f'v_add_u32 v{vK2a}, 1024, v{vt1}')
    a(f'v_mov_b32 v{vt2}, 0x70000000')
    a(f'v_cndmask_b32 v{vQ2o}, v{vt2}, v{vK2a}, s[{sLo}:{sLo+1}]')
    a(f's_lshl_b32 s{st0}, s{sJ}, 3')
    a(f's_lshl_b32 s{st1}, s{sHD}, 6')
    a(f's_add_u32 s{st1}, s{st1}, s{st0}')
    a(f's_add_u32 s{st2}, s{st1}, s{sWV}')
    a(f's_mul_i32 s{sQA}, s{st2}, 1280')
    a(f's_lshl_b32 s{st2}, s{sQP}, 1')
    a(f's_add_u32 s{st2}, s{st2}, s{st1}')
    a(f's_mul_i32 s54, s{st2}, 1280')
    a(f's_add_u32 s54, s54, {32*64*1280}')
    a(f's_add_u32 s55, s54, 1280')
    a(f's_lshl_b32 s{st2}, s{sQP}, 1')
    a(f's_add_u32 s{st2}, s{st2}, s{sKH}')
    a(f's_add_u32 s{st2}, s{st2}, s{st0}')
    a(f's_lshl_b32 s{sOB}, s{st2}, 15')
    a(f's_add_u32 s{sOB}, s{sOB}, {2048*1280}')
    a(f's_lshl_b32 s{sOB+1}, s{st2}, 13')
    a(f's_add_u32 s{sOB+1}, s{sOB+1}, {2048*1280+128*16384}')
    srd(a,sR,sWS,sWS+1,WS_O)
    a(f's_add_u32 s56, s{sWS}, {WS_O}')
    a(f's_addc_u32 s57, s{sWS+1}, 0')
    srd(a,sOo,56,57,WS_END-WS_O)
    a(f'v_lshrrev_b32 v{vt0}, 5, v{vLane}')
    a(f'v_lshlrev_b32 v{vK1a}, 3, v{vRho}')
    a(f'v_lshl_add_u32 v{vK1a}, v{vt0}, 8, v{vK1a}')
    a(f'v_mov_b32 v{vQ1o}, v{vK1a}')
    a(f'v_bfe_u32 v{vt1}, v{vRho}, 2, 2')
    a(f'v_xor_b32 v{vt1}, v{vt1}, v{vt0}')
    a(f'v_lshlrev_b32 v{vt1}, 4, v{vt1}')
    a(f'v_lshl_add_u32 v{vVa}, v{vRho}, 6, v{vt1}')
    a(f'v_add_u32 v{vVa}, 1280, v{vVa}')
    a(f'v_xor_b32 v{vVb}, 32, v{vVa}')
    a(f'v_and_b32 v{vt1}, 1, v{vRho}')
    a(f'v_lshlrev_b32 v{vKap}, 4, v{vt1}')
    a(f'v_lshrrev_b32 v{vt1}, 4, v{vRho}')
    a(f'v_lshl_or_b32 v{vKap}, v{vt1}, 3, v{vKap}')
    a(f'v_and_b32 v{vt1}, 4, v{vRho}')
    a(f'v_or_b32 v{vKap}, v{vKap}, v{vt1}')
    a(f'v_bfe_u32 v{vt1}, v{vRho}, 3, 1')
    a(f'v_lshl_or_b32 v{vKap}, v{vt1}, 1, v{vKap}')
    a(f'v_bfe_u32 v{vt1}, v{vRho}, 1, 1')
    a(f'v_or_b32 v{vKap}, v{vKap}, v{vt1}')
    a(f'v_lshlrev_b32 v{vt3}, 2, v{vt0}')
    a(f'v_sub_u32 v{vt3}, v{vKap}, v{vt3}')
    a(f'v_mov_b32 v{vt2}, {NEG_BIG:#x}')
    for r in range(16):
        base=(r&3)+8*(r>>2)
        kb=16*(r&1)+8*((r>>3)&1)+2*((r>>2)&1)+((r>>1)&1)
        a(f'v_cmp_gt_i32 s[{sTm+2*(r&3)}:{sTm+1+2*(r&3)}], {kb}, v{vt3}')
        if r>=2:
            q=r-2
            a(f'v_cndmask_b32 v{vMF+q}, v{vt2}, 0, s[{sTm+2*(q&3)}:{sTm+1+2*(q&3)}]')
            a(f'v_cndmask_b32 v{vML+q}, 0, v{vt2}, s[{sTm+2*(q&3)}:{sTm+1+2*(q&3)}]')
    a('s_nop 1')
    for q in (14,15):
        a(f'v_cndmask_b32 v{vMF+q}, v{vt2}, 0, s[{sTm+2*(q&3)}:{sTm+1+2*(q&3)}]')
        a(f'v_cndmask_b32 v{vML+q}, 0, v{vt2}, s[{sTm+2*(q&3)}:{sTm+1+2*(q&3)}]')
    a(f's_cmp_lg_u32 s{sJ}, 0')
    a('s_cbranch_scc1 L_mf_ok')
    for r in range(16): a(f'v_mov_b32 v{vMF+r}, v{vt2}')
    a.lab('L_mf_ok')
    a(f's_add_u32 s{sKV}, s{sWS}, s{sHB}')
    a(f's_addc_u32 s{sKV+1}, s{sWS+1}, 0')
    a(f's_and_b32 s{sKV+1}, s{sKV+1}, 0xffff')
    a(f's_mov_b32 s{sKV+2}, 163840')
    a(f's_mov_b32 s{sKV+3}, 0x20000')
    a(f's_lshl_b32 s{sOff}, s{sWV}, 10')
    a(f's_add_u32 s{sOff}, s{sOff}, 40960')
    a(f's_mov_b32 s{sInc}, {HALF}')
    a(f's_mov_b32 s{sInc+1}, {(8192-HALF)&0xffffffff}')
    def vinit():
        a(f'v_cmp_eq_u32 s[{sTm}:{sTm+1}], 20, v{vRho}')
        a(f'v_mov_b32 v{vt1}, 0x3f803f80')
        a('s_nop 0')
        a(f'v_cndmask_b32 v{vt1}, 0, v{vt1}, s[{sTm}:{sTm+1}]')
        for i in range(16): a(f'v_mov_b32 v{vV+i}, v{vt1}')
    vinit()
    a(f'v_lshrrev_b32 v{vt1}, 4, v{vKap}')
    a(f'v_and_b32 v{vt2}, 15, v{vKap}')
    a(f'v_lshlrev_b32 v{vOoff}, 14, v{vt1}')
    a(f'v_lshl_add_u32 v{vOoff}, v{vt2}, 4, v{vOoff}')
    a(f'v_lshrrev_b32 v{vt3}, 5, v{vLane}')
    a(f'v_lshl_add_u32 v{vOoff}, v{vt3}, 8, v{vOoff}')
    a(f'v_lshlrev_b32 v{vOo2}, 12, v{vt1}')
    a(f'v_lshl_add_u32 v{vOo2}, v{vt2}, 3, v{vOo2}')
    for r in range(16): a(f'v_mov_b32 v{vOa+r}, 0')
    for r in range(16): a(f'v_mov_b32 v{vOb+r}, 0')
    for i in range(4): a(f'v_mov_b32 v{vP+4+i}, 0')
    a(f's_lshl_b32 s{st0}, s{sWV}, 6')
    a(f'v_add_u32 v{vt0}, s{st0}, v{vLane}')
    a(f'v_mul_u32_u24 v{vt1}, 52429, v{vt0}')
    a(f'v_lshrrev_b32 v{vt1}, 19, v{vt1}')
    a(f'v_mul_u32_u24 v{vt2}, 10, v{vt1}')
    a(f'v_sub_u32 v{vCc}, v{vt0}, v{vt2}')
    a(f'v_mul_u32_u24 v{vt1}, 1280, v{vt1}')
    a(f'v_lshl_add_u32 v{vWo}, v{vCc}, 4, v{vt1}')
    a(f's_lshl_b32 s{sWl}, s{sWV}, 10')
    a(f's_add_u32 s{sWl}, s{sWl}, {WOFF}')
    a(f's_and_b32 s{sWn}, s{sHD}, 7')
    a(f's_mul_i32 s{sWn}, s{sWn}, 160')
    a('s_waitcnt lgkmcnt(0)')
    a(f's_cmp_lt_u32 s{sHD}, 16')
    a('s_cselect_b64 s[50:51], s[50:51], s[52:53]')
    srd(a,sWo,50,51,640*1280)
    p.stamp(5)

    def rd_k1(dst,off):
        assert off%512==0 and off//512+1<256
        a(f'ds_read2st64_b64 {vr(dst,4)}, v{vK1a} offset0:{off//512} offset1:{off//512+1}')
    def rd_k2(dst,off): a(f'ds_read_b64 {vr(dst,2)}, v{vK2a} offset:{off}')
    def rd_v(buf,off):
        a(f's_mov_b64 exec, s[{sVm}:{sVm+1}]')
        a(f'ds_read_b128 {vr(vV+8*buf,4)}, v{vVa} offset:{off}')
        a(f'ds_read_b128 {vr(vV+8*buf+4,4)}, v{vVb} offset:{off}')
        a('s_mov_b64 exec, -1')
    def qk1(S,C,Q1,K=None): a(f'v_mfma_f32_32x32x16_bf16 {vr(S,16)}, {vr(vK1 if K is None else K,4)}, {vr(Q1,4)}, {C}')
    def qk2(S,Q2,K=None): a(f'v_mfma_f32_32x32x8bf16_1k {vr(S,16)}, {vr(vK2 if K is None else K,2)}, {vr(Q2,2)}, {vr(S,16)}')
    def qk2b(S): a(f'v_mfma_f32_32x32x4bf16_1k {vr(S,32)}, {vr(vK2,2)}, {vr(vQab,2)}, {vr(S,32)}')
    def pv(O,buf,t): a(f'v_mfma_f32_32x32x16_bf16 {vr(O,16)}, {vr(vV+8*buf+4*t,4)}, {vr(vP+4*t,4)}, {vr(O,16)}')
    def ex(S,r): a(f'v_exp_f32 v{S+r}, v{S+r}')
    def cv(S,c): a(f'v_cvt_pk_bf16_f32 v{vP+c}, v{S+2*c}, v{S+2*c+1}')
    def rowmax(M,S,first):
        if first:
            a(f'v_max3_f32 v{M}, v{S}, v{S+1}, v{S+2}'); rest=list(range(3,16))
        else: rest=list(range(16))
        while len(rest)>=2:
            a(f'v_max3_f32 v{M}, v{M}, v{S+rest[0]}, v{S+rest[1]}'); rest=rest[2:]
        if rest: a(f'v_max_f32 v{M}, v{M}, v{S+rest[0]}')
    def xhalf_max(M):
        a(f'v_mov_b32 v{vt1}, v{M}')
        a('s_nop 1')
        a(f'v_permlane32_swap_b32 v{M}, v{vt1}')
        a('s_nop 1')
        a(f'v_max_f32 v{M}, v{M}, v{vt1}')
    def get_l():
        a(f'v_mov_b32 v{vt1}, v{vOa+8}')
        a(f'v_mov_b32 v{vt2}, v{vOa+8}')
        a('s_nop 1')
        a(f'v_permlane32_swap_b32 v{vt1}, v{vt2}')
        a('s_nop 1')
    def store_o(soff):
        a(f'v_rcp_f32 v{vt3}, v{vt2}')
        a(f's_lshr_b32 s{st0}, s{sHD}, 1')
        a(f's_lshl_b32 s{st0}, s{st0}, 10')
        a(f's_and_b32 s{st1}, s{sHD}, 1')
        a(f's_lshl_b32 s{st1}, s{st1}, 9')
        a(f's_add_u32 s{st0}, s{st0}, s{st1}')
        a(f's_add_u32 s{st0}, s{st0}, s{soff}')
        for i in range(12): a(f'v_mul_f32 v{vOa+i}, v{vOa+i}, v{vt3}')
        for i in range(6): a(f'v_cvt_pk_bf16_f32 v{vSa+i}, v{vOa+2*i}, v{vOa+2*i+1}')
        a(f'buffer_store_dwordx4 {vr(vSa,4)}, v{vOoff}, s[{sOo}:{sOo+3}], s{st0} offen {SC}')
        a(f's_lshl_b32 s{st0}, s{sHD}, 7')
        a(f's_add_u32 s{st0}, s{st0}, s{soff+1}')
        a(f's_mov_b64 exec, s[{sLo}:{sLo+1}]')
        a(f'buffer_store_dwordx2 {vr(vSa+4,2)}, v{vOo2}, s[{sOo}:{sOo+3}], s{st0} offen {SC}')
        a('s_mov_b64 exec, -1')
    def addr_add(s):
        for r in (vK1a,vK2a,vVa,vVb): a(f'v_add_u32 v{r}, s{s}, v{r}')
    def addr_addi(imm):
        for r in (vK1a,vK2a,vVa,vVb): a(f'v_add_u32 v{r}, {imm}, v{r}')
    def dma_row(k):
        a(f's_mov_b32 m0, s{sOff}')
        a(f'buffer_load_dwordx4 v{vDma}, s[{sKV}:{sKV+3}], s{sOff} offen {SL} lds')
        a(f's_add_u32 s{sOff}, s{sOff}, s{sInc+(k&1)}')
    def dma_pair():
        dma_row(0); dma_row(1)
    def prio_switch(phase,L):
        a(f's_cmp_lt_u32 s{sWV}, 4')
        a(f's_cbranch_scc{1-phase} {L}_hi')
        a('s_setprio 0')
        a(f's_branch {L}_d')
        a.lab(f'{L}_hi')
        a('s_setprio 1')
        a.lab(f'{L}_d')
    def expgroups(cur,A_,B_,C_,D_):
        A_()
        for r in range(0,4): ex(cur,r)
        B_()
        ex(cur,4); ex(cur,5); cv(cur,0); ex(cur,6); cv(cur,1); ex(cur,7)
        C_()
        ex(cur,8); cv(cur,2); ex(cur,9); cv(cur,3); ex(cur,10); ex(cur,11)
        D_()
        ex(cur,12); ex(cur,13); cv(cur,4); ex(cur,14); cv(cur,5); ex(cur,15); cv(cur,6); cv(cur,7)

    a('s_cmp_eq_u32 s49, 8')
    a('s_cbranch_scc1 L_p2_w8')
    a('s_cmp_eq_u32 s49, 0')
    a('s_cbranch_scc1 L_p2_w6')
    a('s_waitcnt vmcnt(12)')
    a('s_branch L_p2_wd')
    a.lab('L_p2_w6')
    a('s_waitcnt vmcnt(6)')
    a('s_branch L_p2_wd')
    a.lab('L_p2_w8')
    a('s_waitcnt vmcnt(8)')
    a.lab('L_p2_wd')
    a('s_barrier')
    p.stamp(7)
    rd_k1(vK1,0); rd_k2(vK2,0)
    a('s_waitcnt lgkmcnt(0)')
    qk1(vSa,'0',vQa1); qk1(vSb,'0',vQb1)
    a(f's_mul_i32 s{st0}, s{sKH}, {HALF}')
    addr_add(st0)
    a('s_nop 5')
    qk2b(vSa)
    rd_k1(vK1,0); rd_k2(vK2,0); rd_v(0,0)
    a('s_nop 15')
    a('s_nop 3')
    rowmax(vM,vSa,True)
    rowmax(vMb,vSb,True)
    xhalf_max(vM); xhalf_max(vMb)
    for r in range(16): a(f'v_sub_f32 v{vCa+r}, 0, v{vM}')
    for r in range(16): a(f'v_sub_f32 v{vCb+r}, 0, v{vMb}')
    a('s_waitcnt lgkmcnt(0)')
    qk1(vSa,vr(vCa,16),vQa1); qk1(vSb,vr(vCb,16),vQb1)
    rd_k1(vK1,TILE)
    a('s_nop 9')
    qk2b(vSa)
    rd_k2(vK2,TILE)
    a(f's_mov_b32 s{sIT}, 0')
    if SPRIO:
        a(f's_cmp_lt_u32 s{sWV}, 4'); a('s_cbranch_scc1 L_sp'); a('s_setprio 1'); a.lab('L_sp')
    a.raw('.p2align 6')
    for _ in range(BSH): a('s_nop 0')
    a.lab('L_b_loop')
    ool=[]
    def cond(it,L,fn):
        a(f's_cmp_eq_u32 s{sIT}, {it}'); a(f's_cbranch_scc1 {L}'); a.lab(L+'_r')
        ool.append((L,fn))
    SP=[vSa,vS1]
    for pp in range(8):
        off=pp*TILE
        if pp==2:
            a(f's_cmp_lt_u32 s{sIT}, 2'); a('s_cbranch_scc1 L_h2'); a.lab('L_h2_r')
            def h2():
                a(f's_cmp_eq_u32 s{sIT}, 1'); a('s_cbranch_scc1 L_h2b')
                a('s_waitcnt vmcnt(2)'); a('s_barrier')
                a(f's_cmp_lg_u32 s{sWV}, 4'); a('s_cbranch_scc1 L_h2_r')
                a('s_cmp_lt_i32 s49, 0'); a('s_cbranch_scc0 L_h2_r')
                a('s_and_b32 s50, s49, 0x7fffffff')
                setflag(a,50)
                a('s_branch L_h2_r')
                a.lab('L_h2b')
                a(f's_mov_b32 s{sOff}, 200000'); a(f's_mov_b32 s{sInc}, 0'); a(f's_mov_b32 s{sInc+1}, 0')
            ool.append(('L_h2',h2))
        if pp==6:
            def h6():
                a(f's_mov_b32 s{sOff}, 200000'); a(f's_mov_b32 s{sInc}, 0'); a(f's_mov_b32 s{sInc+1}, 0')
            cond(3,'L_h6',h6)
        dma_row(pp)
        cur=SP[pp&1]; nxt=SP[(pp+1)&1]
        a('s_waitcnt lgkmcnt(0)')
        expgroups(cur,
            lambda: qk1(nxt,vr(vCa,16),vQa1),
            lambda: (pv(vOb,(pp+1)&1,1), rd_v((pp+1)&1,off+TILE)),
            lambda: (qk1(nxt+16,vr(vCb,16),vQb1), rd_k1(vK1,off+2*TILE)),
            lambda: pv(vOa,pp&1,0))
        expgroups(cur+16,
            lambda: (qk2b(nxt), rd_k2(vK2,off+2*TILE)),
            lambda: None,
            lambda: pv(vOa,pp&1,1),
            lambda: pv(vOb,pp&1,0))
    a(f's_cmp_eq_u32 s{sIT}, 3'); a('s_cbranch_scc1 L_b_exit')
    a(f's_cmp_eq_u32 s{sIT}, 1'); a('s_cbranch_scc1 L_bb1')
    a(f's_cmp_eq_u32 s{sIT}, 2'); a('s_cbranch_scc1 L_bb2')
    a('s_waitcnt vmcnt(2)'); a('s_barrier')
    a.lab('L_bb_r')
    def bb1():
        a('s_waitcnt vmcnt(0)'); a('s_barrier')
        a(f's_mov_b32 s{sKV+2}, 0')
        gettok(a,'a',0)
        a('s_branch L_bb_r')
    def bb2():
        a(f's_cmp_lg_u32 s{sWV}, 0'); a('s_cbranch_scc1 L_bb2a')
        poll_f1(a,'a',0)
        a.lab('L_bb2a')
        a('s_waitcnt vmcnt(0)'); a('s_barrier')
        a(f's_add_u32 s{sKV}, s{sWS}, s{sAg}')
        a(f's_addc_u32 s{sKV+1}, s{sWS+1}, 0')
        a(f's_and_b32 s{sKV+1}, s{sKV+1}, 0xffff')
        a(f's_mov_b32 s{sKV+2}, 40960')
        a(f's_lshl_b32 s{sOff}, s{sWV}, 10')
        a(f's_sub_u32 s{sOff}, s{sOff}, 8192')
        a(f's_mov_b32 s{sInc}, 8192')
        a(f's_mov_b32 s{sInc+1}, 8192')
        a(f'buffer_load_dwordx2 {vr(vQA1,2)}, v{vQ1o}, s[{sR}:{sR+3}], s{sQA} offen {SL}')
        a(f'buffer_load_dwordx2 {vr(vQA1+2,2)}, v{vQ1o}, s[{sR}:{sR+3}], s{sQA} offen offset:512 {SL}')
        a(f'buffer_load_dwordx2 {vr(vQA2,2)}, v{vQ2o}, s[{sR}:{sR+3}], s{sQA} offen {SL}')
        a('s_branch L_bb_r')
    ool.append(('L_bb1',bb1)); ool.append(('L_bb2',bb2))
    addr_addi(8*TILE)
    if PROF and BPROF==1:
        for k in range(4):
            a(f's_cmp_lg_u32 s{sIT}, {k}'); a(f's_cbranch_scc1 L_st{k}'); p.stamp(1+k); a.lab(f'L_st{k}')
    a(f's_add_u32 s{sIT}, s{sIT}, 1')
    a('s_branch L_b_loop')
    a.lab('L_b_exit')
    addr_addi(8*TILE)
    a('s_nop 1')
    pv(vOb,1,1)
    a('s_setprio 0')
    a('s_nop 15')
    p.stamp(8)
    a(f's_lshl_b32 s{st0}, s{sQP}, 1')
    a(f's_cmp_eq_u32 s{sKH}, 0')
    a('s_cbranch_scc0 L_mg_hi')
    a(f's_add_u32 s{st1}, s{st0}, 1')
    a(f's_mul_i32 s{st1}, s{st1}, 3072')
    a(f's_add_u32 s{st1}, s{st1}, {SCR}')
    a(f'v_add_u32 v{vt4}, s{st1}, v{vDma}')
    for i in range(3): a(f'ds_write_b128 v{vt4}, {vr(vOb+4*i,4)} offset:{1024*i}')
    a(f's_mul_i32 s{st1}, s{st0}, 3072')
    a('s_branch L_mg_d')
    a.lab('L_mg_hi')
    a(f's_mul_i32 s{st1}, s{st0}, 3072')
    a(f's_add_u32 s{st1}, s{st1}, {SCR}')
    a(f'v_add_u32 v{vt4}, s{st1}, v{vDma}')
    for i in range(3): a(f'ds_write_b128 v{vt4}, {vr(vOa+4*i,4)} offset:{1024*i}')
    for i in range(12): a(f'v_mov_b32 v{vOa+i}, v{vOb+i}')
    for i in range(4): a(f'v_mov_b32 v{vQa1+i}, v{vQb1+i}')
    a(f's_add_u32 s{st1}, s{st0}, 1')
    a(f's_mul_i32 s{st1}, s{st1}, 3072')
    a.lab('L_mg_d')
    a(f's_add_u32 s{st1}, s{st1}, {SCR}')
    a(f'v_add_u32 v{vt4}, s{st1}, v{vDma}')
    a('s_waitcnt lgkmcnt(0) vmcnt(0)')
    a('s_barrier')
    for i in range(3): a(f'ds_read_b128 {vr(vSa+4*i,4)}, v{vt4} offset:{1024*i}')
    a('s_waitcnt lgkmcnt(0)')
    a('s_barrier')
    for i in range(12): a(f'v_add_f32 v{vOa+i}, v{vOa+i}, v{vSa+i}')
    get_l()
    a(f'v_mov_b32 v{vt3}, {f32bits(2.0**100):#x}')
    a(f'v_cmp_nlt_f32 vcc, v{vt2}, v{vt3}')
    a('s_nop 4')
    a('s_cbranch_vccnz L_b_fallback')
    a.lab('L_b_store')
    store_o(sOB)
    p.stamp(9)
    a(f's_mul_i32 s{st0}, s{sWV}, {TILE}')
    a(f's_mul_i32 s{st1}, s{sKH}, {HALF}')
    a(f's_sub_u32 s{st0}, s{st0}, s{st1}')
    a(f's_sub_u32 s{st0}, s{st0}, {32*TILE}')
    addr_add(st0)
    a(f's_lshl_b32 s{st0}, s{sJ}, 3')
    a(f's_add_u32 s{st2}, s{st0}, s{sWV}')
    a(f's_lshl_b32 s{sOA}, s{st2}, 15')
    a(f's_lshl_b32 s{sOA+1}, s{st2}, 13')
    a(f's_add_u32 s{sOA+1}, s{sOA+1}, {128*16384}')
    for i in range(4): a(f'v_mov_b32 v{vQa1+i}, v{vQA1+i}')
    for i in range(2): a(f'v_mov_b32 v{vQa2+i}, v{vQA2+i}')
    a(f's_sub_u32 s{sSw}, 8, s{sWV}')
    a(f's_cmp_lg_u32 s{sJ}, 0')
    a(f's_cselect_b32 s{sSw}, 0, s{sSw}')
    vC=vCa; vO=vOa; vS=[vSa,vSb]
    KR=[(vV,vV+4),(vV+8,vV+12),(vP,vP+4)]
    SB=[vSa,vSb,vOa]
    sRedo=30; sWoEn=55
    def cmid_init(tag,val,first):
        a(f's_cmp_le_u32 s{sSw}, {first}')
        a(f's_cbranch_scc1 L_cm_{tag}_v')
        for r in range(16): a(f'v_mov_b32 v{vC+r}, {NEG_BIG:#x}')
        a(f's_branch L_cm_{tag}_d')
        a.lab(f'L_cm_{tag}_v')
        for r in range(16): a(f'v_mov_b32 v{vC+r}, {val}')
        a.lab(f'L_cm_{tag}_d')
    def cmid_switch(tag,t,val):
        L=f'L_sw_{tag}_{t}'
        a(f's_cmp_eq_u32 s{sSw}, {t}')
        a(f's_cbranch_scc1 {L}')
        a.lab(L+'_r')
        def fn():
            a('s_nop 15')
            for r in range(16): a(f'v_mov_b32 v{vC+r}, {val}')
            a('s_nop 1')
        ool.append((L,fn))
    wocnt=[0]
    def wo_dma():
        if wocnt[0]>=10: return
        n=wocnt[0]; wocnt[0]+=1
        a(f's_cmp_lg_u32 s{sWoEn}, 0')
        a(f's_cbranch_scc0 L_wo{n}')
        for k in range(2):
            a(f's_mov_b32 m0, s{sWl}')
            a(f's_add_u32 s{sWl}, s{sWl}, 5120')
            a(f'buffer_load_dwordx4 v{vWo}, s[{sWo}:{sWo+3}], s{sWn} offen lds')
            a(f's_add_u32 s{sWn}, s{sWn}, 40960')
        a.lab(f'L_wo{n}')
    def maxpass(tag,tiles,dma):
        cmid_init(tag,'0',max(1,tiles[0]))
        nb=len(tiles)//3
        for i in range(3):
            rd_k1(KR[i][0],tiles[i]*TILE); rd_k2(KR[i][1],tiles[i]*TILE)
        for b in range(nb):
            a('s_waitcnt lgkmcnt(0)')
            for i in range(3):
                t=tiles[3*b+i]
                if max(1,tiles[0])<t<=7: cmid_switch(tag,t,'0')
                C = vr(vMF,16) if t==0 else (vr(vML,16) if t==8 else vr(vC,16))
                qk1(SB[i],C,vQa1,KR[i][0]); qk2(SB[i],vQa2,KR[i][1])
            if b<nb-1:
                for i in range(3):
                    t=tiles[3*(b+1)+i]
                    rd_k1(KR[i][0],t*TILE); rd_k2(KR[i][1],t*TILE)
            else:
                rd_k1(vK1,0); rd_k2(vK2,0)
            if dma: wo_dma()
            a('s_nop 7')
            for i in range(3):
                if i==2: a('s_nop 3')
                rowmax(vM,SB[i],b==0 and i==0)
    a(f's_mov_b32 s{sRedo}, 0')
    a(f's_cmp_lt_u32 s{sWV}, 5')
    a(f's_cselect_b32 s{sWoEn}, 1, 0')
    maxpass('p1',[6,7,8],True)
    a.lab('L_a_p2')
    xhalf_max(vM)
    a(f'v_sub_f32 v{vM}, 0, v{vM}')
    for r in range(16): a(f'v_add_f32 v{vMF+r}, v{vMF+r}, v{vM}')
    for r in range(16): a(f'v_add_f32 v{vML+r}, v{vML+r}, v{vM}')
    cmid_init('p2',f'v{vM}',1)
    for r in range(16): a(f'v_mov_b32 v{vO+r}, 0')
    vinit()
    for i in range(4): a(f'v_mov_b32 v{vP+4+i}, 0')
    a('s_waitcnt lgkmcnt(0)')
    qk1(vS[0],vr(vMF,16),vQa1); qk2(vS[0],vQa2)
    rd_k1(vK1,TILE); rd_v(0,0); rd_k2(vK2,TILE)
    for t in range(9):
        last=(t==8); last2=(t==7); tn=t+1
        cur=vS[t&1]; nxt=vS[(t+1)&1]; off=t*TILE
        Cn = vr(vML,16) if tn==8 else vr(vC,16)
        a('s_waitcnt lgkmcnt(0)')
        if 2<=tn<=7: cmid_switch('p2',tn,f'v{vM}')
        wo_dma()
        def A_():
            if not last: qk1(nxt,Cn,vQa1)
            if not last and not last2: rd_k1(vK1,off+2*TILE)
        def B_():
            pv(vO,(t+1)&1,1)
            if not last: rd_v((t+1)&1,off+TILE)
        def C_():
            if not last: qk2(nxt,vQa2)
            if not last and not last2: rd_k2(vK2,off+2*TILE)
        expgroups(cur,A_,B_,C_,lambda: pv(vO,t&1,0))
    A_CHECK=True
    assert wocnt[0]==10
    a('s_nop 1')
    pv(vO,0,1)
    a('s_nop 15')
    a('s_nop 0')
    get_l()
    a(f'v_mov_b32 v{vt3}, {f32bits(2.0**100):#x}')
    a(f'v_cmp_nlt_f32 vcc, v{vt2}, v{vt3}')
    a('s_nop 4')
    a('s_cbranch_vccnz L_a_exact')
    a.lab('L_a_store')
    store_o(sOA)
    p.stamp(10)
    a('s_waitcnt vmcnt(0)')
    a('s_barrier')
    p.stamp(11)
    a(f's_cmp_lg_u32 s{sWV}, 4')
    a('s_cbranch_scc1 L_p3')
    a(f's_lshl_b32 s{st0}, s{sJ}, 5')
    a(f's_add_u32 s{st0}, s{st0}, s{sHD}')
    a(f's_lshl_b32 s{st0}, s{st0}, 7')
    a(f's_add_u32 s{st0}, s{st0}, 65536')
    setflag(a,st0)
    a(f's_lshl_b32 s{st0}, s{sJ}, 12')
    a(f's_add_u32 s{st0}, s{st0}, {WS_FLG+65536}')
    a(f'v_and_b32 v{vt0}, 31, v{vLane}')
    a(f'v_lshlrev_b32 v{vt0}, 7, v{vt0}')
    a(f'v_add_u32 v{vt0}, s{st0}, v{vt0}')
    poll(a,'p3',vt0,[0],(1<<32)-1)
    a('s_barrier')
    a('s_branch L_done')
    a.lab('L_a_exact')
    a(f's_cmp_lg_u32 s{sRedo}, 0')
    a('s_cbranch_scc1 L_a_store')
    a(f's_mov_b32 s{sRedo}, 1')
    a(f's_mov_b32 s{sWoEn}, 0')
    for r in range(16): a(f'v_sub_f32 v{vMF+r}, v{vMF+r}, v{vM}')
    for r in range(16): a(f'v_sub_f32 v{vML+r}, v{vML+r}, v{vM}')
    maxpass('p1x',[0,1,2,3,4,5,6,7,8],False)
    a('s_branch L_a_p2')
    for L,fn in ool:
        a.lab(L); fn()
        if not L.startswith('L_bb'): a(f's_branch {L}_r')
    a.lab('L_b_fallback')
    for i in range(2):
        a(f'v_mov_b32 v{vt4}, v{vQab+i}')
        a(f'v_mov_b32 v{vt5}, v{vQab+i}')
        a('s_nop 1')
        a(f'v_permlane32_swap_b32 v{vt4}, v{vt5}')
        a(f's_cmp_eq_u32 s{sKH}, 0')
        a('s_cselect_b64 s[56:57], -1, 0')
        a('s_nop 1')
        a(f'v_cndmask_b32 v{vt4}, v{vt5}, v{vt4}, s[56:57]')
        a(f'v_cndmask_b32 v{vQa2+i}, 0, v{vt4}, s[{sLo}:{sLo+1}]')
    a(f'v_lshlrev_b32 v{vt4}, 3, v{vRho}')
    a(f'v_add_u32 v{vt4}, 1024, v{vt4}')
    a(f'v_lshrrev_b32 v{vt0}, 5, v{vLane}')
    a(f'v_bfe_u32 v{vt5}, v{vRho}, 2, 2')
    a(f'v_xor_b32 v{vt5}, v{vt5}, v{vt0}')
    a(f'v_lshlrev_b32 v{vt5}, 4, v{vt5}')
    a(f'v_lshl_add_u32 v{vt5}, v{vRho}, 6, v{vt5}')
    a(f'v_add_u32 v{vt5}, 1280, v{vt5}')
    a(f'v_xor_b32 v{vt0}, 32, v{vt5}')
    a(f'v_mov_b32 v{vM}, {NEG_BIG:#x}')
    a(f's_mov_b32 s{st0}, s{sHB}')
    a(f's_mov_b32 s{sIT}, 64')
    a.lab('L_fb_p1')
    a(f'buffer_load_dwordx2 {vr(vK1,2)}, v{vQ1o}, s[{sR}:{sR+3}], s{st0} offen {SL}')
    a(f'buffer_load_dwordx2 {vr(vK1+2,2)}, v{vQ1o}, s[{sR}:{sR+3}], s{st0} offen offset:512 {SL}')
    a(f'buffer_load_dwordx2 {vr(vK2,2)}, v{vt4}, s[{sR}:{sR+3}], s{st0} offen {SL}')
    a('s_waitcnt vmcnt(0)')
    qk1(vSa,'0',vQa1); qk2(vSa,vQa2)
    a('s_nop 15')
    rowmax(vM,vSa,False)
    a(f's_add_u32 s{st0}, s{st0}, {TILE}')
    a(f's_sub_u32 s{sIT}, s{sIT}, 1')
    a(f's_cmp_lg_u32 s{sIT}, 0')
    a('s_cbranch_scc1 L_fb_p1')
    xhalf_max(vM)
    for r in range(16): a(f'v_sub_f32 v{vCa+r}, 0, v{vM}')
    for r in range(16): a(f'v_mov_b32 v{vOa+r}, 0')
    a(f's_mov_b32 s{st0}, s{sHB}')
    a(f's_mov_b32 s{sIT}, 64')
    a.lab('L_fb_p2')
    a(f'buffer_load_dwordx2 {vr(vK1,2)}, v{vQ1o}, s[{sR}:{sR+3}], s{st0} offen {SL}')
    a(f'buffer_load_dwordx2 {vr(vK1+2,2)}, v{vQ1o}, s[{sR}:{sR+3}], s{st0} offen offset:512 {SL}')
    a(f'buffer_load_dwordx2 {vr(vK2,2)}, v{vt4}, s[{sR}:{sR+3}], s{st0} offen {SL}')
    a(f's_mov_b64 exec, s[{sVm}:{sVm+1}]')
    a(f'buffer_load_dwordx4 {vr(vV,4)}, v{vt5}, s[{sR}:{sR+3}], s{st0} offen {SL}')
    a(f'buffer_load_dwordx4 {vr(vV+4,4)}, v{vt0}, s[{sR}:{sR+3}], s{st0} offen {SL}')
    a('s_mov_b64 exec, -1')
    a('s_waitcnt vmcnt(0)')
    qk1(vSa,vr(vCa,16),vQa1); qk2(vSa,vQa2)
    a('s_nop 15')
    for r in range(16): ex(vSa,r)
    a('s_nop 0')
    for c in range(8): cv(vSa,c)
    a('s_nop 1')
    pv(vOa,0,0); pv(vOa,0,1)
    a(f's_add_u32 s{st0}, s{st0}, {TILE}')
    a(f's_sub_u32 s{sIT}, s{sIT}, 1')
    a(f's_cmp_lg_u32 s{sIT}, 0')
    a('s_cbranch_scc1 L_fb_p2')
    a('s_nop 15')
    get_l()
    a('s_branch L_b_store')
    return vEnd, dict(sHD=sHD,sJ=sJ)

def phase3(a,p,info,ROT3=3,XD=6):
    WOFF=40960
    sHD,sJ=info['sHD'],info['sJ']
    sX,sO=4,8
    st0,st1,st2,st3=20,21,22,23
    sPH=28; sBR=29; sMT=30; sNT=31
    vLane=1; vXo=2; vt0=4; vt1=5; vt2=6; vt3=7; vTok=8; vG=9; vTr=10; vOut=11; vTp=12; vTq=14; vX2=3
    vX=16; vWf=vX+160; vAcc=vWf+40; vEnd=vAcc+40
    a.lab('L_p3')
    a(f's_cmp_ge_u32 s{sWV}, 4')
    a('s_cbranch_scc1 L_done')
    a('s_load_dwordx2 s[50:51], s[0:1], 48')
    a(f's_lshr_b32 s{sBR}, s{sHD}, 4')
    a(f's_bfe_u32 s{st0}, s{sHD}, 0x10003')
    a(f's_lshl_b32 s{sMT}, s{sJ}, 1')
    a(f's_add_u32 s{sMT}, s{sMT}, s{st0}')
    a(f's_and_b32 s{sNT}, s{sHD}, 7')
    a(f's_and_b32 s{sPH}, s{sHD}, {ROT3}')
    a(f'v_and_b32 v{vTok}, 15, v{vLane}')
    a(f'v_lshrrev_b32 v{vG}, 4, v{vLane}')
    a(f'v_lshlrev_b32 v{vXo}, 4, v{vLane}')
    a(f'v_lshlrev_b32 v{vX2}, 3, v{vLane}')
    a(f's_lshl_b32 s{st0}, s{sMT}, 3')
    a(f's_lshl_b32 s{st1}, s{sWV}, 1')
    a(f's_add_u32 s{st0}, s{st0}, s{st1}')
    a(f's_lshl_b32 s32, s{st0}, 14')
    a(f's_lshl_b32 s36, s{st0}, 12')
    a(f's_add_u32 s36, s36, {128*16384}')
    a(f's_add_u32 s37, s36, 4096')
    a(f's_mul_i32 s{st0}, s{sBR}, {2048*1280}')
    a(f's_add_u32 s{st0}, s{st0}, {WS_O}')
    a(f's_add_u32 s52, s{sWS}, s{st0}')
    a(f's_addc_u32 s53, s{sWS+1}, 0')
    srd(a,sX,52,53,2048*1280)
    a(f'v_bfe_u32 v{vt0}, v{vLane}, 2, 2')
    a(f'v_mul_u32_u24 v{vt0}, 160, v{vt0}')
    a(f'v_and_b32 v{vt1}, 3, v{vLane}')
    a(f'v_lshl_add_u32 v{vt0}, v{vt1}, 3, v{vt0}')
    a(f'v_add_u32 v{vt0}, {WOFF}, v{vt0}')
    a(f'v_lshrrev_b32 v{vt1}, 1, v{vG}')
    a(f'v_mul_u32_u24 v{vt1}, 5, v{vt1}')
    a(f'v_and_b32 v{vt2}, 1, v{vG}')
    a(f'v_add_u32 v{vt1}, v{vt1}, v{vt2}')
    a(f'v_mul_u32_u24 v{vt1}, 640, v{vt1}')
    a(f'v_add_u32 v{vTr}, v{vt0}, v{vt1}')
    a(f'v_mul_u32_u24 v{vt1}, {5*640}, v{vG}')
    a(f'v_add3_u32 v{vTq}, v{vt0}, v{vt1}, 0')
    a(f'v_add_u32 v{vTq}, {4*640}, v{vTq}')
    for i in range(40): a(f'v_mov_b32 v{vAcc+i}, 0')
    a(f's_lshl_b32 s{st0}, s{sMT}, 7')
    a(f's_lshl_b32 s{st1}, s{sWV}, 5')
    a(f's_add_u32 s{st0}, s{st0}, s{st1}')
    a(f'v_add_u32 v{vt0}, s{st0}, v{vTok}')
    a(f'v_mul_u32_u24 v{vt0}, 2560, v{vt0}')
    a(f'v_and_b32 v{vt1}, 1, v{vG}')
    a(f'v_lshlrev_b32 v{vt1}, 5, v{vt1}')
    a(f'v_lshrrev_b32 v{vt2}, 1, v{vG}')
    a(f'v_lshl_add_u32 v{vt1}, v{vt2}, 4, v{vt1}')
    a(f'v_add_u32 v{vOut}, v{vt0}, v{vt1}')
    a(f'v_lshl_add_u32 v{vt3}, v{vG}, 3, v{vt0}')
    a('s_barrier')
    p.stamp(12)
    a(f's_mov_b32 s33, s{sPH}')
    for ph in range(4):
        a(f's_lshl_b32 s{st0}, s33, 12')
        a(f's_add_u32 s{40+2*ph}, s32, s{st0}')
        a(f's_add_u32 s{41+2*ph}, s{40+2*ph}, 16384')
        a('s_add_u32 s33, s33, 1')
        a('s_and_b32 s33, s33, 3')
    def xloads(st):
        L=[]
        if st<16:
            for u in range(2):
                L.append(f'buffer_load_dwordx4 {vr(vX+(st*2+u)*4,4)}, v{vXo}, s[{sX}:{sX+3}], s{40+2*(st//4)+u} offen offset:{(st%4)*1024} {SL}')
        elif st<20:
            for u in range(2):
                for hh in range(2):
                    L.append(f'buffer_load_dwordx2 {vr(vX+(st*2+u)*4+2*hh,2)}, v{vX2}, s[{sX}:{sX+3}], s{36+u} offen offset:{(st-16)*1024+hh*512} {SL}')
        return L
    for st in range(XD):
        for l in xloads(st): a(l)
    if BPROF==3: p.stamp(1,force=True)
    a('s_waitcnt lgkmcnt(0)')
    srd(a,sO,50,51,2048*2560)
    def trr(s,cp,h):
        buf=vWf+(s&1)*20+cp*4+2*h
        if s<16: return f'ds_read_b64_tr_b16 {vr(buf,2)}, v{vTp+((s//4)&1)} offset:{(s%4)*6400+cp*32+h*1280}'
        o=(s-16)*25600+cp*32+h*12800
        if o<65536: return f'ds_read_b64_tr_b16 {vr(buf,2)}, v{vTq} offset:{o}'
        return f'ds_read_b64_tr_b16 {vr(buf,2)}, v{vTq+1} offset:{o-51200}'
    def setp(ph):
        a(f's_mul_i32 s{st0}, s{sPH}, {4*6400}')
        a(f'v_add_u32 v{vTp+(ph&1)}, s{st0}, v{vTr}')
        a(f's_add_u32 s{sPH}, s{sPH}, 1')
        a(f's_and_b32 s{sPH}, s{sPH}, 3')
    a(f'v_add_u32 v{vTq+1}, 51200, v{vTq}')
    setp(0)
    for cp in range(5):
        a(trr(0,cp,0)); a(trr(0,cp,1))
    nl=lambda st: len(xloads(st))
    for s in range(20):
        if s%4==0 and s//4+1<4: setp(s//4+1)
        nxt=[trr(s+1,cp,h) for cp in range(5) for h in range(2)] if s+1<20 else []
        xl=xloads(s+XD)
        buf=vWf+(s&1)*20
        younger=sum(nl(t) for t in range(s+1,min(s+XD,20)))
        a(f's_waitcnt lgkmcnt(0) vmcnt({younger})')
        if BPROF==3 and s in (0,4,8,12,16,19): p.stamp(2+(0,4,8,12,16,19).index(s),force=True)
        k=0
        for cp in range(5):
            for u in range(2):
                ac=vAcc+(cp*2+u)*4
                a(f'v_mfma_f32_16x16x32_bf16 {vr(ac,4)}, {vr(buf+cp*4,4)}, {vr(vX+(s*2+u)*4,4)}, {vr(ac,4)}')
                for _ in range(2 if k<5 else 0):
                    if nxt: a(nxt.pop(0))
                if k>=5 and xl: a(xl.pop(0))
                k+=1
        assert not xl
    a('s_nop 7')
    p.stamp(13)
    a(f's_mul_i32 s{st0}, s{sBR}, 1280')
    a(f's_mul_i32 s{st1}, s{sNT}, 160')
    a(f's_add_u32 s{st0}, s{st0}, s{st1}')
    a(f's_add_u32 s{st1}, s{st0}, {16*2560}')
    for u in range(2):
        for cp in range(5):
            b=vAcc+(cp*2+u)*4
            a(f'v_cvt_pk_bf16_f32 v{b}, v{b}, v{b+1}')
            a(f'v_cvt_pk_bf16_f32 v{b+1}, v{b+2}, v{b+3}')
        for cp in (0,2):
            b=vAcc+(cp*2+u)*4; b2=vAcc+((cp+1)*2+u)*4
            a(f'v_mov_b32 v{b+2}, v{b2}')
            a(f'v_mov_b32 v{b+3}, v{b2+1}')
            a('s_nop 1')
            a(f'v_permlane16_swap_b32 v{b}, v{b+2}')
            a(f'v_permlane16_swap_b32 v{b+1}, v{b+3}')
            a('s_nop 1')
            a(f'buffer_store_dwordx4 {vr(b,4)}, v{vOut}, s[{sO}:{sO+3}], s{st0+u} offen offset:{cp*32} {SO}')
        b=vAcc+(4*2+u)*4
        a(f'buffer_store_dwordx2 {vr(b,2)}, v{vt3}, s[{sO}:{sO+3}], s{st0+u} offen offset:128 {SO}')
    return vEnd

def build(**kw):
    a=A(); p=Prof(a)
    a.raw(f'.globl {KNAME}'); a.raw('.p2align 8'); a.raw(f'.type {KNAME},@function'); a.lab(KNAME)
    a('s_cmp_ge_u32 s2, 256')
    a('s_cbranch_scc1 L_exit')
    p.real(0); p.stamp(0)
    a(f's_load_dwordx4 s[{sDBG}:{sDBG+3}], s[0:1], 56' if False else f's_load_dwordx2 s[{sDBG}:{sDBG+1}], s[0:1], 56')
    a(f's_load_dwordx2 s[{sWS}:{sWS+1}], s[0:1], 64')
    a('s_load_dwordx4 s[16:19], s[0:1], 0')
    a('s_load_dwordx4 s[20:23], s[0:1], 24')
    a(f's_mov_b32 s{sWG}, s2')
    a('v_lshrrev_b32 v2, 6, v0')
    a('s_nop 0')
    a(f'v_readfirstlane_b32 s{sWV}, v2')
    a(f's_cmp_lg_u32 s{sWG}, 0')
    a('s_cbranch_scc1 L_notok')
    a(f's_cmp_lg_u32 s{sWV}, 4')
    a('s_cbranch_scc1 L_notok')
    a('s_memrealtime s[56:57]')
    a('s_waitcnt lgkmcnt(0)')
    a('s_or_b32 s56, s56, 1')
    a('s_mov_b64 exec, 1')
    a('v_mov_b32 v2, 0')
    a('v_mov_b32 v3, s56')
    a(f'global_store_dword v2, v3, s[{sDBG}:{sDBG+1}] sc1')
    a('s_mov_b64 exec, -1')
    a.lab('L_notok')
    if CPF:
        a(f's_cmp_lg_u32 s{sWV}, 5')
        a('s_cbranch_scc1 L_nocpf')
        a('s_getpc_b64 s[56:57]')
        a.lab('L_pc')
        a(f's_lshr_b32 s58, s{sWG}, 3')
        a('s_and_b32 s58, s58, 31')
        a('s_lshl_b32 s58, s58, 10')
        a('v_and_b32 v2, 63, v0')
        a('v_lshlrev_b32 v2, 4, v2')
        a('v_add_u32 v2, s58, v2')
        a(f'v_min_u32 v2, CODE_BYTES-16, v2')
        a('global_load_dwordx4 v[240:243], v2, s[56:57]')
        a.lab('L_nocpf')
    v1=phase1(a,p,**kw.get('p1',{}))
    v2,info=phase2(a,p,**kw.get('p2',{}))
    v3=phase3(a,p,info,**kw.get('p3',{}))
    a.lab('L_done')
    if PROF:
        a('s_waitcnt vmcnt(0)')
        p.real(1); p.dump()
    a('s_endpgm')
    a.lab('L_exit')
    a('s_endpgm')
    a.lab('L_code_end')
    a.raw('.set CODE_BYTES, (L_code_end - L_pc) & 0xfffffff0' if CPF else '')
    vg=max(v1,v2,v3,244 if CPF else 0)
    desc=f'''.section .rodata,"a"
.p2align 6
.amdhsa_kernel {KNAME}
  .amdhsa_next_free_vgpr {vg}
  .amdhsa_next_free_sgpr 102
  .amdhsa_accum_offset {(vg+3)//4*4}
  .amdhsa_group_segment_fixed_size 0
  .amdhsa_kernarg_size 72
  .amdhsa_user_sgpr_count 2
  .amdhsa_user_sgpr_kernarg_segment_ptr 1
  .amdhsa_system_sgpr_workgroup_id_x 1
.end_amdhsa_kernel
'''
    hdr=open('cdna_kernels/'+NAME+'.s.ref').read().split('\n')
    out=[]
    for l in hdr:
        if l.startswith('; @launch'): out.append('; @launch grid=(256,1,1) block=(512,1,1) lds=163840'); continue
        if not l.startswith(';'): break
        out.append(l)
    out.append('.amdgcn_target "amdgcn-amd-amdhsa--gfx950"'); out.append('.text')
    return '\n'.join(out)+'\n'+a.txt()+desc

if __name__=='__main__':
    if len(sys.argv)>2 and sys.argv[2]=='prof': PROF=True
    kw=eval(sys.argv[3]) if len(sys.argv)>3 else {}
    if 'CPF' in kw: CPF=kw.pop('CPF')
    if 'RT' in kw: RT=kw.pop('RT')
    if 'BPROF' in kw: BPROF=kw.pop('BPROF')
    if 'SO' in kw: SO=kw.pop('SO')
    if 'SL' in kw: SL=kw.pop('SL')
    if 'SC' in kw: SC=kw.pop('SC')
    open(sys.argv[1],'w').write(build(**kw))
```

```python
import sys, math, struct
NAME='concat_heads__sliding_block__mha_block__prompt'
KNAME=NAME+'_kernel'
WS_Q=0
WS_KV=2*32*64*1280
WS_O=WS_KV+2*32*64*2560
WS_END=WS_O+2*2048*1280
WS_FLG=WS_END
CSCALE=(20.0**-0.5)*math.log2(math.e)
NEG_BIG=0xf149f2ca
def f32bits(x): return struct.unpack('<I',struct.pack('<f',x))[0]
class A:
    def __init__(s): s.l=[]
    def __call__(s,x): s.l.append('  '+x)
    def lab(s,x): s.l.append(x+':')
    def raw(s,x): s.l.append(x)
    def txt(s): return '\n'.join(s.l)+'\n'
def vr(a,n=1): return f'v{a}' if n==1 else f'v[{a}:{a+n-1}]'
PROF=False
BPROF=False
CPF=True
RT=False
PROF_BASE=32<<20
NST=16
class Prof:
    def __init__(s,a): s.a=a; s.n=0
    def stamp(s,i=None,force=False):
        if not PROF: return
        if BPROF==2 and not force and i not in (0,7,8): return
        if BPROF==3 and not force and i not in (0,12,13): return
        if i is None: i=s.n
        s.n=max(s.n,i+1)
        assert i<14
        s.a(f's_memrealtime s[{60+2*i}:{61+2*i}]' if RT else f's_memtime s[{60+2*i}:{61+2*i}]')
    def real(s,idx):
        if PROF: s.a(f's_memrealtime s[{88+2*idx}:{89+2*idx}]')
    def dump(s):
        if not PROF: return
        a=s.a
        a('s_waitcnt lgkmcnt(0) vmcnt(0)')
        a(f's_lshl_b32 s92, s{sWG}, 3')
        a(f's_add_u32 s92, s92, s{sWV}')
        a('s_lshl_b32 s92, s92, 6')
        a(f's_add_u32 s92, s92, {PROF_BASE}')
        a(f's_add_u32 s94, s{sWS}, s92')
        a(f's_addc_u32 s95, s{sWS+1}, 0')
        a('v_mov_b32 v0, 0')
        a('s_mov_b64 exec, 1')
        for i in range(14):
            a(f'v_mov_b32 v1, s{60+2*i}')
            a(f'global_store_dword v0, v1, s[94:95] offset:{4*i}')
        a('v_mov_b32 v1, s88'); a('global_store_dword v0, v1, s[94:95] offset:56')
        a('v_mov_b32 v1, s90'); a('global_store_dword v0, v1, s[94:95] offset:60')
        a('s_waitcnt vmcnt(0)')
sWG=96; sWV=97; sDBG=98; sWS=100; sTOK=59
def srd(a, d, lo, hi, nbytes):
    a(f's_mov_b32 s{d}, s{lo}')
    a(f's_and_b32 s{d+1}, s{hi}, 0xffff')
    a(f's_mov_b32 s{d+2}, {nbytes}')
    a(f's_mov_b32 s{d+3}, 0x20000')

SC='sc1'
SL=''
SO=''

TILE=2560; HALF=81920
P2M=212
P2C=list(range(244,256))
def head_j(a,sH,sJ_,t0,t1):
    a(f's_and_b32 s{t0}, s{sWG}, 7')
    a(f's_lshr_b32 s{t1}, s{sWG}, 3')
    a(f's_lshl_b32 s{sH}, s{t0}, 2')
    a(f's_lshr_b32 s{t0}, s{t1}, 3')
    a(f's_add_u32 s{sH}, s{sH}, s{t0}')
    a(f's_and_b32 s{sJ_}, s{t1}, 7')
def q_issue(a):
    head_j(a,50,51,52,53)
    a('s_lshl_b32 s50, s50, 6')
    a('s_lshl_b32 s51, s51, 3')
    a('s_add_u32 s50, s50, s51')
    a(f's_and_b32 s51, s{sWV}, 3')
    a('s_lshl_b32 s51, s51, 1')
    a('s_add_u32 s50, s50, s51')
    a('s_mul_i32 s50, s50, 1280')
    a(f's_add_u32 s50, s50, {32*64*1280}')
    a('s_add_u32 s51, s50, 1280')
    srd(a,52,sWS,sWS+1,WS_O)
    a('v_and_b32 v2, 31, v1')
    a('v_lshlrev_b32 v2, 3, v2')
    a('v_lshrrev_b32 v3, 5, v1')
    a('v_lshl_add_u32 v3, v3, 8, v2')
    a('v_lshrrev_b32 v4, 5, v1')
    a('v_mul_u32_u24 v4, 1280, v4')
    a('v_add3_u32 v2, v2, v4, 0')
    a('v_add_u32 v2, 1024, v2')
    for (r1,so) in ((16,50),(24,51)):
        a(f'buffer_load_dwordx2 v[{r1}:{r1+1}], v3, s[52:55], s{so} offen {SL}')
        a(f'buffer_load_dwordx2 v[{r1+2}:{r1+3}], v3, s[52:55], s{so} offen offset:512 {SL}')
    a(f'buffer_load_dwordx2 v[20:21], v2, s[52:55], s50 offen {SL}')
def kv_first(a,pieces,rows=(0,HALF,8192,HALF+8192)):
    head_j(a,50,51,52,53)
    a(f's_mul_i32 s50, s50, {64*TILE}')
    a(f's_add_u32 s50, s50, {WS_KV+32*64*TILE}')
    a(f's_add_u32 s52, s{sWS}, s50')
    a(f's_addc_u32 s53, s{sWS+1}, 0')
    a('s_and_b32 s53, s53, 0xffff')
    a('s_mov_b32 s54, 163840')
    a('s_mov_b32 s55, 0x20000')
    a('v_lshlrev_b32 v2, 4, v1')
    for row in rows:
        for pc in pieces:
            a(f's_add_u32 s50, s{pc[0]}, {row+pc[1]}')
            a('s_mov_b32 m0, s50')
            a(f'buffer_load_dwordx4 v2, s[52:55], s50 offen {SL} lds')
def poll_f1(a,tag,br):
    head_j(a,50,51,52,53)
    a('s_mul_i32 s50, s50, 20')
    a('s_lshr_b32 s51, s50, 7')
    a('s_add_u32 s50, s50, 19')
    a('s_lshr_b32 s50, s50, 7')
    a('s_sub_u32 s50, s50, s51')
    a('v_bfe_u32 v2, v1, 4, 1')
    a('v_mul_u32_u24 v2, s50, v2')
    a('v_add_u32 v2, s51, v2')
    a('v_lshrrev_b32 v5, 5, v1')
    a('v_mul_u32_u24 v5, 5, v5')
    a('v_add_u32 v5, v5, v2')
    a('v_add_u32 v14, 10, v2')
    a('v_and_b32 v2, 15, v1')
    a('v_lshl_add_u32 v5, v5, 4, v2')
    a('v_lshl_add_u32 v14, v14, 4, v2')
    a('v_lshlrev_b32 v5, 7, v5')
    a('v_lshlrev_b32 v14, 7, v14')
    a(f'v_add_u32 v5, {WS_FLG+br*15*16*128}, v5')
    a(f'v_add_u32 v14, {WS_FLG+br*15*16*128}, v14')
    poll2(a,tag,5,14,(1<<64)-1)

def p2_early(a,tag):
    vLane=1; vt0=2; vt1=3; vt2=4; vt3=5; vCc=6; st0=50; sTm=52; sJ=51; sLo=56
    vK1a,vK2a,vVa,vVb,vDma,vRho,vOoff,vOo2,vQ1o,vQ2o,vWo,vKap=P2C
    vMF=P2M; vML=P2M+16
    a(f's_lshr_b32 s{sJ}, s{sWG}, 3')
    a(f's_and_b32 s{sJ}, s{sJ}, 7')
    a(f'v_lshlrev_b32 v{vDma}, 4, v{vLane}')
    a(f'v_and_b32 v{vRho}, 31, v{vLane}')
    a(f'v_lshlrev_b32 v{vt1}, 3, v{vRho}')
    a(f'v_add_u32 v{vK2a}, 1024, v{vt1}')
    a(f'v_mov_b32 v{vt2}, 0x70000000')
    a(f'v_cmp_gt_u32 s[{sLo}:{sLo+1}], 32, v{vLane}')
    a('s_nop 1')
    a(f'v_cndmask_b32 v{vQ2o}, v{vt2}, v{vK2a}, s[{sLo}:{sLo+1}]')
    a(f'v_lshrrev_b32 v{vt0}, 5, v{vLane}')
    a(f'v_lshlrev_b32 v{vK1a}, 3, v{vRho}')
    a(f'v_lshl_add_u32 v{vK1a}, v{vt0}, 8, v{vK1a}')
    a(f'v_mov_b32 v{vQ1o}, v{vK1a}')
    a(f'v_bfe_u32 v{vt1}, v{vRho}, 2, 2')
    a(f'v_xor_b32 v{vt1}, v{vt1}, v{vt0}')
    a(f'v_lshlrev_b32 v{vt1}, 4, v{vt1}')
    a(f'v_lshl_add_u32 v{vVa}, v{vRho}, 6, v{vt1}')
    a(f'v_add_u32 v{vVa}, 1280, v{vVa}')
    a(f'v_xor_b32 v{vVb}, 32, v{vVa}')
    a(f'v_and_b32 v{vt1}, 1, v{vRho}')
    a(f'v_lshlrev_b32 v{vKap}, 4, v{vt1}')
    a(f'v_lshrrev_b32 v{vt1}, 4, v{vRho}')
    a(f'v_lshl_or_b32 v{vKap}, v{vt1}, 3, v{vKap}')
    a(f'v_and_b32 v{vt1}, 4, v{vRho}')
    a(f'v_or_b32 v{vKap}, v{vKap}, v{vt1}')
    a(f'v_bfe_u32 v{vt1}, v{vRho}, 3, 1')
    a(f'v_lshl_or_b32 v{vKap}, v{vt1}, 1, v{vKap}')
    a(f'v_bfe_u32 v{vt1}, v{vRho}, 1, 1')
    a(f'v_or_b32 v{vKap}, v{vKap}, v{vt1}')
    a(f'v_lshlrev_b32 v{vt3}, 2, v{vt0}')
    a(f'v_sub_u32 v{vt3}, v{vKap}, v{vt3}')
    a(f'v_mov_b32 v{vt2}, {NEG_BIG:#x}')
    for r in range(16):
        base=(r&3)+8*(r>>2)
        kb=16*(r&1)+8*((r>>3)&1)+2*((r>>2)&1)+((r>>1)&1)
        if r>=2:
            q=r-2
            a(f'v_cndmask_b32 v{vMF+q}, v{vt2}, 0, s[{sTm+2*(q&1)}:{sTm+1+2*(q&1)}]')
            a(f'v_cndmask_b32 v{vML+q}, 0, v{vt2}, s[{sTm+2*(q&1)}:{sTm+1+2*(q&1)}]')
        a(f'v_cmp_gt_i32 s[{sTm+2*(r&1)}:{sTm+1+2*(r&1)}], {kb}, v{vt3}')
        if r==0: a('s_nop 0')
        if r==1: a('s_nop 1')
    a('s_nop 1')
    for q in (14,15):
        a(f'v_cndmask_b32 v{vMF+q}, v{vt2}, 0, s[{sTm+2*(q&1)}:{sTm+1+2*(q&1)}]')
        a(f'v_cndmask_b32 v{vML+q}, 0, v{vt2}, s[{sTm+2*(q&1)}:{sTm+1+2*(q&1)}]')
    a(f's_cmp_lg_u32 s{sJ}, 0')
    a(f's_cbranch_scc1 L_mf_ok_{tag}')
    for r in range(16): a(f'v_mov_b32 v{vMF+r}, v{vt2}')
    a.lab(f'L_mf_ok_{tag}')
    a(f'v_lshrrev_b32 v{vt1}, 4, v{vKap}')
    a(f'v_and_b32 v{vt2}, 15, v{vKap}')
    a(f'v_lshlrev_b32 v{vOoff}, 14, v{vt1}')
    a(f'v_lshl_add_u32 v{vOoff}, v{vt2}, 4, v{vOoff}')
    a(f'v_lshrrev_b32 v{vt3}, 5, v{vLane}')
    a(f'v_lshl_add_u32 v{vOoff}, v{vt3}, 8, v{vOoff}')
    a(f'v_lshlrev_b32 v{vOo2}, 12, v{vt1}')
    a(f'v_lshl_add_u32 v{vOo2}, v{vt2}, 3, v{vOo2}')
    a(f's_lshl_b32 s{st0}, s{sWV}, 6')
    a(f'v_add_u32 v{vt0}, s{st0}, v{vLane}')
    a(f'v_mul_u32_u24 v{vt1}, 52429, v{vt0}')
    a(f'v_lshrrev_b32 v{vt1}, 19, v{vt1}')
    a(f'v_mul_u32_u24 v{vt2}, 10, v{vt1}')
    a(f'v_sub_u32 v{vCc}, v{vt0}, v{vt2}')
    a(f'v_mul_u32_u24 v{vt1}, 1280, v{vt1}')
    a(f'v_lshl_add_u32 v{vWo}, v{vCc}, 4, v{vt1}')

def phase1(a,p,D=3,SY=1,LP='',EARLY2=False):
    R=4; XOFF=16384
    sX,sW,sO=4,8,12
    sBR,sMT,sNT=26,27,28
    sKS=31; sXo=32; sW0=34; sIT=36; sSlot=37; sLW=38; sLX=39; sT=40
    st0,st1,st2,st3=41,42,43,44
    sSec=45; sBase=46; sHS=47; sTS=48; sNx=30; sM=29; sN=33; sIdx=35
    vLane=1; vt0=6; vt1=7; vt2=8; vt3=9; vt4=10; vTok=11; vG=12; vRho=13
    vLW=8; vLX=10; vXh=2; vXc1=3
    vB0=14; vBc=19; vBn=24; vAd=29
    vWf=36; vXf=vWf+32; vAcc=vXf+4*(D+1); vEnd=vAcc+128
    assert vEnd<=256 and 8%(D+1)==0
    def wf(step,c): return vWf+(step&1)*16+c*4
    def xf(i): return vXf+(i%(D+1))*4
    def acc(t,c,mt): return vAcc+t*64+(c*4+mt)*4
    def slotbase(dst,idx):
        a(f's_lshl_b32 s{dst}, s{idx}, 15')
        a(f's_lshr_b32 s{st3}, s{idx}, 1')
        a(f's_lshl_b32 s{st3}, s{st3}, 14')
        a(f's_add_u32 s{dst}, s{dst}, s{st3}')
        a(f's_add_u32 s{dst}, s{dst}, 16384')
    a(f'v_and_b32 v{vLane}, 63, v0')
    a(f's_and_b32 s{st0}, s{sWG}, 7')
    a(f's_lshr_b32 s{st1}, s{sWG}, 3')
    a(f's_and_b32 s{st2}, s{st0}, 1')
    a(f's_lshl_b32 s{st2}, s{st2}, 3')
    a(f's_and_b32 s{st3}, s{st1}, 7')
    a(f's_add_u32 s{sMT}, s{st2}, s{st3}')
    a(f's_lshr_b32 s{st2}, s{st0}, 1')
    a(f's_lshl_b32 s{st2}, s{st2}, 2')
    a(f's_lshr_b32 s{st1}, s{st1}, 3')
    a(f's_add_u32 s{sNT}, s{st2}, s{st1}')
    a(f's_cmp_ge_u32 s{sNT}, 15')
    a(f's_cbranch_scc1 L_p1_skip')
    a(f's_cmp_ge_u32 s{sWV}, 4')
    a(f's_cbranch_scc1 L_p1_loader')
    p2_early(a,'c')
    a(f's_and_b32 s{sM}, s{sWV}, 1')
    a(f's_lshr_b32 s{sN}, s{sWV}, 1')
    a(f'v_and_b32 v{vTok}, 15, v{vLane}')
    a(f'v_lshrrev_b32 v{vG}, 4, v{vLane}')
    a(f'v_and_b32 v{vt0}, 3, v{vLane}')
    a(f'v_bfe_u32 v{vt1}, v{vLane}, 2, 2')
    a(f'v_and_b32 v{vt2}, 1, v{vG}')
    a(f'v_lshl_or_b32 v{vt2}, v{vt2}, 2, v{vt1}')
    a(f'v_lshl_add_u32 v{vt3}, v{vG}, 3, v{vt1}')
    a(f'v_lshlrev_b32 v{vt3}, 8, v{vt3}')
    a(f'v_lshl_add_u32 v{vt3}, v{vt0}, 3, v{vt3}')
    a(f's_lshl_b32 s{st0}, s{sN}, 2')
    a(f'v_xor_b32 v{vt2}, s{st0}, v{vt2}')
    for c in range(4):
        a(f'v_xor_b32 v{vt4}, {c}, v{vt2}')
        a(f'v_lshl_add_u32 v{vB0+c}, v{vt4}, 5, v{vt3}')
    a(f'v_lshrrev_b32 v{vt0}, 1, v{vTok}')
    a(f'v_xor_b32 v{vt0}, v{vt0}, v{vG}')
    a(f'v_lshlrev_b32 v{vt0}, 4, v{vt0}')
    a(f'v_lshl_add_u32 v{vt0}, v{vTok}, 7, v{vt0}')
    a(f's_lshl_b32 s{st0}, s{sM}, 13')
    a(f's_add_u32 s{st0}, s{st0}, {XOFF}')
    a(f'v_add_u32 v{vB0+4}, s{st0}, v{vt0}')
    a(f'v_xor_b32 v{vXh}, 64, v{vt0}')
    a(f'v_sub_u32 v{vXh}, v{vXh}, v{vt0}')
    for i in range(5): a(f'v_add_u32 v{vBc+i}, 16384, v{vB0+i}')
    for i in range(128): a(f'v_mov_b32 v{vAcc+i}, 0')
    a(f's_mul_i32 s{sSec}, s{sNT}, 52')
    a(f's_lshr_b32 s{sSec}, s{sSec}, 8')
    a(f's_mul_i32 s{st0}, s{sSec}, 5')
    a(f's_sub_u32 s{st0}, s{sNT}, s{st0}')
    a(f's_lshl_b32 s{st0}, s{st0}, 7')
    a(f's_lshl_b32 s{st1}, s{sN}, 6')
    a(f's_add_u32 s{st0}, s{st0}, s{st1}')
    a(f's_cmp_eq_u32 s{sSec}, 0')
    a(f's_cselect_b32 s{st1}, 0, 1')
    a(f's_cselect_b32 s{st2}, 0, {WS_KV}')
    a(f's_lshl_b32 s{sTS}, 1280, s{st1}')
    a(f's_lshl_b32 s{sHS}, s{sTS}, 6')
    a(f's_lshl_b32 s{sT}, s{sMT}, 2')
    a(f's_lshl_b32 s{st1}, s{sM}, 1')
    a(f's_add_u32 s{sT}, s{sT}, s{st1}')
    a(f's_mul_i32 s{st1}, s{sT}, s{sTS}')
    a(f's_add_u32 s{sBase}, s{st1}, s{st2}')
    a(f's_cmp_eq_u32 s{sSec}, 2')
    a(f's_cbranch_scc1 L_p1_adV')
    a(f'v_lshrrev_b32 v{vt0}, 3, v{vTok}')
    a(f'v_lshlrev_b32 v{vRho}, 7, v{vt0}')
    a(f'v_bfe_u32 v{vt0}, v{vTok}, 1, 1')
    a(f'v_lshl_or_b32 v{vRho}, v{vt0}, 6, v{vRho}')
    a(f'v_bfe_u32 v{vt0}, v{vTok}, 2, 1')
    a(f'v_lshl_or_b32 v{vRho}, v{vt0}, 5, v{vRho}')
    a(f'v_and_b32 v{vt0}, 1, v{vTok}')
    a(f'v_lshl_or_b32 v{vRho}, v{vt0}, 4, v{vRho}')
    a(f's_lshr_b32 s{st0}, s{st0}, 2')
    for c in range(4):
        a(f'v_add_u32 v{vt0}, s{st0}, v{vG}')
        if c: a(f'v_add_u32 v{vt0}, {4*c}, v{vt0}')
        a(f'v_mul_u32_u24 v{vt1}, 52429, v{vt0}')
        a(f'v_lshrrev_b32 v{vt1}, 18, v{vt1}')
        a(f'v_mul_u32_u24 v{vt2}, 5, v{vt1}')
        a(f'v_sub_u32 v{vt2}, v{vt0}, v{vt2}')
        a(f'v_mul_u32_u24 v{vt1}, s{sHS}, v{vt1}')
        a(f'v_and_b32 v{vt3}, 1, v{vt2}')
        a(f'v_lshlrev_b32 v{vt3}, 9, v{vt3}')
        a(f'v_lshrrev_b32 v{vt4}, 1, v{vt2}')
        a(f'v_cmp_eq_u32 s[56:57], 4, v{vt2}')
        a(f'v_lshl_add_u32 v{vt3}, v{vt4}, 8, v{vt3}')
        a(f'v_add_u32 v{vt4}, 512, v{vt3}')
        a(f'v_add_u32 v{vt1}, v{vt1}, v{vRho}')
        a(f'v_cndmask_b32 v{vt3}, v{vt3}, v{vt4}, s[56:57]')
        a(f'v_add_u32 v{vAd+c}, v{vt1}, v{vt3}')
    a('s_branch L_p1_adD')
    a.lab('L_p1_adV')
    for c in range(4):
        a(f'v_add_u32 v{vt0}, s{st0}, v{vTok}')
        if c: a(f'v_add_u32 v{vt0}, {16*c}, v{vt0}')
        a(f'v_mul_u32_u24 v{vt1}, 52429, v{vt0}')
        a(f'v_lshrrev_b32 v{vt1}, 20, v{vt1}')
        a(f'v_mul_u32_u24 v{vt2}, 20, v{vt1}')
        a(f'v_sub_u32 v{vt2}, v{vt0}, v{vt2}')
        a(f'v_mul_u32_u24 v{vt1}, {64*2560}, v{vt1}')
        a(f'v_lshl_add_u32 v{vt1}, v{vt2}, 6, v{vt1}')
        a(f'v_bfe_u32 v{vt2}, v{vt2}, 2, 2')
        a(f'v_xor_b32 v{vt2}, v{vt2}, v{vG}')
        a(f'v_lshl_add_u32 v{vt1}, v{vt2}, 4, v{vt1}')
        a(f'v_add_u32 v{vAd+c}, 1280, v{vt1}')
    a.lab('L_p1_adD')
    a('s_waitcnt lgkmcnt(0)')
    srd(a,sO,sWS,sWS+1,WS_O)
    def wread(nxt,h,step,c,hh):
        b=(vBn if nxt else vBc)+c
        return f'ds_read_b64_tr_b16 {vr(wf(step,c)+2*hh,2)}, v{b} offset:{h*8192+1024*hh}'
    def xread(nxt,h,mt,buf):
        b=((vBn if nxt else vBc)+4) if h==0 else vXc1
        return f'ds_read_b128 {vr(xf(buf),4)}, v{b} offset:{mt*2048}'
    def epilogue(v,t,br):
        if v==0:
            a(f's_cmp_lg_u32 s{sSec}, 0')
            a(f's_cbranch_scc1 L_p1_ns{t}')
            a(f's_mov_b32 s{st1}, {f32bits(CSCALE):#x}')
            for i in range(64): a(f'v_mul_f32 v{vAcc+64*t+i}, s{st1}, v{vAcc+64*t+i}')
            a.lab(f'L_p1_ns{t}')
        a(f's_lshl_b32 s{st0}, s{sTS}, 11')
        a(f's_mul_i32 s{st0}, s{st0}, {br}')
        a(f's_add_u32 s{st0}, s{st0}, s{sBase}')
        for tp in range(2):
            if tp: a(f's_add_u32 s{st0}, s{st0}, s{sTS}')
            for c in range(4):
                b=acc(t,c,2*tp)
                if v==0:
                    a(f'v_cvt_pk_bf16_f32 v{b}, v{b}, v{b+1}')
                    a(f'v_cvt_pk_bf16_f32 v{b+1}, v{b+2}, v{b+3}')
                    a(f'v_cvt_pk_bf16_f32 v{b+2}, v{b+4}, v{b+5}')
                    a(f'v_cvt_pk_bf16_f32 v{b+3}, v{b+6}, v{b+7}')
                else:
                    a(f'v_cvt_pk_bf16_f32 v{b}, v{b}, v{b+4}')
                    a(f'v_cvt_pk_bf16_f32 v{b+1}, v{b+1}, v{b+5}')
                    a(f'v_cvt_pk_bf16_f32 v{b+2}, v{b+2}, v{b+6}')
                    a(f'v_cvt_pk_bf16_f32 v{b+3}, v{b+3}, v{b+7}')
                a(f'buffer_store_dwordx4 {vr(b,4)}, v{vAd+c}, s[{sO}:{sO+3}], s{st0} offen {SC}')
    a(f's_cmp_eq_u32 s{sSec}, 2')
    a(f's_cbranch_scc1 L_p1_v1')
    for v in range(2):
        a.lab(f'L_p1_v{v}')
        p.stamp(1)
        a('s_barrier')
        p.stamp(2)
        def body(emit,issued,t):
            waits=[]
            for st in range(2):
                for mt in range(4):
                    gi=st*4+mt
                    need=[('x',gi)]
                    if mt==0: need.append(('w',st))
                    last=max(len(issued)-1-issued[::-1].index(tg) for tg in need)
                    y=len(issued)-1-last
                    waits.append(y)
                    if emit:
                        y=min(y,wmin[len(waits)-1])
                        a(f's_waitcnt lgkmcnt({min(y,15)})')
                    fill=[]
                    g2=gi+D; nx=g2>=8; h2=(g2%8)//4; m2=g2%4
                    fill.append((xread(nx,h2,m2,g2),('x',g2%8)))
                    wm={0:(0,1),1:(2,3)} if st==1 else {0:(0,1),1:(2,3)}
                    if mt in wm:
                        for c in wm[mt]:
                            fill.append((wread(st==1,(st+1)&1,st+1,c,0),('w',(st+1)%2)))
                            fill.append((wread(st==1,(st+1)&1,st+1,c,1),('w',(st+1)%2)))
                    if st==0 and mt==0:
                        fill.append((f'v_add_u32 v{vXc1}, v{vBc+4}, v{vXh}',None))
                    if st==0 and mt==2:
                        fill.append((f's_add_u32 s{sIdx}, s{sIdx}, 1',None))
                        fill.append((f's_and_b32 s{sIdx}, s{sIdx}, 3',None))
                        fill.append((f's_lshl_b32 s{sNx}, s{sIdx}, 15',None))
                        fill.append((f's_lshr_b32 s{st3}, s{sIdx}, 1',None))
                        fill.append((f's_lshl_b32 s{st3}, s{st3}, 14',None))
                        fill.append((f's_add_u32 s{sNx}, s{sNx}, s{st3}',None))
                        fill.append((f's_add_u32 s{sNx}, s{sNx}, 16384',None))
                    if st==0 and mt==3:
                        for i in range(5): fill.append((f'v_add_u32 v{vBn+i}, s{sNx}, v{vB0+i}',None))
                    if st==1 and mt==3:
                        for i in range(5): fill.append((f'v_mov_b32 v{vBc+i}, v{vBn+i}',None))
                    for c in range(4):
                        x=xf(gi); w=wf(st,c); ac=acc(t,c,mt)
                        if emit:
                            if v==0: a(f'v_mfma_f32_16x16x32_bf16 {vr(ac,4)}, {vr(w,4)}, {vr(x,4)}, {vr(ac,4)}')
                            else:    a(f'v_mfma_f32_16x16x32_bf16 {vr(ac,4)}, {vr(x,4)}, {vr(w,4)}, {vr(ac,4)}')
                        k=1 if c<3 else len(fill)
                        if len(fill)>4 and c<3: k=2
                        while k>0 and fill:
                            tx,tag=fill.pop(0); k-=1
                            if emit: a(tx)
                            if tag: issued.append(tag)
                    if st==0 and mt==SY and emit:
                        if t==1:
                            a(f's_cmp_eq_u32 s{sIT}, 8'); a(f's_cbranch_scc0 L_p1_nw{v}'); a('s_waitcnt vmcnt(0)'); a.lab(f'L_p1_nw{v}')
                        a('s_barrier')
            return waits
        pro=[('w',0)]*8+[('x',i) for i in range(D)]
        iss=list(pro); w1=body(False,iss,0); w2=body(False,iss,0)
        wmin=[min(x,y) for x,y in zip(w1,w2)]
        a(f's_mov_b32 s{sIdx}, 0')
        for c in range(4):
            a(wread(False,0,0,c,0)); a(wread(False,0,0,c,1))
        for i in range(D): a(xread(False,0,i,i))
        for t in range(2):
            a(f's_mov_b32 s{sIT}, 10')
            a.lab(f'L_p1_loop{v}_{t}')
            body(True,list(pro),t)
            a(f's_sub_u32 s{sIT}, s{sIT}, 1')
            a(f's_cmp_lg_u32 s{sIT}, 0')
            a(f's_cbranch_scc1 L_p1_loop{v}_{t}')
            a('s_nop 7')
            if t==0:
                epilogue(v,0,1) if v==0 else epilogue(v,0,1)
            else:
                p.stamp(3)
                a('s_waitcnt lgkmcnt(0)')
                q_issue(a)
                epilogue(v,1,0)
        a('s_mov_b32 s49, 8')
        a('s_branch L_p1_done')
    a.lab('L_p1_loader')
    sLd=29
    a(f's_sub_u32 s{sLd}, s{sWV}, 4')
    a(f's_mul_i32 s{st3}, s{st3}, 5')
    a(f's_lshr_b32 s{st3}, s{st3}, 2')
    a(f's_mul_i32 s{st1}, s{st1}, 5')
    a(f's_lshr_b32 s{st1}, s{st1}, 1')
    a(f's_add_u32 s{sKS}, s{st3}, s{st1}')
    a(f's_cmp_ge_u32 s{sKS}, 10')
    a(f's_cselect_b32 s{st0}, 10, 0')
    a(f's_sub_u32 s{sKS}, s{sKS}, s{st0}')
    a(f's_lshl_b32 s{sLW}, s{sLd}, 12')
    a(f's_lshl_b32 s{sLX}, s{sLd}, 12')
    a(f's_add_u32 s{sLX}, s{sLX}, {XOFF}')
    a(f'v_lshrrev_b32 v{vt0}, 4, v{vLane}')
    a(f'v_bfe_u32 v{vt1}, v{vLane}, 1, 3')
    a(f'v_and_b32 v2, 1, v{vLane}')
    a(f's_lshl_b32 s{st2}, s{sLd}, 4')
    a(f's_lshl_b32 s{st1}, s{sNT}, 8')
    for jj in range(2):
        a(f'v_add_u32 v3, {4*jj}, v{vt0}')
        a(f'v_xor_b32 v3, v3, v{vt1}')
        a(f'v_lshl_add_u32 v4, v3, 1, v2')
        a(f'v_lshlrev_b32 v4, 4, v4')
        a(f'v_add_u32 v{vLW+jj}, s{st2}, v{vt0}')
        if jj: a(f'v_add_u32 v{vLW+jj}, 8, v{vLW+jj}')
        a(f'v_mul_u32_u24 v{vLW+jj}, 3840, v{vLW+jj}')
        a(f'v_add3_u32 v{vLW+jj}, v{vLW+jj}, v4, s{st1}')
    a(f'v_lshrrev_b32 v{vt0}, 3, v{vLane}')
    a(f'v_and_b32 v{vt1}, 7, v{vLane}')
    a(f's_lshl_b32 s{st0}, s{sMT}, 7')
    a(f's_lshl_b32 s{st1}, s{sLd}, 5')
    a(f's_add_u32 s{st0}, s{st0}, s{st1}')
    for uu in range(2):
        a(f'v_lshrrev_b32 v2, 1, v{vt0}')
        if uu: a(f'v_add_u32 v2, 4, v2')
        a(f'v_xor_b32 v2, v2, v{vt1}')
        a(f'v_add_u32 v3, s{st0}, v{vt0}')
        if uu: a(f'v_add_u32 v3, 8, v3')
        a(f'v_mul_u32_u24 v3, 1280, v3')
        a(f'v_lshl_add_u32 v{vLX+uu}, v2, 4, v3')
    a('s_waitcnt lgkmcnt(0)')
    srd(a,sX,20,21,2048*1280)
    srd(a,sW,22,23,640*3840)
    NL=8
    def wstep():
        a(f's_mul_i32 s{sW0}, s{sKS}, {64*3840}')
        a(f's_lshl_b32 s{sXo}, s{sKS}, 7')
        slotbase(sSlot,sIdx)
        a(f's_add_u32 s{st0}, s{sSlot}, s{sLW}')
        a(f's_add_u32 s{st1}, s{sSlot}, s{sLX}')
        for j in range(4):
            a(f's_add_u32 m0, s{st0}, {j*1024}')
            if j&1: a(f's_add_u32 s{st2}, s{sW0}, {4*3840}')
            a(f'buffer_load_dwordx4 v{vLW+(j>>1)}, s[{sW}:{sW+3}], s{st2 if j&1 else sW0} offen {LP} lds')
            a(f's_add_u32 m0, s{st1}, {j*1024}')
            if j==2: a(f's_add_u32 s{sXo}, s{sXo}, 20480')
            a(f'buffer_load_dwordx4 v{vLX+(j&1)}, s[{sX}:{sX+3}], s{sXo} offen {LP} lds')
        a(f's_add_u32 s{sKS}, s{sKS}, 1')
        a(f's_cmp_eq_u32 s{sKS}, 10')
        a(f's_cselect_b32 s{sKS}, 0, s{sKS}')
        a(f's_add_u32 s{sIdx}, s{sIdx}, 1')
        a(f's_and_b32 s{sIdx}, s{sIdx}, 3')
    a(f's_mov_b32 s{sIdx}, 0')
    wstep()
    if EARLY2: wstep()
    a(f's_waitcnt vmcnt({NL if EARLY2 else 0})')
    a('s_barrier')
    if not EARLY2: wstep()
    wstep()
    p2_early(a,'l')
    a(f's_mov_b32 s{sIT}, 0')
    a.lab('L_p1_ld_loop')
    a(f's_cmp_ge_u32 s{sIT}, 18'); a('s_cbranch_scc1 L_p1_ld_w0')
    a(f's_waitcnt vmcnt({NL})')
    a('s_branch L_p1_ld_w1')
    a.lab('L_p1_ld_w0')
    a(f's_cmp_lg_u32 s{sIT}, 18'); a('s_cbranch_scc1 L_p1_ld_w1')
    a('s_waitcnt vmcnt(0)')
    a(f's_cmp_lg_u32 s{sWV}, 4'); a('s_cbranch_scc1 L_p1_ld_w1')
    poll_f1(a,'b',1)
    a.lab('L_p1_ld_w1')
    a('s_barrier')
    a(f's_cmp_lg_u32 s{sWV}, 4'); a('s_cbranch_scc1 L_p1_ld_h1')
    a(f's_cmp_lg_u32 s{sIT}, 8'); a('s_cbranch_scc1 L_p1_ld_h0')
    gettok(a,'p1',None)
    a.lab('L_p1_ld_h0')
    a(f's_cmp_lg_u32 s{sIT}, 12'); a('s_cbranch_scc1 L_p1_ld_h1')
    a(f's_add_u32 s50, s{sNT}, 15')
    a('s_lshl_b32 s50, s50, 4')
    a(f's_add_u32 s50, s50, s{sMT}')
    a('s_lshl_b32 s50, s50, 7')
    setflag(a,50)
    a.lab('L_p1_ld_h1')
    a(f's_cmp_lg_u32 s{sIT}, 7'); a('s_cbranch_scc1 L_p1_ld_h2')
    srd(a,sX,16,17,2048*1280)
    srd(a,sW,18,19,640*3840)
    a.lab('L_p1_ld_h2')
    a(f's_cmp_ge_u32 s{sIT}, 17'); a('s_cbranch_scc1 L_p1_ld_skip')
    wstep()
    a.lab('L_p1_ld_skip')
    a(f's_cmp_lg_u32 s{sIT}, 18'); a('s_cbranch_scc1 L_p1_ld_h3')
    a(f's_lshl_b32 s48, s{sLd}, 11')
    q_issue(a)
    kv_first(a,[(48,0),(48,1024)],(0,HALF,8192,HALF+8192,16384,24576,32768))
    a.lab('L_p1_ld_h3')
    a(f's_cmp_lg_u32 s{sIT}, 19'); a('s_cbranch_scc1 L_p1_ld_h4')
    kv_first(a,[(48,0),(48,1024)],(HALF+16384,HALF+24576,HALF+32768))
    a.lab('L_p1_ld_h4')
    a(f's_add_u32 s{sIT}, s{sIT}, 1')
    a(f's_cmp_lt_u32 s{sIT}, 20')
    a('s_cbranch_scc1 L_p1_ld_loop')
    a(f's_lshl_b32 s49, s{sNT}, 4')
    a(f's_add_u32 s49, s49, s{sMT}')
    a('s_lshl_b32 s49, s49, 7')
    a('s_or_b32 s49, s49, 0x80000000')
    a('s_branch L_p1_done')
    a.lab('L_p1_skip')
    p2_early(a,'s')
    a('s_waitcnt lgkmcnt(0)')
    a(f's_cmp_lg_u32 s{sWV}, 4'); a('s_cbranch_scc1 L_p1_sk1')
    gettok(a,'p1s',None)
    poll_f1(a,'bs',1)
    a.lab('L_p1_sk1')
    a('s_barrier')
    a(f's_lshl_b32 s48, s{sWV}, 10')
    q_issue(a)
    kv_first(a,[(48,0)],(0,HALF,8192,HALF+8192,16384,24576,32768,HALF+16384,HALF+24576,HALF+32768))
    a('s_mov_b32 s49, 0')
    a.lab('L_p1_done')
    return vEnd

def gettok(a,tag,wave=4):
    if wave is not None:
        a(f's_cmp_lg_u32 s{sWV}, {wave}')
        a(f's_cbranch_scc1 L_tokd_{tag}')
    a('s_mov_b32 s58, 0x40000')
    a('v_mov_b32 v2, 0')
    a.lab(f'L_tok_{tag}')
    a(f'global_load_dword v3, v2, s[{sDBG}:{sDBG+1}] sc1')
    a('s_waitcnt vmcnt(0)')
    a(f'v_readfirstlane_b32 s{sTOK}, v3')
    a('s_nop 3')
    a(f's_cmp_lg_u32 s{sTOK}, 0')
    a(f's_cbranch_scc1 L_tokd_{tag}')
    a('s_sleep 4')
    a('s_sub_u32 s58, s58, 1')
    a('s_cmp_lg_u32 s58, 0')
    a(f's_cbranch_scc1 L_tok_{tag}')
    a.lab(f'L_tokd_{tag}')
def setflag(a,soff):
    a(f's_add_u32 s{soff}, s{soff}, {WS_FLG}')
    a('s_mov_b64 exec, 1')
    a(f'v_mov_b32 v2, s{soff}')
    a(f'v_mov_b32 v3, s{sTOK}')
    a(f'global_store_dword v2, v3, s[{sWS}:{sWS+1}] sc1')
    a('s_mov_b64 exec, -1')
def poll2(a,tag,va,vb,mask):
    a('s_mov_b32 s58, 0x40000')
    a.lab(f'L_poll_{tag}')
    a(f'global_load_dword v3, v{va}, s[{sWS}:{sWS+1}] sc1')
    a(f'global_load_dword v4, v{vb}, s[{sWS}:{sWS+1}] sc1')
    a('s_waitcnt vmcnt(0)')
    a(f'v_cmp_eq_u32 s[56:57], s{sTOK}, v3')
    a(f'v_cmp_eq_u32 vcc, s{sTOK}, v4')
    a('s_nop 4')
    a('s_and_b64 s[56:57], s[56:57], vcc')
    a(f's_and_b32 s56, s56, {mask&0xffffffff:#x}')
    a(f's_and_b32 s57, s57, {mask>>32:#x}')
    a(f's_cmp_lg_u32 s56, {mask&0xffffffff:#x}')
    a(f's_cbranch_scc1 L_polln_{tag}')
    a(f's_cmp_eq_u32 s57, {mask>>32:#x}')
    a(f's_cbranch_scc1 L_polld_{tag}')
    a.lab(f'L_polln_{tag}')
    a('s_sleep 1')
    a('s_sub_u32 s58, s58, 1')
    a('s_cmp_lg_u32 s58, 0')
    a(f's_cbranch_scc1 L_poll_{tag}')
    a.lab(f'L_polld_{tag}')
POLLC=dict(sl=2,pol='sc1',pre=0)
def poll(a,tag,vaddr,offs,mask):
    a('s_mov_b32 s58, 0x40000')
    for _ in range(POLLC['pre']): a('s_sleep 8')
    a.lab(f'L_poll_{tag}')
    for i,o in enumerate(offs):
        a(f'global_load_dword v{vaddr+1+i}, v{vaddr}, s[{sWS}:{sWS+1}] offset:{o} {POLLC["pol"]}')
    a('s_waitcnt vmcnt(0)')
    a(f'v_cmp_eq_u32 s[56:57], s{sTOK}, v{vaddr+1}')
    if len(offs)>1:
        a(f'v_cmp_eq_u32 vcc, s{sTOK}, v{vaddr+2}')
        a('s_nop 4')
        a('s_and_b64 s[56:57], s[56:57], vcc')
    else:
        a('s_nop 4')
    a(f's_and_b32 s56, s56, {mask&0xffffffff:#x}')
    a(f's_and_b32 s57, s57, {mask>>32:#x}')
    a(f's_cmp_lg_u32 s56, {mask&0xffffffff:#x}')
    a(f's_cbranch_scc1 L_polln_{tag}')
    a(f's_cmp_eq_u32 s57, {mask>>32:#x}')
    a(f's_cbranch_scc1 L_polld_{tag}')
    a.lab(f'L_polln_{tag}')
    a(f's_sleep {POLLC["sl"]}')
    a('s_sub_u32 s58, s58, 1')
    a('s_cmp_lg_u32 s58, 0')
    a(f's_cbranch_scc1 L_poll_{tag}')
    a.lab(f'L_polld_{tag}')

def phase2(a,p,PRIO=0,BSH=0,NOHOOK=0,SPRIO=0,FP2=7):
    TILE=2560; HALF=81920; WOFF=40960; SCR=81920
    sR,sOo,sWo=4,8,12
    sHD,sJ,sQP,sKH=16,17,18,19
    st0,st1,st2,st3=20,21,22,23
    sVm=24; sLo=26
    sIT=28; sHB=29; sHBw=30; sOl=31; sOh=32; sLl=33; sQA=34; sSw=35; sAg=36; sOB=37; sOA=50; sNeed=39
    sTm=40
    sKV=44
    sOff=31; sInc=32
    sWn=48
    sWl=39
    vLane=1; vt0=2; vt1=3; vt2=4; vt3=5; vM=10; vt4=14; vt5=15
    vK1a,vK2a,vVa,vVb,vDma,vRho,vOoff,vOo2,vQ1o,vQ2o,vWo,vKap=P2C
    vQa1=16; vQab=20; vQa2=22; vQb1=24; vK1=28; vK2=32; vMb=35
    vV=36; vP=52; vQA2=60; vCc=63
    vSa=64; vSb=80; vOa=96; vOb=112; vCa=128; vCb=144; vMF=P2M; vML=P2M+16; vQA1=192
    vS1=160
    vEnd=256
    a(f's_load_dwordx2 s[50:51], s[0:1], 16')
    a(f's_load_dwordx2 s[52:53], s[0:1], 40')
    a(f's_and_b32 s{st0}, s{sWG}, 7')
    a(f's_lshr_b32 s{st1}, s{sWG}, 3')
    a(f's_lshl_b32 s{sHD}, s{st0}, 2')
    a(f's_lshr_b32 s{st2}, s{st1}, 3')
    a(f's_add_u32 s{sHD}, s{sHD}, s{st2}')
    a(f's_and_b32 s{sJ}, s{st1}, 7')
    a(f's_and_b32 s{sQP}, s{sWV}, 3')
    a(f's_lshr_b32 s{sKH}, s{sWV}, 2')
    a(f's_mul_i32 s{sHB}, s{sHD}, {64*TILE}')
    a(f's_add_u32 s{sAg}, s{sHB}, {WS_KV-20480}')
    a(f's_add_u32 s{sHB}, s{sHB}, {WS_KV+32*64*TILE}')
    a(f's_mul_i32 s{st0}, s{sJ}, 20480')
    a(f's_add_u32 s{sAg}, s{sAg}, s{st0}')
    a(f's_mov_b32 s{sVm}, 0xfffff')
    a(f's_mov_b32 s{sVm+1}, 0xfffff')
    a(f's_mov_b32 s{sLo}, -1')
    a(f's_mov_b32 s{sLo+1}, 0')
    a(f's_lshl_b32 s{st0}, s{sJ}, 3')
    a(f's_lshl_b32 s{st1}, s{sHD}, 6')
    a(f's_add_u32 s{st1}, s{st1}, s{st0}')
    a(f's_add_u32 s{st2}, s{st1}, s{sWV}')
    a(f's_mul_i32 s{sQA}, s{st2}, 1280')
    a(f's_lshl_b32 s{st2}, s{sQP}, 1')
    a(f's_add_u32 s{st2}, s{st2}, s{sKH}')
    a(f's_add_u32 s{st2}, s{st2}, s{st0}')
    a(f's_lshl_b32 s{sOB}, s{st2}, 15')
    a(f's_add_u32 s{sOB}, s{sOB}, {2048*1280}')
    a(f's_lshl_b32 s{sOB+1}, s{st2}, 13')
    a(f's_add_u32 s{sOB+1}, s{sOB+1}, {2048*1280+128*16384}')
    srd(a,sR,sWS,sWS+1,WS_O)
    a(f's_add_u32 s56, s{sWS}, {WS_O}')
    a(f's_addc_u32 s57, s{sWS+1}, 0')
    srd(a,sOo,56,57,WS_END-WS_O)
    a(f's_add_u32 s{sKV}, s{sWS}, s{sHB}')
    a(f's_addc_u32 s{sKV+1}, s{sWS+1}, 0')
    a(f's_and_b32 s{sKV+1}, s{sKV+1}, 0xffff')
    a(f's_mov_b32 s{sKV+2}, 163840')
    a(f's_mov_b32 s{sKV+3}, 0x20000')
    a(f's_lshl_b32 s{sOff}, s{sWV}, 10')
    a(f's_add_u32 s{sOff}, s{sOff}, 40960')
    a(f's_mov_b32 s{sInc}, {HALF}')
    a(f's_mov_b32 s{sInc+1}, {(8192-HALF)&0xffffffff}')
    def vinit():
        a(f'v_cmp_eq_u32 s[{sTm}:{sTm+1}], 20, v{vRho}')
        a(f'v_mov_b32 v{vt1}, 0x3f803f80')
        a('s_nop 0')
        a(f'v_cndmask_b32 v{vt1}, 0, v{vt1}, s[{sTm}:{sTm+1}]')
        for i in range(16): a(f'v_mov_b32 v{vV+i}, v{vt1}')
    vinit()
    for r in range(16): a(f'v_mov_b32 v{vOa+r}, 0')
    for r in range(16): a(f'v_mov_b32 v{vOb+r}, 0')
    for i in range(4): a(f'v_mov_b32 v{vP+4+i}, 0')
    a(f's_lshl_b32 s{sWl}, s{sWV}, 10')
    a(f's_add_u32 s{sWl}, s{sWl}, {WOFF}')
    a(f's_and_b32 s{sWn}, s{sHD}, 7')
    a(f's_mul_i32 s{sWn}, s{sWn}, 160')
    a('s_waitcnt lgkmcnt(0)')
    a(f's_cmp_lt_u32 s{sHD}, 16')
    a('s_cselect_b64 s[50:51], s[50:51], s[52:53]')
    srd(a,sWo,50,51,640*1280)
    p.stamp(5)

    def rd_k1(dst,off):
        assert off%512==0 and off//512+1<256
        a(f'ds_read2st64_b64 {vr(dst,4)}, v{vK1a} offset0:{off//512} offset1:{off//512+1}')
    def rd_k2(dst,off): a(f'ds_read_b64 {vr(dst,2)}, v{vK2a} offset:{off}')
    def rd_v(buf,off):
        a(f's_mov_b64 exec, s[{sVm}:{sVm+1}]')
        a(f'ds_read_b128 {vr(vV+8*buf,4)}, v{vVa} offset:{off}')
        a(f'ds_read_b128 {vr(vV+8*buf+4,4)}, v{vVb} offset:{off}')
        a('s_mov_b64 exec, -1')
    def qk1(S,C,Q1,K=None): a(f'v_mfma_f32_32x32x16_bf16 {vr(S,16)}, {vr(vK1 if K is None else K,4)}, {vr(Q1,4)}, {C}')
    def qk2(S,Q2,K=None): a(f'v_mfma_f32_32x32x8bf16_1k {vr(S,16)}, {vr(vK2 if K is None else K,2)}, {vr(Q2,2)}, {vr(S,16)}')
    def qk2b(S): a(f'v_mfma_f32_32x32x4bf16_1k {vr(S,32)}, {vr(vK2,2)}, {vr(vQab,2)}, {vr(S,32)}')
    def pv(O,buf,t): a(f'v_mfma_f32_32x32x16_bf16 {vr(O,16)}, {vr(vV+8*buf+4*t,4)}, {vr(vP+4*t,4)}, {vr(O,16)}')
    def ex(S,r): a(f'v_exp_f32 v{S+r}, v{S+r}')
    def cv(S,c): a(f'v_cvt_pk_bf16_f32 v{vP+c}, v{S+2*c}, v{S+2*c+1}')
    def rowmax(M,S,first):
        if first:
            a(f'v_max3_f32 v{M}, v{S}, v{S+1}, v{S+2}'); rest=list(range(3,16))
        else: rest=list(range(16))
        while len(rest)>=2:
            a(f'v_max3_f32 v{M}, v{M}, v{S+rest[0]}, v{S+rest[1]}'); rest=rest[2:]
        if rest: a(f'v_max_f32 v{M}, v{M}, v{S+rest[0]}')
    def xhalf_max(M):
        a(f'v_mov_b32 v{vt1}, v{M}')
        a('s_nop 1')
        a(f'v_permlane32_swap_b32 v{M}, v{vt1}')
        a('s_nop 1')
        a(f'v_max_f32 v{M}, v{M}, v{vt1}')
    def get_l():
        a(f'v_mov_b32 v{vt1}, v{vOa+8}')
        a(f'v_mov_b32 v{vt2}, v{vOa+8}')
        a('s_nop 1')
        a(f'v_permlane32_swap_b32 v{vt1}, v{vt2}')
        a('s_nop 1')
    def store_o(soff):
        a(f'v_rcp_f32 v{vt3}, v{vt2}')
        a(f's_lshr_b32 s{st0}, s{sHD}, 1')
        a(f's_lshl_b32 s{st0}, s{st0}, 10')
        a(f's_and_b32 s{st1}, s{sHD}, 1')
        a(f's_lshl_b32 s{st1}, s{st1}, 9')
        a(f's_add_u32 s{st0}, s{st0}, s{st1}')
        a(f's_add_u32 s{st0}, s{st0}, s{soff}')
        for i in range(12): a(f'v_mul_f32 v{vOa+i}, v{vOa+i}, v{vt3}')
        for i in range(6): a(f'v_cvt_pk_bf16_f32 v{vSa+i}, v{vOa+2*i}, v{vOa+2*i+1}')
        a(f'buffer_store_dwordx4 {vr(vSa,4)}, v{vOoff}, s[{sOo}:{sOo+3}], s{st0} offen {SC}')
        a(f's_lshl_b32 s{st0}, s{sHD}, 7')
        a(f's_add_u32 s{st0}, s{st0}, s{soff+1}')
        a(f's_mov_b64 exec, s[{sLo}:{sLo+1}]')
        a(f'buffer_store_dwordx2 {vr(vSa+4,2)}, v{vOo2}, s[{sOo}:{sOo+3}], s{st0} offen {SC}')
        a('s_mov_b64 exec, -1')
    def addr_add(s):
        for r in (vK1a,vK2a,vVa,vVb): a(f'v_add_u32 v{r}, s{s}, v{r}')
    def addr_addi(imm):
        for r in (vK1a,vK2a,vVa,vVb): a(f'v_add_u32 v{r}, {imm}, v{r}')
    def dma_row(k):
        a(f's_mov_b32 m0, s{sOff}')
        a(f'buffer_load_dwordx4 v{vDma}, s[{sKV}:{sKV+3}], s{sOff} offen {SL} lds')
        a(f's_add_u32 s{sOff}, s{sOff}, s{sInc+(k&1)}')
    def dma_pair():
        dma_row(0); dma_row(1)
    def prio_switch(phase,L):
        a(f's_cmp_lt_u32 s{sWV}, 4')
        a(f's_cbranch_scc{1-phase} {L}_hi')
        a('s_setprio 0')
        a(f's_branch {L}_d')
        a.lab(f'{L}_hi')
        a('s_setprio 1')
        a.lab(f'{L}_d')
    def expgroups(cur,A_,B_,C_,D_):
        A_()
        for r in range(0,4): ex(cur,r)
        B_()
        ex(cur,4); ex(cur,5); cv(cur,0); ex(cur,6); cv(cur,1); ex(cur,7)
        C_()
        ex(cur,8); cv(cur,2); ex(cur,9); cv(cur,3); ex(cur,10); ex(cur,11)
        D_()
        ex(cur,12); ex(cur,13); cv(cur,4); ex(cur,14); cv(cur,5); ex(cur,15); cv(cur,6); cv(cur,7)

    a('s_cmp_eq_u32 s49, 8')
    a('s_cbranch_scc1 L_p2_w8')
    a('s_cmp_eq_u32 s49, 0')
    a('s_cbranch_scc1 L_p2_w6')
    a('s_waitcnt vmcnt(12)')
    a('s_branch L_p2_wd')
    a.lab('L_p2_w6')
    a('s_waitcnt vmcnt(6)')
    a('s_branch L_p2_wd')
    a.lab('L_p2_w8')
    a('s_waitcnt vmcnt(8)')
    a.lab('L_p2_wd')
    a('s_barrier')
    p.stamp(7)
    rd_k1(vK1,0); rd_k2(vK2,0)
    a('s_waitcnt lgkmcnt(0)')
    qk1(vSa,'0',vQa1); qk1(vSb,'0',vQb1)
    a(f's_mul_i32 s{st0}, s{sKH}, {HALF}')
    addr_add(st0)
    a('s_nop 5')
    qk2b(vSa)
    rd_k1(vK1,0); rd_k2(vK2,0); rd_v(0,0)
    a('s_nop 15')
    a('s_nop 3')
    rowmax(vM,vSa,True)
    rowmax(vMb,vSb,True)
    xhalf_max(vM); xhalf_max(vMb)
    for r in range(16): a(f'v_sub_f32 v{vCa+r}, 0, v{vM}')
    for r in range(16): a(f'v_sub_f32 v{vCb+r}, 0, v{vMb}')
    a('s_waitcnt lgkmcnt(0)')
    qk1(vSa,vr(vCa,16),vQa1); qk1(vSb,vr(vCb,16),vQb1)
    rd_k1(vK1,TILE)
    a('s_nop 9')
    qk2b(vSa)
    rd_k2(vK2,TILE)
    a(f's_mov_b32 s{sIT}, 0')
    if SPRIO:
        a(f's_cmp_lt_u32 s{sWV}, 4'); a('s_cbranch_scc1 L_sp'); a('s_setprio 1'); a.lab('L_sp')
    a.raw('.p2align 6')
    for _ in range(BSH): a('s_nop 0')
    a.lab('L_b_loop')
    ool=[]
    def cond(it,L,fn):
        a(f's_cmp_eq_u32 s{sIT}, {it}'); a(f's_cbranch_scc1 {L}'); a.lab(L+'_r')
        ool.append((L,fn))
    SP=[vSa,vS1]
    for pp in range(8):
        off=pp*TILE
        if pp==2:
            a(f's_cmp_lt_u32 s{sIT}, 2'); a('s_cbranch_scc1 L_h2'); a.lab('L_h2_r')
            def h2():
                a(f's_cmp_eq_u32 s{sIT}, 1'); a('s_cbranch_scc1 L_h2b')
                a('s_waitcnt vmcnt(2)'); a('s_barrier')
                a(f's_cmp_lg_u32 s{sWV}, 4'); a('s_cbranch_scc1 L_h2_r')
                a('s_cmp_lt_i32 s49, 0'); a('s_cbranch_scc0 L_h2_r')
                a('s_and_b32 s50, s49, 0x7fffffff')
                setflag(a,50)
                a('s_branch L_h2_r')
                a.lab('L_h2b')
                a(f's_mov_b32 s{sOff}, 200000'); a(f's_mov_b32 s{sInc}, 0'); a(f's_mov_b32 s{sInc+1}, 0')
            ool.append(('L_h2',h2))
        if pp==6:
            def h6():
                a(f's_mov_b32 s{sOff}, 200000'); a(f's_mov_b32 s{sInc}, 0'); a(f's_mov_b32 s{sInc+1}, 0')
            cond(3,'L_h6',h6)
        dma_row(pp)
        cur=SP[pp&1]; nxt=SP[(pp+1)&1]
        a('s_waitcnt lgkmcnt(0)')
        expgroups(cur,
            lambda: qk1(nxt,vr(vCa,16),vQa1),
            lambda: (pv(vOb,(pp+1)&1,1), rd_v((pp+1)&1,off+TILE)),
            lambda: (qk1(nxt+16,vr(vCb,16),vQb1), rd_k1(vK1,off+2*TILE)),
            lambda: pv(vOa,pp&1,0))
        expgroups(cur+16,
            lambda: (qk2b(nxt), rd_k2(vK2,off+2*TILE)),
            lambda: None,
            lambda: pv(vOa,pp&1,1),
            lambda: pv(vOb,pp&1,0))
    a(f's_cmp_eq_u32 s{sIT}, 3'); a('s_cbranch_scc1 L_b_exit')
    a(f's_cmp_eq_u32 s{sIT}, 1'); a('s_cbranch_scc1 L_bb1')
    a(f's_cmp_eq_u32 s{sIT}, 2'); a('s_cbranch_scc1 L_bb2')
    a('s_waitcnt vmcnt(2)'); a('s_barrier')
    a.lab('L_bb_r')
    def bb1():
        a('s_waitcnt vmcnt(0)'); a('s_barrier')
        a(f's_mov_b32 s{sKV+2}, 0')
        gettok(a,'a',0)
        a('s_branch L_bb_r')
    def bb2():
        a(f's_cmp_lg_u32 s{sWV}, 0'); a('s_cbranch_scc1 L_bb2a')
        poll_f1(a,'a',0)
        a.lab('L_bb2a')
        a('s_waitcnt vmcnt(0)'); a('s_barrier')
        a(f's_add_u32 s{sKV}, s{sWS}, s{sAg}')
        a(f's_addc_u32 s{sKV+1}, s{sWS+1}, 0')
        a(f's_and_b32 s{sKV+1}, s{sKV+1}, 0xffff')
        a(f's_mov_b32 s{sKV+2}, 40960')
        a(f's_lshl_b32 s{sOff}, s{sWV}, 10')
        a(f's_sub_u32 s{sOff}, s{sOff}, 8192')
        a(f's_mov_b32 s{sInc}, 8192')
        a(f's_mov_b32 s{sInc+1}, 8192')
        a(f'buffer_load_dwordx2 {vr(vQA1,2)}, v{vQ1o}, s[{sR}:{sR+3}], s{sQA} offen {SL}')
        a(f'buffer_load_dwordx2 {vr(vQA1+2,2)}, v{vQ1o}, s[{sR}:{sR+3}], s{sQA} offen offset:512 {SL}')
        a(f'buffer_load_dwordx2 {vr(vQA2,2)}, v{vQ2o}, s[{sR}:{sR+3}], s{sQA} offen {SL}')
        a('s_branch L_bb_r')
    ool.append(('L_bb1',bb1)); ool.append(('L_bb2',bb2))
    addr_addi(8*TILE)
    if PROF and BPROF==1:
        for k in range(4):
            a(f's_cmp_lg_u32 s{sIT}, {k}'); a(f's_cbranch_scc1 L_st{k}'); p.stamp(1+k); a.lab(f'L_st{k}')
    a(f's_add_u32 s{sIT}, s{sIT}, 1')
    a('s_branch L_b_loop')
    a.lab('L_b_exit')
    addr_addi(8*TILE)
    a('s_nop 1')
    pv(vOb,1,1)
    a('s_setprio 0')
    a('s_nop 15')
    p.stamp(8)
    a(f's_lshl_b32 s{st0}, s{sQP}, 1')
    a(f's_cmp_eq_u32 s{sKH}, 0')
    a('s_cbranch_scc0 L_mg_hi')
    a(f's_add_u32 s{st1}, s{st0}, 1')
    a(f's_mul_i32 s{st1}, s{st1}, 3072')
    a(f's_add_u32 s{st1}, s{st1}, {SCR}')
    a(f'v_add_u32 v{vt4}, s{st1}, v{vDma}')
    for i in range(3): a(f'ds_write_b128 v{vt4}, {vr(vOb+4*i,4)} offset:{1024*i}')
    a(f's_mul_i32 s{st1}, s{st0}, 3072')
    a('s_branch L_mg_d')
    a.lab('L_mg_hi')
    a(f's_mul_i32 s{st1}, s{st0}, 3072')
    a(f's_add_u32 s{st1}, s{st1}, {SCR}')
    a(f'v_add_u32 v{vt4}, s{st1}, v{vDma}')
    for i in range(3): a(f'ds_write_b128 v{vt4}, {vr(vOa+4*i,4)} offset:{1024*i}')
    for i in range(12): a(f'v_mov_b32 v{vOa+i}, v{vOb+i}')
    for i in range(4): a(f'v_mov_b32 v{vQa1+i}, v{vQb1+i}')
    a(f's_add_u32 s{st1}, s{st0}, 1')
    a(f's_mul_i32 s{st1}, s{st1}, 3072')
    a.lab('L_mg_d')
    a(f's_add_u32 s{st1}, s{st1}, {SCR}')
    a(f'v_add_u32 v{vt4}, s{st1}, v{vDma}')
    a('s_waitcnt lgkmcnt(0) vmcnt(0)')
    a('s_barrier')
    for i in range(3): a(f'ds_read_b128 {vr(vSa+4*i,4)}, v{vt4} offset:{1024*i}')
    a('s_waitcnt lgkmcnt(0)')
    a('s_barrier')
    for i in range(12): a(f'v_add_f32 v{vOa+i}, v{vOa+i}, v{vSa+i}')
    get_l()
    a(f'v_mov_b32 v{vt3}, {f32bits(2.0**100):#x}')
    a(f'v_cmp_nlt_f32 vcc, v{vt2}, v{vt3}')
    a('s_nop 4')
    a('s_cbranch_vccnz L_b_fallback')
    a.lab('L_b_store')
    store_o(sOB)
    p.stamp(9)
    a(f's_mul_i32 s{st0}, s{sWV}, {TILE}')
    a(f's_mul_i32 s{st1}, s{sKH}, {HALF}')
    a(f's_sub_u32 s{st0}, s{st0}, s{st1}')
    a(f's_sub_u32 s{st0}, s{st0}, {32*TILE}')
    addr_add(st0)
    a(f's_lshl_b32 s{st0}, s{sJ}, 3')
    a(f's_add_u32 s{st2}, s{st0}, s{sWV}')
    a(f's_lshl_b32 s{sOA}, s{st2}, 15')
    a(f's_lshl_b32 s{sOA+1}, s{st2}, 13')
    a(f's_add_u32 s{sOA+1}, s{sOA+1}, {128*16384}')
    for i in range(4): a(f'v_mov_b32 v{vQa1+i}, v{vQA1+i}')
    for i in range(2): a(f'v_mov_b32 v{vQa2+i}, v{vQA2+i}')
    a(f's_sub_u32 s{sSw}, 8, s{sWV}')
    a(f's_cmp_lg_u32 s{sJ}, 0')
    a(f's_cselect_b32 s{sSw}, 0, s{sSw}')
    vC=vCa; vO=vOa; vS=[vSa,vSb]
    KR=[(vV,vV+4),(vV+8,vV+12),(vP,vP+4)]
    SB=[vSa,vSb,vOa]
    sRedo=30; sWoEn=55
    def cmid_init(tag,val,first):
        a(f's_cmp_le_u32 s{sSw}, {first}')
        a(f's_cbranch_scc1 L_cm_{tag}_v')
        for r in range(16): a(f'v_mov_b32 v{vC+r}, {NEG_BIG:#x}')
        a(f's_branch L_cm_{tag}_d')
        a.lab(f'L_cm_{tag}_v')
        for r in range(16): a(f'v_mov_b32 v{vC+r}, {val}')
        a.lab(f'L_cm_{tag}_d')
    def cmid_switch(tag,t,val):
        L=f'L_sw_{tag}_{t}'
        a(f's_cmp_eq_u32 s{sSw}, {t}')
        a(f's_cbranch_scc1 {L}')
        a.lab(L+'_r')
        def fn():
            a('s_nop 15')
            for r in range(16): a(f'v_mov_b32 v{vC+r}, {val}')
            a('s_nop 1')
        ool.append((L,fn))
    wocnt=[0]
    def wo_dma():
        if wocnt[0]>=10: return
        n=wocnt[0]; wocnt[0]+=1
        a(f's_cmp_lg_u32 s{sWoEn}, 0')
        a(f's_cbranch_scc0 L_wo{n}')
        for k in range(2):
            a(f's_mov_b32 m0, s{sWl}')
            a(f's_add_u32 s{sWl}, s{sWl}, 5120')
            a(f'buffer_load_dwordx4 v{vWo}, s[{sWo}:{sWo+3}], s{sWn} offen lds')
            a(f's_add_u32 s{sWn}, s{sWn}, 40960')
        a.lab(f'L_wo{n}')
    def maxpass(tag,tiles,dma):
        cmid_init(tag,'0',max(1,tiles[0]))
        nb=len(tiles)//3
        for i in range(3):
            rd_k1(KR[i][0],tiles[i]*TILE); rd_k2(KR[i][1],tiles[i]*TILE)
        for b in range(nb):
            a('s_waitcnt lgkmcnt(0)')
            for i in range(3):
                t=tiles[3*b+i]
                if max(1,tiles[0])<t<=7: cmid_switch(tag,t,'0')
                C = vr(vMF,16) if t==0 else (vr(vML,16) if t==8 else vr(vC,16))
                qk1(SB[i],C,vQa1,KR[i][0]); qk2(SB[i],vQa2,KR[i][1])
            if b<nb-1:
                for i in range(3):
                    t=tiles[3*(b+1)+i]
                    rd_k1(KR[i][0],t*TILE); rd_k2(KR[i][1],t*TILE)
            else:
                rd_k1(vK1,0); rd_k2(vK2,0)
            if dma: wo_dma()
            a('s_nop 7')
            for i in range(3):
                if i==2: a('s_nop 3')
                rowmax(vM,SB[i],b==0 and i==0)
    a(f's_mov_b32 s{sRedo}, 0')
    a(f's_cmp_lt_u32 s{sWV}, 5')
    a(f's_cselect_b32 s{sWoEn}, 1, 0')
    maxpass('p1',[6,7,8],True)
    a.lab('L_a_p2')
    xhalf_max(vM)
    a(f'v_sub_f32 v{vM}, 0, v{vM}')
    for r in range(16): a(f'v_add_f32 v{vMF+r}, v{vMF+r}, v{vM}')
    for r in range(16): a(f'v_add_f32 v{vML+r}, v{vML+r}, v{vM}')
    cmid_init('p2',f'v{vM}',1)
    for r in range(16): a(f'v_mov_b32 v{vO+r}, 0')
    vinit()
    for i in range(4): a(f'v_mov_b32 v{vP+4+i}, 0')
    a('s_waitcnt lgkmcnt(0)')
    qk1(vS[0],vr(vMF,16),vQa1); qk2(vS[0],vQa2)
    rd_k1(vK1,TILE); rd_v(0,0); rd_k2(vK2,TILE)
    for t in range(9):
        last=(t==8); last2=(t==7); tn=t+1
        cur=vS[t&1]; nxt=vS[(t+1)&1]; off=t*TILE
        Cn = vr(vML,16) if tn==8 else vr(vC,16)
        a('s_waitcnt lgkmcnt(0)')
        if 2<=tn<=7: cmid_switch('p2',tn,f'v{vM}')
        wo_dma()
        def A_():
            if not last: qk1(nxt,Cn,vQa1)
            if not last and not last2: rd_k1(vK1,off+2*TILE)
        def B_():
            pv(vO,(t+1)&1,1)
            if not last: rd_v((t+1)&1,off+TILE)
        def C_():
            if not last: qk2(nxt,vQa2)
            if not last and not last2: rd_k2(vK2,off+2*TILE)
        expgroups(cur,A_,B_,C_,lambda: pv(vO,t&1,0))
    A_CHECK=True
    assert wocnt[0]==10
    a('s_nop 1')
    pv(vO,0,1)
    a('s_nop 15')
    a('s_nop 0')
    get_l()
    a(f'v_mov_b32 v{vt3}, {f32bits(2.0**100):#x}')
    a(f'v_cmp_nlt_f32 vcc, v{vt2}, v{vt3}')
    a('s_nop 4')
    a('s_cbranch_vccnz L_a_exact')
    a.lab('L_a_store')
    store_o(sOA)
    p.stamp(10)
    a('s_waitcnt vmcnt(0)')
    a('s_barrier')
    p.stamp(11)
    a(f's_cmp_lg_u32 s{sWV}, 4')
    a('s_cbranch_scc1 L_p3')
    a(f's_lshl_b32 s{st0}, s{sJ}, 12')
    a(f's_lshl_b32 s{st1}, s{sHD}, {FP2}')
    a(f's_add_u32 s{st0}, s{st0}, s{st1}')
    a(f's_add_u32 s{st0}, s{st0}, 65536')
    setflag(a,st0)
    a(f's_lshl_b32 s{st0}, s{sJ}, 12')
    a(f's_add_u32 s{st0}, s{st0}, {WS_FLG+65536}')
    a(f'v_and_b32 v{vt0}, 31, v{vLane}')
    a(f'v_lshlrev_b32 v{vt0}, {FP2}, v{vt0}')
    a(f'v_add_u32 v{vt0}, s{st0}, v{vt0}')
    poll(a,'p3',vt0,[0],(1<<32)-1)
    a('s_barrier')
    a('s_branch L_done')
    a.lab('L_a_exact')
    a(f's_cmp_lg_u32 s{sRedo}, 0')
    a('s_cbranch_scc1 L_a_store')
    a(f's_mov_b32 s{sRedo}, 1')
    a(f's_mov_b32 s{sWoEn}, 0')
    for r in range(16): a(f'v_sub_f32 v{vMF+r}, v{vMF+r}, v{vM}')
    for r in range(16): a(f'v_sub_f32 v{vML+r}, v{vML+r}, v{vM}')
    maxpass('p1x',[0,1,2,3,4,5,6,7,8],False)
    a('s_branch L_a_p2')
    for L,fn in ool:
        a.lab(L); fn()
        if not L.startswith('L_bb'): a(f's_branch {L}_r')
    a.lab('L_b_fallback')
    for i in range(2):
        a(f'v_mov_b32 v{vt4}, v{vQab+i}')
        a(f'v_mov_b32 v{vt5}, v{vQab+i}')
        a('s_nop 1')
        a(f'v_permlane32_swap_b32 v{vt4}, v{vt5}')
        a(f's_cmp_eq_u32 s{sKH}, 0')
        a('s_cselect_b64 s[56:57], -1, 0')
        a('s_nop 1')
        a(f'v_cndmask_b32 v{vt4}, v{vt5}, v{vt4}, s[56:57]')
        a(f'v_cndmask_b32 v{vQa2+i}, 0, v{vt4}, s[{sLo}:{sLo+1}]')
    a(f'v_lshlrev_b32 v{vt4}, 3, v{vRho}')
    a(f'v_add_u32 v{vt4}, 1024, v{vt4}')
    a(f'v_lshrrev_b32 v{vt0}, 5, v{vLane}')
    a(f'v_bfe_u32 v{vt5}, v{vRho}, 2, 2')
    a(f'v_xor_b32 v{vt5}, v{vt5}, v{vt0}')
    a(f'v_lshlrev_b32 v{vt5}, 4, v{vt5}')
    a(f'v_lshl_add_u32 v{vt5}, v{vRho}, 6, v{vt5}')
    a(f'v_add_u32 v{vt5}, 1280, v{vt5}')
    a(f'v_xor_b32 v{vt0}, 32, v{vt5}')
    a(f'v_mov_b32 v{vM}, {NEG_BIG:#x}')
    a(f's_mov_b32 s{st0}, s{sHB}')
    a(f's_mov_b32 s{sIT}, 64')
    a.lab('L_fb_p1')
    a(f'buffer_load_dwordx2 {vr(vK1,2)}, v{vQ1o}, s[{sR}:{sR+3}], s{st0} offen {SL}')
    a(f'buffer_load_dwordx2 {vr(vK1+2,2)}, v{vQ1o}, s[{sR}:{sR+3}], s{st0} offen offset:512 {SL}')
    a(f'buffer_load_dwordx2 {vr(vK2,2)}, v{vt4}, s[{sR}:{sR+3}], s{st0} offen {SL}')
    a('s_waitcnt vmcnt(0)')
    qk1(vSa,'0',vQa1); qk2(vSa,vQa2)
    a('s_nop 15')
    rowmax(vM,vSa,False)
    a(f's_add_u32 s{st0}, s{st0}, {TILE}')
    a(f's_sub_u32 s{sIT}, s{sIT}, 1')
    a(f's_cmp_lg_u32 s{sIT}, 0')
    a('s_cbranch_scc1 L_fb_p1')
    xhalf_max(vM)
    for r in range(16): a(f'v_sub_f32 v{vCa+r}, 0, v{vM}')
    for r in range(16): a(f'v_mov_b32 v{vOa+r}, 0')
    a(f's_mov_b32 s{st0}, s{sHB}')
    a(f's_mov_b32 s{sIT}, 64')
    a.lab('L_fb_p2')
    a(f'buffer_load_dwordx2 {vr(vK1,2)}, v{vQ1o}, s[{sR}:{sR+3}], s{st0} offen {SL}')
    a(f'buffer_load_dwordx2 {vr(vK1+2,2)}, v{vQ1o}, s[{sR}:{sR+3}], s{st0} offen offset:512 {SL}')
    a(f'buffer_load_dwordx2 {vr(vK2,2)}, v{vt4}, s[{sR}:{sR+3}], s{st0} offen {SL}')
    a(f's_mov_b64 exec, s[{sVm}:{sVm+1}]')
    a(f'buffer_load_dwordx4 {vr(vV,4)}, v{vt5}, s[{sR}:{sR+3}], s{st0} offen {SL}')
    a(f'buffer_load_dwordx4 {vr(vV+4,4)}, v{vt0}, s[{sR}:{sR+3}], s{st0} offen {SL}')
    a('s_mov_b64 exec, -1')
    a('s_waitcnt vmcnt(0)')
    qk1(vSa,vr(vCa,16),vQa1); qk2(vSa,vQa2)
    a('s_nop 15')
    for r in range(16): ex(vSa,r)
    a('s_nop 0')
    for c in range(8): cv(vSa,c)
    a('s_nop 1')
    pv(vOa,0,0); pv(vOa,0,1)
    a(f's_add_u32 s{st0}, s{st0}, {TILE}')
    a(f's_sub_u32 s{sIT}, s{sIT}, 1')
    a(f's_cmp_lg_u32 s{sIT}, 0')
    a('s_cbranch_scc1 L_fb_p2')
    a('s_nop 15')
    get_l()
    a('s_branch L_b_store')
    return vEnd, dict(sHD=sHD,sJ=sJ)

def phase3(a,p,info,ROT3=3,XD=6):
    WOFF=40960
    sHD,sJ=info['sHD'],info['sJ']
    sX,sO=4,8
    st0,st1,st2,st3=20,21,22,23
    sPH=28; sBR=29; sMT=30; sNT=31
    vLane=1; vXo=2; vt0=4; vt1=5; vt2=6; vt3=7; vTok=8; vG=9; vTr=10; vOut=11; vTp=12; vTq=14; vX2=3
    vX=16; vWf=vX+160; vAcc=vWf+40; vEnd=vAcc+40
    a.lab('L_p3')
    a(f's_cmp_ge_u32 s{sWV}, 4')
    a('s_cbranch_scc1 L_done')
    a('s_load_dwordx2 s[50:51], s[0:1], 48')
    a(f's_lshr_b32 s{sBR}, s{sHD}, 4')
    a(f's_bfe_u32 s{st0}, s{sHD}, 0x10003')
    a(f's_lshl_b32 s{sMT}, s{sJ}, 1')
    a(f's_add_u32 s{sMT}, s{sMT}, s{st0}')
    a(f's_and_b32 s{sNT}, s{sHD}, 7')
    a(f's_and_b32 s{sPH}, s{sHD}, {ROT3}')
    a(f'v_and_b32 v{vTok}, 15, v{vLane}')
    a(f'v_lshrrev_b32 v{vG}, 4, v{vLane}')
    a(f'v_lshlrev_b32 v{vXo}, 4, v{vLane}')
    a(f'v_lshlrev_b32 v{vX2}, 3, v{vLane}')
    a(f's_lshl_b32 s{st0}, s{sMT}, 3')
    a(f's_lshl_b32 s{st1}, s{sWV}, 1')
    a(f's_add_u32 s{st0}, s{st0}, s{st1}')
    a(f's_lshl_b32 s32, s{st0}, 14')
    a(f's_lshl_b32 s36, s{st0}, 12')
    a(f's_add_u32 s36, s36, {128*16384}')
    a(f's_add_u32 s37, s36, 4096')
    a(f's_mul_i32 s{st0}, s{sBR}, {2048*1280}')
    a(f's_add_u32 s{st0}, s{st0}, {WS_O}')
    a(f's_add_u32 s52, s{sWS}, s{st0}')
    a(f's_addc_u32 s53, s{sWS+1}, 0')
    srd(a,sX,52,53,2048*1280)
    a(f'v_bfe_u32 v{vt0}, v{vLane}, 2, 2')
    a(f'v_mul_u32_u24 v{vt0}, 160, v{vt0}')
    a(f'v_and_b32 v{vt1}, 3, v{vLane}')
    a(f'v_lshl_add_u32 v{vt0}, v{vt1}, 3, v{vt0}')
    a(f'v_add_u32 v{vt0}, {WOFF}, v{vt0}')
    a(f'v_lshrrev_b32 v{vt1}, 1, v{vG}')
    a(f'v_mul_u32_u24 v{vt1}, 5, v{vt1}')
    a(f'v_and_b32 v{vt2}, 1, v{vG}')
    a(f'v_add_u32 v{vt1}, v{vt1}, v{vt2}')
    a(f'v_mul_u32_u24 v{vt1}, 640, v{vt1}')
    a(f'v_add_u32 v{vTr}, v{vt0}, v{vt1}')
    a(f'v_mul_u32_u24 v{vt1}, {5*640}, v{vG}')
    a(f'v_add3_u32 v{vTq}, v{vt0}, v{vt1}, 0')
    a(f'v_add_u32 v{vTq}, {4*640}, v{vTq}')
    for i in range(40): a(f'v_mov_b32 v{vAcc+i}, 0')
    a(f's_lshl_b32 s{st0}, s{sMT}, 7')
    a(f's_lshl_b32 s{st1}, s{sWV}, 5')
    a(f's_add_u32 s{st0}, s{st0}, s{st1}')
    a(f'v_add_u32 v{vt0}, s{st0}, v{vTok}')
    a(f'v_mul_u32_u24 v{vt0}, 2560, v{vt0}')
    a(f'v_and_b32 v{vt1}, 1, v{vG}')
    a(f'v_lshlrev_b32 v{vt1}, 5, v{vt1}')
    a(f'v_lshrrev_b32 v{vt2}, 1, v{vG}')
    a(f'v_lshl_add_u32 v{vt1}, v{vt2}, 4, v{vt1}')
    a(f'v_add_u32 v{vOut}, v{vt0}, v{vt1}')
    a(f'v_lshl_add_u32 v{vt3}, v{vG}, 3, v{vt0}')
    a('s_barrier')
    p.stamp(12)
    a(f's_mov_b32 s33, s{sPH}')
    for ph in range(4):
        a(f's_lshl_b32 s{st0}, s33, 12')
        a(f's_add_u32 s{40+2*ph}, s32, s{st0}')
        a(f's_add_u32 s{41+2*ph}, s{40+2*ph}, 16384')
        a('s_add_u32 s33, s33, 1')
        a('s_and_b32 s33, s33, 3')
    def xloads(st):
        L=[]
        if st<16:
            for u in range(2):
                L.append(f'buffer_load_dwordx4 {vr(vX+(st*2+u)*4,4)}, v{vXo}, s[{sX}:{sX+3}], s{40+2*(st//4)+u} offen offset:{(st%4)*1024} {SL}')
        elif st<20:
            for u in range(2):
                for hh in range(2):
                    L.append(f'buffer_load_dwordx2 {vr(vX+(st*2+u)*4+2*hh,2)}, v{vX2}, s[{sX}:{sX+3}], s{36+u} offen offset:{(st-16)*1024+hh*512} {SL}')
        return L
    for st in range(XD):
        for l in xloads(st): a(l)
    if BPROF==3: p.stamp(1,force=True)
    a('s_waitcnt lgkmcnt(0)')
    srd(a,sO,50,51,2048*2560)
    def trr(s,cp,h):
        buf=vWf+(s&1)*20+cp*4+2*h
        if s<16: return f'ds_read_b64_tr_b16 {vr(buf,2)}, v{vTp+((s//4)&1)} offset:{(s%4)*6400+cp*32+h*1280}'
        o=(s-16)*25600+cp*32+h*12800
        if o<65536: return f'ds_read_b64_tr_b16 {vr(buf,2)}, v{vTq} offset:{o}'
        return f'ds_read_b64_tr_b16 {vr(buf,2)}, v{vTq+1} offset:{o-51200}'
    def setp(ph):
        a(f's_mul_i32 s{st0}, s{sPH}, {4*6400}')
        a(f'v_add_u32 v{vTp+(ph&1)}, s{st0}, v{vTr}')
        a(f's_add_u32 s{sPH}, s{sPH}, 1')
        a(f's_and_b32 s{sPH}, s{sPH}, 3')
    a(f'v_add_u32 v{vTq+1}, 51200, v{vTq}')
    setp(0)
    for cp in range(5):
        a(trr(0,cp,0)); a(trr(0,cp,1))
    nl=lambda st: len(xloads(st))
    for s in range(20):
        if s%4==0 and s//4+1<4: setp(s//4+1)
        nxt=[trr(s+1,cp,h) for cp in range(5) for h in range(2)] if s+1<20 else []
        xl=xloads(s+XD)
        buf=vWf+(s&1)*20
        younger=sum(nl(t) for t in range(s+1,min(s+XD,20)))
        a(f's_waitcnt lgkmcnt(0) vmcnt({younger})')
        if BPROF==3 and s in (0,4,8,12,16,19): p.stamp(2+(0,4,8,12,16,19).index(s),force=True)
        k=0
        for cp in range(5):
            for u in range(2):
                ac=vAcc+(cp*2+u)*4
                a(f'v_mfma_f32_16x16x32_bf16 {vr(ac,4)}, {vr(buf+cp*4,4)}, {vr(vX+(s*2+u)*4,4)}, {vr(ac,4)}')
                for _ in range(2 if k<5 else 0):
                    if nxt: a(nxt.pop(0))
                if k>=5 and xl: a(xl.pop(0))
                k+=1
        assert not xl
    a('s_nop 7')
    p.stamp(13)
    a(f's_mul_i32 s{st0}, s{sBR}, 1280')
    a(f's_mul_i32 s{st1}, s{sNT}, 160')
    a(f's_add_u32 s{st0}, s{st0}, s{st1}')
    a(f's_add_u32 s{st1}, s{st0}, {16*2560}')
    for u in range(2):
        for cp in range(5):
            b=vAcc+(cp*2+u)*4
            a(f'v_cvt_pk_bf16_f32 v{b}, v{b}, v{b+1}')
            a(f'v_cvt_pk_bf16_f32 v{b+1}, v{b+2}, v{b+3}')
        for cp in (0,2):
            b=vAcc+(cp*2+u)*4; b2=vAcc+((cp+1)*2+u)*4
            a(f'v_mov_b32 v{b+2}, v{b2}')
            a(f'v_mov_b32 v{b+3}, v{b2+1}')
            a('s_nop 1')
            a(f'v_permlane16_swap_b32 v{b}, v{b+2}')
            a(f'v_permlane16_swap_b32 v{b+1}, v{b+3}')
            a('s_nop 1')
            a(f'buffer_store_dwordx4 {vr(b,4)}, v{vOut}, s[{sO}:{sO+3}], s{st0+u} offen offset:{cp*32} {SO}')
        b=vAcc+(4*2+u)*4
        a(f'buffer_store_dwordx2 {vr(b,2)}, v{vt3}, s[{sO}:{sO+3}], s{st0+u} offen offset:128 {SO}')
    return vEnd

def build(**kw):
    a=A(); p=Prof(a)
    a.raw(f'.globl {KNAME}'); a.raw('.p2align 8'); a.raw(f'.type {KNAME},@function'); a.lab(KNAME)
    a('s_cmp_ge_u32 s2, 256')
    a('s_cbranch_scc1 L_exit')
    p.real(0); p.stamp(0)
    a(f's_load_dwordx4 s[{sDBG}:{sDBG+3}], s[0:1], 56' if False else f's_load_dwordx2 s[{sDBG}:{sDBG+1}], s[0:1], 56')
    a(f's_load_dwordx2 s[{sWS}:{sWS+1}], s[0:1], 64')
    a('s_load_dwordx4 s[16:19], s[0:1], 0')
    a('s_load_dwordx4 s[20:23], s[0:1], 24')
    a(f's_mov_b32 s{sWG}, s2')
    a('v_lshrrev_b32 v2, 6, v0')
    a('s_nop 0')
    a(f'v_readfirstlane_b32 s{sWV}, v2')
    a(f's_cmp_lg_u32 s{sWG}, 0')
    a('s_cbranch_scc1 L_notok')
    a(f's_cmp_lg_u32 s{sWV}, 4')
    a('s_cbranch_scc1 L_notok')
    a('s_memrealtime s[56:57]')
    a('s_waitcnt lgkmcnt(0)')
    a('s_or_b32 s56, s56, 1')
    a('s_mov_b64 exec, 1')
    a('v_mov_b32 v2, 0')
    a('v_mov_b32 v3, s56')
    a(f'global_store_dword v2, v3, s[{sDBG}:{sDBG+1}] sc1')
    a('s_mov_b64 exec, -1')
    a.lab('L_notok')
    if CPF:
        a(f's_cmp_lg_u32 s{sWV}, 5')
        a('s_cbranch_scc1 L_nocpf')
        a('s_getpc_b64 s[56:57]')
        a.lab('L_pc')
        a(f's_lshr_b32 s58, s{sWG}, 3')
        a('s_and_b32 s58, s58, 31')
        a('s_lshl_b32 s58, s58, 10')
        a('v_and_b32 v2, 63, v0')
        a('v_lshlrev_b32 v2, 4, v2')
        a('v_add_u32 v2, s58, v2')
        a(f'v_min_u32 v2, CODE_BYTES-16, v2')
        a('global_load_dwordx4 v[84:87], v2, s[56:57]')
        a.lab('L_nocpf')
    v1=phase1(a,p,**kw.get('p1',{}))
    v2,info=phase2(a,p,**kw.get('p2',{}))
    v3=phase3(a,p,info,**kw.get('p3',{}))
    a.lab('L_done')
    if PROF:
        a('s_waitcnt vmcnt(0)')
        p.real(1); p.dump()
    a('s_endpgm')
    a.lab('L_exit')
    a('s_endpgm')
    a.lab('L_code_end')
    a.raw('.set CODE_BYTES, (L_code_end - L_pc) & 0xfffffff0' if CPF else '')
    vg=max(v1,v2,v3)
    desc=f'''.section .rodata,"a"
.p2align 6
.amdhsa_kernel {KNAME}
  .amdhsa_next_free_vgpr {vg}
  .amdhsa_next_free_sgpr 102
  .amdhsa_accum_offset {(vg+3)//4*4}
  .amdhsa_group_segment_fixed_size 0
  .amdhsa_kernarg_size 72
  .amdhsa_user_sgpr_count 2
  .amdhsa_user_sgpr_kernarg_segment_ptr 1
  .amdhsa_system_sgpr_workgroup_id_x 1
.end_amdhsa_kernel
'''
    hdr=open('cdna_kernels/'+NAME+'.s.ref').read().split('\n')
    out=[]
    for l in hdr:
        if l.startswith('; @launch'): out.append('; @launch grid=(256,1,1) block=(512,1,1) lds=163840'); continue
        if not l.startswith(';'): break
        out.append(l)
    out.append('.amdgcn_target "amdgcn-amd-amdhsa--gfx950"'); out.append('.text')
    return '\n'.join(out)+'\n'+a.txt()+desc

if __name__=='__main__':
    if len(sys.argv)>2 and sys.argv[2]=='prof': PROF=True
    kw=eval(sys.argv[3]) if len(sys.argv)>3 else {}
    if 'CPF' in kw: CPF=kw.pop('CPF')
    if 'RT' in kw: RT=kw.pop('RT')
    if 'BPROF' in kw: BPROF=kw.pop('BPROF')
    if 'POLL' in kw: POLLC.update(kw.pop('POLL'))
    if 'SO' in kw: SO=kw.pop('SO')
    if 'SL' in kw: SL=kw.pop('SL')
    if 'SC' in kw: SC=kw.pop('SC')
    open(sys.argv[1],'w').write(build(**kw))
```

```python
import sys, math, struct
NAME='concat_heads__sliding_block__mha_block__prompt'
KNAME=NAME+'_kernel'
WS_Q=0
WS_KV=2*32*64*1280
WS_O=WS_KV+2*32*64*2560
WS_END=WS_O+2*2048*1280
WS_FLG=WS_END
CSCALE=(20.0**-0.5)*math.log2(math.e)
NEG_BIG=0xf149f2ca
def f32bits(x): return struct.unpack('<I',struct.pack('<f',x))[0]
class A:
    def __init__(s): s.l=[]
    def __call__(s,x): s.l.append('  '+x)
    def lab(s,x): s.l.append(x+':')
    def raw(s,x): s.l.append(x)
    def txt(s): return '\n'.join(s.l)+'\n'
def vr(a,n=1): return f'v{a}' if n==1 else f'v[{a}:{a+n-1}]'
PROF=False
BPROF=False
JMAP=False
CPF=True
RT=False
PROF_BASE=32<<20
NST=16
class Prof:
    def __init__(s,a): s.a=a; s.n=0
    def stamp(s,i=None,force=False):
        if not PROF: return
        if BPROF==2 and not force and i not in (0,7,8): return
        if BPROF==3 and not force and i not in (0,12,13): return
        if i is None: i=s.n
        s.n=max(s.n,i+1)
        assert i<14
        s.a(f's_memrealtime s[{60+2*i}:{61+2*i}]' if RT else f's_memtime s[{60+2*i}:{61+2*i}]')
    def real(s,idx):
        if PROF: s.a(f's_memrealtime s[{88+2*idx}:{89+2*idx}]')
    def dump(s):
        if not PROF: return
        a=s.a
        a('s_waitcnt lgkmcnt(0) vmcnt(0)')
        a(f's_lshl_b32 s92, s{sWG}, 3')
        a(f's_add_u32 s92, s92, s{sWV}')
        a('s_lshl_b32 s92, s92, 6')
        a(f's_add_u32 s92, s92, {PROF_BASE}')
        a(f's_add_u32 s94, s{sWS}, s92')
        a(f's_addc_u32 s95, s{sWS+1}, 0')
        a('v_mov_b32 v0, 0')
        a('s_mov_b64 exec, 1')
        for i in range(14):
            a(f'v_mov_b32 v1, s{60+2*i}')
            a(f'global_store_dword v0, v1, s[94:95] offset:{4*i}')
        a('v_mov_b32 v1, s88'); a('global_store_dword v0, v1, s[94:95] offset:56')
        a('v_mov_b32 v1, s90'); a('global_store_dword v0, v1, s[94:95] offset:60')
        a('s_waitcnt vmcnt(0)')
sWG=96; sWV=97; sDBG=98; sWS=100; sTOK=59
def srd(a, d, lo, hi, nbytes):
    a(f's_mov_b32 s{d}, s{lo}')
    a(f's_and_b32 s{d+1}, s{hi}, 0xffff')
    a(f's_mov_b32 s{d+2}, {nbytes}')
    a(f's_mov_b32 s{d+3}, 0x20000')

SC='sc1'
SL=''
SO=''

TILE=2560; HALF=81920
P2M=212
P2C=list(range(244,256))
def head_j(a,sH,sJ_,t0,t1):
    if JMAP:
        a(f's_lshr_b32 s{sH}, s{sWG}, 3')
        a(f's_and_b32 s{sJ_}, s{sWG}, 7')
        return
    a(f's_and_b32 s{t0}, s{sWG}, 7')
    a(f's_lshr_b32 s{t1}, s{sWG}, 3')
    a(f's_lshl_b32 s{sH}, s{t0}, 2')
    a(f's_lshr_b32 s{t0}, s{t1}, 3')
    a(f's_add_u32 s{sH}, s{sH}, s{t0}')
    a(f's_and_b32 s{sJ_}, s{t1}, 7')
def q_issue(a):
    head_j(a,50,51,52,53)
    a('s_lshl_b32 s50, s50, 6')
    a('s_lshl_b32 s51, s51, 3')
    a('s_add_u32 s50, s50, s51')
    a(f's_and_b32 s51, s{sWV}, 3')
    a('s_lshl_b32 s51, s51, 1')
    a('s_add_u32 s50, s50, s51')
    a('s_mul_i32 s50, s50, 1280')
    a(f's_add_u32 s50, s50, {32*64*1280}')
    a('s_add_u32 s51, s50, 1280')
    srd(a,52,sWS,sWS+1,WS_O)
    a('v_and_b32 v2, 31, v1')
    a('v_lshlrev_b32 v2, 3, v2')
    a('v_lshrrev_b32 v3, 5, v1')
    a('v_lshl_add_u32 v3, v3, 8, v2')
    a('v_lshrrev_b32 v4, 5, v1')
    a('v_mul_u32_u24 v4, 1280, v4')
    a('v_add3_u32 v2, v2, v4, 0')
    a('v_add_u32 v2, 1024, v2')
    for (r1,so) in ((16,50),(24,51)):
        a(f'buffer_load_dwordx2 v[{r1}:{r1+1}], v3, s[52:55], s{so} offen {SL}')
        a(f'buffer_load_dwordx2 v[{r1+2}:{r1+3}], v3, s[52:55], s{so} offen offset:512 {SL}')
    a(f'buffer_load_dwordx2 v[20:21], v2, s[52:55], s50 offen {SL}')
def kv_first(a,pieces,rows=(0,HALF,8192,HALF+8192)):
    head_j(a,50,51,52,53)
    a(f's_mul_i32 s50, s50, {64*TILE}')
    a(f's_add_u32 s50, s50, {WS_KV+32*64*TILE}')
    a(f's_add_u32 s52, s{sWS}, s50')
    a(f's_addc_u32 s53, s{sWS+1}, 0')
    a('s_and_b32 s53, s53, 0xffff')
    a('s_mov_b32 s54, 163840')
    a('s_mov_b32 s55, 0x20000')
    a('v_lshlrev_b32 v2, 4, v1')
    for row in rows:
        for pc in pieces:
            a(f's_add_u32 s50, s{pc[0]}, {row+pc[1]}')
            a('s_mov_b32 m0, s50')
            a(f'buffer_load_dwordx4 v2, s[52:55], s50 offen {SL} lds')
def poll_f1(a,tag,br):
    head_j(a,50,51,52,53)
    a('s_mul_i32 s50, s50, 20')
    a('s_lshr_b32 s51, s50, 7')
    a('s_add_u32 s50, s50, 19')
    a('s_lshr_b32 s50, s50, 7')
    a('s_sub_u32 s50, s50, s51')
    a('v_bfe_u32 v2, v1, 4, 1')
    a('v_mul_u32_u24 v2, s50, v2')
    a('v_add_u32 v2, s51, v2')
    a('v_lshrrev_b32 v5, 5, v1')
    a('v_mul_u32_u24 v5, 5, v5')
    a('v_add_u32 v5, v5, v2')
    a('v_add_u32 v14, 10, v2')
    a('v_and_b32 v2, 15, v1')
    a('v_lshl_add_u32 v5, v5, 4, v2')
    a('v_lshl_add_u32 v14, v14, 4, v2')
    a('v_lshlrev_b32 v5, 7, v5')
    a('v_lshlrev_b32 v14, 7, v14')
    a(f'v_add_u32 v5, {WS_FLG+br*15*16*128}, v5')
    a(f'v_add_u32 v14, {WS_FLG+br*15*16*128}, v14')
    poll2(a,tag,5,14,(1<<64)-1)

def p2_early(a,tag):
    vLane=1; vt0=2; vt1=3; vt2=4; vt3=5; vCc=6; st0=50; sTm=52; sJ=51; sLo=56
    vK1a,vK2a,vVa,vVb,vDma,vRho,vOoff,vOo2,vQ1o,vQ2o,vWo,vKap=P2C
    vMF=P2M; vML=P2M+16
    head_j(a,50,sJ,52,53)
    a(f'v_lshlrev_b32 v{vDma}, 4, v{vLane}')
    a(f'v_and_b32 v{vRho}, 31, v{vLane}')
    a(f'v_lshlrev_b32 v{vt1}, 3, v{vRho}')
    a(f'v_add_u32 v{vK2a}, 1024, v{vt1}')
    a(f'v_mov_b32 v{vt2}, 0x70000000')
    a(f'v_cmp_gt_u32 s[{sLo}:{sLo+1}], 32, v{vLane}')
    a('s_nop 1')
    a(f'v_cndmask_b32 v{vQ2o}, v{vt2}, v{vK2a}, s[{sLo}:{sLo+1}]')
    a(f'v_lshrrev_b32 v{vt0}, 5, v{vLane}')
    a(f'v_lshlrev_b32 v{vK1a}, 3, v{vRho}')
    a(f'v_lshl_add_u32 v{vK1a}, v{vt0}, 8, v{vK1a}')
    a(f'v_mov_b32 v{vQ1o}, v{vK1a}')
    a(f'v_bfe_u32 v{vt1}, v{vRho}, 2, 2')
    a(f'v_xor_b32 v{vt1}, v{vt1}, v{vt0}')
    a(f'v_lshlrev_b32 v{vt1}, 4, v{vt1}')
    a(f'v_lshl_add_u32 v{vVa}, v{vRho}, 6, v{vt1}')
    a(f'v_add_u32 v{vVa}, 1280, v{vVa}')
    a(f'v_xor_b32 v{vVb}, 32, v{vVa}')
    a(f'v_and_b32 v{vt1}, 1, v{vRho}')
    a(f'v_lshlrev_b32 v{vKap}, 4, v{vt1}')
    a(f'v_lshrrev_b32 v{vt1}, 4, v{vRho}')
    a(f'v_lshl_or_b32 v{vKap}, v{vt1}, 3, v{vKap}')
    a(f'v_and_b32 v{vt1}, 4, v{vRho}')
    a(f'v_or_b32 v{vKap}, v{vKap}, v{vt1}')
    a(f'v_bfe_u32 v{vt1}, v{vRho}, 3, 1')
    a(f'v_lshl_or_b32 v{vKap}, v{vt1}, 1, v{vKap}')
    a(f'v_bfe_u32 v{vt1}, v{vRho}, 1, 1')
    a(f'v_or_b32 v{vKap}, v{vKap}, v{vt1}')
    a(f'v_lshlrev_b32 v{vt3}, 2, v{vt0}')
    a(f'v_sub_u32 v{vt3}, v{vKap}, v{vt3}')
    a(f'v_mov_b32 v{vt2}, {NEG_BIG:#x}')
    for r in range(16):
        base=(r&3)+8*(r>>2)
        kb=16*(r&1)+8*((r>>3)&1)+2*((r>>2)&1)+((r>>1)&1)
        if r>=2:
            q=r-2
            a(f'v_cndmask_b32 v{vMF+q}, v{vt2}, 0, s[{sTm+2*(q&1)}:{sTm+1+2*(q&1)}]')
            a(f'v_cndmask_b32 v{vML+q}, 0, v{vt2}, s[{sTm+2*(q&1)}:{sTm+1+2*(q&1)}]')
        a(f'v_cmp_gt_i32 s[{sTm+2*(r&1)}:{sTm+1+2*(r&1)}], {kb}, v{vt3}')
        if r==0: a('s_nop 0')
        if r==1: a('s_nop 1')
    a('s_nop 1')
    for q in (14,15):
        a(f'v_cndmask_b32 v{vMF+q}, v{vt2}, 0, s[{sTm+2*(q&1)}:{sTm+1+2*(q&1)}]')
        a(f'v_cndmask_b32 v{vML+q}, 0, v{vt2}, s[{sTm+2*(q&1)}:{sTm+1+2*(q&1)}]')
    a(f's_cmp_lg_u32 s{sJ}, 0')
    a(f's_cbranch_scc1 L_mf_ok_{tag}')
    for r in range(16): a(f'v_mov_b32 v{vMF+r}, v{vt2}')
    a.lab(f'L_mf_ok_{tag}')
    a(f'v_lshrrev_b32 v{vt1}, 4, v{vKap}')
    a(f'v_and_b32 v{vt2}, 15, v{vKap}')
    a(f'v_lshlrev_b32 v{vOoff}, 14, v{vt1}')
    a(f'v_lshl_add_u32 v{vOoff}, v{vt2}, 4, v{vOoff}')
    a(f'v_lshrrev_b32 v{vt3}, 5, v{vLane}')
    a(f'v_lshl_add_u32 v{vOoff}, v{vt3}, 8, v{vOoff}')
    a(f'v_lshlrev_b32 v{vOo2}, 12, v{vt1}')
    a(f'v_lshl_add_u32 v{vOo2}, v{vt2}, 3, v{vOo2}')
    a(f's_lshl_b32 s{st0}, s{sWV}, 6')
    a(f'v_add_u32 v{vt0}, s{st0}, v{vLane}')
    a(f'v_mul_u32_u24 v{vt1}, 52429, v{vt0}')
    a(f'v_lshrrev_b32 v{vt1}, 19, v{vt1}')
    a(f'v_mul_u32_u24 v{vt2}, 10, v{vt1}')
    a(f'v_sub_u32 v{vCc}, v{vt0}, v{vt2}')
    a(f'v_mul_u32_u24 v{vt1}, 1280, v{vt1}')
    a(f'v_lshl_add_u32 v{vWo}, v{vCc}, 4, v{vt1}')

def phase1(a,p,D=3,SY=1,LP='',EARLY2=False):
    R=4; XOFF=16384
    sX,sW,sO=4,8,12
    sBR,sMT,sNT=26,27,28
    sKS=31; sXo=32; sW0=34; sIT=36; sSlot=37; sLW=38; sLX=39; sT=40
    st0,st1,st2,st3=41,42,43,44
    sSec=45; sBase=46; sHS=47; sTS=48; sNx=30; sM=29; sN=33; sIdx=35
    vLane=1; vt0=6; vt1=7; vt2=8; vt3=9; vt4=10; vTok=11; vG=12; vRho=13
    vLW=8; vLX=10; vXh=2; vXc1=3
    vB0=14; vBc=19; vBn=24; vAd=29
    vWf=36; vXf=vWf+32; vAcc=vXf+4*(D+1); vEnd=vAcc+128
    assert vEnd<=256 and 8%(D+1)==0
    def wf(step,c): return vWf+(step&1)*16+c*4
    def xf(i): return vXf+(i%(D+1))*4
    def acc(t,c,mt): return vAcc+t*64+(c*4+mt)*4
    def slotbase(dst,idx):
        a(f's_lshl_b32 s{dst}, s{idx}, 15')
        a(f's_lshr_b32 s{st3}, s{idx}, 1')
        a(f's_lshl_b32 s{st3}, s{st3}, 14')
        a(f's_add_u32 s{dst}, s{dst}, s{st3}')
        a(f's_add_u32 s{dst}, s{dst}, 16384')
    a(f'v_and_b32 v{vLane}, 63, v0')
    a(f's_and_b32 s{st0}, s{sWG}, 7')
    a(f's_lshr_b32 s{st1}, s{sWG}, 3')
    a(f's_and_b32 s{st2}, s{st0}, 1')
    a(f's_lshl_b32 s{st2}, s{st2}, 3')
    a(f's_and_b32 s{st3}, s{st1}, 7')
    a(f's_add_u32 s{sMT}, s{st2}, s{st3}')
    a(f's_lshr_b32 s{st2}, s{st0}, 1')
    a(f's_lshl_b32 s{st2}, s{st2}, 2')
    a(f's_lshr_b32 s{st1}, s{st1}, 3')
    a(f's_add_u32 s{sNT}, s{st2}, s{st1}')
    a(f's_cmp_ge_u32 s{sNT}, 15')
    a(f's_cbranch_scc1 L_p1_skip')
    a(f's_cmp_ge_u32 s{sWV}, 4')
    a(f's_cbranch_scc0 L_p1_compute')
    i_c=len(a.l)
    a.lab('L_p1_compute')
    p2_early(a,'c')
    a(f's_and_b32 s{sM}, s{sWV}, 1')
    a(f's_lshr_b32 s{sN}, s{sWV}, 1')
    a(f'v_and_b32 v{vTok}, 15, v{vLane}')
    a(f'v_lshrrev_b32 v{vG}, 4, v{vLane}')
    a(f'v_and_b32 v{vt0}, 3, v{vLane}')
    a(f'v_bfe_u32 v{vt1}, v{vLane}, 2, 2')
    a(f'v_and_b32 v{vt2}, 1, v{vG}')
    a(f'v_lshl_or_b32 v{vt2}, v{vt2}, 2, v{vt1}')
    a(f'v_lshl_add_u32 v{vt3}, v{vG}, 3, v{vt1}')
    a(f'v_lshlrev_b32 v{vt3}, 8, v{vt3}')
    a(f'v_lshl_add_u32 v{vt3}, v{vt0}, 3, v{vt3}')
    a(f's_lshl_b32 s{st0}, s{sN}, 2')
    a(f'v_xor_b32 v{vt2}, s{st0}, v{vt2}')
    for c in range(4):
        a(f'v_xor_b32 v{vt4}, {c}, v{vt2}')
        a(f'v_lshl_add_u32 v{vB0+c}, v{vt4}, 5, v{vt3}')
    a(f'v_lshrrev_b32 v{vt0}, 1, v{vTok}')
    a(f'v_xor_b32 v{vt0}, v{vt0}, v{vG}')
    a(f'v_lshlrev_b32 v{vt0}, 4, v{vt0}')
    a(f'v_lshl_add_u32 v{vt0}, v{vTok}, 7, v{vt0}')
    a(f's_lshl_b32 s{st0}, s{sM}, 13')
    a(f's_add_u32 s{st0}, s{st0}, {XOFF}')
    a(f'v_add_u32 v{vB0+4}, s{st0}, v{vt0}')
    a(f'v_xor_b32 v{vXh}, 64, v{vt0}')
    a(f'v_sub_u32 v{vXh}, v{vXh}, v{vt0}')
    for i in range(5): a(f'v_add_u32 v{vBc+i}, 16384, v{vB0+i}')
    for i in range(128): a(f'v_mov_b32 v{vAcc+i}, 0')
    a(f's_mul_i32 s{sSec}, s{sNT}, 52')
    a(f's_lshr_b32 s{sSec}, s{sSec}, 8')
    a(f's_mul_i32 s{st0}, s{sSec}, 5')
    a(f's_sub_u32 s{st0}, s{sNT}, s{st0}')
    a(f's_lshl_b32 s{st0}, s{st0}, 7')
    a(f's_lshl_b32 s{st1}, s{sN}, 6')
    a(f's_add_u32 s{st0}, s{st0}, s{st1}')
    a(f's_cmp_eq_u32 s{sSec}, 0')
    a(f's_cselect_b32 s{st1}, 0, 1')
    a(f's_cselect_b32 s{st2}, 0, {WS_KV}')
    a(f's_lshl_b32 s{sTS}, 1280, s{st1}')
    a(f's_lshl_b32 s{sHS}, s{sTS}, 6')
    a(f's_lshl_b32 s{sT}, s{sMT}, 2')
    a(f's_lshl_b32 s{st1}, s{sM}, 1')
    a(f's_add_u32 s{sT}, s{sT}, s{st1}')
    a(f's_mul_i32 s{st1}, s{sT}, s{sTS}')
    a(f's_add_u32 s{sBase}, s{st1}, s{st2}')
    a(f's_cmp_eq_u32 s{sSec}, 2')
    a(f's_cbranch_scc1 L_p1_adV')
    a(f'v_lshrrev_b32 v{vt0}, 3, v{vTok}')
    a(f'v_lshlrev_b32 v{vRho}, 7, v{vt0}')
    a(f'v_bfe_u32 v{vt0}, v{vTok}, 1, 1')
    a(f'v_lshl_or_b32 v{vRho}, v{vt0}, 6, v{vRho}')
    a(f'v_bfe_u32 v{vt0}, v{vTok}, 2, 1')
    a(f'v_lshl_or_b32 v{vRho}, v{vt0}, 5, v{vRho}')
    a(f'v_and_b32 v{vt0}, 1, v{vTok}')
    a(f'v_lshl_or_b32 v{vRho}, v{vt0}, 4, v{vRho}')
    a(f's_lshr_b32 s{st0}, s{st0}, 2')
    for c in range(4):
        a(f'v_add_u32 v{vt0}, s{st0}, v{vG}')
        if c: a(f'v_add_u32 v{vt0}, {4*c}, v{vt0}')
        a(f'v_mul_u32_u24 v{vt1}, 52429, v{vt0}')
        a(f'v_lshrrev_b32 v{vt1}, 18, v{vt1}')
        a(f'v_mul_u32_u24 v{vt2}, 5, v{vt1}')
        a(f'v_sub_u32 v{vt2}, v{vt0}, v{vt2}')
        a(f'v_mul_u32_u24 v{vt1}, s{sHS}, v{vt1}')
        a(f'v_and_b32 v{vt3}, 1, v{vt2}')
        a(f'v_lshlrev_b32 v{vt3}, 9, v{vt3}')
        a(f'v_lshrrev_b32 v{vt4}, 1, v{vt2}')
        a(f'v_cmp_eq_u32 s[56:57], 4, v{vt2}')
        a(f'v_lshl_add_u32 v{vt3}, v{vt4}, 8, v{vt3}')
        a(f'v_add_u32 v{vt4}, 512, v{vt3}')
        a(f'v_add_u32 v{vt1}, v{vt1}, v{vRho}')
        a(f'v_cndmask_b32 v{vt3}, v{vt3}, v{vt4}, s[56:57]')
        a(f'v_add_u32 v{vAd+c}, v{vt1}, v{vt3}')
    a('s_branch L_p1_adD')
    a.lab('L_p1_adV')
    for c in range(4):
        a(f'v_add_u32 v{vt0}, s{st0}, v{vTok}')
        if c: a(f'v_add_u32 v{vt0}, {16*c}, v{vt0}')
        a(f'v_mul_u32_u24 v{vt1}, 52429, v{vt0}')
        a(f'v_lshrrev_b32 v{vt1}, 20, v{vt1}')
        a(f'v_mul_u32_u24 v{vt2}, 20, v{vt1}')
        a(f'v_sub_u32 v{vt2}, v{vt0}, v{vt2}')
        a(f'v_mul_u32_u24 v{vt1}, {64*2560}, v{vt1}')
        a(f'v_lshl_add_u32 v{vt1}, v{vt2}, 6, v{vt1}')
        a(f'v_bfe_u32 v{vt2}, v{vt2}, 2, 2')
        a(f'v_xor_b32 v{vt2}, v{vt2}, v{vG}')
        a(f'v_lshl_add_u32 v{vt1}, v{vt2}, 4, v{vt1}')
        a(f'v_add_u32 v{vAd+c}, 1280, v{vt1}')
    a.lab('L_p1_adD')
    a('s_waitcnt lgkmcnt(0)')
    srd(a,sO,sWS,sWS+1,WS_O)
    def wread(nxt,h,step,c,hh):
        b=(vBn if nxt else vBc)+c
        return f'ds_read_b64_tr_b16 {vr(wf(step,c)+2*hh,2)}, v{b} offset:{h*8192+1024*hh}'
    def xread(nxt,h,mt,buf):
        b=((vBn if nxt else vBc)+4) if h==0 else vXc1
        return f'ds_read_b128 {vr(xf(buf),4)}, v{b} offset:{mt*2048}'
    def epilogue(v,t,br):
        if v==0:
            a(f's_cmp_lg_u32 s{sSec}, 0')
            a(f's_cbranch_scc1 L_p1_ns{t}')
            a(f's_mov_b32 s{st1}, {f32bits(CSCALE):#x}')
            for i in range(64): a(f'v_mul_f32 v{vAcc+64*t+i}, s{st1}, v{vAcc+64*t+i}')
            a.lab(f'L_p1_ns{t}')
        a(f's_lshl_b32 s{st0}, s{sTS}, 11')
        a(f's_mul_i32 s{st0}, s{st0}, {br}')
        a(f's_add_u32 s{st0}, s{st0}, s{sBase}')
        for tp in range(2):
            if tp: a(f's_add_u32 s{st0}, s{st0}, s{sTS}')
            for c in range(4):
                b=acc(t,c,2*tp)
                if v==0:
                    a(f'v_cvt_pk_bf16_f32 v{b}, v{b}, v{b+1}')
                    a(f'v_cvt_pk_bf16_f32 v{b+1}, v{b+2}, v{b+3}')
                    a(f'v_cvt_pk_bf16_f32 v{b+2}, v{b+4}, v{b+5}')
                    a(f'v_cvt_pk_bf16_f32 v{b+3}, v{b+6}, v{b+7}')
                else:
                    a(f'v_cvt_pk_bf16_f32 v{b}, v{b}, v{b+4}')
                    a(f'v_cvt_pk_bf16_f32 v{b+1}, v{b+1}, v{b+5}')
                    a(f'v_cvt_pk_bf16_f32 v{b+2}, v{b+2}, v{b+6}')
                    a(f'v_cvt_pk_bf16_f32 v{b+3}, v{b+3}, v{b+7}')
                a(f'buffer_store_dwordx4 {vr(b,4)}, v{vAd+c}, s[{sO}:{sO+3}], s{st0} offen {SC}')
    a(f's_cmp_eq_u32 s{sSec}, 2')
    a(f's_cbranch_scc1 L_p1_v1')
    for v in range(2):
        a.lab(f'L_p1_v{v}')
        p.stamp(1)
        a('s_barrier')
        p.stamp(2)
        def body(emit,issued,t):
            waits=[]
            for st in range(2):
                for mt in range(4):
                    gi=st*4+mt
                    need=[('x',gi)]
                    if mt==0: need.append(('w',st))
                    last=max(len(issued)-1-issued[::-1].index(tg) for tg in need)
                    y=len(issued)-1-last
                    waits.append(y)
                    if emit:
                        y=min(y,wmin[len(waits)-1])
                        a(f's_waitcnt lgkmcnt({min(y,15)})')
                    fill=[]
                    g2=gi+D; nx=g2>=8; h2=(g2%8)//4; m2=g2%4
                    fill.append((xread(nx,h2,m2,g2),('x',g2%8)))
                    wm={0:(0,1),1:(2,3)} if st==1 else {0:(0,1),1:(2,3)}
                    if mt in wm:
                        for c in wm[mt]:
                            fill.append((wread(st==1,(st+1)&1,st+1,c,0),('w',(st+1)%2)))
                            fill.append((wread(st==1,(st+1)&1,st+1,c,1),('w',(st+1)%2)))
                    if st==0 and mt==0:
                        fill.append((f'v_add_u32 v{vXc1}, v{vBc+4}, v{vXh}',None))
                    if st==0 and mt==2:
                        fill.append((f's_add_u32 s{sIdx}, s{sIdx}, 1',None))
                        fill.append((f's_and_b32 s{sIdx}, s{sIdx}, 3',None))
                        fill.append((f's_lshl_b32 s{sNx}, s{sIdx}, 15',None))
                        fill.append((f's_lshr_b32 s{st3}, s{sIdx}, 1',None))
                        fill.append((f's_lshl_b32 s{st3}, s{st3}, 14',None))
                        fill.append((f's_add_u32 s{sNx}, s{sNx}, s{st3}',None))
                        fill.append((f's_add_u32 s{sNx}, s{sNx}, 16384',None))
                    if st==0 and mt==3:
                        for i in range(5): fill.append((f'v_add_u32 v{vBn+i}, s{sNx}, v{vB0+i}',None))
                    if st==1 and mt==3:
                        for i in range(5): fill.append((f'v_mov_b32 v{vBc+i}, v{vBn+i}',None))
                    for c in range(4):
                        x=xf(gi); w=wf(st,c); ac=acc(t,c,mt)
                        if emit:
                            if v==0: a(f'v_mfma_f32_16x16x32_bf16 {vr(ac,4)}, {vr(w,4)}, {vr(x,4)}, {vr(ac,4)}')
                            else:    a(f'v_mfma_f32_16x16x32_bf16 {vr(ac,4)}, {vr(x,4)}, {vr(w,4)}, {vr(ac,4)}')
                        k=1 if c<3 else len(fill)
                        if len(fill)>4 and c<3: k=2
                        while k>0 and fill:
                            tx,tag=fill.pop(0); k-=1
                            if emit: a(tx)
                            if tag: issued.append(tag)
                    if st==0 and mt==SY and emit:
                        if t==1:
                            a(f's_cmp_eq_u32 s{sIT}, 8'); a(f's_cbranch_scc0 L_p1_nw{v}'); a('s_waitcnt vmcnt(0)'); a.lab(f'L_p1_nw{v}')
                        a('s_barrier')
            return waits
        pro=[('w',0)]*8+[('x',i) for i in range(D)]
        iss=list(pro); w1=body(False,iss,0); w2=body(False,iss,0)
        wmin=[min(x,y) for x,y in zip(w1,w2)]
        a(f's_mov_b32 s{sIdx}, 0')
        for c in range(4):
            a(wread(False,0,0,c,0)); a(wread(False,0,0,c,1))
        for i in range(D): a(xread(False,0,i,i))
        for t in range(2):
            a(f's_mov_b32 s{sIT}, 10')
            a.lab(f'L_p1_loop{v}_{t}')
            body(True,list(pro),t)
            a(f's_sub_u32 s{sIT}, s{sIT}, 1')
            a(f's_cmp_lg_u32 s{sIT}, 0')
            a(f's_cbranch_scc1 L_p1_loop{v}_{t}')
            a('s_nop 7')
            if t==0:
                epilogue(v,0,1) if v==0 else epilogue(v,0,1)
            else:
                p.stamp(3)
                a('s_waitcnt lgkmcnt(0)')
                q_issue(a)
                epilogue(v,1,0)
        a('s_mov_b32 s49, 8')
        a('s_branch L_p1_done')
    i_l=len(a.l)
    a.lab('L_p1_loader')
    sLd=29
    a(f's_sub_u32 s{sLd}, s{sWV}, 4')
    a(f's_mul_i32 s{st3}, s{st3}, 5')
    a(f's_lshr_b32 s{st3}, s{st3}, 2')
    a(f's_mul_i32 s{st1}, s{st1}, 5')
    a(f's_lshr_b32 s{st1}, s{st1}, 1')
    a(f's_add_u32 s{sKS}, s{st3}, s{st1}')
    a(f's_cmp_ge_u32 s{sKS}, 10')
    a(f's_cselect_b32 s{st0}, 10, 0')
    a(f's_sub_u32 s{sKS}, s{sKS}, s{st0}')
    a(f's_lshl_b32 s{sLW}, s{sLd}, 12')
    a(f's_lshl_b32 s{sLX}, s{sLd}, 12')
    a(f's_add_u32 s{sLX}, s{sLX}, {XOFF}')
    a(f'v_lshrrev_b32 v{vt0}, 4, v{vLane}')
    a(f'v_bfe_u32 v{vt1}, v{vLane}, 1, 3')
    a(f'v_and_b32 v2, 1, v{vLane}')
    a(f's_lshl_b32 s{st2}, s{sLd}, 4')
    a(f's_lshl_b32 s{st1}, s{sNT}, 8')
    for jj in range(2):
        a(f'v_add_u32 v3, {4*jj}, v{vt0}')
        a(f'v_xor_b32 v3, v3, v{vt1}')
        a(f'v_lshl_add_u32 v4, v3, 1, v2')
        a(f'v_lshlrev_b32 v4, 4, v4')
        a(f'v_add_u32 v{vLW+jj}, s{st2}, v{vt0}')
        if jj: a(f'v_add_u32 v{vLW+jj}, 8, v{vLW+jj}')
        a(f'v_mul_u32_u24 v{vLW+jj}, 3840, v{vLW+jj}')
        a(f'v_add3_u32 v{vLW+jj}, v{vLW+jj}, v4, s{st1}')
    a(f'v_lshrrev_b32 v{vt0}, 3, v{vLane}')
    a(f'v_and_b32 v{vt1}, 7, v{vLane}')
    a(f's_lshl_b32 s{st0}, s{sMT}, 7')
    a(f's_lshl_b32 s{st1}, s{sLd}, 5')
    a(f's_add_u32 s{st0}, s{st0}, s{st1}')
    for uu in range(2):
        a(f'v_lshrrev_b32 v2, 1, v{vt0}')
        if uu: a(f'v_add_u32 v2, 4, v2')
        a(f'v_xor_b32 v2, v2, v{vt1}')
        a(f'v_add_u32 v3, s{st0}, v{vt0}')
        if uu: a(f'v_add_u32 v3, 8, v3')
        a(f'v_mul_u32_u24 v3, 1280, v3')
        a(f'v_lshl_add_u32 v{vLX+uu}, v2, 4, v3')
    a('s_waitcnt lgkmcnt(0)')
    srd(a,sX,20,21,2048*1280)
    srd(a,sW,22,23,640*3840)
    NL=8
    def wstep():
        a(f's_mul_i32 s{sW0}, s{sKS}, {64*3840}')
        a(f's_lshl_b32 s{sXo}, s{sKS}, 7')
        slotbase(sSlot,sIdx)
        a(f's_add_u32 s{st0}, s{sSlot}, s{sLW}')
        a(f's_add_u32 s{st1}, s{sSlot}, s{sLX}')
        for j in range(4):
            a(f's_add_u32 m0, s{st0}, {j*1024}')
            if j&1: a(f's_add_u32 s{st2}, s{sW0}, {4*3840}')
            a(f'buffer_load_dwordx4 v{vLW+(j>>1)}, s[{sW}:{sW+3}], s{st2 if j&1 else sW0} offen {LP} lds')
            a(f's_add_u32 m0, s{st1}, {j*1024}')
            if j==2: a(f's_add_u32 s{sXo}, s{sXo}, 20480')
            a(f'buffer_load_dwordx4 v{vLX+(j&1)}, s[{sX}:{sX+3}], s{sXo} offen {LP} lds')
        a(f's_add_u32 s{sKS}, s{sKS}, 1')
        a(f's_cmp_eq_u32 s{sKS}, 10')
        a(f's_cselect_b32 s{sKS}, 0, s{sKS}')
        a(f's_add_u32 s{sIdx}, s{sIdx}, 1')
        a(f's_and_b32 s{sIdx}, s{sIdx}, 3')
    a(f's_mov_b32 s{sIdx}, 0')
    wstep()
    if EARLY2: wstep()
    a(f's_waitcnt vmcnt({NL if EARLY2 else 0})')
    a('s_barrier')
    if not EARLY2: wstep()
    wstep()
    p2_early(a,'l')
    a(f's_mov_b32 s{sIT}, 0')
    a.lab('L_p1_ld_loop')
    a(f's_cmp_ge_u32 s{sIT}, 18'); a('s_cbranch_scc1 L_p1_ld_w0')
    a(f's_waitcnt vmcnt({NL})')
    a('s_branch L_p1_ld_w1')
    a.lab('L_p1_ld_w0')
    a(f's_cmp_lg_u32 s{sIT}, 18'); a('s_cbranch_scc1 L_p1_ld_w1')
    a('s_waitcnt vmcnt(0)')
    a(f's_cmp_lg_u32 s{sWV}, 4'); a('s_cbranch_scc1 L_p1_ld_w1')
    poll_f1(a,'b',1)
    a.lab('L_p1_ld_w1')
    a('s_barrier')
    a(f's_cmp_lg_u32 s{sWV}, 4'); a('s_cbranch_scc1 L_p1_ld_h1')
    a(f's_cmp_lg_u32 s{sIT}, 8'); a('s_cbranch_scc1 L_p1_ld_h0')
    gettok(a,'p1',None)
    a.lab('L_p1_ld_h0')
    a(f's_cmp_lg_u32 s{sIT}, 12'); a('s_cbranch_scc1 L_p1_ld_h1')
    a(f's_add_u32 s50, s{sNT}, 15')
    a('s_lshl_b32 s50, s50, 4')
    a(f's_add_u32 s50, s50, s{sMT}')
    a('s_lshl_b32 s50, s50, 7')
    setflag(a,50)
    a.lab('L_p1_ld_h1')
    a(f's_cmp_lg_u32 s{sIT}, 7'); a('s_cbranch_scc1 L_p1_ld_h2')
    srd(a,sX,16,17,2048*1280)
    srd(a,sW,18,19,640*3840)
    a.lab('L_p1_ld_h2')
    a(f's_cmp_ge_u32 s{sIT}, 17'); a('s_cbranch_scc1 L_p1_ld_skip')
    wstep()
    a.lab('L_p1_ld_skip')
    a(f's_cmp_lg_u32 s{sIT}, 18'); a('s_cbranch_scc1 L_p1_ld_h3')
    a(f's_lshl_b32 s48, s{sLd}, 11')
    q_issue(a)
    kv_first(a,[(48,0),(48,1024)],(0,HALF,8192,HALF+8192,16384,24576,32768))
    a.lab('L_p1_ld_h3')
    a(f's_cmp_lg_u32 s{sIT}, 19'); a('s_cbranch_scc1 L_p1_ld_h4')
    kv_first(a,[(48,0),(48,1024)],(HALF+16384,HALF+24576,HALF+32768))
    a.lab('L_p1_ld_h4')
    a(f's_add_u32 s{sIT}, s{sIT}, 1')
    a(f's_cmp_lt_u32 s{sIT}, 20')
    a('s_cbranch_scc1 L_p1_ld_loop')
    a(f's_lshl_b32 s49, s{sNT}, 4')
    a(f's_add_u32 s49, s49, s{sMT}')
    a('s_lshl_b32 s49, s49, 7')
    a('s_or_b32 s49, s49, 0x80000000')
    a('s_branch L_p1_done')
    i_e=len(a.l)
    a.l[i_c:i_e]=a.l[i_l:i_e]+a.l[i_c:i_l]
    a.lab('L_p1_skip')
    p2_early(a,'s')
    a('s_waitcnt lgkmcnt(0)')
    a(f's_cmp_lg_u32 s{sWV}, 4'); a('s_cbranch_scc1 L_p1_sk1')
    gettok(a,'p1s',None)
    poll_f1(a,'bs',1)
    a.lab('L_p1_sk1')
    a('s_barrier')
    a(f's_lshl_b32 s48, s{sWV}, 10')
    q_issue(a)
    kv_first(a,[(48,0)],(0,HALF,8192,HALF+8192,16384,24576,32768,HALF+16384,HALF+24576,HALF+32768))
    a('s_mov_b32 s49, 0')
    a.lab('L_p1_done')
    return vEnd

def gettok(a,tag,wave=4):
    if wave is not None:
        a(f's_cmp_lg_u32 s{sWV}, {wave}')
        a(f's_cbranch_scc1 L_tokd_{tag}')
    a('s_mov_b32 s58, 0x40000')
    a('v_mov_b32 v2, 0')
    a.lab(f'L_tok_{tag}')
    a(f'global_load_dword v3, v2, s[{sDBG}:{sDBG+1}] sc1')
    a('s_waitcnt vmcnt(0)')
    a(f'v_readfirstlane_b32 s{sTOK}, v3')
    a('s_nop 3')
    a(f's_cmp_lg_u32 s{sTOK}, 0')
    a(f's_cbranch_scc1 L_tokd_{tag}')
    a('s_sleep 4')
    a('s_sub_u32 s58, s58, 1')
    a('s_cmp_lg_u32 s58, 0')
    a(f's_cbranch_scc1 L_tok_{tag}')
    a.lab(f'L_tokd_{tag}')
def setflag(a,soff):
    a(f's_add_u32 s{soff}, s{soff}, {WS_FLG}')
    a('s_mov_b64 exec, 1')
    a(f'v_mov_b32 v2, s{soff}')
    a(f'v_mov_b32 v3, s{sTOK}')
    a(f'global_store_dword v2, v3, s[{sWS}:{sWS+1}] sc1')
    a('s_mov_b64 exec, -1')
def poll2(a,tag,va,vb,mask):
    a('s_mov_b32 s58, 0x40000')
    a.lab(f'L_poll_{tag}')
    a(f'global_load_dword v3, v{va}, s[{sWS}:{sWS+1}] sc1')
    a(f'global_load_dword v4, v{vb}, s[{sWS}:{sWS+1}] sc1')
    a('s_waitcnt vmcnt(0)')
    a(f'v_cmp_eq_u32 s[56:57], s{sTOK}, v3')
    a(f'v_cmp_eq_u32 vcc, s{sTOK}, v4')
    a('s_nop 4')
    a('s_and_b64 s[56:57], s[56:57], vcc')
    a(f's_and_b32 s56, s56, {mask&0xffffffff:#x}')
    a(f's_and_b32 s57, s57, {mask>>32:#x}')
    a(f's_cmp_lg_u32 s56, {mask&0xffffffff:#x}')
    a(f's_cbranch_scc1 L_polln_{tag}')
    a(f's_cmp_eq_u32 s57, {mask>>32:#x}')
    a(f's_cbranch_scc1 L_polld_{tag}')
    a.lab(f'L_polln_{tag}')
    a('s_sleep 1')
    a('s_sub_u32 s58, s58, 1')
    a('s_cmp_lg_u32 s58, 0')
    a(f's_cbranch_scc1 L_poll_{tag}')
    a.lab(f'L_polld_{tag}')
POLLC=dict(sl=2,pol='sc1',pre=0)
def poll(a,tag,vaddr,offs,mask):
    a('s_mov_b32 s58, 0x40000')
    for _ in range(POLLC['pre']): a('s_sleep 8')
    a.lab(f'L_poll_{tag}')
    for i,o in enumerate(offs):
        a(f'global_load_dword v{vaddr+1+i}, v{vaddr}, s[{sWS}:{sWS+1}] offset:{o} {POLLC["pol"]}')
    a('s_waitcnt vmcnt(0)')
    a(f'v_cmp_eq_u32 s[56:57], s{sTOK}, v{vaddr+1}')
    if len(offs)>1:
        a(f'v_cmp_eq_u32 vcc, s{sTOK}, v{vaddr+2}')
        a('s_nop 4')
        a('s_and_b64 s[56:57], s[56:57], vcc')
    else:
        a('s_nop 4')
    a(f's_and_b32 s56, s56, {mask&0xffffffff:#x}')
    a(f's_and_b32 s57, s57, {mask>>32:#x}')
    a(f's_cmp_lg_u32 s56, {mask&0xffffffff:#x}')
    a(f's_cbranch_scc1 L_polln_{tag}')
    a(f's_cmp_eq_u32 s57, {mask>>32:#x}')
    a(f's_cbranch_scc1 L_polld_{tag}')
    a.lab(f'L_polln_{tag}')
    a(f's_sleep {POLLC["sl"]}')
    a('s_sub_u32 s58, s58, 1')
    a('s_cmp_lg_u32 s58, 0')
    a(f's_cbranch_scc1 L_poll_{tag}')
    a.lab(f'L_polld_{tag}')

def phase2(a,p,PRIO=0,BSH=0,NOHOOK=0,SPRIO=0,FP2=7):
    TILE=2560; HALF=81920; WOFF=40960; SCR=81920
    sR,sOo,sWo=4,8,12
    sHD,sJ,sQP,sKH=16,17,18,19
    st0,st1,st2,st3=20,21,22,23
    sVm=24; sLo=26
    sIT=28; sHB=29; sHBw=30; sOl=31; sOh=32; sLl=33; sQA=34; sSw=35; sAg=36; sOB=37; sOA=50; sNeed=39
    sTm=40
    sKV=44
    sOff=31; sInc=32
    sWn=48
    sWl=39
    vLane=1; vt0=2; vt1=3; vt2=4; vt3=5; vM=10; vt4=14; vt5=15
    vK1a,vK2a,vVa,vVb,vDma,vRho,vOoff,vOo2,vQ1o,vQ2o,vWo,vKap=P2C
    vQa1=16; vQab=20; vQa2=22; vQb1=24; vK1=28; vK2=32; vMb=35
    vV=36; vP=52; vQA2=60; vCc=63
    vSa=64; vSb=80; vOa=96; vOb=112; vCa=128; vCb=144; vMF=P2M; vML=P2M+16; vQA1=192
    vS1=160
    vEnd=256
    a(f's_load_dwordx2 s[50:51], s[0:1], 16')
    a(f's_load_dwordx2 s[52:53], s[0:1], 40')
    head_j(a,sHD,sJ,st0,st1)
    a(f's_and_b32 s{sQP}, s{sWV}, 3')
    a(f's_lshr_b32 s{sKH}, s{sWV}, 2')
    a(f's_mul_i32 s{sHB}, s{sHD}, {64*TILE}')
    a(f's_add_u32 s{sAg}, s{sHB}, {WS_KV-20480}')
    a(f's_add_u32 s{sHB}, s{sHB}, {WS_KV+32*64*TILE}')
    a(f's_mul_i32 s{st0}, s{sJ}, 20480')
    a(f's_add_u32 s{sAg}, s{sAg}, s{st0}')
    a(f's_mov_b32 s{sVm}, 0xfffff')
    a(f's_mov_b32 s{sVm+1}, 0xfffff')
    a(f's_mov_b32 s{sLo}, -1')
    a(f's_mov_b32 s{sLo+1}, 0')
    a(f's_lshl_b32 s{st0}, s{sJ}, 3')
    a(f's_lshl_b32 s{st1}, s{sHD}, 6')
    a(f's_add_u32 s{st1}, s{st1}, s{st0}')
    a(f's_add_u32 s{st2}, s{st1}, s{sWV}')
    a(f's_mul_i32 s{sQA}, s{st2}, 1280')
    a(f's_lshl_b32 s{st2}, s{sQP}, 1')
    a(f's_add_u32 s{st2}, s{st2}, s{sKH}')
    a(f's_add_u32 s{st2}, s{st2}, s{st0}')
    a(f's_lshl_b32 s{sOB}, s{st2}, 15')
    a(f's_add_u32 s{sOB}, s{sOB}, {2048*1280}')
    a(f's_lshl_b32 s{sOB+1}, s{st2}, 13')
    a(f's_add_u32 s{sOB+1}, s{sOB+1}, {2048*1280+128*16384}')
    srd(a,sR,sWS,sWS+1,WS_O)
    a(f's_add_u32 s56, s{sWS}, {WS_O}')
    a(f's_addc_u32 s57, s{sWS+1}, 0')
    srd(a,sOo,56,57,WS_END-WS_O)
    a(f's_add_u32 s{sKV}, s{sWS}, s{sHB}')
    a(f's_addc_u32 s{sKV+1}, s{sWS+1}, 0')
    a(f's_and_b32 s{sKV+1}, s{sKV+1}, 0xffff')
    a(f's_mov_b32 s{sKV+2}, 163840')
    a(f's_mov_b32 s{sKV+3}, 0x20000')
    a(f's_lshl_b32 s{sOff}, s{sWV}, 10')
    a(f's_add_u32 s{sOff}, s{sOff}, 40960')
    a(f's_mov_b32 s{sInc}, {HALF}')
    a(f's_mov_b32 s{sInc+1}, {(8192-HALF)&0xffffffff}')
    def vinit():
        a(f'v_cmp_eq_u32 s[{sTm}:{sTm+1}], 20, v{vRho}')
        a(f'v_mov_b32 v{vt1}, 0x3f803f80')
        a('s_nop 0')
        a(f'v_cndmask_b32 v{vt1}, 0, v{vt1}, s[{sTm}:{sTm+1}]')
        for i in range(16): a(f'v_mov_b32 v{vV+i}, v{vt1}')
    vinit()
    for r in range(16): a(f'v_mov_b32 v{vOa+r}, 0')
    for r in range(16): a(f'v_mov_b32 v{vOb+r}, 0')
    for i in range(4): a(f'v_mov_b32 v{vP+4+i}, 0')
    a(f's_lshl_b32 s{sWl}, s{sWV}, 10')
    a(f's_add_u32 s{sWl}, s{sWl}, {WOFF}')
    a(f's_and_b32 s{sWn}, s{sHD}, 7')
    a(f's_mul_i32 s{sWn}, s{sWn}, 160')
    a('s_waitcnt lgkmcnt(0)')
    a(f's_cmp_lt_u32 s{sHD}, 16')
    a('s_cselect_b64 s[50:51], s[50:51], s[52:53]')
    srd(a,sWo,50,51,640*1280)
    p.stamp(5)

    def rd_k1(dst,off):
        assert off%512==0 and off//512+1<256
        a(f'ds_read2st64_b64 {vr(dst,4)}, v{vK1a} offset0:{off//512} offset1:{off//512+1}')
    def rd_k2(dst,off): a(f'ds_read_b64 {vr(dst,2)}, v{vK2a} offset:{off}')
    def rd_v(buf,off):
        a(f's_mov_b64 exec, s[{sVm}:{sVm+1}]')
        a(f'ds_read_b128 {vr(vV+8*buf,4)}, v{vVa} offset:{off}')
        a(f'ds_read_b128 {vr(vV+8*buf+4,4)}, v{vVb} offset:{off}')
        a('s_mov_b64 exec, -1')
    def qk1(S,C,Q1,K=None): a(f'v_mfma_f32_32x32x16_bf16 {vr(S,16)}, {vr(vK1 if K is None else K,4)}, {vr(Q1,4)}, {C}')
    def qk2(S,Q2,K=None): a(f'v_mfma_f32_32x32x8bf16_1k {vr(S,16)}, {vr(vK2 if K is None else K,2)}, {vr(Q2,2)}, {vr(S,16)}')
    def qk2b(S): a(f'v_mfma_f32_32x32x4bf16_1k {vr(S,32)}, {vr(vK2,2)}, {vr(vQab,2)}, {vr(S,32)}')
    def pv(O,buf,t): a(f'v_mfma_f32_32x32x16_bf16 {vr(O,16)}, {vr(vV+8*buf+4*t,4)}, {vr(vP+4*t,4)}, {vr(O,16)}')
    def ex(S,r): a(f'v_exp_f32 v{S+r}, v{S+r}')
    def cv(S,c): a(f'v_cvt_pk_bf16_f32 v{vP+c}, v{S+2*c}, v{S+2*c+1}')
    def rowmax(M,S,first):
        if first:
            a(f'v_max3_f32 v{M}, v{S}, v{S+1}, v{S+2}'); rest=list(range(3,16))
        else: rest=list(range(16))
        while len(rest)>=2:
            a(f'v_max3_f32 v{M}, v{M}, v{S+rest[0]}, v{S+rest[1]}'); rest=rest[2:]
        if rest: a(f'v_max_f32 v{M}, v{M}, v{S+rest[0]}')
    def xhalf_max(M):
        a(f'v_mov_b32 v{vt1}, v{M}')
        a('s_nop 1')
        a(f'v_permlane32_swap_b32 v{M}, v{vt1}')
        a('s_nop 1')
        a(f'v_max_f32 v{M}, v{M}, v{vt1}')
    def get_l():
        a(f'v_mov_b32 v{vt1}, v{vOa+8}')
        a(f'v_mov_b32 v{vt2}, v{vOa+8}')
        a('s_nop 1')
        a(f'v_permlane32_swap_b32 v{vt1}, v{vt2}')
        a('s_nop 1')
    def store_o(soff):
        a(f'v_rcp_f32 v{vt3}, v{vt2}')
        a(f's_lshr_b32 s{st0}, s{sHD}, 1')
        a(f's_lshl_b32 s{st0}, s{st0}, 10')
        a(f's_and_b32 s{st1}, s{sHD}, 1')
        a(f's_lshl_b32 s{st1}, s{st1}, 9')
        a(f's_add_u32 s{st0}, s{st0}, s{st1}')
        a(f's_add_u32 s{st0}, s{st0}, s{soff}')
        for i in range(12): a(f'v_mul_f32 v{vOa+i}, v{vOa+i}, v{vt3}')
        for i in range(6): a(f'v_cvt_pk_bf16_f32 v{vSa+i}, v{vOa+2*i}, v{vOa+2*i+1}')
        a(f'buffer_store_dwordx4 {vr(vSa,4)}, v{vOoff}, s[{sOo}:{sOo+3}], s{st0} offen {SC}')
        a(f's_lshl_b32 s{st0}, s{sHD}, 7')
        a(f's_add_u32 s{st0}, s{st0}, s{soff+1}')
        a(f's_mov_b64 exec, s[{sLo}:{sLo+1}]')
        a(f'buffer_store_dwordx2 {vr(vSa+4,2)}, v{vOo2}, s[{sOo}:{sOo+3}], s{st0} offen {SC}')
        a('s_mov_b64 exec, -1')
    def addr_add(s):
        for r in (vK1a,vK2a,vVa,vVb): a(f'v_add_u32 v{r}, s{s}, v{r}')
    def addr_addi(imm):
        for r in (vK1a,vK2a,vVa,vVb): a(f'v_add_u32 v{r}, {imm}, v{r}')
    def dma_row(k):
        a(f's_mov_b32 m0, s{sOff}')
        a(f'buffer_load_dwordx4 v{vDma}, s[{sKV}:{sKV+3}], s{sOff} offen {SL} lds')
        a(f's_add_u32 s{sOff}, s{sOff}, s{sInc+(k&1)}')
    def dma_pair():
        dma_row(0); dma_row(1)
    def prio_switch(phase,L):
        a(f's_cmp_lt_u32 s{sWV}, 4')
        a(f's_cbranch_scc{1-phase} {L}_hi')
        a('s_setprio 0')
        a(f's_branch {L}_d')
        a.lab(f'{L}_hi')
        a('s_setprio 1')
        a.lab(f'{L}_d')
    def expgroups(cur,A_,B_,C_,D_):
        A_()
        for r in range(0,4): ex(cur,r)
        B_()
        ex(cur,4); ex(cur,5); cv(cur,0); ex(cur,6); cv(cur,1); ex(cur,7)
        C_()
        ex(cur,8); cv(cur,2); ex(cur,9); cv(cur,3); ex(cur,10); ex(cur,11)
        D_()
        ex(cur,12); ex(cur,13); cv(cur,4); ex(cur,14); cv(cur,5); ex(cur,15); cv(cur,6); cv(cur,7)

    a('s_cmp_eq_u32 s49, 8')
    a('s_cbranch_scc1 L_p2_w8')
    a('s_cmp_eq_u32 s49, 0')
    a('s_cbranch_scc1 L_p2_w6')
    a('s_waitcnt vmcnt(12)')
    a('s_branch L_p2_wd')
    a.lab('L_p2_w6')
    a('s_waitcnt vmcnt(6)')
    a('s_branch L_p2_wd')
    a.lab('L_p2_w8')
    a('s_waitcnt vmcnt(8)')
    a.lab('L_p2_wd')
    a('s_barrier')
    p.stamp(7)
    rd_k1(vK1,0); rd_k2(vK2,0)
    a('s_waitcnt lgkmcnt(0)')
    qk1(vSa,'0',vQa1); qk1(vSb,'0',vQb1)
    a(f's_mul_i32 s{st0}, s{sKH}, {HALF}')
    addr_add(st0)
    a('s_nop 5')
    qk2b(vSa)
    rd_k1(vK1,0); rd_k2(vK2,0); rd_v(0,0)
    a('s_nop 15')
    a('s_nop 3')
    rowmax(vM,vSa,True)
    rowmax(vMb,vSb,True)
    xhalf_max(vM); xhalf_max(vMb)
    for r in range(16): a(f'v_sub_f32 v{vCa+r}, 0, v{vM}')
    for r in range(16): a(f'v_sub_f32 v{vCb+r}, 0, v{vMb}')
    a('s_waitcnt lgkmcnt(0)')
    qk1(vSa,vr(vCa,16),vQa1); qk1(vSb,vr(vCb,16),vQb1)
    rd_k1(vK1,TILE)
    a('s_nop 9')
    qk2b(vSa)
    rd_k2(vK2,TILE)
    a(f's_mov_b32 s{sIT}, 0')
    if SPRIO:
        a(f's_cmp_lt_u32 s{sWV}, 4'); a('s_cbranch_scc1 L_sp'); a('s_setprio 1'); a.lab('L_sp')
    a.raw('.p2align 6')
    for _ in range(BSH): a('s_nop 0')
    a.lab('L_b_loop')
    ool=[]
    def cond(it,L,fn):
        a(f's_cmp_eq_u32 s{sIT}, {it}'); a(f's_cbranch_scc1 {L}'); a.lab(L+'_r')
        ool.append((L,fn))
    SP=[vSa,vS1]
    for pp in range(8):
        off=pp*TILE
        if pp==2:
            a(f's_cmp_lt_u32 s{sIT}, 2'); a('s_cbranch_scc1 L_h2'); a.lab('L_h2_r')
            def h2():
                a(f's_cmp_eq_u32 s{sIT}, 1'); a('s_cbranch_scc1 L_h2b')
                a('s_waitcnt vmcnt(2)'); a('s_barrier')
                a(f's_cmp_lg_u32 s{sWV}, 4'); a('s_cbranch_scc1 L_h2_r')
                a('s_cmp_lt_i32 s49, 0'); a('s_cbranch_scc0 L_h2_r')
                a('s_and_b32 s50, s49, 0x7fffffff')
                setflag(a,50)
                a('s_branch L_h2_r')
                a.lab('L_h2b')
                a(f's_mov_b32 s{sOff}, 200000'); a(f's_mov_b32 s{sInc}, 0'); a(f's_mov_b32 s{sInc+1}, 0')
            ool.append(('L_h2',h2))
        if pp==6:
            def h6():
                a(f's_mov_b32 s{sOff}, 200000'); a(f's_mov_b32 s{sInc}, 0'); a(f's_mov_b32 s{sInc+1}, 0')
            cond(3,'L_h6',h6)
        dma_row(pp)
        cur=SP[pp&1]; nxt=SP[(pp+1)&1]
        a('s_waitcnt lgkmcnt(0)')
        expgroups(cur,
            lambda: qk1(nxt,vr(vCa,16),vQa1),
            lambda: (pv(vOb,(pp+1)&1,1), rd_v((pp+1)&1,off+TILE)),
            lambda: (qk1(nxt+16,vr(vCb,16),vQb1), rd_k1(vK1,off+2*TILE)),
            lambda: pv(vOa,pp&1,0))
        expgroups(cur+16,
            lambda: (qk2b(nxt), rd_k2(vK2,off+2*TILE)),
            lambda: None,
            lambda: pv(vOa,pp&1,1),
            lambda: pv(vOb,pp&1,0))
    a(f's_cmp_eq_u32 s{sIT}, 3'); a('s_cbranch_scc1 L_b_exit')
    a(f's_cmp_eq_u32 s{sIT}, 1'); a('s_cbranch_scc1 L_bb1')
    a(f's_cmp_eq_u32 s{sIT}, 2'); a('s_cbranch_scc1 L_bb2')
    a('s_waitcnt vmcnt(2)'); a('s_barrier')
    a.lab('L_bb_r')
    def bb1():
        a('s_waitcnt vmcnt(0)'); a('s_barrier')
        a(f's_mov_b32 s{sKV+2}, 0')
        gettok(a,'a',0)
        a('s_branch L_bb_r')
    def bb2():
        a(f's_cmp_lg_u32 s{sWV}, 0'); a('s_cbranch_scc1 L_bb2a')
        poll_f1(a,'a',0)
        a.lab('L_bb2a')
        a('s_waitcnt vmcnt(0)'); a('s_barrier')
        a(f's_add_u32 s{sKV}, s{sWS}, s{sAg}')
        a(f's_addc_u32 s{sKV+1}, s{sWS+1}, 0')
        a(f's_and_b32 s{sKV+1}, s{sKV+1}, 0xffff')
        a(f's_mov_b32 s{sKV+2}, 40960')
        a(f's_lshl_b32 s{sOff}, s{sWV}, 10')
        a(f's_sub_u32 s{sOff}, s{sOff}, 8192')
        a(f's_mov_b32 s{sInc}, 8192')
        a(f's_mov_b32 s{sInc+1}, 8192')
        a(f'buffer_load_dwordx2 {vr(vQA1,2)}, v{vQ1o}, s[{sR}:{sR+3}], s{sQA} offen {SL}')
        a(f'buffer_load_dwordx2 {vr(vQA1+2,2)}, v{vQ1o}, s[{sR}:{sR+3}], s{sQA} offen offset:512 {SL}')
        a(f'buffer_load_dwordx2 {vr(vQA2,2)}, v{vQ2o}, s[{sR}:{sR+3}], s{sQA} offen {SL}')
        a('s_branch L_bb_r')
    ool.append(('L_bb1',bb1)); ool.append(('L_bb2',bb2))
    addr_addi(8*TILE)
    if PROF and BPROF==1:
        for k in range(4):
            a(f's_cmp_lg_u32 s{sIT}, {k}'); a(f's_cbranch_scc1 L_st{k}'); p.stamp(1+k); a.lab(f'L_st{k}')
    a(f's_add_u32 s{sIT}, s{sIT}, 1')
    a('s_branch L_b_loop')
    a.lab('L_b_exit')
    addr_addi(8*TILE)
    a('s_nop 1')
    pv(vOb,1,1)
    a('s_setprio 0')
    a('s_nop 15')
    p.stamp(8)
    a(f's_lshl_b32 s{st0}, s{sQP}, 1')
    a(f's_cmp_eq_u32 s{sKH}, 0')
    a('s_cbranch_scc0 L_mg_hi')
    a(f's_add_u32 s{st1}, s{st0}, 1')
    a(f's_mul_i32 s{st1}, s{st1}, 3072')
    a(f's_add_u32 s{st1}, s{st1}, {SCR}')
    a(f'v_add_u32 v{vt4}, s{st1}, v{vDma}')
    for i in range(3): a(f'ds_write_b128 v{vt4}, {vr(vOb+4*i,4)} offset:{1024*i}')
    a(f's_mul_i32 s{st1}, s{st0}, 3072')
    a('s_branch L_mg_d')
    a.lab('L_mg_hi')
    a(f's_mul_i32 s{st1}, s{st0}, 3072')
    a(f's_add_u32 s{st1}, s{st1}, {SCR}')
    a(f'v_add_u32 v{vt4}, s{st1}, v{vDma}')
    for i in range(3): a(f'ds_write_b128 v{vt4}, {vr(vOa+4*i,4)} offset:{1024*i}')
    for i in range(12): a(f'v_mov_b32 v{vOa+i}, v{vOb+i}')
    for i in range(4): a(f'v_mov_b32 v{vQa1+i}, v{vQb1+i}')
    a(f's_add_u32 s{st1}, s{st0}, 1')
    a(f's_mul_i32 s{st1}, s{st1}, 3072')
    a.lab('L_mg_d')
    a(f's_add_u32 s{st1}, s{st1}, {SCR}')
    a(f'v_add_u32 v{vt4}, s{st1}, v{vDma}')
    a('s_waitcnt lgkmcnt(0) vmcnt(0)')
    a('s_barrier')
    for i in range(3): a(f'ds_read_b128 {vr(vSa+4*i,4)}, v{vt4} offset:{1024*i}')
    a('s_waitcnt lgkmcnt(0)')
    a('s_barrier')
    for i in range(12): a(f'v_add_f32 v{vOa+i}, v{vOa+i}, v{vSa+i}')
    get_l()
    a(f'v_mov_b32 v{vt3}, {f32bits(2.0**100):#x}')
    a(f'v_cmp_nlt_f32 vcc, v{vt2}, v{vt3}')
    a('s_nop 4')
    a('s_cbranch_vccnz L_b_fallback')
    a.lab('L_b_store')
    store_o(sOB)
    p.stamp(9)
    a(f's_mul_i32 s{st0}, s{sWV}, {TILE}')
    a(f's_mul_i32 s{st1}, s{sKH}, {HALF}')
    a(f's_sub_u32 s{st0}, s{st0}, s{st1}')
    a(f's_sub_u32 s{st0}, s{st0}, {32*TILE}')
    addr_add(st0)
    a(f's_lshl_b32 s{st0}, s{sJ}, 3')
    a(f's_add_u32 s{st2}, s{st0}, s{sWV}')
    a(f's_lshl_b32 s{sOA}, s{st2}, 15')
    a(f's_lshl_b32 s{sOA+1}, s{st2}, 13')
    a(f's_add_u32 s{sOA+1}, s{sOA+1}, {128*16384}')
    for i in range(4): a(f'v_mov_b32 v{vQa1+i}, v{vQA1+i}')
    for i in range(2): a(f'v_mov_b32 v{vQa2+i}, v{vQA2+i}')
    a(f's_sub_u32 s{sSw}, 8, s{sWV}')
    a(f's_cmp_lg_u32 s{sJ}, 0')
    a(f's_cselect_b32 s{sSw}, 0, s{sSw}')
    vC=vCa; vO=vOa; vS=[vSa,vSb]
    KR=[(vV,vV+4),(vV+8,vV+12),(vP,vP+4)]
    SB=[vSa,vSb,vOa]
    sRedo=30; sWoEn=55
    def cmid_init(tag,val,first):
        a(f's_cmp_le_u32 s{sSw}, {first}')
        a(f's_cbranch_scc1 L_cm_{tag}_v')
        for r in range(16): a(f'v_mov_b32 v{vC+r}, {NEG_BIG:#x}')
        a(f's_branch L_cm_{tag}_d')
        a.lab(f'L_cm_{tag}_v')
        for r in range(16): a(f'v_mov_b32 v{vC+r}, {val}')
        a.lab(f'L_cm_{tag}_d')
    def cmid_switch(tag,t,val):
        L=f'L_sw_{tag}_{t}'
        a(f's_cmp_eq_u32 s{sSw}, {t}')
        a(f's_cbranch_scc1 {L}')
        a.lab(L+'_r')
        def fn():
            a('s_nop 15')
            for r in range(16): a(f'v_mov_b32 v{vC+r}, {val}')
            a('s_nop 1')
        ool.append((L,fn))
    wocnt=[0]
    def wo_dma():
        if wocnt[0]>=10: return
        n=wocnt[0]; wocnt[0]+=1
        a(f's_cmp_lg_u32 s{sWoEn}, 0')
        a(f's_cbranch_scc0 L_wo{n}')
        for k in range(2):
            a(f's_mov_b32 m0, s{sWl}')
            a(f's_add_u32 s{sWl}, s{sWl}, 5120')
            a(f'buffer_load_dwordx4 v{vWo}, s[{sWo}:{sWo+3}], s{sWn} offen lds')
            a(f's_add_u32 s{sWn}, s{sWn}, 40960')
        a.lab(f'L_wo{n}')
    def maxpass(tag,tiles,dma):
        cmid_init(tag,'0',max(1,tiles[0]))
        nb=len(tiles)//3
        for i in range(3):
            rd_k1(KR[i][0],tiles[i]*TILE); rd_k2(KR[i][1],tiles[i]*TILE)
        for b in range(nb):
            a('s_waitcnt lgkmcnt(0)')
            for i in range(3):
                t=tiles[3*b+i]
                if max(1,tiles[0])<t<=7: cmid_switch(tag,t,'0')
                C = vr(vMF,16) if t==0 else (vr(vML,16) if t==8 else vr(vC,16))
                qk1(SB[i],C,vQa1,KR[i][0]); qk2(SB[i],vQa2,KR[i][1])
            if b<nb-1:
                for i in range(3):
                    t=tiles[3*(b+1)+i]
                    rd_k1(KR[i][0],t*TILE); rd_k2(KR[i][1],t*TILE)
            else:
                rd_k1(vK1,0); rd_k2(vK2,0)
            if dma: wo_dma()
            a('s_nop 7')
            for i in range(3):
                if i==2: a('s_nop 3')
                rowmax(vM,SB[i],b==0 and i==0)
    a(f's_mov_b32 s{sRedo}, 0')
    a(f's_cmp_lt_u32 s{sWV}, 5')
    a(f's_cselect_b32 s{sWoEn}, 1, 0')
    maxpass('p1',[6,7,8],True)
    a.lab('L_a_p2')
    xhalf_max(vM)
    a(f'v_sub_f32 v{vM}, 0, v{vM}')
    for r in range(16): a(f'v_add_f32 v{vMF+r}, v{vMF+r}, v{vM}')
    for r in range(16): a(f'v_add_f32 v{vML+r}, v{vML+r}, v{vM}')
    cmid_init('p2',f'v{vM}',1)
    for r in range(16): a(f'v_mov_b32 v{vO+r}, 0')
    vinit()
    for i in range(4): a(f'v_mov_b32 v{vP+4+i}, 0')
    a('s_waitcnt lgkmcnt(0)')
    qk1(vS[0],vr(vMF,16),vQa1); qk2(vS[0],vQa2)
    rd_k1(vK1,TILE); rd_v(0,0); rd_k2(vK2,TILE)
    for t in range(9):
        last=(t==8); last2=(t==7); tn=t+1
        cur=vS[t&1]; nxt=vS[(t+1)&1]; off=t*TILE
        Cn = vr(vML,16) if tn==8 else vr(vC,16)
        a('s_waitcnt lgkmcnt(0)')
        if 2<=tn<=7: cmid_switch('p2',tn,f'v{vM}')
        wo_dma()
        def A_():
            if not last: qk1(nxt,Cn,vQa1)
            if not last and not last2: rd_k1(vK1,off+2*TILE)
        def B_():
            pv(vO,(t+1)&1,1)
            if not last: rd_v((t+1)&1,off+TILE)
        def C_():
            if not last: qk2(nxt,vQa2)
            if not last and not last2: rd_k2(vK2,off+2*TILE)
        expgroups(cur,A_,B_,C_,lambda: pv(vO,t&1,0))
    A_CHECK=True
    assert wocnt[0]==10
    a('s_nop 1')
    pv(vO,0,1)
    a('s_nop 15')
    a('s_nop 0')
    get_l()
    a(f'v_mov_b32 v{vt3}, {f32bits(2.0**100):#x}')
    a(f'v_cmp_nlt_f32 vcc, v{vt2}, v{vt3}')
    a('s_nop 4')
    a('s_cbranch_vccnz L_a_exact')
    a.lab('L_a_store')
    store_o(sOA)
    p.stamp(10)
    a('s_waitcnt vmcnt(0)')
    a('s_barrier')
    p.stamp(11)
    a(f's_cmp_lg_u32 s{sWV}, 4')
    a('s_cbranch_scc1 L_p3')
    a(f's_lshl_b32 s{st0}, s{sJ}, 12')
    a(f's_lshl_b32 s{st1}, s{sHD}, {FP2}')
    a(f's_add_u32 s{st0}, s{st0}, s{st1}')
    a(f's_add_u32 s{st0}, s{st0}, 65536')
    setflag(a,st0)
    a(f's_lshl_b32 s{st0}, s{sJ}, 12')
    a(f's_add_u32 s{st0}, s{st0}, {WS_FLG+65536}')
    a(f'v_and_b32 v{vt0}, 31, v{vLane}')
    a(f'v_lshlrev_b32 v{vt0}, {FP2}, v{vt0}')
    a(f'v_add_u32 v{vt0}, s{st0}, v{vt0}')
    poll(a,'p3',vt0,[0],(1<<32)-1)
    a('s_barrier')
    a('s_branch L_done')
    a.lab('L_a_exact')
    a(f's_cmp_lg_u32 s{sRedo}, 0')
    a('s_cbranch_scc1 L_a_store')
    a(f's_mov_b32 s{sRedo}, 1')
    a(f's_mov_b32 s{sWoEn}, 0')
    for r in range(16): a(f'v_sub_f32 v{vMF+r}, v{vMF+r}, v{vM}')
    for r in range(16): a(f'v_sub_f32 v{vML+r}, v{vML+r}, v{vM}')
    maxpass('p1x',[0,1,2,3,4,5,6,7,8],False)
    a('s_branch L_a_p2')
    for L,fn in ool:
        a.lab(L); fn()
        if not L.startswith('L_bb'): a(f's_branch {L}_r')
    a.lab('L_b_fallback')
    for i in range(2):
        a(f'v_mov_b32 v{vt4}, v{vQab+i}')
        a(f'v_mov_b32 v{vt5}, v{vQab+i}')
        a('s_nop 1')
        a(f'v_permlane32_swap_b32 v{vt4}, v{vt5}')
        a(f's_cmp_eq_u32 s{sKH}, 0')
        a('s_cselect_b64 s[56:57], -1, 0')
        a('s_nop 1')
        a(f'v_cndmask_b32 v{vt4}, v{vt5}, v{vt4}, s[56:57]')
        a(f'v_cndmask_b32 v{vQa2+i}, 0, v{vt4}, s[{sLo}:{sLo+1}]')
    a(f'v_lshlrev_b32 v{vt4}, 3, v{vRho}')
    a(f'v_add_u32 v{vt4}, 1024, v{vt4}')
    a(f'v_lshrrev_b32 v{vt0}, 5, v{vLane}')
    a(f'v_bfe_u32 v{vt5}, v{vRho}, 2, 2')
    a(f'v_xor_b32 v{vt5}, v{vt5}, v{vt0}')
    a(f'v_lshlrev_b32 v{vt5}, 4, v{vt5}')
    a(f'v_lshl_add_u32 v{vt5}, v{vRho}, 6, v{vt5}')
    a(f'v_add_u32 v{vt5}, 1280, v{vt5}')
    a(f'v_xor_b32 v{vt0}, 32, v{vt5}')
    a(f'v_mov_b32 v{vM}, {NEG_BIG:#x}')
    a(f's_mov_b32 s{st0}, s{sHB}')
    a(f's_mov_b32 s{sIT}, 64')
    a.lab('L_fb_p1')
    a(f'buffer_load_dwordx2 {vr(vK1,2)}, v{vQ1o}, s[{sR}:{sR+3}], s{st0} offen {SL}')
    a(f'buffer_load_dwordx2 {vr(vK1+2,2)}, v{vQ1o}, s[{sR}:{sR+3}], s{st0} offen offset:512 {SL}')
    a(f'buffer_load_dwordx2 {vr(vK2,2)}, v{vt4}, s[{sR}:{sR+3}], s{st0} offen {SL}')
    a('s_waitcnt vmcnt(0)')
    qk1(vSa,'0',vQa1); qk2(vSa,vQa2)
    a('s_nop 15')
    rowmax(vM,vSa,False)
    a(f's_add_u32 s{st0}, s{st0}, {TILE}')
    a(f's_sub_u32 s{sIT}, s{sIT}, 1')
    a(f's_cmp_lg_u32 s{sIT}, 0')
    a('s_cbranch_scc1 L_fb_p1')
    xhalf_max(vM)
    for r in range(16): a(f'v_sub_f32 v{vCa+r}, 0, v{vM}')
    for r in range(16): a(f'v_mov_b32 v{vOa+r}, 0')
    a(f's_mov_b32 s{st0}, s{sHB}')
    a(f's_mov_b32 s{sIT}, 64')
    a.lab('L_fb_p2')
    a(f'buffer_load_dwordx2 {vr(vK1,2)}, v{vQ1o}, s[{sR}:{sR+3}], s{st0} offen {SL}')
    a(f'buffer_load_dwordx2 {vr(vK1+2,2)}, v{vQ1o}, s[{sR}:{sR+3}], s{st0} offen offset:512 {SL}')
    a(f'buffer_load_dwordx2 {vr(vK2,2)}, v{vt4}, s[{sR}:{sR+3}], s{st0} offen {SL}')
    a(f's_mov_b64 exec, s[{sVm}:{sVm+1}]')
    a(f'buffer_load_dwordx4 {vr(vV,4)}, v{vt5}, s[{sR}:{sR+3}], s{st0} offen {SL}')
    a(f'buffer_load_dwordx4 {vr(vV+4,4)}, v{vt0}, s[{sR}:{sR+3}], s{st0} offen {SL}')
    a('s_mov_b64 exec, -1')
    a('s_waitcnt vmcnt(0)')
    qk1(vSa,vr(vCa,16),vQa1); qk2(vSa,vQa2)
    a('s_nop 15')
    for r in range(16): ex(vSa,r)
    a('s_nop 0')
    for c in range(8): cv(vSa,c)
    a('s_nop 1')
    pv(vOa,0,0); pv(vOa,0,1)
    a(f's_add_u32 s{st0}, s{st0}, {TILE}')
    a(f's_sub_u32 s{sIT}, s{sIT}, 1')
    a(f's_cmp_lg_u32 s{sIT}, 0')
    a('s_cbranch_scc1 L_fb_p2')
    a('s_nop 15')
    get_l()
    a('s_branch L_b_store')
    return vEnd, dict(sHD=sHD,sJ=sJ)

def phase3(a,p,info,ROT3=3,XD=6):
    WOFF=40960
    sHD,sJ=info['sHD'],info['sJ']
    sX,sO=4,8
    st0,st1,st2,st3=20,21,22,23
    sPH=28; sBR=29; sMT=30; sNT=31
    vLane=1; vXo=2; vt0=4; vt1=5; vt2=6; vt3=7; vTok=8; vG=9; vTr=10; vOut=11; vTp=12; vTq=14; vX2=3
    vX=16; vWf=vX+160; vAcc=vWf+40; vEnd=vAcc+40
    a.lab('L_p3')
    a(f's_cmp_ge_u32 s{sWV}, 4')
    a('s_cbranch_scc1 L_done')
    a('s_load_dwordx2 s[50:51], s[0:1], 48')
    a(f's_lshr_b32 s{sBR}, s{sHD}, 4')
    a(f's_bfe_u32 s{st0}, s{sHD}, 0x10003')
    a(f's_lshl_b32 s{sMT}, s{sJ}, 1')
    a(f's_add_u32 s{sMT}, s{sMT}, s{st0}')
    a(f's_and_b32 s{sNT}, s{sHD}, 7')
    a(f's_and_b32 s{sPH}, s{sHD}, {ROT3}')
    a(f'v_and_b32 v{vTok}, 15, v{vLane}')
    a(f'v_lshrrev_b32 v{vG}, 4, v{vLane}')
    a(f'v_lshlrev_b32 v{vXo}, 4, v{vLane}')
    a(f'v_lshlrev_b32 v{vX2}, 3, v{vLane}')
    a(f's_lshl_b32 s{st0}, s{sMT}, 3')
    a(f's_lshl_b32 s{st1}, s{sWV}, 1')
    a(f's_add_u32 s{st0}, s{st0}, s{st1}')
    a(f's_lshl_b32 s32, s{st0}, 14')
    a(f's_lshl_b32 s36, s{st0}, 12')
    a(f's_add_u32 s36, s36, {128*16384}')
    a(f's_add_u32 s37, s36, 4096')
    a(f's_mul_i32 s{st0}, s{sBR}, {2048*1280}')
    a(f's_add_u32 s{st0}, s{st0}, {WS_O}')
    a(f's_add_u32 s52, s{sWS}, s{st0}')
    a(f's_addc_u32 s53, s{sWS+1}, 0')
    srd(a,sX,52,53,2048*1280)
    a(f'v_bfe_u32 v{vt0}, v{vLane}, 2, 2')
    a(f'v_mul_u32_u24 v{vt0}, 160, v{vt0}')
    a(f'v_and_b32 v{vt1}, 3, v{vLane}')
    a(f'v_lshl_add_u32 v{vt0}, v{vt1}, 3, v{vt0}')
    a(f'v_add_u32 v{vt0}, {WOFF}, v{vt0}')
    a(f'v_lshrrev_b32 v{vt1}, 1, v{vG}')
    a(f'v_mul_u32_u24 v{vt1}, 5, v{vt1}')
    a(f'v_and_b32 v{vt2}, 1, v{vG}')
    a(f'v_add_u32 v{vt1}, v{vt1}, v{vt2}')
    a(f'v_mul_u32_u24 v{vt1}, 640, v{vt1}')
    a(f'v_add_u32 v{vTr}, v{vt0}, v{vt1}')
    a(f'v_mul_u32_u24 v{vt1}, {5*640}, v{vG}')
    a(f'v_add3_u32 v{vTq}, v{vt0}, v{vt1}, 0')
    a(f'v_add_u32 v{vTq}, {4*640}, v{vTq}')
    for i in range(40): a(f'v_mov_b32 v{vAcc+i}, 0')
    a(f's_lshl_b32 s{st0}, s{sMT}, 7')
    a(f's_lshl_b32 s{st1}, s{sWV}, 5')
    a(f's_add_u32 s{st0}, s{st0}, s{st1}')
    a(f'v_add_u32 v{vt0}, s{st0}, v{vTok}')
    a(f'v_mul_u32_u24 v{vt0}, 2560, v{vt0}')
    a(f'v_and_b32 v{vt1}, 1, v{vG}')
    a(f'v_lshlrev_b32 v{vt1}, 5, v{vt1}')
    a(f'v_lshrrev_b32 v{vt2}, 1, v{vG}')
    a(f'v_lshl_add_u32 v{vt1}, v{vt2}, 4, v{vt1}')
    a(f'v_add_u32 v{vOut}, v{vt0}, v{vt1}')
    a(f'v_lshl_add_u32 v{vt3}, v{vG}, 3, v{vt0}')
    a('s_barrier')
    p.stamp(12)
    a(f's_mov_b32 s33, s{sPH}')
    for ph in range(4):
        a(f's_lshl_b32 s{st0}, s33, 12')
        a(f's_add_u32 s{40+2*ph}, s32, s{st0}')
        a(f's_add_u32 s{41+2*ph}, s{40+2*ph}, 16384')
        a('s_add_u32 s33, s33, 1')
        a('s_and_b32 s33, s33, 3')
    def xloads(st):
        L=[]
        if st<16:
            for u in range(2):
                L.append(f'buffer_load_dwordx4 {vr(vX+(st*2+u)*4,4)}, v{vXo}, s[{sX}:{sX+3}], s{40+2*(st//4)+u} offen offset:{(st%4)*1024} {SL}')
        elif st<20:
            for u in range(2):
                for hh in range(2):
                    L.append(f'buffer_load_dwordx2 {vr(vX+(st*2+u)*4+2*hh,2)}, v{vX2}, s[{sX}:{sX+3}], s{36+u} offen offset:{(st-16)*1024+hh*512} {SL}')
        return L
    for st in range(XD):
        for l in xloads(st): a(l)
    if BPROF==3: p.stamp(1,force=True)
    a('s_waitcnt lgkmcnt(0)')
    srd(a,sO,50,51,2048*2560)
    def trr(s,cp,h):
        buf=vWf+(s&1)*20+cp*4+2*h
        if s<16: return f'ds_read_b64_tr_b16 {vr(buf,2)}, v{vTp+((s//4)&1)} offset:{(s%4)*6400+cp*32+h*1280}'
        o=(s-16)*25600+cp*32+h*12800
        if o<65536: return f'ds_read_b64_tr_b16 {vr(buf,2)}, v{vTq} offset:{o}'
        return f'ds_read_b64_tr_b16 {vr(buf,2)}, v{vTq+1} offset:{o-51200}'
    def setp(ph):
        a(f's_mul_i32 s{st0}, s{sPH}, {4*6400}')
        a(f'v_add_u32 v{vTp+(ph&1)}, s{st0}, v{vTr}')
        a(f's_add_u32 s{sPH}, s{sPH}, 1')
        a(f's_and_b32 s{sPH}, s{sPH}, 3')
    a(f'v_add_u32 v{vTq+1}, 51200, v{vTq}')
    setp(0)
    for cp in range(5):
        a(trr(0,cp,0)); a(trr(0,cp,1))
    nl=lambda st: len(xloads(st))
    for s in range(20):
        if s%4==0 and s//4+1<4: setp(s//4+1)
        nxt=[trr(s+1,cp,h) for cp in range(5) for h in range(2)] if s+1<20 else []
        xl=xloads(s+XD)
        buf=vWf+(s&1)*20
        younger=sum(nl(t) for t in range(s+1,min(s+XD,20)))
        a(f's_waitcnt lgkmcnt(0) vmcnt({younger})')
        if BPROF==3 and s in (0,4,8,12,16,19): p.stamp(2+(0,4,8,12,16,19).index(s),force=True)
        k=0
        for cp in range(5):
            for u in range(2):
                ac=vAcc+(cp*2+u)*4
                a(f'v_mfma_f32_16x16x32_bf16 {vr(ac,4)}, {vr(buf+cp*4,4)}, {vr(vX+(s*2+u)*4,4)}, {vr(ac,4)}')
                for _ in range(2 if k<5 else 0):
                    if nxt: a(nxt.pop(0))
                if k>=5 and xl: a(xl.pop(0))
                k+=1
        assert not xl
    a('s_nop 7')
    p.stamp(13)
    a(f's_mul_i32 s{st0}, s{sBR}, 1280')
    a(f's_mul_i32 s{st1}, s{sNT}, 160')
    a(f's_add_u32 s{st0}, s{st0}, s{st1}')
    a(f's_add_u32 s{st1}, s{st0}, {16*2560}')
    for u in range(2):
        for cp in range(5):
            b=vAcc+(cp*2+u)*4
            a(f'v_cvt_pk_bf16_f32 v{b}, v{b}, v{b+1}')
            a(f'v_cvt_pk_bf16_f32 v{b+1}, v{b+2}, v{b+3}')
        for cp in (0,2):
            b=vAcc+(cp*2+u)*4; b2=vAcc+((cp+1)*2+u)*4
            a(f'v_mov_b32 v{b+2}, v{b2}')
            a(f'v_mov_b32 v{b+3}, v{b2+1}')
            a('s_nop 1')
            a(f'v_permlane16_swap_b32 v{b}, v{b+2}')
            a(f'v_permlane16_swap_b32 v{b+1}, v{b+3}')
            a('s_nop 1')
            a(f'buffer_store_dwordx4 {vr(b,4)}, v{vOut}, s[{sO}:{sO+3}], s{st0+u} offen offset:{cp*32} {SO}')
        b=vAcc+(4*2+u)*4
        a(f'buffer_store_dwordx2 {vr(b,2)}, v{vt3}, s[{sO}:{sO+3}], s{st0+u} offen offset:128 {SO}')
    return vEnd

def build(**kw):
    a=A(); p=Prof(a)
    a.raw(f'.globl {KNAME}'); a.raw('.p2align 8'); a.raw(f'.type {KNAME},@function'); a.lab(KNAME)
    a('s_cmp_ge_u32 s2, 256')
    a('s_cbranch_scc1 L_exit')
    p.real(0); p.stamp(0)
    a(f's_load_dwordx4 s[{sDBG}:{sDBG+3}], s[0:1], 56' if False else f's_load_dwordx2 s[{sDBG}:{sDBG+1}], s[0:1], 56')
    a(f's_load_dwordx2 s[{sWS}:{sWS+1}], s[0:1], 64')
    a('s_load_dwordx4 s[16:19], s[0:1], 0')
    a('s_load_dwordx4 s[20:23], s[0:1], 24')
    a(f's_mov_b32 s{sWG}, s2')
    a('v_lshrrev_b32 v2, 6, v0')
    a('s_nop 0')
    a(f'v_readfirstlane_b32 s{sWV}, v2')
    a(f's_cmp_lg_u32 s{sWG}, 0')
    a('s_cbranch_scc1 L_notok')
    a(f's_cmp_lg_u32 s{sWV}, 4')
    a('s_cbranch_scc1 L_notok')
    a('s_memrealtime s[56:57]')
    a('s_waitcnt lgkmcnt(0)')
    a('s_or_b32 s56, s56, 1')
    a('s_mov_b64 exec, 1')
    a('v_mov_b32 v2, 0')
    a('v_mov_b32 v3, s56')
    a(f'global_store_dword v2, v3, s[{sDBG}:{sDBG+1}] sc1')
    a('s_mov_b64 exec, -1')
    a.lab('L_notok')
    if CPF:
        a(f's_cmp_lg_u32 s{sWV}, 5')
        a('s_cbranch_scc1 L_nocpf')
        a('s_getpc_b64 s[56:57]')
        a.lab('L_pc')
        a(f's_lshr_b32 s58, s{sWG}, 3')
        a('s_and_b32 s58, s58, 31')
        a('s_lshl_b32 s58, s58, 10')
        a('v_and_b32 v2, 63, v0')
        a('v_lshlrev_b32 v2, 4, v2')
        a('v_add_u32 v2, s58, v2')
        a(f'v_min_u32 v2, CODE_BYTES-16, v2')
        a('global_load_dwordx4 v[84:87], v2, s[56:57]')
        a.lab('L_nocpf')
    v1=phase1(a,p,**kw.get('p1',{}))
    v2,info=phase2(a,p,**kw.get('p2',{}))
    v3=phase3(a,p,info,**kw.get('p3',{}))
    a.lab('L_done')
    if PROF:
        a('s_waitcnt vmcnt(0)')
        p.real(1); p.dump()
    a('s_endpgm')
    a.lab('L_exit')
    a('s_endpgm')
    a.lab('L_code_end')
    a.raw('.set CODE_BYTES, (L_code_end - L_pc) & 0xfffffff0' if CPF else '')
    vg=max(v1,v2,v3)
    desc=f'''.section .rodata,"a"
.p2align 6
.amdhsa_kernel {KNAME}
  .amdhsa_next_free_vgpr {vg}
  .amdhsa_next_free_sgpr 102
  .amdhsa_accum_offset {(vg+3)//4*4}
  .amdhsa_group_segment_fixed_size 0
  .amdhsa_kernarg_size 72
  .amdhsa_user_sgpr_count 2
  .amdhsa_user_sgpr_kernarg_segment_ptr 1
  .amdhsa_system_sgpr_workgroup_id_x 1
.end_amdhsa_kernel
'''
    hdr=open('cdna_kernels/'+NAME+'.s.ref').read().split('\n')
    out=[]
    for l in hdr:
        if l.startswith('; @launch'): out.append('; @launch grid=(256,1,1) block=(512,1,1) lds=163840'); continue
        if not l.startswith(';'): break
        out.append(l)
    out.append('.amdgcn_target "amdgcn-amd-amdhsa--gfx950"'); out.append('.text')
    return '\n'.join(out)+'\n'+a.txt()+desc

if __name__=='__main__':
    if len(sys.argv)>2 and sys.argv[2]=='prof': PROF=True
    kw=eval(sys.argv[3]) if len(sys.argv)>3 else {}
    if 'CPF' in kw: CPF=kw.pop('CPF')
    if 'JMAP' in kw: JMAP=kw.pop('JMAP')
    if 'RT' in kw: RT=kw.pop('RT')
    if 'BPROF' in kw: BPROF=kw.pop('BPROF')
    if 'POLL' in kw: POLLC.update(kw.pop('POLL'))
    if 'SO' in kw: SO=kw.pop('SO')
    if 'SL' in kw: SL=kw.pop('SL')
    if 'SC' in kw: SC=kw.pop('SC')
    open(sys.argv[1],'w').write(build(**kw))
```

```python
import sys, math, struct
NAME='concat_heads__sliding_block__mha_block__prompt'
KNAME=NAME+'_kernel'
WS_Q=0
WS_KV=2*32*64*1280
WS_O=WS_KV+2*32*64*2560
WS_END=WS_O+2*2048*1280
WS_FLG=WS_END
CSCALE=(20.0**-0.5)*math.log2(math.e)
NEG_BIG=0xf149f2ca
def f32bits(x): return struct.unpack('<I',struct.pack('<f',x))[0]
class A:
    def __init__(s): s.l=[]
    def __call__(s,x): s.l.append('  '+x)
    def lab(s,x): s.l.append(x+':')
    def raw(s,x): s.l.append(x)
    def txt(s): return '\n'.join(s.l)+'\n'
def vr(a,n=1): return f'v{a}' if n==1 else f'v[{a}:{a+n-1}]'
PROF=False
BPROF=False
NOPOLL3=False
JMAP=False
CPF=True
RT=False
PROF_BASE=32<<20
NST=16
class Prof:
    def __init__(s,a): s.a=a; s.n=0
    def stamp(s,i=None,force=False):
        if not PROF: return
        if BPROF==2 and not force and i not in (0,7,8): return
        if BPROF==3 and not force and i not in (0,12,13): return
        if i is None: i=s.n
        s.n=max(s.n,i+1)
        assert i<14
        s.a(f's_memrealtime s[{60+2*i}:{61+2*i}]' if RT else f's_memtime s[{60+2*i}:{61+2*i}]')
    def real(s,idx):
        if PROF: s.a(f's_memrealtime s[{88+2*idx}:{89+2*idx}]')
    def dump(s):
        if not PROF: return
        a=s.a
        a('s_waitcnt lgkmcnt(0) vmcnt(0)')
        a(f's_lshl_b32 s92, s{sWG}, 3')
        a(f's_add_u32 s92, s92, s{sWV}')
        a('s_lshl_b32 s92, s92, 6')
        a(f's_add_u32 s92, s92, {PROF_BASE}')
        a(f's_add_u32 s94, s{sWS}, s92')
        a(f's_addc_u32 s95, s{sWS+1}, 0')
        a('v_mov_b32 v0, 0')
        a('s_mov_b64 exec, 1')
        for i in range(14):
            a(f'v_mov_b32 v1, s{60+2*i}')
            a(f'global_store_dword v0, v1, s[94:95] offset:{4*i}')
        a('v_mov_b32 v1, s88'); a('global_store_dword v0, v1, s[94:95] offset:56')
        a('v_mov_b32 v1, s90'); a('global_store_dword v0, v1, s[94:95] offset:60')
        a('s_waitcnt vmcnt(0)')
sWG=96; sWV=97; sDBG=98; sWS=100; sTOK=59
def srd(a, d, lo, hi, nbytes):
    a(f's_mov_b32 s{d}, s{lo}')
    a(f's_and_b32 s{d+1}, s{hi}, 0xffff')
    a(f's_mov_b32 s{d+2}, {nbytes}')
    a(f's_mov_b32 s{d+3}, 0x20000')

SC='sc1'
SL=''
SO=''

TILE=2560; HALF=81920
P2M=212
P2C=list(range(244,256))
def head_j(a,sH,sJ_,t0,t1):
    if JMAP:
        a(f's_lshr_b32 s{sH}, s{sWG}, 3')
        a(f's_and_b32 s{sJ_}, s{sWG}, 7')
        return
    a(f's_and_b32 s{t0}, s{sWG}, 7')
    a(f's_lshr_b32 s{t1}, s{sWG}, 3')
    a(f's_lshl_b32 s{sH}, s{t0}, 2')
    a(f's_lshr_b32 s{t0}, s{t1}, 3')
    a(f's_add_u32 s{sH}, s{sH}, s{t0}')
    a(f's_and_b32 s{sJ_}, s{t1}, 7')
def q_issue(a):
    head_j(a,50,51,52,53)
    a('s_lshl_b32 s50, s50, 6')
    a('s_lshl_b32 s51, s51, 3')
    a('s_add_u32 s50, s50, s51')
    a(f's_and_b32 s51, s{sWV}, 3')
    a('s_lshl_b32 s51, s51, 1')
    a('s_add_u32 s50, s50, s51')
    a('s_mul_i32 s50, s50, 1280')
    a(f's_add_u32 s50, s50, {32*64*1280}')
    a('s_add_u32 s51, s50, 1280')
    srd(a,52,sWS,sWS+1,WS_O)
    a('v_and_b32 v2, 31, v1')
    a('v_lshlrev_b32 v2, 3, v2')
    a('v_lshrrev_b32 v3, 5, v1')
    a('v_lshl_add_u32 v3, v3, 8, v2')
    a('v_lshrrev_b32 v4, 5, v1')
    a('v_mul_u32_u24 v4, 1280, v4')
    a('v_add3_u32 v2, v2, v4, 0')
    a('v_add_u32 v2, 1024, v2')
    for (r1,so) in ((16,50),(24,51)):
        a(f'buffer_load_dwordx2 v[{r1}:{r1+1}], v3, s[52:55], s{so} offen {SL}')
        a(f'buffer_load_dwordx2 v[{r1+2}:{r1+3}], v3, s[52:55], s{so} offen offset:512 {SL}')
    a(f'buffer_load_dwordx2 v[20:21], v2, s[52:55], s50 offen {SL}')
def kv_first(a,pieces,rows=(0,HALF,8192,HALF+8192)):
    head_j(a,50,51,52,53)
    a(f's_mul_i32 s50, s50, {64*TILE}')
    a(f's_add_u32 s50, s50, {WS_KV+32*64*TILE}')
    a(f's_add_u32 s52, s{sWS}, s50')
    a(f's_addc_u32 s53, s{sWS+1}, 0')
    a('s_and_b32 s53, s53, 0xffff')
    a('s_mov_b32 s54, 163840')
    a('s_mov_b32 s55, 0x20000')
    a('v_lshlrev_b32 v2, 4, v1')
    for row in rows:
        for pc in pieces:
            a(f's_add_u32 m0, s{pc[0]}, {row+pc[1]}')
            a(f's_add_u32 s50, s{pc[0]}, {row+pc[1]}')
            a(f'buffer_load_dwordx4 v2, s[52:55], s50 offen {SL} lds')
def poll_f1(a,tag,br):
    head_j(a,50,51,52,53)
    a('s_mul_i32 s50, s50, 20')
    a('s_lshr_b32 s51, s50, 7')
    a('s_add_u32 s50, s50, 19')
    a('s_lshr_b32 s50, s50, 7')
    a('s_sub_u32 s50, s50, s51')
    a('v_bfe_u32 v2, v1, 4, 1')
    a('v_mul_u32_u24 v2, s50, v2')
    a('v_add_u32 v2, s51, v2')
    a('v_lshrrev_b32 v5, 5, v1')
    a('v_mul_u32_u24 v5, 5, v5')
    a('v_add_u32 v5, v5, v2')
    a('v_add_u32 v14, 10, v2')
    a('v_and_b32 v2, 15, v1')
    a('v_lshl_add_u32 v5, v5, 4, v2')
    a('v_lshl_add_u32 v14, v14, 4, v2')
    a('v_lshlrev_b32 v5, 7, v5')
    a('v_lshlrev_b32 v14, 7, v14')
    a(f'v_add_u32 v5, {WS_FLG+br*15*16*128}, v5')
    a(f'v_add_u32 v14, {WS_FLG+br*15*16*128}, v14')
    poll2(a,tag,5,14,(1<<64)-1)

def p2_early(a,tag):
    vLane=1; vt0=2; vt1=3; vt2=4; vt3=5; vCc=6; st0=50; sTm=52; sJ=51; sLo=56
    vK1a,vK2a,vVa,vVb,vDma,vRho,vOoff,vOo2,vQ1o,vQ2o,vWo,vKap=P2C
    vMF=P2M; vML=P2M+16
    head_j(a,50,sJ,52,53)
    a(f'v_lshlrev_b32 v{vDma}, 4, v{vLane}')
    a(f'v_and_b32 v{vRho}, 31, v{vLane}')
    a(f'v_lshlrev_b32 v{vt1}, 3, v{vRho}')
    a(f'v_add_u32 v{vK2a}, 1024, v{vt1}')
    a(f'v_mov_b32 v{vt2}, 0x70000000')
    a(f'v_cmp_gt_u32 s[{sLo}:{sLo+1}], 32, v{vLane}')
    a('s_nop 1')
    a(f'v_cndmask_b32 v{vQ2o}, v{vt2}, v{vK2a}, s[{sLo}:{sLo+1}]')
    a(f'v_lshrrev_b32 v{vt0}, 5, v{vLane}')
    a(f'v_lshlrev_b32 v{vK1a}, 3, v{vRho}')
    a(f'v_lshl_add_u32 v{vK1a}, v{vt0}, 8, v{vK1a}')
    a(f'v_mov_b32 v{vQ1o}, v{vK1a}')
    a(f'v_bfe_u32 v{vt1}, v{vRho}, 2, 2')
    a(f'v_xor_b32 v{vt1}, v{vt1}, v{vt0}')
    a(f'v_lshlrev_b32 v{vt1}, 4, v{vt1}')
    a(f'v_lshl_add_u32 v{vVa}, v{vRho}, 6, v{vt1}')
    a(f'v_add_u32 v{vVa}, 1280, v{vVa}')
    a(f'v_xor_b32 v{vVb}, 32, v{vVa}')
    a(f'v_and_b32 v{vt1}, 1, v{vRho}')
    a(f'v_lshlrev_b32 v{vKap}, 4, v{vt1}')
    a(f'v_lshrrev_b32 v{vt1}, 4, v{vRho}')
    a(f'v_lshl_or_b32 v{vKap}, v{vt1}, 3, v{vKap}')
    a(f'v_and_b32 v{vt1}, 4, v{vRho}')
    a(f'v_or_b32 v{vKap}, v{vKap}, v{vt1}')
    a(f'v_bfe_u32 v{vt1}, v{vRho}, 3, 1')
    a(f'v_lshl_or_b32 v{vKap}, v{vt1}, 1, v{vKap}')
    a(f'v_bfe_u32 v{vt1}, v{vRho}, 1, 1')
    a(f'v_or_b32 v{vKap}, v{vKap}, v{vt1}')
    a(f'v_lshlrev_b32 v{vt3}, 2, v{vt0}')
    a(f'v_sub_u32 v{vt3}, v{vKap}, v{vt3}')
    a(f'v_mov_b32 v{vt2}, {NEG_BIG:#x}')
    for r in range(16):
        base=(r&3)+8*(r>>2)
        kb=16*(r&1)+8*((r>>3)&1)+2*((r>>2)&1)+((r>>1)&1)
        if r>=2:
            q=r-2
            a(f'v_cndmask_b32 v{vMF+q}, v{vt2}, 0, s[{sTm+2*(q&1)}:{sTm+1+2*(q&1)}]')
            a(f'v_cndmask_b32 v{vML+q}, 0, v{vt2}, s[{sTm+2*(q&1)}:{sTm+1+2*(q&1)}]')
        a(f'v_cmp_gt_i32 s[{sTm+2*(r&1)}:{sTm+1+2*(r&1)}], {kb}, v{vt3}')
        if r==0: a('s_nop 0')
        if r==1: a('s_nop 1')
    a('s_nop 1')
    for q in (14,15):
        a(f'v_cndmask_b32 v{vMF+q}, v{vt2}, 0, s[{sTm+2*(q&1)}:{sTm+1+2*(q&1)}]')
        a(f'v_cndmask_b32 v{vML+q}, 0, v{vt2}, s[{sTm+2*(q&1)}:{sTm+1+2*(q&1)}]')
    a(f's_cmp_lg_u32 s{sJ}, 0')
    a(f's_cbranch_scc1 L_mf_ok_{tag}')
    for r in range(16): a(f'v_mov_b32 v{vMF+r}, v{vt2}')
    a.lab(f'L_mf_ok_{tag}')
    a(f'v_lshrrev_b32 v{vt1}, 4, v{vKap}')
    a(f'v_and_b32 v{vt2}, 15, v{vKap}')
    a(f'v_lshlrev_b32 v{vOoff}, 14, v{vt1}')
    a(f'v_lshl_add_u32 v{vOoff}, v{vt2}, 4, v{vOoff}')
    a(f'v_lshrrev_b32 v{vt3}, 5, v{vLane}')
    a(f'v_lshl_add_u32 v{vOoff}, v{vt3}, 8, v{vOoff}')
    a(f'v_lshlrev_b32 v{vOo2}, 12, v{vt1}')
    a(f'v_lshl_add_u32 v{vOo2}, v{vt2}, 3, v{vOo2}')
    a(f's_lshl_b32 s{st0}, s{sWV}, 6')
    a(f'v_add_u32 v{vt0}, s{st0}, v{vLane}')
    a(f'v_mul_u32_u24 v{vt1}, 52429, v{vt0}')
    a(f'v_lshrrev_b32 v{vt1}, 19, v{vt1}')
    a(f'v_mul_u32_u24 v{vt2}, 10, v{vt1}')
    a(f'v_sub_u32 v{vCc}, v{vt0}, v{vt2}')
    a(f'v_mul_u32_u24 v{vt1}, 1280, v{vt1}')
    a(f'v_lshl_add_u32 v{vWo}, v{vCc}, 4, v{vt1}')

def phase1(a,p,D=3,SY=1,LP='',EARLY2=False,SPF=False,SPFN=6,XROT=(2,1)):
    R=4; XOFF=16384
    sX,sW,sO=4,8,12
    sBR,sMT,sNT=26,27,28
    sKS=31; sXo=32; sW0=34; sIT=36; sSlot=37; sLW=38; sLX=39; sT=40
    st0,st1,st2,st3=41,42,43,44
    sSec=45; sBase=46; sHS=47; sTS=48; sNx=30; sM=29; sN=33; sIdx=35
    vLane=1; vt0=6; vt1=7; vt2=8; vt3=9; vt4=10; vTok=11; vG=12; vRho=13
    vLW=8; vLX=10; vXh=2; vXc1=3
    vB0=14; vBc=19; vBn=24; vAd=29
    vWf=36; vXf=vWf+32; vAcc=vXf+4*(D+1); vEnd=vAcc+128
    assert vEnd<=256 and 8%(D+1)==0
    def wf(step,c): return vWf+(step&1)*16+c*4
    def xf(i): return vXf+(i%(D+1))*4
    def acc(t,c,mt): return vAcc+t*64+(c*4+mt)*4
    def slotbase(dst,idx):
        a(f's_lshl_b32 s{dst}, s{idx}, 15')
        a(f's_lshr_b32 s{st3}, s{idx}, 1')
        a(f's_lshl_b32 s{st3}, s{st3}, 14')
        a(f's_add_u32 s{dst}, s{dst}, s{st3}')
        a(f's_add_u32 s{dst}, s{dst}, 16384')
    a(f'v_and_b32 v{vLane}, 63, v0')
    a(f's_and_b32 s{st0}, s{sWG}, 7')
    a(f's_lshr_b32 s{st1}, s{sWG}, 3')
    a(f's_and_b32 s{st2}, s{st0}, 1')
    a(f's_lshl_b32 s{st2}, s{st2}, 3')
    a(f's_and_b32 s{st3}, s{st1}, 7')
    a(f's_add_u32 s{sMT}, s{st2}, s{st3}')
    a(f's_lshr_b32 s{st2}, s{st0}, 1')
    a(f's_lshl_b32 s{st2}, s{st2}, 2')
    a(f's_lshr_b32 s{st1}, s{st1}, 3')
    a(f's_add_u32 s{sNT}, s{st2}, s{st1}')
    a(f's_cmp_ge_u32 s{sNT}, 15')
    a(f's_cbranch_scc1 L_p1_skip')
    a(f's_cmp_ge_u32 s{sWV}, 4')
    a(f's_cbranch_scc0 L_p1_compute')
    i_c=len(a.l)
    a.lab('L_p1_compute')
    p2_early(a,'c')
    a(f's_and_b32 s{sM}, s{sWV}, 1')
    a(f's_lshr_b32 s{sN}, s{sWV}, 1')
    a(f'v_and_b32 v{vTok}, 15, v{vLane}')
    a(f'v_lshrrev_b32 v{vG}, 4, v{vLane}')
    a(f'v_and_b32 v{vt0}, 3, v{vLane}')
    a(f'v_bfe_u32 v{vt1}, v{vLane}, 2, 2')
    a(f'v_and_b32 v{vt2}, 1, v{vG}')
    a(f'v_lshl_or_b32 v{vt2}, v{vt2}, 2, v{vt1}')
    a(f'v_lshl_add_u32 v{vt3}, v{vG}, 3, v{vt1}')
    a(f'v_lshlrev_b32 v{vt3}, 8, v{vt3}')
    a(f'v_lshl_add_u32 v{vt3}, v{vt0}, 3, v{vt3}')
    a(f's_lshl_b32 s{st0}, s{sN}, 2')
    a(f'v_xor_b32 v{vt2}, s{st0}, v{vt2}')
    for c in range(4):
        a(f'v_xor_b32 v{vt4}, {c}, v{vt2}')
        a(f'v_lshl_add_u32 v{vB0+c}, v{vt4}, 5, v{vt3}')
    a(f'v_lshrrev_b32 v{vt0}, 1, v{vTok}')
    a(f'v_xor_b32 v{vt0}, v{vt0}, v{vG}')
    a(f'v_lshlrev_b32 v{vt0}, 4, v{vt0}')
    a(f'v_lshl_add_u32 v{vt0}, v{vTok}, 7, v{vt0}')
    a(f's_lshl_b32 s{st0}, s{sM}, 13')
    a(f's_add_u32 s{st0}, s{st0}, {XOFF}')
    a(f'v_add_u32 v{vB0+4}, s{st0}, v{vt0}')
    a(f'v_xor_b32 v{vXh}, 64, v{vt0}')
    a(f'v_sub_u32 v{vXh}, v{vXh}, v{vt0}')
    for i in range(5): a(f'v_add_u32 v{vBc+i}, 16384, v{vB0+i}')
    for i in range(128): a(f'v_mov_b32 v{vAcc+i}, 0')
    a(f's_mul_i32 s{sSec}, s{sNT}, 52')
    a(f's_lshr_b32 s{sSec}, s{sSec}, 8')
    a(f's_mul_i32 s{st0}, s{sSec}, 5')
    a(f's_sub_u32 s{st0}, s{sNT}, s{st0}')
    a(f's_lshl_b32 s{st0}, s{st0}, 7')
    a(f's_lshl_b32 s{st1}, s{sN}, 6')
    a(f's_add_u32 s{st0}, s{st0}, s{st1}')
    a(f's_cmp_eq_u32 s{sSec}, 0')
    a(f's_cselect_b32 s{st1}, 0, 1')
    a(f's_cselect_b32 s{st2}, 0, {WS_KV}')
    a(f's_lshl_b32 s{sTS}, 1280, s{st1}')
    a(f's_lshl_b32 s{sHS}, s{sTS}, 6')
    a(f's_lshl_b32 s{sT}, s{sMT}, 2')
    a(f's_lshl_b32 s{st1}, s{sM}, 1')
    a(f's_add_u32 s{sT}, s{sT}, s{st1}')
    a(f's_mul_i32 s{st1}, s{sT}, s{sTS}')
    a(f's_add_u32 s{sBase}, s{st1}, s{st2}')
    a(f's_cmp_eq_u32 s{sSec}, 2')
    a(f's_cbranch_scc1 L_p1_adV')
    a(f'v_lshrrev_b32 v{vt0}, 3, v{vTok}')
    a(f'v_lshlrev_b32 v{vRho}, 7, v{vt0}')
    a(f'v_bfe_u32 v{vt0}, v{vTok}, 1, 1')
    a(f'v_lshl_or_b32 v{vRho}, v{vt0}, 6, v{vRho}')
    a(f'v_bfe_u32 v{vt0}, v{vTok}, 2, 1')
    a(f'v_lshl_or_b32 v{vRho}, v{vt0}, 5, v{vRho}')
    a(f'v_and_b32 v{vt0}, 1, v{vTok}')
    a(f'v_lshl_or_b32 v{vRho}, v{vt0}, 4, v{vRho}')
    a(f's_lshr_b32 s{st0}, s{st0}, 2')
    for c in range(4):
        a(f'v_add_u32 v{vt0}, s{st0}, v{vG}')
        if c: a(f'v_add_u32 v{vt0}, {4*c}, v{vt0}')
        a(f'v_mul_u32_u24 v{vt1}, 52429, v{vt0}')
        a(f'v_lshrrev_b32 v{vt1}, 18, v{vt1}')
        a(f'v_mul_u32_u24 v{vt2}, 5, v{vt1}')
        a(f'v_sub_u32 v{vt2}, v{vt0}, v{vt2}')
        a(f'v_mul_u32_u24 v{vt1}, s{sHS}, v{vt1}')
        a(f'v_and_b32 v{vt3}, 1, v{vt2}')
        a(f'v_lshlrev_b32 v{vt3}, 9, v{vt3}')
        a(f'v_lshrrev_b32 v{vt4}, 1, v{vt2}')
        a(f'v_cmp_eq_u32 s[56:57], 4, v{vt2}')
        a(f'v_lshl_add_u32 v{vt3}, v{vt4}, 8, v{vt3}')
        a(f'v_add_u32 v{vt4}, 512, v{vt3}')
        a(f'v_add_u32 v{vt1}, v{vt1}, v{vRho}')
        a(f'v_cndmask_b32 v{vt3}, v{vt3}, v{vt4}, s[56:57]')
        a(f'v_add_u32 v{vAd+c}, v{vt1}, v{vt3}')
    a('s_branch L_p1_adD')
    a.lab('L_p1_adV')
    for c in range(4):
        a(f'v_add_u32 v{vt0}, s{st0}, v{vTok}')
        if c: a(f'v_add_u32 v{vt0}, {16*c}, v{vt0}')
        a(f'v_mul_u32_u24 v{vt1}, 52429, v{vt0}')
        a(f'v_lshrrev_b32 v{vt1}, 20, v{vt1}')
        a(f'v_mul_u32_u24 v{vt2}, 20, v{vt1}')
        a(f'v_sub_u32 v{vt2}, v{vt0}, v{vt2}')
        a(f'v_mul_u32_u24 v{vt1}, {64*2560}, v{vt1}')
        a(f'v_lshl_add_u32 v{vt1}, v{vt2}, 6, v{vt1}')
        a(f'v_bfe_u32 v{vt2}, v{vt2}, 2, 2')
        a(f'v_xor_b32 v{vt2}, v{vt2}, v{vG}')
        a(f'v_lshl_add_u32 v{vt1}, v{vt2}, 4, v{vt1}')
        a(f'v_add_u32 v{vAd+c}, 1280, v{vt1}')
    a.lab('L_p1_adD')
    a('s_waitcnt lgkmcnt(0)')
    srd(a,sO,sWS,sWS+1,WS_O)
    def wread(nxt,h,step,c,hh):
        b=(vBn if nxt else vBc)+c
        return f'ds_read_b64_tr_b16 {vr(wf(step,c)+2*hh,2)}, v{b} offset:{h*8192+1024*hh}'
    def xread(nxt,h,mt,buf):
        b=((vBn if nxt else vBc)+4) if h==0 else vXc1
        return f'ds_read_b128 {vr(xf(buf),4)}, v{b} offset:{mt*2048}'
    def epilogue(v,t,br):
        if v==0:
            a(f's_cmp_lg_u32 s{sSec}, 0')
            a(f's_cbranch_scc1 L_p1_ns{t}')
            a(f's_mov_b32 s{st1}, {f32bits(CSCALE):#x}')
            for i in range(64): a(f'v_mul_f32 v{vAcc+64*t+i}, s{st1}, v{vAcc+64*t+i}')
            a.lab(f'L_p1_ns{t}')
        a(f's_lshl_b32 s{st0}, s{sTS}, 11')
        a(f's_mul_i32 s{st0}, s{st0}, {br}')
        a(f's_add_u32 s{st0}, s{st0}, s{sBase}')
        for tp in range(2):
            if tp: a(f's_add_u32 s{st0}, s{st0}, s{sTS}')
            for c in range(4):
                b=acc(t,c,2*tp)
                if v==0:
                    a(f'v_cvt_pk_bf16_f32 v{b}, v{b}, v{b+1}')
                    a(f'v_cvt_pk_bf16_f32 v{b+1}, v{b+2}, v{b+3}')
                    a(f'v_cvt_pk_bf16_f32 v{b+2}, v{b+4}, v{b+5}')
                    a(f'v_cvt_pk_bf16_f32 v{b+3}, v{b+6}, v{b+7}')
                else:
                    a(f'v_cvt_pk_bf16_f32 v{b}, v{b}, v{b+4}')
                    a(f'v_cvt_pk_bf16_f32 v{b+1}, v{b+1}, v{b+5}')
                    a(f'v_cvt_pk_bf16_f32 v{b+2}, v{b+2}, v{b+6}')
                    a(f'v_cvt_pk_bf16_f32 v{b+3}, v{b+3}, v{b+7}')
                a(f'buffer_store_dwordx4 {vr(b,4)}, v{vAd+c}, s[{sO}:{sO+3}], s{st0} offen {SC}')
    a(f's_cmp_eq_u32 s{sSec}, 2')
    a(f's_cbranch_scc1 L_p1_v1')
    for v in range(2):
        a.lab(f'L_p1_v{v}')
        p.stamp(1)
        a('s_barrier')
        p.stamp(2)
        def body(emit,issued,t):
            waits=[]
            for st in range(2):
                for mt in range(4):
                    gi=st*4+mt
                    need=[('x',gi)]
                    if mt==0: need.append(('w',st))
                    last=max(len(issued)-1-issued[::-1].index(tg) for tg in need)
                    y=len(issued)-1-last
                    waits.append(y)
                    if emit:
                        y=min(y,wmin[len(waits)-1])
                        a(f's_waitcnt lgkmcnt({min(y,15)})')
                    fill=[]
                    g2=gi+D; nx=g2>=8; h2=(g2%8)//4; m2=g2%4
                    fill.append((xread(nx,h2,m2,g2),('x',g2%8)))
                    wm={0:(0,1),1:(2,3)} if st==1 else {0:(0,1),1:(2,3)}
                    if mt in wm:
                        for c in wm[mt]:
                            fill.append((wread(st==1,(st+1)&1,st+1,c,0),('w',(st+1)%2)))
                            fill.append((wread(st==1,(st+1)&1,st+1,c,1),('w',(st+1)%2)))
                    if st==0 and mt==0:
                        fill.append((f'v_add_u32 v{vXc1}, v{vBc+4}, v{vXh}',None))
                    if st==0 and mt==2:
                        fill.append((f's_add_u32 s{sIdx}, s{sIdx}, 1',None))
                        fill.append((f's_and_b32 s{sIdx}, s{sIdx}, 3',None))
                        fill.append((f's_lshl_b32 s{sNx}, s{sIdx}, 15',None))
                        fill.append((f's_lshr_b32 s{st3}, s{sIdx}, 1',None))
                        fill.append((f's_lshl_b32 s{st3}, s{st3}, 14',None))
                        fill.append((f's_add_u32 s{sNx}, s{sNx}, s{st3}',None))
                        fill.append((f's_add_u32 s{sNx}, s{sNx}, 16384',None))
                    if st==0 and mt==3:
                        for i in range(5): fill.append((f'v_add_u32 v{vBn+i}, s{sNx}, v{vB0+i}',None))
                    if st==1 and mt==3:
                        for i in range(5): fill.append((f'v_mov_b32 v{vBc+i}, v{vBn+i}',None))
                    for c in range(4):
                        x=xf(gi); w=wf(st,c); ac=acc(t,c,mt)
                        if emit:
                            if v==0: a(f'v_mfma_f32_16x16x32_bf16 {vr(ac,4)}, {vr(w,4)}, {vr(x,4)}, {vr(ac,4)}')
                            else:    a(f'v_mfma_f32_16x16x32_bf16 {vr(ac,4)}, {vr(x,4)}, {vr(w,4)}, {vr(ac,4)}')
                        k=1 if c<3 else len(fill)
                        if len(fill)>4 and c<3: k=2
                        while k>0 and fill:
                            tx,tag=fill.pop(0); k-=1
                            if emit: a(tx)
                            if tag: issued.append(tag)
                    if st==0 and mt==SY and emit:
                        if t==1:
                            a(f's_cmp_eq_u32 s{sIT}, 8'); a(f's_cbranch_scc0 L_p1_nw{v}'); a('s_waitcnt vmcnt(0)'); a.lab(f'L_p1_nw{v}')
                        a('s_barrier')
            return waits
        pro=[('w',0)]*8+[('x',i) for i in range(D)]
        iss=list(pro); w1=body(False,iss,0); w2=body(False,iss,0)
        wmin=[min(x,y) for x,y in zip(w1,w2)]
        a(f's_mov_b32 s{sIdx}, 0')
        for c in range(4):
            a(wread(False,0,0,c,0)); a(wread(False,0,0,c,1))
        for i in range(D): a(xread(False,0,i,i))
        for t in range(2):
            a(f's_mov_b32 s{sIT}, 10')
            a.lab(f'L_p1_loop{v}_{t}')
            body(True,list(pro),t)
            a(f's_sub_u32 s{sIT}, s{sIT}, 1')
            a(f's_cmp_lg_u32 s{sIT}, 0')
            a(f's_cbranch_scc1 L_p1_loop{v}_{t}')
            a('s_nop 7')
            if t==0:
                epilogue(v,0,1) if v==0 else epilogue(v,0,1)
            else:
                p.stamp(3)
                a('s_waitcnt lgkmcnt(0)')
                q_issue(a)
                epilogue(v,1,0)
        a('s_mov_b32 s49, 8')
        a('s_branch L_p1_done')
    i_l=len(a.l)
    a.lab('L_p1_loader')
    sLd=29; sRot0=25
    a(f's_sub_u32 s{sLd}, s{sWV}, 4')
    a(f's_mul_i32 s{st3}, s{st3}, 5')
    a(f's_lshr_b32 s{st3}, s{st3}, 2')
    a(f's_mul_i32 s{st1}, s{st1}, 5')
    a(f's_lshr_b32 s{st1}, s{st1}, 1')
    a(f's_add_u32 s{sKS}, s{st3}, s{st1}')
    if XROT:
        ra,rb=XROT
        a(f's_and_b32 s{st0}, s{sWG}, 7')
        a(f's_lshr_b32 s{st1}, s{st0}, 1')
        a(f's_mul_i32 s{st1}, s{st1}, {ra}')
        a(f's_add_u32 s{sKS}, s{sKS}, s{st1}')
        a(f's_and_b32 s{st0}, s{st0}, 1')
        a(f's_mul_i32 s{st0}, s{st0}, {rb}')
        a(f's_add_u32 s{sKS}, s{sKS}, s{st0}')
        for lim in (40,20):
            a(f's_cmp_ge_u32 s{sKS}, {lim}')
            a(f's_cselect_b32 s{st0}, {lim//2 if lim==20 else 20}, 0')
            a(f's_sub_u32 s{sKS}, s{sKS}, s{st0}')
        a(f's_cmp_ge_u32 s{sKS}, 20')
        a(f's_cselect_b32 s{st0}, 10, 0')
        a(f's_sub_u32 s{sKS}, s{sKS}, s{st0}')
    a(f's_cmp_ge_u32 s{sKS}, 10')
    a(f's_cselect_b32 s{st0}, 10, 0')
    a(f's_sub_u32 s{sKS}, s{sKS}, s{st0}')
    a(f's_mov_b32 s{sRot0}, s{sKS}')
    a(f's_lshl_b32 s{sLW}, s{sLd}, 12')
    a(f's_lshl_b32 s{sLX}, s{sLd}, 12')
    a(f's_add_u32 s{sLX}, s{sLX}, {XOFF}')
    a(f'v_lshrrev_b32 v{vt0}, 4, v{vLane}')
    a(f'v_bfe_u32 v{vt1}, v{vLane}, 1, 3')
    a(f'v_and_b32 v2, 1, v{vLane}')
    a(f's_lshl_b32 s{st2}, s{sLd}, 4')
    a(f's_lshl_b32 s{st1}, s{sNT}, 8')
    for jj in range(2):
        a(f'v_add_u32 v3, {4*jj}, v{vt0}')
        a(f'v_xor_b32 v3, v3, v{vt1}')
        a(f'v_lshl_add_u32 v4, v3, 1, v2')
        a(f'v_lshlrev_b32 v4, 4, v4')
        a(f'v_add_u32 v{vLW+jj}, s{st2}, v{vt0}')
        if jj: a(f'v_add_u32 v{vLW+jj}, 8, v{vLW+jj}')
        a(f'v_mul_u32_u24 v{vLW+jj}, 3840, v{vLW+jj}')
        a(f'v_add3_u32 v{vLW+jj}, v{vLW+jj}, v4, s{st1}')
    a(f'v_lshrrev_b32 v{vt0}, 3, v{vLane}')
    a(f'v_and_b32 v{vt1}, 7, v{vLane}')
    a(f's_lshl_b32 s{st0}, s{sMT}, 7')
    a(f's_lshl_b32 s{st1}, s{sLd}, 5')
    a(f's_add_u32 s{st0}, s{st0}, s{st1}')
    for uu in range(2):
        a(f'v_lshrrev_b32 v2, 1, v{vt0}')
        if uu: a(f'v_add_u32 v2, 4, v2')
        a(f'v_xor_b32 v2, v2, v{vt1}')
        a(f'v_add_u32 v3, s{st0}, v{vt0}')
        if uu: a(f'v_add_u32 v3, 8, v3')
        a(f'v_mul_u32_u24 v3, 1280, v3')
        a(f'v_lshl_add_u32 v{vLX+uu}, v2, 4, v3')
    a('s_waitcnt lgkmcnt(0)')
    srd(a,sX,20,21,2048*1280)
    srd(a,sW,22,23,640*3840)
    NL=8
    def wstep():
        a(f's_mul_i32 s{sW0}, s{sKS}, {64*3840}')
        a(f's_lshl_b32 s{sXo}, s{sKS}, 7')
        slotbase(sSlot,sIdx)
        a(f's_add_u32 s{st0}, s{sSlot}, s{sLW}')
        a(f's_add_u32 s{st1}, s{sSlot}, s{sLX}')
        for j in range(4):
            a(f's_add_u32 m0, s{st0}, {j*1024}')
            if j&1: a(f's_add_u32 s{st2}, s{sW0}, {4*3840}')
            else: a('s_nop 0')
            a(f'buffer_load_dwordx4 v{vLW+(j>>1)}, s[{sW}:{sW+3}], s{st2 if j&1 else sW0} offen {LP} lds')
            a(f's_add_u32 m0, s{st1}, {j*1024}')
            if j==2: a(f's_add_u32 s{sXo}, s{sXo}, 20480')
            else: a('s_nop 0')
            a(f'buffer_load_dwordx4 v{vLX+(j&1)}, s[{sX}:{sX+3}], s{sXo} offen {LP} lds')
        a(f's_add_u32 s{sKS}, s{sKS}, 1')
        a(f's_cmp_eq_u32 s{sKS}, 10')
        a(f's_cselect_b32 s{sKS}, 0, s{sKS}')
        a(f's_add_u32 s{sIdx}, s{sIdx}, 1')
        a(f's_and_b32 s{sIdx}, s{sIdx}, 3')
    a(f's_mov_b32 s{sIdx}, 0')
    wstep()
    if EARLY2: wstep()
    a(f's_waitcnt vmcnt({NL if EARLY2 else 0})')
    a('s_barrier')
    if not EARLY2: wstep()
    wstep()
    p2_early(a,'l')
    a(f's_mov_b32 s{sIT}, 0')
    a.lab('L_p1_ld_loop')
    a(f's_cmp_ge_u32 s{sIT}, 18'); a('s_cbranch_scc1 L_p1_ld_w0')
    a(f's_waitcnt vmcnt({NL})')
    a('s_branch L_p1_ld_w1')
    a.lab('L_p1_ld_w0')
    a(f's_cmp_lg_u32 s{sIT}, 18'); a('s_cbranch_scc1 L_p1_ld_w1')
    a('s_waitcnt vmcnt(0)')
    a(f's_cmp_lg_u32 s{sWV}, 4'); a('s_cbranch_scc1 L_p1_ld_w1')
    poll_f1(a,'b',1)
    a.lab('L_p1_ld_w1')
    a('s_barrier')
    a(f's_cmp_lg_u32 s{sWV}, 4'); a('s_cbranch_scc1 L_p1_ld_h1')
    a(f's_cmp_lg_u32 s{sIT}, 8'); a('s_cbranch_scc1 L_p1_ld_h0')
    gettok(a,'p1',None)
    a.lab('L_p1_ld_h0')
    a(f's_cmp_lg_u32 s{sIT}, 12'); a('s_cbranch_scc1 L_p1_ld_h1')
    a(f's_add_u32 s50, s{sNT}, 15')
    a('s_lshl_b32 s50, s50, 4')
    a(f's_add_u32 s50, s50, s{sMT}')
    a('s_lshl_b32 s50, s50, 7')
    setflag(a,50)
    a.lab('L_p1_ld_h1')
    a(f's_cmp_lg_u32 s{sIT}, 7'); a('s_cbranch_scc1 L_p1_ld_h2')
    srd(a,sX,16,17,2048*1280)
    srd(a,sW,18,19,640*3840)
    a.lab('L_p1_ld_h2')
    a(f's_cmp_ge_u32 s{sIT}, 17'); a('s_cbranch_scc1 L_p1_ld_skip')
    wstep()
    if SPF:
        a(f's_cmp_ge_u32 s{sIT}, {SPFN}'); a('s_cbranch_scc1 L_p1_ld_skip')
        a(f's_lshr_b32 s52, s{sIT}, 1')
        a(f's_and_b32 s53, s{sIT}, 1')
        a(f's_cmp_eq_u32 s52, 2'); a('s_cbranch_scc1 L_spf_w')
        a(f's_add_u32 s54, s{sRot0}, s52')
        a('s_cmp_ge_u32 s54, 10'); a('s_cselect_b32 s55, 10, 0'); a('s_sub_u32 s54, s54, s55')
        a('s_lshl_b32 s54, s54, 7')
        a(f's_lshl_b32 s55, s{sMT}, 7')
        a(f's_lshl_b32 s56, s{sLd}, 5'); a('s_add_u32 s55, s55, s56')
        a('s_lshl_b32 s56, s53, 4'); a('s_add_u32 s55, s55, s56')
        a('s_mul_i32 s55, s55, 1280'); a('s_add_u32 s54, s54, s55')
        a('s_add_u32 s50, s16, s54'); a('s_addc_u32 s51, s17, 0')
        for r in range(16): a(f's_load_dword s58, s[50:51], {r*1280}')
        a('s_branch L_p1_ld_skip')
        a.lab('L_spf_w')
        a(f's_lshl_b32 s54, s{sRot0}, 6')
        a(f's_lshl_b32 s55, s{sLd}, 4'); a('s_add_u32 s54, s54, s55')
        a('s_lshl_b32 s55, s53, 3'); a('s_add_u32 s54, s54, s55')
        a('s_mul_i32 s54, s54, 3840')
        a(f's_lshl_b32 s55, s{sNT}, 8'); a('s_add_u32 s54, s54, s55')
        a('s_add_u32 s50, s18, s54'); a('s_addc_u32 s51, s19, 0')
        for r in range(8):
            a(f's_load_dword s58, s[50:51], {r*3840}'); a(f's_load_dword s58, s[50:51], {r*3840+128}')
    a.lab('L_p1_ld_skip')
    a(f's_cmp_lg_u32 s{sIT}, 18'); a('s_cbranch_scc1 L_p1_ld_h3')
    a(f's_lshl_b32 s48, s{sLd}, 11')
    q_issue(a)
    kv_first(a,[(48,0),(48,1024)],(0,HALF,8192,HALF+8192,16384,24576,32768))
    a.lab('L_p1_ld_h3')
    a(f's_cmp_lg_u32 s{sIT}, 19'); a('s_cbranch_scc1 L_p1_ld_h4')
    kv_first(a,[(48,0),(48,1024)],(HALF+16384,HALF+24576,HALF+32768))
    a.lab('L_p1_ld_h4')
    a(f's_add_u32 s{sIT}, s{sIT}, 1')
    a(f's_cmp_lt_u32 s{sIT}, 20')
    a('s_cbranch_scc1 L_p1_ld_loop')
    a(f's_lshl_b32 s49, s{sNT}, 4')
    a(f's_add_u32 s49, s49, s{sMT}')
    a('s_lshl_b32 s49, s49, 7')
    a('s_or_b32 s49, s49, 0x80000000')
    a('s_branch L_p1_done')
    i_e=len(a.l)
    a.l[i_c:i_e]=a.l[i_l:i_e]+a.l[i_c:i_l]
    a.lab('L_p1_skip')
    p2_early(a,'s')
    a('s_waitcnt lgkmcnt(0)')
    a(f's_cmp_lg_u32 s{sWV}, 4'); a('s_cbranch_scc1 L_p1_sk1')
    gettok(a,'p1s',None)
    poll_f1(a,'bs',1)
    a.lab('L_p1_sk1')
    a('s_barrier')
    a(f's_lshl_b32 s48, s{sWV}, 10')
    q_issue(a)
    kv_first(a,[(48,0)],(0,HALF,8192,HALF+8192,16384,24576,32768,HALF+16384,HALF+24576,HALF+32768))
    a('s_mov_b32 s49, 0')
    a.lab('L_p1_done')
    return vEnd

def gettok(a,tag,wave=4):
    if wave is not None:
        a(f's_cmp_lg_u32 s{sWV}, {wave}')
        a(f's_cbranch_scc1 L_tokd_{tag}')
    a('s_mov_b32 s58, 0x40000')
    a('v_mov_b32 v2, 0')
    a.lab(f'L_tok_{tag}')
    a(f'global_load_dword v3, v2, s[{sDBG}:{sDBG+1}] sc1')
    a('s_waitcnt vmcnt(0)')
    a(f'v_readfirstlane_b32 s{sTOK}, v3')
    a('s_nop 3')
    a(f's_cmp_lg_u32 s{sTOK}, 0')
    a(f's_cbranch_scc1 L_tokd_{tag}')
    a('s_sleep 4')
    a('s_sub_u32 s58, s58, 1')
    a('s_cmp_lg_u32 s58, 0')
    a(f's_cbranch_scc1 L_tok_{tag}')
    a.lab(f'L_tokd_{tag}')
def setflag(a,soff):
    a(f's_add_u32 s{soff}, s{soff}, {WS_FLG}')
    a('s_mov_b64 exec, 1')
    a(f'v_mov_b32 v2, s{soff}')
    a(f'v_mov_b32 v3, s{sTOK}')
    a(f'global_store_dword v2, v3, s[{sWS}:{sWS+1}] sc1')
    a('s_mov_b64 exec, -1')
def poll2(a,tag,va,vb,mask):
    a('s_mov_b32 s58, 0x40000')
    a.lab(f'L_poll_{tag}')
    a(f'global_load_dword v3, v{va}, s[{sWS}:{sWS+1}] sc1')
    a(f'global_load_dword v4, v{vb}, s[{sWS}:{sWS+1}] sc1')
    a('s_waitcnt vmcnt(0)')
    a(f'v_cmp_eq_u32 s[56:57], s{sTOK}, v3')
    a(f'v_cmp_eq_u32 vcc, s{sTOK}, v4')
    a('s_nop 4')
    a('s_and_b64 s[56:57], s[56:57], vcc')
    a(f's_and_b32 s56, s56, {mask&0xffffffff:#x}')
    a(f's_and_b32 s57, s57, {mask>>32:#x}')
    a(f's_cmp_lg_u32 s56, {mask&0xffffffff:#x}')
    a(f's_cbranch_scc1 L_polln_{tag}')
    a(f's_cmp_eq_u32 s57, {mask>>32:#x}')
    a(f's_cbranch_scc1 L_polld_{tag}')
    a.lab(f'L_polln_{tag}')
    a('s_sleep 1')
    a('s_sub_u32 s58, s58, 1')
    a('s_cmp_lg_u32 s58, 0')
    a(f's_cbranch_scc1 L_poll_{tag}')
    a.lab(f'L_polld_{tag}')
POLLC=dict(sl=2,pol='sc1',pre=0)
def poll(a,tag,vaddr,offs,mask):
    a('s_mov_b32 s58, 0x40000')
    for _ in range(POLLC['pre']): a('s_sleep 8')
    a.lab(f'L_poll_{tag}')
    for i,o in enumerate(offs):
        a(f'global_load_dword v{vaddr+1+i}, v{vaddr}, s[{sWS}:{sWS+1}] offset:{o} {POLLC["pol"]}')
    a('s_waitcnt vmcnt(0)')
    a(f'v_cmp_eq_u32 s[56:57], s{sTOK}, v{vaddr+1}')
    if len(offs)>1:
        a(f'v_cmp_eq_u32 vcc, s{sTOK}, v{vaddr+2}')
        a('s_nop 4')
        a('s_and_b64 s[56:57], s[56:57], vcc')
    else:
        a('s_nop 4')
    a(f's_and_b32 s56, s56, {mask&0xffffffff:#x}')
    a(f's_and_b32 s57, s57, {mask>>32:#x}')
    a(f's_cmp_lg_u32 s56, {mask&0xffffffff:#x}')
    a(f's_cbranch_scc1 L_polln_{tag}')
    a(f's_cmp_eq_u32 s57, {mask>>32:#x}')
    a(f's_cbranch_scc1 L_polld_{tag}')
    a.lab(f'L_polln_{tag}')
    a(f's_sleep {POLLC["sl"]}')
    a('s_sub_u32 s58, s58, 1')
    a('s_cmp_lg_u32 s58, 0')
    a(f's_cbranch_scc1 L_poll_{tag}')
    a.lab(f'L_polld_{tag}')

def phase2(a,p,PRIO=0,BSH=0,NOHOOK=0,SPRIO=0,FP2=7):
    TILE=2560; HALF=81920; WOFF=40960; SCR=81920
    sR,sOo,sWo=4,8,12
    sHD,sJ,sQP,sKH=16,17,18,19
    st0,st1,st2,st3=20,21,22,23
    sVm=24; sLo=26
    sIT=28; sHB=29; sHBw=30; sOl=31; sOh=32; sLl=33; sQA=34; sSw=35; sAg=36; sOB=37; sOA=50; sNeed=39
    sTm=40
    sKV=44
    sOff=31; sInc=32
    sWn=48
    sWl=39
    vLane=1; vt0=2; vt1=3; vt2=4; vt3=5; vM=10; vt4=14; vt5=15
    vK1a,vK2a,vVa,vVb,vDma,vRho,vOoff,vOo2,vQ1o,vQ2o,vWo,vKap=P2C
    vQa1=16; vQab=20; vQa2=22; vQb1=24; vK1=28; vK2=32; vMb=35
    vV=36; vP=52; vQA2=60; vCc=63
    vSa=64; vSb=80; vOa=96; vOb=112; vCa=128; vCb=144; vMF=P2M; vML=P2M+16; vQA1=192
    vS1=160
    vEnd=256
    a(f's_load_dwordx2 s[50:51], s[0:1], 16')
    a(f's_load_dwordx2 s[52:53], s[0:1], 40')
    head_j(a,sHD,sJ,st0,st1)
    a(f's_and_b32 s{sQP}, s{sWV}, 3')
    a(f's_lshr_b32 s{sKH}, s{sWV}, 2')
    a(f's_mul_i32 s{sHB}, s{sHD}, {64*TILE}')
    a(f's_add_u32 s{sAg}, s{sHB}, {WS_KV-20480}')
    a(f's_add_u32 s{sHB}, s{sHB}, {WS_KV+32*64*TILE}')
    a(f's_mul_i32 s{st0}, s{sJ}, 20480')
    a(f's_add_u32 s{sAg}, s{sAg}, s{st0}')
    a(f's_mov_b32 s{sVm}, 0xfffff')
    a(f's_mov_b32 s{sVm+1}, 0xfffff')
    a(f's_mov_b32 s{sLo}, -1')
    a(f's_mov_b32 s{sLo+1}, 0')
    a(f's_lshl_b32 s{st0}, s{sJ}, 3')
    a(f's_lshl_b32 s{st1}, s{sHD}, 6')
    a(f's_add_u32 s{st1}, s{st1}, s{st0}')
    a(f's_add_u32 s{st2}, s{st1}, s{sWV}')
    a(f's_mul_i32 s{sQA}, s{st2}, 1280')
    a(f's_lshl_b32 s{st2}, s{sQP}, 1')
    a(f's_add_u32 s{st2}, s{st2}, s{sKH}')
    a(f's_add_u32 s{st2}, s{st2}, s{st0}')
    a(f's_lshl_b32 s{sOB}, s{st2}, 15')
    a(f's_add_u32 s{sOB}, s{sOB}, {2048*1280}')
    a(f's_lshl_b32 s{sOB+1}, s{st2}, 13')
    a(f's_add_u32 s{sOB+1}, s{sOB+1}, {2048*1280+128*16384}')
    srd(a,sR,sWS,sWS+1,WS_O)
    a(f's_add_u32 s56, s{sWS}, {WS_O}')
    a(f's_addc_u32 s57, s{sWS+1}, 0')
    srd(a,sOo,56,57,WS_END-WS_O)
    a(f's_add_u32 s{sKV}, s{sWS}, s{sHB}')
    a(f's_addc_u32 s{sKV+1}, s{sWS+1}, 0')
    a(f's_and_b32 s{sKV+1}, s{sKV+1}, 0xffff')
    a(f's_mov_b32 s{sKV+2}, 163840')
    a(f's_mov_b32 s{sKV+3}, 0x20000')
    a(f's_lshl_b32 s{sOff}, s{sWV}, 10')
    a(f's_add_u32 s{sOff}, s{sOff}, 40960')
    a(f's_mov_b32 m0, s{sOff}')
    a(f's_mov_b32 s{sInc}, {HALF}')
    a(f's_mov_b32 s{sInc+1}, {(8192-HALF)&0xffffffff}')
    def vinit():
        a(f'v_cmp_eq_u32 s[{sTm}:{sTm+1}], 20, v{vRho}')
        a(f'v_mov_b32 v{vt1}, 0x3f803f80')
        a('s_nop 0')
        a(f'v_cndmask_b32 v{vt1}, 0, v{vt1}, s[{sTm}:{sTm+1}]')
        for i in range(16): a(f'v_mov_b32 v{vV+i}, v{vt1}')
    vinit()
    for r in range(16): a(f'v_mov_b32 v{vOa+r}, 0')
    for r in range(16): a(f'v_mov_b32 v{vOb+r}, 0')
    for i in range(4): a(f'v_mov_b32 v{vP+4+i}, 0')
    a(f's_lshl_b32 s{sWl}, s{sWV}, 10')
    a(f's_add_u32 s{sWl}, s{sWl}, {WOFF}')
    a(f's_and_b32 s{sWn}, s{sHD}, 7')
    a(f's_mul_i32 s{sWn}, s{sWn}, 160')
    a('s_waitcnt lgkmcnt(0)')
    a(f's_cmp_lt_u32 s{sHD}, 16')
    a('s_cselect_b64 s[50:51], s[50:51], s[52:53]')
    srd(a,sWo,50,51,640*1280)
    p.stamp(5)

    def rd_k1(dst,off):
        assert off%512==0 and off//512+1<256
        a(f'ds_read2st64_b64 {vr(dst,4)}, v{vK1a} offset0:{off//512} offset1:{off//512+1}')
    def rd_k2(dst,off): a(f'ds_read_b64 {vr(dst,2)}, v{vK2a} offset:{off}')
    def rd_v(buf,off):
        a(f's_mov_b64 exec, s[{sVm}:{sVm+1}]')
        a(f'ds_read_b128 {vr(vV+8*buf,4)}, v{vVa} offset:{off}')
        a(f'ds_read_b128 {vr(vV+8*buf+4,4)}, v{vVb} offset:{off}')
        a('s_mov_b64 exec, -1')
    def qk1(S,C,Q1,K=None): a(f'v_mfma_f32_32x32x16_bf16 {vr(S,16)}, {vr(vK1 if K is None else K,4)}, {vr(Q1,4)}, {C}')
    def qk2(S,Q2,K=None): a(f'v_mfma_f32_32x32x8bf16_1k {vr(S,16)}, {vr(vK2 if K is None else K,2)}, {vr(Q2,2)}, {vr(S,16)}')
    def qk2b(S): a(f'v_mfma_f32_32x32x4bf16_1k {vr(S,32)}, {vr(vK2,2)}, {vr(vQab,2)}, {vr(S,32)}')
    def pv(O,buf,t): a(f'v_mfma_f32_32x32x16_bf16 {vr(O,16)}, {vr(vV+8*buf+4*t,4)}, {vr(vP+4*t,4)}, {vr(O,16)}')
    def ex(S,r): a(f'v_exp_f32 v{S+r}, v{S+r}')
    def cv(S,c): a(f'v_cvt_pk_bf16_f32 v{vP+c}, v{S+2*c}, v{S+2*c+1}')
    def rowmax(M,S,first):
        if first:
            a(f'v_max3_f32 v{M}, v{S}, v{S+1}, v{S+2}'); rest=list(range(3,16))
        else: rest=list(range(16))
        while len(rest)>=2:
            a(f'v_max3_f32 v{M}, v{M}, v{S+rest[0]}, v{S+rest[1]}'); rest=rest[2:]
        if rest: a(f'v_max_f32 v{M}, v{M}, v{S+rest[0]}')
    def xhalf_max(M):
        a(f'v_mov_b32 v{vt1}, v{M}')
        a('s_nop 1')
        a(f'v_permlane32_swap_b32 v{M}, v{vt1}')
        a('s_nop 1')
        a(f'v_max_f32 v{M}, v{M}, v{vt1}')
    def get_l():
        a(f'v_mov_b32 v{vt1}, v{vOa+8}')
        a(f'v_mov_b32 v{vt2}, v{vOa+8}')
        a('s_nop 1')
        a(f'v_permlane32_swap_b32 v{vt1}, v{vt2}')
        a('s_nop 1')
    def store_o(soff):
        a(f'v_rcp_f32 v{vt3}, v{vt2}')
        a(f's_lshr_b32 s{st0}, s{sHD}, 1')
        a(f's_lshl_b32 s{st0}, s{st0}, 10')
        a(f's_and_b32 s{st1}, s{sHD}, 1')
        a(f's_lshl_b32 s{st1}, s{st1}, 9')
        a(f's_add_u32 s{st0}, s{st0}, s{st1}')
        a(f's_add_u32 s{st0}, s{st0}, s{soff}')
        for i in range(12): a(f'v_mul_f32 v{vOa+i}, v{vOa+i}, v{vt3}')
        for i in range(6): a(f'v_cvt_pk_bf16_f32 v{vSa+i}, v{vOa+2*i}, v{vOa+2*i+1}')
        a(f'buffer_store_dwordx4 {vr(vSa,4)}, v{vOoff}, s[{sOo}:{sOo+3}], s{st0} offen {SC}')
        a(f's_lshl_b32 s{st0}, s{sHD}, 7')
        a(f's_add_u32 s{st0}, s{st0}, s{soff+1}')
        a(f's_mov_b64 exec, s[{sLo}:{sLo+1}]')
        a(f'buffer_store_dwordx2 {vr(vSa+4,2)}, v{vOo2}, s[{sOo}:{sOo+3}], s{st0} offen {SC}')
        a('s_mov_b64 exec, -1')
    def addr_add(s):
        for r in (vK1a,vK2a,vVa,vVb): a(f'v_add_u32 v{r}, s{s}, v{r}')
    def addr_addi(imm):
        for r in (vK1a,vK2a,vVa,vVb): a(f'v_add_u32 v{r}, {imm}, v{r}')
    def dma_row(k):
        a(f'buffer_load_dwordx4 v{vDma}, s[{sKV}:{sKV+3}], s{sOff} offen {SL} lds')
        a(f's_add_u32 s{sOff}, s{sOff}, s{sInc+(k&1)}')
        a(f's_mov_b32 m0, s{sOff}')
    def dma_pair():
        dma_row(0); dma_row(1)
    def prio_switch(phase,L):
        a(f's_cmp_lt_u32 s{sWV}, 4')
        a(f's_cbranch_scc{1-phase} {L}_hi')
        a('s_setprio 0')
        a(f's_branch {L}_d')
        a.lab(f'{L}_hi')
        a('s_setprio 1')
        a.lab(f'{L}_d')
    def expgroups(cur,A_,B_,C_,D_):
        A_()
        for r in range(0,4): ex(cur,r)
        B_()
        ex(cur,4); ex(cur,5); cv(cur,0); ex(cur,6); cv(cur,1); ex(cur,7)
        C_()
        ex(cur,8); cv(cur,2); ex(cur,9); cv(cur,3); ex(cur,10); ex(cur,11)
        D_()
        ex(cur,12); ex(cur,13); cv(cur,4); ex(cur,14); cv(cur,5); ex(cur,15); cv(cur,6); cv(cur,7)

    a('s_cmp_eq_u32 s49, 8')
    a('s_cbranch_scc1 L_p2_w8')
    a('s_cmp_eq_u32 s49, 0')
    a('s_cbranch_scc1 L_p2_w6')
    a('s_waitcnt vmcnt(12)')
    a('s_branch L_p2_wd')
    a.lab('L_p2_w6')
    a('s_waitcnt vmcnt(6)')
    a('s_branch L_p2_wd')
    a.lab('L_p2_w8')
    a('s_waitcnt vmcnt(8)')
    a.lab('L_p2_wd')
    a('s_barrier')
    p.stamp(7)
    rd_k1(vK1,0); rd_k2(vK2,0)
    a('s_waitcnt lgkmcnt(0)')
    qk1(vSa,'0',vQa1); qk1(vSb,'0',vQb1)
    a(f's_mul_i32 s{st0}, s{sKH}, {HALF}')
    addr_add(st0)
    a('s_nop 5')
    qk2b(vSa)
    rd_k1(vK1,0); rd_k2(vK2,0); rd_v(0,0)
    a('s_nop 15')
    a('s_nop 3')
    rowmax(vM,vSa,True)
    rowmax(vMb,vSb,True)
    xhalf_max(vM); xhalf_max(vMb)
    for r in range(16): a(f'v_sub_f32 v{vCa+r}, 0, v{vM}')
    for r in range(16): a(f'v_sub_f32 v{vCb+r}, 0, v{vMb}')
    a('s_waitcnt lgkmcnt(0)')
    qk1(vSa,vr(vCa,16),vQa1); qk1(vSb,vr(vCb,16),vQb1)
    rd_k1(vK1,TILE)
    a('s_nop 9')
    qk2b(vSa)
    rd_k2(vK2,TILE)
    a('s_nop 15')
    a(f's_mov_b32 s{sIT}, 0')
    if SPRIO:
        a(f's_cmp_lt_u32 s{sWV}, 4'); a('s_cbranch_scc1 L_sp'); a('s_setprio 1'); a.lab('L_sp')
    a.raw('.p2align 6')
    for _ in range(BSH): a('s_nop 0')
    a.lab('L_b_loop')
    ool=[]
    def cond(it,L,fn):
        a(f's_cmp_eq_u32 s{sIT}, {it}'); a(f's_cbranch_scc1 {L}'); a.lab(L+'_r')
        ool.append((L,fn))
    SP=[vSa,vS1]
    for pp in range(8):
        off=pp*TILE
        if pp==2:
            a(f's_cmp_lt_u32 s{sIT}, 2'); a('s_cbranch_scc1 L_h2'); a.lab('L_h2_r')
            def h2():
                a(f's_cmp_eq_u32 s{sIT}, 1'); a('s_cbranch_scc1 L_h2b')
                a('s_waitcnt vmcnt(2)'); a('s_barrier')
                a(f's_cmp_lg_u32 s{sWV}, 4'); a('s_cbranch_scc1 L_h2_r')
                a('s_cmp_lt_i32 s49, 0'); a('s_cbranch_scc0 L_h2_r')
                a('s_and_b32 s50, s49, 0x7fffffff')
                setflag(a,50)
                a('s_branch L_h2_r')
                a.lab('L_h2b')
                a(f's_mov_b32 s{sOff}, 200000'); a(f's_mov_b32 m0, 200000'); a(f's_mov_b32 s{sInc}, 0'); a(f's_mov_b32 s{sInc+1}, 0')
            ool.append(('L_h2',h2))
        if pp==6:
            def h6():
                a(f's_mov_b32 s{sOff}, 200000'); a(f's_mov_b32 m0, 200000'); a(f's_mov_b32 s{sInc}, 0'); a(f's_mov_b32 s{sInc+1}, 0')
            cond(3,'L_h6',h6)
        dma_row(pp)
        cur=SP[pp&1]; nxt=SP[(pp+1)&1]
        a('s_waitcnt lgkmcnt(0)')
        expgroups(cur,
            lambda: qk1(nxt,vr(vCa,16),vQa1),
            lambda: (pv(vOb,(pp+1)&1,1), rd_v((pp+1)&1,off+TILE)),
            lambda: (qk1(nxt+16,vr(vCb,16),vQb1), rd_k1(vK1,off+2*TILE)),
            lambda: pv(vOa,pp&1,0))
        expgroups(cur+16,
            lambda: (qk2b(nxt), rd_k2(vK2,off+2*TILE)),
            lambda: None,
            lambda: pv(vOa,pp&1,1),
            lambda: pv(vOb,pp&1,0))
    a(f's_cmp_eq_u32 s{sIT}, 3'); a('s_cbranch_scc1 L_b_exit')
    a(f's_cmp_eq_u32 s{sIT}, 1'); a('s_cbranch_scc1 L_bb1')
    a(f's_cmp_eq_u32 s{sIT}, 2'); a('s_cbranch_scc1 L_bb2')
    a('s_waitcnt vmcnt(2)'); a('s_barrier')
    a.lab('L_bb_r')
    def bb1():
        a('s_waitcnt vmcnt(0)'); a('s_barrier')
        a(f's_mov_b32 s{sKV+2}, 0')
        gettok(a,'a',0)
        a('s_branch L_bb_r')
    def bb2():
        a(f's_cmp_lg_u32 s{sWV}, 0'); a('s_cbranch_scc1 L_bb2a')
        poll_f1(a,'a',0)
        a.lab('L_bb2a')
        a('s_waitcnt vmcnt(0)'); a('s_barrier')
        a(f's_add_u32 s{sKV}, s{sWS}, s{sAg}')
        a(f's_addc_u32 s{sKV+1}, s{sWS+1}, 0')
        a(f's_and_b32 s{sKV+1}, s{sKV+1}, 0xffff')
        a(f's_mov_b32 s{sKV+2}, 40960')
        a(f's_lshl_b32 s{sOff}, s{sWV}, 10')
        a(f's_sub_u32 s{sOff}, s{sOff}, 8192')
        a(f's_mov_b32 m0, s{sOff}')
        a(f's_mov_b32 s{sInc}, 8192')
        a(f's_mov_b32 s{sInc+1}, 8192')
        a(f'buffer_load_dwordx2 {vr(vQA1,2)}, v{vQ1o}, s[{sR}:{sR+3}], s{sQA} offen {SL}')
        a(f'buffer_load_dwordx2 {vr(vQA1+2,2)}, v{vQ1o}, s[{sR}:{sR+3}], s{sQA} offen offset:512 {SL}')
        a(f'buffer_load_dwordx2 {vr(vQA2,2)}, v{vQ2o}, s[{sR}:{sR+3}], s{sQA} offen {SL}')
        a('s_branch L_bb_r')
    ool.append(('L_bb1',bb1)); ool.append(('L_bb2',bb2))
    addr_addi(8*TILE)
    if PROF and BPROF==1:
        for k in range(4):
            a(f's_cmp_lg_u32 s{sIT}, {k}'); a(f's_cbranch_scc1 L_st{k}'); p.stamp(1+k); a.lab(f'L_st{k}')
    a(f's_add_u32 s{sIT}, s{sIT}, 1')
    a('s_branch L_b_loop')
    a.lab('L_b_exit')
    addr_addi(8*TILE)
    a('s_nop 1')
    pv(vOb,1,1)
    a('s_setprio 0')
    a('s_nop 15')
    p.stamp(8)
    a(f's_lshl_b32 s{st0}, s{sQP}, 1')
    a(f's_cmp_eq_u32 s{sKH}, 0')
    a('s_cbranch_scc0 L_mg_hi')
    a(f's_add_u32 s{st1}, s{st0}, 1')
    a(f's_mul_i32 s{st1}, s{st1}, 3072')
    a(f's_add_u32 s{st1}, s{st1}, {SCR}')
    a(f'v_add_u32 v{vt4}, s{st1}, v{vDma}')
    for i in range(3): a(f'ds_write_b128 v{vt4}, {vr(vOb+4*i,4)} offset:{1024*i}')
    a(f's_mul_i32 s{st1}, s{st0}, 3072')
    a('s_branch L_mg_d')
    a.lab('L_mg_hi')
    a(f's_mul_i32 s{st1}, s{st0}, 3072')
    a(f's_add_u32 s{st1}, s{st1}, {SCR}')
    a(f'v_add_u32 v{vt4}, s{st1}, v{vDma}')
    for i in range(3): a(f'ds_write_b128 v{vt4}, {vr(vOa+4*i,4)} offset:{1024*i}')
    for i in range(12): a(f'v_mov_b32 v{vOa+i}, v{vOb+i}')
    for i in range(4): a(f'v_mov_b32 v{vQa1+i}, v{vQb1+i}')
    a(f's_add_u32 s{st1}, s{st0}, 1')
    a(f's_mul_i32 s{st1}, s{st1}, 3072')
    a.lab('L_mg_d')
    a(f's_add_u32 s{st1}, s{st1}, {SCR}')
    a(f'v_add_u32 v{vt4}, s{st1}, v{vDma}')
    a('s_waitcnt lgkmcnt(0) vmcnt(0)')
    a('s_barrier')
    for i in range(3): a(f'ds_read_b128 {vr(vSa+4*i,4)}, v{vt4} offset:{1024*i}')
    a('s_waitcnt lgkmcnt(0)')
    a('s_barrier')
    for i in range(12): a(f'v_add_f32 v{vOa+i}, v{vOa+i}, v{vSa+i}')
    get_l()
    a(f'v_mov_b32 v{vt3}, {f32bits(2.0**100):#x}')
    a(f'v_cmp_nlt_f32 vcc, v{vt2}, v{vt3}')
    a('s_nop 4')
    a('s_cbranch_vccnz L_b_fallback')
    a.lab('L_b_store')
    store_o(sOB)
    p.stamp(9)
    a(f's_mul_i32 s{st0}, s{sWV}, {TILE}')
    a(f's_mul_i32 s{st1}, s{sKH}, {HALF}')
    a(f's_sub_u32 s{st0}, s{st0}, s{st1}')
    a(f's_sub_u32 s{st0}, s{st0}, {32*TILE}')
    addr_add(st0)
    a(f's_lshl_b32 s{st0}, s{sJ}, 3')
    a(f's_add_u32 s{st2}, s{st0}, s{sWV}')
    a(f's_lshl_b32 s{sOA}, s{st2}, 15')
    a(f's_lshl_b32 s{sOA+1}, s{st2}, 13')
    a(f's_add_u32 s{sOA+1}, s{sOA+1}, {128*16384}')
    for i in range(4): a(f'v_mov_b32 v{vQa1+i}, v{vQA1+i}')
    for i in range(2): a(f'v_mov_b32 v{vQa2+i}, v{vQA2+i}')
    a(f's_sub_u32 s{sSw}, 8, s{sWV}')
    a(f's_cmp_lg_u32 s{sJ}, 0')
    a(f's_cselect_b32 s{sSw}, 0, s{sSw}')
    vC=vCa; vO=vOa; vS=[vSa,vSb]
    KR=[(vV,vV+4),(vV+8,vV+12),(vP,vP+4)]
    SB=[vSa,vSb,vOa]
    sRedo=30; sWoEn=55
    def cmid_init(tag,val,first):
        a(f's_cmp_le_u32 s{sSw}, {first}')
        a(f's_cbranch_scc1 L_cm_{tag}_v')
        for r in range(16): a(f'v_mov_b32 v{vC+r}, {NEG_BIG:#x}')
        a(f's_branch L_cm_{tag}_d')
        a.lab(f'L_cm_{tag}_v')
        for r in range(16): a(f'v_mov_b32 v{vC+r}, {val}')
        a.lab(f'L_cm_{tag}_d')
    def cmid_switch(tag,t,val):
        L=f'L_sw_{tag}_{t}'
        a(f's_cmp_eq_u32 s{sSw}, {t}')
        a(f's_cbranch_scc1 {L}')
        a.lab(L+'_r')
        def fn():
            a('s_nop 15')
            for r in range(16): a(f'v_mov_b32 v{vC+r}, {val}')
            a('s_nop 1')
        ool.append((L,fn))
    wocnt=[0]
    def wo_dma():
        if wocnt[0]>=10: return
        n=wocnt[0]; wocnt[0]+=1
        a(f's_cmp_lg_u32 s{sWoEn}, 0')
        a(f's_cbranch_scc0 L_wo{n}')
        for k in range(2):
            a(f's_mov_b32 m0, s{sWl}')
            a(f's_add_u32 s{sWl}, s{sWl}, 5120')
            a(f'buffer_load_dwordx4 v{vWo}, s[{sWo}:{sWo+3}], s{sWn} offen lds')
            a(f's_add_u32 s{sWn}, s{sWn}, 40960')
        a.lab(f'L_wo{n}')
    def maxpass(tag,tiles,dma):
        cmid_init(tag,'0',max(1,tiles[0]))
        nb=len(tiles)//3
        for i in range(3):
            rd_k1(KR[i][0],tiles[i]*TILE); rd_k2(KR[i][1],tiles[i]*TILE)
        for b in range(nb):
            a('s_waitcnt lgkmcnt(0)')
            for i in range(3):
                t=tiles[3*b+i]
                if max(1,tiles[0])<t<=7: cmid_switch(tag,t,'0')
                C = vr(vMF,16) if t==0 else (vr(vML,16) if t==8 else vr(vC,16))
                qk1(SB[i],C,vQa1,KR[i][0]); qk2(SB[i],vQa2,KR[i][1])
            if b<nb-1:
                for i in range(3):
                    t=tiles[3*(b+1)+i]
                    rd_k1(KR[i][0],t*TILE); rd_k2(KR[i][1],t*TILE)
            else:
                rd_k1(vK1,0); rd_k2(vK2,0)
            if dma: wo_dma()
            a('s_nop 7')
            for i in range(3):
                if i==2: a('s_nop 3')
                rowmax(vM,SB[i],b==0 and i==0)
    a(f's_mov_b32 s{sRedo}, 0')
    a(f's_cmp_lt_u32 s{sWV}, 5')
    a(f's_cselect_b32 s{sWoEn}, 1, 0')
    maxpass('p1',[6,7,8],True)
    a.lab('L_a_p2')
    xhalf_max(vM)
    a(f'v_sub_f32 v{vM}, 0, v{vM}')
    for r in range(16): a(f'v_add_f32 v{vMF+r}, v{vMF+r}, v{vM}')
    for r in range(16): a(f'v_add_f32 v{vML+r}, v{vML+r}, v{vM}')
    cmid_init('p2',f'v{vM}',1)
    for r in range(16): a(f'v_mov_b32 v{vO+r}, 0')
    vinit()
    for i in range(4): a(f'v_mov_b32 v{vP+4+i}, 0')
    a('s_waitcnt lgkmcnt(0)')
    qk1(vS[0],vr(vMF,16),vQa1); qk2(vS[0],vQa2)
    rd_k1(vK1,TILE); rd_v(0,0); rd_k2(vK2,TILE)
    for t in range(9):
        last=(t==8); last2=(t==7); tn=t+1
        cur=vS[t&1]; nxt=vS[(t+1)&1]; off=t*TILE
        Cn = vr(vML,16) if tn==8 else vr(vC,16)
        a('s_waitcnt lgkmcnt(0)')
        if 2<=tn<=7: cmid_switch('p2',tn,f'v{vM}')
        wo_dma()
        def A_():
            if not last: qk1(nxt,Cn,vQa1)
            if not last and not last2: rd_k1(vK1,off+2*TILE)
        def B_():
            pv(vO,(t+1)&1,1)
            if not last: rd_v((t+1)&1,off+TILE)
        def C_():
            if not last: qk2(nxt,vQa2)
            if not last and not last2: rd_k2(vK2,off+2*TILE)
        expgroups(cur,A_,B_,C_,lambda: pv(vO,t&1,0))
    A_CHECK=True
    assert wocnt[0]==10
    a('s_nop 1')
    pv(vO,0,1)
    a('s_nop 15')
    a('s_nop 0')
    get_l()
    a(f'v_mov_b32 v{vt3}, {f32bits(2.0**100):#x}')
    a(f'v_cmp_nlt_f32 vcc, v{vt2}, v{vt3}')
    a('s_nop 4')
    a('s_cbranch_vccnz L_a_exact')
    a.lab('L_a_store')
    store_o(sOA)
    p.stamp(10)
    a('s_waitcnt vmcnt(0)')
    a('s_barrier')
    p.stamp(11)
    a(f's_cmp_lg_u32 s{sWV}, 4')
    a('s_cbranch_scc1 L_p3')
    a(f's_lshl_b32 s{st0}, s{sJ}, 12')
    a(f's_lshl_b32 s{st1}, s{sHD}, {FP2}')
    a(f's_add_u32 s{st0}, s{st0}, s{st1}')
    a(f's_add_u32 s{st0}, s{st0}, 65536')
    setflag(a,st0)
    a(f's_lshl_b32 s{st0}, s{sJ}, 12')
    a(f's_add_u32 s{st0}, s{st0}, {WS_FLG+65536}')
    a(f'v_and_b32 v{vt0}, 31, v{vLane}')
    a(f'v_lshlrev_b32 v{vt0}, {FP2}, v{vt0}')
    a(f'v_add_u32 v{vt0}, s{st0}, v{vt0}')
    if not NOPOLL3: poll(a,'p3',vt0,[0],(1<<32)-1)
    a('s_barrier')
    a('s_branch L_done')
    a.lab('L_a_exact')
    a(f's_cmp_lg_u32 s{sRedo}, 0')
    a('s_cbranch_scc1 L_a_store')
    a(f's_mov_b32 s{sRedo}, 1')
    a(f's_mov_b32 s{sWoEn}, 0')
    for r in range(16): a(f'v_sub_f32 v{vMF+r}, v{vMF+r}, v{vM}')
    for r in range(16): a(f'v_sub_f32 v{vML+r}, v{vML+r}, v{vM}')
    maxpass('p1x',[0,1,2,3,4,5,6,7,8],False)
    a('s_branch L_a_p2')
    for L,fn in ool:
        a.lab(L); fn()
        if not L.startswith('L_bb'): a(f's_branch {L}_r')
    a.lab('L_b_fallback')
    for i in range(2):
        a(f'v_mov_b32 v{vt4}, v{vQab+i}')
        a(f'v_mov_b32 v{vt5}, v{vQab+i}')
        a('s_nop 1')
        a(f'v_permlane32_swap_b32 v{vt4}, v{vt5}')
        a(f's_cmp_eq_u32 s{sKH}, 0')
        a('s_cselect_b64 s[56:57], -1, 0')
        a('s_nop 1')
        a(f'v_cndmask_b32 v{vt4}, v{vt5}, v{vt4}, s[56:57]')
        a(f'v_cndmask_b32 v{vQa2+i}, 0, v{vt4}, s[{sLo}:{sLo+1}]')
    a(f'v_lshlrev_b32 v{vt4}, 3, v{vRho}')
    a(f'v_add_u32 v{vt4}, 1024, v{vt4}')
    a(f'v_lshrrev_b32 v{vt0}, 5, v{vLane}')
    a(f'v_bfe_u32 v{vt5}, v{vRho}, 2, 2')
    a(f'v_xor_b32 v{vt5}, v{vt5}, v{vt0}')
    a(f'v_lshlrev_b32 v{vt5}, 4, v{vt5}')
    a(f'v_lshl_add_u32 v{vt5}, v{vRho}, 6, v{vt5}')
    a(f'v_add_u32 v{vt5}, 1280, v{vt5}')
    a(f'v_xor_b32 v{vt0}, 32, v{vt5}')
    a(f'v_mov_b32 v{vM}, {NEG_BIG:#x}')
    a(f's_mov_b32 s{st0}, s{sHB}')
    a(f's_mov_b32 s{sIT}, 64')
    a.lab('L_fb_p1')
    a(f'buffer_load_dwordx2 {vr(vK1,2)}, v{vQ1o}, s[{sR}:{sR+3}], s{st0} offen {SL}')
    a(f'buffer_load_dwordx2 {vr(vK1+2,2)}, v{vQ1o}, s[{sR}:{sR+3}], s{st0} offen offset:512 {SL}')
    a(f'buffer_load_dwordx2 {vr(vK2,2)}, v{vt4}, s[{sR}:{sR+3}], s{st0} offen {SL}')
    a('s_waitcnt vmcnt(0)')
    qk1(vSa,'0',vQa1); qk2(vSa,vQa2)
    a('s_nop 15')
    rowmax(vM,vSa,False)
    a(f's_add_u32 s{st0}, s{st0}, {TILE}')
    a(f's_sub_u32 s{sIT}, s{sIT}, 1')
    a(f's_cmp_lg_u32 s{sIT}, 0')
    a('s_cbranch_scc1 L_fb_p1')
    xhalf_max(vM)
    for r in range(16): a(f'v_sub_f32 v{vCa+r}, 0, v{vM}')
    for r in range(16): a(f'v_mov_b32 v{vOa+r}, 0')
    a(f's_mov_b32 s{st0}, s{sHB}')
    a(f's_mov_b32 s{sIT}, 64')
    a.lab('L_fb_p2')
    a(f'buffer_load_dwordx2 {vr(vK1,2)}, v{vQ1o}, s[{sR}:{sR+3}], s{st0} offen {SL}')
    a(f'buffer_load_dwordx2 {vr(vK1+2,2)}, v{vQ1o}, s[{sR}:{sR+3}], s{st0} offen offset:512 {SL}')
    a(f'buffer_load_dwordx2 {vr(vK2,2)}, v{vt4}, s[{sR}:{sR+3}], s{st0} offen {SL}')
    a(f's_mov_b64 exec, s[{sVm}:{sVm+1}]')
    a(f'buffer_load_dwordx4 {vr(vV,4)}, v{vt5}, s[{sR}:{sR+3}], s{st0} offen {SL}')
    a(f'buffer_load_dwordx4 {vr(vV+4,4)}, v{vt0}, s[{sR}:{sR+3}], s{st0} offen {SL}')
    a('s_mov_b64 exec, -1')
    a('s_waitcnt vmcnt(0)')
    qk1(vSa,vr(vCa,16),vQa1); qk2(vSa,vQa2)
    a('s_nop 15')
    for r in range(16): ex(vSa,r)
    a('s_nop 0')
    for c in range(8): cv(vSa,c)
    a('s_nop 1')
    pv(vOa,0,0); pv(vOa,0,1)
    a(f's_add_u32 s{st0}, s{st0}, {TILE}')
    a(f's_sub_u32 s{sIT}, s{sIT}, 1')
    a(f's_cmp_lg_u32 s{sIT}, 0')
    a('s_cbranch_scc1 L_fb_p2')
    a('s_nop 15')
    get_l()
    a('s_branch L_b_store')
    return vEnd, dict(sHD=sHD,sJ=sJ)

def phase3(a,p,info,ROT3=3,XD=6):
    WOFF=40960
    sHD,sJ=info['sHD'],info['sJ']
    sX,sO=4,8
    st0,st1,st2,st3=20,21,22,23
    sPH=28; sBR=29; sMT=30; sNT=31
    vLane=1; vXo=2; vt0=4; vt1=5; vt2=6; vt3=7; vTok=8; vG=9; vTr=10; vOut=11; vTp=12; vTq=14; vX2=3
    vX=16; vWf=vX+160; vAcc=vWf+40; vEnd=vAcc+40
    a.lab('L_p3')
    a(f's_cmp_ge_u32 s{sWV}, 4')
    a('s_cbranch_scc1 L_done')
    a('s_load_dwordx2 s[50:51], s[0:1], 48')
    a(f's_lshr_b32 s{sBR}, s{sHD}, 4')
    a(f's_bfe_u32 s{st0}, s{sHD}, 0x10003')
    a(f's_lshl_b32 s{sMT}, s{sJ}, 1')
    a(f's_add_u32 s{sMT}, s{sMT}, s{st0}')
    a(f's_and_b32 s{sNT}, s{sHD}, 7')
    a(f's_and_b32 s{sPH}, s{sHD}, {ROT3}')
    a(f'v_and_b32 v{vTok}, 15, v{vLane}')
    a(f'v_lshrrev_b32 v{vG}, 4, v{vLane}')
    a(f'v_lshlrev_b32 v{vXo}, 4, v{vLane}')
    a(f'v_lshlrev_b32 v{vX2}, 3, v{vLane}')
    a(f's_lshl_b32 s{st0}, s{sMT}, 3')
    a(f's_lshl_b32 s{st1}, s{sWV}, 1')
    a(f's_add_u32 s{st0}, s{st0}, s{st1}')
    a(f's_lshl_b32 s32, s{st0}, 14')
    a(f's_lshl_b32 s36, s{st0}, 12')
    a(f's_add_u32 s36, s36, {128*16384}')
    a(f's_add_u32 s37, s36, 4096')
    a(f's_mul_i32 s{st0}, s{sBR}, {2048*1280}')
    a(f's_add_u32 s{st0}, s{st0}, {WS_O}')
    a(f's_add_u32 s52, s{sWS}, s{st0}')
    a(f's_addc_u32 s53, s{sWS+1}, 0')
    srd(a,sX,52,53,2048*1280)
    a(f'v_bfe_u32 v{vt0}, v{vLane}, 2, 2')
    a(f'v_mul_u32_u24 v{vt0}, 160, v{vt0}')
    a(f'v_and_b32 v{vt1}, 3, v{vLane}')
    a(f'v_lshl_add_u32 v{vt0}, v{vt1}, 3, v{vt0}')
    a(f'v_add_u32 v{vt0}, {WOFF}, v{vt0}')
    a(f'v_lshrrev_b32 v{vt1}, 1, v{vG}')
    a(f'v_mul_u32_u24 v{vt1}, 5, v{vt1}')
    a(f'v_and_b32 v{vt2}, 1, v{vG}')
    a(f'v_add_u32 v{vt1}, v{vt1}, v{vt2}')
    a(f'v_mul_u32_u24 v{vt1}, 640, v{vt1}')
    a(f'v_add_u32 v{vTr}, v{vt0}, v{vt1}')
    a(f'v_mul_u32_u24 v{vt1}, {5*640}, v{vG}')
    a(f'v_add3_u32 v{vTq}, v{vt0}, v{vt1}, 0')
    a(f'v_add_u32 v{vTq}, {4*640}, v{vTq}')
    for i in range(40): a(f'v_mov_b32 v{vAcc+i}, 0')
    a(f's_lshl_b32 s{st0}, s{sMT}, 7')
    a(f's_lshl_b32 s{st1}, s{sWV}, 5')
    a(f's_add_u32 s{st0}, s{st0}, s{st1}')
    a(f'v_add_u32 v{vt0}, s{st0}, v{vTok}')
    a(f'v_mul_u32_u24 v{vt0}, 2560, v{vt0}')
    a(f'v_and_b32 v{vt1}, 1, v{vG}')
    a(f'v_lshlrev_b32 v{vt1}, 5, v{vt1}')
    a(f'v_lshrrev_b32 v{vt2}, 1, v{vG}')
    a(f'v_lshl_add_u32 v{vt1}, v{vt2}, 4, v{vt1}')
    a(f'v_add_u32 v{vOut}, v{vt0}, v{vt1}')
    a(f'v_lshl_add_u32 v{vt3}, v{vG}, 3, v{vt0}')
    a('s_barrier')
    p.stamp(12)
    a(f's_mov_b32 s33, s{sPH}')
    for ph in range(4):
        a(f's_lshl_b32 s{st0}, s33, 12')
        a(f's_add_u32 s{40+2*ph}, s32, s{st0}')
        a(f's_add_u32 s{41+2*ph}, s{40+2*ph}, 16384')
        a('s_add_u32 s33, s33, 1')
        a('s_and_b32 s33, s33, 3')
    def xloads(st):
        L=[]
        if st<16:
            for u in range(2):
                L.append(f'buffer_load_dwordx4 {vr(vX+(st*2+u)*4,4)}, v{vXo}, s[{sX}:{sX+3}], s{40+2*(st//4)+u} offen offset:{(st%4)*1024} {SL}')
        elif st<20:
            for u in range(2):
                for hh in range(2):
                    L.append(f'buffer_load_dwordx2 {vr(vX+(st*2+u)*4+2*hh,2)}, v{vX2}, s[{sX}:{sX+3}], s{36+u} offen offset:{(st-16)*1024+hh*512} {SL}')
        return L
    for st in range(XD):
        for l in xloads(st): a(l)
    if BPROF==3: p.stamp(1,force=True)
    a('s_waitcnt lgkmcnt(0)')
    srd(a,sO,50,51,2048*2560)
    def trr(s,cp,h):
        buf=vWf+(s&1)*20+cp*4+2*h
        if s<16: return f'ds_read_b64_tr_b16 {vr(buf,2)}, v{vTp+((s//4)&1)} offset:{(s%4)*6400+cp*32+h*1280}'
        o=(s-16)*25600+cp*32+h*12800
        if o<65536: return f'ds_read_b64_tr_b16 {vr(buf,2)}, v{vTq} offset:{o}'
        return f'ds_read_b64_tr_b16 {vr(buf,2)}, v{vTq+1} offset:{o-51200}'
    def setp(ph):
        a(f's_mul_i32 s{st0}, s{sPH}, {4*6400}')
        a(f'v_add_u32 v{vTp+(ph&1)}, s{st0}, v{vTr}')
        a(f's_add_u32 s{sPH}, s{sPH}, 1')
        a(f's_and_b32 s{sPH}, s{sPH}, 3')
    a(f'v_add_u32 v{vTq+1}, 51200, v{vTq}')
    setp(0)
    for cp in range(5):
        a(trr(0,cp,0)); a(trr(0,cp,1))
    nl=lambda st: len(xloads(st))
    for s in range(20):
        if s%4==0 and s//4+1<4: setp(s//4+1)
        nxt=[trr(s+1,cp,h) for cp in range(5) for h in range(2)] if s+1<20 else []
        xl=xloads(s+XD)
        buf=vWf+(s&1)*20
        younger=sum(nl(t) for t in range(s+1,min(s+XD,20)))
        a(f's_waitcnt lgkmcnt(0) vmcnt({younger})')
        if BPROF==3 and s in (0,4,8,12,16,19): p.stamp(2+(0,4,8,12,16,19).index(s),force=True)
        k=0
        for cp in range(5):
            for u in range(2):
                ac=vAcc+(cp*2+u)*4
                a(f'v_mfma_f32_16x16x32_bf16 {vr(ac,4)}, {vr(buf+cp*4,4)}, {vr(vX+(s*2+u)*4,4)}, {vr(ac,4)}')
                for _ in range(2 if k<5 else 0):
                    if nxt: a(nxt.pop(0))
                if k>=5 and xl: a(xl.pop(0))
                k+=1
        assert not xl
    a('s_nop 7')
    p.stamp(13)
    a(f's_mul_i32 s{st0}, s{sBR}, 1280')
    a(f's_mul_i32 s{st1}, s{sNT}, 160')
    a(f's_add_u32 s{st0}, s{st0}, s{st1}')
    a(f's_add_u32 s{st1}, s{st0}, {16*2560}')
    for u in range(2):
        for cp in range(5):
            b=vAcc+(cp*2+u)*4
            a(f'v_cvt_pk_bf16_f32 v{b}, v{b}, v{b+1}')
            a(f'v_cvt_pk_bf16_f32 v{b+1}, v{b+2}, v{b+3}')
        for cp in (0,2):
            b=vAcc+(cp*2+u)*4; b2=vAcc+((cp+1)*2+u)*4
            a(f'v_mov_b32 v{b+2}, v{b2}')
            a(f'v_mov_b32 v{b+3}, v{b2+1}')
            a('s_nop 1')
            a(f'v_permlane16_swap_b32 v{b}, v{b+2}')
            a(f'v_permlane16_swap_b32 v{b+1}, v{b+3}')
            a('s_nop 1')
            a(f'buffer_store_dwordx4 {vr(b,4)}, v{vOut}, s[{sO}:{sO+3}], s{st0+u} offen offset:{cp*32} {SO}')
        b=vAcc+(4*2+u)*4
        a(f'buffer_store_dwordx2 {vr(b,2)}, v{vt3}, s[{sO}:{sO+3}], s{st0+u} offen offset:128 {SO}')
    return vEnd

def build(**kw):
    a=A(); p=Prof(a)
    a.raw(f'.globl {KNAME}'); a.raw('.p2align 8'); a.raw(f'.type {KNAME},@function'); a.lab(KNAME)
    a('s_cmp_ge_u32 s2, 256')
    a('s_cbranch_scc1 L_exit')
    p.real(0); p.stamp(0)
    a(f's_load_dwordx4 s[{sDBG}:{sDBG+3}], s[0:1], 56' if False else f's_load_dwordx2 s[{sDBG}:{sDBG+1}], s[0:1], 56')
    a(f's_load_dwordx2 s[{sWS}:{sWS+1}], s[0:1], 64')
    a('s_load_dwordx4 s[16:19], s[0:1], 0')
    a('s_load_dwordx4 s[20:23], s[0:1], 24')
    a(f's_mov_b32 s{sWG}, s2')
    a('v_lshrrev_b32 v2, 6, v0')
    a('s_nop 0')
    a(f'v_readfirstlane_b32 s{sWV}, v2')
    a(f's_cmp_lg_u32 s{sWG}, 0')
    a('s_cbranch_scc1 L_notok')
    a(f's_cmp_lg_u32 s{sWV}, 4')
    a('s_cbranch_scc1 L_notok')
    a('s_memrealtime s[56:57]')
    a('s_waitcnt lgkmcnt(0)')
    a('s_or_b32 s56, s56, 1')
    a('s_mov_b64 exec, 1')
    a('v_mov_b32 v2, 0')
    a('v_mov_b32 v3, s56')
    a(f'global_store_dword v2, v3, s[{sDBG}:{sDBG+1}] sc1')
    a('s_mov_b64 exec, -1')
    a.lab('L_notok')
    if CPF:
        a(f's_cmp_lg_u32 s{sWV}, 5')
        a('s_cbranch_scc1 L_nocpf')
        a('s_getpc_b64 s[56:57]')
        a.lab('L_pc')
        a(f's_lshr_b32 s58, s{sWG}, 3')
        a('s_and_b32 s58, s58, 31')
        a('s_lshl_b32 s58, s58, 10')
        a('v_and_b32 v2, 63, v0')
        a('v_lshlrev_b32 v2, 4, v2')
        a('v_add_u32 v2, s58, v2')
        a(f'v_min_u32 v2, CODE_BYTES-16, v2')
        a('global_load_dwordx4 v[84:87], v2, s[56:57]')
        a.lab('L_nocpf')
    v1=phase1(a,p,**kw.get('p1',{}))
    v2,info=phase2(a,p,**kw.get('p2',{}))
    v3=phase3(a,p,info,**kw.get('p3',{}))
    a.lab('L_done')
    if PROF:
        a('s_waitcnt vmcnt(0)')
        p.real(1); p.dump()
    a('s_endpgm')
    a.lab('L_exit')
    a('s_endpgm')
    a.lab('L_code_end')
    a.raw('.set CODE_BYTES, (L_code_end - L_pc) & 0xfffffff0' if CPF else '')
    vg=max(v1,v2,v3)
    desc=f'''.section .rodata,"a"
.p2align 6
.amdhsa_kernel {KNAME}
  .amdhsa_next_free_vgpr {vg}
  .amdhsa_next_free_sgpr 102
  .amdhsa_accum_offset {(vg+3)//4*4}
  .amdhsa_group_segment_fixed_size 0
  .amdhsa_kernarg_size 72
  .amdhsa_user_sgpr_count 2
  .amdhsa_user_sgpr_kernarg_segment_ptr 1
  .amdhsa_system_sgpr_workgroup_id_x 1
.end_amdhsa_kernel
'''
    hdr=open('cdna_kernels/'+NAME+'.s.ref').read().split('\n')
    out=[]
    for l in hdr:
        if l.startswith('; @launch'): out.append('; @launch grid=(256,1,1) block=(512,1,1) lds=163840'); continue
        if not l.startswith(';'): break
        out.append(l)
    out.append('.amdgcn_target "amdgcn-amd-amdhsa--gfx950"'); out.append('.text')
    return '\n'.join(out)+'\n'+a.txt()+desc

if __name__=='__main__':
    if len(sys.argv)>2 and sys.argv[2]=='prof': PROF=True
    kw=eval(sys.argv[3]) if len(sys.argv)>3 else {}
    if 'CPF' in kw: CPF=kw.pop('CPF')
    if 'JMAP' in kw: JMAP=kw.pop('JMAP')
    if 'NOPOLL3' in kw: NOPOLL3=kw.pop('NOPOLL3')
    if 'RT' in kw: RT=kw.pop('RT')
    if 'BPROF' in kw: BPROF=kw.pop('BPROF')
    if 'POLL' in kw: POLLC.update(kw.pop('POLL'))
    if 'SO' in kw: SO=kw.pop('SO')
    if 'SL' in kw: SL=kw.pop('SL')
    if 'SC' in kw: SC=kw.pop('SC')
    open(sys.argv[1],'w').write(build(**kw))
```

```python
import sys, math, struct
NAME='concat_heads__sliding_block__mha_block__prompt'
KNAME=NAME+'_kernel'
WS_Q=0
WS_KV=2*32*64*1280
WS_O=WS_KV+2*32*64*2560
WS_END=WS_O+2*2048*1280
WS_FLG=WS_END
CSCALE=(20.0**-0.5)*math.log2(math.e)
NEG_BIG=0xf149f2ca
def f32bits(x): return struct.unpack('<I',struct.pack('<f',x))[0]
class A:
    def __init__(s): s.l=[]
    def __call__(s,x): s.l.append('  '+x)
    def lab(s,x): s.l.append(x+':')
    def raw(s,x): s.l.append(x)
    def txt(s): return '\n'.join(s.l)+'\n'
def vr(a,n=1): return f'v{a}' if n==1 else f'v[{a}:{a+n-1}]'
PROF=False
BPROF=False
NOPOLL3=False
JMAP=False
CPF=True
RT=False
PROF_BASE=32<<20
NST=16
class Prof:
    def __init__(s,a): s.a=a; s.n=0
    def stamp(s,i=None,force=False):
        if not PROF: return
        if BPROF==2 and not force and i not in (0,7,8): return
        if BPROF==3 and not force and i not in (0,12,13): return
        if i is None: i=s.n
        s.n=max(s.n,i+1)
        assert i<14
        s.a(f's_memrealtime s[{60+2*i}:{61+2*i}]' if RT else f's_memtime s[{60+2*i}:{61+2*i}]')
    def real(s,idx):
        if PROF: s.a(f's_memrealtime s[{88+2*idx}:{89+2*idx}]')
    def dump(s):
        if not PROF: return
        a=s.a
        a('s_waitcnt lgkmcnt(0) vmcnt(0)')
        a(f's_lshl_b32 s92, s{sWG}, 3')
        a(f's_add_u32 s92, s92, s{sWV}')
        a('s_lshl_b32 s92, s92, 6')
        a(f's_add_u32 s92, s92, {PROF_BASE}')
        a(f's_add_u32 s94, s{sWS}, s92')
        a(f's_addc_u32 s95, s{sWS+1}, 0')
        a('v_mov_b32 v0, 0')
        a('s_mov_b64 exec, 1')
        for i in range(14):
            a(f'v_mov_b32 v1, s{60+2*i}')
            a(f'global_store_dword v0, v1, s[94:95] offset:{4*i}')
        a('v_mov_b32 v1, s88'); a('global_store_dword v0, v1, s[94:95] offset:56')
        a('v_mov_b32 v1, s90'); a('global_store_dword v0, v1, s[94:95] offset:60')
        a('s_waitcnt vmcnt(0)')
sWG=96; sWV=97; sDBG=98; sWS=100; sTOK=59
def srd(a, d, lo, hi, nbytes):
    a(f's_mov_b32 s{d}, s{lo}')
    a(f's_and_b32 s{d+1}, s{hi}, 0xffff')
    a(f's_mov_b32 s{d+2}, {nbytes}')
    a(f's_mov_b32 s{d+3}, 0x20000')

SC='sc1'
SL=''
SO=''
SCO='sc1'

TILE=2560; HALF=81920
P2M=212
P2C=list(range(244,256))
def head_j(a,sH,sJ_,t0,t1):
    if JMAP:
        a(f's_lshr_b32 s{sH}, s{sWG}, 3')
        a(f's_and_b32 s{sJ_}, s{sWG}, 7')
        return
    a(f's_and_b32 s{t0}, s{sWG}, 7')
    a(f's_lshr_b32 s{t1}, s{sWG}, 3')
    a(f's_lshl_b32 s{sH}, s{t0}, 2')
    a(f's_lshr_b32 s{t0}, s{t1}, 3')
    a(f's_add_u32 s{sH}, s{sH}, s{t0}')
    a(f's_and_b32 s{sJ_}, s{t1}, 7')
def q_prep(a):
    head_j(a,50,51,52,53)
    a('s_lshl_b32 s50, s50, 6')
    a('s_lshl_b32 s51, s51, 3')
    a('s_add_u32 s50, s50, s51')
    a(f's_and_b32 s51, s{sWV}, 3')
    a('s_lshl_b32 s51, s51, 1')
    a('s_add_u32 s50, s50, s51')
    a('s_mul_i32 s50, s50, 1280')
    a(f's_add_u32 s50, s50, {32*64*1280}')
    a('s_add_u32 s51, s50, 1280')
    srd(a,52,sWS,sWS+1,WS_O)
    a('v_and_b32 v5, 31, v1')
    a('v_lshlrev_b32 v5, 3, v5')
    a('v_lshrrev_b32 v4, 5, v1')
    a('v_mul_u32_u24 v33, 1280, v4')
    a('v_lshl_add_u32 v4, v4, 8, v5')
    a('v_add3_u32 v5, v5, v33, 0')
    a('v_add_u32 v5, 1024, v5')
def q_loads(a):
    for (r1,so) in ((16,50),(24,51)):
        a(f'buffer_load_dwordx2 v[{r1}:{r1+1}], v4, s[52:55], s{so} offen {SL}')
        a(f'buffer_load_dwordx2 v[{r1+2}:{r1+3}], v4, s[52:55], s{so} offen offset:512 {SL}')
    a(f'buffer_load_dwordx2 v[20:21], v5, s[52:55], s50 offen {SL}')
def q_issue(a):
    q_prep(a); q_loads(a)
def kv_first(a,pieces,rows=(0,HALF,8192,HALF+8192)):
    head_j(a,50,51,52,53)
    a(f's_mul_i32 s50, s50, {64*TILE}')
    a(f's_add_u32 s50, s50, {WS_KV+32*64*TILE}')
    a(f's_add_u32 s52, s{sWS}, s50')
    a(f's_addc_u32 s53, s{sWS+1}, 0')
    a('s_and_b32 s53, s53, 0xffff')
    a('s_mov_b32 s54, 163840')
    a('s_mov_b32 s55, 0x20000')
    a('v_lshlrev_b32 v2, 4, v1')
    for row in rows:
        for pc in pieces:
            a(f's_add_u32 m0, s{pc[0]}, {row+pc[1]}')
            a(f's_add_u32 s50, s{pc[0]}, {row+pc[1]}')
            a(f'buffer_load_dwordx4 v2, s[52:55], s50 offen {SL} lds')
def poll_f1(a,tag,br):
    head_j(a,50,51,52,53)
    a('s_mul_i32 s50, s50, 20')
    a('s_lshr_b32 s51, s50, 7')
    a('s_add_u32 s50, s50, 19')
    a('s_lshr_b32 s50, s50, 7')
    a('s_sub_u32 s50, s50, s51')
    a('v_bfe_u32 v2, v1, 4, 1')
    a('v_mul_u32_u24 v2, s50, v2')
    a('v_add_u32 v2, s51, v2')
    a('v_lshrrev_b32 v5, 5, v1')
    a('v_mul_u32_u24 v5, 5, v5')
    a('v_add_u32 v5, v5, v2')
    a('v_add_u32 v14, 10, v2')
    a('v_and_b32 v2, 15, v1')
    a('v_lshl_add_u32 v5, v5, 4, v2')
    a('v_lshl_add_u32 v14, v14, 4, v2')
    a('v_lshlrev_b32 v5, 7, v5')
    a('v_lshlrev_b32 v14, 7, v14')
    a(f'v_add_u32 v5, {WS_FLG+br*15*16*128}, v5')
    a(f'v_add_u32 v14, {WS_FLG+br*15*16*128}, v14')
    poll2(a,tag,5,14,(1<<64)-1)

def p2_early(a,tag):
    vLane=1; vt0=2; vt1=3; vt2=4; vt3=5; vCc=6; st0=50; sTm=52; sJ=51; sLo=56
    vK1a,vK2a,vVa,vVb,vDma,vRho,vOoff,vOo2,vQ1o,vQ2o,vWo,vKap=P2C
    vMF=P2M; vML=P2M+16
    head_j(a,50,sJ,52,53)
    a(f'v_lshlrev_b32 v{vDma}, 4, v{vLane}')
    a(f'v_and_b32 v{vRho}, 31, v{vLane}')
    a(f'v_lshlrev_b32 v{vt1}, 3, v{vRho}')
    a(f'v_add_u32 v{vK2a}, 1024, v{vt1}')
    a(f'v_mov_b32 v{vt2}, 0x70000000')
    a(f'v_cmp_gt_u32 s[{sLo}:{sLo+1}], 32, v{vLane}')
    a('s_nop 1')
    a(f'v_cndmask_b32 v{vQ2o}, v{vt2}, v{vK2a}, s[{sLo}:{sLo+1}]')
    a(f'v_lshrrev_b32 v{vt0}, 5, v{vLane}')
    a(f'v_lshlrev_b32 v{vK1a}, 3, v{vRho}')
    a(f'v_lshl_add_u32 v{vK1a}, v{vt0}, 8, v{vK1a}')
    a(f'v_mov_b32 v{vQ1o}, v{vK1a}')
    a(f'v_bfe_u32 v{vt1}, v{vRho}, 2, 2')
    a(f'v_xor_b32 v{vt1}, v{vt1}, v{vt0}')
    a(f'v_lshlrev_b32 v{vt1}, 4, v{vt1}')
    a(f'v_lshl_add_u32 v{vVa}, v{vRho}, 6, v{vt1}')
    a(f'v_add_u32 v{vVa}, 1280, v{vVa}')
    a(f'v_xor_b32 v{vVb}, 32, v{vVa}')
    a(f'v_and_b32 v{vt1}, 1, v{vRho}')
    a(f'v_lshlrev_b32 v{vKap}, 4, v{vt1}')
    a(f'v_lshrrev_b32 v{vt1}, 4, v{vRho}')
    a(f'v_lshl_or_b32 v{vKap}, v{vt1}, 3, v{vKap}')
    a(f'v_and_b32 v{vt1}, 4, v{vRho}')
    a(f'v_or_b32 v{vKap}, v{vKap}, v{vt1}')
    a(f'v_bfe_u32 v{vt1}, v{vRho}, 3, 1')
    a(f'v_lshl_or_b32 v{vKap}, v{vt1}, 1, v{vKap}')
    a(f'v_bfe_u32 v{vt1}, v{vRho}, 1, 1')
    a(f'v_or_b32 v{vKap}, v{vKap}, v{vt1}')
    a(f'v_lshlrev_b32 v{vt3}, 2, v{vt0}')
    a(f'v_sub_u32 v{vt3}, v{vKap}, v{vt3}')
    a(f'v_mov_b32 v{vt2}, {NEG_BIG:#x}')
    for r in range(16):
        base=(r&3)+8*(r>>2)
        kb=16*(r&1)+8*((r>>3)&1)+2*((r>>2)&1)+((r>>1)&1)
        if r>=2:
            q=r-2
            a(f'v_cndmask_b32 v{vMF+q}, v{vt2}, 0, s[{sTm+2*(q&1)}:{sTm+1+2*(q&1)}]')
            a(f'v_cndmask_b32 v{vML+q}, 0, v{vt2}, s[{sTm+2*(q&1)}:{sTm+1+2*(q&1)}]')
        a(f'v_cmp_gt_i32 s[{sTm+2*(r&1)}:{sTm+1+2*(r&1)}], {kb}, v{vt3}')
        if r==0: a('s_nop 0')
        if r==1: a('s_nop 1')
    a('s_nop 1')
    for q in (14,15):
        a(f'v_cndmask_b32 v{vMF+q}, v{vt2}, 0, s[{sTm+2*(q&1)}:{sTm+1+2*(q&1)}]')
        a(f'v_cndmask_b32 v{vML+q}, 0, v{vt2}, s[{sTm+2*(q&1)}:{sTm+1+2*(q&1)}]')
    a(f's_cmp_lg_u32 s{sJ}, 0')
    a(f's_cbranch_scc1 L_mf_ok_{tag}')
    for r in range(16): a(f'v_mov_b32 v{vMF+r}, v{vt2}')
    a.lab(f'L_mf_ok_{tag}')
    a(f'v_lshrrev_b32 v{vt1}, 4, v{vKap}')
    a(f'v_and_b32 v{vt2}, 15, v{vKap}')
    a(f'v_lshlrev_b32 v{vOoff}, 14, v{vt1}')
    a(f'v_lshl_add_u32 v{vOoff}, v{vt2}, 4, v{vOoff}')
    a(f'v_lshrrev_b32 v{vt3}, 5, v{vLane}')
    a(f'v_lshl_add_u32 v{vOoff}, v{vt3}, 8, v{vOoff}')
    a(f'v_lshlrev_b32 v{vOo2}, 12, v{vt1}')
    a(f'v_lshl_add_u32 v{vOo2}, v{vt2}, 3, v{vOo2}')
    a(f's_lshl_b32 s{st0}, s{sWV}, 6')
    a(f'v_add_u32 v{vt0}, s{st0}, v{vLane}')
    a(f'v_mul_u32_u24 v{vt1}, 52429, v{vt0}')
    a(f'v_lshrrev_b32 v{vt1}, 19, v{vt1}')
    a(f'v_mul_u32_u24 v{vt2}, 10, v{vt1}')
    a(f'v_sub_u32 v{vCc}, v{vt0}, v{vt2}')
    a(f'v_mul_u32_u24 v{vt1}, 1280, v{vt1}')
    a(f'v_lshl_add_u32 v{vWo}, v{vCc}, 4, v{vt1}')

def phase1(a,p,D=3,SY=1,LP='',EARLY2=False,SPF=False,SPFN=6,XROT=(2,1),LPRIO=2):
    R=4; XOFF=16384
    sX,sW,sO=4,8,12
    sBR,sMT,sNT=26,27,28
    sKS=31; sXo=32; sW0=34; sIT=36; sSlot=37; sLW=38; sLX=39; sT=40
    st0,st1,st2,st3=41,42,43,44
    sSec=45; sBase=46; sHS=47; sTS=48; sNx=30; sM=29; sN=33; sIdx=35
    vLane=1; vt0=6; vt1=7; vt2=8; vt3=9; vt4=10; vTok=11; vG=12; vRho=13
    vLW=8; vLX=10; vXh=2; vXc1=3
    vB0=14; vBc=19; vBn=24; vAd=29
    vWf=36; vXf=vWf+32; vAcc=vXf+4*(D+1); vEnd=vAcc+128
    assert vEnd<=256 and 8%(D+1)==0
    def wf(step,c): return vWf+(step&1)*16+c*4
    def xf(i): return vXf+(i%(D+1))*4
    def acc(t,c,mt): return vAcc+t*64+(c*4+mt)*4
    def slotbase(dst,idx):
        a(f's_lshl_b32 s{dst}, s{idx}, 15')
        a(f's_lshr_b32 s{st3}, s{idx}, 1')
        a(f's_lshl_b32 s{st3}, s{st3}, 14')
        a(f's_add_u32 s{dst}, s{dst}, s{st3}')
        a(f's_add_u32 s{dst}, s{dst}, 16384')
    a(f'v_and_b32 v{vLane}, 63, v0')
    a(f's_and_b32 s{st0}, s{sWG}, 7')
    a(f's_lshr_b32 s{st1}, s{sWG}, 3')
    a(f's_and_b32 s{st2}, s{st0}, 1')
    a(f's_lshl_b32 s{st2}, s{st2}, 3')
    a(f's_and_b32 s{st3}, s{st1}, 7')
    a(f's_add_u32 s{sMT}, s{st2}, s{st3}')
    a(f's_lshr_b32 s{st2}, s{st0}, 1')
    a(f's_lshl_b32 s{st2}, s{st2}, 2')
    a(f's_lshr_b32 s{st1}, s{st1}, 3')
    a(f's_add_u32 s{sNT}, s{st2}, s{st1}')
    a(f's_cmp_ge_u32 s{sNT}, 15')
    a(f's_cbranch_scc1 L_p1_skip')
    a(f's_cmp_ge_u32 s{sWV}, 4')
    a(f's_cbranch_scc0 L_p1_compute')
    i_c=len(a.l)
    a.lab('L_p1_compute')
    p2_early(a,'c')
    a(f's_and_b32 s{sM}, s{sWV}, 1')
    a(f's_lshr_b32 s{sN}, s{sWV}, 1')
    a(f'v_and_b32 v{vTok}, 15, v{vLane}')
    a(f'v_lshrrev_b32 v{vG}, 4, v{vLane}')
    a(f'v_and_b32 v{vt0}, 3, v{vLane}')
    a(f'v_bfe_u32 v{vt1}, v{vLane}, 2, 2')
    a(f'v_and_b32 v{vt2}, 1, v{vG}')
    a(f'v_lshl_or_b32 v{vt2}, v{vt2}, 2, v{vt1}')
    a(f'v_lshl_add_u32 v{vt3}, v{vG}, 3, v{vt1}')
    a(f'v_lshlrev_b32 v{vt3}, 8, v{vt3}')
    a(f'v_lshl_add_u32 v{vt3}, v{vt0}, 3, v{vt3}')
    a(f's_lshl_b32 s{st0}, s{sN}, 2')
    a(f'v_xor_b32 v{vt2}, s{st0}, v{vt2}')
    for c in range(4):
        a(f'v_xor_b32 v{vt4}, {c}, v{vt2}')
        a(f'v_lshl_add_u32 v{vB0+c}, v{vt4}, 5, v{vt3}')
    a(f'v_lshrrev_b32 v{vt0}, 1, v{vTok}')
    a(f'v_xor_b32 v{vt0}, v{vt0}, v{vG}')
    a(f'v_lshlrev_b32 v{vt0}, 4, v{vt0}')
    a(f'v_lshl_add_u32 v{vt0}, v{vTok}, 7, v{vt0}')
    a(f's_lshl_b32 s{st0}, s{sM}, 13')
    a(f's_add_u32 s{st0}, s{st0}, {XOFF}')
    a(f'v_add_u32 v{vB0+4}, s{st0}, v{vt0}')
    a(f'v_xor_b32 v{vXh}, 64, v{vt0}')
    a(f'v_sub_u32 v{vXh}, v{vXh}, v{vt0}')
    for i in range(5): a(f'v_add_u32 v{vBc+i}, 16384, v{vB0+i}')
    for i in range(128): a(f'v_mov_b32 v{vAcc+i}, 0')
    a(f's_mul_i32 s{sSec}, s{sNT}, 52')
    a(f's_lshr_b32 s{sSec}, s{sSec}, 8')
    a(f's_mul_i32 s{st0}, s{sSec}, 5')
    a(f's_sub_u32 s{st0}, s{sNT}, s{st0}')
    a(f's_lshl_b32 s{st0}, s{st0}, 7')
    a(f's_lshl_b32 s{st1}, s{sN}, 6')
    a(f's_add_u32 s{st0}, s{st0}, s{st1}')
    a(f's_cmp_eq_u32 s{sSec}, 0')
    a(f's_cselect_b32 s{st1}, 0, 1')
    a(f's_cselect_b32 s{st2}, 0, {WS_KV}')
    a(f's_lshl_b32 s{sTS}, 1280, s{st1}')
    a(f's_lshl_b32 s{sHS}, s{sTS}, 6')
    a(f's_lshl_b32 s{sT}, s{sMT}, 2')
    a(f's_lshl_b32 s{st1}, s{sM}, 1')
    a(f's_add_u32 s{sT}, s{sT}, s{st1}')
    a(f's_mul_i32 s{st1}, s{sT}, s{sTS}')
    a(f's_add_u32 s{sBase}, s{st1}, s{st2}')
    a(f's_cmp_eq_u32 s{sSec}, 2')
    a(f's_cbranch_scc1 L_p1_adV')
    a(f'v_lshrrev_b32 v{vt0}, 3, v{vTok}')
    a(f'v_lshlrev_b32 v{vRho}, 7, v{vt0}')
    a(f'v_bfe_u32 v{vt0}, v{vTok}, 1, 1')
    a(f'v_lshl_or_b32 v{vRho}, v{vt0}, 6, v{vRho}')
    a(f'v_bfe_u32 v{vt0}, v{vTok}, 2, 1')
    a(f'v_lshl_or_b32 v{vRho}, v{vt0}, 5, v{vRho}')
    a(f'v_and_b32 v{vt0}, 1, v{vTok}')
    a(f'v_lshl_or_b32 v{vRho}, v{vt0}, 4, v{vRho}')
    a(f's_lshr_b32 s{st0}, s{st0}, 2')
    for c in range(4):
        a(f'v_add_u32 v{vt0}, s{st0}, v{vG}')
        if c: a(f'v_add_u32 v{vt0}, {4*c}, v{vt0}')
        a(f'v_mul_u32_u24 v{vt1}, 52429, v{vt0}')
        a(f'v_lshrrev_b32 v{vt1}, 18, v{vt1}')
        a(f'v_mul_u32_u24 v{vt2}, 5, v{vt1}')
        a(f'v_sub_u32 v{vt2}, v{vt0}, v{vt2}')
        a(f'v_mul_u32_u24 v{vt1}, s{sHS}, v{vt1}')
        a(f'v_and_b32 v{vt3}, 1, v{vt2}')
        a(f'v_lshlrev_b32 v{vt3}, 9, v{vt3}')
        a(f'v_lshrrev_b32 v{vt4}, 1, v{vt2}')
        a(f'v_cmp_eq_u32 s[56:57], 4, v{vt2}')
        a(f'v_lshl_add_u32 v{vt3}, v{vt4}, 8, v{vt3}')
        a(f'v_add_u32 v{vt4}, 512, v{vt3}')
        a(f'v_add_u32 v{vt1}, v{vt1}, v{vRho}')
        a(f'v_cndmask_b32 v{vt3}, v{vt3}, v{vt4}, s[56:57]')
        a(f'v_add_u32 v{vAd+c}, v{vt1}, v{vt3}')
    a('s_branch L_p1_adD')
    a.lab('L_p1_adV')
    for c in range(4):
        a(f'v_add_u32 v{vt0}, s{st0}, v{vTok}')
        if c: a(f'v_add_u32 v{vt0}, {16*c}, v{vt0}')
        a(f'v_mul_u32_u24 v{vt1}, 52429, v{vt0}')
        a(f'v_lshrrev_b32 v{vt1}, 20, v{vt1}')
        a(f'v_mul_u32_u24 v{vt2}, 20, v{vt1}')
        a(f'v_sub_u32 v{vt2}, v{vt0}, v{vt2}')
        a(f'v_mul_u32_u24 v{vt1}, {64*2560}, v{vt1}')
        a(f'v_lshl_add_u32 v{vt1}, v{vt2}, 6, v{vt1}')
        a(f'v_bfe_u32 v{vt2}, v{vt2}, 2, 2')
        a(f'v_xor_b32 v{vt2}, v{vt2}, v{vG}')
        a(f'v_lshl_add_u32 v{vt1}, v{vt2}, 4, v{vt1}')
        a(f'v_add_u32 v{vAd+c}, 1280, v{vt1}')
    a.lab('L_p1_adD')
    a('s_waitcnt lgkmcnt(0)')
    srd(a,sO,sWS,sWS+1,WS_O)
    q_prep(a)
    def wread(nxt,h,step,c,hh):
        b=(vBn if nxt else vBc)+c
        return f'ds_read_b64_tr_b16 {vr(wf(step,c)+2*hh,2)}, v{b} offset:{h*8192+1024*hh}'
    def xread(nxt,h,mt,buf):
        b=((vBn if nxt else vBc)+4) if h==0 else vXc1
        return f'ds_read_b128 {vr(xf(buf),4)}, v{b} offset:{mt*2048}'
    def epilogue(v,t,br):
        if v==0:
            a(f's_cmp_lg_u32 s{sSec}, 0')
            a(f's_cbranch_scc1 L_p1_ns{t}')
            a(f's_mov_b32 s{st1}, {f32bits(CSCALE):#x}')
            for i in range(64): a(f'v_mul_f32 v{vAcc+64*t+i}, s{st1}, v{vAcc+64*t+i}')
            a.lab(f'L_p1_ns{t}')
        a(f's_lshl_b32 s{st0}, s{sTS}, 11')
        a(f's_mul_i32 s{st0}, s{st0}, {br}')
        a(f's_add_u32 s{st0}, s{st0}, s{sBase}')
        for tp in range(2):
            if tp: a(f's_add_u32 s{st0}, s{st0}, s{sTS}')
            for c in range(4):
                b=acc(t,c,2*tp)
                if v==0:
                    a(f'v_cvt_pk_bf16_f32 v{b}, v{b}, v{b+1}')
                    a(f'v_cvt_pk_bf16_f32 v{b+1}, v{b+2}, v{b+3}')
                    a(f'v_cvt_pk_bf16_f32 v{b+2}, v{b+4}, v{b+5}')
                    a(f'v_cvt_pk_bf16_f32 v{b+3}, v{b+6}, v{b+7}')
                else:
                    a(f'v_cvt_pk_bf16_f32 v{b}, v{b}, v{b+4}')
                    a(f'v_cvt_pk_bf16_f32 v{b+1}, v{b+1}, v{b+5}')
                    a(f'v_cvt_pk_bf16_f32 v{b+2}, v{b+2}, v{b+6}')
                    a(f'v_cvt_pk_bf16_f32 v{b+3}, v{b+3}, v{b+7}')
                a(f'buffer_store_dwordx4 {vr(b,4)}, v{vAd+c}, s[{sO}:{sO+3}], s{st0} offen {SC}')
    a(f's_cmp_eq_u32 s{sSec}, 2')
    a(f's_cbranch_scc1 L_p1_v1')
    for v in range(2):
        a.lab(f'L_p1_v{v}')
        p.stamp(1)
        a('s_barrier')
        p.stamp(2)
        def body(emit,issued,t):
            waits=[]
            for st in range(2):
                for mt in range(4):
                    gi=st*4+mt
                    need=[('x',gi)]
                    if mt==0: need.append(('w',st))
                    last=max(len(issued)-1-issued[::-1].index(tg) for tg in need)
                    y=len(issued)-1-last
                    waits.append(y)
                    if emit:
                        y=min(y,wmin[len(waits)-1])
                        a(f's_waitcnt lgkmcnt({min(y,15)})')
                    fill=[]
                    g2=gi+D; nx=g2>=8; h2=(g2%8)//4; m2=g2%4
                    fill.append((xread(nx,h2,m2,g2),('x',g2%8)))
                    wm={0:(0,1),1:(2,3)} if st==1 else {0:(0,1),1:(2,3)}
                    if mt in wm:
                        for c in wm[mt]:
                            fill.append((wread(st==1,(st+1)&1,st+1,c,0),('w',(st+1)%2)))
                            fill.append((wread(st==1,(st+1)&1,st+1,c,1),('w',(st+1)%2)))
                    if st==0 and mt==0:
                        fill.append((f'v_add_u32 v{vXc1}, v{vBc+4}, v{vXh}',None))
                    if st==0 and mt==2:
                        fill.append((f's_add_u32 s{sIdx}, s{sIdx}, 1',None))
                        fill.append((f's_and_b32 s{sIdx}, s{sIdx}, 3',None))
                        fill.append((f's_lshl_b32 s{sNx}, s{sIdx}, 15',None))
                        fill.append((f's_lshr_b32 s{st3}, s{sIdx}, 1',None))
                        fill.append((f's_lshl_b32 s{st3}, s{st3}, 14',None))
                        fill.append((f's_add_u32 s{sNx}, s{sNx}, s{st3}',None))
                        fill.append((f's_add_u32 s{sNx}, s{sNx}, 16384',None))
                    if st==0 and mt==3:
                        for i in range(5): fill.append((f'v_add_u32 v{vBn+i}, s{sNx}, v{vB0+i}',None))
                    if st==1 and mt==3:
                        for i in range(5): fill.append((f'v_mov_b32 v{vBc+i}, v{vBn+i}',None))
                    for c in range(4):
                        x=xf(gi); w=wf(st,c); ac=acc(t,c,mt)
                        if emit:
                            if v==0: a(f'v_mfma_f32_16x16x32_bf16 {vr(ac,4)}, {vr(w,4)}, {vr(x,4)}, {vr(ac,4)}')
                            else:    a(f'v_mfma_f32_16x16x32_bf16 {vr(ac,4)}, {vr(x,4)}, {vr(w,4)}, {vr(ac,4)}')
                        k=1 if c<3 else len(fill)
                        if len(fill)>4 and c<3: k=2
                        while k>0 and fill:
                            tx,tag=fill.pop(0); k-=1
                            if emit: a(tx)
                            if tag: issued.append(tag)
                    if st==0 and mt==SY and emit:
                        if t==1:
                            a(f's_cmp_eq_u32 s{sIT}, 8'); a(f's_cbranch_scc0 L_p1_nw{v}'); a('s_waitcnt vmcnt(0)'); a.lab(f'L_p1_nw{v}')
                        a('s_barrier')
            return waits
        pro=[('w',0)]*8+[('x',i) for i in range(D)]
        iss=list(pro); w1=body(False,iss,0); w2=body(False,iss,0)
        wmin=[min(x,y) for x,y in zip(w1,w2)]
        a(f's_mov_b32 s{sIdx}, 0')
        for c in range(4):
            a(wread(False,0,0,c,0)); a(wread(False,0,0,c,1))
        for i in range(D): a(xread(False,0,i,i))
        for t in range(2):
            a(f's_mov_b32 s{sIT}, 10')
            a.lab(f'L_p1_loop{v}_{t}')
            body(True,list(pro),t)
            a(f's_sub_u32 s{sIT}, s{sIT}, 1')
            a(f's_cmp_lg_u32 s{sIT}, 0')
            a(f's_cbranch_scc1 L_p1_loop{v}_{t}')
            a('s_nop 7')
            if t==0:
                epilogue(v,0,1)
                a('s_nop 1')
                for r in range(96,128): a(f'v_mov_b32 v{r}, 0')
            else:
                p.stamp(3)
                a('s_waitcnt lgkmcnt(0)')
                q_loads(a)
                epilogue(v,1,0)
        a('s_mov_b32 s49, 8')
        a('s_branch L_p1_done')
    i_l=len(a.l)
    a.lab('L_p1_loader')
    if LPRIO: a(f's_setprio {LPRIO}')
    sLd=29; sRot0=25
    a(f's_sub_u32 s{sLd}, s{sWV}, 4')
    a(f's_mul_i32 s{st3}, s{st3}, 5')
    a(f's_lshr_b32 s{st3}, s{st3}, 2')
    a(f's_mul_i32 s{st1}, s{st1}, 5')
    a(f's_lshr_b32 s{st1}, s{st1}, 1')
    a(f's_add_u32 s{sKS}, s{st3}, s{st1}')
    if XROT:
        ra,rb=XROT
        a(f's_and_b32 s{st0}, s{sWG}, 7')
        a(f's_lshr_b32 s{st1}, s{st0}, 1')
        a(f's_mul_i32 s{st1}, s{st1}, {ra}')
        a(f's_add_u32 s{sKS}, s{sKS}, s{st1}')
        a(f's_and_b32 s{st0}, s{st0}, 1')
        a(f's_mul_i32 s{st0}, s{st0}, {rb}')
        a(f's_add_u32 s{sKS}, s{sKS}, s{st0}')
        for lim in (40,20):
            a(f's_cmp_ge_u32 s{sKS}, {lim}')
            a(f's_cselect_b32 s{st0}, {lim//2 if lim==20 else 20}, 0')
            a(f's_sub_u32 s{sKS}, s{sKS}, s{st0}')
        a(f's_cmp_ge_u32 s{sKS}, 20')
        a(f's_cselect_b32 s{st0}, 10, 0')
        a(f's_sub_u32 s{sKS}, s{sKS}, s{st0}')
    a(f's_cmp_ge_u32 s{sKS}, 10')
    a(f's_cselect_b32 s{st0}, 10, 0')
    a(f's_sub_u32 s{sKS}, s{sKS}, s{st0}')
    a(f's_mov_b32 s{sRot0}, s{sKS}')
    a(f's_lshl_b32 s{sLW}, s{sLd}, 12')
    a(f's_lshl_b32 s{sLX}, s{sLd}, 12')
    a(f's_add_u32 s{sLX}, s{sLX}, {XOFF}')
    a(f'v_lshrrev_b32 v{vt0}, 4, v{vLane}')
    a(f'v_bfe_u32 v{vt1}, v{vLane}, 1, 3')
    a(f'v_and_b32 v2, 1, v{vLane}')
    a(f's_lshl_b32 s{st2}, s{sLd}, 4')
    a(f's_lshl_b32 s{st1}, s{sNT}, 8')
    for jj in range(2):
        a(f'v_add_u32 v3, {4*jj}, v{vt0}')
        a(f'v_xor_b32 v3, v3, v{vt1}')
        a(f'v_lshl_add_u32 v4, v3, 1, v2')
        a(f'v_lshlrev_b32 v4, 4, v4')
        a(f'v_add_u32 v{vLW+jj}, s{st2}, v{vt0}')
        if jj: a(f'v_add_u32 v{vLW+jj}, 8, v{vLW+jj}')
        a(f'v_mul_u32_u24 v{vLW+jj}, 3840, v{vLW+jj}')
        a(f'v_add3_u32 v{vLW+jj}, v{vLW+jj}, v4, s{st1}')
    a(f'v_lshrrev_b32 v{vt0}, 3, v{vLane}')
    a(f'v_and_b32 v{vt1}, 7, v{vLane}')
    a(f's_lshl_b32 s{st0}, s{sMT}, 7')
    a(f's_lshl_b32 s{st1}, s{sLd}, 5')
    a(f's_add_u32 s{st0}, s{st0}, s{st1}')
    for uu in range(2):
        a(f'v_lshrrev_b32 v2, 1, v{vt0}')
        if uu: a(f'v_add_u32 v2, 4, v2')
        a(f'v_xor_b32 v2, v2, v{vt1}')
        a(f'v_add_u32 v3, s{st0}, v{vt0}')
        if uu: a(f'v_add_u32 v3, 8, v3')
        a(f'v_mul_u32_u24 v3, 1280, v3')
        a(f'v_lshl_add_u32 v{vLX+uu}, v2, 4, v3')
    a('s_waitcnt lgkmcnt(0)')
    srd(a,sX,20,21,2048*1280)
    srd(a,sW,22,23,640*3840)
    NL=8
    def wstep():
        a(f's_mul_i32 s{sW0}, s{sKS}, {64*3840}')
        a(f's_lshl_b32 s{sXo}, s{sKS}, 7')
        slotbase(sSlot,sIdx)
        a(f's_add_u32 s{st0}, s{sSlot}, s{sLW}')
        a(f's_add_u32 s{st1}, s{sSlot}, s{sLX}')
        for j in range(4):
            a(f's_add_u32 m0, s{st0}, {j*1024}')
            if j&1: a(f's_add_u32 s{st2}, s{sW0}, {4*3840}')
            else: a('s_nop 0')
            a(f'buffer_load_dwordx4 v{vLW+(j>>1)}, s[{sW}:{sW+3}], s{st2 if j&1 else sW0} offen {LP} lds')
            a(f's_add_u32 m0, s{st1}, {j*1024}')
            if j==2: a(f's_add_u32 s{sXo}, s{sXo}, 20480')
            else: a('s_nop 0')
            a(f'buffer_load_dwordx4 v{vLX+(j&1)}, s[{sX}:{sX+3}], s{sXo} offen {LP} lds')
        a(f's_add_u32 s{sKS}, s{sKS}, 1')
        a(f's_cmp_eq_u32 s{sKS}, 10')
        a(f's_cselect_b32 s{sKS}, 0, s{sKS}')
        a(f's_add_u32 s{sIdx}, s{sIdx}, 1')
        a(f's_and_b32 s{sIdx}, s{sIdx}, 3')
    a(f's_mov_b32 s{sIdx}, 0')
    wstep()
    if EARLY2: wstep()
    a(f's_waitcnt vmcnt({NL if EARLY2 else 0})')
    a('s_barrier')
    if not EARLY2: wstep()
    wstep()
    p2_early(a,'l')
    for r in range(96,128): a(f'v_mov_b32 v{r}, 0')
    a(f's_mov_b32 s{sIT}, 0')
    a.lab('L_p1_ld_loop')
    a(f's_cmp_ge_u32 s{sIT}, 18'); a('s_cbranch_scc1 L_p1_ld_w0')
    a(f's_waitcnt vmcnt({NL})')
    a('s_branch L_p1_ld_w1')
    a.lab('L_p1_ld_w0')
    a(f's_cmp_lg_u32 s{sIT}, 18'); a('s_cbranch_scc1 L_p1_ld_w1')
    a('s_waitcnt vmcnt(0)')
    a(f's_cmp_lg_u32 s{sWV}, 4'); a('s_cbranch_scc1 L_p1_ld_w1')
    poll_f1(a,'b',1)
    a.lab('L_p1_ld_w1')
    a('s_barrier')
    a(f's_cmp_lg_u32 s{sWV}, 4'); a('s_cbranch_scc1 L_p1_ld_h1')
    a(f's_cmp_lg_u32 s{sIT}, 8'); a('s_cbranch_scc1 L_p1_ld_h0')
    gettok(a,'p1',None)
    a.lab('L_p1_ld_h0')
    a(f's_cmp_lg_u32 s{sIT}, 12'); a('s_cbranch_scc1 L_p1_ld_h1')
    a(f's_add_u32 s50, s{sNT}, 15')
    a('s_lshl_b32 s50, s50, 4')
    a(f's_add_u32 s50, s50, s{sMT}')
    a('s_lshl_b32 s50, s50, 7')
    setflag(a,50)
    a.lab('L_p1_ld_h1')
    a(f's_cmp_lg_u32 s{sIT}, 7'); a('s_cbranch_scc1 L_p1_ld_h2')
    srd(a,sX,16,17,2048*1280)
    srd(a,sW,18,19,640*3840)
    a.lab('L_p1_ld_h2')
    a(f's_cmp_ge_u32 s{sIT}, 17'); a('s_cbranch_scc1 L_p1_ld_skip')
    wstep()
    if SPF:
        a(f's_cmp_ge_u32 s{sIT}, {SPFN}'); a('s_cbranch_scc1 L_p1_ld_skip')
        a(f's_lshr_b32 s52, s{sIT}, 1')
        a(f's_and_b32 s53, s{sIT}, 1')
        a(f's_cmp_eq_u32 s52, 2'); a('s_cbranch_scc1 L_spf_w')
        a(f's_add_u32 s54, s{sRot0}, s52')
        a('s_cmp_ge_u32 s54, 10'); a('s_cselect_b32 s55, 10, 0'); a('s_sub_u32 s54, s54, s55')
        a('s_lshl_b32 s54, s54, 7')
        a(f's_lshl_b32 s55, s{sMT}, 7')
        a(f's_lshl_b32 s56, s{sLd}, 5'); a('s_add_u32 s55, s55, s56')
        a('s_lshl_b32 s56, s53, 4'); a('s_add_u32 s55, s55, s56')
        a('s_mul_i32 s55, s55, 1280'); a('s_add_u32 s54, s54, s55')
        a('s_add_u32 s50, s16, s54'); a('s_addc_u32 s51, s17, 0')
        for r in range(16): a(f's_load_dword s58, s[50:51], {r*1280}')
        a('s_branch L_p1_ld_skip')
        a.lab('L_spf_w')
        a(f's_lshl_b32 s54, s{sRot0}, 6')
        a(f's_lshl_b32 s55, s{sLd}, 4'); a('s_add_u32 s54, s54, s55')
        a('s_lshl_b32 s55, s53, 3'); a('s_add_u32 s54, s54, s55')
        a('s_mul_i32 s54, s54, 3840')
        a(f's_lshl_b32 s55, s{sNT}, 8'); a('s_add_u32 s54, s54, s55')
        a('s_add_u32 s50, s18, s54'); a('s_addc_u32 s51, s19, 0')
        for r in range(8):
            a(f's_load_dword s58, s[50:51], {r*3840}'); a(f's_load_dword s58, s[50:51], {r*3840+128}')
    a.lab('L_p1_ld_skip')
    a(f's_cmp_lg_u32 s{sIT}, 18'); a('s_cbranch_scc1 L_p1_ld_h3')
    a(f's_lshl_b32 s48, s{sLd}, 11')
    q_issue(a)
    kv_first(a,[(48,0),(48,1024)],(0,HALF,8192,HALF+8192,16384,24576,32768,40960))
    a.lab('L_p1_ld_h3')
    a(f's_cmp_lg_u32 s{sIT}, 19'); a('s_cbranch_scc1 L_p1_ld_h4')
    kv_first(a,[(48,0),(48,1024)],(HALF+16384,HALF+24576,HALF+32768,HALF+40960))
    a.lab('L_p1_ld_h4')
    a(f's_add_u32 s{sIT}, s{sIT}, 1')
    a(f's_cmp_lt_u32 s{sIT}, 20')
    a('s_cbranch_scc1 L_p1_ld_loop')
    if LPRIO: a('s_setprio 0')
    a(f's_lshl_b32 s49, s{sNT}, 4')
    a(f's_add_u32 s49, s49, s{sMT}')
    a('s_lshl_b32 s49, s49, 7')
    a('s_or_b32 s49, s49, 0x80000000')
    a('s_branch L_p1_done')
    i_e=len(a.l)
    a.l[i_c:i_e]=a.l[i_l:i_e]+a.l[i_c:i_l]
    a.lab('L_p1_skip')
    p2_early(a,'s')
    for r in range(96,128): a(f'v_mov_b32 v{r}, 0')
    a('s_waitcnt lgkmcnt(0)')
    a(f's_cmp_lg_u32 s{sWV}, 4'); a('s_cbranch_scc1 L_p1_sk1')
    gettok(a,'p1s',None)
    poll_f1(a,'bs',1)
    a.lab('L_p1_sk1')
    a('s_barrier')
    a(f's_lshl_b32 s48, s{sWV}, 10')
    q_issue(a)
    kv_first(a,[(48,0)],(0,HALF,8192,HALF+8192,16384,24576,32768,40960,HALF+16384,HALF+24576,HALF+32768,HALF+40960))
    a('s_mov_b32 s49, 0')
    a.lab('L_p1_done')
    return vEnd

def gettok(a,tag,wave=4):
    if wave is not None:
        a(f's_cmp_lg_u32 s{sWV}, {wave}')
        a(f's_cbranch_scc1 L_tokd_{tag}')
    a('s_mov_b32 s58, 0x40000')
    a('v_mov_b32 v2, 0')
    a.lab(f'L_tok_{tag}')
    a(f'global_load_dword v3, v2, s[{sDBG}:{sDBG+1}] sc1')
    a('s_waitcnt vmcnt(0)')
    a(f'v_readfirstlane_b32 s{sTOK}, v3')
    a('s_nop 3')
    a(f's_cmp_lg_u32 s{sTOK}, 0')
    a(f's_cbranch_scc1 L_tokd_{tag}')
    a('s_sleep 4')
    a('s_sub_u32 s58, s58, 1')
    a('s_cmp_lg_u32 s58, 0')
    a(f's_cbranch_scc1 L_tok_{tag}')
    a.lab(f'L_tokd_{tag}')
def setflag(a,soff):
    a(f's_add_u32 s{soff}, s{soff}, {WS_FLG}')
    a('s_mov_b64 exec, 1')
    a(f'v_mov_b32 v2, s{soff}')
    a(f'v_mov_b32 v3, s{sTOK}')
    a(f'global_store_dword v2, v3, s[{sWS}:{sWS+1}] sc1')
    a('s_mov_b64 exec, -1')
def poll2(a,tag,va,vb,mask):
    a('s_mov_b32 s58, 0x40000')
    a.lab(f'L_poll_{tag}')
    a(f'global_load_dword v3, v{va}, s[{sWS}:{sWS+1}] sc1')
    a(f'global_load_dword v4, v{vb}, s[{sWS}:{sWS+1}] sc1')
    a('s_waitcnt vmcnt(0)')
    a(f'v_cmp_eq_u32 s[56:57], s{sTOK}, v3')
    a(f'v_cmp_eq_u32 vcc, s{sTOK}, v4')
    a('s_nop 4')
    a('s_and_b64 s[56:57], s[56:57], vcc')
    a(f's_and_b32 s56, s56, {mask&0xffffffff:#x}')
    a(f's_and_b32 s57, s57, {mask>>32:#x}')
    a(f's_cmp_lg_u32 s56, {mask&0xffffffff:#x}')
    a(f's_cbranch_scc1 L_polln_{tag}')
    a(f's_cmp_eq_u32 s57, {mask>>32:#x}')
    a(f's_cbranch_scc1 L_polld_{tag}')
    a.lab(f'L_polln_{tag}')
    a('s_sleep 1')
    a('s_sub_u32 s58, s58, 1')
    a('s_cmp_lg_u32 s58, 0')
    a(f's_cbranch_scc1 L_poll_{tag}')
    a.lab(f'L_polld_{tag}')
POLLC=dict(sl=2,pol='sc1',pre=0)
def poll(a,tag,vaddr,offs,mask):
    a('s_mov_b32 s58, 0x40000')
    for _ in range(POLLC['pre']): a('s_sleep 8')
    a.lab(f'L_poll_{tag}')
    for i,o in enumerate(offs):
        a(f'global_load_dword v{vaddr+1+i}, v{vaddr}, s[{sWS}:{sWS+1}] offset:{o} {POLLC["pol"]}')
    a('s_waitcnt vmcnt(0)')
    a(f'v_cmp_eq_u32 s[56:57], s{sTOK}, v{vaddr+1}')
    if len(offs)>1:
        a(f'v_cmp_eq_u32 vcc, s{sTOK}, v{vaddr+2}')
        a('s_nop 4')
        a('s_and_b64 s[56:57], s[56:57], vcc')
    else:
        a('s_nop 4')
    a(f's_and_b32 s56, s56, {mask&0xffffffff:#x}')
    a(f's_and_b32 s57, s57, {mask>>32:#x}')
    a(f's_cmp_lg_u32 s56, {mask&0xffffffff:#x}')
    a(f's_cbranch_scc1 L_polln_{tag}')
    a(f's_cmp_eq_u32 s57, {mask>>32:#x}')
    a(f's_cbranch_scc1 L_polld_{tag}')
    a.lab(f'L_polln_{tag}')
    a(f's_sleep {POLLC["sl"]}')
    a('s_sub_u32 s58, s58, 1')
    a('s_cmp_lg_u32 s58, 0')
    a(f's_cbranch_scc1 L_poll_{tag}')
    a.lab(f'L_polld_{tag}')

def phase2(a,p,PRIO=0,BSH=0,NOHOOK=0,SPRIO=0,FP2=7):
    TILE=2560; HALF=81920; WOFF=40960; SCR=81920
    sR,sOo,sWo=4,8,12
    sHD,sJ,sQP,sKH=16,17,18,19
    st0,st1,st2,st3=20,21,22,23
    sVm=24; sLo=26
    sIT=28; sHB=29; sHBw=30; sOl=31; sOh=32; sLl=33; sQA=34; sSw=35; sAg=36; sOB=37; sOA=50; sNeed=39
    sTm=40
    sKV=44
    sOff=31; sInc=32
    sWn=48
    sWl=39
    vLane=1; vt0=2; vt1=3; vt2=4; vt3=5; vM=10; vt4=14; vt5=15
    vK1a,vK2a,vVa,vVb,vDma,vRho,vOoff,vOo2,vQ1o,vQ2o,vWo,vKap=P2C
    vQa1=16; vQab=20; vQa2=22; vQb1=24; vK1=28; vK2=32; vMb=35
    vV=36; vP=52; vQA2=60; vCc=63
    vSa=64; vSb=80; vOa=96; vOb=112; vCa=128; vCb=144; vMF=P2M; vML=P2M+16; vQA1=192
    vS1=160
    vEnd=256
    a(f's_load_dwordx2 s[50:51], s[0:1], 16')
    a(f's_load_dwordx2 s[52:53], s[0:1], 40')
    head_j(a,sHD,sJ,st0,st1)
    a(f's_and_b32 s{sQP}, s{sWV}, 3')
    a(f's_lshr_b32 s{sKH}, s{sWV}, 2')
    a(f's_mul_i32 s{sHB}, s{sHD}, {64*TILE}')
    a(f's_add_u32 s{sAg}, s{sHB}, {WS_KV-20480}')
    a(f's_add_u32 s{sHB}, s{sHB}, {WS_KV+32*64*TILE}')
    a(f's_mul_i32 s{st0}, s{sJ}, 20480')
    a(f's_add_u32 s{sAg}, s{sAg}, s{st0}')
    a(f's_mov_b32 s{sVm}, 0xfffff')
    a(f's_mov_b32 s{sVm+1}, 0xfffff')
    a(f's_mov_b32 s{sLo}, -1')
    a(f's_mov_b32 s{sLo+1}, 0')
    a(f's_lshl_b32 s{st0}, s{sJ}, 3')
    a(f's_lshl_b32 s{st1}, s{sHD}, 6')
    a(f's_add_u32 s{st1}, s{st1}, s{st0}')
    a(f's_add_u32 s{st2}, s{st1}, s{sWV}')
    a(f's_mul_i32 s{sQA}, s{st2}, 1280')
    a(f's_lshl_b32 s{st2}, s{sQP}, 1')
    a(f's_add_u32 s{st2}, s{st2}, s{sKH}')
    a(f's_add_u32 s{st2}, s{st2}, s{st0}')
    a(f's_lshl_b32 s{sOB}, s{st2}, 15')
    a(f's_add_u32 s{sOB}, s{sOB}, {2048*1280}')
    a(f's_lshl_b32 s{sOB+1}, s{st2}, 13')
    a(f's_add_u32 s{sOB+1}, s{sOB+1}, {2048*1280+128*16384}')
    srd(a,sR,sWS,sWS+1,WS_O)
    a(f's_add_u32 s56, s{sWS}, {WS_O}')
    a(f's_addc_u32 s57, s{sWS+1}, 0')
    srd(a,sOo,56,57,WS_END-WS_O)
    a(f's_add_u32 s{sKV}, s{sWS}, s{sHB}')
    a(f's_addc_u32 s{sKV+1}, s{sWS+1}, 0')
    a(f's_and_b32 s{sKV+1}, s{sKV+1}, 0xffff')
    a(f's_mov_b32 s{sKV+2}, 163840')
    a(f's_mov_b32 s{sKV+3}, 0x20000')
    a(f's_lshl_b32 s{sOff}, s{sWV}, 10')
    a(f's_add_u32 s{sOff}, s{sOff}, 49152')
    a(f's_mov_b32 m0, s{sOff}')
    a(f's_mov_b32 s{sInc}, {HALF}')
    a(f's_mov_b32 s{sInc+1}, {(8192-HALF)&0xffffffff}')
    def vinit():
        a(f'v_cmp_eq_u32 s[{sTm}:{sTm+1}], 20, v{vRho}')
        a(f'v_mov_b32 v{vt1}, 0x3f803f80')
        a('s_nop 0')
        a(f'v_cndmask_b32 v{vt1}, 0, v{vt1}, s[{sTm}:{sTm+1}]')
        for i in range(16): a(f'v_mov_b32 v{vV+i}, v{vt1}')
    vinit()
    for i in range(4): a(f'v_mov_b32 v{vP+4+i}, 0')
    a(f's_lshl_b32 s{sWl}, s{sWV}, 10')
    a(f's_add_u32 s{sWl}, s{sWl}, {WOFF}')
    a(f's_and_b32 s{sWn}, s{sHD}, 7')
    a(f's_mul_i32 s{sWn}, s{sWn}, 160')
    a('s_waitcnt lgkmcnt(0)')
    a(f's_cmp_lt_u32 s{sHD}, 16')
    a('s_cselect_b64 s[50:51], s[50:51], s[52:53]')
    srd(a,sWo,50,51,640*1280)
    p.stamp(5)

    def rd_k1(dst,off):
        assert off%512==0 and off//512+1<256
        a(f'ds_read2st64_b64 {vr(dst,4)}, v{vK1a} offset0:{off//512} offset1:{off//512+1}')
    def rd_k2(dst,off): a(f'ds_read_b64 {vr(dst,2)}, v{vK2a} offset:{off}')
    def rd_v(buf,off):
        a(f's_mov_b64 exec, s[{sVm}:{sVm+1}]')
        a(f'ds_read_b128 {vr(vV+8*buf,4)}, v{vVa} offset:{off}')
        a(f'ds_read_b128 {vr(vV+8*buf+4,4)}, v{vVb} offset:{off}')
        a('s_mov_b64 exec, -1')
    def qk1(S,C,Q1,K=None): a(f'v_mfma_f32_32x32x16_bf16 {vr(S,16)}, {vr(vK1 if K is None else K,4)}, {vr(Q1,4)}, {C}')
    def qk2(S,Q2,K=None): a(f'v_mfma_f32_32x32x8bf16_1k {vr(S,16)}, {vr(vK2 if K is None else K,2)}, {vr(Q2,2)}, {vr(S,16)}')
    def qk2b(S): a(f'v_mfma_f32_32x32x4bf16_1k {vr(S,32)}, {vr(vK2,2)}, {vr(vQab,2)}, {vr(S,32)}')
    def pv(O,buf,t): a(f'v_mfma_f32_32x32x16_bf16 {vr(O,16)}, {vr(vV+8*buf+4*t,4)}, {vr(vP+4*t,4)}, {vr(O,16)}')
    def ex(S,r): a(f'v_exp_f32 v{S+r}, v{S+r}')
    def cv(S,c): a(f'v_cvt_pk_bf16_f32 v{vP+c}, v{S+2*c}, v{S+2*c+1}')
    def rowmax(M,S,first):
        if first:
            a(f'v_max3_f32 v{M}, v{S}, v{S+1}, v{S+2}'); rest=list(range(3,16))
        else: rest=list(range(16))
        while len(rest)>=2:
            a(f'v_max3_f32 v{M}, v{M}, v{S+rest[0]}, v{S+rest[1]}'); rest=rest[2:]
        if rest: a(f'v_max_f32 v{M}, v{M}, v{S+rest[0]}')
    def xhalf_max(M):
        a(f'v_mov_b32 v{vt1}, v{M}')
        a('s_nop 1')
        a(f'v_permlane32_swap_b32 v{M}, v{vt1}')
        a('s_nop 1')
        a(f'v_max_f32 v{M}, v{M}, v{vt1}')
    def get_l():
        a(f'v_mov_b32 v{vt1}, v{vOa+8}')
        a(f'v_mov_b32 v{vt2}, v{vOa+8}')
        a('s_nop 1')
        a(f'v_permlane32_swap_b32 v{vt1}, v{vt2}')
        a('s_nop 1')
    def store_o(soff):
        a(f'v_rcp_f32 v{vt3}, v{vt2}')
        a(f's_lshr_b32 s{st0}, s{sHD}, 1')
        a(f's_lshl_b32 s{st0}, s{st0}, 10')
        a(f's_and_b32 s{st1}, s{sHD}, 1')
        a(f's_lshl_b32 s{st1}, s{st1}, 9')
        a(f's_add_u32 s{st0}, s{st0}, s{st1}')
        a(f's_add_u32 s{st0}, s{st0}, s{soff}')
        for i in range(12): a(f'v_mul_f32 v{vOa+i}, v{vOa+i}, v{vt3}')
        for i in range(6): a(f'v_cvt_pk_bf16_f32 v{vSa+i}, v{vOa+2*i}, v{vOa+2*i+1}')
        a(f'buffer_store_dwordx4 {vr(vSa,4)}, v{vOoff}, s[{sOo}:{sOo+3}], s{st0} offen {SCO}')
        a(f's_lshl_b32 s{st0}, s{sHD}, 7')
        a(f's_add_u32 s{st0}, s{st0}, s{soff+1}')
        a(f's_mov_b64 exec, s[{sLo}:{sLo+1}]')
        a(f'buffer_store_dwordx2 {vr(vSa+4,2)}, v{vOo2}, s[{sOo}:{sOo+3}], s{st0} offen {SCO}')
        a('s_mov_b64 exec, -1')
    def addr_add(s):
        for r in (vK1a,vK2a,vVa,vVb): a(f'v_add_u32 v{r}, s{s}, v{r}')
    def addr_addi(imm):
        for r in (vK1a,vK2a,vVa,vVb): a(f'v_add_u32 v{r}, {imm}, v{r}')
    def dma_row(k):
        a(f'buffer_load_dwordx4 v{vDma}, s[{sKV}:{sKV+3}], s{sOff} offen {SL} lds')
        a(f's_add_u32 s{sOff}, s{sOff}, s{sInc+(k&1)}')
        a(f's_mov_b32 m0, s{sOff}')
    def dma_pair():
        dma_row(0); dma_row(1)
    def prio_switch(phase,L):
        a(f's_cmp_lt_u32 s{sWV}, 4')
        a(f's_cbranch_scc{1-phase} {L}_hi')
        a('s_setprio 0')
        a(f's_branch {L}_d')
        a.lab(f'{L}_hi')
        a('s_setprio 1')
        a.lab(f'{L}_d')
    def expgroups(cur,A_,B_,C_,D_):
        A_()
        for r in range(0,4): ex(cur,r)
        B_()
        ex(cur,4); ex(cur,5); cv(cur,0); ex(cur,6); cv(cur,1); ex(cur,7)
        C_()
        ex(cur,8); cv(cur,2); ex(cur,9); cv(cur,3); ex(cur,10); ex(cur,11)
        D_()
        ex(cur,12); ex(cur,13); cv(cur,4); ex(cur,14); cv(cur,5); ex(cur,15); cv(cur,6); cv(cur,7)

    a('s_cmp_eq_u32 s49, 8')
    a('s_cbranch_scc1 L_p2_w8')
    a('s_cmp_eq_u32 s49, 0')
    a('s_cbranch_scc1 L_p2_w6')
    a('s_waitcnt vmcnt(16)')
    a('s_branch L_p2_wd')
    a.lab('L_p2_w6')
    a('s_waitcnt vmcnt(8)')
    a('s_branch L_p2_wd')
    a.lab('L_p2_w8')
    a('s_waitcnt vmcnt(8)')
    a.lab('L_p2_wd')
    a('s_barrier')
    p.stamp(7)
    rd_k1(vK1,0); rd_k2(vK2,0)
    a('s_waitcnt lgkmcnt(0)')
    qk1(vSa,'0',vQa1); qk1(vSb,'0',vQb1)
    a(f's_mul_i32 s{st0}, s{sKH}, {HALF}')
    addr_add(st0)
    a('s_nop 5')
    qk2b(vSa)
    rd_k1(vK1,0); rd_k2(vK2,0); rd_v(0,0)
    a('s_nop 15')
    a('s_nop 3')
    rowmax(vM,vSa,True)
    rowmax(vMb,vSb,True)
    xhalf_max(vM); xhalf_max(vMb)
    for r in range(16): a(f'v_sub_f32 v{vCa+r}, 0, v{vM}')
    for r in range(16): a(f'v_sub_f32 v{vCb+r}, 0, v{vMb}')
    a('s_waitcnt lgkmcnt(0)')
    qk1(vSa,vr(vCa,16),vQa1); qk1(vSb,vr(vCb,16),vQb1)
    rd_k1(vK1,TILE)
    a('s_nop 9')
    qk2b(vSa)
    rd_k2(vK2,TILE)
    a('s_nop 15')
    a(f's_mov_b32 s{sIT}, 0')
    if SPRIO:
        a(f's_cmp_lt_u32 s{sWV}, 4'); a('s_cbranch_scc1 L_sp'); a('s_setprio 1'); a.lab('L_sp')
    a.raw('.p2align 6')
    for _ in range(BSH): a('s_nop 0')
    a.lab('L_b_loop')
    ool=[]
    def cond(it,L,fn):
        a(f's_cmp_eq_u32 s{sIT}, {it}'); a(f's_cbranch_scc1 {L}'); a.lab(L+'_r')
        ool.append((L,fn))
    SP=[vSa,vS1]
    for pp in range(8):
        off=pp*TILE
        if pp==2:
            def h2():
                a('s_waitcnt vmcnt(2)'); a('s_barrier')
                a(f's_cmp_lg_u32 s{sWV}, 4'); a('s_cbranch_scc1 L_h2_r')
                a('s_cmp_lt_i32 s49, 0'); a('s_cbranch_scc0 L_h2_r')
                a('s_and_b32 s50, s49, 0x7fffffff')
                setflag(a,50)
            cond(0,'L_h2',h2)
        if pp==6:
            def h6():
                a(f's_mov_b32 s{sOff}, 200000'); a(f's_mov_b32 m0, 200000'); a(f's_mov_b32 s{sInc}, 0'); a(f's_mov_b32 s{sInc+1}, 0')
            cond(2,'L_h6',h6)
        dma_row(pp)
        cur=SP[pp&1]; nxt=SP[(pp+1)&1]
        a('s_waitcnt lgkmcnt(0)')
        expgroups(cur,
            lambda: qk1(nxt,vr(vCa,16),vQa1),
            lambda: (pv(vOb,(pp+1)&1,1), rd_v((pp+1)&1,off+TILE)),
            lambda: (qk1(nxt+16,vr(vCb,16),vQb1), rd_k1(vK1,off+2*TILE)),
            lambda: pv(vOa,pp&1,0))
        expgroups(cur+16,
            lambda: (qk2b(nxt), rd_k2(vK2,off+2*TILE)),
            lambda: None,
            lambda: pv(vOa,pp&1,1),
            lambda: pv(vOb,pp&1,0))
    a(f's_cmp_eq_u32 s{sIT}, 3'); a('s_cbranch_scc1 L_b_exit')
    a(f's_cmp_eq_u32 s{sIT}, 1'); a('s_cbranch_scc1 L_bb1')
    a(f's_cmp_eq_u32 s{sIT}, 2'); a('s_cbranch_scc1 L_bb_r')
    a(f's_mov_b32 s{sOff}, 200000'); a(f's_mov_b32 m0, 200000'); a(f's_mov_b32 s{sInc}, 0'); a(f's_mov_b32 s{sInc+1}, 0'); a(f's_mov_b32 s{sKV+2}, 0')
    a.lab('L_bb_r')
    def bb1():
        a(f's_cmp_lg_u32 s{sWV}, 0'); a('s_cbranch_scc1 L_bb1a')
        gettok(a,'a',None)
        poll_f1(a,'a',0)
        a.lab('L_bb1a')
        a('s_waitcnt vmcnt(0)'); a('s_barrier')
        a(f's_add_u32 s{sKV}, s{sWS}, s{sAg}')
        a(f's_addc_u32 s{sKV+1}, s{sWS+1}, 0')
        a(f's_and_b32 s{sKV+1}, s{sKV+1}, 0xffff')
        a(f's_mov_b32 s{sKV+2}, 40960')
        a(f's_lshl_b32 s{sOff}, s{sWV}, 10')
        a(f's_sub_u32 s{sOff}, s{sOff}, 8192')
        a(f's_mov_b32 m0, s{sOff}')
        a(f's_mov_b32 s{sInc}, 8192')
        a(f's_mov_b32 s{sInc+1}, 8192')
        a(f'buffer_load_dwordx2 {vr(vQA1,2)}, v{vQ1o}, s[{sR}:{sR+3}], s{sQA} offen {SL}')
        a(f'buffer_load_dwordx2 {vr(vQA1+2,2)}, v{vQ1o}, s[{sR}:{sR+3}], s{sQA} offen offset:512 {SL}')
        a(f'buffer_load_dwordx2 {vr(vQA2,2)}, v{vQ2o}, s[{sR}:{sR+3}], s{sQA} offen {SL}')
        a('s_branch L_bb_r')
    ool.append(('L_bb1',bb1))
    addr_addi(8*TILE)
    if PROF and BPROF==1:
        for k in range(4):
            a(f's_cmp_lg_u32 s{sIT}, {k}'); a(f's_cbranch_scc1 L_st{k}'); p.stamp(1+k); a.lab(f'L_st{k}')
    a(f's_add_u32 s{sIT}, s{sIT}, 1')
    a('s_branch L_b_loop')
    a.lab('L_b_exit')
    addr_addi(8*TILE)
    a('s_nop 1')
    pv(vOb,1,1)
    a('s_setprio 0')
    a('s_nop 15')
    p.stamp(8)
    a(f's_lshl_b32 s{st0}, s{sQP}, 1')
    a(f's_cmp_eq_u32 s{sKH}, 0')
    a('s_cbranch_scc0 L_mg_hi')
    a(f's_add_u32 s{st1}, s{st0}, 1')
    a(f's_mul_i32 s{st1}, s{st1}, 3072')
    a(f's_add_u32 s{st1}, s{st1}, {SCR}')
    a(f'v_add_u32 v{vt4}, s{st1}, v{vDma}')
    for i in range(3): a(f'ds_write_b128 v{vt4}, {vr(vOb+4*i,4)} offset:{1024*i}')
    a(f's_mul_i32 s{st1}, s{st0}, 3072')
    a('s_branch L_mg_d')
    a.lab('L_mg_hi')
    a(f's_mul_i32 s{st1}, s{st0}, 3072')
    a(f's_add_u32 s{st1}, s{st1}, {SCR}')
    a(f'v_add_u32 v{vt4}, s{st1}, v{vDma}')
    for i in range(3): a(f'ds_write_b128 v{vt4}, {vr(vOa+4*i,4)} offset:{1024*i}')
    for i in range(12): a(f'v_mov_b32 v{vOa+i}, v{vOb+i}')
    for i in range(4): a(f'v_mov_b32 v{vQa1+i}, v{vQb1+i}')
    a(f's_add_u32 s{st1}, s{st0}, 1')
    a(f's_mul_i32 s{st1}, s{st1}, 3072')
    a.lab('L_mg_d')
    a(f's_add_u32 s{st1}, s{st1}, {SCR}')
    a(f'v_add_u32 v{vt4}, s{st1}, v{vDma}')
    a('s_waitcnt lgkmcnt(0) vmcnt(0)')
    a('s_barrier')
    for i in range(3): a(f'ds_read_b128 {vr(vSa+4*i,4)}, v{vt4} offset:{1024*i}')
    a('s_waitcnt lgkmcnt(0)')
    a('s_barrier')
    for i in range(12): a(f'v_add_f32 v{vOa+i}, v{vOa+i}, v{vSa+i}')
    get_l()
    a(f'v_mov_b32 v{vt3}, {f32bits(2.0**100):#x}')
    a(f'v_cmp_nlt_f32 vcc, v{vt2}, v{vt3}')
    a('s_nop 4')
    a('s_cbranch_vccnz L_b_fallback')
    a.lab('L_b_store')
    store_o(sOB)
    p.stamp(9)
    a(f's_mul_i32 s{st0}, s{sWV}, {TILE}')
    a(f's_mul_i32 s{st1}, s{sKH}, {HALF}')
    a(f's_sub_u32 s{st0}, s{st0}, s{st1}')
    a(f's_sub_u32 s{st0}, s{st0}, {32*TILE}')
    addr_add(st0)
    a(f's_lshl_b32 s{st0}, s{sJ}, 3')
    a(f's_add_u32 s{st2}, s{st0}, s{sWV}')
    a(f's_lshl_b32 s{sOA}, s{st2}, 15')
    a(f's_lshl_b32 s{sOA+1}, s{st2}, 13')
    a(f's_add_u32 s{sOA+1}, s{sOA+1}, {128*16384}')
    for i in range(4): a(f'v_mov_b32 v{vQa1+i}, v{vQA1+i}')
    for i in range(2): a(f'v_mov_b32 v{vQa2+i}, v{vQA2+i}')
    a(f's_sub_u32 s{sSw}, 8, s{sWV}')
    a(f's_cmp_lg_u32 s{sJ}, 0')
    a(f's_cselect_b32 s{sSw}, 0, s{sSw}')
    vC=vCa; vO=vOa; vS=[vSa,vSb]
    KR=[(vV,vV+4),(vV+8,vV+12),(vP,vP+4)]
    SB=[vSa,vSb,vOa]
    sRedo=30; sWoEn=55
    def cmid_init(tag,val,first):
        a(f's_cmp_le_u32 s{sSw}, {first}')
        a(f's_cbranch_scc1 L_cm_{tag}_v')
        for r in range(16): a(f'v_mov_b32 v{vC+r}, {NEG_BIG:#x}')
        a(f's_branch L_cm_{tag}_d')
        a.lab(f'L_cm_{tag}_v')
        for r in range(16): a(f'v_mov_b32 v{vC+r}, {val}')
        a.lab(f'L_cm_{tag}_d')
    def cmid_switch(tag,t,val):
        L=f'L_sw_{tag}_{t}'
        a(f's_cmp_eq_u32 s{sSw}, {t}')
        a(f's_cbranch_scc1 {L}')
        a.lab(L+'_r')
        def fn():
            a('s_nop 15')
            for r in range(16): a(f'v_mov_b32 v{vC+r}, {val}')
            a('s_nop 1')
        ool.append((L,fn))
    wocnt=[0]
    def wo_dma():
        if wocnt[0]>=10: return
        n=wocnt[0]; wocnt[0]+=1
        a(f's_cmp_lg_u32 s{sWoEn}, 0')
        a(f's_cbranch_scc0 L_wo{n}')
        for k in range(2):
            a(f's_mov_b32 m0, s{sWl}')
            a(f's_add_u32 s{sWl}, s{sWl}, 5120')
            a(f'buffer_load_dwordx4 v{vWo}, s[{sWo}:{sWo+3}], s{sWn} offen lds')
            a(f's_add_u32 s{sWn}, s{sWn}, 40960')
        a.lab(f'L_wo{n}')
    def maxpass(tag,tiles,dma):
        cmid_init(tag,'0',max(1,tiles[0]))
        nb=len(tiles)//3
        for i in range(3):
            rd_k1(KR[i][0],tiles[i]*TILE); rd_k2(KR[i][1],tiles[i]*TILE)
        for b in range(nb):
            a('s_waitcnt lgkmcnt(0)')
            for i in range(3):
                t=tiles[3*b+i]
                if max(1,tiles[0])<t<=7: cmid_switch(tag,t,'0')
                C = vr(vMF,16) if t==0 else (vr(vML,16) if t==8 else vr(vC,16))
                qk1(SB[i],C,vQa1,KR[i][0]); qk2(SB[i],vQa2,KR[i][1])
            if b<nb-1:
                for i in range(3):
                    t=tiles[3*(b+1)+i]
                    rd_k1(KR[i][0],t*TILE); rd_k2(KR[i][1],t*TILE)
            else:
                rd_k1(vK1,0); rd_k2(vK2,0)
            if dma: wo_dma()
            a('s_nop 7')
            for i in range(3):
                if i==2: a('s_nop 3')
                rowmax(vM,SB[i],b==0 and i==0)
    a(f's_mov_b32 s{sRedo}, 0')
    a(f's_cmp_lt_u32 s{sWV}, 5')
    a(f's_cselect_b32 s{sWoEn}, 1, 0')
    maxpass('p1',[6,7,8],True)
    a.lab('L_a_p2')
    xhalf_max(vM)
    a(f'v_sub_f32 v{vM}, 0, v{vM}')
    for r in range(16): a(f'v_add_f32 v{vMF+r}, v{vMF+r}, v{vM}')
    for r in range(16): a(f'v_add_f32 v{vML+r}, v{vML+r}, v{vM}')
    cmid_init('p2',f'v{vM}',1)
    for r in range(16): a(f'v_mov_b32 v{vO+r}, 0')
    vinit()
    for i in range(4): a(f'v_mov_b32 v{vP+4+i}, 0')
    a('s_waitcnt lgkmcnt(0)')
    qk1(vS[0],vr(vMF,16),vQa1); qk2(vS[0],vQa2)
    rd_k1(vK1,TILE); rd_v(0,0); rd_k2(vK2,TILE)
    for t in range(9):
        last=(t==8); last2=(t==7); tn=t+1
        cur=vS[t&1]; nxt=vS[(t+1)&1]; off=t*TILE
        Cn = vr(vML,16) if tn==8 else vr(vC,16)
        a('s_waitcnt lgkmcnt(0)')
        if 2<=tn<=7: cmid_switch('p2',tn,f'v{vM}')
        wo_dma()
        def A_():
            if not last: qk1(nxt,Cn,vQa1)
            if not last and not last2: rd_k1(vK1,off+2*TILE)
        def B_():
            pv(vO,(t+1)&1,1)
            if not last: rd_v((t+1)&1,off+TILE)
        def C_():
            if not last: qk2(nxt,vQa2)
            if not last and not last2: rd_k2(vK2,off+2*TILE)
        expgroups(cur,A_,B_,C_,lambda: pv(vO,t&1,0))
    A_CHECK=True
    assert wocnt[0]==10
    a('s_nop 1')
    pv(vO,0,1)
    a('s_nop 15')
    a('s_nop 0')
    get_l()
    a(f'v_mov_b32 v{vt3}, {f32bits(2.0**100):#x}')
    a(f'v_cmp_nlt_f32 vcc, v{vt2}, v{vt3}')
    a('s_nop 4')
    a('s_cbranch_vccnz L_a_exact')
    a.lab('L_a_store')
    store_o(sOA)
    p.stamp(10)
    a('s_waitcnt vmcnt(0)')
    a('s_barrier')
    p.stamp(11)
    a(f's_cmp_lg_u32 s{sWV}, 4')
    a('s_cbranch_scc1 L_p3')
    a(f's_lshl_b32 s{st0}, s{sJ}, 12')
    a(f's_lshl_b32 s{st1}, s{sHD}, {FP2}')
    a(f's_add_u32 s{st0}, s{st0}, s{st1}')
    a(f's_add_u32 s{st0}, s{st0}, 65536')
    setflag(a,st0)
    a(f's_lshl_b32 s{st0}, s{sJ}, 12')
    a(f's_add_u32 s{st0}, s{st0}, {WS_FLG+65536}')
    a(f'v_and_b32 v{vt0}, 31, v{vLane}')
    a(f'v_lshlrev_b32 v{vt0}, {FP2}, v{vt0}')
    a(f'v_add_u32 v{vt0}, s{st0}, v{vt0}')
    if not NOPOLL3: poll(a,'p3',vt0,[0],(1<<32)-1)
    a('s_barrier')
    a('s_branch L_done')
    a.lab('L_a_exact')
    a(f's_cmp_lg_u32 s{sRedo}, 0')
    a('s_cbranch_scc1 L_a_store')
    a(f's_mov_b32 s{sRedo}, 1')
    a(f's_mov_b32 s{sWoEn}, 0')
    for r in range(16): a(f'v_sub_f32 v{vMF+r}, v{vMF+r}, v{vM}')
    for r in range(16): a(f'v_sub_f32 v{vML+r}, v{vML+r}, v{vM}')
    maxpass('p1x',[0,1,2,3,4,5,6,7,8],False)
    a('s_branch L_a_p2')
    for L,fn in ool:
        a.lab(L); fn()
        if not L.startswith('L_bb'): a(f's_branch {L}_r')
    a.lab('L_b_fallback')
    for i in range(2):
        a(f'v_mov_b32 v{vt4}, v{vQab+i}')
        a(f'v_mov_b32 v{vt5}, v{vQab+i}')
        a('s_nop 1')
        a(f'v_permlane32_swap_b32 v{vt4}, v{vt5}')
        a(f's_cmp_eq_u32 s{sKH}, 0')
        a('s_cselect_b64 s[56:57], -1, 0')
        a('s_nop 1')
        a(f'v_cndmask_b32 v{vt4}, v{vt5}, v{vt4}, s[56:57]')
        a(f'v_cndmask_b32 v{vQa2+i}, 0, v{vt4}, s[{sLo}:{sLo+1}]')
    a(f'v_lshlrev_b32 v{vt4}, 3, v{vRho}')
    a(f'v_add_u32 v{vt4}, 1024, v{vt4}')
    a(f'v_lshrrev_b32 v{vt0}, 5, v{vLane}')
    a(f'v_bfe_u32 v{vt5}, v{vRho}, 2, 2')
    a(f'v_xor_b32 v{vt5}, v{vt5}, v{vt0}')
    a(f'v_lshlrev_b32 v{vt5}, 4, v{vt5}')
    a(f'v_lshl_add_u32 v{vt5}, v{vRho}, 6, v{vt5}')
    a(f'v_add_u32 v{vt5}, 1280, v{vt5}')
    a(f'v_xor_b32 v{vt0}, 32, v{vt5}')
    a(f'v_mov_b32 v{vM}, {NEG_BIG:#x}')
    a(f's_mov_b32 s{st0}, s{sHB}')
    a(f's_mov_b32 s{sIT}, 64')
    a.lab('L_fb_p1')
    a(f'buffer_load_dwordx2 {vr(vK1,2)}, v{vQ1o}, s[{sR}:{sR+3}], s{st0} offen {SL}')
    a(f'buffer_load_dwordx2 {vr(vK1+2,2)}, v{vQ1o}, s[{sR}:{sR+3}], s{st0} offen offset:512 {SL}')
    a(f'buffer_load_dwordx2 {vr(vK2,2)}, v{vt4}, s[{sR}:{sR+3}], s{st0} offen {SL}')
    a('s_waitcnt vmcnt(0)')
    qk1(vSa,'0',vQa1); qk2(vSa,vQa2)
    a('s_nop 15')
    rowmax(vM,vSa,False)
    a(f's_add_u32 s{st0}, s{st0}, {TILE}')
    a(f's_sub_u32 s{sIT}, s{sIT}, 1')
    a(f's_cmp_lg_u32 s{sIT}, 0')
    a('s_cbranch_scc1 L_fb_p1')
    xhalf_max(vM)
    for r in range(16): a(f'v_sub_f32 v{vCa+r}, 0, v{vM}')
    for r in range(16): a(f'v_mov_b32 v{vOa+r}, 0')
    a(f's_mov_b32 s{st0}, s{sHB}')
    a(f's_mov_b32 s{sIT}, 64')
    a.lab('L_fb_p2')
    a(f'buffer_load_dwordx2 {vr(vK1,2)}, v{vQ1o}, s[{sR}:{sR+3}], s{st0} offen {SL}')
    a(f'buffer_load_dwordx2 {vr(vK1+2,2)}, v{vQ1o}, s[{sR}:{sR+3}], s{st0} offen offset:512 {SL}')
    a(f'buffer_load_dwordx2 {vr(vK2,2)}, v{vt4}, s[{sR}:{sR+3}], s{st0} offen {SL}')
    a(f's_mov_b64 exec, s[{sVm}:{sVm+1}]')
    a(f'buffer_load_dwordx4 {vr(vV,4)}, v{vt5}, s[{sR}:{sR+3}], s{st0} offen {SL}')
    a(f'buffer_load_dwordx4 {vr(vV+4,4)}, v{vt0}, s[{sR}:{sR+3}], s{st0} offen {SL}')
    a('s_mov_b64 exec, -1')
    a('s_waitcnt vmcnt(0)')
    qk1(vSa,vr(vCa,16),vQa1); qk2(vSa,vQa2)
    a('s_nop 15')
    for r in range(16): ex(vSa,r)
    a('s_nop 0')
    for c in range(8): cv(vSa,c)
    a('s_nop 1')
    pv(vOa,0,0); pv(vOa,0,1)
    a(f's_add_u32 s{st0}, s{st0}, {TILE}')
    a(f's_sub_u32 s{sIT}, s{sIT}, 1')
    a(f's_cmp_lg_u32 s{sIT}, 0')
    a('s_cbranch_scc1 L_fb_p2')
    a('s_nop 15')
    get_l()
    a('s_branch L_b_store')
    return vEnd, dict(sHD=sHD,sJ=sJ)

def phase3(a,p,info,ROT3=3,XD=6):
    WOFF=40960
    sHD,sJ=info['sHD'],info['sJ']
    sX,sO=4,8
    st0,st1,st2,st3=20,21,22,23
    sPH=28; sBR=29; sMT=30; sNT=31
    vLane=1; vXo=2; vt0=4; vt1=5; vt2=6; vt3=7; vTok=8; vG=9; vTr=10; vOut=11; vTp=12; vTq=14; vX2=3
    vX=16; vWf=vX+160; vAcc=vWf+40; vEnd=vAcc+40
    a.lab('L_p3')
    a(f's_cmp_ge_u32 s{sWV}, 4')
    a('s_cbranch_scc1 L_done')
    a('s_load_dwordx2 s[50:51], s[0:1], 48')
    a(f's_lshr_b32 s{sBR}, s{sHD}, 4')
    a(f's_bfe_u32 s{st0}, s{sHD}, 0x10003')
    a(f's_lshl_b32 s{sMT}, s{sJ}, 1')
    a(f's_add_u32 s{sMT}, s{sMT}, s{st0}')
    a(f's_and_b32 s{sNT}, s{sHD}, 7')
    a(f's_and_b32 s{sPH}, s{sHD}, {ROT3}')
    a(f'v_and_b32 v{vTok}, 15, v{vLane}')
    a(f'v_lshrrev_b32 v{vG}, 4, v{vLane}')
    a(f'v_lshlrev_b32 v{vXo}, 4, v{vLane}')
    a(f'v_lshlrev_b32 v{vX2}, 3, v{vLane}')
    a(f's_lshl_b32 s{st0}, s{sMT}, 3')
    a(f's_lshl_b32 s{st1}, s{sWV}, 1')
    a(f's_add_u32 s{st0}, s{st0}, s{st1}')
    a(f's_lshl_b32 s32, s{st0}, 14')
    a(f's_lshl_b32 s36, s{st0}, 12')
    a(f's_add_u32 s36, s36, {128*16384}')
    a(f's_add_u32 s37, s36, 4096')
    a(f's_mul_i32 s{st0}, s{sBR}, {2048*1280}')
    a(f's_add_u32 s{st0}, s{st0}, {WS_O}')
    a(f's_add_u32 s52, s{sWS}, s{st0}')
    a(f's_addc_u32 s53, s{sWS+1}, 0')
    srd(a,sX,52,53,2048*1280)
    a(f'v_bfe_u32 v{vt0}, v{vLane}, 2, 2')
    a(f'v_mul_u32_u24 v{vt0}, 160, v{vt0}')
    a(f'v_and_b32 v{vt1}, 3, v{vLane}')
    a(f'v_lshl_add_u32 v{vt0}, v{vt1}, 3, v{vt0}')
    a(f'v_add_u32 v{vt0}, {WOFF}, v{vt0}')
    a(f'v_lshrrev_b32 v{vt1}, 1, v{vG}')
    a(f'v_mul_u32_u24 v{vt1}, 5, v{vt1}')
    a(f'v_and_b32 v{vt2}, 1, v{vG}')
    a(f'v_add_u32 v{vt1}, v{vt1}, v{vt2}')
    a(f'v_mul_u32_u24 v{vt1}, 640, v{vt1}')
    a(f'v_add_u32 v{vTr}, v{vt0}, v{vt1}')
    a(f'v_mul_u32_u24 v{vt1}, {5*640}, v{vG}')
    a(f'v_add3_u32 v{vTq}, v{vt0}, v{vt1}, 0')
    a(f'v_add_u32 v{vTq}, {4*640}, v{vTq}')
    for i in range(40): a(f'v_mov_b32 v{vAcc+i}, 0')
    a(f's_lshl_b32 s{st0}, s{sMT}, 7')
    a(f's_lshl_b32 s{st1}, s{sWV}, 5')
    a(f's_add_u32 s{st0}, s{st0}, s{st1}')
    a(f'v_add_u32 v{vt0}, s{st0}, v{vTok}')
    a(f'v_mul_u32_u24 v{vt0}, 2560, v{vt0}')
    a(f'v_and_b32 v{vt1}, 1, v{vG}')
    a(f'v_lshlrev_b32 v{vt1}, 5, v{vt1}')
    a(f'v_lshrrev_b32 v{vt2}, 1, v{vG}')
    a(f'v_lshl_add_u32 v{vt1}, v{vt2}, 4, v{vt1}')
    a(f'v_add_u32 v{vOut}, v{vt0}, v{vt1}')
    a(f'v_lshl_add_u32 v{vt3}, v{vG}, 3, v{vt0}')
    a('s_barrier')
    p.stamp(12)
    a(f's_mov_b32 s33, s{sPH}')
    for ph in range(4):
        a(f's_lshl_b32 s{st0}, s33, 12')
        a(f's_add_u32 s{40+2*ph}, s32, s{st0}')
        a(f's_add_u32 s{41+2*ph}, s{40+2*ph}, 16384')
        a('s_add_u32 s33, s33, 1')
        a('s_and_b32 s33, s33, 3')
    def xloads(st):
        L=[]
        if st<16:
            for u in range(2):
                L.append(f'buffer_load_dwordx4 {vr(vX+(st*2+u)*4,4)}, v{vXo}, s[{sX}:{sX+3}], s{40+2*(st//4)+u} offen offset:{(st%4)*1024} {SL}')
        elif st<20:
            for u in range(2):
                for hh in range(2):
                    L.append(f'buffer_load_dwordx2 {vr(vX+(st*2+u)*4+2*hh,2)}, v{vX2}, s[{sX}:{sX+3}], s{36+u} offen offset:{(st-16)*1024+hh*512} {SL}')
        return L
    for st in range(XD):
        for l in xloads(st): a(l)
    if BPROF==3: p.stamp(1,force=True)
    a('s_waitcnt lgkmcnt(0)')
    srd(a,sO,50,51,2048*2560)
    def trr(s,cp,h):
        buf=vWf+(s&1)*20+cp*4+2*h
        if s<16: return f'ds_read_b64_tr_b16 {vr(buf,2)}, v{vTp+((s//4)&1)} offset:{(s%4)*6400+cp*32+h*1280}'
        o=(s-16)*25600+cp*32+h*12800
        if o<65536: return f'ds_read_b64_tr_b16 {vr(buf,2)}, v{vTq} offset:{o}'
        return f'ds_read_b64_tr_b16 {vr(buf,2)}, v{vTq+1} offset:{o-51200}'
    def setp(ph):
        a(f's_mul_i32 s{st0}, s{sPH}, {4*6400}')
        a(f'v_add_u32 v{vTp+(ph&1)}, s{st0}, v{vTr}')
        a(f's_add_u32 s{sPH}, s{sPH}, 1')
        a(f's_and_b32 s{sPH}, s{sPH}, 3')
    a(f'v_add_u32 v{vTq+1}, 51200, v{vTq}')
    setp(0)
    for cp in range(5):
        a(trr(0,cp,0)); a(trr(0,cp,1))
    nl=lambda st: len(xloads(st))
    for s in range(20):
        if s%4==0 and s//4+1<4: setp(s//4+1)
        nxt=[trr(s+1,cp,h) for cp in range(5) for h in range(2)] if s+1<20 else []
        xl=xloads(s+XD)
        buf=vWf+(s&1)*20
        younger=sum(nl(t) for t in range(s+1,min(s+XD,20)))
        a(f's_waitcnt lgkmcnt(0) vmcnt({younger})')
        if BPROF==3 and s in (0,4,8,12,16,19): p.stamp(2+(0,4,8,12,16,19).index(s),force=True)
        k=0
        for cp in range(5):
            for u in range(2):
                ac=vAcc+(cp*2+u)*4
                a(f'v_mfma_f32_16x16x32_bf16 {vr(ac,4)}, {vr(buf+cp*4,4)}, {vr(vX+(s*2+u)*4,4)}, {vr(ac,4)}')
                for _ in range(2 if k<5 else 0):
                    if nxt: a(nxt.pop(0))
                if k>=5 and xl: a(xl.pop(0))
                k+=1
        assert not xl
    a('s_nop 7')
    p.stamp(13)
    a(f's_mul_i32 s{st0}, s{sBR}, 1280')
    a(f's_mul_i32 s{st1}, s{sNT}, 160')
    a(f's_add_u32 s{st0}, s{st0}, s{st1}')
    a(f's_add_u32 s{st1}, s{st0}, {16*2560}')
    for u in range(2):
        for cp in range(5):
            b=vAcc+(cp*2+u)*4
            a(f'v_cvt_pk_bf16_f32 v{b}, v{b}, v{b+1}')
            a(f'v_cvt_pk_bf16_f32 v{b+1}, v{b+2}, v{b+3}')
        for cp in (0,2):
            b=vAcc+(cp*2+u)*4; b2=vAcc+((cp+1)*2+u)*4
            a(f'v_mov_b32 v{b+2}, v{b2}')
            a(f'v_mov_b32 v{b+3}, v{b2+1}')
            a('s_nop 1')
            a(f'v_permlane16_swap_b32 v{b}, v{b+2}')
            a(f'v_permlane16_swap_b32 v{b+1}, v{b+3}')
            a('s_nop 1')
            a(f'buffer_store_dwordx4 {vr(b,4)}, v{vOut}, s[{sO}:{sO+3}], s{st0+u} offen offset:{cp*32} {SO}')
        b=vAcc+(4*2+u)*4
        a(f'buffer_store_dwordx2 {vr(b,2)}, v{vt3}, s[{sO}:{sO+3}], s{st0+u} offen offset:128 {SO}')
    return vEnd

def build(**kw):
    a=A(); p=Prof(a)
    a.raw(f'.globl {KNAME}'); a.raw('.p2align 8'); a.raw(f'.type {KNAME},@function'); a.lab(KNAME)
    a('s_cmp_ge_u32 s2, 256')
    a('s_cbranch_scc1 L_exit')
    p.real(0); p.stamp(0)
    a(f's_load_dwordx4 s[{sDBG}:{sDBG+3}], s[0:1], 56' if False else f's_load_dwordx2 s[{sDBG}:{sDBG+1}], s[0:1], 56')
    a(f's_load_dwordx2 s[{sWS}:{sWS+1}], s[0:1], 64')
    a('s_load_dwordx4 s[16:19], s[0:1], 0')
    a('s_load_dwordx4 s[20:23], s[0:1], 24')
    a(f's_mov_b32 s{sWG}, s2')
    a('v_lshrrev_b32 v2, 6, v0')
    a('s_nop 0')
    a(f'v_readfirstlane_b32 s{sWV}, v2')
    a(f's_cmp_lg_u32 s{sWG}, 0')
    a('s_cbranch_scc1 L_notok')
    a(f's_cmp_lg_u32 s{sWV}, 4')
    a('s_cbranch_scc1 L_notok')
    a('s_memrealtime s[56:57]')
    a('s_waitcnt lgkmcnt(0)')
    a('s_or_b32 s56, s56, 1')
    a('s_mov_b64 exec, 1')
    a('v_mov_b32 v2, 0')
    a('v_mov_b32 v3, s56')
    a(f'global_store_dword v2, v3, s[{sDBG}:{sDBG+1}] sc1')
    a('s_mov_b64 exec, -1')
    a.lab('L_notok')
    if CPF:
        a(f's_cmp_lg_u32 s{sWV}, 5')
        a('s_cbranch_scc1 L_nocpf')
        a('s_getpc_b64 s[56:57]')
        a.lab('L_pc')
        a(f's_lshr_b32 s58, s{sWG}, 3')
        a('s_and_b32 s58, s58, 31')
        a('s_lshl_b32 s58, s58, 10')
        a('v_and_b32 v2, 63, v0')
        a('v_lshlrev_b32 v2, 4, v2')
        a('v_add_u32 v2, s58, v2')
        a(f'v_min_u32 v2, CODE_BYTES-16, v2')
        a('global_load_dwordx4 v[84:87], v2, s[56:57]')
        a.lab('L_nocpf')
    v1=phase1(a,p,**kw.get('p1',{}))
    v2,info=phase2(a,p,**kw.get('p2',{}))
    v3=phase3(a,p,info,**kw.get('p3',{}))
    a.lab('L_done')
    if PROF:
        a('s_waitcnt vmcnt(0)')
        p.real(1); p.dump()
    a('s_endpgm')
    a.lab('L_exit')
    a('s_endpgm')
    a.lab('L_code_end')
    a.raw('.set CODE_BYTES, (L_code_end - L_pc) & 0xfffffff0' if CPF else '')
    vg=max(v1,v2,v3)
    desc=f'''.section .rodata,"a"
.p2align 6
.amdhsa_kernel {KNAME}
  .amdhsa_next_free_vgpr {vg}
  .amdhsa_next_free_sgpr 102
  .amdhsa_accum_offset {(vg+3)//4*4}
  .amdhsa_group_segment_fixed_size 0
  .amdhsa_kernarg_size 72
  .amdhsa_user_sgpr_count 2
  .amdhsa_user_sgpr_kernarg_segment_ptr 1
  .amdhsa_system_sgpr_workgroup_id_x 1
.end_amdhsa_kernel
'''
    hdr=open('cdna_kernels/'+NAME+'.s.ref').read().split('\n')
    out=[]
    for l in hdr:
        if l.startswith('; @launch'): out.append('; @launch grid=(256,1,1) block=(512,1,1) lds=163840'); continue
        if not l.startswith(';'): break
        out.append(l)
    out.append('.amdgcn_target "amdgcn-amd-amdhsa--gfx950"'); out.append('.text')
    return '\n'.join(out)+'\n'+a.txt()+desc

if __name__=='__main__':
    if len(sys.argv)>2 and sys.argv[2]=='prof': PROF=True
    kw=eval(sys.argv[3]) if len(sys.argv)>3 else {}
    if 'CPF' in kw: CPF=kw.pop('CPF')
    if 'JMAP' in kw: JMAP=kw.pop('JMAP')
    if 'NOPOLL3' in kw: NOPOLL3=kw.pop('NOPOLL3')
    if 'RT' in kw: RT=kw.pop('RT')
    if 'BPROF' in kw: BPROF=kw.pop('BPROF')
    if 'POLL' in kw: POLLC.update(kw.pop('POLL'))
    if 'SCO' in kw: SCO=kw.pop('SCO')
    if 'SO' in kw: SO=kw.pop('SO')
    if 'SL' in kw: SL=kw.pop('SL')
    if 'SC' in kw: SC=kw.pop('SC')
    open(sys.argv[1],'w').write(build(**kw))
```

```python
import sys, math, struct
NAME='concat_heads__sliding_block__mha_block__prompt'
KNAME=NAME+'_kernel'
WS_Q=0
WS_KV=2*32*64*1280
WS_O=WS_KV+2*32*64*2560
WS_END=WS_O+2*2048*1280
WS_FLG=WS_END
CSCALE=(20.0**-0.5)*math.log2(math.e)
NEG_BIG=0xf149f2ca
def f32bits(x): return struct.unpack('<I',struct.pack('<f',x))[0]
class A:
    def __init__(s): s.l=[]
    def __call__(s,x): s.l.append('  '+x)
    def lab(s,x): s.l.append(x+':')
    def raw(s,x): s.l.append(x)
    def txt(s): return '\n'.join(s.l)+'\n'
def vr(a,n=1): return f'v{a}' if n==1 else f'v[{a}:{a+n-1}]'
PROF=False
BPROF=False
NOPOLL3=False
JMAP=False
CPF=True
RT=False
PROF_BASE=32<<20
NST=16
class Prof:
    def __init__(s,a): s.a=a; s.n=0
    def stamp(s,i=None,force=False):
        if not PROF: return
        if BPROF==2 and not force and i not in (0,7,8): return
        if BPROF==3 and not force and i not in (0,12,13): return
        if i is None: i=s.n
        s.n=max(s.n,i+1)
        assert i<14
        s.a(f's_memrealtime s[{60+2*i}:{61+2*i}]' if RT else f's_memtime s[{60+2*i}:{61+2*i}]')
    def real(s,idx):
        if PROF: s.a(f's_memrealtime s[{88+2*idx}:{89+2*idx}]')
    def dump(s):
        if not PROF: return
        a=s.a
        a('s_waitcnt lgkmcnt(0) vmcnt(0)')
        a(f's_lshl_b32 s92, s{sWG}, 3')
        a(f's_add_u32 s92, s92, s{sWV}')
        a('s_lshl_b32 s92, s92, 6')
        a(f's_add_u32 s92, s92, {PROF_BASE}')
        a(f's_add_u32 s94, s{sWS}, s92')
        a(f's_addc_u32 s95, s{sWS+1}, 0')
        a('v_mov_b32 v0, 0')
        a('s_mov_b64 exec, 1')
        for i in range(14):
            a(f'v_mov_b32 v1, s{60+2*i}')
            a(f'global_store_dword v0, v1, s[94:95] offset:{4*i}')
        a('v_mov_b32 v1, s88'); a('global_store_dword v0, v1, s[94:95] offset:56')
        a('v_mov_b32 v1, s90'); a('global_store_dword v0, v1, s[94:95] offset:60')
        a('s_waitcnt vmcnt(0)')
sWG=96; sWV=97; sDBG=98; sWS=100; sTOK=59
def srd(a, d, lo, hi, nbytes):
    a(f's_mov_b32 s{d}, s{lo}')
    a(f's_and_b32 s{d+1}, s{hi}, 0xffff')
    a(f's_mov_b32 s{d+2}, {nbytes}')
    a(f's_mov_b32 s{d+3}, 0x20000')

SC='sc1'
SL=''
SO=''
SCO='sc1'

TILE=2560; HALF=81920
P2M=212
P2C=list(range(244,256))
def head_j(a,sH,sJ_,t0,t1):
    if JMAP:
        a(f's_lshr_b32 s{sH}, s{sWG}, 3')
        a(f's_and_b32 s{sJ_}, s{sWG}, 7')
        return
    a(f's_and_b32 s{t0}, s{sWG}, 7')
    a(f's_lshr_b32 s{t1}, s{sWG}, 3')
    a(f's_lshl_b32 s{sH}, s{t0}, 2')
    a(f's_lshr_b32 s{t0}, s{t1}, 3')
    a(f's_add_u32 s{sH}, s{sH}, s{t0}')
    a(f's_and_b32 s{sJ_}, s{t1}, 7')
def q_prep(a):
    head_j(a,50,51,52,53)
    a('s_lshl_b32 s50, s50, 6')
    a('s_lshl_b32 s51, s51, 3')
    a('s_add_u32 s50, s50, s51')
    a(f's_and_b32 s51, s{sWV}, 3')
    a('s_lshl_b32 s51, s51, 1')
    a('s_add_u32 s50, s50, s51')
    a('s_mul_i32 s50, s50, 1280')
    a(f's_add_u32 s50, s50, {32*64*1280}')
    a('s_add_u32 s51, s50, 1280')
    srd(a,52,sWS,sWS+1,WS_O)
    a('v_and_b32 v5, 31, v1')
    a('v_lshlrev_b32 v5, 3, v5')
    a('v_lshrrev_b32 v4, 5, v1')
    a('v_mul_u32_u24 v33, 1280, v4')
    a('v_lshl_add_u32 v4, v4, 8, v5')
    a('v_add3_u32 v5, v5, v33, 0')
    a('v_add_u32 v5, 1024, v5')
def q_loads(a):
    for (r1,so) in ((16,50),(24,51)):
        a(f'buffer_load_dwordx2 v[{r1}:{r1+1}], v4, s[52:55], s{so} offen {SL}')
        a(f'buffer_load_dwordx2 v[{r1+2}:{r1+3}], v4, s[52:55], s{so} offen offset:512 {SL}')
    a(f'buffer_load_dwordx2 v[20:21], v5, s[52:55], s50 offen {SL}')
def q_issue(a):
    q_prep(a); q_loads(a)
def kv_first(a,pieces,rows=(0,HALF,8192,HALF+8192)):
    head_j(a,50,51,52,53)
    a(f's_mul_i32 s50, s50, {64*TILE}')
    a(f's_add_u32 s50, s50, {WS_KV+32*64*TILE}')
    a(f's_add_u32 s52, s{sWS}, s50')
    a(f's_addc_u32 s53, s{sWS+1}, 0')
    a('s_and_b32 s53, s53, 0xffff')
    a('s_mov_b32 s54, 163840')
    a('s_mov_b32 s55, 0x20000')
    a('v_lshlrev_b32 v2, 4, v1')
    for row in rows:
        for pc in pieces:
            a(f's_add_u32 m0, s{pc[0]}, {row+pc[1]}')
            a(f's_add_u32 s50, s{pc[0]}, {row+pc[1]}')
            a(f'buffer_load_dwordx4 v2, s[52:55], s50 offen {SL} lds')
def poll_f1(a,tag,br):
    head_j(a,50,51,52,53)
    a('s_mul_i32 s50, s50, 20')
    a('s_lshr_b32 s51, s50, 7')
    a('s_add_u32 s50, s50, 19')
    a('s_lshr_b32 s50, s50, 7')
    a('s_sub_u32 s50, s50, s51')
    a('v_bfe_u32 v2, v1, 4, 1')
    a('v_mul_u32_u24 v2, s50, v2')
    a('v_add_u32 v2, s51, v2')
    a('v_lshrrev_b32 v5, 5, v1')
    a('v_mul_u32_u24 v5, 5, v5')
    a('v_add_u32 v5, v5, v2')
    a('v_add_u32 v14, 10, v2')
    a('v_and_b32 v2, 15, v1')
    a('v_lshl_add_u32 v5, v5, 4, v2')
    a('v_lshl_add_u32 v14, v14, 4, v2')
    a('v_lshlrev_b32 v5, 7, v5')
    a('v_lshlrev_b32 v14, 7, v14')
    a(f'v_add_u32 v5, {WS_FLG+br*15*16*128}, v5')
    a(f'v_add_u32 v14, {WS_FLG+br*15*16*128}, v14')
    poll2(a,tag,5,14,(1<<64)-1)

def p2_early(a,tag):
    vLane=1; vt0=2; vt1=3; vt2=4; vt3=5; vCc=6; st0=50; sTm=52; sJ=51; sLo=56
    vK1a,vK2a,vVa,vVb,vDma,vRho,vOoff,vOo2,vQ1o,vQ2o,vWo,vKap=P2C
    vMF=P2M; vML=P2M+16
    head_j(a,50,sJ,52,53)
    a(f'v_lshlrev_b32 v{vDma}, 4, v{vLane}')
    a(f'v_and_b32 v{vRho}, 31, v{vLane}')
    a(f'v_lshlrev_b32 v{vt1}, 3, v{vRho}')
    a(f'v_add_u32 v{vK2a}, 1024, v{vt1}')
    a(f'v_mov_b32 v{vt2}, 0x70000000')
    a(f'v_cmp_gt_u32 s[{sLo}:{sLo+1}], 32, v{vLane}')
    a('s_nop 1')
    a(f'v_cndmask_b32 v{vQ2o}, v{vt2}, v{vK2a}, s[{sLo}:{sLo+1}]')
    a(f'v_lshrrev_b32 v{vt0}, 5, v{vLane}')
    a(f'v_lshlrev_b32 v{vK1a}, 3, v{vRho}')
    a(f'v_lshl_add_u32 v{vK1a}, v{vt0}, 8, v{vK1a}')
    a(f'v_mov_b32 v{vQ1o}, v{vK1a}')
    a(f'v_bfe_u32 v{vt1}, v{vRho}, 2, 2')
    a(f'v_xor_b32 v{vt1}, v{vt1}, v{vt0}')
    a(f'v_lshlrev_b32 v{vt1}, 4, v{vt1}')
    a(f'v_lshl_add_u32 v{vVa}, v{vRho}, 6, v{vt1}')
    a(f'v_add_u32 v{vVa}, 1280, v{vVa}')
    a(f'v_xor_b32 v{vVb}, 32, v{vVa}')
    a(f'v_and_b32 v{vt1}, 1, v{vRho}')
    a(f'v_lshlrev_b32 v{vKap}, 4, v{vt1}')
    a(f'v_lshrrev_b32 v{vt1}, 4, v{vRho}')
    a(f'v_lshl_or_b32 v{vKap}, v{vt1}, 3, v{vKap}')
    a(f'v_and_b32 v{vt1}, 4, v{vRho}')
    a(f'v_or_b32 v{vKap}, v{vKap}, v{vt1}')
    a(f'v_bfe_u32 v{vt1}, v{vRho}, 3, 1')
    a(f'v_lshl_or_b32 v{vKap}, v{vt1}, 1, v{vKap}')
    a(f'v_bfe_u32 v{vt1}, v{vRho}, 1, 1')
    a(f'v_or_b32 v{vKap}, v{vKap}, v{vt1}')
    a(f'v_lshlrev_b32 v{vt3}, 2, v{vt0}')
    a(f'v_sub_u32 v{vt3}, v{vKap}, v{vt3}')
    a(f'v_mov_b32 v{vt2}, {NEG_BIG:#x}')
    for r in range(16):
        base=(r&3)+8*(r>>2)
        kb=16*(r&1)+8*((r>>3)&1)+2*((r>>2)&1)+((r>>1)&1)
        if r>=2:
            q=r-2
            a(f'v_cndmask_b32 v{vMF+q}, v{vt2}, 0, s[{sTm+2*(q&1)}:{sTm+1+2*(q&1)}]')
            a(f'v_cndmask_b32 v{vML+q}, 0, v{vt2}, s[{sTm+2*(q&1)}:{sTm+1+2*(q&1)}]')
        a(f'v_cmp_gt_i32 s[{sTm+2*(r&1)}:{sTm+1+2*(r&1)}], {kb}, v{vt3}')
        if r==0: a('s_nop 0')
        if r==1: a('s_nop 1')
    a('s_nop 1')
    for q in (14,15):
        a(f'v_cndmask_b32 v{vMF+q}, v{vt2}, 0, s[{sTm+2*(q&1)}:{sTm+1+2*(q&1)}]')
        a(f'v_cndmask_b32 v{vML+q}, 0, v{vt2}, s[{sTm+2*(q&1)}:{sTm+1+2*(q&1)}]')
    a(f's_cmp_lg_u32 s{sJ}, 0')
    a(f's_cbranch_scc1 L_mf_ok_{tag}')
    for r in range(16): a(f'v_mov_b32 v{vMF+r}, v{vt2}')
    a.lab(f'L_mf_ok_{tag}')
    a(f'v_lshrrev_b32 v{vt1}, 4, v{vKap}')
    a(f'v_and_b32 v{vt2}, 15, v{vKap}')
    a(f'v_lshlrev_b32 v{vOoff}, 14, v{vt1}')
    a(f'v_lshl_add_u32 v{vOoff}, v{vt2}, 4, v{vOoff}')
    a(f'v_lshrrev_b32 v{vt3}, 5, v{vLane}')
    a(f'v_lshl_add_u32 v{vOoff}, v{vt3}, 8, v{vOoff}')
    a(f'v_lshlrev_b32 v{vOo2}, 12, v{vt1}')
    a(f'v_lshl_add_u32 v{vOo2}, v{vt2}, 3, v{vOo2}')
    a(f's_lshl_b32 s{st0}, s{sWV}, 6')
    a(f'v_add_u32 v{vt0}, s{st0}, v{vLane}')
    a(f'v_mul_u32_u24 v{vt1}, 52429, v{vt0}')
    a(f'v_lshrrev_b32 v{vt1}, 19, v{vt1}')
    a(f'v_mul_u32_u24 v{vt2}, 10, v{vt1}')
    a(f'v_sub_u32 v{vCc}, v{vt0}, v{vt2}')
    a(f'v_mul_u32_u24 v{vt1}, 1280, v{vt1}')
    a(f'v_lshl_add_u32 v{vWo}, v{vCc}, 4, v{vt1}')


class Att:
    def __init__(s,a):
        s.a=a
        s.vK1a,s.vK2a,s.vVa,s.vVb,s.vDma,s.vRho,s.vOoff,s.vOo2,s.vQ1o,s.vQ2o,s.vWo,s.vKap=P2C
        s.vt1=3; s.vM=10; s.vMb=35
        s.vQa1=16; s.vQab=20; s.vQa2=22; s.vQb1=24; s.vK1=28; s.vK2=32
        s.vV=36; s.vP=52; s.vSa=64; s.vSb=80; s.vOa=96; s.vOb=112; s.vCa=128; s.vCb=144; s.vS1=160
        s.sVm=24; s.sTm=40
    def rd_k1(s,dst,off,ad=None):
        assert off%512==0 and off//512+1<256
        s.a(f'ds_read2st64_b64 {vr(dst,4)}, v{s.vK1a if ad is None else ad} offset0:{off//512} offset1:{off//512+1}')
    def rd_k2(s,dst,off,ad=None): s.a(f'ds_read_b64 {vr(dst,2)}, v{s.vK2a if ad is None else ad} offset:{off}')
    def rd_v(s,buf,off,ada=None,adb=None):
        a=s.a
        a(f's_mov_b64 exec, s[{s.sVm}:{s.sVm+1}]')
        a(f'ds_read_b128 {vr(s.vV+8*buf,4)}, v{s.vVa if ada is None else ada} offset:{off}')
        a(f'ds_read_b128 {vr(s.vV+8*buf+4,4)}, v{s.vVb if adb is None else adb} offset:{off}')
        a('s_mov_b64 exec, -1')
    def qk1(s,S,C,Q1,K=None): s.a(f'v_mfma_f32_32x32x16_bf16 {vr(S,16)}, {vr(s.vK1 if K is None else K,4)}, {vr(Q1,4)}, {C}')
    def qk2(s,S,Q2,K=None): s.a(f'v_mfma_f32_32x32x8bf16_1k {vr(S,16)}, {vr(s.vK2 if K is None else K,2)}, {vr(Q2,2)}, {vr(S,16)}')
    def qk2b(s,S): s.a(f'v_mfma_f32_32x32x4bf16_1k {vr(S,32)}, {vr(s.vK2,2)}, {vr(s.vQab,2)}, {vr(S,32)}')
    def pv(s,O,buf,t): s.a(f'v_mfma_f32_32x32x16_bf16 {vr(O,16)}, {vr(s.vV+8*buf+4*t,4)}, {vr(s.vP+4*t,4)}, {vr(O,16)}')
    def ex(s,S,r): s.a(f'v_exp_f32 v{S+r}, v{S+r}')
    def cv(s,S,c): s.a(f'v_cvt_pk_bf16_f32 v{s.vP+c}, v{S+2*c}, v{S+2*c+1}')
    def rowmax(s,M,S,first):
        a=s.a
        if first:
            a(f'v_max3_f32 v{M}, v{S}, v{S+1}, v{S+2}'); rest=list(range(3,16))
        else: rest=list(range(16))
        while len(rest)>=2:
            a(f'v_max3_f32 v{M}, v{M}, v{S+rest[0]}, v{S+rest[1]}'); rest=rest[2:]
        if rest: a(f'v_max_f32 v{M}, v{M}, v{S+rest[0]}')
    def xhalf_max(s,M):
        a=s.a
        a(f'v_mov_b32 v{s.vt1}, v{M}')
        a('s_nop 1')
        a(f'v_permlane32_swap_b32 v{M}, v{s.vt1}')
        a('s_nop 1')
        a(f'v_max_f32 v{M}, v{M}, v{s.vt1}')
    def vinit(s):
        a=s.a
        a(f'v_cmp_eq_u32 s[{s.sTm}:{s.sTm+1}], 20, v{s.vRho}')
        a(f'v_mov_b32 v{s.vt1}, 0x3f803f80')
        a('s_nop 0')
        a(f'v_cndmask_b32 v{s.vt1}, 0, v{s.vt1}, s[{s.sTm}:{s.sTm+1}]')
        for i in range(16): a(f'v_mov_b32 v{s.vV+i}, v{s.vt1}')
    def expgroups(s,cur,A_,B_,C_,D_):
        ex=s.ex; cv=s.cv
        A_()
        for r in range(0,4): ex(cur,r)
        B_()
        ex(cur,4); ex(cur,5); cv(cur,0); ex(cur,6); cv(cur,1); ex(cur,7)
        C_()
        ex(cur,8); cv(cur,2); ex(cur,9); cv(cur,3); ex(cur,10); ex(cur,11)
        D_()
        ex(cur,12); ex(cur,13); cv(cur,4); ex(cur,14); cv(cur,5); ex(cur,15); cv(cur,6); cv(cur,7)
    def key_tile(s,pp,k2,v1):
        SP=[s.vSa,s.vS1]; cur=SP[pp&1]; nxt=SP[(pp+1)&1]
        ka,ko=k2; va,vo=v1
        s.a('s_waitcnt lgkmcnt(0)')
        s.expgroups(cur,
            lambda: s.qk1(nxt,vr(s.vCa,16),s.vQa1),
            lambda: (s.pv(s.vOb,(pp+1)&1,1), s.rd_v((pp+1)&1,vo,*( (va[2],va[3]) if va else (None,None)))),
            lambda: (s.qk1(nxt+16,vr(s.vCb,16),s.vQb1), s.rd_k1(s.vK1,ko,ka[0] if ka else None)),
            lambda: s.pv(s.vOa,pp&1,0))
        s.expgroups(cur+16,
            lambda: (s.qk2b(nxt), s.rd_k2(s.vK2,ko,ka[1] if ka else None)),
            lambda: None,
            lambda: s.pv(s.vOa,pp&1,1),
            lambda: s.pv(s.vOb,pp&1,0))
    def standin(s,ad):
        a=s.a
        s.rd_k1(s.vK1,0,ad[0]); s.rd_k2(s.vK2,0,ad[1])
        a('s_waitcnt lgkmcnt(0)')
        s.qk1(s.vSa,'0',s.vQa1); s.qk1(s.vSb,'0',s.vQb1)
        a('s_nop 9')
        s.qk2b(s.vSa)
    def standin2(s):
        a=s.a
        a('s_nop 15'); a('s_nop 3')
        s.rowmax(s.vM,s.vSa,True); s.rowmax(s.vMb,s.vSb,True)
        s.xhalf_max(s.vM); s.xhalf_max(s.vMb)
        for r in range(16): a(f'v_sub_f32 v{s.vCa+r}, 0, v{s.vM}')
        for r in range(16): a(f'v_sub_f32 v{s.vCb+r}, 0, v{s.vMb}')
    def first_tile(s,off,off1):
        a=s.a
        a('s_waitcnt lgkmcnt(0)')
        s.qk1(s.vSa,vr(s.vCa,16),s.vQa1); s.qk1(s.vSb,vr(s.vCb,16),s.vQb1)
        s.rd_k1(s.vK1,off1)
        a('s_nop 9')
        s.qk2b(s.vSa)
        s.rd_k2(s.vK2,off1)
        a('s_nop 15')
        a('s_nop 1')

def phase1(a,p,D=3,SY=1,LP='',EARLY2=False,SPF=False,SPFN=6,XROT=(2,1),LPRIO=2,EPRIO=1,EH=(0,2,4)):
    R=4; XOFF=16384
    sX,sW,sO=4,8,12
    sBR,sMT,sNT=26,27,28
    sKS=31; sXo=32; sW0=34; sIT=36; sSlot=37; sLW=38; sLX=39; sT=40
    st0,st1,st2,st3=41,42,43,44
    sSec=45; sBase=46; sHS=47; sTS=48; sNx=30; sM=29; sN=33; sIdx=35
    vLane=1; vt0=6; vt1=7; vt2=8; vt3=9; vt4=10; vTok=11; vG=12; vRho=13
    vLW=8; vLX=10; vXh=2; vXc1=3
    vB0=14; vBc=19; vBn=24; vAd=29
    vWf=36; vXf=vWf+32; vAcc=vXf+4*(D+1); vEnd=vAcc+128
    assert vEnd<=256 and 8%(D+1)==0
    def wf(step,c): return vWf+(step&1)*16+c*4
    def xf(i): return vXf+(i%(D+1))*4
    def acc(t,c,mt): return vAcc+t*64+(c*4+mt)*4
    def slotbase(dst,idx):
        a(f's_lshl_b32 s{dst}, s{idx}, 15')
        a(f's_lshr_b32 s{st3}, s{idx}, 1')
        a(f's_lshl_b32 s{st3}, s{st3}, 14')
        a(f's_add_u32 s{dst}, s{dst}, s{st3}')
        a(f's_add_u32 s{dst}, s{dst}, 16384')
    a(f'v_and_b32 v{vLane}, 63, v0')
    a(f's_and_b32 s{st0}, s{sWG}, 7')
    a(f's_lshr_b32 s{st1}, s{sWG}, 3')
    a(f's_and_b32 s{st2}, s{st0}, 1')
    a(f's_lshl_b32 s{st2}, s{st2}, 3')
    a(f's_and_b32 s{st3}, s{st1}, 7')
    a(f's_add_u32 s{sMT}, s{st2}, s{st3}')
    a(f's_lshr_b32 s{st2}, s{st0}, 1')
    a(f's_lshl_b32 s{st2}, s{st2}, 2')
    a(f's_lshr_b32 s{st1}, s{st1}, 3')
    a(f's_add_u32 s{sNT}, s{st2}, s{st1}')
    a(f's_cmp_ge_u32 s{sNT}, 15')
    a(f's_cbranch_scc1 L_p1_skip')
    a(f's_cmp_ge_u32 s{sWV}, 4')
    a(f's_cbranch_scc0 L_p1_compute')
    i_c=len(a.l)
    a.lab('L_p1_compute')
    p2_early(a,'c')
    a(f's_and_b32 s{sM}, s{sWV}, 1')
    a(f's_lshr_b32 s{sN}, s{sWV}, 1')
    a(f'v_and_b32 v{vTok}, 15, v{vLane}')
    a(f'v_lshrrev_b32 v{vG}, 4, v{vLane}')
    a(f'v_and_b32 v{vt0}, 3, v{vLane}')
    a(f'v_bfe_u32 v{vt1}, v{vLane}, 2, 2')
    a(f'v_and_b32 v{vt2}, 1, v{vG}')
    a(f'v_lshl_or_b32 v{vt2}, v{vt2}, 2, v{vt1}')
    a(f'v_lshl_add_u32 v{vt3}, v{vG}, 3, v{vt1}')
    a(f'v_lshlrev_b32 v{vt3}, 8, v{vt3}')
    a(f'v_lshl_add_u32 v{vt3}, v{vt0}, 3, v{vt3}')
    a(f's_lshl_b32 s{st0}, s{sN}, 2')
    a(f'v_xor_b32 v{vt2}, s{st0}, v{vt2}')
    for c in range(4):
        a(f'v_xor_b32 v{vt4}, {c}, v{vt2}')
        a(f'v_lshl_add_u32 v{vB0+c}, v{vt4}, 5, v{vt3}')
    a(f'v_lshrrev_b32 v{vt0}, 1, v{vTok}')
    a(f'v_xor_b32 v{vt0}, v{vt0}, v{vG}')
    a(f'v_lshlrev_b32 v{vt0}, 4, v{vt0}')
    a(f'v_lshl_add_u32 v{vt0}, v{vTok}, 7, v{vt0}')
    a(f's_lshl_b32 s{st0}, s{sM}, 13')
    a(f's_add_u32 s{st0}, s{st0}, {XOFF}')
    a(f'v_add_u32 v{vB0+4}, s{st0}, v{vt0}')
    a(f'v_xor_b32 v{vXh}, 64, v{vt0}')
    a(f'v_sub_u32 v{vXh}, v{vXh}, v{vt0}')
    for i in range(5): a(f'v_add_u32 v{vBc+i}, 16384, v{vB0+i}')
    for i in range(128): a(f'v_mov_b32 v{vAcc+i}, 0')
    a(f's_mul_i32 s{sSec}, s{sNT}, 52')
    a(f's_lshr_b32 s{sSec}, s{sSec}, 8')
    a(f's_mul_i32 s{st0}, s{sSec}, 5')
    a(f's_sub_u32 s{st0}, s{sNT}, s{st0}')
    a(f's_lshl_b32 s{st0}, s{st0}, 7')
    a(f's_lshl_b32 s{st1}, s{sN}, 6')
    a(f's_add_u32 s{st0}, s{st0}, s{st1}')
    a(f's_cmp_eq_u32 s{sSec}, 0')
    a(f's_cselect_b32 s{st1}, 0, 1')
    a(f's_cselect_b32 s{st2}, 0, {WS_KV}')
    a(f's_lshl_b32 s{sTS}, 1280, s{st1}')
    a(f's_lshl_b32 s{sHS}, s{sTS}, 6')
    a(f's_lshl_b32 s{sT}, s{sMT}, 2')
    a(f's_lshl_b32 s{st1}, s{sM}, 1')
    a(f's_add_u32 s{sT}, s{sT}, s{st1}')
    a(f's_mul_i32 s{st1}, s{sT}, s{sTS}')
    a(f's_add_u32 s{sBase}, s{st1}, s{st2}')
    a(f's_cmp_eq_u32 s{sSec}, 2')
    a(f's_cbranch_scc1 L_p1_adV')
    a(f'v_lshrrev_b32 v{vt0}, 3, v{vTok}')
    a(f'v_lshlrev_b32 v{vRho}, 7, v{vt0}')
    a(f'v_bfe_u32 v{vt0}, v{vTok}, 1, 1')
    a(f'v_lshl_or_b32 v{vRho}, v{vt0}, 6, v{vRho}')
    a(f'v_bfe_u32 v{vt0}, v{vTok}, 2, 1')
    a(f'v_lshl_or_b32 v{vRho}, v{vt0}, 5, v{vRho}')
    a(f'v_and_b32 v{vt0}, 1, v{vTok}')
    a(f'v_lshl_or_b32 v{vRho}, v{vt0}, 4, v{vRho}')
    a(f's_lshr_b32 s{st0}, s{st0}, 2')
    for c in range(4):
        a(f'v_add_u32 v{vt0}, s{st0}, v{vG}')
        if c: a(f'v_add_u32 v{vt0}, {4*c}, v{vt0}')
        a(f'v_mul_u32_u24 v{vt1}, 52429, v{vt0}')
        a(f'v_lshrrev_b32 v{vt1}, 18, v{vt1}')
        a(f'v_mul_u32_u24 v{vt2}, 5, v{vt1}')
        a(f'v_sub_u32 v{vt2}, v{vt0}, v{vt2}')
        a(f'v_mul_u32_u24 v{vt1}, s{sHS}, v{vt1}')
        a(f'v_and_b32 v{vt3}, 1, v{vt2}')
        a(f'v_lshlrev_b32 v{vt3}, 9, v{vt3}')
        a(f'v_lshrrev_b32 v{vt4}, 1, v{vt2}')
        a(f'v_cmp_eq_u32 s[56:57], 4, v{vt2}')
        a(f'v_lshl_add_u32 v{vt3}, v{vt4}, 8, v{vt3}')
        a(f'v_add_u32 v{vt4}, 512, v{vt3}')
        a(f'v_add_u32 v{vt1}, v{vt1}, v{vRho}')
        a(f'v_cndmask_b32 v{vt3}, v{vt3}, v{vt4}, s[56:57]')
        a(f'v_add_u32 v{vAd+c}, v{vt1}, v{vt3}')
    a('s_branch L_p1_adD')
    a.lab('L_p1_adV')
    for c in range(4):
        a(f'v_add_u32 v{vt0}, s{st0}, v{vTok}')
        if c: a(f'v_add_u32 v{vt0}, {16*c}, v{vt0}')
        a(f'v_mul_u32_u24 v{vt1}, 52429, v{vt0}')
        a(f'v_lshrrev_b32 v{vt1}, 20, v{vt1}')
        a(f'v_mul_u32_u24 v{vt2}, 20, v{vt1}')
        a(f'v_sub_u32 v{vt2}, v{vt0}, v{vt2}')
        a(f'v_mul_u32_u24 v{vt1}, {64*2560}, v{vt1}')
        a(f'v_lshl_add_u32 v{vt1}, v{vt2}, 6, v{vt1}')
        a(f'v_bfe_u32 v{vt2}, v{vt2}, 2, 2')
        a(f'v_xor_b32 v{vt2}, v{vt2}, v{vG}')
        a(f'v_lshl_add_u32 v{vt1}, v{vt2}, 4, v{vt1}')
        a(f'v_add_u32 v{vAd+c}, 1280, v{vt1}')
    a.lab('L_p1_adD')
    a('s_waitcnt lgkmcnt(0)')
    srd(a,sO,sWS,sWS+1,WS_O)
    q_prep(a)
    def wread(nxt,h,step,c,hh):
        b=(vBn if nxt else vBc)+c
        return f'ds_read_b64_tr_b16 {vr(wf(step,c)+2*hh,2)}, v{b} offset:{h*8192+1024*hh}'
    def xread(nxt,h,mt,buf):
        b=((vBn if nxt else vBc)+4) if h==0 else vXc1
        return f'ds_read_b128 {vr(xf(buf),4)}, v{b} offset:{mt*2048}'
    def epilogue(v,t,br):
        if v==0:
            a(f's_cmp_lg_u32 s{sSec}, 0')
            a(f's_cbranch_scc1 L_p1_ns{t}')
            a(f's_mov_b32 s{st1}, {f32bits(CSCALE):#x}')
            for i in range(64): a(f'v_mul_f32 v{vAcc+64*t+i}, s{st1}, v{vAcc+64*t+i}')
            a.lab(f'L_p1_ns{t}')
        a(f's_lshl_b32 s{st0}, s{sTS}, 11')
        a(f's_mul_i32 s{st0}, s{st0}, {br}')
        a(f's_add_u32 s{st0}, s{st0}, s{sBase}')
        for tp in range(2):
            if tp: a(f's_add_u32 s{st0}, s{st0}, s{sTS}')
            for c in range(4):
                b=acc(t,c,2*tp)
                if v==0:
                    a(f'v_cvt_pk_bf16_f32 v{b}, v{b}, v{b+1}')
                    a(f'v_cvt_pk_bf16_f32 v{b+1}, v{b+2}, v{b+3}')
                    a(f'v_cvt_pk_bf16_f32 v{b+2}, v{b+4}, v{b+5}')
                    a(f'v_cvt_pk_bf16_f32 v{b+3}, v{b+6}, v{b+7}')
                else:
                    a(f'v_cvt_pk_bf16_f32 v{b}, v{b}, v{b+4}')
                    a(f'v_cvt_pk_bf16_f32 v{b+1}, v{b+1}, v{b+5}')
                    a(f'v_cvt_pk_bf16_f32 v{b+2}, v{b+2}, v{b+6}')
                    a(f'v_cvt_pk_bf16_f32 v{b+3}, v{b+3}, v{b+7}')
                a(f'buffer_store_dwordx4 {vr(b,4)}, v{vAd+c}, s[{sO}:{sO+3}], s{st0} offen {SC}')
    a(f's_cmp_eq_u32 s{sSec}, 2')
    a(f's_cbranch_scc1 L_p1_v1')
    for v in range(2):
        a.lab(f'L_p1_v{v}')
        p.stamp(1)
        a('s_barrier')
        p.stamp(2)
        def body(emit,issued,t):
            waits=[]
            for st in range(2):
                for mt in range(4):
                    gi=st*4+mt
                    need=[('x',gi)]
                    if mt==0: need.append(('w',st))
                    last=max(len(issued)-1-issued[::-1].index(tg) for tg in need)
                    y=len(issued)-1-last
                    waits.append(y)
                    if emit:
                        y=min(y,wmin[len(waits)-1])
                        a(f's_waitcnt lgkmcnt({min(y,15)})')
                    fill=[]
                    g2=gi+D; nx=g2>=8; h2=(g2%8)//4; m2=g2%4
                    fill.append((xread(nx,h2,m2,g2),('x',g2%8)))
                    wm={0:(0,1),1:(2,3)} if st==1 else {0:(0,1),1:(2,3)}
                    if mt in wm:
                        for c in wm[mt]:
                            fill.append((wread(st==1,(st+1)&1,st+1,c,0),('w',(st+1)%2)))
                            fill.append((wread(st==1,(st+1)&1,st+1,c,1),('w',(st+1)%2)))
                    if st==0 and mt==0:
                        fill.append((f'v_add_u32 v{vXc1}, v{vBc+4}, v{vXh}',None))
                    if st==0 and mt==2:
                        fill.append((f's_add_u32 s{sIdx}, s{sIdx}, 1',None))
                        fill.append((f's_and_b32 s{sIdx}, s{sIdx}, 3',None))
                        fill.append((f's_lshl_b32 s{sNx}, s{sIdx}, 15',None))
                        fill.append((f's_lshr_b32 s{st3}, s{sIdx}, 1',None))
                        fill.append((f's_lshl_b32 s{st3}, s{st3}, 14',None))
                        fill.append((f's_add_u32 s{sNx}, s{sNx}, s{st3}',None))
                        fill.append((f's_add_u32 s{sNx}, s{sNx}, 16384',None))
                    if st==0 and mt==3:
                        for i in range(5): fill.append((f'v_add_u32 v{vBn+i}, s{sNx}, v{vB0+i}',None))
                    if st==1 and mt==3:
                        for i in range(5): fill.append((f'v_mov_b32 v{vBc+i}, v{vBn+i}',None))
                    for c in range(4):
                        x=xf(gi); w=wf(st,c); ac=acc(t,c,mt)
                        if emit:
                            if v==0: a(f'v_mfma_f32_16x16x32_bf16 {vr(ac,4)}, {vr(w,4)}, {vr(x,4)}, {vr(ac,4)}')
                            else:    a(f'v_mfma_f32_16x16x32_bf16 {vr(ac,4)}, {vr(x,4)}, {vr(w,4)}, {vr(ac,4)}')
                        k=1 if c<3 else len(fill)
                        if len(fill)>4 and c<3: k=2
                        while k>0 and fill:
                            tx,tag=fill.pop(0); k-=1
                            if emit: a(tx)
                            if tag: issued.append(tag)
                    if st==0 and mt==SY and emit:
                        if t==1:
                            a(f's_cmp_eq_u32 s{sIT}, 9'); a(f's_cbranch_scc0 L_p1_nw{v}'); a('s_waitcnt vmcnt(0)'); a.lab(f'L_p1_nw{v}')
                        a('s_barrier')
            return waits
        pro=[('w',0)]*8+[('x',i) for i in range(D)]
        iss=list(pro); w1=body(False,iss,0); w2=body(False,iss,0)
        wmin=[min(x,y) for x,y in zip(w1,w2)]
        a(f's_mov_b32 s{sIdx}, 0')
        for c in range(4):
            a(wread(False,0,0,c,0)); a(wread(False,0,0,c,1))
        for i in range(D): a(xread(False,0,i,i))
        for t in range(2):
            a(f's_mov_b32 s{sIT}, 10')
            a.lab(f'L_p1_loop{v}_{t}')
            body(True,list(pro),t)
            a(f's_sub_u32 s{sIT}, s{sIT}, 1')
            a(f's_cmp_lg_u32 s{sIT}, 0')
            a(f's_cbranch_scc1 L_p1_loop{v}_{t}')
            a('s_nop 7')
            if t==0:
                epilogue(v,0,1)
                a('s_nop 1')
                for r in range(96,128): a(f'v_mov_b32 v{r}, 0')
            else:
                p.stamp(3)
                a('s_waitcnt lgkmcnt(0)')
                q_loads(a)
                epilogue(v,1,0)
        a('s_mov_b32 s49, 8')
        a('s_branch L_p1_done')
    i_l=len(a.l)
    a.lab('L_p1_loader')
    if LPRIO: a(f's_setprio {LPRIO}')
    sLd=29; sRot0=30
    a(f's_sub_u32 s{sLd}, s{sWV}, 4')
    a(f's_mul_i32 s{st3}, s{st3}, 5')
    a(f's_lshr_b32 s{st3}, s{st3}, 2')
    a(f's_mul_i32 s{st1}, s{st1}, 5')
    a(f's_lshr_b32 s{st1}, s{st1}, 1')
    a(f's_add_u32 s{sKS}, s{st3}, s{st1}')
    if XROT:
        ra,rb=XROT
        a(f's_and_b32 s{st0}, s{sWG}, 7')
        a(f's_lshr_b32 s{st1}, s{st0}, 1')
        a(f's_mul_i32 s{st1}, s{st1}, {ra}')
        a(f's_add_u32 s{sKS}, s{sKS}, s{st1}')
        a(f's_and_b32 s{st0}, s{st0}, 1')
        a(f's_mul_i32 s{st0}, s{st0}, {rb}')
        a(f's_add_u32 s{sKS}, s{sKS}, s{st0}')
        for lim in (40,20):
            a(f's_cmp_ge_u32 s{sKS}, {lim}')
            a(f's_cselect_b32 s{st0}, {lim//2 if lim==20 else 20}, 0')
            a(f's_sub_u32 s{sKS}, s{sKS}, s{st0}')
        a(f's_cmp_ge_u32 s{sKS}, 20')
        a(f's_cselect_b32 s{st0}, 10, 0')
        a(f's_sub_u32 s{sKS}, s{sKS}, s{st0}')
    a(f's_cmp_ge_u32 s{sKS}, 10')
    a(f's_cselect_b32 s{st0}, 10, 0')
    a(f's_sub_u32 s{sKS}, s{sKS}, s{st0}')
    a(f's_mov_b32 s{sRot0}, s{sKS}')
    a(f's_lshl_b32 s{sLW}, s{sLd}, 12')
    a(f's_lshl_b32 s{sLX}, s{sLd}, 12')
    a(f's_add_u32 s{sLX}, s{sLX}, {XOFF}')
    a(f'v_lshrrev_b32 v{vt0}, 4, v{vLane}')
    a(f'v_bfe_u32 v{vt1}, v{vLane}, 1, 3')
    a(f'v_and_b32 v2, 1, v{vLane}')
    a(f's_lshl_b32 s{st2}, s{sLd}, 4')
    a(f's_lshl_b32 s{st1}, s{sNT}, 8')
    for jj in range(2):
        a(f'v_add_u32 v3, {4*jj}, v{vt0}')
        a(f'v_xor_b32 v3, v3, v{vt1}')
        a(f'v_lshl_add_u32 v4, v3, 1, v2')
        a(f'v_lshlrev_b32 v4, 4, v4')
        a(f'v_add_u32 v{vLW+jj}, s{st2}, v{vt0}')
        if jj: a(f'v_add_u32 v{vLW+jj}, 8, v{vLW+jj}')
        a(f'v_mul_u32_u24 v{vLW+jj}, 3840, v{vLW+jj}')
        a(f'v_add3_u32 v{vLW+jj}, v{vLW+jj}, v4, s{st1}')
    a(f'v_lshrrev_b32 v{vt0}, 3, v{vLane}')
    a(f'v_and_b32 v{vt1}, 7, v{vLane}')
    a(f's_lshl_b32 s{st0}, s{sMT}, 7')
    a(f's_lshl_b32 s{st1}, s{sLd}, 5')
    a(f's_add_u32 s{st0}, s{st0}, s{st1}')
    for uu in range(2):
        a(f'v_lshrrev_b32 v2, 1, v{vt0}')
        if uu: a(f'v_add_u32 v2, 4, v2')
        a(f'v_xor_b32 v2, v2, v{vt1}')
        a(f'v_add_u32 v3, s{st0}, v{vt0}')
        if uu: a(f'v_add_u32 v3, 8, v3')
        a(f'v_mul_u32_u24 v3, 1280, v3')
        a(f'v_lshl_add_u32 v{vLX+uu}, v2, 4, v3')
    a('s_waitcnt lgkmcnt(0)')
    srd(a,sX,20,21,2048*1280)
    srd(a,sW,22,23,640*3840)
    NL=8
    def wstep():
        a(f's_mul_i32 s{sW0}, s{sKS}, {64*3840}')
        a(f's_lshl_b32 s{sXo}, s{sKS}, 7')
        slotbase(sSlot,sIdx)
        a(f's_add_u32 s{st0}, s{sSlot}, s{sLW}')
        a(f's_add_u32 s{st1}, s{sSlot}, s{sLX}')
        for j in range(4):
            a(f's_add_u32 m0, s{st0}, {j*1024}')
            if j&1: a(f's_add_u32 s{st2}, s{sW0}, {4*3840}')
            else: a('s_nop 0')
            a(f'buffer_load_dwordx4 v{vLW+(j>>1)}, s[{sW}:{sW+3}], s{st2 if j&1 else sW0} offen {LP} lds')
            a(f's_add_u32 m0, s{st1}, {j*1024}')
            if j==2: a(f's_add_u32 s{sXo}, s{sXo}, 20480')
            else: a('s_nop 0')
            a(f'buffer_load_dwordx4 v{vLX+(j&1)}, s[{sX}:{sX+3}], s{sXo} offen {LP} lds')
        a(f's_add_u32 s{sKS}, s{sKS}, 1')
        a(f's_cmp_eq_u32 s{sKS}, 10')
        a(f's_cselect_b32 s{sKS}, 0, s{sKS}')
        a(f's_add_u32 s{sIdx}, s{sIdx}, 1')
        a(f's_and_b32 s{sIdx}, s{sIdx}, 3')
    a(f's_mov_b32 s{sIdx}, 0')
    wstep()
    if EARLY2: wstep()
    a(f's_waitcnt vmcnt({NL if EARLY2 else 0})')
    a('s_barrier')
    if not EARLY2: wstep()
    wstep()
    p2_early(a,'l')
    for r in range(96,128): a(f'v_mov_b32 v{r}, 0')
    a(f's_mov_b32 s{sIT}, 0')
    a.lab('L_p1_ld_loop')
    a(f's_waitcnt vmcnt({NL})')
    a(f's_cmp_lg_u32 s{sIT}, 15'); a('s_cbranch_scc1 L_p1_ld_w1')
    a(f's_cmp_lg_u32 s{sWV}, 4'); a('s_cbranch_scc1 L_p1_ld_w1')
    poll_f1(a,'b',1)
    a.lab('L_p1_ld_w1')
    a('s_barrier')
    a(f's_cmp_lg_u32 s{sWV}, 4'); a('s_cbranch_scc1 L_p1_ld_h1')
    a(f's_cmp_lg_u32 s{sIT}, 8'); a('s_cbranch_scc1 L_p1_ld_h0')
    gettok(a,'p1',None)
    a.lab('L_p1_ld_h0')
    a(f's_cmp_lg_u32 s{sIT}, 11'); a('s_cbranch_scc1 L_p1_ld_h1')
    a(f's_add_u32 s50, s{sNT}, 15')
    a('s_lshl_b32 s50, s50, 4')
    a(f's_add_u32 s50, s50, s{sMT}')
    a('s_lshl_b32 s50, s50, 7')
    setflag(a,50)
    a.lab('L_p1_ld_h1')
    a(f's_cmp_lg_u32 s{sIT}, 7'); a('s_cbranch_scc1 L_p1_ld_h2')
    srd(a,sX,16,17,2048*1280)
    srd(a,sW,18,19,640*3840)
    a.lab('L_p1_ld_h2')
    wstep()
    a(f's_add_u32 s{sIT}, s{sIT}, 1')
    a(f's_cmp_lt_u32 s{sIT}, 16')
    a('s_cbranch_scc1 L_p1_ld_loop')
    a(f's_setprio {EPRIO}')
    a(f's_lshl_b32 s48, s{sLd}, 11')
    q_issue(a)
    kv_first(a,[(48,0),(48,1024)],(0,HALF,8192,HALF+8192))
    a('s_mov_b32 s3, 1')
    a.lab('L_early')
    at=Att(a)
    Lr=(12,13,14,15)
    a(f's_mov_b32 s{at.sVm}, 0xfffff'); a(f's_mov_b32 s{at.sVm+1}, 0xfffff')
    at.vinit()
    for i in range(4): a(f'v_mov_b32 v{at.vP+4+i}, 0')
    for r,src in zip(Lr,(at.vK1a,at.vK2a,at.vVa,at.vVb)): a(f'v_mov_b32 v{r}, v{src}')
    for r in (at.vK1a,at.vK2a,at.vVa,at.vVb): a(f'v_add_u32 v{r}, {HALF}, v{r}')
    def hook(n,fn):
        a('s_cmp_eq_u32 s3, 0'); a(f's_cbranch_scc1 L_eh{n}'); fn(); a.lab(f'L_eh{n}')
    hook(0,lambda: (a('s_waitcnt vmcnt(0)'), a('s_barrier'), wstep()))
    at.standin(Lr)
    at.rd_k1(at.vK1,0); at.rd_k2(at.vK2,0); at.rd_v(0,0)
    at.standin2()
    at.first_tile(0,TILE)
    seq=[(None,0),(None,TILE),(None,2*TILE),(None,3*TILE),(Lr,0),(Lr,TILE),(Lr,2*TILE),(Lr,3*TILE),(None,4*TILE),(None,5*TILE)]
    for t in range(8):
        if t==EH[0]: hook(1,lambda: (a(f's_waitcnt vmcnt({NL})'), a('s_barrier')))
        if t==EH[1]: hook(2,lambda: (a('s_waitcnt vmcnt(0)'), a('s_barrier'), kv_first(a,[(48,0),(48,1024)],(16384,24576,32768,40960))))
        if t==EH[2]: hook(3,lambda: (a('s_barrier'), kv_first(a,[(48,0),(48,1024)],(HALF+16384,HALF+24576,HALF+32768,HALF+40960))))
        at.key_tile(t,seq[t+2],seq[t+1])
    a('s_setprio 0')
    a('s_cmp_eq_u32 s3, 0'); a('s_cbranch_scc1 L_p1_idle_done')
    a(f's_lshl_b32 s49, s{sNT}, 4')
    a(f's_add_u32 s49, s49, s{sMT}')
    a('s_lshl_b32 s49, s49, 7')
    a('s_or_b32 s49, s49, 0x80000000')
    a('s_branch L_p1_done')
    a.lab('L_p1_idle_done')
    a('s_mov_b32 s49, 0')
    a('s_branch L_p1_done')
    i_e=len(a.l)
    a.l[i_c:i_e]=a.l[i_l:i_e]+a.l[i_c:i_l]
    a.lab('L_p1_skip')
    p2_early(a,'s')
    for r in range(96,128): a(f'v_mov_b32 v{r}, 0')
    a('s_waitcnt lgkmcnt(0)')
    a(f's_cmp_lg_u32 s{sWV}, 4'); a('s_cbranch_scc1 L_p1_sk1')
    gettok(a,'p1s',None)
    poll_f1(a,'bs',1)
    a.lab('L_p1_sk1')
    a('s_barrier')
    a(f's_lshl_b32 s48, s{sWV}, 10')
    q_issue(a)
    kv_first(a,[(48,0)],(0,HALF,8192,HALF+8192,16384,24576,32768,40960,HALF+16384,HALF+24576,HALF+32768,HALF+40960))
    a('s_waitcnt vmcnt(0)')
    a('s_barrier')
    a('s_mov_b32 s3, 0')
    a(f's_cmp_ge_u32 s{sWV}, 4'); a('s_cbranch_scc1 L_early')
    a('s_mov_b32 s49, 0')
    a.lab('L_p1_done')
    return vEnd

def gettok(a,tag,wave=4):
    if wave is not None:
        a(f's_cmp_lg_u32 s{sWV}, {wave}')
        a(f's_cbranch_scc1 L_tokd_{tag}')
    a('s_mov_b32 s58, 0x40000')
    a('v_mov_b32 v2, 0')
    a.lab(f'L_tok_{tag}')
    a(f'global_load_dword v3, v2, s[{sDBG}:{sDBG+1}] sc1')
    a('s_waitcnt vmcnt(0)')
    a(f'v_readfirstlane_b32 s{sTOK}, v3')
    a('s_nop 3')
    a(f's_cmp_lg_u32 s{sTOK}, 0')
    a(f's_cbranch_scc1 L_tokd_{tag}')
    a('s_sleep 4')
    a('s_sub_u32 s58, s58, 1')
    a('s_cmp_lg_u32 s58, 0')
    a(f's_cbranch_scc1 L_tok_{tag}')
    a.lab(f'L_tokd_{tag}')
def setflag(a,soff):
    a(f's_add_u32 s{soff}, s{soff}, {WS_FLG}')
    a('s_mov_b64 exec, 1')
    a(f'v_mov_b32 v2, s{soff}')
    a(f'v_mov_b32 v3, s{sTOK}')
    a(f'global_store_dword v2, v3, s[{sWS}:{sWS+1}] sc1')
    a('s_mov_b64 exec, -1')
def poll2(a,tag,va,vb,mask):
    a('s_mov_b32 s58, 0x40000')
    a.lab(f'L_poll_{tag}')
    a(f'global_load_dword v3, v{va}, s[{sWS}:{sWS+1}] sc1')
    a(f'global_load_dword v4, v{vb}, s[{sWS}:{sWS+1}] sc1')
    a('s_waitcnt vmcnt(0)')
    a(f'v_cmp_eq_u32 s[56:57], s{sTOK}, v3')
    a(f'v_cmp_eq_u32 vcc, s{sTOK}, v4')
    a('s_nop 4')
    a('s_and_b64 s[56:57], s[56:57], vcc')
    a(f's_and_b32 s56, s56, {mask&0xffffffff:#x}')
    a(f's_and_b32 s57, s57, {mask>>32:#x}')
    a(f's_cmp_lg_u32 s56, {mask&0xffffffff:#x}')
    a(f's_cbranch_scc1 L_polln_{tag}')
    a(f's_cmp_eq_u32 s57, {mask>>32:#x}')
    a(f's_cbranch_scc1 L_polld_{tag}')
    a.lab(f'L_polln_{tag}')
    a('s_sleep 1')
    a('s_sub_u32 s58, s58, 1')
    a('s_cmp_lg_u32 s58, 0')
    a(f's_cbranch_scc1 L_poll_{tag}')
    a.lab(f'L_polld_{tag}')
POLLC=dict(sl=2,pol='sc1',pre=0)
def poll(a,tag,vaddr,offs,mask):
    a('s_mov_b32 s58, 0x40000')
    for _ in range(POLLC['pre']): a('s_sleep 8')
    a.lab(f'L_poll_{tag}')
    for i,o in enumerate(offs):
        a(f'global_load_dword v{vaddr+1+i}, v{vaddr}, s[{sWS}:{sWS+1}] offset:{o} {POLLC["pol"]}')
    a('s_waitcnt vmcnt(0)')
    a(f'v_cmp_eq_u32 s[56:57], s{sTOK}, v{vaddr+1}')
    if len(offs)>1:
        a(f'v_cmp_eq_u32 vcc, s{sTOK}, v{vaddr+2}')
        a('s_nop 4')
        a('s_and_b64 s[56:57], s[56:57], vcc')
    else:
        a('s_nop 4')
    a(f's_and_b32 s56, s56, {mask&0xffffffff:#x}')
    a(f's_and_b32 s57, s57, {mask>>32:#x}')
    a(f's_cmp_lg_u32 s56, {mask&0xffffffff:#x}')
    a(f's_cbranch_scc1 L_polln_{tag}')
    a(f's_cmp_eq_u32 s57, {mask>>32:#x}')
    a(f's_cbranch_scc1 L_polld_{tag}')
    a.lab(f'L_polln_{tag}')
    a(f's_sleep {POLLC["sl"]}')
    a('s_sub_u32 s58, s58, 1')
    a('s_cmp_lg_u32 s58, 0')
    a(f's_cbranch_scc1 L_poll_{tag}')
    a.lab(f'L_polld_{tag}')

def phase2(a,p,PRIO=0,BSH=0,NOHOOK=0,SPRIO=0,FP2=7):
    TILE=2560; HALF=81920; WOFF=40960; SCR=81920
    sR,sOo,sWo=4,8,12
    sHD,sJ,sQP,sKH=16,17,18,19
    st0,st1,st2,st3=20,21,22,23
    sVm=24; sLo=26
    sIT=28; sHB=29; sHBw=30; sOl=31; sOh=32; sLl=33; sQA=34; sSw=35; sAg=36; sOB=37; sOA=50; sNeed=39
    sTm=40
    sKV=44
    sOff=31; sInc=32
    sWn=48
    sWl=39
    vLane=1; vt0=2; vt1=3; vt2=4; vt3=5; vM=10; vt4=14; vt5=15
    vK1a,vK2a,vVa,vVb,vDma,vRho,vOoff,vOo2,vQ1o,vQ2o,vWo,vKap=P2C
    vQa1=16; vQab=20; vQa2=22; vQb1=24; vK1=28; vK2=32; vMb=35
    vV=36; vP=52; vQA2=60; vCc=63
    vSa=64; vSb=80; vOa=96; vOb=112; vCa=128; vCb=144; vMF=P2M; vML=P2M+16; vQA1=192
    vS1=160
    vEnd=256
    a(f's_load_dwordx2 s[50:51], s[0:1], 16')
    a(f's_load_dwordx2 s[52:53], s[0:1], 40')
    head_j(a,sHD,sJ,st0,st1)
    a(f's_and_b32 s{sQP}, s{sWV}, 3')
    a(f's_lshr_b32 s{sKH}, s{sWV}, 2')
    a(f's_mul_i32 s{sHB}, s{sHD}, {64*TILE}')
    a(f's_add_u32 s{sAg}, s{sHB}, {WS_KV-20480}')
    a(f's_add_u32 s{sHB}, s{sHB}, {WS_KV+32*64*TILE}')
    a(f's_mul_i32 s{st0}, s{sJ}, 20480')
    a(f's_add_u32 s{sAg}, s{sAg}, s{st0}')
    a(f's_mov_b32 s{sVm}, 0xfffff')
    a(f's_mov_b32 s{sVm+1}, 0xfffff')
    a(f's_mov_b32 s{sLo}, -1')
    a(f's_mov_b32 s{sLo+1}, 0')
    a(f's_lshl_b32 s{st0}, s{sJ}, 3')
    a(f's_lshl_b32 s{st1}, s{sHD}, 6')
    a(f's_add_u32 s{st1}, s{st1}, s{st0}')
    a(f's_add_u32 s{st2}, s{st1}, s{sWV}')
    a(f's_mul_i32 s{sQA}, s{st2}, 1280')
    a(f's_lshl_b32 s{st2}, s{sQP}, 1')
    a(f's_add_u32 s{st2}, s{st2}, s{sKH}')
    a(f's_add_u32 s{st2}, s{st2}, s{st0}')
    a(f's_lshl_b32 s{sOB}, s{st2}, 15')
    a(f's_add_u32 s{sOB}, s{sOB}, {2048*1280}')
    a(f's_lshl_b32 s{sOB+1}, s{st2}, 13')
    a(f's_add_u32 s{sOB+1}, s{sOB+1}, {2048*1280+128*16384}')
    srd(a,sR,sWS,sWS+1,WS_O)
    a(f's_add_u32 s56, s{sWS}, {WS_O}')
    a(f's_addc_u32 s57, s{sWS+1}, 0')
    srd(a,sOo,56,57,WS_END-WS_O)
    a(f's_add_u32 s{sKV}, s{sWS}, s{sHB}')
    a(f's_addc_u32 s{sKV+1}, s{sWS+1}, 0')
    a(f's_and_b32 s{sKV+1}, s{sKV+1}, 0xffff')
    a(f's_mov_b32 s{sKV+2}, 163840')
    a(f's_mov_b32 s{sKV+3}, 0x20000')
    a(f's_lshl_b32 s{sOff}, s{sWV}, 10')
    a(f's_add_u32 s{sOff}, s{sOff}, 49152')
    a(f's_mov_b32 m0, s{sOff}')
    a(f's_mov_b32 s{sInc}, {HALF}')
    a(f's_mov_b32 s{sInc+1}, {(8192-HALF)&0xffffffff}')
    def vinit():
        a(f'v_cmp_eq_u32 s[{sTm}:{sTm+1}], 20, v{vRho}')
        a(f'v_mov_b32 v{vt1}, 0x3f803f80')
        a('s_nop 0')
        a(f'v_cndmask_b32 v{vt1}, 0, v{vt1}, s[{sTm}:{sTm+1}]')
        for i in range(16): a(f'v_mov_b32 v{vV+i}, v{vt1}')
    a(f's_cmp_lg_u32 s{sKH}, 0'); a('s_cbranch_scc1 L_p2_noinit')
    vinit()
    for i in range(4): a(f'v_mov_b32 v{vP+4+i}, 0')
    a.lab('L_p2_noinit')
    a(f's_lshl_b32 s{sWl}, s{sWV}, 10')
    a(f's_add_u32 s{sWl}, s{sWl}, {WOFF}')
    a(f's_and_b32 s{sWn}, s{sHD}, 7')
    a(f's_mul_i32 s{sWn}, s{sWn}, 160')
    a('s_waitcnt lgkmcnt(0)')
    a(f's_cmp_lt_u32 s{sHD}, 16')
    a('s_cselect_b64 s[50:51], s[50:51], s[52:53]')
    srd(a,sWo,50,51,640*1280)
    p.stamp(5)

    def rd_k1(dst,off):
        assert off%512==0 and off//512+1<256
        a(f'ds_read2st64_b64 {vr(dst,4)}, v{vK1a} offset0:{off//512} offset1:{off//512+1}')
    def rd_k2(dst,off): a(f'ds_read_b64 {vr(dst,2)}, v{vK2a} offset:{off}')
    def rd_v(buf,off):
        a(f's_mov_b64 exec, s[{sVm}:{sVm+1}]')
        a(f'ds_read_b128 {vr(vV+8*buf,4)}, v{vVa} offset:{off}')
        a(f'ds_read_b128 {vr(vV+8*buf+4,4)}, v{vVb} offset:{off}')
        a('s_mov_b64 exec, -1')
    def qk1(S,C,Q1,K=None): a(f'v_mfma_f32_32x32x16_bf16 {vr(S,16)}, {vr(vK1 if K is None else K,4)}, {vr(Q1,4)}, {C}')
    def qk2(S,Q2,K=None): a(f'v_mfma_f32_32x32x8bf16_1k {vr(S,16)}, {vr(vK2 if K is None else K,2)}, {vr(Q2,2)}, {vr(S,16)}')
    def qk2b(S): a(f'v_mfma_f32_32x32x4bf16_1k {vr(S,32)}, {vr(vK2,2)}, {vr(vQab,2)}, {vr(S,32)}')
    def pv(O,buf,t): a(f'v_mfma_f32_32x32x16_bf16 {vr(O,16)}, {vr(vV+8*buf+4*t,4)}, {vr(vP+4*t,4)}, {vr(O,16)}')
    def ex(S,r): a(f'v_exp_f32 v{S+r}, v{S+r}')
    def cv(S,c): a(f'v_cvt_pk_bf16_f32 v{vP+c}, v{S+2*c}, v{S+2*c+1}')
    def rowmax(M,S,first):
        if first:
            a(f'v_max3_f32 v{M}, v{S}, v{S+1}, v{S+2}'); rest=list(range(3,16))
        else: rest=list(range(16))
        while len(rest)>=2:
            a(f'v_max3_f32 v{M}, v{M}, v{S+rest[0]}, v{S+rest[1]}'); rest=rest[2:]
        if rest: a(f'v_max_f32 v{M}, v{M}, v{S+rest[0]}')
    def xhalf_max(M):
        a(f'v_mov_b32 v{vt1}, v{M}')
        a('s_nop 1')
        a(f'v_permlane32_swap_b32 v{M}, v{vt1}')
        a('s_nop 1')
        a(f'v_max_f32 v{M}, v{M}, v{vt1}')
    def get_l():
        a(f'v_mov_b32 v{vt1}, v{vOa+8}')
        a(f'v_mov_b32 v{vt2}, v{vOa+8}')
        a('s_nop 1')
        a(f'v_permlane32_swap_b32 v{vt1}, v{vt2}')
        a('s_nop 1')
    def safety():
        a(f'v_max3_f32 v{vt3}, |v{vOa}|, |v{vOa+1}|, |v{vOa+2}|')
        for i in range(3,11,2): a(f'v_max3_f32 v{vt3}, v{vt3}, |v{vOa+i}|, |v{vOa+i+1}|')
        a(f'v_max_f32_e64 v{vt3}, v{vt3}, |v{vOa+11}|')
        a(f'v_mul_f32 v{vt3}, {f32bits(2.0**-27):#x}, v{vt3}')
        a(f'v_max_f32 v{vt3}, v{vt3}, v{vt2}')
        a(f'v_mov_b32 v{vt4}, {f32bits(2.0**100):#x}')
        a(f'v_cmp_nlt_f32 vcc, v{vt3}, v{vt4}')
        a(f'v_cmp_u_f32 s[56:57], v{vt2}, v{vt2}')
        a('s_nop 4')
        a('s_or_b64 vcc, vcc, s[56:57]')
    def store_o(soff):
        a(f'v_rcp_f32 v{vt3}, v{vt2}')
        a(f's_lshr_b32 s{st0}, s{sHD}, 1')
        a(f's_lshl_b32 s{st0}, s{st0}, 10')
        a(f's_and_b32 s{st1}, s{sHD}, 1')
        a(f's_lshl_b32 s{st1}, s{st1}, 9')
        a(f's_add_u32 s{st0}, s{st0}, s{st1}')
        a(f's_add_u32 s{st0}, s{st0}, s{soff}')
        for i in range(12): a(f'v_mul_f32 v{vOa+i}, v{vOa+i}, v{vt3}')
        for i in range(6): a(f'v_cvt_pk_bf16_f32 v{vSa+i}, v{vOa+2*i}, v{vOa+2*i+1}')
        a(f'buffer_store_dwordx4 {vr(vSa,4)}, v{vOoff}, s[{sOo}:{sOo+3}], s{st0} offen {SCO}')
        a(f's_lshl_b32 s{st0}, s{sHD}, 7')
        a(f's_add_u32 s{st0}, s{st0}, s{soff+1}')
        a(f's_mov_b64 exec, s[{sLo}:{sLo+1}]')
        a(f'buffer_store_dwordx2 {vr(vSa+4,2)}, v{vOo2}, s[{sOo}:{sOo+3}], s{st0} offen {SCO}')
        a('s_mov_b64 exec, -1')
    def addr_add(s):
        for r in (vK1a,vK2a,vVa,vVb): a(f'v_add_u32 v{r}, s{s}, v{r}')
    def addr_addi(imm):
        for r in (vK1a,vK2a,vVa,vVb): a(f'v_add_u32 v{r}, {imm}, v{r}')
    def dma_row(k):
        a(f'buffer_load_dwordx4 v{vDma}, s[{sKV}:{sKV+3}], s{sOff} offen {SL} lds')
        a(f's_add_u32 s{sOff}, s{sOff}, s{sInc+(k&1)}')
        a(f's_mov_b32 m0, s{sOff}')
    def dma_pair():
        dma_row(0); dma_row(1)
    def prio_switch(phase,L):
        a(f's_cmp_lt_u32 s{sWV}, 4')
        a(f's_cbranch_scc{1-phase} {L}_hi')
        a('s_setprio 0')
        a(f's_branch {L}_d')
        a.lab(f'{L}_hi')
        a('s_setprio 1')
        a.lab(f'{L}_d')
    def expgroups(cur,A_,B_,C_,D_):
        A_()
        for r in range(0,4): ex(cur,r)
        B_()
        ex(cur,4); ex(cur,5); cv(cur,0); ex(cur,6); cv(cur,1); ex(cur,7)
        C_()
        ex(cur,8); cv(cur,2); ex(cur,9); cv(cur,3); ex(cur,10); ex(cur,11)
        D_()
        ex(cur,12); ex(cur,13); cv(cur,4); ex(cur,14); cv(cur,5); ex(cur,15); cv(cur,6); cv(cur,7)

    a('s_cmp_eq_u32 s49, 8')
    a('s_cbranch_scc1 L_p2_w8')
    a('s_waitcnt vmcnt(0)')
    a('s_branch L_p2_wd')
    a.lab('L_p2_w8')
    a('s_waitcnt vmcnt(8)')
    a.lab('L_p2_wd')
    a('s_barrier')
    p.stamp(7)
    at=Att(a)
    a(f's_cmp_lg_u32 s{sKH}, 0'); a('s_cbranch_scc1 L_b_up')
    cur4=(vK1a,vK2a,vVa,vVb)
    at.standin(cur4)
    addr_addi(4*TILE)
    rd_k1(vK1,0); rd_k2(vK2,0); rd_v(0,0)
    at.standin2()
    at.first_tile(0,TILE)
    a('s_branch L_b_go')
    a.lab('L_b_up')
    addr_addi(4*TILE)
    a.lab('L_b_go')
    a(f's_mov_b32 s{sIT}, 0')
    a.raw('.p2align 6')
    a.lab('L_b_loop')
    ool=[]
    def cond(it,L,fn):
        a(f's_cmp_eq_u32 s{sIT}, {it}'); a(f's_cbranch_scc1 {L}'); a.lab(L+'_r')
        ool.append((L,fn))
    for pp in range(4):
        off=pp*TILE
        dma_row(pp)
        at.key_tile(pp,(None,off+2*TILE),(None,off+TILE))
    a(f's_cmp_eq_u32 s{sIT}, 6'); a('s_cbranch_scc1 L_b_exit')
    a(f's_cmp_eq_u32 s{sIT}, 0'); a('s_cbranch_scc1 L_bb0')
    a(f's_cmp_eq_u32 s{sIT}, 1'); a('s_cbranch_scc1 L_bb1')
    a(f's_cmp_eq_u32 s{sIT}, 2'); a('s_cbranch_scc1 L_bb2')
    a(f's_cmp_eq_u32 s{sIT}, 4'); a('s_cbranch_scc1 L_bb1')
    a.lab('L_bb_r')
    def bb0():
        a('s_waitcnt vmcnt(4)'); a('s_barrier')
        a(f's_cmp_lg_u32 s{sWV}, 4'); a('s_cbranch_scc1 L_bb_r')
        a('s_cmp_lt_i32 s49, 0'); a('s_cbranch_scc0 L_bb_r')
        a('s_and_b32 s50, s49, 0x7fffffff')
        setflag(a,50)
        a('s_branch L_bb_r')
    def bb1():
        a(f's_mov_b32 s{sOff}, 200000'); a(f's_mov_b32 m0, 200000'); a(f's_mov_b32 s{sInc}, 0'); a(f's_mov_b32 s{sInc+1}, 0'); a(f's_mov_b32 s{sKV+2}, 0')
        a('s_branch L_bb_r')
    def bb2():
        a(f's_cmp_lg_u32 s{sWV}, 0'); a('s_cbranch_scc1 L_bb2a')
        gettok(a,'a',None)
        poll_f1(a,'a',0)
        a.lab('L_bb2a')
        a('s_waitcnt vmcnt(0)'); a('s_barrier')
        a(f's_add_u32 s{sKV}, s{sWS}, s{sAg}')
        a(f's_addc_u32 s{sKV+1}, s{sWS+1}, 0')
        a(f's_and_b32 s{sKV+1}, s{sKV+1}, 0xffff')
        a(f's_mov_b32 s{sKV+2}, 40960')
        a(f's_lshl_b32 s{sOff}, s{sWV}, 10')
        a(f's_sub_u32 s{sOff}, s{sOff}, {3*8192}')
        a(f's_mov_b32 m0, s{sOff}')
        a(f's_mov_b32 s{sInc}, 8192')
        a(f's_mov_b32 s{sInc+1}, 8192')
        a(f'buffer_load_dwordx2 {vr(vQA1,2)}, v{vQ1o}, s[{sR}:{sR+3}], s{sQA} offen {SL}')
        a(f'buffer_load_dwordx2 {vr(vQA1+2,2)}, v{vQ1o}, s[{sR}:{sR+3}], s{sQA} offen offset:512 {SL}')
        a(f'buffer_load_dwordx2 {vr(vQA2,2)}, v{vQ2o}, s[{sR}:{sR+3}], s{sQA} offen {SL}')
        a('s_branch L_bb_r')
    ool.append(('L_bb0',bb0)); ool.append(('L_bb1',bb1)); ool.append(('L_bb2',bb2))
    addr_addi(4*TILE)
    a(f's_add_u32 s{sIT}, s{sIT}, 1')
    a('s_branch L_b_loop')
    a.lab('L_b_exit')
    addr_addi(4*TILE)
    a('s_nop 1')
    pv(vOb,1,1)
    a('s_setprio 0')
    a('s_nop 15')
    p.stamp(8)
    a(f's_lshl_b32 s{st0}, s{sQP}, 1')
    a(f's_cmp_eq_u32 s{sKH}, 0')
    a('s_cbranch_scc0 L_mg_hi')
    a(f's_add_u32 s{st1}, s{st0}, 1')
    a(f's_mul_i32 s{st1}, s{st1}, 3072')
    a(f's_add_u32 s{st1}, s{st1}, {SCR}')
    a(f'v_add_u32 v{vt4}, s{st1}, v{vDma}')
    for i in range(3): a(f'ds_write_b128 v{vt4}, {vr(vOb+4*i,4)} offset:{1024*i}')
    a(f's_mul_i32 s{st1}, s{st0}, 3072')
    a('s_branch L_mg_d')
    a.lab('L_mg_hi')
    a(f's_mul_i32 s{st1}, s{st0}, 3072')
    a(f's_add_u32 s{st1}, s{st1}, {SCR}')
    a(f'v_add_u32 v{vt4}, s{st1}, v{vDma}')
    for i in range(3): a(f'ds_write_b128 v{vt4}, {vr(vOa+4*i,4)} offset:{1024*i}')
    for i in range(12): a(f'v_mov_b32 v{vOa+i}, v{vOb+i}')
    for i in range(4): a(f'v_mov_b32 v{vQa1+i}, v{vQb1+i}')
    a(f's_add_u32 s{st1}, s{st0}, 1')
    a(f's_mul_i32 s{st1}, s{st1}, 3072')
    a.lab('L_mg_d')
    a(f's_add_u32 s{st1}, s{st1}, {SCR}')
    a(f'v_add_u32 v{vt4}, s{st1}, v{vDma}')
    a('s_waitcnt lgkmcnt(0) vmcnt(0)')
    a('s_barrier')
    for i in range(3): a(f'ds_read_b128 {vr(vSa+4*i,4)}, v{vt4} offset:{1024*i}')
    a('s_waitcnt lgkmcnt(0)')
    a('s_barrier')
    for i in range(12): a(f'v_add_f32 v{vOa+i}, v{vOa+i}, v{vSa+i}')
    get_l()
    safety()
    a('s_cbranch_vccnz L_b_fallback')
    a.lab('L_b_store')
    store_o(sOB)
    p.stamp(9)
    a(f's_mul_i32 s{st0}, s{sWV}, {TILE}')
    a(f's_mul_i32 s{st1}, s{sKH}, {HALF}')
    a(f's_sub_u32 s{st0}, s{st0}, s{st1}')
    a(f's_sub_u32 s{st0}, s{st0}, {32*TILE}')
    addr_add(st0)
    a(f's_lshl_b32 s{st0}, s{sJ}, 3')
    a(f's_add_u32 s{st2}, s{st0}, s{sWV}')
    a(f's_lshl_b32 s{sOA}, s{st2}, 15')
    a(f's_lshl_b32 s{sOA+1}, s{st2}, 13')
    a(f's_add_u32 s{sOA+1}, s{sOA+1}, {128*16384}')
    for i in range(4): a(f'v_mov_b32 v{vQa1+i}, v{vQA1+i}')
    for i in range(2): a(f'v_mov_b32 v{vQa2+i}, v{vQA2+i}')
    a(f's_sub_u32 s{sSw}, 8, s{sWV}')
    a(f's_cmp_lg_u32 s{sJ}, 0')
    a(f's_cselect_b32 s{sSw}, 0, s{sSw}')
    vC=vCa; vO=vOa; vS=[vSa,vSb]
    KR=[(vV,vV+4),(vV+8,vV+12),(vP,vP+4)]
    SB=[vSa,vSb,vOa]
    sRedo=30; sWoEn=55
    def cmid_init(tag,val,first):
        a(f's_cmp_le_u32 s{sSw}, {first}')
        a(f's_cbranch_scc1 L_cm_{tag}_v')
        for r in range(16): a(f'v_mov_b32 v{vC+r}, {NEG_BIG:#x}')
        a(f's_branch L_cm_{tag}_d')
        a.lab(f'L_cm_{tag}_v')
        for r in range(16): a(f'v_mov_b32 v{vC+r}, {val}')
        a.lab(f'L_cm_{tag}_d')
    def cmid_switch(tag,t,val):
        L=f'L_sw_{tag}_{t}'
        a(f's_cmp_eq_u32 s{sSw}, {t}')
        a(f's_cbranch_scc1 {L}')
        a.lab(L+'_r')
        def fn():
            a('s_nop 15')
            for r in range(16): a(f'v_mov_b32 v{vC+r}, {val}')
            a('s_nop 1')
        ool.append((L,fn))
    wocnt=[0]
    def wo_dma():
        if wocnt[0]>=10: return
        n=wocnt[0]; wocnt[0]+=1
        a(f's_cmp_lg_u32 s{sWoEn}, 0')
        a(f's_cbranch_scc0 L_wo{n}')
        for k in range(2):
            a(f's_mov_b32 m0, s{sWl}')
            a(f's_add_u32 s{sWl}, s{sWl}, 5120')
            a(f'buffer_load_dwordx4 v{vWo}, s[{sWo}:{sWo+3}], s{sWn} offen lds')
            a(f's_add_u32 s{sWn}, s{sWn}, 40960')
        a.lab(f'L_wo{n}')
    def maxpass(tag,tiles,dma):
        cmid_init(tag,'0',max(1,tiles[0]))
        nb=len(tiles)//3
        for i in range(3):
            rd_k1(KR[i][0],tiles[i]*TILE); rd_k2(KR[i][1],tiles[i]*TILE)
        for b in range(nb):
            a('s_waitcnt lgkmcnt(0)')
            for i in range(3):
                t=tiles[3*b+i]
                if max(1,tiles[0])<t<=7: cmid_switch(tag,t,'0')
                C = vr(vMF,16) if t==0 else (vr(vML,16) if t==8 else vr(vC,16))
                qk1(SB[i],C,vQa1,KR[i][0]); qk2(SB[i],vQa2,KR[i][1])
            if b<nb-1:
                for i in range(3):
                    t=tiles[3*(b+1)+i]
                    rd_k1(KR[i][0],t*TILE); rd_k2(KR[i][1],t*TILE)
            else:
                rd_k1(vK1,0); rd_k2(vK2,0)
            if dma: wo_dma()
            a('s_nop 7')
            for i in range(3):
                if i==2: a('s_nop 3')
                rowmax(vM,SB[i],b==0 and i==0)
    a(f's_mov_b32 s{sRedo}, 0')
    a(f's_cmp_lt_u32 s{sWV}, 5')
    a(f's_cselect_b32 s{sWoEn}, 1, 0')
    maxpass('p1',[6,7,8],True)
    a.lab('L_a_p2')
    xhalf_max(vM)
    a(f'v_sub_f32 v{vM}, 0, v{vM}')
    for r in range(16): a(f'v_add_f32 v{vMF+r}, v{vMF+r}, v{vM}')
    for r in range(16): a(f'v_add_f32 v{vML+r}, v{vML+r}, v{vM}')
    cmid_init('p2',f'v{vM}',1)
    for r in range(16): a(f'v_mov_b32 v{vO+r}, 0')
    vinit()
    for i in range(4): a(f'v_mov_b32 v{vP+4+i}, 0')
    a('s_waitcnt lgkmcnt(0)')
    qk1(vS[0],vr(vMF,16),vQa1); qk2(vS[0],vQa2)
    rd_k1(vK1,TILE); rd_v(0,0); rd_k2(vK2,TILE)
    for t in range(9):
        last=(t==8); last2=(t==7); tn=t+1
        cur=vS[t&1]; nxt=vS[(t+1)&1]; off=t*TILE
        Cn = vr(vML,16) if tn==8 else vr(vC,16)
        a('s_waitcnt lgkmcnt(0)')
        if 2<=tn<=7: cmid_switch('p2',tn,f'v{vM}')
        wo_dma()
        def A_():
            if not last: qk1(nxt,Cn,vQa1)
            if not last and not last2: rd_k1(vK1,off+2*TILE)
        def B_():
            pv(vO,(t+1)&1,1)
            if not last: rd_v((t+1)&1,off+TILE)
        def C_():
            if not last: qk2(nxt,vQa2)
            if not last and not last2: rd_k2(vK2,off+2*TILE)
        expgroups(cur,A_,B_,C_,lambda: pv(vO,t&1,0))
    A_CHECK=True
    assert wocnt[0]==10
    a('s_nop 1')
    pv(vO,0,1)
    a('s_nop 15')
    a('s_nop 0')
    get_l()
    safety()
    a('s_cbranch_vccnz L_a_exact')
    a.lab('L_a_store')
    store_o(sOA)
    p.stamp(10)
    a('s_waitcnt vmcnt(0)')
    a('s_barrier')
    p.stamp(11)
    a(f's_cmp_lg_u32 s{sWV}, 4')
    a('s_cbranch_scc1 L_p3')
    a(f's_lshl_b32 s{st0}, s{sJ}, 12')
    a(f's_lshl_b32 s{st1}, s{sHD}, {FP2}')
    a(f's_add_u32 s{st0}, s{st0}, s{st1}')
    a(f's_add_u32 s{st0}, s{st0}, 65536')
    setflag(a,st0)
    a(f's_lshl_b32 s{st0}, s{sJ}, 12')
    a(f's_add_u32 s{st0}, s{st0}, {WS_FLG+65536}')
    a(f'v_and_b32 v{vt0}, 31, v{vLane}')
    a(f'v_lshlrev_b32 v{vt0}, {FP2}, v{vt0}')
    a(f'v_add_u32 v{vt0}, s{st0}, v{vt0}')
    if not NOPOLL3: poll(a,'p3',vt0,[0],(1<<32)-1)
    a('s_barrier')
    a('s_branch L_done')
    a.lab('L_a_exact')
    a(f's_cmp_lg_u32 s{sRedo}, 0')
    a('s_cbranch_scc1 L_a_store')
    a(f's_mov_b32 s{sRedo}, 1')
    a(f's_mov_b32 s{sWoEn}, 0')
    for r in range(16): a(f'v_sub_f32 v{vMF+r}, v{vMF+r}, v{vM}')
    for r in range(16): a(f'v_sub_f32 v{vML+r}, v{vML+r}, v{vM}')
    maxpass('p1x',[0,1,2,3,4,5,6,7,8],False)
    a('s_branch L_a_p2')
    for L,fn in ool:
        a.lab(L); fn()
        if not L.startswith('L_bb'): a(f's_branch {L}_r')
    a.lab('L_b_fallback')
    for i in range(2):
        a(f'v_mov_b32 v{vt4}, v{vQab+i}')
        a(f'v_mov_b32 v{vt5}, v{vQab+i}')
        a('s_nop 1')
        a(f'v_permlane32_swap_b32 v{vt4}, v{vt5}')
        a(f's_cmp_eq_u32 s{sKH}, 0')
        a('s_cselect_b64 s[56:57], -1, 0')
        a('s_nop 1')
        a(f'v_cndmask_b32 v{vt4}, v{vt5}, v{vt4}, s[56:57]')
        a(f'v_cndmask_b32 v{vQa2+i}, 0, v{vt4}, s[{sLo}:{sLo+1}]')
    a(f'v_lshlrev_b32 v{vt4}, 3, v{vRho}')
    a(f'v_add_u32 v{vt4}, 1024, v{vt4}')
    a(f'v_lshrrev_b32 v{vt0}, 5, v{vLane}')
    a(f'v_bfe_u32 v{vt5}, v{vRho}, 2, 2')
    a(f'v_xor_b32 v{vt5}, v{vt5}, v{vt0}')
    a(f'v_lshlrev_b32 v{vt5}, 4, v{vt5}')
    a(f'v_lshl_add_u32 v{vt5}, v{vRho}, 6, v{vt5}')
    a(f'v_add_u32 v{vt5}, 1280, v{vt5}')
    a(f'v_xor_b32 v{vt0}, 32, v{vt5}')
    a(f'v_mov_b32 v{vM}, {NEG_BIG:#x}')
    a(f's_mov_b32 s{st0}, s{sHB}')
    a(f's_mov_b32 s{sIT}, 64')
    a.lab('L_fb_p1')
    a(f'buffer_load_dwordx2 {vr(vK1,2)}, v{vQ1o}, s[{sR}:{sR+3}], s{st0} offen {SL}')
    a(f'buffer_load_dwordx2 {vr(vK1+2,2)}, v{vQ1o}, s[{sR}:{sR+3}], s{st0} offen offset:512 {SL}')
    a(f'buffer_load_dwordx2 {vr(vK2,2)}, v{vt4}, s[{sR}:{sR+3}], s{st0} offen {SL}')
    a('s_waitcnt vmcnt(0)')
    qk1(vSa,'0',vQa1); qk2(vSa,vQa2)
    a('s_nop 15')
    rowmax(vM,vSa,False)
    a(f's_add_u32 s{st0}, s{st0}, {TILE}')
    a(f's_sub_u32 s{sIT}, s{sIT}, 1')
    a(f's_cmp_lg_u32 s{sIT}, 0')
    a('s_cbranch_scc1 L_fb_p1')
    xhalf_max(vM)
    for r in range(16): a(f'v_sub_f32 v{vCa+r}, 0, v{vM}')
    for r in range(16): a(f'v_mov_b32 v{vOa+r}, 0')
    a(f's_mov_b32 s{st0}, s{sHB}')
    a(f's_mov_b32 s{sIT}, 64')
    a.lab('L_fb_p2')
    a(f'buffer_load_dwordx2 {vr(vK1,2)}, v{vQ1o}, s[{sR}:{sR+3}], s{st0} offen {SL}')
    a(f'buffer_load_dwordx2 {vr(vK1+2,2)}, v{vQ1o}, s[{sR}:{sR+3}], s{st0} offen offset:512 {SL}')
    a(f'buffer_load_dwordx2 {vr(vK2,2)}, v{vt4}, s[{sR}:{sR+3}], s{st0} offen {SL}')
    a(f's_mov_b64 exec, s[{sVm}:{sVm+1}]')
    a(f'buffer_load_dwordx4 {vr(vV,4)}, v{vt5}, s[{sR}:{sR+3}], s{st0} offen {SL}')
    a(f'buffer_load_dwordx4 {vr(vV+4,4)}, v{vt0}, s[{sR}:{sR+3}], s{st0} offen {SL}')
    a('s_mov_b64 exec, -1')
    a('s_waitcnt vmcnt(0)')
    qk1(vSa,vr(vCa,16),vQa1); qk2(vSa,vQa2)
    a('s_nop 15')
    for r in range(16): ex(vSa,r)
    a('s_nop 0')
    for c in range(8): cv(vSa,c)
    a('s_nop 1')
    pv(vOa,0,0); pv(vOa,0,1)
    a(f's_add_u32 s{st0}, s{st0}, {TILE}')
    a(f's_sub_u32 s{sIT}, s{sIT}, 1')
    a(f's_cmp_lg_u32 s{sIT}, 0')
    a('s_cbranch_scc1 L_fb_p2')
    a('s_nop 15')
    get_l()
    a('s_branch L_b_store')
    return vEnd, dict(sHD=sHD,sJ=sJ)

def phase3(a,p,info,ROT3=3,XD=6):
    WOFF=40960
    sHD,sJ=info['sHD'],info['sJ']
    sX,sO=4,8
    st0,st1,st2,st3=20,21,22,23
    sPH=28; sBR=29; sMT=30; sNT=31
    vLane=1; vXo=2; vt0=4; vt1=5; vt2=6; vt3=7; vTok=8; vG=9; vTr=10; vOut=11; vTp=12; vTq=14; vX2=3
    vX=16; vWf=vX+160; vAcc=vWf+40; vEnd=vAcc+40
    a.lab('L_p3')
    a(f's_cmp_ge_u32 s{sWV}, 4')
    a('s_cbranch_scc1 L_done')
    a('s_load_dwordx2 s[50:51], s[0:1], 48')
    a(f's_lshr_b32 s{sBR}, s{sHD}, 4')
    a(f's_bfe_u32 s{st0}, s{sHD}, 0x10003')
    a(f's_lshl_b32 s{sMT}, s{sJ}, 1')
    a(f's_add_u32 s{sMT}, s{sMT}, s{st0}')
    a(f's_and_b32 s{sNT}, s{sHD}, 7')
    a(f's_and_b32 s{sPH}, s{sHD}, {ROT3}')
    a(f'v_and_b32 v{vTok}, 15, v{vLane}')
    a(f'v_lshrrev_b32 v{vG}, 4, v{vLane}')
    a(f'v_lshlrev_b32 v{vXo}, 4, v{vLane}')
    a(f'v_lshlrev_b32 v{vX2}, 3, v{vLane}')
    a(f's_lshl_b32 s{st0}, s{sMT}, 3')
    a(f's_lshl_b32 s{st1}, s{sWV}, 1')
    a(f's_add_u32 s{st0}, s{st0}, s{st1}')
    a(f's_lshl_b32 s32, s{st0}, 14')
    a(f's_lshl_b32 s36, s{st0}, 12')
    a(f's_add_u32 s36, s36, {128*16384}')
    a(f's_add_u32 s37, s36, 4096')
    a(f's_mul_i32 s{st0}, s{sBR}, {2048*1280}')
    a(f's_add_u32 s{st0}, s{st0}, {WS_O}')
    a(f's_add_u32 s52, s{sWS}, s{st0}')
    a(f's_addc_u32 s53, s{sWS+1}, 0')
    srd(a,sX,52,53,2048*1280)
    a(f'v_bfe_u32 v{vt0}, v{vLane}, 2, 2')
    a(f'v_mul_u32_u24 v{vt0}, 160, v{vt0}')
    a(f'v_and_b32 v{vt1}, 3, v{vLane}')
    a(f'v_lshl_add_u32 v{vt0}, v{vt1}, 3, v{vt0}')
    a(f'v_add_u32 v{vt0}, {WOFF}, v{vt0}')
    a(f'v_lshrrev_b32 v{vt1}, 1, v{vG}')
    a(f'v_mul_u32_u24 v{vt1}, 5, v{vt1}')
    a(f'v_and_b32 v{vt2}, 1, v{vG}')
    a(f'v_add_u32 v{vt1}, v{vt1}, v{vt2}')
    a(f'v_mul_u32_u24 v{vt1}, 640, v{vt1}')
    a(f'v_add_u32 v{vTr}, v{vt0}, v{vt1}')
    a(f'v_mul_u32_u24 v{vt1}, {5*640}, v{vG}')
    a(f'v_add3_u32 v{vTq}, v{vt0}, v{vt1}, 0')
    a(f'v_add_u32 v{vTq}, {4*640}, v{vTq}')
    for i in range(40): a(f'v_mov_b32 v{vAcc+i}, 0')
    a(f's_lshl_b32 s{st0}, s{sMT}, 7')
    a(f's_lshl_b32 s{st1}, s{sWV}, 5')
    a(f's_add_u32 s{st0}, s{st0}, s{st1}')
    a(f'v_add_u32 v{vt0}, s{st0}, v{vTok}')
    a(f'v_mul_u32_u24 v{vt0}, 2560, v{vt0}')
    a(f'v_and_b32 v{vt1}, 1, v{vG}')
    a(f'v_lshlrev_b32 v{vt1}, 5, v{vt1}')
    a(f'v_lshrrev_b32 v{vt2}, 1, v{vG}')
    a(f'v_lshl_add_u32 v{vt1}, v{vt2}, 4, v{vt1}')
    a(f'v_add_u32 v{vOut}, v{vt0}, v{vt1}')
    a(f'v_lshl_add_u32 v{vt3}, v{vG}, 3, v{vt0}')
    a('s_barrier')
    p.stamp(12)
    a(f's_mov_b32 s33, s{sPH}')
    for ph in range(4):
        a(f's_lshl_b32 s{st0}, s33, 12')
        a(f's_add_u32 s{40+2*ph}, s32, s{st0}')
        a(f's_add_u32 s{41+2*ph}, s{40+2*ph}, 16384')
        a('s_add_u32 s33, s33, 1')
        a('s_and_b32 s33, s33, 3')
    def xloads(st):
        L=[]
        if st<16:
            for u in range(2):
                L.append(f'buffer_load_dwordx4 {vr(vX+(st*2+u)*4,4)}, v{vXo}, s[{sX}:{sX+3}], s{40+2*(st//4)+u} offen offset:{(st%4)*1024} {SL}')
        elif st<20:
            for u in range(2):
                for hh in range(2):
                    L.append(f'buffer_load_dwordx2 {vr(vX+(st*2+u)*4+2*hh,2)}, v{vX2}, s[{sX}:{sX+3}], s{36+u} offen offset:{(st-16)*1024+hh*512} {SL}')
        return L
    for st in range(XD):
        for l in xloads(st): a(l)
    if BPROF==3: p.stamp(1,force=True)
    a('s_waitcnt lgkmcnt(0)')
    srd(a,sO,50,51,2048*2560)
    def trr(s,cp,h):
        buf=vWf+(s&1)*20+cp*4+2*h
        if s<16: return f'ds_read_b64_tr_b16 {vr(buf,2)}, v{vTp+((s//4)&1)} offset:{(s%4)*6400+cp*32+h*1280}'
        o=(s-16)*25600+cp*32+h*12800
        if o<65536: return f'ds_read_b64_tr_b16 {vr(buf,2)}, v{vTq} offset:{o}'
        return f'ds_read_b64_tr_b16 {vr(buf,2)}, v{vTq+1} offset:{o-51200}'
    def setp(ph):
        a(f's_mul_i32 s{st0}, s{sPH}, {4*6400}')
        a(f'v_add_u32 v{vTp+(ph&1)}, s{st0}, v{vTr}')
        a(f's_add_u32 s{sPH}, s{sPH}, 1')
        a(f's_and_b32 s{sPH}, s{sPH}, 3')
    a(f'v_add_u32 v{vTq+1}, 51200, v{vTq}')
    setp(0)
    for cp in range(5):
        a(trr(0,cp,0)); a(trr(0,cp,1))
    nl=lambda st: len(xloads(st))
    for s in range(20):
        if s%4==0 and s//4+1<4: setp(s//4+1)
        nxt=[trr(s+1,cp,h) for cp in range(5) for h in range(2)] if s+1<20 else []
        xl=xloads(s+XD)
        buf=vWf+(s&1)*20
        younger=sum(nl(t) for t in range(s+1,min(s+XD,20)))
        a(f's_waitcnt lgkmcnt(0) vmcnt({younger})')
        if BPROF==3 and s in (0,4,8,12,16,19): p.stamp(2+(0,4,8,12,16,19).index(s),force=True)
        k=0
        for cp in range(5):
            for u in range(2):
                ac=vAcc+(cp*2+u)*4
                a(f'v_mfma_f32_16x16x32_bf16 {vr(ac,4)}, {vr(buf+cp*4,4)}, {vr(vX+(s*2+u)*4,4)}, {vr(ac,4)}')
                for _ in range(2 if k<5 else 0):
                    if nxt: a(nxt.pop(0))
                if k>=5 and xl: a(xl.pop(0))
                k+=1
        assert not xl
    a('s_nop 7')
    p.stamp(13)
    a(f's_mul_i32 s{st0}, s{sBR}, 1280')
    a(f's_mul_i32 s{st1}, s{sNT}, 160')
    a(f's_add_u32 s{st0}, s{st0}, s{st1}')
    a(f's_add_u32 s{st1}, s{st0}, {16*2560}')
    for u in range(2):
        for cp in range(5):
            b=vAcc+(cp*2+u)*4
            a(f'v_cvt_pk_bf16_f32 v{b}, v{b}, v{b+1}')
            a(f'v_cvt_pk_bf16_f32 v{b+1}, v{b+2}, v{b+3}')
        for cp in (0,2):
            b=vAcc+(cp*2+u)*4; b2=vAcc+((cp+1)*2+u)*4
            a(f'v_mov_b32 v{b+2}, v{b2}')
            a(f'v_mov_b32 v{b+3}, v{b2+1}')
            a('s_nop 1')
            a(f'v_permlane16_swap_b32 v{b}, v{b+2}')
            a(f'v_permlane16_swap_b32 v{b+1}, v{b+3}')
            a('s_nop 1')
            a(f'buffer_store_dwordx4 {vr(b,4)}, v{vOut}, s[{sO}:{sO+3}], s{st0+u} offen offset:{cp*32} {SO}')
        b=vAcc+(4*2+u)*4
        a(f'buffer_store_dwordx2 {vr(b,2)}, v{vt3}, s[{sO}:{sO+3}], s{st0+u} offen offset:128 {SO}')
    return vEnd

def build(**kw):
    a=A(); p=Prof(a)
    a.raw(f'.globl {KNAME}'); a.raw('.p2align 8'); a.raw(f'.type {KNAME},@function'); a.lab(KNAME)
    a('s_cmp_ge_u32 s2, 256')
    a('s_cbranch_scc1 L_exit')
    p.real(0); p.stamp(0)
    a(f's_load_dwordx4 s[{sDBG}:{sDBG+3}], s[0:1], 56' if False else f's_load_dwordx2 s[{sDBG}:{sDBG+1}], s[0:1], 56')
    a(f's_load_dwordx2 s[{sWS}:{sWS+1}], s[0:1], 64')
    a('s_load_dwordx4 s[16:19], s[0:1], 0')
    a('s_load_dwordx4 s[20:23], s[0:1], 24')
    a(f's_mov_b32 s{sWG}, s2')
    a('v_lshrrev_b32 v2, 6, v0')
    a('s_nop 0')
    a(f'v_readfirstlane_b32 s{sWV}, v2')
    a(f's_cmp_lg_u32 s{sWG}, 0')
    a('s_cbranch_scc1 L_notok')
    a(f's_cmp_lg_u32 s{sWV}, 4')
    a('s_cbranch_scc1 L_notok')
    a('s_memrealtime s[56:57]')
    a('s_waitcnt lgkmcnt(0)')
    a('s_or_b32 s56, s56, 1')
    a('s_mov_b64 exec, 1')
    a('v_mov_b32 v2, 0')
    a('v_mov_b32 v3, s56')
    a(f'global_store_dword v2, v3, s[{sDBG}:{sDBG+1}] sc1')
    a('s_mov_b64 exec, -1')
    a.lab('L_notok')
    if CPF:
        a(f's_cmp_lg_u32 s{sWV}, 5')
        a('s_cbranch_scc1 L_nocpf')
        a('s_getpc_b64 s[56:57]')
        a.lab('L_pc')
        a(f's_lshr_b32 s58, s{sWG}, 3')
        a('s_and_b32 s58, s58, 31')
        a('s_lshl_b32 s58, s58, 10')
        a('v_and_b32 v2, 63, v0')
        a('v_lshlrev_b32 v2, 4, v2')
        a('v_add_u32 v2, s58, v2')
        a(f'v_min_u32 v2, CODE_BYTES-16, v2')
        a('global_load_dwordx4 v[84:87], v2, s[56:57]')
        a.lab('L_nocpf')
    v1=phase1(a,p,**kw.get('p1',{}))
    v2,info=phase2(a,p,**kw.get('p2',{}))
    v3=phase3(a,p,info,**kw.get('p3',{}))
    a.lab('L_done')
    if PROF:
        a('s_waitcnt vmcnt(0)')
        p.real(1); p.dump()
    a('s_endpgm')
    a.lab('L_exit')
    a('s_endpgm')
    a.lab('L_code_end')
    a.raw('.set CODE_BYTES, (L_code_end - L_pc) & 0xfffffff0' if CPF else '')
    vg=max(v1,v2,v3)
    desc=f'''.section .rodata,"a"
.p2align 6
.amdhsa_kernel {KNAME}
  .amdhsa_next_free_vgpr {vg}
  .amdhsa_next_free_sgpr 102
  .amdhsa_accum_offset {(vg+3)//4*4}
  .amdhsa_group_segment_fixed_size 0
  .amdhsa_kernarg_size 72
  .amdhsa_user_sgpr_count 2
  .amdhsa_user_sgpr_kernarg_segment_ptr 1
  .amdhsa_system_sgpr_workgroup_id_x 1
.end_amdhsa_kernel
'''
    hdr=open('cdna_kernels/'+NAME+'.s.ref').read().split('\n')
    out=[]
    for l in hdr:
        if l.startswith('; @launch'): out.append('; @launch grid=(256,1,1) block=(512,1,1) lds=163840'); continue
        if not l.startswith(';'): break
        out.append(l)
    out += [
     '; One persistent launch, one workgroup per CU, three phases chained by flags in d_ws (tagged with a per-launch token kept in d_debug[0]):',
     ';  1. QKV projections (128x128 tiles, branch B tile then branch A tile; waves 4-7 stage X/W by LDS-DMA, waves 0-3 run the MFMAs);',
     ';     Q (pre-scaled by log2(e)/sqrt(20)), K and V are written as MFMA fragment images.',
     ';  2. attention per (head, 256 queries): full attention for B (64 queries per wave, key range split over wave pairs and merged),',
     ';     sliding window for A.  Softmax subtracts the max of a sample of the keys of the row; if the row sum shows that this',
     ';     stand-in was unsafe (>= 2^100 or NaN) the tile is recomputed with the exact row max.',
     ';  3. output projection (128 tokens x 80 columns per workgroup).']
    out.append('.amdgcn_target "amdgcn-amd-amdhsa--gfx950"'); out.append('.text')
    return '\n'.join(out)+'\n'+a.txt()+desc

if __name__=='__main__':
    if len(sys.argv)>2 and sys.argv[2]=='prof': PROF=True
    kw=eval(sys.argv[3]) if len(sys.argv)>3 else {}
    if 'CPF' in kw: CPF=kw.pop('CPF')
    if 'JMAP' in kw: JMAP=kw.pop('JMAP')
    if 'NOPOLL3' in kw: NOPOLL3=kw.pop('NOPOLL3')
    if 'RT' in kw: RT=kw.pop('RT')
    if 'BPROF' in kw: BPROF=kw.pop('BPROF')
    if 'POLL' in kw: POLLC.update(kw.pop('POLL'))
    if 'SCO' in kw: SCO=kw.pop('SCO')
    if 'SO' in kw: SO=kw.pop('SO')
    if 'SL' in kw: SL=kw.pop('SL')
    if 'SC' in kw: SC=kw.pop('SC')
    open(sys.argv[1],'w').write(build(**kw))
```

```python
import sys, math, struct
NAME='concat_heads__sliding_block__mha_block__prompt'
KNAME=NAME+'_kernel'
WS_Q=0
WS_KV=2*32*64*1280
WS_O=WS_KV+2*32*64*2560
WS_END=WS_O+2*2048*1280
WS_FLG=WS_END
CSCALE=(20.0**-0.5)*math.log2(math.e)
NEG_BIG=0xf149f2ca
def f32bits(x): return struct.unpack('<I',struct.pack('<f',x))[0]
class A:
    def __init__(s): s.l=[]
    def __call__(s,x): s.l.append('  '+x)
    def lab(s,x): s.l.append(x+':')
    def raw(s,x): s.l.append(x)
    def txt(s): return '\n'.join(s.l)+'\n'
def vr(a,n=1): return f'v{a}' if n==1 else f'v[{a}:{a+n-1}]'
PROF=False
BPROF=False
NOPOLL3=False
JMAP=False
CPF=True
RT=False
PROF_BASE=32<<20
NST=16
class Prof:
    def __init__(s,a): s.a=a; s.n=0
    def stamp(s,i=None,force=False):
        if not PROF: return
        if BPROF==2 and not force and i not in (0,7,8): return
        if BPROF==3 and not force and i not in (0,12,13): return
        if i is None: i=s.n
        s.n=max(s.n,i+1)
        assert i<14
        s.a(f's_memrealtime s[{60+2*i}:{61+2*i}]' if RT else f's_memtime s[{60+2*i}:{61+2*i}]')
    def real(s,idx):
        if PROF: s.a(f's_memrealtime s[{88+2*idx}:{89+2*idx}]')
    def dump(s):
        if not PROF: return
        a=s.a
        a('s_waitcnt lgkmcnt(0) vmcnt(0)')
        a(f's_lshl_b32 s92, s{sWG}, 3')
        a(f's_add_u32 s92, s92, s{sWV}')
        a('s_lshl_b32 s92, s92, 6')
        a(f's_add_u32 s92, s92, {PROF_BASE}')
        a(f's_add_u32 s94, s{sWS}, s92')
        a(f's_addc_u32 s95, s{sWS+1}, 0')
        a('v_mov_b32 v0, 0')
        a('s_mov_b64 exec, 1')
        for i in range(14):
            a(f'v_mov_b32 v1, s{60+2*i}')
            a(f'global_store_dword v0, v1, s[94:95] offset:{4*i}')
        a('v_mov_b32 v1, s88'); a('global_store_dword v0, v1, s[94:95] offset:56')
        a('v_mov_b32 v1, s90'); a('global_store_dword v0, v1, s[94:95] offset:60')
        a('s_waitcnt vmcnt(0)')
sWG=96; sWV=97; sDBG=98; sWS=100; sTOK=59
def srd(a, d, lo, hi, nbytes):
    a(f's_mov_b32 s{d}, s{lo}')
    a(f's_and_b32 s{d+1}, s{hi}, 0xffff')
    a(f's_mov_b32 s{d+2}, {nbytes}')
    a(f's_mov_b32 s{d+3}, 0x20000')

SC='sc1'
SL=''
SO=''
SCO='sc1'

TILE=2560; HALF=81920
P2M=212
P2C=list(range(244,256))
def head_j(a,sH,sJ_,t0,t1):
    if JMAP:
        a(f's_lshr_b32 s{sH}, s{sWG}, 3')
        a(f's_and_b32 s{sJ_}, s{sWG}, 7')
        return
    a(f's_and_b32 s{t0}, s{sWG}, 7')
    a(f's_lshr_b32 s{t1}, s{sWG}, 3')
    a(f's_lshl_b32 s{sH}, s{t0}, 2')
    a(f's_lshr_b32 s{t0}, s{t1}, 3')
    a(f's_add_u32 s{sH}, s{sH}, s{t0}')
    a(f's_and_b32 s{sJ_}, s{t1}, 7')
def q_prep(a):
    head_j(a,50,51,52,53)
    a('s_lshl_b32 s50, s50, 6')
    a('s_lshl_b32 s51, s51, 3')
    a('s_add_u32 s50, s50, s51')
    a(f's_and_b32 s51, s{sWV}, 3')
    a('s_lshl_b32 s51, s51, 1')
    a('s_add_u32 s50, s50, s51')
    a('s_mul_i32 s50, s50, 1280')
    a(f's_add_u32 s50, s50, {32*64*1280}')
    a('s_add_u32 s51, s50, 1280')
    srd(a,52,sWS,sWS+1,WS_O)
    a('v_and_b32 v5, 31, v1')
    a('v_lshlrev_b32 v5, 3, v5')
    a('v_lshrrev_b32 v4, 5, v1')
    a('v_mul_u32_u24 v33, 1280, v4')
    a('v_lshl_add_u32 v4, v4, 8, v5')
    a('v_add3_u32 v5, v5, v33, 0')
    a('v_add_u32 v5, 1024, v5')
def q_loads(a):
    for (r1,so) in ((16,50),(24,51)):
        a(f'buffer_load_dwordx2 v[{r1}:{r1+1}], v4, s[52:55], s{so} offen {SL}')
        a(f'buffer_load_dwordx2 v[{r1+2}:{r1+3}], v4, s[52:55], s{so} offen offset:512 {SL}')
    a(f'buffer_load_dwordx2 v[20:21], v5, s[52:55], s50 offen {SL}')
def q_issue(a):
    q_prep(a); q_loads(a)
def kv_first(a,pieces,rows=(0,HALF,8192,HALF+8192)):
    head_j(a,50,51,52,53)
    a(f's_mul_i32 s50, s50, {64*TILE}')
    a(f's_add_u32 s50, s50, {WS_KV+32*64*TILE}')
    a(f's_add_u32 s52, s{sWS}, s50')
    a(f's_addc_u32 s53, s{sWS+1}, 0')
    a('s_and_b32 s53, s53, 0xffff')
    a('s_mov_b32 s54, 163840')
    a('s_mov_b32 s55, 0x20000')
    a('v_lshlrev_b32 v2, 4, v1')
    for row in rows:
        for pc in pieces:
            a(f's_add_u32 m0, s{pc[0]}, {row+pc[1]}')
            a(f's_add_u32 s50, s{pc[0]}, {row+pc[1]}')
            a(f'buffer_load_dwordx4 v2, s[52:55], s50 offen {SL} lds')
def poll_f1(a,tag,br):
    head_j(a,50,51,52,53)
    a('s_mul_i32 s50, s50, 20')
    a('s_lshr_b32 s51, s50, 7')
    a('s_add_u32 s50, s50, 19')
    a('s_lshr_b32 s50, s50, 7')
    a('s_sub_u32 s50, s50, s51')
    a('v_bfe_u32 v2, v1, 4, 1')
    a('v_mul_u32_u24 v2, s50, v2')
    a('v_add_u32 v2, s51, v2')
    a('v_lshrrev_b32 v5, 5, v1')
    a('v_mul_u32_u24 v5, 5, v5')
    a('v_add_u32 v5, v5, v2')
    a('v_add_u32 v14, 10, v2')
    a('v_and_b32 v2, 15, v1')
    a('v_lshl_add_u32 v5, v5, 4, v2')
    a('v_lshl_add_u32 v14, v14, 4, v2')
    a('v_lshlrev_b32 v5, 7, v5')
    a('v_lshlrev_b32 v14, 7, v14')
    a(f'v_add_u32 v5, {WS_FLG+br*15*16*128}, v5')
    a(f'v_add_u32 v14, {WS_FLG+br*15*16*128}, v14')
    poll2(a,tag,5,14,(1<<64)-1)

def p2_early(a,tag):
    vLane=1; vt0=2; vt1=3; vt2=4; vt3=5; vCc=6; st0=50; sTm=52; sJ=51; sLo=56
    vK1a,vK2a,vVa,vVb,vDma,vRho,vOoff,vOo2,vQ1o,vQ2o,vWo,vKap=P2C
    vMF=P2M; vML=P2M+16
    head_j(a,50,sJ,52,53)
    a(f'v_lshlrev_b32 v{vDma}, 4, v{vLane}')
    a(f'v_and_b32 v{vRho}, 31, v{vLane}')
    a(f'v_lshlrev_b32 v{vt1}, 3, v{vRho}')
    a(f'v_add_u32 v{vK2a}, 1024, v{vt1}')
    a(f'v_mov_b32 v{vt2}, 0x70000000')
    a(f'v_cmp_gt_u32 s[{sLo}:{sLo+1}], 32, v{vLane}')
    a('s_nop 1')
    a(f'v_cndmask_b32 v{vQ2o}, v{vt2}, v{vK2a}, s[{sLo}:{sLo+1}]')
    a(f'v_lshrrev_b32 v{vt0}, 5, v{vLane}')
    a(f'v_lshlrev_b32 v{vK1a}, 3, v{vRho}')
    a(f'v_lshl_add_u32 v{vK1a}, v{vt0}, 8, v{vK1a}')
    a(f'v_mov_b32 v{vQ1o}, v{vK1a}')
    a(f'v_bfe_u32 v{vt1}, v{vRho}, 2, 2')
    a(f'v_xor_b32 v{vt1}, v{vt1}, v{vt0}')
    a(f'v_lshlrev_b32 v{vt1}, 4, v{vt1}')
    a(f'v_lshl_add_u32 v{vVa}, v{vRho}, 6, v{vt1}')
    a(f'v_add_u32 v{vVa}, 1280, v{vVa}')
    a(f'v_xor_b32 v{vVb}, 32, v{vVa}')
    a(f'v_and_b32 v{vt1}, 1, v{vRho}')
    a(f'v_lshlrev_b32 v{vKap}, 4, v{vt1}')
    a(f'v_lshrrev_b32 v{vt1}, 4, v{vRho}')
    a(f'v_lshl_or_b32 v{vKap}, v{vt1}, 3, v{vKap}')
    a(f'v_and_b32 v{vt1}, 4, v{vRho}')
    a(f'v_or_b32 v{vKap}, v{vKap}, v{vt1}')
    a(f'v_bfe_u32 v{vt1}, v{vRho}, 3, 1')
    a(f'v_lshl_or_b32 v{vKap}, v{vt1}, 1, v{vKap}')
    a(f'v_bfe_u32 v{vt1}, v{vRho}, 1, 1')
    a(f'v_or_b32 v{vKap}, v{vKap}, v{vt1}')
    a(f'v_lshlrev_b32 v{vt3}, 2, v{vt0}')
    a(f'v_sub_u32 v{vt3}, v{vKap}, v{vt3}')
    a(f'v_mov_b32 v{vt2}, {NEG_BIG:#x}')
    for r in range(16):
        base=(r&3)+8*(r>>2)
        kb=16*(r&1)+8*((r>>3)&1)+2*((r>>2)&1)+((r>>1)&1)
        if r>=2:
            q=r-2
            a(f'v_cndmask_b32 v{vMF+q}, v{vt2}, 0, s[{sTm+2*(q&1)}:{sTm+1+2*(q&1)}]')
            a(f'v_cndmask_b32 v{vML+q}, 0, v{vt2}, s[{sTm+2*(q&1)}:{sTm+1+2*(q&1)}]')
        a(f'v_cmp_gt_i32 s[{sTm+2*(r&1)}:{sTm+1+2*(r&1)}], {kb}, v{vt3}')
        if r==0: a('s_nop 0')
        if r==1: a('s_nop 1')
    a('s_nop 1')
    for q in (14,15):
        a(f'v_cndmask_b32 v{vMF+q}, v{vt2}, 0, s[{sTm+2*(q&1)}:{sTm+1+2*(q&1)}]')
        a(f'v_cndmask_b32 v{vML+q}, 0, v{vt2}, s[{sTm+2*(q&1)}:{sTm+1+2*(q&1)}]')
    a(f's_cmp_lg_u32 s{sJ}, 0')
    a(f's_cbranch_scc1 L_mf_ok_{tag}')
    for r in range(16): a(f'v_mov_b32 v{vMF+r}, v{vt2}')
    a.lab(f'L_mf_ok_{tag}')
    a(f'v_lshrrev_b32 v{vt1}, 4, v{vKap}')
    a(f'v_and_b32 v{vt2}, 15, v{vKap}')
    a(f'v_lshlrev_b32 v{vOoff}, 14, v{vt1}')
    a(f'v_lshl_add_u32 v{vOoff}, v{vt2}, 4, v{vOoff}')
    a(f'v_lshrrev_b32 v{vt3}, 5, v{vLane}')
    a(f'v_lshl_add_u32 v{vOoff}, v{vt3}, 8, v{vOoff}')
    a(f'v_lshlrev_b32 v{vOo2}, 12, v{vt1}')
    a(f'v_lshl_add_u32 v{vOo2}, v{vt2}, 3, v{vOo2}')
    a(f's_lshl_b32 s{st0}, s{sWV}, 6')
    a(f'v_add_u32 v{vt0}, s{st0}, v{vLane}')
    a(f'v_mul_u32_u24 v{vt1}, 52429, v{vt0}')
    a(f'v_lshrrev_b32 v{vt1}, 19, v{vt1}')
    a(f'v_mul_u32_u24 v{vt2}, 10, v{vt1}')
    a(f'v_sub_u32 v{vCc}, v{vt0}, v{vt2}')
    a(f'v_mul_u32_u24 v{vt1}, 1280, v{vt1}')
    a(f'v_lshl_add_u32 v{vWo}, v{vCc}, 4, v{vt1}')


class Att:
    def __init__(s,a):
        s.a=a
        s.vK1a,s.vK2a,s.vVa,s.vVb,s.vDma,s.vRho,s.vOoff,s.vOo2,s.vQ1o,s.vQ2o,s.vWo,s.vKap=P2C
        s.vt1=3; s.vM=10; s.vMb=35
        s.vQa1=16; s.vQab=20; s.vQa2=22; s.vQb1=24; s.vK1=28; s.vK2=32
        s.vV=36; s.vP=52; s.vSa=64; s.vSb=80; s.vOa=96; s.vOb=112; s.vCa=128; s.vCb=144; s.vS1=160
        s.sVm=24; s.sTm=40
    def rd_k1(s,dst,off,ad=None):
        assert off%512==0 and off//512+1<256
        s.a(f'ds_read2st64_b64 {vr(dst,4)}, v{s.vK1a if ad is None else ad} offset0:{off//512} offset1:{off//512+1}')
    def rd_k2(s,dst,off,ad=None): s.a(f'ds_read_b64 {vr(dst,2)}, v{s.vK2a if ad is None else ad} offset:{off}')
    def rd_v(s,buf,off,ada=None,adb=None):
        a=s.a
        a(f's_mov_b64 exec, s[{s.sVm}:{s.sVm+1}]')
        a(f'ds_read_b128 {vr(s.vV+8*buf,4)}, v{s.vVa if ada is None else ada} offset:{off}')
        a(f'ds_read_b128 {vr(s.vV+8*buf+4,4)}, v{s.vVb if adb is None else adb} offset:{off}')
        a('s_mov_b64 exec, -1')
    def qk1(s,S,C,Q1,K=None): s.a(f'v_mfma_f32_32x32x16_bf16 {vr(S,16)}, {vr(s.vK1 if K is None else K,4)}, {vr(Q1,4)}, {C}')
    def qk2(s,S,Q2,K=None): s.a(f'v_mfma_f32_32x32x8bf16_1k {vr(S,16)}, {vr(s.vK2 if K is None else K,2)}, {vr(Q2,2)}, {vr(S,16)}')
    def qk2b(s,S): s.a(f'v_mfma_f32_32x32x4bf16_1k {vr(S,32)}, {vr(s.vK2,2)}, {vr(s.vQab,2)}, {vr(S,32)}')
    def pv(s,O,buf,t): s.a(f'v_mfma_f32_32x32x16_bf16 {vr(O,16)}, {vr(s.vV+8*buf+4*t,4)}, {vr(s.vP+4*t,4)}, {vr(O,16)}')
    def ex(s,S,r): s.a(f'v_exp_f32 v{S+r}, v{S+r}')
    def cv(s,S,c): s.a(f'v_cvt_pk_bf16_f32 v{s.vP+c}, v{S+2*c}, v{S+2*c+1}')
    def rowmax(s,M,S,first):
        a=s.a
        if first:
            a(f'v_max3_f32 v{M}, v{S}, v{S+1}, v{S+2}'); rest=list(range(3,16))
        else: rest=list(range(16))
        while len(rest)>=2:
            a(f'v_max3_f32 v{M}, v{M}, v{S+rest[0]}, v{S+rest[1]}'); rest=rest[2:]
        if rest: a(f'v_max_f32 v{M}, v{M}, v{S+rest[0]}')
    def xhalf_max(s,M):
        a=s.a
        a(f'v_mov_b32 v{s.vt1}, v{M}')
        a('s_nop 1')
        a(f'v_permlane32_swap_b32 v{M}, v{s.vt1}')
        a('s_nop 1')
        a(f'v_max_f32 v{M}, v{M}, v{s.vt1}')
    def vinit(s):
        a=s.a
        a(f'v_cmp_eq_u32 s[{s.sTm}:{s.sTm+1}], 20, v{s.vRho}')
        a(f'v_mov_b32 v{s.vt1}, 0x3f803f80')
        a('s_nop 0')
        a(f'v_cndmask_b32 v{s.vt1}, 0, v{s.vt1}, s[{s.sTm}:{s.sTm+1}]')
        for i in range(16): a(f'v_mov_b32 v{s.vV+i}, v{s.vt1}')
    def expgroups(s,cur,A_,B_,C_,D_):
        ex=s.ex; cv=s.cv
        A_()
        for r in range(0,4): ex(cur,r)
        B_()
        ex(cur,4); ex(cur,5); cv(cur,0); ex(cur,6); cv(cur,1); ex(cur,7)
        C_()
        ex(cur,8); cv(cur,2); ex(cur,9); cv(cur,3); ex(cur,10); ex(cur,11)
        D_()
        ex(cur,12); ex(cur,13); cv(cur,4); ex(cur,14); cv(cur,5); ex(cur,15); cv(cur,6); cv(cur,7)
    def key_tile(s,pp,k2,v1):
        SP=[s.vSa,s.vS1]; cur=SP[pp&1]; nxt=SP[(pp+1)&1]
        ka,ko=k2; va,vo=v1
        s.a('s_waitcnt lgkmcnt(0)')
        s.expgroups(cur,
            lambda: s.qk1(nxt,vr(s.vCa,16),s.vQa1),
            lambda: (s.pv(s.vOb,(pp+1)&1,1), s.rd_v((pp+1)&1,vo,*( (va[2],va[3]) if va else (None,None)))),
            lambda: (s.qk1(nxt+16,vr(s.vCb,16),s.vQb1), s.rd_k1(s.vK1,ko,ka[0] if ka else None)),
            lambda: s.pv(s.vOa,pp&1,0))
        s.expgroups(cur+16,
            lambda: (s.qk2b(nxt), s.rd_k2(s.vK2,ko,ka[1] if ka else None)),
            lambda: None,
            lambda: s.pv(s.vOa,pp&1,1),
            lambda: s.pv(s.vOb,pp&1,0))
    def standin(s,ad):
        a=s.a
        s.rd_k1(s.vK1,0,ad[0]); s.rd_k2(s.vK2,0,ad[1])
        a('s_waitcnt lgkmcnt(0)')
        s.qk1(s.vSa,'0',s.vQa1); s.qk1(s.vSb,'0',s.vQb1)
        a('s_nop 9')
        s.qk2b(s.vSa)
    def standin2(s):
        a=s.a
        a('s_nop 15'); a('s_nop 3')
        s.rowmax(s.vM,s.vSa,True); s.rowmax(s.vMb,s.vSb,True)
        s.xhalf_max(s.vM); s.xhalf_max(s.vMb)
        for r in range(16): a(f'v_sub_f32 v{s.vCa+r}, 0, v{s.vM}')
        for r in range(16): a(f'v_sub_f32 v{s.vCb+r}, 0, v{s.vMb}')
    def first_tile(s,off,off1):
        a=s.a
        a('s_waitcnt lgkmcnt(0)')
        s.qk1(s.vSa,vr(s.vCa,16),s.vQa1); s.qk1(s.vSb,vr(s.vCb,16),s.vQb1)
        s.rd_k1(s.vK1,off1)
        a('s_nop 9')
        s.qk2b(s.vSa)
        s.rd_k2(s.vK2,off1)
        a('s_nop 15')
        a('s_nop 1')

def phase1(a,p,D=3,SY=1,LP='',EARLY2=False,SPF=False,SPFN=6,XROT=(2,1),LPRIO=2,EPRIO=1,EH=(0,1,2)):
    R=4; XOFF=16384
    sX,sW,sO=4,8,12
    sBR,sMT,sNT=26,27,28
    sKS=31; sXo=32; sW0=34; sIT=36; sSlot=37; sLW=38; sLX=39; sT=40
    st0,st1,st2,st3=41,42,43,44
    sSec=45; sBase=46; sHS=47; sTS=48; sNx=30; sM=29; sN=33; sIdx=35
    vLane=1; vt0=6; vt1=7; vt2=8; vt3=9; vt4=10; vTok=11; vG=12; vRho=13
    vLW=8; vLX=10; vXh=2; vXc1=3
    vB0=14; vBc=19; vBn=24; vAd=29
    vWf=36; vXf=vWf+32; vAcc=vXf+4*(D+1); vEnd=vAcc+128
    assert vEnd<=256 and 8%(D+1)==0
    def wf(step,c): return vWf+(step&1)*16+c*4
    def xf(i): return vXf+(i%(D+1))*4
    def acc(t,c,mt): return vAcc+t*64+(c*4+mt)*4
    def slotbase(dst,idx):
        a(f's_lshl_b32 s{dst}, s{idx}, 15')
        a(f's_lshr_b32 s{st3}, s{idx}, 1')
        a(f's_lshl_b32 s{st3}, s{st3}, 14')
        a(f's_add_u32 s{dst}, s{dst}, s{st3}')
        a(f's_add_u32 s{dst}, s{dst}, 16384')
    a(f'v_and_b32 v{vLane}, 63, v0')
    a(f's_and_b32 s{st0}, s{sWG}, 7')
    a(f's_lshr_b32 s{st1}, s{sWG}, 3')
    a(f's_and_b32 s{st2}, s{st0}, 1')
    a(f's_lshl_b32 s{st2}, s{st2}, 3')
    a(f's_and_b32 s{st3}, s{st1}, 7')
    a(f's_add_u32 s{sMT}, s{st2}, s{st3}')
    a(f's_lshr_b32 s{st2}, s{st0}, 1')
    a(f's_lshl_b32 s{st2}, s{st2}, 2')
    a(f's_lshr_b32 s{st1}, s{st1}, 3')
    a(f's_add_u32 s{sNT}, s{st2}, s{st1}')
    a(f's_cmp_ge_u32 s{sNT}, 15')
    a(f's_cbranch_scc1 L_p1_skip')
    a(f's_cmp_ge_u32 s{sWV}, 4')
    a(f's_cbranch_scc0 L_p1_compute')
    i_c=len(a.l)
    a.lab('L_p1_compute')
    p2_early(a,'c')
    a(f's_and_b32 s{sM}, s{sWV}, 1')
    a(f's_lshr_b32 s{sN}, s{sWV}, 1')
    a(f'v_and_b32 v{vTok}, 15, v{vLane}')
    a(f'v_lshrrev_b32 v{vG}, 4, v{vLane}')
    a(f'v_and_b32 v{vt0}, 3, v{vLane}')
    a(f'v_bfe_u32 v{vt1}, v{vLane}, 2, 2')
    a(f'v_and_b32 v{vt2}, 1, v{vG}')
    a(f'v_lshl_or_b32 v{vt2}, v{vt2}, 2, v{vt1}')
    a(f'v_lshl_add_u32 v{vt3}, v{vG}, 3, v{vt1}')
    a(f'v_lshlrev_b32 v{vt3}, 8, v{vt3}')
    a(f'v_lshl_add_u32 v{vt3}, v{vt0}, 3, v{vt3}')
    a(f's_lshl_b32 s{st0}, s{sN}, 2')
    a(f'v_xor_b32 v{vt2}, s{st0}, v{vt2}')
    for c in range(4):
        a(f'v_xor_b32 v{vt4}, {c}, v{vt2}')
        a(f'v_lshl_add_u32 v{vB0+c}, v{vt4}, 5, v{vt3}')
    a(f'v_lshrrev_b32 v{vt0}, 1, v{vTok}')
    a(f'v_xor_b32 v{vt0}, v{vt0}, v{vG}')
    a(f'v_lshlrev_b32 v{vt0}, 4, v{vt0}')
    a(f'v_lshl_add_u32 v{vt0}, v{vTok}, 7, v{vt0}')
    a(f's_lshl_b32 s{st0}, s{sM}, 13')
    a(f's_add_u32 s{st0}, s{st0}, {XOFF}')
    a(f'v_add_u32 v{vB0+4}, s{st0}, v{vt0}')
    a(f'v_xor_b32 v{vXh}, 64, v{vt0}')
    a(f'v_sub_u32 v{vXh}, v{vXh}, v{vt0}')
    for i in range(5): a(f'v_add_u32 v{vBc+i}, 16384, v{vB0+i}')
    for i in range(128): a(f'v_mov_b32 v{vAcc+i}, 0')
    a(f's_mul_i32 s{sSec}, s{sNT}, 52')
    a(f's_lshr_b32 s{sSec}, s{sSec}, 8')
    a(f's_mul_i32 s{st0}, s{sSec}, 5')
    a(f's_sub_u32 s{st0}, s{sNT}, s{st0}')
    a(f's_lshl_b32 s{st0}, s{st0}, 7')
    a(f's_lshl_b32 s{st1}, s{sN}, 6')
    a(f's_add_u32 s{st0}, s{st0}, s{st1}')
    a(f's_cmp_eq_u32 s{sSec}, 0')
    a(f's_cselect_b32 s{st1}, 0, 1')
    a(f's_cselect_b32 s{st2}, 0, {WS_KV}')
    a(f's_lshl_b32 s{sTS}, 1280, s{st1}')
    a(f's_lshl_b32 s{sHS}, s{sTS}, 6')
    a(f's_lshl_b32 s{sT}, s{sMT}, 2')
    a(f's_lshl_b32 s{st1}, s{sM}, 1')
    a(f's_add_u32 s{sT}, s{sT}, s{st1}')
    a(f's_mul_i32 s{st1}, s{sT}, s{sTS}')
    a(f's_add_u32 s{sBase}, s{st1}, s{st2}')
    a(f's_cmp_eq_u32 s{sSec}, 2')
    a(f's_cbranch_scc1 L_p1_adV')
    a(f'v_lshrrev_b32 v{vt0}, 3, v{vTok}')
    a(f'v_lshlrev_b32 v{vRho}, 7, v{vt0}')
    a(f'v_bfe_u32 v{vt0}, v{vTok}, 1, 1')
    a(f'v_lshl_or_b32 v{vRho}, v{vt0}, 6, v{vRho}')
    a(f'v_bfe_u32 v{vt0}, v{vTok}, 2, 1')
    a(f'v_lshl_or_b32 v{vRho}, v{vt0}, 5, v{vRho}')
    a(f'v_and_b32 v{vt0}, 1, v{vTok}')
    a(f'v_lshl_or_b32 v{vRho}, v{vt0}, 4, v{vRho}')
    a(f's_lshr_b32 s{st0}, s{st0}, 2')
    for c in range(4):
        a(f'v_add_u32 v{vt0}, s{st0}, v{vG}')
        if c: a(f'v_add_u32 v{vt0}, {4*c}, v{vt0}')
        a(f'v_mul_u32_u24 v{vt1}, 52429, v{vt0}')
        a(f'v_lshrrev_b32 v{vt1}, 18, v{vt1}')
        a(f'v_mul_u32_u24 v{vt2}, 5, v{vt1}')
        a(f'v_sub_u32 v{vt2}, v{vt0}, v{vt2}')
        a(f'v_mul_u32_u24 v{vt1}, s{sHS}, v{vt1}')
        a(f'v_and_b32 v{vt3}, 1, v{vt2}')
        a(f'v_lshlrev_b32 v{vt3}, 9, v{vt3}')
        a(f'v_lshrrev_b32 v{vt4}, 1, v{vt2}')
        a(f'v_cmp_eq_u32 s[56:57], 4, v{vt2}')
        a(f'v_lshl_add_u32 v{vt3}, v{vt4}, 8, v{vt3}')
        a(f'v_add_u32 v{vt4}, 512, v{vt3}')
        a(f'v_add_u32 v{vt1}, v{vt1}, v{vRho}')
        a(f'v_cndmask_b32 v{vt3}, v{vt3}, v{vt4}, s[56:57]')
        a(f'v_add_u32 v{vAd+c}, v{vt1}, v{vt3}')
    a('s_branch L_p1_adD')
    a.lab('L_p1_adV')
    for c in range(4):
        a(f'v_add_u32 v{vt0}, s{st0}, v{vTok}')
        if c: a(f'v_add_u32 v{vt0}, {16*c}, v{vt0}')
        a(f'v_mul_u32_u24 v{vt1}, 52429, v{vt0}')
        a(f'v_lshrrev_b32 v{vt1}, 20, v{vt1}')
        a(f'v_mul_u32_u24 v{vt2}, 20, v{vt1}')
        a(f'v_sub_u32 v{vt2}, v{vt0}, v{vt2}')
        a(f'v_mul_u32_u24 v{vt1}, {64*2560}, v{vt1}')
        a(f'v_lshl_add_u32 v{vt1}, v{vt2}, 6, v{vt1}')
        a(f'v_bfe_u32 v{vt2}, v{vt2}, 2, 2')
        a(f'v_xor_b32 v{vt2}, v{vt2}, v{vG}')
        a(f'v_lshl_add_u32 v{vt1}, v{vt2}, 4, v{vt1}')
        a(f'v_add_u32 v{vAd+c}, 1280, v{vt1}')
    a.lab('L_p1_adD')
    a('s_waitcnt lgkmcnt(0)')
    srd(a,sO,sWS,sWS+1,WS_O)
    q_prep(a)
    def wread(nxt,h,step,c,hh):
        b=(vBn if nxt else vBc)+c
        return f'ds_read_b64_tr_b16 {vr(wf(step,c)+2*hh,2)}, v{b} offset:{h*8192+1024*hh}'
    def xread(nxt,h,mt,buf):
        b=((vBn if nxt else vBc)+4) if h==0 else vXc1
        return f'ds_read_b128 {vr(xf(buf),4)}, v{b} offset:{mt*2048}'
    def epilogue(v,t,br):
        if v==0:
            a(f's_cmp_lg_u32 s{sSec}, 0')
            a(f's_cbranch_scc1 L_p1_ns{t}')
            a(f's_mov_b32 s{st1}, {f32bits(CSCALE):#x}')
            for i in range(64): a(f'v_mul_f32 v{vAcc+64*t+i}, s{st1}, v{vAcc+64*t+i}')
            a.lab(f'L_p1_ns{t}')
        a(f's_lshl_b32 s{st0}, s{sTS}, 11')
        a(f's_mul_i32 s{st0}, s{st0}, {br}')
        a(f's_add_u32 s{st0}, s{st0}, s{sBase}')
        for tp in range(2):
            if tp: a(f's_add_u32 s{st0}, s{st0}, s{sTS}')
            for c in range(4):
                b=acc(t,c,2*tp)
                if v==0:
                    a(f'v_cvt_pk_bf16_f32 v{b}, v{b}, v{b+1}')
                    a(f'v_cvt_pk_bf16_f32 v{b+1}, v{b+2}, v{b+3}')
                    a(f'v_cvt_pk_bf16_f32 v{b+2}, v{b+4}, v{b+5}')
                    a(f'v_cvt_pk_bf16_f32 v{b+3}, v{b+6}, v{b+7}')
                else:
                    a(f'v_cvt_pk_bf16_f32 v{b}, v{b}, v{b+4}')
                    a(f'v_cvt_pk_bf16_f32 v{b+1}, v{b+1}, v{b+5}')
                    a(f'v_cvt_pk_bf16_f32 v{b+2}, v{b+2}, v{b+6}')
                    a(f'v_cvt_pk_bf16_f32 v{b+3}, v{b+3}, v{b+7}')
                a(f'buffer_store_dwordx4 {vr(b,4)}, v{vAd+c}, s[{sO}:{sO+3}], s{st0} offen {SC}')
    a(f's_cmp_eq_u32 s{sSec}, 2')
    a(f's_cbranch_scc1 L_p1_v1')
    for v in range(2):
        a.lab(f'L_p1_v{v}')
        p.stamp(1)
        a('s_barrier')
        p.stamp(2)
        def body(emit,issued,t):
            waits=[]
            for st in range(2):
                for mt in range(4):
                    gi=st*4+mt
                    need=[('x',gi)]
                    if mt==0: need.append(('w',st))
                    last=max(len(issued)-1-issued[::-1].index(tg) for tg in need)
                    y=len(issued)-1-last
                    waits.append(y)
                    if emit:
                        y=min(y,wmin[len(waits)-1])
                        a(f's_waitcnt lgkmcnt({min(y,15)})')
                    fill=[]
                    g2=gi+D; nx=g2>=8; h2=(g2%8)//4; m2=g2%4
                    fill.append((xread(nx,h2,m2,g2),('x',g2%8)))
                    wm={0:(0,1),1:(2,3)} if st==1 else {0:(0,1),1:(2,3)}
                    if mt in wm:
                        for c in wm[mt]:
                            fill.append((wread(st==1,(st+1)&1,st+1,c,0),('w',(st+1)%2)))
                            fill.append((wread(st==1,(st+1)&1,st+1,c,1),('w',(st+1)%2)))
                    if st==0 and mt==0:
                        fill.append((f'v_add_u32 v{vXc1}, v{vBc+4}, v{vXh}',None))
                    if st==0 and mt==2:
                        fill.append((f's_add_u32 s{sIdx}, s{sIdx}, 1',None))
                        fill.append((f's_and_b32 s{sIdx}, s{sIdx}, 3',None))
                        fill.append((f's_lshl_b32 s{sNx}, s{sIdx}, 15',None))
                        fill.append((f's_lshr_b32 s{st3}, s{sIdx}, 1',None))
                        fill.append((f's_lshl_b32 s{st3}, s{st3}, 14',None))
                        fill.append((f's_add_u32 s{sNx}, s{sNx}, s{st3}',None))
                        fill.append((f's_add_u32 s{sNx}, s{sNx}, 16384',None))
                    if st==0 and mt==3:
                        for i in range(5): fill.append((f'v_add_u32 v{vBn+i}, s{sNx}, v{vB0+i}',None))
                    if st==1 and mt==3:
                        for i in range(5): fill.append((f'v_mov_b32 v{vBc+i}, v{vBn+i}',None))
                    for c in range(4):
                        x=xf(gi); w=wf(st,c); ac=acc(t,c,mt)
                        if emit:
                            if v==0: a(f'v_mfma_f32_16x16x32_bf16 {vr(ac,4)}, {vr(w,4)}, {vr(x,4)}, {vr(ac,4)}')
                            else:    a(f'v_mfma_f32_16x16x32_bf16 {vr(ac,4)}, {vr(x,4)}, {vr(w,4)}, {vr(ac,4)}')
                        k=1 if c<3 else len(fill)
                        if len(fill)>4 and c<3: k=2
                        while k>0 and fill:
                            tx,tag=fill.pop(0); k-=1
                            if emit: a(tx)
                            if tag: issued.append(tag)
                    if st==0 and mt==SY and emit:
                        if t==1:
                            a(f's_cmp_eq_u32 s{sIT}, 9'); a(f's_cbranch_scc0 L_p1_nw{v}'); a('s_waitcnt vmcnt(0)'); a.lab(f'L_p1_nw{v}')
                        a('s_barrier')
            return waits
        pro=[('w',0)]*8+[('x',i) for i in range(D)]
        iss=list(pro); w1=body(False,iss,0); w2=body(False,iss,0)
        wmin=[min(x,y) for x,y in zip(w1,w2)]
        a(f's_mov_b32 s{sIdx}, 0')
        for c in range(4):
            a(wread(False,0,0,c,0)); a(wread(False,0,0,c,1))
        for i in range(D): a(xread(False,0,i,i))
        for t in range(2):
            a(f's_mov_b32 s{sIT}, 10')
            a.lab(f'L_p1_loop{v}_{t}')
            body(True,list(pro),t)
            a(f's_sub_u32 s{sIT}, s{sIT}, 1')
            a(f's_cmp_lg_u32 s{sIT}, 0')
            a(f's_cbranch_scc1 L_p1_loop{v}_{t}')
            a('s_nop 7')
            if t==0:
                epilogue(v,0,1)
                a('s_nop 1')
                for r in range(96,128): a(f'v_mov_b32 v{r}, 0')
            else:
                p.stamp(3)
                a('s_waitcnt lgkmcnt(0)')
                q_loads(a)
                epilogue(v,1,0)
        a('s_mov_b32 s49, 8')
        a('s_branch L_p1_done')
    i_l=len(a.l)
    a.lab('L_p1_loader')
    if LPRIO: a(f's_setprio {LPRIO}')
    sLd=29; sRot0=30
    a(f's_sub_u32 s{sLd}, s{sWV}, 4')
    a(f's_mul_i32 s{st3}, s{st3}, 5')
    a(f's_lshr_b32 s{st3}, s{st3}, 2')
    a(f's_mul_i32 s{st1}, s{st1}, 5')
    a(f's_lshr_b32 s{st1}, s{st1}, 1')
    a(f's_add_u32 s{sKS}, s{st3}, s{st1}')
    if XROT:
        ra,rb=XROT
        a(f's_and_b32 s{st0}, s{sWG}, 7')
        a(f's_lshr_b32 s{st1}, s{st0}, 1')
        a(f's_mul_i32 s{st1}, s{st1}, {ra}')
        a(f's_add_u32 s{sKS}, s{sKS}, s{st1}')
        a(f's_and_b32 s{st0}, s{st0}, 1')
        a(f's_mul_i32 s{st0}, s{st0}, {rb}')
        a(f's_add_u32 s{sKS}, s{sKS}, s{st0}')
        for lim in (40,20):
            a(f's_cmp_ge_u32 s{sKS}, {lim}')
            a(f's_cselect_b32 s{st0}, {lim//2 if lim==20 else 20}, 0')
            a(f's_sub_u32 s{sKS}, s{sKS}, s{st0}')
        a(f's_cmp_ge_u32 s{sKS}, 20')
        a(f's_cselect_b32 s{st0}, 10, 0')
        a(f's_sub_u32 s{sKS}, s{sKS}, s{st0}')
    a(f's_cmp_ge_u32 s{sKS}, 10')
    a(f's_cselect_b32 s{st0}, 10, 0')
    a(f's_sub_u32 s{sKS}, s{sKS}, s{st0}')
    a(f's_mov_b32 s{sRot0}, s{sKS}')
    a(f's_lshl_b32 s{sLW}, s{sLd}, 12')
    a(f's_lshl_b32 s{sLX}, s{sLd}, 12')
    a(f's_add_u32 s{sLX}, s{sLX}, {XOFF}')
    a(f'v_lshrrev_b32 v{vt0}, 4, v{vLane}')
    a(f'v_bfe_u32 v{vt1}, v{vLane}, 1, 3')
    a(f'v_and_b32 v2, 1, v{vLane}')
    a(f's_lshl_b32 s{st2}, s{sLd}, 4')
    a(f's_lshl_b32 s{st1}, s{sNT}, 8')
    for jj in range(2):
        a(f'v_add_u32 v3, {4*jj}, v{vt0}')
        a(f'v_xor_b32 v3, v3, v{vt1}')
        a(f'v_lshl_add_u32 v4, v3, 1, v2')
        a(f'v_lshlrev_b32 v4, 4, v4')
        a(f'v_add_u32 v{vLW+jj}, s{st2}, v{vt0}')
        if jj: a(f'v_add_u32 v{vLW+jj}, 8, v{vLW+jj}')
        a(f'v_mul_u32_u24 v{vLW+jj}, 3840, v{vLW+jj}')
        a(f'v_add3_u32 v{vLW+jj}, v{vLW+jj}, v4, s{st1}')
    a(f'v_lshrrev_b32 v{vt0}, 3, v{vLane}')
    a(f'v_and_b32 v{vt1}, 7, v{vLane}')
    a(f's_lshl_b32 s{st0}, s{sMT}, 7')
    a(f's_lshl_b32 s{st1}, s{sLd}, 5')
    a(f's_add_u32 s{st0}, s{st0}, s{st1}')
    for uu in range(2):
        a(f'v_lshrrev_b32 v2, 1, v{vt0}')
        if uu: a(f'v_add_u32 v2, 4, v2')
        a(f'v_xor_b32 v2, v2, v{vt1}')
        a(f'v_add_u32 v3, s{st0}, v{vt0}')
        if uu: a(f'v_add_u32 v3, 8, v3')
        a(f'v_mul_u32_u24 v3, 1280, v3')
        a(f'v_lshl_add_u32 v{vLX+uu}, v2, 4, v3')
    a('s_waitcnt lgkmcnt(0)')
    srd(a,sX,20,21,2048*1280)
    srd(a,sW,22,23,640*3840)
    NL=8
    def wstep():
        a(f's_mul_i32 s{sW0}, s{sKS}, {64*3840}')
        a(f's_lshl_b32 s{sXo}, s{sKS}, 7')
        slotbase(sSlot,sIdx)
        a(f's_add_u32 s{st0}, s{sSlot}, s{sLW}')
        a(f's_add_u32 s{st1}, s{sSlot}, s{sLX}')
        for j in range(4):
            a(f's_add_u32 m0, s{st0}, {j*1024}')
            if j&1: a(f's_add_u32 s{st2}, s{sW0}, {4*3840}')
            else: a('s_nop 0')
            a(f'buffer_load_dwordx4 v{vLW+(j>>1)}, s[{sW}:{sW+3}], s{st2 if j&1 else sW0} offen {LP} lds')
            a(f's_add_u32 m0, s{st1}, {j*1024}')
            if j==2: a(f's_add_u32 s{sXo}, s{sXo}, 20480')
            else: a('s_nop 0')
            a(f'buffer_load_dwordx4 v{vLX+(j&1)}, s[{sX}:{sX+3}], s{sXo} offen {LP} lds')
        a(f's_add_u32 s{sKS}, s{sKS}, 1')
        a(f's_cmp_eq_u32 s{sKS}, 10')
        a(f's_cselect_b32 s{sKS}, 0, s{sKS}')
        a(f's_add_u32 s{sIdx}, s{sIdx}, 1')
        a(f's_and_b32 s{sIdx}, s{sIdx}, 3')
    a(f's_mov_b32 s{sIdx}, 0')
    wstep()
    if EARLY2: wstep()
    a(f's_waitcnt vmcnt({NL if EARLY2 else 0})')
    a('s_barrier')
    if not EARLY2: wstep()
    wstep()
    p2_early(a,'l')
    for r in range(96,128): a(f'v_mov_b32 v{r}, 0')
    a(f's_mov_b32 s{sIT}, 0')
    a.lab('L_p1_ld_loop')
    a(f's_waitcnt vmcnt({NL})')
    a(f's_cmp_lg_u32 s{sIT}, 15'); a('s_cbranch_scc1 L_p1_ld_w1')
    a(f's_cmp_lg_u32 s{sWV}, 4'); a('s_cbranch_scc1 L_p1_ld_w1')
    poll_f1(a,'b',1)
    a.lab('L_p1_ld_w1')
    a('s_barrier')
    a(f's_cmp_lg_u32 s{sWV}, 4'); a('s_cbranch_scc1 L_p1_ld_h1')
    a(f's_cmp_lg_u32 s{sIT}, 8'); a('s_cbranch_scc1 L_p1_ld_h0')
    gettok(a,'p1',None)
    a.lab('L_p1_ld_h0')
    a(f's_cmp_lg_u32 s{sIT}, 11'); a('s_cbranch_scc1 L_p1_ld_h1')
    a(f's_add_u32 s50, s{sNT}, 15')
    a('s_lshl_b32 s50, s50, 4')
    a(f's_add_u32 s50, s50, s{sMT}')
    a('s_lshl_b32 s50, s50, 7')
    setflag(a,50)
    a.lab('L_p1_ld_h1')
    a(f's_cmp_lg_u32 s{sIT}, 7'); a('s_cbranch_scc1 L_p1_ld_h2')
    srd(a,sX,16,17,2048*1280)
    srd(a,sW,18,19,640*3840)
    a.lab('L_p1_ld_h2')
    wstep()
    a(f's_add_u32 s{sIT}, s{sIT}, 1')
    a(f's_cmp_lt_u32 s{sIT}, 16')
    a('s_cbranch_scc1 L_p1_ld_loop')
    p.stamp(1)
    a(f's_setprio {EPRIO}')
    a(f's_lshl_b32 s48, s{sLd}, 11')
    q_issue(a)
    kv_first(a,[(48,0),(48,1024)],(0,HALF,8192,HALF+8192))
    a('s_mov_b32 s3, 1')
    a.lab('L_early')
    at=Att(a)
    Lr=(12,13,14,15)
    a(f's_mov_b32 s{at.sVm}, 0xfffff'); a(f's_mov_b32 s{at.sVm+1}, 0xfffff')
    at.vinit()
    for i in range(4): a(f'v_mov_b32 v{at.vP+4+i}, 0')
    for r,src in zip(Lr,(at.vK1a,at.vK2a,at.vVa,at.vVb)): a(f'v_mov_b32 v{r}, v{src}')
    for r in (at.vK1a,at.vK2a,at.vVa,at.vVb): a(f'v_add_u32 v{r}, {HALF}, v{r}')
    def hook(n,fn):
        a('s_cmp_eq_u32 s3, 0'); a(f's_cbranch_scc1 L_eh{n}'); fn(); a.lab(f'L_eh{n}')
    hook(0,lambda: (a(f's_waitcnt vmcnt({NL+13})'), a('s_barrier'), wstep()))
    hook(1,lambda: (a(f's_waitcnt vmcnt({NL})'), a('s_barrier')))
    p.stamp(2)
    at.standin(Lr)
    at.rd_k1(at.vK1,0); at.rd_k2(at.vK2,0); at.rd_v(0,0)
    at.standin2()
    at.first_tile(0,TILE)
    seq=[(None,0),(None,TILE),(None,2*TILE),(None,3*TILE),(Lr,0),(Lr,TILE),(Lr,2*TILE),(Lr,3*TILE),(None,4*TILE),(None,5*TILE)]
    for t in range(8):
        if t==EH[1]: hook(2,lambda: (a('s_waitcnt vmcnt(0)'), a('s_barrier'), kv_first(a,[(48,0),(48,1024)],(16384,24576,32768,40960))))
        if t==EH[2]: hook(3,lambda: (a('s_barrier'), kv_first(a,[(48,0),(48,1024)],(HALF+16384,HALF+24576,HALF+32768,HALF+40960))))
        if t==0: p.stamp(3)
        if t==1: p.stamp(4)
        if t==2: p.stamp(6)
        at.key_tile(t,seq[t+2],seq[t+1])
    a('s_setprio 0')
    a('s_cmp_eq_u32 s3, 0'); a('s_cbranch_scc1 L_p1_idle_done')
    a(f's_lshl_b32 s49, s{sNT}, 4')
    a(f's_add_u32 s49, s49, s{sMT}')
    a('s_lshl_b32 s49, s49, 7')
    a('s_or_b32 s49, s49, 0x80000000')
    a('s_branch L_p1_done')
    a.lab('L_p1_idle_done')
    a('s_mov_b32 s49, 0')
    a('s_branch L_p1_done')
    i_e=len(a.l)
    a.l[i_c:i_e]=a.l[i_l:i_e]+a.l[i_c:i_l]
    a.lab('L_p1_skip')
    p2_early(a,'s')
    for r in range(96,128): a(f'v_mov_b32 v{r}, 0')
    a('s_waitcnt lgkmcnt(0)')
    a(f's_cmp_lg_u32 s{sWV}, 4'); a('s_cbranch_scc1 L_p1_sk1')
    gettok(a,'p1s',None)
    poll_f1(a,'bs',1)
    a.lab('L_p1_sk1')
    a('s_barrier')
    a(f's_lshl_b32 s48, s{sWV}, 10')
    q_issue(a)
    kv_first(a,[(48,0)],(0,HALF,8192,HALF+8192,16384,24576,32768,40960,HALF+16384,HALF+24576,HALF+32768,HALF+40960))
    a('s_waitcnt vmcnt(0)')
    a('s_barrier')
    a('s_mov_b32 s3, 0')
    a(f's_cmp_ge_u32 s{sWV}, 4'); a('s_cbranch_scc1 L_early')
    a('s_mov_b32 s49, 0')
    a.lab('L_p1_done')
    return vEnd

def gettok(a,tag,wave=4):
    if wave is not None:
        a(f's_cmp_lg_u32 s{sWV}, {wave}')
        a(f's_cbranch_scc1 L_tokd_{tag}')
    a('s_mov_b32 s58, 0x40000')
    a('v_mov_b32 v2, 0')
    a.lab(f'L_tok_{tag}')
    a(f'global_load_dword v3, v2, s[{sDBG}:{sDBG+1}] sc1')
    a('s_waitcnt vmcnt(0)')
    a(f'v_readfirstlane_b32 s{sTOK}, v3')
    a('s_nop 3')
    a(f's_cmp_lg_u32 s{sTOK}, 0')
    a(f's_cbranch_scc1 L_tokd_{tag}')
    a('s_sleep 4')
    a('s_sub_u32 s58, s58, 1')
    a('s_cmp_lg_u32 s58, 0')
    a(f's_cbranch_scc1 L_tok_{tag}')
    a.lab(f'L_tokd_{tag}')
def setflag(a,soff):
    a(f's_add_u32 s{soff}, s{soff}, {WS_FLG}')
    a('s_mov_b64 exec, 1')
    a(f'v_mov_b32 v2, s{soff}')
    a(f'v_mov_b32 v3, s{sTOK}')
    a(f'global_store_dword v2, v3, s[{sWS}:{sWS+1}] sc1')
    a('s_mov_b64 exec, -1')
def poll2(a,tag,va,vb,mask):
    a('s_mov_b32 s58, 0x40000')
    a.lab(f'L_poll_{tag}')
    a(f'global_load_dword v3, v{va}, s[{sWS}:{sWS+1}] sc1')
    a(f'global_load_dword v4, v{vb}, s[{sWS}:{sWS+1}] sc1')
    a('s_waitcnt vmcnt(0)')
    a(f'v_cmp_eq_u32 s[56:57], s{sTOK}, v3')
    a(f'v_cmp_eq_u32 vcc, s{sTOK}, v4')
    a('s_nop 4')
    a('s_and_b64 s[56:57], s[56:57], vcc')
    a(f's_and_b32 s56, s56, {mask&0xffffffff:#x}')
    a(f's_and_b32 s57, s57, {mask>>32:#x}')
    a(f's_cmp_lg_u32 s56, {mask&0xffffffff:#x}')
    a(f's_cbranch_scc1 L_polln_{tag}')
    a(f's_cmp_eq_u32 s57, {mask>>32:#x}')
    a(f's_cbranch_scc1 L_polld_{tag}')
    a.lab(f'L_polln_{tag}')
    a('s_sleep 1')
    a('s_sub_u32 s58, s58, 1')
    a('s_cmp_lg_u32 s58, 0')
    a(f's_cbranch_scc1 L_poll_{tag}')
    a.lab(f'L_polld_{tag}')
POLLC=dict(sl=2,pol='sc1',pre=0)
def poll(a,tag,vaddr,offs,mask):
    a('s_mov_b32 s58, 0x40000')
    for _ in range(POLLC['pre']): a('s_sleep 8')
    a.lab(f'L_poll_{tag}')
    for i,o in enumerate(offs):
        a(f'global_load_dword v{vaddr+1+i}, v{vaddr}, s[{sWS}:{sWS+1}] offset:{o} {POLLC["pol"]}')
    a('s_waitcnt vmcnt(0)')
    a(f'v_cmp_eq_u32 s[56:57], s{sTOK}, v{vaddr+1}')
    if len(offs)>1:
        a(f'v_cmp_eq_u32 vcc, s{sTOK}, v{vaddr+2}')
        a('s_nop 4')
        a('s_and_b64 s[56:57], s[56:57], vcc')
    else:
        a('s_nop 4')
    a(f's_and_b32 s56, s56, {mask&0xffffffff:#x}')
    a(f's_and_b32 s57, s57, {mask>>32:#x}')
    a(f's_cmp_lg_u32 s56, {mask&0xffffffff:#x}')
    a(f's_cbranch_scc1 L_polln_{tag}')
    a(f's_cmp_eq_u32 s57, {mask>>32:#x}')
    a(f's_cbranch_scc1 L_polld_{tag}')
    a.lab(f'L_polln_{tag}')
    a(f's_sleep {POLLC["sl"]}')
    a('s_sub_u32 s58, s58, 1')
    a('s_cmp_lg_u32 s58, 0')
    a(f's_cbranch_scc1 L_poll_{tag}')
    a.lab(f'L_polld_{tag}')

def phase2(a,p,PRIO=0,BSH=0,NOHOOK=0,SPRIO=0,FP2=7):
    TILE=2560; HALF=81920; WOFF=40960; SCR=81920
    sR,sOo,sWo=4,8,12
    sHD,sJ,sQP,sKH=16,17,18,19
    st0,st1,st2,st3=20,21,22,23
    sVm=24; sLo=26
    sIT=28; sHB=29; sHBw=30; sOl=31; sOh=32; sLl=33; sQA=34; sSw=35; sAg=36; sOB=37; sOA=50; sNeed=39
    sTm=40
    sKV=44
    sOff=31; sInc=32
    sWn=48
    sWl=39
    vLane=1; vt0=2; vt1=3; vt2=4; vt3=5; vM=10; vt4=14; vt5=15
    vK1a,vK2a,vVa,vVb,vDma,vRho,vOoff,vOo2,vQ1o,vQ2o,vWo,vKap=P2C
    vQa1=16; vQab=20; vQa2=22; vQb1=24; vK1=28; vK2=32; vMb=35
    vV=36; vP=52; vQA2=60; vCc=63
    vSa=64; vSb=80; vOa=96; vOb=112; vCa=128; vCb=144; vMF=P2M; vML=P2M+16; vQA1=192
    vS1=160
    vEnd=256
    a(f's_load_dwordx2 s[50:51], s[0:1], 16')
    a(f's_load_dwordx2 s[52:53], s[0:1], 40')
    head_j(a,sHD,sJ,st0,st1)
    a(f's_and_b32 s{sQP}, s{sWV}, 3')
    a(f's_lshr_b32 s{sKH}, s{sWV}, 2')
    a(f's_mul_i32 s{sHB}, s{sHD}, {64*TILE}')
    a(f's_add_u32 s{sAg}, s{sHB}, {WS_KV-20480}')
    a(f's_add_u32 s{sHB}, s{sHB}, {WS_KV+32*64*TILE}')
    a(f's_mul_i32 s{st0}, s{sJ}, 20480')
    a(f's_add_u32 s{sAg}, s{sAg}, s{st0}')
    a(f's_mov_b32 s{sVm}, 0xfffff')
    a(f's_mov_b32 s{sVm+1}, 0xfffff')
    a(f's_mov_b32 s{sLo}, -1')
    a(f's_mov_b32 s{sLo+1}, 0')
    a(f's_lshl_b32 s{st0}, s{sJ}, 3')
    a(f's_lshl_b32 s{st1}, s{sHD}, 6')
    a(f's_add_u32 s{st1}, s{st1}, s{st0}')
    a(f's_add_u32 s{st2}, s{st1}, s{sWV}')
    a(f's_mul_i32 s{sQA}, s{st2}, 1280')
    a(f's_lshl_b32 s{st2}, s{sQP}, 1')
    a(f's_add_u32 s{st2}, s{st2}, s{sKH}')
    a(f's_add_u32 s{st2}, s{st2}, s{st0}')
    a(f's_lshl_b32 s{sOB}, s{st2}, 15')
    a(f's_add_u32 s{sOB}, s{sOB}, {2048*1280}')
    a(f's_lshl_b32 s{sOB+1}, s{st2}, 13')
    a(f's_add_u32 s{sOB+1}, s{sOB+1}, {2048*1280+128*16384}')
    srd(a,sR,sWS,sWS+1,WS_O)
    a(f's_add_u32 s56, s{sWS}, {WS_O}')
    a(f's_addc_u32 s57, s{sWS+1}, 0')
    srd(a,sOo,56,57,WS_END-WS_O)
    a(f's_add_u32 s{sKV}, s{sWS}, s{sHB}')
    a(f's_addc_u32 s{sKV+1}, s{sWS+1}, 0')
    a(f's_and_b32 s{sKV+1}, s{sKV+1}, 0xffff')
    a(f's_mov_b32 s{sKV+2}, 163840')
    a(f's_mov_b32 s{sKV+3}, 0x20000')
    a(f's_lshl_b32 s{sOff}, s{sWV}, 10')
    a(f's_add_u32 s{sOff}, s{sOff}, 49152')
    a(f's_mov_b32 m0, s{sOff}')
    a(f's_mov_b32 s{sInc}, {HALF}')
    a(f's_mov_b32 s{sInc+1}, {(8192-HALF)&0xffffffff}')
    def vinit():
        a(f'v_cmp_eq_u32 s[{sTm}:{sTm+1}], 20, v{vRho}')
        a(f'v_mov_b32 v{vt1}, 0x3f803f80')
        a('s_nop 0')
        a(f'v_cndmask_b32 v{vt1}, 0, v{vt1}, s[{sTm}:{sTm+1}]')
        for i in range(16): a(f'v_mov_b32 v{vV+i}, v{vt1}')
    a(f's_cmp_lg_u32 s{sKH}, 0'); a('s_cbranch_scc1 L_p2_noinit')
    vinit()
    for i in range(4): a(f'v_mov_b32 v{vP+4+i}, 0')
    a.lab('L_p2_noinit')
    a(f's_lshl_b32 s{sWl}, s{sWV}, 10')
    a(f's_add_u32 s{sWl}, s{sWl}, {WOFF}')
    a(f's_and_b32 s{sWn}, s{sHD}, 7')
    a(f's_mul_i32 s{sWn}, s{sWn}, 160')
    a('s_waitcnt lgkmcnt(0)')
    a(f's_cmp_lt_u32 s{sHD}, 16')
    a('s_cselect_b64 s[50:51], s[50:51], s[52:53]')
    srd(a,sWo,50,51,640*1280)
    p.stamp(5)

    def rd_k1(dst,off):
        assert off%512==0 and off//512+1<256
        a(f'ds_read2st64_b64 {vr(dst,4)}, v{vK1a} offset0:{off//512} offset1:{off//512+1}')
    def rd_k2(dst,off): a(f'ds_read_b64 {vr(dst,2)}, v{vK2a} offset:{off}')
    def rd_v(buf,off):
        a(f's_mov_b64 exec, s[{sVm}:{sVm+1}]')
        a(f'ds_read_b128 {vr(vV+8*buf,4)}, v{vVa} offset:{off}')
        a(f'ds_read_b128 {vr(vV+8*buf+4,4)}, v{vVb} offset:{off}')
        a('s_mov_b64 exec, -1')
    def qk1(S,C,Q1,K=None): a(f'v_mfma_f32_32x32x16_bf16 {vr(S,16)}, {vr(vK1 if K is None else K,4)}, {vr(Q1,4)}, {C}')
    def qk2(S,Q2,K=None): a(f'v_mfma_f32_32x32x8bf16_1k {vr(S,16)}, {vr(vK2 if K is None else K,2)}, {vr(Q2,2)}, {vr(S,16)}')
    def qk2b(S): a(f'v_mfma_f32_32x32x4bf16_1k {vr(S,32)}, {vr(vK2,2)}, {vr(vQab,2)}, {vr(S,32)}')
    def pv(O,buf,t): a(f'v_mfma_f32_32x32x16_bf16 {vr(O,16)}, {vr(vV+8*buf+4*t,4)}, {vr(vP+4*t,4)}, {vr(O,16)}')
    def ex(S,r): a(f'v_exp_f32 v{S+r}, v{S+r}')
    def cv(S,c): a(f'v_cvt_pk_bf16_f32 v{vP+c}, v{S+2*c}, v{S+2*c+1}')
    def rowmax(M,S,first):
        if first:
            a(f'v_max3_f32 v{M}, v{S}, v{S+1}, v{S+2}'); rest=list(range(3,16))
        else: rest=list(range(16))
        while len(rest)>=2:
            a(f'v_max3_f32 v{M}, v{M}, v{S+rest[0]}, v{S+rest[1]}'); rest=rest[2:]
        if rest: a(f'v_max_f32 v{M}, v{M}, v{S+rest[0]}')
    def xhalf_max(M):
        a(f'v_mov_b32 v{vt1}, v{M}')
        a('s_nop 1')
        a(f'v_permlane32_swap_b32 v{M}, v{vt1}')
        a('s_nop 1')
        a(f'v_max_f32 v{M}, v{M}, v{vt1}')
    def get_l():
        a(f'v_mov_b32 v{vt1}, v{vOa+8}')
        a(f'v_mov_b32 v{vt2}, v{vOa+8}')
        a('s_nop 1')
        a(f'v_permlane32_swap_b32 v{vt1}, v{vt2}')
        a('s_nop 1')
    def safety():
        a(f'v_max3_f32 v{vt3}, |v{vOa}|, |v{vOa+1}|, |v{vOa+2}|')
        for i in range(3,11,2): a(f'v_max3_f32 v{vt3}, v{vt3}, |v{vOa+i}|, |v{vOa+i+1}|')
        a(f'v_max_f32_e64 v{vt3}, v{vt3}, |v{vOa+11}|')
        a(f'v_mul_f32 v{vt3}, {f32bits(2.0**-27):#x}, v{vt3}')
        a(f'v_max_f32 v{vt3}, v{vt3}, v{vt2}')
        a(f'v_mov_b32 v{vt4}, {f32bits(2.0**100):#x}')
        a(f'v_cmp_nlt_f32 vcc, v{vt3}, v{vt4}')
        a(f'v_cmp_u_f32 s[56:57], v{vt2}, v{vt2}')
        a('s_nop 4')
        a('s_or_b64 vcc, vcc, s[56:57]')
    def store_o(soff):
        a(f'v_rcp_f32 v{vt3}, v{vt2}')
        a(f's_lshr_b32 s{st0}, s{sHD}, 1')
        a(f's_lshl_b32 s{st0}, s{st0}, 10')
        a(f's_and_b32 s{st1}, s{sHD}, 1')
        a(f's_lshl_b32 s{st1}, s{st1}, 9')
        a(f's_add_u32 s{st0}, s{st0}, s{st1}')
        a(f's_add_u32 s{st0}, s{st0}, s{soff}')
        for i in range(12): a(f'v_mul_f32 v{vOa+i}, v{vOa+i}, v{vt3}')
        for i in range(6): a(f'v_cvt_pk_bf16_f32 v{vSa+i}, v{vOa+2*i}, v{vOa+2*i+1}')
        a(f'buffer_store_dwordx4 {vr(vSa,4)}, v{vOoff}, s[{sOo}:{sOo+3}], s{st0} offen {SCO}')
        a(f's_lshl_b32 s{st0}, s{sHD}, 7')
        a(f's_add_u32 s{st0}, s{st0}, s{soff+1}')
        a(f's_mov_b64 exec, s[{sLo}:{sLo+1}]')
        a(f'buffer_store_dwordx2 {vr(vSa+4,2)}, v{vOo2}, s[{sOo}:{sOo+3}], s{st0} offen {SCO}')
        a('s_mov_b64 exec, -1')
    def addr_add(s):
        for r in (vK1a,vK2a,vVa,vVb): a(f'v_add_u32 v{r}, s{s}, v{r}')
    def addr_addi(imm):
        for r in (vK1a,vK2a,vVa,vVb): a(f'v_add_u32 v{r}, {imm}, v{r}')
    def dma_row(k):
        a(f'buffer_load_dwordx4 v{vDma}, s[{sKV}:{sKV+3}], s{sOff} offen {SL} lds')
        a(f's_add_u32 s{sOff}, s{sOff}, s{sInc+(k&1)}')
        a(f's_mov_b32 m0, s{sOff}')
    def dma_pair():
        dma_row(0); dma_row(1)
    def prio_switch(phase,L):
        a(f's_cmp_lt_u32 s{sWV}, 4')
        a(f's_cbranch_scc{1-phase} {L}_hi')
        a('s_setprio 0')
        a(f's_branch {L}_d')
        a.lab(f'{L}_hi')
        a('s_setprio 1')
        a.lab(f'{L}_d')
    def expgroups(cur,A_,B_,C_,D_):
        A_()
        for r in range(0,4): ex(cur,r)
        B_()
        ex(cur,4); ex(cur,5); cv(cur,0); ex(cur,6); cv(cur,1); ex(cur,7)
        C_()
        ex(cur,8); cv(cur,2); ex(cur,9); cv(cur,3); ex(cur,10); ex(cur,11)
        D_()
        ex(cur,12); ex(cur,13); cv(cur,4); ex(cur,14); cv(cur,5); ex(cur,15); cv(cur,6); cv(cur,7)

    a('s_cmp_eq_u32 s49, 8')
    a('s_cbranch_scc1 L_p2_w8')
    a('s_waitcnt vmcnt(0)')
    a('s_branch L_p2_wd')
    a.lab('L_p2_w8')
    a('s_waitcnt vmcnt(8)')
    a.lab('L_p2_wd')
    a('s_barrier')
    p.stamp(7)
    at=Att(a)
    a(f's_cmp_lg_u32 s{sKH}, 0'); a('s_cbranch_scc1 L_b_up')
    cur4=(vK1a,vK2a,vVa,vVb)
    at.standin(cur4)
    addr_addi(4*TILE)
    rd_k1(vK1,0); rd_k2(vK2,0); rd_v(0,0)
    at.standin2()
    at.first_tile(0,TILE)
    a('s_branch L_b_go')
    a.lab('L_b_up')
    addr_addi(4*TILE)
    a.lab('L_b_go')
    a(f's_mov_b32 s{sIT}, 0')
    a.raw('.p2align 6')
    a.lab('L_b_loop')
    ool=[]
    def cond(it,L,fn):
        a(f's_cmp_eq_u32 s{sIT}, {it}'); a(f's_cbranch_scc1 {L}'); a.lab(L+'_r')
        ool.append((L,fn))
    for pp in range(4):
        off=pp*TILE
        dma_row(pp)
        at.key_tile(pp,(None,off+2*TILE),(None,off+TILE))
    a(f's_cmp_eq_u32 s{sIT}, 6'); a('s_cbranch_scc1 L_b_exit')
    a(f's_cmp_eq_u32 s{sIT}, 0'); a('s_cbranch_scc1 L_bb0')
    a(f's_cmp_eq_u32 s{sIT}, 1'); a('s_cbranch_scc1 L_bb1')
    a(f's_cmp_eq_u32 s{sIT}, 2'); a('s_cbranch_scc1 L_bb2')
    a(f's_cmp_eq_u32 s{sIT}, 4'); a('s_cbranch_scc1 L_bb1')
    a.lab('L_bb_r')
    def bb0():
        a('s_waitcnt vmcnt(4)'); a('s_barrier')
        a(f's_cmp_lg_u32 s{sWV}, 4'); a('s_cbranch_scc1 L_bb_r')
        a('s_cmp_lt_i32 s49, 0'); a('s_cbranch_scc0 L_bb_r')
        a('s_and_b32 s50, s49, 0x7fffffff')
        setflag(a,50)
        a('s_branch L_bb_r')
    def bb1():
        a(f's_mov_b32 s{sOff}, 200000'); a(f's_mov_b32 m0, 200000'); a(f's_mov_b32 s{sInc}, 0'); a(f's_mov_b32 s{sInc+1}, 0'); a(f's_mov_b32 s{sKV+2}, 0')
        a('s_branch L_bb_r')
    def bb2():
        a(f's_cmp_lg_u32 s{sWV}, 0'); a('s_cbranch_scc1 L_bb2a')
        gettok(a,'a',None)
        poll_f1(a,'a',0)
        a.lab('L_bb2a')
        a('s_waitcnt vmcnt(0)'); a('s_barrier')
        a(f's_add_u32 s{sKV}, s{sWS}, s{sAg}')
        a(f's_addc_u32 s{sKV+1}, s{sWS+1}, 0')
        a(f's_and_b32 s{sKV+1}, s{sKV+1}, 0xffff')
        a(f's_mov_b32 s{sKV+2}, 40960')
        a(f's_lshl_b32 s{sOff}, s{sWV}, 10')
        a(f's_sub_u32 s{sOff}, s{sOff}, {3*8192}')
        a(f's_mov_b32 m0, s{sOff}')
        a(f's_mov_b32 s{sInc}, 8192')
        a(f's_mov_b32 s{sInc+1}, 8192')
        a(f'buffer_load_dwordx2 {vr(vQA1,2)}, v{vQ1o}, s[{sR}:{sR+3}], s{sQA} offen {SL}')
        a(f'buffer_load_dwordx2 {vr(vQA1+2,2)}, v{vQ1o}, s[{sR}:{sR+3}], s{sQA} offen offset:512 {SL}')
        a(f'buffer_load_dwordx2 {vr(vQA2,2)}, v{vQ2o}, s[{sR}:{sR+3}], s{sQA} offen {SL}')
        a('s_branch L_bb_r')
    ool.append(('L_bb0',bb0)); ool.append(('L_bb1',bb1)); ool.append(('L_bb2',bb2))
    addr_addi(4*TILE)
    a(f's_add_u32 s{sIT}, s{sIT}, 1')
    a('s_branch L_b_loop')
    a.lab('L_b_exit')
    addr_addi(4*TILE)
    a('s_nop 1')
    pv(vOb,1,1)
    a('s_setprio 0')
    a('s_nop 15')
    p.stamp(8)
    a(f's_lshl_b32 s{st0}, s{sQP}, 1')
    a(f's_cmp_eq_u32 s{sKH}, 0')
    a('s_cbranch_scc0 L_mg_hi')
    a(f's_add_u32 s{st1}, s{st0}, 1')
    a(f's_mul_i32 s{st1}, s{st1}, 3072')
    a(f's_add_u32 s{st1}, s{st1}, {SCR}')
    a(f'v_add_u32 v{vt4}, s{st1}, v{vDma}')
    for i in range(3): a(f'ds_write_b128 v{vt4}, {vr(vOb+4*i,4)} offset:{1024*i}')
    a(f's_mul_i32 s{st1}, s{st0}, 3072')
    a('s_branch L_mg_d')
    a.lab('L_mg_hi')
    a(f's_mul_i32 s{st1}, s{st0}, 3072')
    a(f's_add_u32 s{st1}, s{st1}, {SCR}')
    a(f'v_add_u32 v{vt4}, s{st1}, v{vDma}')
    for i in range(3): a(f'ds_write_b128 v{vt4}, {vr(vOa+4*i,4)} offset:{1024*i}')
    for i in range(12): a(f'v_mov_b32 v{vOa+i}, v{vOb+i}')
    for i in range(4): a(f'v_mov_b32 v{vQa1+i}, v{vQb1+i}')
    a(f's_add_u32 s{st1}, s{st0}, 1')
    a(f's_mul_i32 s{st1}, s{st1}, 3072')
    a.lab('L_mg_d')
    a(f's_add_u32 s{st1}, s{st1}, {SCR}')
    a(f'v_add_u32 v{vt4}, s{st1}, v{vDma}')
    a('s_waitcnt lgkmcnt(0) vmcnt(0)')
    a('s_barrier')
    for i in range(3): a(f'ds_read_b128 {vr(vSa+4*i,4)}, v{vt4} offset:{1024*i}')
    a('s_waitcnt lgkmcnt(0)')
    a('s_barrier')
    for i in range(12): a(f'v_add_f32 v{vOa+i}, v{vOa+i}, v{vSa+i}')
    get_l()
    safety()
    a('s_cbranch_vccnz L_b_fallback')
    a.lab('L_b_store')
    store_o(sOB)
    p.stamp(9)
    a(f's_mul_i32 s{st0}, s{sWV}, {TILE}')
    a(f's_mul_i32 s{st1}, s{sKH}, {HALF}')
    a(f's_sub_u32 s{st0}, s{st0}, s{st1}')
    a(f's_sub_u32 s{st0}, s{st0}, {32*TILE}')
    addr_add(st0)
    a(f's_lshl_b32 s{st0}, s{sJ}, 3')
    a(f's_add_u32 s{st2}, s{st0}, s{sWV}')
    a(f's_lshl_b32 s{sOA}, s{st2}, 15')
    a(f's_lshl_b32 s{sOA+1}, s{st2}, 13')
    a(f's_add_u32 s{sOA+1}, s{sOA+1}, {128*16384}')
    for i in range(4): a(f'v_mov_b32 v{vQa1+i}, v{vQA1+i}')
    for i in range(2): a(f'v_mov_b32 v{vQa2+i}, v{vQA2+i}')
    a(f's_sub_u32 s{sSw}, 8, s{sWV}')
    a(f's_cmp_lg_u32 s{sJ}, 0')
    a(f's_cselect_b32 s{sSw}, 0, s{sSw}')
    vC=vCa; vO=vOa; vS=[vSa,vSb]
    KR=[(vV,vV+4),(vV+8,vV+12),(vP,vP+4)]
    SB=[vSa,vSb,vOa]
    sRedo=30; sWoEn=55
    def cmid_init(tag,val,first):
        a(f's_cmp_le_u32 s{sSw}, {first}')
        a(f's_cbranch_scc1 L_cm_{tag}_v')
        for r in range(16): a(f'v_mov_b32 v{vC+r}, {NEG_BIG:#x}')
        a(f's_branch L_cm_{tag}_d')
        a.lab(f'L_cm_{tag}_v')
        for r in range(16): a(f'v_mov_b32 v{vC+r}, {val}')
        a.lab(f'L_cm_{tag}_d')
    def cmid_switch(tag,t,val):
        L=f'L_sw_{tag}_{t}'
        a(f's_cmp_eq_u32 s{sSw}, {t}')
        a(f's_cbranch_scc1 {L}')
        a.lab(L+'_r')
        def fn():
            a('s_nop 15')
            for r in range(16): a(f'v_mov_b32 v{vC+r}, {val}')
            a('s_nop 1')
        ool.append((L,fn))
    wocnt=[0]
    def wo_dma():
        if wocnt[0]>=10: return
        n=wocnt[0]; wocnt[0]+=1
        a(f's_cmp_lg_u32 s{sWoEn}, 0')
        a(f's_cbranch_scc0 L_wo{n}')
        for k in range(2):
            a(f's_mov_b32 m0, s{sWl}')
            a(f's_add_u32 s{sWl}, s{sWl}, 5120')
            a(f'buffer_load_dwordx4 v{vWo}, s[{sWo}:{sWo+3}], s{sWn} offen lds')
            a(f's_add_u32 s{sWn}, s{sWn}, 40960')
        a.lab(f'L_wo{n}')
    def maxpass(tag,tiles,dma):
        cmid_init(tag,'0',max(1,tiles[0]))
        nb=len(tiles)//3
        for i in range(3):
            rd_k1(KR[i][0],tiles[i]*TILE); rd_k2(KR[i][1],tiles[i]*TILE)
        for b in range(nb):
            a('s_waitcnt lgkmcnt(0)')
            for i in range(3):
                t=tiles[3*b+i]
                if max(1,tiles[0])<t<=7: cmid_switch(tag,t,'0')
                C = vr(vMF,16) if t==0 else (vr(vML,16) if t==8 else vr(vC,16))
                qk1(SB[i],C,vQa1,KR[i][0]); qk2(SB[i],vQa2,KR[i][1])
            if b<nb-1:
                for i in range(3):
                    t=tiles[3*(b+1)+i]
                    rd_k1(KR[i][0],t*TILE); rd_k2(KR[i][1],t*TILE)
            else:
                rd_k1(vK1,0); rd_k2(vK2,0)
            if dma: wo_dma()
            a('s_nop 7')
            for i in range(3):
                if i==2: a('s_nop 3')
                rowmax(vM,SB[i],b==0 and i==0)
    a(f's_mov_b32 s{sRedo}, 0')
    a(f's_cmp_lt_u32 s{sWV}, 5')
    a(f's_cselect_b32 s{sWoEn}, 1, 0')
    maxpass('p1',[6,7,8],True)
    a.lab('L_a_p2')
    xhalf_max(vM)
    a(f'v_sub_f32 v{vM}, 0, v{vM}')
    for r in range(16): a(f'v_add_f32 v{vMF+r}, v{vMF+r}, v{vM}')
    for r in range(16): a(f'v_add_f32 v{vML+r}, v{vML+r}, v{vM}')
    cmid_init('p2',f'v{vM}',1)
    for r in range(16): a(f'v_mov_b32 v{vO+r}, 0')
    vinit()
    for i in range(4): a(f'v_mov_b32 v{vP+4+i}, 0')
    a('s_waitcnt lgkmcnt(0)')
    qk1(vS[0],vr(vMF,16),vQa1); qk2(vS[0],vQa2)
    rd_k1(vK1,TILE); rd_v(0,0); rd_k2(vK2,TILE)
    for t in range(9):
        last=(t==8); last2=(t==7); tn=t+1
        cur=vS[t&1]; nxt=vS[(t+1)&1]; off=t*TILE
        Cn = vr(vML,16) if tn==8 else vr(vC,16)
        a('s_waitcnt lgkmcnt(0)')
        if 2<=tn<=7: cmid_switch('p2',tn,f'v{vM}')
        wo_dma()
        def A_():
            if not last: qk1(nxt,Cn,vQa1)
            if not last and not last2: rd_k1(vK1,off+2*TILE)
        def B_():
            pv(vO,(t+1)&1,1)
            if not last: rd_v((t+1)&1,off+TILE)
        def C_():
            if not last: qk2(nxt,vQa2)
            if not last and not last2: rd_k2(vK2,off+2*TILE)
        expgroups(cur,A_,B_,C_,lambda: pv(vO,t&1,0))
    A_CHECK=True
    assert wocnt[0]==10
    a('s_nop 1')
    pv(vO,0,1)
    a('s_nop 15')
    a('s_nop 0')
    get_l()
    safety()
    a('s_cbranch_vccnz L_a_exact')
    a.lab('L_a_store')
    store_o(sOA)
    p.stamp(10)
    a('s_waitcnt vmcnt(0)')
    a('s_barrier')
    p.stamp(11)
    a(f's_cmp_lg_u32 s{sWV}, 4')
    a('s_cbranch_scc1 L_p3')
    a(f's_lshl_b32 s{st0}, s{sJ}, 12')
    a(f's_lshl_b32 s{st1}, s{sHD}, {FP2}')
    a(f's_add_u32 s{st0}, s{st0}, s{st1}')
    a(f's_add_u32 s{st0}, s{st0}, 65536')
    setflag(a,st0)
    a(f's_lshl_b32 s{st0}, s{sJ}, 12')
    a(f's_add_u32 s{st0}, s{st0}, {WS_FLG+65536}')
    a(f'v_and_b32 v{vt0}, 31, v{vLane}')
    a(f'v_lshlrev_b32 v{vt0}, {FP2}, v{vt0}')
    a(f'v_add_u32 v{vt0}, s{st0}, v{vt0}')
    if not NOPOLL3: poll(a,'p3',vt0,[0],(1<<32)-1)
    a('s_barrier')
    a('s_branch L_done')
    a.lab('L_a_exact')
    a(f's_cmp_lg_u32 s{sRedo}, 0')
    a('s_cbranch_scc1 L_a_store')
    a(f's_mov_b32 s{sRedo}, 1')
    a(f's_mov_b32 s{sWoEn}, 0')
    for r in range(16): a(f'v_sub_f32 v{vMF+r}, v{vMF+r}, v{vM}')
    for r in range(16): a(f'v_sub_f32 v{vML+r}, v{vML+r}, v{vM}')
    maxpass('p1x',[0,1,2,3,4,5,6,7,8],False)
    a('s_branch L_a_p2')
    for L,fn in ool:
        a.lab(L); fn()
        if not L.startswith('L_bb'): a(f's_branch {L}_r')
    a.lab('L_b_fallback')
    for i in range(2):
        a(f'v_mov_b32 v{vt4}, v{vQab+i}')
        a(f'v_mov_b32 v{vt5}, v{vQab+i}')
        a('s_nop 1')
        a(f'v_permlane32_swap_b32 v{vt4}, v{vt5}')
        a(f's_cmp_eq_u32 s{sKH}, 0')
        a('s_cselect_b64 s[56:57], -1, 0')
        a('s_nop 1')
        a(f'v_cndmask_b32 v{vt4}, v{vt5}, v{vt4}, s[56:57]')
        a(f'v_cndmask_b32 v{vQa2+i}, 0, v{vt4}, s[{sLo}:{sLo+1}]')
    a(f'v_lshlrev_b32 v{vt4}, 3, v{vRho}')
    a(f'v_add_u32 v{vt4}, 1024, v{vt4}')
    a(f'v_lshrrev_b32 v{vt0}, 5, v{vLane}')
    a(f'v_bfe_u32 v{vt5}, v{vRho}, 2, 2')
    a(f'v_xor_b32 v{vt5}, v{vt5}, v{vt0}')
    a(f'v_lshlrev_b32 v{vt5}, 4, v{vt5}')
    a(f'v_lshl_add_u32 v{vt5}, v{vRho}, 6, v{vt5}')
    a(f'v_add_u32 v{vt5}, 1280, v{vt5}')
    a(f'v_xor_b32 v{vt0}, 32, v{vt5}')
    a(f'v_mov_b32 v{vM}, {NEG_BIG:#x}')
    a(f's_mov_b32 s{st0}, s{sHB}')
    a(f's_mov_b32 s{sIT}, 64')
    a.lab('L_fb_p1')
    a(f'buffer_load_dwordx2 {vr(vK1,2)}, v{vQ1o}, s[{sR}:{sR+3}], s{st0} offen {SL}')
    a(f'buffer_load_dwordx2 {vr(vK1+2,2)}, v{vQ1o}, s[{sR}:{sR+3}], s{st0} offen offset:512 {SL}')
    a(f'buffer_load_dwordx2 {vr(vK2,2)}, v{vt4}, s[{sR}:{sR+3}], s{st0} offen {SL}')
    a('s_waitcnt vmcnt(0)')
    qk1(vSa,'0',vQa1); qk2(vSa,vQa2)
    a('s_nop 15')
    rowmax(vM,vSa,False)
    a(f's_add_u32 s{st0}, s{st0}, {TILE}')
    a(f's_sub_u32 s{sIT}, s{sIT}, 1')
    a(f's_cmp_lg_u32 s{sIT}, 0')
    a('s_cbranch_scc1 L_fb_p1')
    xhalf_max(vM)
    for r in range(16): a(f'v_sub_f32 v{vCa+r}, 0, v{vM}')
    for r in range(16): a(f'v_mov_b32 v{vOa+r}, 0')
    a(f's_mov_b32 s{st0}, s{sHB}')
    a(f's_mov_b32 s{sIT}, 64')
    a.lab('L_fb_p2')
    a(f'buffer_load_dwordx2 {vr(vK1,2)}, v{vQ1o}, s[{sR}:{sR+3}], s{st0} offen {SL}')
    a(f'buffer_load_dwordx2 {vr(vK1+2,2)}, v{vQ1o}, s[{sR}:{sR+3}], s{st0} offen offset:512 {SL}')
    a(f'buffer_load_dwordx2 {vr(vK2,2)}, v{vt4}, s[{sR}:{sR+3}], s{st0} offen {SL}')
    a(f's_mov_b64 exec, s[{sVm}:{sVm+1}]')
    a(f'buffer_load_dwordx4 {vr(vV,4)}, v{vt5}, s[{sR}:{sR+3}], s{st0} offen {SL}')
    a(f'buffer_load_dwordx4 {vr(vV+4,4)}, v{vt0}, s[{sR}:{sR+3}], s{st0} offen {SL}')
    a('s_mov_b64 exec, -1')
    a('s_waitcnt vmcnt(0)')
    qk1(vSa,vr(vCa,16),vQa1); qk2(vSa,vQa2)
    a('s_nop 15')
    for r in range(16): ex(vSa,r)
    a('s_nop 0')
    for c in range(8): cv(vSa,c)
    a('s_nop 1')
    pv(vOa,0,0); pv(vOa,0,1)
    a(f's_add_u32 s{st0}, s{st0}, {TILE}')
    a(f's_sub_u32 s{sIT}, s{sIT}, 1')
    a(f's_cmp_lg_u32 s{sIT}, 0')
    a('s_cbranch_scc1 L_fb_p2')
    a('s_nop 15')
    get_l()
    a('s_branch L_b_store')
    return vEnd, dict(sHD=sHD,sJ=sJ)

def phase3(a,p,info,ROT3=3,XD=6):
    WOFF=40960
    sHD,sJ=info['sHD'],info['sJ']
    sX,sO=4,8
    st0,st1,st2,st3=20,21,22,23
    sPH=28; sBR=29; sMT=30; sNT=31
    vLane=1; vXo=2; vt0=4; vt1=5; vt2=6; vt3=7; vTok=8; vG=9; vTr=10; vOut=11; vTp=12; vTq=14; vX2=3
    vX=16; vWf=vX+160; vAcc=vWf+40; vEnd=vAcc+40
    a.lab('L_p3')
    a(f's_cmp_ge_u32 s{sWV}, 4')
    a('s_cbranch_scc1 L_done')
    a('s_load_dwordx2 s[50:51], s[0:1], 48')
    a(f's_lshr_b32 s{sBR}, s{sHD}, 4')
    a(f's_bfe_u32 s{st0}, s{sHD}, 0x10003')
    a(f's_lshl_b32 s{sMT}, s{sJ}, 1')
    a(f's_add_u32 s{sMT}, s{sMT}, s{st0}')
    a(f's_and_b32 s{sNT}, s{sHD}, 7')
    a(f's_and_b32 s{sPH}, s{sHD}, {ROT3}')
    a(f'v_and_b32 v{vTok}, 15, v{vLane}')
    a(f'v_lshrrev_b32 v{vG}, 4, v{vLane}')
    a(f'v_lshlrev_b32 v{vXo}, 4, v{vLane}')
    a(f'v_lshlrev_b32 v{vX2}, 3, v{vLane}')
    a(f's_lshl_b32 s{st0}, s{sMT}, 3')
    a(f's_lshl_b32 s{st1}, s{sWV}, 1')
    a(f's_add_u32 s{st0}, s{st0}, s{st1}')
    a(f's_lshl_b32 s32, s{st0}, 14')
    a(f's_lshl_b32 s36, s{st0}, 12')
    a(f's_add_u32 s36, s36, {128*16384}')
    a(f's_add_u32 s37, s36, 4096')
    a(f's_mul_i32 s{st0}, s{sBR}, {2048*1280}')
    a(f's_add_u32 s{st0}, s{st0}, {WS_O}')
    a(f's_add_u32 s52, s{sWS}, s{st0}')
    a(f's_addc_u32 s53, s{sWS+1}, 0')
    srd(a,sX,52,53,2048*1280)
    a(f'v_bfe_u32 v{vt0}, v{vLane}, 2, 2')
    a(f'v_mul_u32_u24 v{vt0}, 160, v{vt0}')
    a(f'v_and_b32 v{vt1}, 3, v{vLane}')
    a(f'v_lshl_add_u32 v{vt0}, v{vt1}, 3, v{vt0}')
    a(f'v_add_u32 v{vt0}, {WOFF}, v{vt0}')
    a(f'v_lshrrev_b32 v{vt1}, 1, v{vG}')
    a(f'v_mul_u32_u24 v{vt1}, 5, v{vt1}')
    a(f'v_and_b32 v{vt2}, 1, v{vG}')
    a(f'v_add_u32 v{vt1}, v{vt1}, v{vt2}')
    a(f'v_mul_u32_u24 v{vt1}, 640, v{vt1}')
    a(f'v_add_u32 v{vTr}, v{vt0}, v{vt1}')
    a(f'v_mul_u32_u24 v{vt1}, {5*640}, v{vG}')
    a(f'v_add3_u32 v{vTq}, v{vt0}, v{vt1}, 0')
    a(f'v_add_u32 v{vTq}, {4*640}, v{vTq}')
    for i in range(40): a(f'v_mov_b32 v{vAcc+i}, 0')
    a(f's_lshl_b32 s{st0}, s{sMT}, 7')
    a(f's_lshl_b32 s{st1}, s{sWV}, 5')
    a(f's_add_u32 s{st0}, s{st0}, s{st1}')
    a(f'v_add_u32 v{vt0}, s{st0}, v{vTok}')
    a(f'v_mul_u32_u24 v{vt0}, 2560, v{vt0}')
    a(f'v_and_b32 v{vt1}, 1, v{vG}')
    a(f'v_lshlrev_b32 v{vt1}, 5, v{vt1}')
    a(f'v_lshrrev_b32 v{vt2}, 1, v{vG}')
    a(f'v_lshl_add_u32 v{vt1}, v{vt2}, 4, v{vt1}')
    a(f'v_add_u32 v{vOut}, v{vt0}, v{vt1}')
    a(f'v_lshl_add_u32 v{vt3}, v{vG}, 3, v{vt0}')
    a('s_barrier')
    p.stamp(12)
    a(f's_mov_b32 s33, s{sPH}')
    for ph in range(4):
        a(f's_lshl_b32 s{st0}, s33, 12')
        a(f's_add_u32 s{40+2*ph}, s32, s{st0}')
        a(f's_add_u32 s{41+2*ph}, s{40+2*ph}, 16384')
        a('s_add_u32 s33, s33, 1')
        a('s_and_b32 s33, s33, 3')
    def xloads(st):
        L=[]
        if st<16:
            for u in range(2):
                L.append(f'buffer_load_dwordx4 {vr(vX+(st*2+u)*4,4)}, v{vXo}, s[{sX}:{sX+3}], s{40+2*(st//4)+u} offen offset:{(st%4)*1024} {SL}')
        elif st<20:
            for u in range(2):
                for hh in range(2):
                    L.append(f'buffer_load_dwordx2 {vr(vX+(st*2+u)*4+2*hh,2)}, v{vX2}, s[{sX}:{sX+3}], s{36+u} offen offset:{(st-16)*1024+hh*512} {SL}')
        return L
    for st in range(XD):
        for l in xloads(st): a(l)
    if BPROF==3: p.stamp(1,force=True)
    a('s_waitcnt lgkmcnt(0)')
    srd(a,sO,50,51,2048*2560)
    def trr(s,cp,h):
        buf=vWf+(s&1)*20+cp*4+2*h
        if s<16: return f'ds_read_b64_tr_b16 {vr(buf,2)}, v{vTp+((s//4)&1)} offset:{(s%4)*6400+cp*32+h*1280}'
        o=(s-16)*25600+cp*32+h*12800
        if o<65536: return f'ds_read_b64_tr_b16 {vr(buf,2)}, v{vTq} offset:{o}'
        return f'ds_read_b64_tr_b16 {vr(buf,2)}, v{vTq+1} offset:{o-51200}'
    def setp(ph):
        a(f's_mul_i32 s{st0}, s{sPH}, {4*6400}')
        a(f'v_add_u32 v{vTp+(ph&1)}, s{st0}, v{vTr}')
        a(f's_add_u32 s{sPH}, s{sPH}, 1')
        a(f's_and_b32 s{sPH}, s{sPH}, 3')
    a(f'v_add_u32 v{vTq+1}, 51200, v{vTq}')
    setp(0)
    for cp in range(5):
        a(trr(0,cp,0)); a(trr(0,cp,1))
    nl=lambda st: len(xloads(st))
    for s in range(20):
        if s%4==0 and s//4+1<4: setp(s//4+1)
        nxt=[trr(s+1,cp,h) for cp in range(5) for h in range(2)] if s+1<20 else []
        xl=xloads(s+XD)
        buf=vWf+(s&1)*20
        younger=sum(nl(t) for t in range(s+1,min(s+XD,20)))
        a(f's_waitcnt lgkmcnt(0) vmcnt({younger})')
        if BPROF==3 and s in (0,4,8,12,16,19): p.stamp(2+(0,4,8,12,16,19).index(s),force=True)
        k=0
        for cp in range(5):
            for u in range(2):
                ac=vAcc+(cp*2+u)*4
                a(f'v_mfma_f32_16x16x32_bf16 {vr(ac,4)}, {vr(buf+cp*4,4)}, {vr(vX+(s*2+u)*4,4)}, {vr(ac,4)}')
                for _ in range(2 if k<5 else 0):
                    if nxt: a(nxt.pop(0))
                if k>=5 and xl: a(xl.pop(0))
                k+=1
        assert not xl
    a('s_nop 7')
    p.stamp(13)
    a(f's_mul_i32 s{st0}, s{sBR}, 1280')
    a(f's_mul_i32 s{st1}, s{sNT}, 160')
    a(f's_add_u32 s{st0}, s{st0}, s{st1}')
    a(f's_add_u32 s{st1}, s{st0}, {16*2560}')
    for u in range(2):
        for cp in range(5):
            b=vAcc+(cp*2+u)*4
            a(f'v_cvt_pk_bf16_f32 v{b}, v{b}, v{b+1}')
            a(f'v_cvt_pk_bf16_f32 v{b+1}, v{b+2}, v{b+3}')
        for cp in (0,2):
            b=vAcc+(cp*2+u)*4; b2=vAcc+((cp+1)*2+u)*4
            a(f'v_mov_b32 v{b+2}, v{b2}')
            a(f'v_mov_b32 v{b+3}, v{b2+1}')
            a('s_nop 1')
            a(f'v_permlane16_swap_b32 v{b}, v{b+2}')
            a(f'v_permlane16_swap_b32 v{b+1}, v{b+3}')
            a('s_nop 1')
            a(f'buffer_store_dwordx4 {vr(b,4)}, v{vOut}, s[{sO}:{sO+3}], s{st0+u} offen offset:{cp*32} {SO}')
        b=vAcc+(4*2+u)*4
        a(f'buffer_store_dwordx2 {vr(b,2)}, v{vt3}, s[{sO}:{sO+3}], s{st0+u} offen offset:128 {SO}')
    return vEnd

def build(**kw):
    a=A(); p=Prof(a)
    a.raw(f'.globl {KNAME}'); a.raw('.p2align 8'); a.raw(f'.type {KNAME},@function'); a.lab(KNAME)
    a('s_cmp_ge_u32 s2, 256')
    a('s_cbranch_scc1 L_exit')
    p.real(0); p.stamp(0)
    a(f's_load_dwordx4 s[{sDBG}:{sDBG+3}], s[0:1], 56' if False else f's_load_dwordx2 s[{sDBG}:{sDBG+1}], s[0:1], 56')
    a(f's_load_dwordx2 s[{sWS}:{sWS+1}], s[0:1], 64')
    a('s_load_dwordx4 s[16:19], s[0:1], 0')
    a('s_load_dwordx4 s[20:23], s[0:1], 24')
    a(f's_mov_b32 s{sWG}, s2')
    a('v_lshrrev_b32 v2, 6, v0')
    a('s_nop 0')
    a(f'v_readfirstlane_b32 s{sWV}, v2')
    a(f's_cmp_lg_u32 s{sWG}, 0')
    a('s_cbranch_scc1 L_notok')
    a(f's_cmp_lg_u32 s{sWV}, 4')
    a('s_cbranch_scc1 L_notok')
    a('s_memrealtime s[56:57]')
    a('s_waitcnt lgkmcnt(0)')
    a('s_or_b32 s56, s56, 1')
    a('s_mov_b64 exec, 1')
    a('v_mov_b32 v2, 0')
    a('v_mov_b32 v3, s56')
    a(f'global_store_dword v2, v3, s[{sDBG}:{sDBG+1}] sc1')
    a('s_mov_b64 exec, -1')
    a.lab('L_notok')
    if CPF:
        a(f's_cmp_lg_u32 s{sWV}, 5')
        a('s_cbranch_scc1 L_nocpf')
        a('s_getpc_b64 s[56:57]')
        a.lab('L_pc')
        a(f's_lshr_b32 s58, s{sWG}, 3')
        a('s_and_b32 s58, s58, 31')
        a('s_lshl_b32 s58, s58, 10')
        a('v_and_b32 v2, 63, v0')
        a('v_lshlrev_b32 v2, 4, v2')
        a('v_add_u32 v2, s58, v2')
        a(f'v_min_u32 v2, CODE_BYTES-16, v2')
        a('global_load_dwordx4 v[84:87], v2, s[56:57]')
        a.lab('L_nocpf')
    v1=phase1(a,p,**kw.get('p1',{}))
    v2,info=phase2(a,p,**kw.get('p2',{}))
    v3=phase3(a,p,info,**kw.get('p3',{}))
    a.lab('L_done')
    if PROF:
        a('s_waitcnt vmcnt(0)')
        p.real(1); p.dump()
    a('s_endpgm')
    a.lab('L_exit')
    a('s_endpgm')
    a.lab('L_code_end')
    a.raw('.set CODE_BYTES, (L_code_end - L_pc) & 0xfffffff0' if CPF else '')
    vg=max(v1,v2,v3)
    desc=f'''.section .rodata,"a"
.p2align 6
.amdhsa_kernel {KNAME}
  .amdhsa_next_free_vgpr {vg}
  .amdhsa_next_free_sgpr 102
  .amdhsa_accum_offset {(vg+3)//4*4}
  .amdhsa_group_segment_fixed_size 0
  .amdhsa_kernarg_size 72
  .amdhsa_user_sgpr_count 2
  .amdhsa_user_sgpr_kernarg_segment_ptr 1
  .amdhsa_system_sgpr_workgroup_id_x 1
.end_amdhsa_kernel
'''
    hdr=open('cdna_kernels/'+NAME+'.s.ref').read().split('\n')
    out=[]
    for l in hdr:
        if l.startswith('; @launch'): out.append('; @launch grid=(256,1,1) block=(512,1,1) lds=163840'); continue
        if not l.startswith(';'): break
        out.append(l)
    out += [
     '; One persistent launch, one workgroup per CU, three phases chained by flags in d_ws (tagged with a per-launch token kept in d_debug[0]):',
     ';  1. QKV projections (128x128 tiles, branch B tile then branch A tile; waves 4-7 stage X/W by LDS-DMA, waves 0-3 run the MFMAs);',
     ';     Q (pre-scaled by log2(e)/sqrt(20)), K and V are written as MFMA fragment images.',
     ';  2. attention per (head, 256 queries): full attention for B (64 queries per wave, key range split over wave pairs and merged),',
     ';     sliding window for A.  Softmax subtracts the max of a sample of the keys of the row; if the row sum shows that this',
     ';     stand-in was unsafe (>= 2^100 or NaN) the tile is recomputed with the exact row max.',
     ';  3. output projection (128 tokens x 80 columns per workgroup).']
    out.append('.amdgcn_target "amdgcn-amd-amdhsa--gfx950"'); out.append('.text')
    return '\n'.join(out)+'\n'+a.txt()+desc

if __name__=='__main__':
    if len(sys.argv)>2 and sys.argv[2]=='prof': PROF=True
    kw=eval(sys.argv[3]) if len(sys.argv)>3 else {}
    if 'CPF' in kw: CPF=kw.pop('CPF')
    if 'JMAP' in kw: JMAP=kw.pop('JMAP')
    if 'NOPOLL3' in kw: NOPOLL3=kw.pop('NOPOLL3')
    if 'RT' in kw: RT=kw.pop('RT')
    if 'BPROF' in kw: BPROF=kw.pop('BPROF')
    if 'POLL' in kw: POLLC.update(kw.pop('POLL'))
    if 'SCO' in kw: SCO=kw.pop('SCO')
    if 'SO' in kw: SO=kw.pop('SO')
    if 'SL' in kw: SL=kw.pop('SL')
    if 'SC' in kw: SC=kw.pop('SC')
    open(sys.argv[1],'w').write(build(**kw))
```

```python
import sys, math, struct
NAME='concat_heads__sliding_block__mha_block__prompt'
KNAME=NAME+'_kernel'
WS_Q=0
WS_KV=2*32*64*1280
WS_O=WS_KV+2*32*64*2560
WS_END=WS_O+2*2048*1280
WS_FLG=WS_END
CSCALE=(20.0**-0.5)*math.log2(math.e)
NEG_BIG=0xf149f2ca
def f32bits(x): return struct.unpack('<I',struct.pack('<f',x))[0]
class A:
    def __init__(s): s.l=[]
    def __call__(s,x): s.l.append('  '+x)
    def lab(s,x): s.l.append(x+':')
    def raw(s,x): s.l.append(x)
    def txt(s): return '\n'.join(s.l)+'\n'
def vr(a,n=1): return f'v{a}' if n==1 else f'v[{a}:{a+n-1}]'
PROF=False
BPROF=False
OPM=True
NOPOLL3=False
JMAP=False
CPF=True
RT=False
PROF_BASE=32<<20
NST=16
class Prof:
    def __init__(s,a): s.a=a; s.n=0
    def stamp(s,i=None,force=False):
        if not PROF: return
        if BPROF==2 and not force and i not in (0,7,8): return
        if BPROF==3 and not force and i not in (0,12,13): return
        if i is None: i=s.n
        s.n=max(s.n,i+1)
        assert i<14
        s.a(f's_memrealtime s[{60+2*i}:{61+2*i}]' if RT else f's_memtime s[{60+2*i}:{61+2*i}]')
    def real(s,idx):
        if PROF: s.a(f's_memrealtime s[{88+2*idx}:{89+2*idx}]')
    def dump(s):
        if not PROF: return
        a=s.a
        a('s_waitcnt lgkmcnt(0) vmcnt(0)')
        a(f's_lshl_b32 s92, s{sWG}, 3')
        a(f's_add_u32 s92, s92, s{sWV}')
        a('s_lshl_b32 s92, s92, 6')
        a(f's_add_u32 s92, s92, {PROF_BASE}')
        a(f's_add_u32 s94, s{sWS}, s92')
        a(f's_addc_u32 s95, s{sWS+1}, 0')
        a('v_mov_b32 v0, 0')
        a('s_mov_b64 exec, 1')
        for i in range(14):
            a(f'v_mov_b32 v1, s{60+2*i}')
            a(f'global_store_dword v0, v1, s[94:95] offset:{4*i}')
        a('v_mov_b32 v1, s88'); a('global_store_dword v0, v1, s[94:95] offset:56')
        a('v_mov_b32 v1, s90'); a('global_store_dword v0, v1, s[94:95] offset:60')
        a('s_waitcnt vmcnt(0)')
sWG=96; sWV=97; sDBG=98; sWS=100; sTOK=59
def srd(a, d, lo, hi, nbytes):
    a(f's_mov_b32 s{d}, s{lo}')
    a(f's_and_b32 s{d+1}, s{hi}, 0xffff')
    a(f's_mov_b32 s{d+2}, {nbytes}')
    a(f's_mov_b32 s{d+3}, 0x20000')

SC='sc1'
SL=''
SO=''
SCO='sc1'

TILE=2560; HALF=81920
P2M=212
P2C=list(range(244,256))
def head_j(a,sH,sJ_,t0,t1):
    if JMAP:
        a(f's_lshr_b32 s{sH}, s{sWG}, 3')
        a(f's_and_b32 s{sJ_}, s{sWG}, 7')
        return
    a(f's_and_b32 s{t0}, s{sWG}, 7')
    a(f's_lshr_b32 s{t1}, s{sWG}, 3')
    a(f's_lshl_b32 s{sH}, s{t0}, 2')
    a(f's_lshr_b32 s{t0}, s{t1}, 3')
    a(f's_add_u32 s{sH}, s{sH}, s{t0}')
    a(f's_and_b32 s{sJ_}, s{t1}, 7')
def q_prep(a):
    head_j(a,50,51,52,53)
    a('s_lshl_b32 s50, s50, 6')
    a('s_lshl_b32 s51, s51, 3')
    a('s_add_u32 s50, s50, s51')
    a(f's_and_b32 s51, s{sWV}, 3')
    a('s_lshl_b32 s51, s51, 1')
    a('s_add_u32 s50, s50, s51')
    a('s_mul_i32 s50, s50, 1280')
    a(f's_add_u32 s50, s50, {32*64*1280}')
    a('s_add_u32 s51, s50, 1280')
    srd(a,52,sWS,sWS+1,WS_O)
    a('v_and_b32 v5, 31, v1')
    a('v_lshlrev_b32 v5, 3, v5')
    a('v_lshrrev_b32 v4, 5, v1')
    a('v_mul_u32_u24 v33, 1280, v4')
    a('v_lshl_add_u32 v4, v4, 8, v5')
    a('v_add3_u32 v5, v5, v33, 0')
    a('v_add_u32 v5, 1024, v5')
def q_loads(a):
    for (r1,so) in ((16,50),(24,51)):
        a(f'buffer_load_dwordx2 v[{r1}:{r1+1}], v4, s[52:55], s{so} offen {SL}')
        a(f'buffer_load_dwordx2 v[{r1+2}:{r1+3}], v4, s[52:55], s{so} offen offset:512 {SL}')
    a(f'buffer_load_dwordx2 v[20:21], v5, s[52:55], s50 offen {SL}')
def q_issue(a):
    q_prep(a); q_loads(a)
def kv_first(a,pieces,rows=(0,HALF,8192,HALF+8192)):
    head_j(a,50,51,52,53)
    a(f's_mul_i32 s50, s50, {64*TILE}')
    a(f's_add_u32 s50, s50, {WS_KV+32*64*TILE}')
    a(f's_add_u32 s52, s{sWS}, s50')
    a(f's_addc_u32 s53, s{sWS+1}, 0')
    a('s_and_b32 s53, s53, 0xffff')
    a('s_mov_b32 s54, 163840')
    a('s_mov_b32 s55, 0x20000')
    a('v_lshlrev_b32 v2, 4, v1')
    for row in rows:
        for pc in pieces:
            a(f's_add_u32 m0, s{pc[0]}, {row+pc[1]}')
            a(f's_add_u32 s50, s{pc[0]}, {row+pc[1]}')
            a(f'buffer_load_dwordx4 v2, s[52:55], s50 offen {SL} lds')
def poll_f1(a,tag,br):
    head_j(a,50,51,52,53)
    a('s_mul_i32 s50, s50, 20')
    a('s_lshr_b32 s51, s50, 7')
    a('s_add_u32 s50, s50, 19')
    a('s_lshr_b32 s50, s50, 7')
    a('s_sub_u32 s50, s50, s51')
    a('v_bfe_u32 v2, v1, 4, 1')
    a('v_mul_u32_u24 v2, s50, v2')
    a('v_add_u32 v2, s51, v2')
    a('v_lshrrev_b32 v5, 5, v1')
    a('v_mul_u32_u24 v5, 5, v5')
    a('v_add_u32 v5, v5, v2')
    a('v_add_u32 v14, 10, v2')
    a('v_and_b32 v2, 15, v1')
    a('v_lshl_add_u32 v5, v5, 4, v2')
    a('v_lshl_add_u32 v14, v14, 4, v2')
    a('v_lshlrev_b32 v5, 7, v5')
    a('v_lshlrev_b32 v14, 7, v14')
    a(f'v_add_u32 v5, {WS_FLG+br*15*16*128}, v5')
    a(f'v_add_u32 v14, {WS_FLG+br*15*16*128}, v14')
    poll2(a,tag,5,14,(1<<64)-1)

def p2_early(a,tag):
    vLane=1; vt0=2; vt1=3; vt2=4; vt3=5; vCc=6; st0=50; sTm=52; sJ=51; sLo=56
    vK1a,vK2a,vVa,vVb,vDma,vRho,vOoff,vOo2,vQ1o,vQ2o,vWo,vKap=P2C
    vMF=P2M; vML=P2M+16
    head_j(a,50,sJ,52,53)
    a(f'v_lshlrev_b32 v{vDma}, 4, v{vLane}')
    a(f'v_and_b32 v{vRho}, 31, v{vLane}')
    a(f'v_lshlrev_b32 v{vt1}, 3, v{vRho}')
    a(f'v_add_u32 v{vK2a}, 1024, v{vt1}')
    a(f'v_mov_b32 v{vt2}, 0x70000000')
    a(f'v_cmp_gt_u32 s[{sLo}:{sLo+1}], 32, v{vLane}')
    a('s_nop 1')
    a(f'v_cndmask_b32 v{vQ2o}, v{vt2}, v{vK2a}, s[{sLo}:{sLo+1}]')
    a(f'v_lshrrev_b32 v{vt0}, 5, v{vLane}')
    a(f'v_lshlrev_b32 v{vK1a}, 3, v{vRho}')
    a(f'v_lshl_add_u32 v{vK1a}, v{vt0}, 8, v{vK1a}')
    a(f'v_mov_b32 v{vQ1o}, v{vK1a}')
    a(f'v_bfe_u32 v{vt1}, v{vRho}, 2, 2')
    a(f'v_xor_b32 v{vt1}, v{vt1}, v{vt0}')
    a(f'v_lshlrev_b32 v{vt1}, 4, v{vt1}')
    a(f'v_lshl_add_u32 v{vVa}, v{vRho}, 6, v{vt1}')
    a(f'v_add_u32 v{vVa}, 1280, v{vVa}')
    a(f'v_xor_b32 v{vVb}, 32, v{vVa}')
    a(f'v_and_b32 v{vt1}, 1, v{vRho}')
    a(f'v_lshlrev_b32 v{vKap}, 4, v{vt1}')
    a(f'v_lshrrev_b32 v{vt1}, 4, v{vRho}')
    a(f'v_lshl_or_b32 v{vKap}, v{vt1}, 3, v{vKap}')
    a(f'v_and_b32 v{vt1}, 4, v{vRho}')
    a(f'v_or_b32 v{vKap}, v{vKap}, v{vt1}')
    a(f'v_bfe_u32 v{vt1}, v{vRho}, 3, 1')
    a(f'v_lshl_or_b32 v{vKap}, v{vt1}, 1, v{vKap}')
    a(f'v_bfe_u32 v{vt1}, v{vRho}, 1, 1')
    a(f'v_or_b32 v{vKap}, v{vKap}, v{vt1}')
    a(f'v_lshlrev_b32 v{vt3}, 2, v{vt0}')
    a(f'v_sub_u32 v{vt3}, v{vKap}, v{vt3}')
    a(f'v_mov_b32 v{vt2}, {NEG_BIG:#x}')
    for r in range(16):
        base=(r&3)+8*(r>>2)
        kb=16*(r&1)+8*((r>>3)&1)+2*((r>>2)&1)+((r>>1)&1)
        if r>=2:
            q=r-2
            a(f'v_cndmask_b32 v{vMF+q}, v{vt2}, 0, s[{sTm+2*(q&1)}:{sTm+1+2*(q&1)}]')
            a(f'v_cndmask_b32 v{vML+q}, 0, v{vt2}, s[{sTm+2*(q&1)}:{sTm+1+2*(q&1)}]')
        a(f'v_cmp_gt_i32 s[{sTm+2*(r&1)}:{sTm+1+2*(r&1)}], {kb}, v{vt3}')
        if r==0: a('s_nop 0')
        if r==1: a('s_nop 1')
    a('s_nop 1')
    for q in (14,15):
        a(f'v_cndmask_b32 v{vMF+q}, v{vt2}, 0, s[{sTm+2*(q&1)}:{sTm+1+2*(q&1)}]')
        a(f'v_cndmask_b32 v{vML+q}, 0, v{vt2}, s[{sTm+2*(q&1)}:{sTm+1+2*(q&1)}]')
    a(f's_cmp_lg_u32 s{sJ}, 0')
    a(f's_cbranch_scc1 L_mf_ok_{tag}')
    for r in range(16): a(f'v_mov_b32 v{vMF+r}, v{vt2}')
    a.lab(f'L_mf_ok_{tag}')
    a(f'v_lshrrev_b32 v{vt1}, 4, v{vKap}')
    a(f'v_and_b32 v{vt2}, 15, v{vKap}')
    a(f'v_lshlrev_b32 v{vOoff}, 14, v{vt1}')
    a(f'v_lshl_add_u32 v{vOoff}, v{vt2}, 4, v{vOoff}')
    a(f'v_lshrrev_b32 v{vt3}, 5, v{vLane}')
    a(f'v_lshl_add_u32 v{vOoff}, v{vt3}, 8, v{vOoff}')
    a(f'v_lshlrev_b32 v{vOo2}, 12, v{vt1}')
    a(f'v_lshl_add_u32 v{vOo2}, v{vt2}, 3, v{vOo2}')
    a(f's_lshl_b32 s{st0}, s{sWV}, 6')
    a(f'v_add_u32 v{vt0}, s{st0}, v{vLane}')
    a(f'v_mul_u32_u24 v{vt1}, 52429, v{vt0}')
    a(f'v_lshrrev_b32 v{vt1}, 19, v{vt1}')
    a(f'v_mul_u32_u24 v{vt2}, 10, v{vt1}')
    a(f'v_sub_u32 v{vCc}, v{vt0}, v{vt2}')
    a(f'v_mul_u32_u24 v{vt1}, 1280, v{vt1}')
    a(f'v_lshl_add_u32 v{vWo}, v{vCc}, 4, v{vt1}')


class Att:
    def __init__(s,a):
        s.a=a
        s.vK1a,s.vK2a,s.vVa,s.vVb,s.vDma,s.vRho,s.vOoff,s.vOo2,s.vQ1o,s.vQ2o,s.vWo,s.vKap=P2C
        s.vt1=3; s.vM=10; s.vMb=35
        s.vQa1=16; s.vQab=20; s.vQa2=22; s.vQb1=24; s.vK1=28; s.vK2=32
        s.vV=36; s.vP=52; s.vSa=64; s.vSb=80; s.vOa=96; s.vOb=112; s.vCa=128; s.vCb=144; s.vS1=160
        s.sVm=24; s.sTm=40
    def rd_k1(s,dst,off,ad=None):
        assert off%512==0 and off//512+1<256
        s.a(f'ds_read2st64_b64 {vr(dst,4)}, v{s.vK1a if ad is None else ad} offset0:{off//512} offset1:{off//512+1}')
    def rd_k2(s,dst,off,ad=None): s.a(f'ds_read_b64 {vr(dst,2)}, v{s.vK2a if ad is None else ad} offset:{off}')
    def rd_v(s,buf,off,ada=None,adb=None):
        a=s.a
        a(f's_mov_b64 exec, s[{s.sVm}:{s.sVm+1}]')
        a(f'ds_read_b128 {vr(s.vV+8*buf,4)}, v{s.vVa if ada is None else ada} offset:{off}')
        a(f'ds_read_b128 {vr(s.vV+8*buf+4,4)}, v{s.vVb if adb is None else adb} offset:{off}')
        a('s_mov_b64 exec, -1')
    def qk1(s,S,C,Q1,K=None): s.a(f'v_mfma_f32_32x32x16_bf16 {vr(S,16)}, {vr(s.vK1 if K is None else K,4)}, {vr(Q1,4)}, {C}')
    def qk2(s,S,Q2,K=None): s.a(f'v_mfma_f32_32x32x8bf16_1k {vr(S,16)}, {vr(s.vK2 if K is None else K,2)}, {vr(Q2,2)}, {vr(S,16)}')
    def qk2b(s,S): s.a(f'v_mfma_f32_32x32x4bf16_1k {vr(S,32)}, {vr(s.vK2,2)}, {vr(s.vQab,2)}, {vr(S,32)}')
    def pv(s,O,buf,t): s.a(f'v_mfma_f32_32x32x16_bf16 {vr(O,16)}, {vr(s.vV+8*buf+4*t,4)}, {vr(s.vP+4*t,4)}, {vr(O,16)}')
    def ex(s,S,r): s.a(f'v_exp_f32 v{S+r}, v{S+r}')
    def cv(s,S,c): s.a(f'v_cvt_pk_bf16_f32 v{s.vP+c}, v{S+2*c}, v{S+2*c+1}')
    def rowmax(s,M,S,first):
        a=s.a
        if first:
            a(f'v_max3_f32 v{M}, v{S}, v{S+1}, v{S+2}'); rest=list(range(3,16))
        else: rest=list(range(16))
        while len(rest)>=2:
            a(f'v_max3_f32 v{M}, v{M}, v{S+rest[0]}, v{S+rest[1]}'); rest=rest[2:]
        if rest: a(f'v_max_f32 v{M}, v{M}, v{S+rest[0]}')
    def xhalf_max(s,M):
        a=s.a
        a(f'v_mov_b32 v{s.vt1}, v{M}')
        a('s_nop 1')
        a(f'v_permlane32_swap_b32 v{M}, v{s.vt1}')
        a('s_nop 1')
        a(f'v_max_f32 v{M}, v{M}, v{s.vt1}')
    def vinit(s):
        a=s.a
        a(f'v_cmp_eq_u32 s[{s.sTm}:{s.sTm+1}], 20, v{s.vRho}')
        a(f'v_mov_b32 v{s.vt1}, 0x3f803f80')
        a('s_nop 0')
        a(f'v_cndmask_b32 v{s.vt1}, 0, v{s.vt1}, s[{s.sTm}:{s.sTm+1}]')
        for i in range(16): a(f'v_mov_b32 v{s.vV+i}, v{s.vt1}')
    def expgroups(s,cur,A_,B_,C_,D_):
        ex=s.ex; cv=s.cv
        A_()
        for r in range(0,4): ex(cur,r)
        B_()
        ex(cur,4); ex(cur,5); cv(cur,0); ex(cur,6); cv(cur,1); ex(cur,7)
        C_()
        ex(cur,8); cv(cur,2); ex(cur,9); cv(cur,3); ex(cur,10); ex(cur,11)
        D_()
        ex(cur,12); ex(cur,13); cv(cur,4); ex(cur,14); cv(cur,5); ex(cur,15); cv(cur,6); cv(cur,7)
    def key_tile(s,pp,k2,v1):
        SP=[s.vSa,s.vS1]; cur=SP[pp&1]; nxt=SP[(pp+1)&1]
        ka,ko=k2; va,vo=v1
        s.a('s_waitcnt lgkmcnt(0)')
        s.expgroups(cur,
            lambda: s.qk1(nxt,vr(s.vCa,16),s.vQa1),
            lambda: (s.pv(s.vOb,(pp+1)&1,1), s.rd_v((pp+1)&1,vo,*( (va[2],va[3]) if va else (None,None)))),
            lambda: (s.qk1(nxt+16,vr(s.vCb,16),s.vQb1), s.rd_k1(s.vK1,ko,ka[0] if ka else None)),
            lambda: s.pv(s.vOa,pp&1,0))
        s.expgroups(cur+16,
            lambda: (s.qk2b(nxt), s.rd_k2(s.vK2,ko,ka[1] if ka else None)),
            lambda: None,
            lambda: s.pv(s.vOa,pp&1,1),
            lambda: s.pv(s.vOb,pp&1,0))
    def standin(s,ad):
        a=s.a
        s.rd_k1(s.vK1,0,ad[0]); s.rd_k2(s.vK2,0,ad[1])
        a('s_waitcnt lgkmcnt(0)')
        s.qk1(s.vSa,'0',s.vQa1); s.qk1(s.vSb,'0',s.vQb1)
        a('s_nop 9')
        s.qk2b(s.vSa)
    def standin2(s):
        a=s.a
        a('s_nop 15'); a('s_nop 3')
        s.rowmax(s.vM,s.vSa,True); s.rowmax(s.vMb,s.vSb,True)
        s.xhalf_max(s.vM); s.xhalf_max(s.vMb)
        for r in range(16): a(f'v_sub_f32 v{s.vCa+r}, 0, v{s.vM}')
        for r in range(16): a(f'v_sub_f32 v{s.vCb+r}, 0, v{s.vMb}')
    def first_tile(s,off,off1):
        a=s.a
        a('s_waitcnt lgkmcnt(0)')
        s.qk1(s.vSa,vr(s.vCa,16),s.vQa1); s.qk1(s.vSb,vr(s.vCb,16),s.vQb1)
        s.rd_k1(s.vK1,off1)
        a('s_nop 9')
        s.qk2b(s.vSa)
        s.rd_k2(s.vK2,off1)
        a('s_nop 15')
        a('s_nop 1')

def phase1(a,p,D=3,SY=1,LP='',EARLY2=False,SPF=False,SPFN=6,XROT=(2,1),LPRIO=2,EPRIO=1,EH=(0,0,2),TF=11,TP=15):
    R=4; XOFF=16384
    sX,sW,sO=4,8,12
    sBR,sMT,sNT=26,27,28
    sKS=31; sXo=32; sW0=34; sIT=36; sSlot=37; sLW=38; sLX=39; sT=40
    st0,st1,st2,st3=41,42,43,44
    sSec=45; sBase=46; sHS=47; sTS=48; sNx=30; sM=29; sN=33; sIdx=35
    vLane=1; vt0=6; vt1=7; vt2=8; vt3=9; vt4=10; vTok=11; vG=12; vRho=13
    vLW=8; vLX=10; vXh=2; vXc1=3
    vB0=14; vBc=19; vBn=24; vAd=29
    vWf=36; vXf=vWf+32; vAcc=vXf+4*(D+1); vEnd=vAcc+128
    assert vEnd<=256 and 8%(D+1)==0
    def wf(step,c): return vWf+(step&1)*16+c*4
    def xf(i): return vXf+(i%(D+1))*4
    def acc(t,c,mt): return vAcc+t*64+(c*4+mt)*4
    def slotbase(dst,idx):
        a(f's_lshl_b32 s{dst}, s{idx}, 15')
        a(f's_lshr_b32 s{st3}, s{idx}, 1')
        a(f's_lshl_b32 s{st3}, s{st3}, 14')
        a(f's_add_u32 s{dst}, s{dst}, s{st3}')
        a(f's_add_u32 s{dst}, s{dst}, 16384')
    a(f'v_and_b32 v{vLane}, 63, v0')
    a(f's_and_b32 s{st0}, s{sWG}, 7')
    a(f's_lshr_b32 s{st1}, s{sWG}, 3')
    a(f's_and_b32 s{st2}, s{st0}, 1')
    a(f's_lshl_b32 s{st2}, s{st2}, 3')
    a(f's_and_b32 s{st3}, s{st1}, 7')
    a(f's_add_u32 s{sMT}, s{st2}, s{st3}')
    a(f's_lshr_b32 s{st2}, s{st0}, 1')
    a(f's_lshl_b32 s{st2}, s{st2}, 2')
    a(f's_lshr_b32 s{st1}, s{st1}, 3')
    a(f's_add_u32 s{sNT}, s{st2}, s{st1}')
    a(f's_cmp_ge_u32 s{sNT}, 15')
    a(f's_cbranch_scc1 L_p1_skip')
    a(f's_cmp_ge_u32 s{sWV}, 4')
    a(f's_cbranch_scc0 L_p1_compute')
    i_c=len(a.l)
    a.lab('L_p1_compute')
    p2_early(a,'c')
    a(f's_and_b32 s{sM}, s{sWV}, 1')
    a(f's_lshr_b32 s{sN}, s{sWV}, 1')
    a(f'v_and_b32 v{vTok}, 15, v{vLane}')
    a(f'v_lshrrev_b32 v{vG}, 4, v{vLane}')
    a(f'v_and_b32 v{vt0}, 3, v{vLane}')
    a(f'v_bfe_u32 v{vt1}, v{vLane}, 2, 2')
    a(f'v_and_b32 v{vt2}, 1, v{vG}')
    a(f'v_lshl_or_b32 v{vt2}, v{vt2}, 2, v{vt1}')
    a(f'v_lshl_add_u32 v{vt3}, v{vG}, 3, v{vt1}')
    a(f'v_lshlrev_b32 v{vt3}, 8, v{vt3}')
    a(f'v_lshl_add_u32 v{vt3}, v{vt0}, 3, v{vt3}')
    a(f's_lshl_b32 s{st0}, s{sN}, 2')
    a(f'v_xor_b32 v{vt2}, s{st0}, v{vt2}')
    for c in range(4):
        a(f'v_xor_b32 v{vt4}, {c}, v{vt2}')
        a(f'v_lshl_add_u32 v{vB0+c}, v{vt4}, 5, v{vt3}')
    a(f'v_lshrrev_b32 v{vt0}, 1, v{vTok}')
    a(f'v_xor_b32 v{vt0}, v{vt0}, v{vG}')
    a(f'v_lshlrev_b32 v{vt0}, 4, v{vt0}')
    a(f'v_lshl_add_u32 v{vt0}, v{vTok}, 7, v{vt0}')
    a(f's_lshl_b32 s{st0}, s{sM}, 13')
    a(f's_add_u32 s{st0}, s{st0}, {XOFF}')
    a(f'v_add_u32 v{vB0+4}, s{st0}, v{vt0}')
    a(f'v_xor_b32 v{vXh}, 64, v{vt0}')
    a(f'v_sub_u32 v{vXh}, v{vXh}, v{vt0}')
    for i in range(5): a(f'v_add_u32 v{vBc+i}, 16384, v{vB0+i}')
    for i in range(128): a(f'v_mov_b32 v{vAcc+i}, 0')
    a(f's_mul_i32 s{sSec}, s{sNT}, 52')
    a(f's_lshr_b32 s{sSec}, s{sSec}, 8')
    a(f's_mul_i32 s{st0}, s{sSec}, 5')
    a(f's_sub_u32 s{st0}, s{sNT}, s{st0}')
    a(f's_lshl_b32 s{st0}, s{st0}, 7')
    a(f's_lshl_b32 s{st1}, s{sN}, 6')
    a(f's_add_u32 s{st0}, s{st0}, s{st1}')
    a(f's_cmp_eq_u32 s{sSec}, 0')
    a(f's_cselect_b32 s{st1}, 0, 1')
    a(f's_cselect_b32 s{st2}, 0, {WS_KV}')
    a(f's_lshl_b32 s{sTS}, 1280, s{st1}')
    a(f's_lshl_b32 s{sHS}, s{sTS}, 6')
    a(f's_lshl_b32 s{sT}, s{sMT}, 2')
    a(f's_lshl_b32 s{st1}, s{sM}, 1')
    a(f's_add_u32 s{sT}, s{sT}, s{st1}')
    a(f's_mul_i32 s{st1}, s{sT}, s{sTS}')
    a(f's_add_u32 s{sBase}, s{st1}, s{st2}')
    a(f's_cmp_eq_u32 s{sSec}, 2')
    a(f's_cbranch_scc1 L_p1_adV')
    a(f'v_lshrrev_b32 v{vt0}, 3, v{vTok}')
    a(f'v_lshlrev_b32 v{vRho}, 7, v{vt0}')
    a(f'v_bfe_u32 v{vt0}, v{vTok}, 1, 1')
    a(f'v_lshl_or_b32 v{vRho}, v{vt0}, 6, v{vRho}')
    a(f'v_bfe_u32 v{vt0}, v{vTok}, 2, 1')
    a(f'v_lshl_or_b32 v{vRho}, v{vt0}, 5, v{vRho}')
    a(f'v_and_b32 v{vt0}, 1, v{vTok}')
    a(f'v_lshl_or_b32 v{vRho}, v{vt0}, 4, v{vRho}')
    a(f's_lshr_b32 s{st0}, s{st0}, 2')
    for c in range(4):
        a(f'v_add_u32 v{vt0}, s{st0}, v{vG}')
        if c: a(f'v_add_u32 v{vt0}, {4*c}, v{vt0}')
        a(f'v_mul_u32_u24 v{vt1}, 52429, v{vt0}')
        a(f'v_lshrrev_b32 v{vt1}, 18, v{vt1}')
        a(f'v_mul_u32_u24 v{vt2}, 5, v{vt1}')
        a(f'v_sub_u32 v{vt2}, v{vt0}, v{vt2}')
        a(f'v_mul_u32_u24 v{vt1}, s{sHS}, v{vt1}')
        a(f'v_and_b32 v{vt3}, 1, v{vt2}')
        a(f'v_lshlrev_b32 v{vt3}, 9, v{vt3}')
        a(f'v_lshrrev_b32 v{vt4}, 1, v{vt2}')
        a(f'v_cmp_eq_u32 s[56:57], 4, v{vt2}')
        a(f'v_lshl_add_u32 v{vt3}, v{vt4}, 8, v{vt3}')
        a(f'v_add_u32 v{vt4}, 512, v{vt3}')
        a(f'v_add_u32 v{vt1}, v{vt1}, v{vRho}')
        a(f'v_cndmask_b32 v{vt3}, v{vt3}, v{vt4}, s[56:57]')
        a(f'v_add_u32 v{vAd+c}, v{vt1}, v{vt3}')
    a('s_branch L_p1_adD')
    a.lab('L_p1_adV')
    for c in range(4):
        a(f'v_add_u32 v{vt0}, s{st0}, v{vTok}')
        if c: a(f'v_add_u32 v{vt0}, {16*c}, v{vt0}')
        a(f'v_mul_u32_u24 v{vt1}, 52429, v{vt0}')
        a(f'v_lshrrev_b32 v{vt1}, 20, v{vt1}')
        a(f'v_mul_u32_u24 v{vt2}, 20, v{vt1}')
        a(f'v_sub_u32 v{vt2}, v{vt0}, v{vt2}')
        a(f'v_mul_u32_u24 v{vt1}, {64*2560}, v{vt1}')
        a(f'v_lshl_add_u32 v{vt1}, v{vt2}, 6, v{vt1}')
        a(f'v_bfe_u32 v{vt2}, v{vt2}, 2, 2')
        a(f'v_xor_b32 v{vt2}, v{vt2}, v{vG}')
        a(f'v_lshl_add_u32 v{vt1}, v{vt2}, 4, v{vt1}')
        a(f'v_add_u32 v{vAd+c}, 1280, v{vt1}')
    a.lab('L_p1_adD')
    a('s_waitcnt lgkmcnt(0)')
    srd(a,sO,sWS,sWS+1,WS_O)
    q_prep(a)
    def wread(nxt,h,step,c,hh):
        b=(vBn if nxt else vBc)+c
        return f'ds_read_b64_tr_b16 {vr(wf(step,c)+2*hh,2)}, v{b} offset:{h*8192+1024*hh}'
    def xread(nxt,h,mt,buf):
        b=((vBn if nxt else vBc)+4) if h==0 else vXc1
        return f'ds_read_b128 {vr(xf(buf),4)}, v{b} offset:{mt*2048}'
    def epilogue(v,t,br):
        if v==0:
            a(f's_cmp_lg_u32 s{sSec}, 0')
            a(f's_cbranch_scc1 L_p1_ns{t}')
            a(f's_mov_b32 s{st1}, {f32bits(CSCALE):#x}')
            for i in range(64): a(f'v_mul_f32 v{vAcc+64*t+i}, s{st1}, v{vAcc+64*t+i}')
            a.lab(f'L_p1_ns{t}')
        a(f's_lshl_b32 s{st0}, s{sTS}, 11')
        a(f's_mul_i32 s{st0}, s{st0}, {br}')
        a(f's_add_u32 s{st0}, s{st0}, s{sBase}')
        for tp in range(2):
            if tp: a(f's_add_u32 s{st0}, s{st0}, s{sTS}')
            for c in range(4):
                b=acc(t,c,2*tp)
                if v==0:
                    a(f'v_cvt_pk_bf16_f32 v{b}, v{b}, v{b+1}')
                    a(f'v_cvt_pk_bf16_f32 v{b+1}, v{b+2}, v{b+3}')
                    a(f'v_cvt_pk_bf16_f32 v{b+2}, v{b+4}, v{b+5}')
                    a(f'v_cvt_pk_bf16_f32 v{b+3}, v{b+6}, v{b+7}')
                else:
                    a(f'v_cvt_pk_bf16_f32 v{b}, v{b}, v{b+4}')
                    a(f'v_cvt_pk_bf16_f32 v{b+1}, v{b+1}, v{b+5}')
                    a(f'v_cvt_pk_bf16_f32 v{b+2}, v{b+2}, v{b+6}')
                    a(f'v_cvt_pk_bf16_f32 v{b+3}, v{b+3}, v{b+7}')
                a(f'buffer_store_dwordx4 {vr(b,4)}, v{vAd+c}, s[{sO}:{sO+3}], s{st0} offen {SC}')
    a(f's_cmp_eq_u32 s{sSec}, 2')
    a(f's_cbranch_scc1 L_p1_v1')
    for v in range(2):
        a.lab(f'L_p1_v{v}')
        p.stamp(1)
        a('s_barrier')
        p.stamp(2)
        def body(emit,issued,t):
            waits=[]
            for st in range(2):
                for mt in range(4):
                    gi=st*4+mt
                    need=[('x',gi)]
                    if mt==0: need.append(('w',st))
                    last=max(len(issued)-1-issued[::-1].index(tg) for tg in need)
                    y=len(issued)-1-last
                    waits.append(y)
                    if emit:
                        y=min(y,wmin[len(waits)-1])
                        a(f's_waitcnt lgkmcnt({min(y,15)})')
                    fill=[]
                    g2=gi+D; nx=g2>=8; h2=(g2%8)//4; m2=g2%4
                    fill.append((xread(nx,h2,m2,g2),('x',g2%8)))
                    wm={0:(0,1),1:(2,3)} if st==1 else {0:(0,1),1:(2,3)}
                    if mt in wm:
                        for c in wm[mt]:
                            fill.append((wread(st==1,(st+1)&1,st+1,c,0),('w',(st+1)%2)))
                            fill.append((wread(st==1,(st+1)&1,st+1,c,1),('w',(st+1)%2)))
                    if st==0 and mt==0:
                        fill.append((f'v_add_u32 v{vXc1}, v{vBc+4}, v{vXh}',None))
                    if st==0 and mt==2:
                        fill.append((f's_add_u32 s{sIdx}, s{sIdx}, 1',None))
                        fill.append((f's_and_b32 s{sIdx}, s{sIdx}, 3',None))
                        fill.append((f's_lshl_b32 s{sNx}, s{sIdx}, 15',None))
                        fill.append((f's_lshr_b32 s{st3}, s{sIdx}, 1',None))
                        fill.append((f's_lshl_b32 s{st3}, s{st3}, 14',None))
                        fill.append((f's_add_u32 s{sNx}, s{sNx}, s{st3}',None))
                        fill.append((f's_add_u32 s{sNx}, s{sNx}, 16384',None))
                    if st==0 and mt==3:
                        for i in range(5): fill.append((f'v_add_u32 v{vBn+i}, s{sNx}, v{vB0+i}',None))
                    if st==1 and mt==3:
                        for i in range(5): fill.append((f'v_mov_b32 v{vBc+i}, v{vBn+i}',None))
                    for c in range(4):
                        x=xf(gi); w=wf(st,c); ac=acc(t,c,mt)
                        if emit:
                            if v==0: a(f'v_mfma_f32_16x16x32_bf16 {vr(ac,4)}, {vr(w,4)}, {vr(x,4)}, {vr(ac,4)}')
                            else:    a(f'v_mfma_f32_16x16x32_bf16 {vr(ac,4)}, {vr(x,4)}, {vr(w,4)}, {vr(ac,4)}')
                        k=1 if c<3 else len(fill)
                        if len(fill)>4 and c<3: k=2
                        while k>0 and fill:
                            tx,tag=fill.pop(0); k-=1
                            if emit: a(tx)
                            if tag: issued.append(tag)
                    if st==0 and mt==SY and emit:
                        if t==1:
                            a(f's_cmp_eq_u32 s{sIT}, {20-TF}'); a(f's_cbranch_scc0 L_p1_nw{v}'); a('s_waitcnt vmcnt(0)'); a.lab(f'L_p1_nw{v}')
                        a('s_barrier')
            return waits
        pro=[('w',0)]*8+[('x',i) for i in range(D)]
        iss=list(pro); w1=body(False,iss,0); w2=body(False,iss,0)
        wmin=[min(x,y) for x,y in zip(w1,w2)]
        a(f's_mov_b32 s{sIdx}, 0')
        for c in range(4):
            a(wread(False,0,0,c,0)); a(wread(False,0,0,c,1))
        for i in range(D): a(xread(False,0,i,i))
        for t in range(2):
            a(f's_mov_b32 s{sIT}, 10')
            a.lab(f'L_p1_loop{v}_{t}')
            body(True,list(pro),t)
            a(f's_sub_u32 s{sIT}, s{sIT}, 1')
            a(f's_cmp_lg_u32 s{sIT}, 0')
            a(f's_cbranch_scc1 L_p1_loop{v}_{t}')
            a('s_nop 7')
            if t==0:
                epilogue(v,0,1)
                a('s_nop 1')
                for r in range(96,128): a(f'v_mov_b32 v{r}, 0')
            else:
                p.stamp(3)
                a('s_waitcnt lgkmcnt(0)')
                q_loads(a)
                epilogue(v,1,0)
        a('s_mov_b32 s49, 8')
        a('s_branch L_p1_done')
    i_l=len(a.l)
    a.lab('L_p1_loader')
    if LPRIO: a(f's_setprio {LPRIO}')
    sLd=29; sRot0=30
    a(f's_sub_u32 s{sLd}, s{sWV}, 4')
    a(f's_mul_i32 s{st3}, s{st3}, 5')
    a(f's_lshr_b32 s{st3}, s{st3}, 2')
    a(f's_mul_i32 s{st1}, s{st1}, 5')
    a(f's_lshr_b32 s{st1}, s{st1}, 1')
    a(f's_add_u32 s{sKS}, s{st3}, s{st1}')
    if XROT:
        ra,rb=XROT
        a(f's_and_b32 s{st0}, s{sWG}, 7')
        a(f's_lshr_b32 s{st1}, s{st0}, 1')
        a(f's_mul_i32 s{st1}, s{st1}, {ra}')
        a(f's_add_u32 s{sKS}, s{sKS}, s{st1}')
        a(f's_and_b32 s{st0}, s{st0}, 1')
        a(f's_mul_i32 s{st0}, s{st0}, {rb}')
        a(f's_add_u32 s{sKS}, s{sKS}, s{st0}')
        for lim in (40,20):
            a(f's_cmp_ge_u32 s{sKS}, {lim}')
            a(f's_cselect_b32 s{st0}, {lim//2 if lim==20 else 20}, 0')
            a(f's_sub_u32 s{sKS}, s{sKS}, s{st0}')
        a(f's_cmp_ge_u32 s{sKS}, 20')
        a(f's_cselect_b32 s{st0}, 10, 0')
        a(f's_sub_u32 s{sKS}, s{sKS}, s{st0}')
    a(f's_cmp_ge_u32 s{sKS}, 10')
    a(f's_cselect_b32 s{st0}, 10, 0')
    a(f's_sub_u32 s{sKS}, s{sKS}, s{st0}')
    a(f's_mov_b32 s{sRot0}, s{sKS}')
    a(f's_lshl_b32 s{sLW}, s{sLd}, 12')
    a(f's_lshl_b32 s{sLX}, s{sLd}, 12')
    a(f's_add_u32 s{sLX}, s{sLX}, {XOFF}')
    a(f'v_lshrrev_b32 v{vt0}, 4, v{vLane}')
    a(f'v_bfe_u32 v{vt1}, v{vLane}, 1, 3')
    a(f'v_and_b32 v2, 1, v{vLane}')
    a(f's_lshl_b32 s{st2}, s{sLd}, 4')
    a(f's_lshl_b32 s{st1}, s{sNT}, 8')
    for jj in range(2):
        a(f'v_add_u32 v3, {4*jj}, v{vt0}')
        a(f'v_xor_b32 v3, v3, v{vt1}')
        a(f'v_lshl_add_u32 v4, v3, 1, v2')
        a(f'v_lshlrev_b32 v4, 4, v4')
        a(f'v_add_u32 v{vLW+jj}, s{st2}, v{vt0}')
        if jj: a(f'v_add_u32 v{vLW+jj}, 8, v{vLW+jj}')
        a(f'v_mul_u32_u24 v{vLW+jj}, 3840, v{vLW+jj}')
        a(f'v_add3_u32 v{vLW+jj}, v{vLW+jj}, v4, s{st1}')
    a(f'v_lshrrev_b32 v{vt0}, 3, v{vLane}')
    a(f'v_and_b32 v{vt1}, 7, v{vLane}')
    a(f's_lshl_b32 s{st0}, s{sMT}, 7')
    a(f's_lshl_b32 s{st1}, s{sLd}, 5')
    a(f's_add_u32 s{st0}, s{st0}, s{st1}')
    for uu in range(2):
        a(f'v_lshrrev_b32 v2, 1, v{vt0}')
        if uu: a(f'v_add_u32 v2, 4, v2')
        a(f'v_xor_b32 v2, v2, v{vt1}')
        a(f'v_add_u32 v3, s{st0}, v{vt0}')
        if uu: a(f'v_add_u32 v3, 8, v3')
        a(f'v_mul_u32_u24 v3, 1280, v3')
        a(f'v_lshl_add_u32 v{vLX+uu}, v2, 4, v3')
    a('s_waitcnt lgkmcnt(0)')
    srd(a,sX,20,21,2048*1280)
    srd(a,sW,22,23,640*3840)
    NL=8
    def wstep():
        a(f's_mul_i32 s{sW0}, s{sKS}, {64*3840}')
        a(f's_lshl_b32 s{sXo}, s{sKS}, 7')
        slotbase(sSlot,sIdx)
        a(f's_add_u32 s{st0}, s{sSlot}, s{sLW}')
        a(f's_add_u32 s{st1}, s{sSlot}, s{sLX}')
        for j in range(4):
            a(f's_add_u32 m0, s{st0}, {j*1024}')
            if j&1: a(f's_add_u32 s{st2}, s{sW0}, {4*3840}')
            else: a('s_nop 0')
            a(f'buffer_load_dwordx4 v{vLW+(j>>1)}, s[{sW}:{sW+3}], s{st2 if j&1 else sW0} offen {LP} lds')
            a(f's_add_u32 m0, s{st1}, {j*1024}')
            if j==2: a(f's_add_u32 s{sXo}, s{sXo}, 20480')
            else: a('s_nop 0')
            a(f'buffer_load_dwordx4 v{vLX+(j&1)}, s[{sX}:{sX+3}], s{sXo} offen {LP} lds')
        a(f's_add_u32 s{sKS}, s{sKS}, 1')
        a(f's_cmp_eq_u32 s{sKS}, 10')
        a(f's_cselect_b32 s{sKS}, 0, s{sKS}')
        a(f's_add_u32 s{sIdx}, s{sIdx}, 1')
        a(f's_and_b32 s{sIdx}, s{sIdx}, 3')
    a(f's_mov_b32 s{sIdx}, 0')
    wstep()
    if EARLY2: wstep()
    a(f's_waitcnt vmcnt({NL if EARLY2 else 0})')
    a('s_barrier')
    if not EARLY2: wstep()
    wstep()
    p2_early(a,'l')
    for r in range(96,128): a(f'v_mov_b32 v{r}, 0')
    a(f's_mov_b32 s{sIT}, 0')
    a.lab('L_p1_ld_loop')
    a(f's_waitcnt vmcnt({NL})')
    a(f's_cmp_lg_u32 s{sIT}, {TP}'); a('s_cbranch_scc1 L_p1_ld_w1')
    a(f's_cmp_lg_u32 s{sWV}, 4'); a('s_cbranch_scc1 L_p1_ld_w1')
    poll_f1(a,'b',1)
    a.lab('L_p1_ld_w1')
    a('s_barrier')
    a(f's_cmp_lg_u32 s{sWV}, 4'); a('s_cbranch_scc1 L_p1_ld_h1')
    a(f's_cmp_lg_u32 s{sIT}, 8'); a('s_cbranch_scc1 L_p1_ld_h0')
    gettok(a,'p1',None)
    a.lab('L_p1_ld_h0')
    a(f's_cmp_lg_u32 s{sIT}, {TF}'); a('s_cbranch_scc1 L_p1_ld_h1')
    a(f's_add_u32 s50, s{sNT}, 15')
    a('s_lshl_b32 s50, s50, 4')
    a(f's_add_u32 s50, s50, s{sMT}')
    a('s_lshl_b32 s50, s50, 7')
    setflag(a,50)
    a.lab('L_p1_ld_h1')
    a(f's_cmp_lg_u32 s{sIT}, 7'); a('s_cbranch_scc1 L_p1_ld_h2')
    srd(a,sX,16,17,2048*1280)
    srd(a,sW,18,19,640*3840)
    a.lab('L_p1_ld_h2')
    wstep()
    a(f's_add_u32 s{sIT}, s{sIT}, 1')
    a(f's_cmp_lt_u32 s{sIT}, {TP+1}')
    a('s_cbranch_scc1 L_p1_ld_loop')
    p.stamp(1)
    a(f's_setprio {EPRIO}')
    a(f's_lshl_b32 s48, s{sLd}, 11')
    q_issue(a)
    kv_first(a,[(48,0),(48,1024)],(0,HALF,8192,HALF+8192))
    a('s_mov_b32 s3, 1')
    a.lab('L_early')
    at=Att(a)
    Lr=(12,13,14,15)
    a(f's_mov_b32 s{at.sVm}, 0xfffff'); a(f's_mov_b32 s{at.sVm+1}, 0xfffff')
    at.vinit()
    for i in range(4): a(f'v_mov_b32 v{at.vP+4+i}, 0')
    for r,src in zip(Lr,(at.vK1a,at.vK2a,at.vVa,at.vVb)): a(f'v_mov_b32 v{r}, v{src}')
    for r in (at.vK1a,at.vK2a,at.vVa,at.vVb): a(f'v_add_u32 v{r}, {HALF}, v{r}')
    def hook(n,fn):
        a('s_cmp_eq_u32 s3, 0'); a(f's_cbranch_scc1 L_eh{n}'); fn(); a.lab(f'L_eh{n}')
    hook(0,lambda: (a(f's_waitcnt vmcnt({NL+13})'), a('s_barrier'), wstep()))
    if TP==15: hook(1,lambda: (a(f's_waitcnt vmcnt({NL})'), a('s_barrier')))
    else: hook(1,lambda: (a(f's_waitcnt vmcnt({NL})'), a('s_barrier'), wstep()))
    p.stamp(2)
    at.standin(Lr)
    at.rd_k1(at.vK1,0); at.rd_k2(at.vK2,0); at.rd_v(0,0)
    at.standin2()
    at.first_tile(0,TILE)
    seq=[(None,0),(None,TILE),(None,2*TILE),(None,3*TILE),(Lr,0),(Lr,TILE),(Lr,2*TILE),(Lr,3*TILE),(None,4*TILE),(None,5*TILE)]
    for t in range(8):
        if TP==14 and t==EH[0]: hook(4,lambda: (a(f's_waitcnt vmcnt({NL})'), a('s_barrier')))
        if t==EH[1]: hook(2,lambda: (a('s_waitcnt vmcnt(0)'), a('s_barrier'), kv_first(a,[(48,0),(48,1024)],(16384,24576,32768,40960))))
        if t==EH[2]: hook(3,lambda: (a('s_barrier'), kv_first(a,[(48,0),(48,1024)],(HALF+16384,HALF+24576,HALF+32768,HALF+40960))))
        if t==0: p.stamp(3)
        if t==1: p.stamp(4)
        if t==2: p.stamp(6)
        at.key_tile(t,seq[t+2],seq[t+1])
    a('s_setprio 0')
    a('s_cmp_eq_u32 s3, 0'); a('s_cbranch_scc1 L_p1_idle_done')
    a(f's_lshl_b32 s49, s{sNT}, 4')
    a(f's_add_u32 s49, s49, s{sMT}')
    a('s_lshl_b32 s49, s49, 7')
    a('s_or_b32 s49, s49, 0x80000000')
    a('s_branch L_p1_done')
    a.lab('L_p1_idle_done')
    a('s_mov_b32 s49, 0')
    a('s_branch L_p1_done')
    i_e=len(a.l)
    a.l[i_c:i_e]=a.l[i_l:i_e]+a.l[i_c:i_l]
    a.lab('L_p1_skip')
    p2_early(a,'s')
    for r in range(96,128): a(f'v_mov_b32 v{r}, 0')
    a('s_waitcnt lgkmcnt(0)')
    a(f's_cmp_lg_u32 s{sWV}, 4'); a('s_cbranch_scc1 L_p1_sk1')
    gettok(a,'p1s',None)
    poll_f1(a,'bs',1)
    a.lab('L_p1_sk1')
    a('s_barrier')
    a(f's_lshl_b32 s48, s{sWV}, 10')
    q_issue(a)
    kv_first(a,[(48,0)],(0,HALF,8192,HALF+8192,16384,24576,32768,40960,HALF+16384,HALF+24576,HALF+32768,HALF+40960))
    a('s_waitcnt vmcnt(0)')
    a('s_barrier')
    a('s_mov_b32 s3, 0')
    a(f's_cmp_ge_u32 s{sWV}, 4'); a('s_cbranch_scc1 L_early')
    a('s_mov_b32 s49, 0')
    a.lab('L_p1_done')
    return vEnd

def gettok(a,tag,wave=4):
    if wave is not None:
        a(f's_cmp_lg_u32 s{sWV}, {wave}')
        a(f's_cbranch_scc1 L_tokd_{tag}')
    a('s_mov_b32 s58, 0x40000')
    a('v_mov_b32 v2, 0')
    a.lab(f'L_tok_{tag}')
    a(f'global_load_dword v3, v2, s[{sDBG}:{sDBG+1}] sc1')
    a('s_waitcnt vmcnt(0)')
    a(f'v_readfirstlane_b32 s{sTOK}, v3')
    a('s_nop 3')
    a(f's_cmp_lg_u32 s{sTOK}, 0')
    a(f's_cbranch_scc1 L_tokd_{tag}')
    a('s_sleep 4')
    a('s_sub_u32 s58, s58, 1')
    a('s_cmp_lg_u32 s58, 0')
    a(f's_cbranch_scc1 L_tok_{tag}')
    a.lab(f'L_tokd_{tag}')
def setflag(a,soff):
    a(f's_add_u32 s{soff}, s{soff}, {WS_FLG}')
    a('s_mov_b64 exec, 1')
    a(f'v_mov_b32 v2, s{soff}')
    a(f'v_mov_b32 v3, s{sTOK}')
    a(f'global_store_dword v2, v3, s[{sWS}:{sWS+1}] sc1')
    a('s_mov_b64 exec, -1')
def poll2(a,tag,va,vb,mask):
    a('s_mov_b32 s58, 0x40000')
    a.lab(f'L_poll_{tag}')
    a(f'global_load_dword v3, v{va}, s[{sWS}:{sWS+1}] sc1')
    a(f'global_load_dword v4, v{vb}, s[{sWS}:{sWS+1}] sc1')
    a('s_waitcnt vmcnt(0)')
    a(f'v_cmp_eq_u32 s[56:57], s{sTOK}, v3')
    a(f'v_cmp_eq_u32 vcc, s{sTOK}, v4')
    a('s_nop 4')
    a('s_and_b64 s[56:57], s[56:57], vcc')
    a(f's_and_b32 s56, s56, {mask&0xffffffff:#x}')
    a(f's_and_b32 s57, s57, {mask>>32:#x}')
    a(f's_cmp_lg_u32 s56, {mask&0xffffffff:#x}')
    a(f's_cbranch_scc1 L_polln_{tag}')
    a(f's_cmp_eq_u32 s57, {mask>>32:#x}')
    a(f's_cbranch_scc1 L_polld_{tag}')
    a.lab(f'L_polln_{tag}')
    a('s_sleep 1')
    a('s_sub_u32 s58, s58, 1')
    a('s_cmp_lg_u32 s58, 0')
    a(f's_cbranch_scc1 L_poll_{tag}')
    a.lab(f'L_polld_{tag}')
POLLC=dict(sl=2,pol='sc1',pre=0)
def poll(a,tag,vaddr,offs,mask):
    a('s_mov_b32 s58, 0x40000')
    for _ in range(POLLC['pre']): a('s_sleep 8')
    a.lab(f'L_poll_{tag}')
    for i,o in enumerate(offs):
        a(f'global_load_dword v{vaddr+1+i}, v{vaddr}, s[{sWS}:{sWS+1}] offset:{o} {POLLC["pol"]}')
    a('s_waitcnt vmcnt(0)')
    a(f'v_cmp_eq_u32 s[56:57], s{sTOK}, v{vaddr+1}')
    if len(offs)>1:
        a(f'v_cmp_eq_u32 vcc, s{sTOK}, v{vaddr+2}')
        a('s_nop 4')
        a('s_and_b64 s[56:57], s[56:57], vcc')
    else:
        a('s_nop 4')
    a(f's_and_b32 s56, s56, {mask&0xffffffff:#x}')
    a(f's_and_b32 s57, s57, {mask>>32:#x}')
    a(f's_cmp_lg_u32 s56, {mask&0xffffffff:#x}')
    a(f's_cbranch_scc1 L_polln_{tag}')
    a(f's_cmp_eq_u32 s57, {mask>>32:#x}')
    a(f's_cbranch_scc1 L_polld_{tag}')
    a.lab(f'L_polln_{tag}')
    a(f's_sleep {POLLC["sl"]}')
    a('s_sub_u32 s58, s58, 1')
    a('s_cmp_lg_u32 s58, 0')
    a(f's_cbranch_scc1 L_poll_{tag}')
    a.lab(f'L_polld_{tag}')

def phase2(a,p,PRIO=0,BSH=0,NOHOOK=0,SPRIO=0,FP2=7):
    TILE=2560; HALF=81920; WOFF=40960; SCR=81920
    sR,sOo,sWo=4,8,12
    sHD,sJ,sQP,sKH=16,17,18,19
    st0,st1,st2,st3=20,21,22,23
    sVm=24; sLo=26
    sIT=28; sHB=29; sHBw=30; sOl=31; sOh=32; sLl=33; sQA=34; sSw=35; sAg=36; sOB=37; sOA=50; sNeed=39
    sTm=40
    sKV=44
    sOff=31; sInc=32
    sWn=48
    sWl=39
    vLane=1; vt0=2; vt1=3; vt2=4; vt3=5; vM=10; vt4=14; vt5=15
    vK1a,vK2a,vVa,vVb,vDma,vRho,vOoff,vOo2,vQ1o,vQ2o,vWo,vKap=P2C
    vQa1=16; vQab=20; vQa2=22; vQb1=24; vK1=28; vK2=32; vMb=35
    vV=36; vP=52; vQA2=60; vCc=63
    vSa=64; vSb=80; vOa=96; vOb=112; vCa=128; vCb=144; vMF=P2M; vML=P2M+16; vQA1=192
    vS1=160
    vEnd=256
    a(f's_load_dwordx2 s[50:51], s[0:1], 16')
    a(f's_load_dwordx2 s[52:53], s[0:1], 40')
    head_j(a,sHD,sJ,st0,st1)
    a(f's_and_b32 s{sQP}, s{sWV}, 3')
    a(f's_lshr_b32 s{sKH}, s{sWV}, 2')
    a(f's_mul_i32 s{sHB}, s{sHD}, {64*TILE}')
    a(f's_add_u32 s{sAg}, s{sHB}, {WS_KV-20480}')
    a(f's_add_u32 s{sHB}, s{sHB}, {WS_KV+32*64*TILE}')
    a(f's_mul_i32 s{st0}, s{sJ}, 20480')
    a(f's_add_u32 s{sAg}, s{sAg}, s{st0}')
    a(f's_mov_b32 s{sVm}, 0xfffff')
    a(f's_mov_b32 s{sVm+1}, 0xfffff')
    a(f's_mov_b32 s{sLo}, -1')
    a(f's_mov_b32 s{sLo+1}, 0')
    a(f's_lshl_b32 s{st0}, s{sJ}, 3')
    a(f's_lshl_b32 s{st1}, s{sHD}, 6')
    a(f's_add_u32 s{st1}, s{st1}, s{st0}')
    a(f's_add_u32 s{st2}, s{st1}, s{sWV}')
    a(f's_mul_i32 s{sQA}, s{st2}, 1280')
    a(f's_lshl_b32 s{st2}, s{sQP}, 1')
    a(f's_add_u32 s{st2}, s{st2}, s{sKH}')
    a(f's_add_u32 s{st2}, s{st2}, s{st0}')
    a(f's_lshl_b32 s{sOB}, s{st2}, 15')
    a(f's_add_u32 s{sOB}, s{sOB}, {2048*1280}')
    a(f's_lshl_b32 s{sOB+1}, s{st2}, 13')
    a(f's_add_u32 s{sOB+1}, s{sOB+1}, {2048*1280+128*16384}')
    srd(a,sR,sWS,sWS+1,WS_O)
    a(f's_add_u32 s56, s{sWS}, {WS_O}')
    a(f's_addc_u32 s57, s{sWS+1}, 0')
    srd(a,sOo,56,57,WS_END-WS_O)
    a(f's_add_u32 s{sKV}, s{sWS}, s{sHB}')
    a(f's_addc_u32 s{sKV+1}, s{sWS+1}, 0')
    a(f's_and_b32 s{sKV+1}, s{sKV+1}, 0xffff')
    a(f's_mov_b32 s{sKV+2}, 163840')
    a(f's_mov_b32 s{sKV+3}, 0x20000')
    a(f's_lshl_b32 s{sOff}, s{sWV}, 10')
    a(f's_add_u32 s{sOff}, s{sOff}, 49152')
    a(f's_mov_b32 m0, s{sOff}')
    a(f's_mov_b32 s{sInc}, {HALF}')
    a(f's_mov_b32 s{sInc+1}, {(8192-HALF)&0xffffffff}')
    def vinit():
        a(f'v_cmp_eq_u32 s[{sTm}:{sTm+1}], 20, v{vRho}')
        a(f'v_mov_b32 v{vt1}, 0x3f803f80')
        a('s_nop 0')
        a(f'v_cndmask_b32 v{vt1}, 0, v{vt1}, s[{sTm}:{sTm+1}]')
        for i in range(16): a(f'v_mov_b32 v{vV+i}, v{vt1}')
    a(f's_cmp_lg_u32 s{sKH}, 0'); a('s_cbranch_scc1 L_p2_noinit')
    vinit()
    for i in range(4): a(f'v_mov_b32 v{vP+4+i}, 0')
    a.lab('L_p2_noinit')
    a(f's_lshl_b32 s{sWl}, s{sWV}, 10')
    a(f's_add_u32 s{sWl}, s{sWl}, {WOFF}')
    if OPM: a(f's_bfe_u32 s{sWn}, s{sWG}, 0x30003')
    else: a(f's_and_b32 s{sWn}, s{sHD}, 7')
    a(f's_mul_i32 s{sWn}, s{sWn}, 160')
    a('s_waitcnt lgkmcnt(0)')
    if OPM: a(f's_bitcmp0_b32 s{sWG}, 2')
    else: a(f's_cmp_lt_u32 s{sHD}, 16')
    a('s_cselect_b64 s[50:51], s[50:51], s[52:53]')
    srd(a,sWo,50,51,640*1280)
    p.stamp(5)

    def rd_k1(dst,off):
        assert off%512==0 and off//512+1<256
        a(f'ds_read2st64_b64 {vr(dst,4)}, v{vK1a} offset0:{off//512} offset1:{off//512+1}')
    def rd_k2(dst,off): a(f'ds_read_b64 {vr(dst,2)}, v{vK2a} offset:{off}')
    def rd_v(buf,off):
        a(f's_mov_b64 exec, s[{sVm}:{sVm+1}]')
        a(f'ds_read_b128 {vr(vV+8*buf,4)}, v{vVa} offset:{off}')
        a(f'ds_read_b128 {vr(vV+8*buf+4,4)}, v{vVb} offset:{off}')
        a('s_mov_b64 exec, -1')
    def qk1(S,C,Q1,K=None): a(f'v_mfma_f32_32x32x16_bf16 {vr(S,16)}, {vr(vK1 if K is None else K,4)}, {vr(Q1,4)}, {C}')
    def qk2(S,Q2,K=None): a(f'v_mfma_f32_32x32x8bf16_1k {vr(S,16)}, {vr(vK2 if K is None else K,2)}, {vr(Q2,2)}, {vr(S,16)}')
    def qk2b(S): a(f'v_mfma_f32_32x32x4bf16_1k {vr(S,32)}, {vr(vK2,2)}, {vr(vQab,2)}, {vr(S,32)}')
    def pv(O,buf,t): a(f'v_mfma_f32_32x32x16_bf16 {vr(O,16)}, {vr(vV+8*buf+4*t,4)}, {vr(vP+4*t,4)}, {vr(O,16)}')
    def ex(S,r): a(f'v_exp_f32 v{S+r}, v{S+r}')
    def cv(S,c): a(f'v_cvt_pk_bf16_f32 v{vP+c}, v{S+2*c}, v{S+2*c+1}')
    def rowmax(M,S,first):
        if first:
            a(f'v_max3_f32 v{M}, v{S}, v{S+1}, v{S+2}'); rest=list(range(3,16))
        else: rest=list(range(16))
        while len(rest)>=2:
            a(f'v_max3_f32 v{M}, v{M}, v{S+rest[0]}, v{S+rest[1]}'); rest=rest[2:]
        if rest: a(f'v_max_f32 v{M}, v{M}, v{S+rest[0]}')
    def xhalf_max(M):
        a(f'v_mov_b32 v{vt1}, v{M}')
        a('s_nop 1')
        a(f'v_permlane32_swap_b32 v{M}, v{vt1}')
        a('s_nop 1')
        a(f'v_max_f32 v{M}, v{M}, v{vt1}')
    def get_l():
        a(f'v_mov_b32 v{vt1}, v{vOa+8}')
        a(f'v_mov_b32 v{vt2}, v{vOa+8}')
        a('s_nop 1')
        a(f'v_permlane32_swap_b32 v{vt1}, v{vt2}')
        a('s_nop 1')
    def safety():
        a(f'v_max3_f32 v{vt3}, |v{vOa}|, |v{vOa+1}|, |v{vOa+2}|')
        for i in range(3,11,2): a(f'v_max3_f32 v{vt3}, v{vt3}, |v{vOa+i}|, |v{vOa+i+1}|')
        a(f'v_max_f32_e64 v{vt3}, v{vt3}, |v{vOa+11}|')
        a(f'v_mul_f32 v{vt3}, {f32bits(2.0**-27):#x}, v{vt3}')
        a(f'v_max_f32 v{vt3}, v{vt3}, v{vt2}')
        a(f'v_mov_b32 v{vt4}, {f32bits(2.0**100):#x}')
        a(f'v_cmp_nlt_f32 vcc, v{vt3}, v{vt4}')
        a(f'v_cmp_u_f32 s[56:57], v{vt2}, v{vt2}')
        a('s_nop 4')
        a('s_or_b64 vcc, vcc, s[56:57]')
    def store_o(soff):
        a(f'v_rcp_f32 v{vt3}, v{vt2}')
        a(f's_lshr_b32 s{st0}, s{sHD}, 1')
        a(f's_lshl_b32 s{st0}, s{st0}, 10')
        a(f's_and_b32 s{st1}, s{sHD}, 1')
        a(f's_lshl_b32 s{st1}, s{st1}, 9')
        a(f's_add_u32 s{st0}, s{st0}, s{st1}')
        a(f's_add_u32 s{st0}, s{st0}, s{soff}')
        for i in range(12): a(f'v_mul_f32 v{vOa+i}, v{vOa+i}, v{vt3}')
        for i in range(6): a(f'v_cvt_pk_bf16_f32 v{vSa+i}, v{vOa+2*i}, v{vOa+2*i+1}')
        a(f'buffer_store_dwordx4 {vr(vSa,4)}, v{vOoff}, s[{sOo}:{sOo+3}], s{st0} offen {SCO}')
        a(f's_lshl_b32 s{st0}, s{sHD}, 7')
        a(f's_add_u32 s{st0}, s{st0}, s{soff+1}')
        a(f's_mov_b64 exec, s[{sLo}:{sLo+1}]')
        a(f'buffer_store_dwordx2 {vr(vSa+4,2)}, v{vOo2}, s[{sOo}:{sOo+3}], s{st0} offen {SCO}')
        a('s_mov_b64 exec, -1')
    def addr_add(s):
        for r in (vK1a,vK2a,vVa,vVb): a(f'v_add_u32 v{r}, s{s}, v{r}')
    def addr_addi(imm):
        for r in (vK1a,vK2a,vVa,vVb): a(f'v_add_u32 v{r}, {imm}, v{r}')
    def dma_row(k):
        a(f'buffer_load_dwordx4 v{vDma}, s[{sKV}:{sKV+3}], s{sOff} offen {SL} lds')
        a(f's_add_u32 s{sOff}, s{sOff}, s{sInc+(k&1)}')
        a(f's_mov_b32 m0, s{sOff}')
    def dma_pair():
        dma_row(0); dma_row(1)
    def prio_switch(phase,L):
        a(f's_cmp_lt_u32 s{sWV}, 4')
        a(f's_cbranch_scc{1-phase} {L}_hi')
        a('s_setprio 0')
        a(f's_branch {L}_d')
        a.lab(f'{L}_hi')
        a('s_setprio 1')
        a.lab(f'{L}_d')
    def expgroups(cur,A_,B_,C_,D_):
        A_()
        for r in range(0,4): ex(cur,r)
        B_()
        ex(cur,4); ex(cur,5); cv(cur,0); ex(cur,6); cv(cur,1); ex(cur,7)
        C_()
        ex(cur,8); cv(cur,2); ex(cur,9); cv(cur,3); ex(cur,10); ex(cur,11)
        D_()
        ex(cur,12); ex(cur,13); cv(cur,4); ex(cur,14); cv(cur,5); ex(cur,15); cv(cur,6); cv(cur,7)

    a('s_cmp_eq_u32 s49, 8')
    a('s_cbranch_scc1 L_p2_w8')
    a('s_waitcnt vmcnt(0)')
    a('s_branch L_p2_wd')
    a.lab('L_p2_w8')
    a('s_waitcnt vmcnt(8)')
    a.lab('L_p2_wd')
    a('s_barrier')
    p.stamp(7)
    at=Att(a)
    a(f's_cmp_lg_u32 s{sKH}, 0'); a('s_cbranch_scc1 L_b_up')
    cur4=(vK1a,vK2a,vVa,vVb)
    at.standin(cur4)
    addr_addi(4*TILE)
    rd_k1(vK1,0); rd_k2(vK2,0); rd_v(0,0)
    at.standin2()
    at.first_tile(0,TILE)
    a('s_branch L_b_go')
    a.lab('L_b_up')
    addr_addi(4*TILE)
    a.lab('L_b_go')
    a(f's_mov_b32 s{sIT}, 0')
    a.raw('.p2align 6')
    a.lab('L_b_loop')
    ool=[]
    def cond(it,L,fn):
        a(f's_cmp_eq_u32 s{sIT}, {it}'); a(f's_cbranch_scc1 {L}'); a.lab(L+'_r')
        ool.append((L,fn))
    for pp in range(4):
        off=pp*TILE
        dma_row(pp)
        at.key_tile(pp,(None,off+2*TILE),(None,off+TILE))
    a(f's_cmp_eq_u32 s{sIT}, 6'); a('s_cbranch_scc1 L_b_exit')
    a(f's_cmp_eq_u32 s{sIT}, 0'); a('s_cbranch_scc1 L_bb0')
    a(f's_cmp_eq_u32 s{sIT}, 1'); a('s_cbranch_scc1 L_bb1')
    a(f's_cmp_eq_u32 s{sIT}, 2'); a('s_cbranch_scc1 L_bb2')
    a(f's_cmp_eq_u32 s{sIT}, 4'); a('s_cbranch_scc1 L_bb1')
    a.lab('L_bb_r')
    def bb0():
        a('s_waitcnt vmcnt(4)'); a('s_barrier')
        a(f's_cmp_lg_u32 s{sWV}, 4'); a('s_cbranch_scc1 L_bb_r')
        a('s_cmp_lt_i32 s49, 0'); a('s_cbranch_scc0 L_bb_r')
        a('s_and_b32 s50, s49, 0x7fffffff')
        setflag(a,50)
        a('s_branch L_bb_r')
    def bb1():
        a(f's_mov_b32 s{sOff}, 200000'); a(f's_mov_b32 m0, 200000'); a(f's_mov_b32 s{sInc}, 0'); a(f's_mov_b32 s{sInc+1}, 0'); a(f's_mov_b32 s{sKV+2}, 0')
        a('s_branch L_bb_r')
    def bb2():
        a(f's_cmp_lg_u32 s{sWV}, 0'); a('s_cbranch_scc1 L_bb2a')
        gettok(a,'a',None)
        poll_f1(a,'a',0)
        a.lab('L_bb2a')
        a('s_waitcnt vmcnt(0)'); a('s_barrier')
        a(f's_add_u32 s{sKV}, s{sWS}, s{sAg}')
        a(f's_addc_u32 s{sKV+1}, s{sWS+1}, 0')
        a(f's_and_b32 s{sKV+1}, s{sKV+1}, 0xffff')
        a(f's_mov_b32 s{sKV+2}, 40960')
        a(f's_lshl_b32 s{sOff}, s{sWV}, 10')
        a(f's_sub_u32 s{sOff}, s{sOff}, {3*8192}')
        a(f's_mov_b32 m0, s{sOff}')
        a(f's_mov_b32 s{sInc}, 8192')
        a(f's_mov_b32 s{sInc+1}, 8192')
        a(f'buffer_load_dwordx2 {vr(vQA1,2)}, v{vQ1o}, s[{sR}:{sR+3}], s{sQA} offen {SL}')
        a(f'buffer_load_dwordx2 {vr(vQA1+2,2)}, v{vQ1o}, s[{sR}:{sR+3}], s{sQA} offen offset:512 {SL}')
        a(f'buffer_load_dwordx2 {vr(vQA2,2)}, v{vQ2o}, s[{sR}:{sR+3}], s{sQA} offen {SL}')
        a('s_branch L_bb_r')
    ool.append(('L_bb0',bb0)); ool.append(('L_bb1',bb1)); ool.append(('L_bb2',bb2))
    addr_addi(4*TILE)
    a(f's_add_u32 s{sIT}, s{sIT}, 1')
    a('s_branch L_b_loop')
    a.lab('L_b_exit')
    addr_addi(4*TILE)
    a('s_nop 1')
    pv(vOb,1,1)
    a('s_setprio 0')
    a('s_nop 15')
    p.stamp(8)
    a(f's_lshl_b32 s{st0}, s{sQP}, 1')
    a(f's_cmp_eq_u32 s{sKH}, 0')
    a('s_cbranch_scc0 L_mg_hi')
    a(f's_add_u32 s{st1}, s{st0}, 1')
    a(f's_mul_i32 s{st1}, s{st1}, 3072')
    a(f's_add_u32 s{st1}, s{st1}, {SCR}')
    a(f'v_add_u32 v{vt4}, s{st1}, v{vDma}')
    for i in range(3): a(f'ds_write_b128 v{vt4}, {vr(vOb+4*i,4)} offset:{1024*i}')
    a(f's_mul_i32 s{st1}, s{st0}, 3072')
    a('s_branch L_mg_d')
    a.lab('L_mg_hi')
    a(f's_mul_i32 s{st1}, s{st0}, 3072')
    a(f's_add_u32 s{st1}, s{st1}, {SCR}')
    a(f'v_add_u32 v{vt4}, s{st1}, v{vDma}')
    for i in range(3): a(f'ds_write_b128 v{vt4}, {vr(vOa+4*i,4)} offset:{1024*i}')
    for i in range(12): a(f'v_mov_b32 v{vOa+i}, v{vOb+i}')
    for i in range(4): a(f'v_mov_b32 v{vQa1+i}, v{vQb1+i}')
    a(f's_add_u32 s{st1}, s{st0}, 1')
    a(f's_mul_i32 s{st1}, s{st1}, 3072')
    a.lab('L_mg_d')
    a(f's_add_u32 s{st1}, s{st1}, {SCR}')
    a(f'v_add_u32 v{vt4}, s{st1}, v{vDma}')
    a('s_waitcnt lgkmcnt(0) vmcnt(0)')
    a('s_barrier')
    for i in range(3): a(f'ds_read_b128 {vr(vSa+4*i,4)}, v{vt4} offset:{1024*i}')
    a('s_waitcnt lgkmcnt(0)')
    a('s_barrier')
    for i in range(12): a(f'v_add_f32 v{vOa+i}, v{vOa+i}, v{vSa+i}')
    get_l()
    safety()
    a('s_cbranch_vccnz L_b_fallback')
    a.lab('L_b_store')
    store_o(sOB)
    p.stamp(9)
    a(f's_mul_i32 s{st0}, s{sWV}, {TILE}')
    a(f's_mul_i32 s{st1}, s{sKH}, {HALF}')
    a(f's_sub_u32 s{st0}, s{st0}, s{st1}')
    a(f's_sub_u32 s{st0}, s{st0}, {32*TILE}')
    addr_add(st0)
    a(f's_lshl_b32 s{st0}, s{sJ}, 3')
    a(f's_add_u32 s{st2}, s{st0}, s{sWV}')
    a(f's_lshl_b32 s{sOA}, s{st2}, 15')
    a(f's_lshl_b32 s{sOA+1}, s{st2}, 13')
    a(f's_add_u32 s{sOA+1}, s{sOA+1}, {128*16384}')
    for i in range(4): a(f'v_mov_b32 v{vQa1+i}, v{vQA1+i}')
    for i in range(2): a(f'v_mov_b32 v{vQa2+i}, v{vQA2+i}')
    a(f's_sub_u32 s{sSw}, 8, s{sWV}')
    a(f's_cmp_lg_u32 s{sJ}, 0')
    a(f's_cselect_b32 s{sSw}, 0, s{sSw}')
    vC=vCa; vO=vOa; vS=[vSa,vSb]
    KR=[(vV,vV+4),(vV+8,vV+12),(vP,vP+4)]
    SB=[vSa,vSb,vOa]
    sRedo=30; sWoEn=55
    def cmid_init(tag,val,first):
        a(f's_cmp_le_u32 s{sSw}, {first}')
        a(f's_cbranch_scc1 L_cm_{tag}_v')
        for r in range(16): a(f'v_mov_b32 v{vC+r}, {NEG_BIG:#x}')
        a(f's_branch L_cm_{tag}_d')
        a.lab(f'L_cm_{tag}_v')
        for r in range(16): a(f'v_mov_b32 v{vC+r}, {val}')
        a.lab(f'L_cm_{tag}_d')
    def cmid_switch(tag,t,val):
        L=f'L_sw_{tag}_{t}'
        a(f's_cmp_eq_u32 s{sSw}, {t}')
        a(f's_cbranch_scc1 {L}')
        a.lab(L+'_r')
        def fn():
            a('s_nop 15')
            for r in range(16): a(f'v_mov_b32 v{vC+r}, {val}')
            a('s_nop 1')
        ool.append((L,fn))
    wocnt=[0]
    def wo_dma():
        if wocnt[0]>=10: return
        n=wocnt[0]; wocnt[0]+=1
        a(f's_cmp_lg_u32 s{sWoEn}, 0')
        a(f's_cbranch_scc0 L_wo{n}')
        for k in range(2):
            a(f's_mov_b32 m0, s{sWl}')
            a(f's_add_u32 s{sWl}, s{sWl}, 5120')
            a(f'buffer_load_dwordx4 v{vWo}, s[{sWo}:{sWo+3}], s{sWn} offen lds')
            a(f's_add_u32 s{sWn}, s{sWn}, 40960')
        a.lab(f'L_wo{n}')
    def maxpass(tag,tiles,dma):
        cmid_init(tag,'0',max(1,tiles[0]))
        nb=len(tiles)//3
        for i in range(3):
            rd_k1(KR[i][0],tiles[i]*TILE); rd_k2(KR[i][1],tiles[i]*TILE)
        for b in range(nb):
            a('s_waitcnt lgkmcnt(0)')
            for i in range(3):
                t=tiles[3*b+i]
                if max(1,tiles[0])<t<=7: cmid_switch(tag,t,'0')
                C = vr(vMF,16) if t==0 else (vr(vML,16) if t==8 else vr(vC,16))
                qk1(SB[i],C,vQa1,KR[i][0]); qk2(SB[i],vQa2,KR[i][1])
            if b<nb-1:
                for i in range(3):
                    t=tiles[3*(b+1)+i]
                    rd_k1(KR[i][0],t*TILE); rd_k2(KR[i][1],t*TILE)
            else:
                rd_k1(vK1,0); rd_k2(vK2,0)
            if dma: wo_dma()
            a('s_nop 7')
            for i in range(3):
                if i==2: a('s_nop 3')
                rowmax(vM,SB[i],b==0 and i==0)
    a(f's_mov_b32 s{sRedo}, 0')
    a(f's_cmp_lt_u32 s{sWV}, 5')
    a(f's_cselect_b32 s{sWoEn}, 1, 0')
    maxpass('p1',[6,7,8],True)
    a.lab('L_a_p2')
    xhalf_max(vM)
    a(f'v_sub_f32 v{vM}, 0, v{vM}')
    for r in range(16): a(f'v_add_f32 v{vMF+r}, v{vMF+r}, v{vM}')
    for r in range(16): a(f'v_add_f32 v{vML+r}, v{vML+r}, v{vM}')
    cmid_init('p2',f'v{vM}',1)
    for r in range(16): a(f'v_mov_b32 v{vO+r}, 0')
    vinit()
    for i in range(4): a(f'v_mov_b32 v{vP+4+i}, 0')
    a('s_waitcnt lgkmcnt(0)')
    qk1(vS[0],vr(vMF,16),vQa1); qk2(vS[0],vQa2)
    rd_k1(vK1,TILE); rd_v(0,0); rd_k2(vK2,TILE)
    for t in range(9):
        last=(t==8); last2=(t==7); tn=t+1
        cur=vS[t&1]; nxt=vS[(t+1)&1]; off=t*TILE
        Cn = vr(vML,16) if tn==8 else vr(vC,16)
        a('s_waitcnt lgkmcnt(0)')
        if 2<=tn<=7: cmid_switch('p2',tn,f'v{vM}')
        wo_dma()
        def A_():
            if not last: qk1(nxt,Cn,vQa1)
            if not last and not last2: rd_k1(vK1,off+2*TILE)
        def B_():
            pv(vO,(t+1)&1,1)
            if not last: rd_v((t+1)&1,off+TILE)
        def C_():
            if not last: qk2(nxt,vQa2)
            if not last and not last2: rd_k2(vK2,off+2*TILE)
        expgroups(cur,A_,B_,C_,lambda: pv(vO,t&1,0))
    A_CHECK=True
    assert wocnt[0]==10
    a('s_nop 1')
    pv(vO,0,1)
    a('s_nop 15')
    a('s_nop 0')
    get_l()
    safety()
    a('s_cbranch_vccnz L_a_exact')
    a.lab('L_a_store')
    store_o(sOA)
    p.stamp(10)
    a('s_waitcnt vmcnt(0)')
    a('s_barrier')
    p.stamp(11)
    a(f's_cmp_lg_u32 s{sWV}, 4')
    a('s_cbranch_scc1 L_p3')
    a(f's_lshl_b32 s{st0}, s{sJ}, 12')
    a(f's_lshl_b32 s{st1}, s{sHD}, {FP2}')
    a(f's_add_u32 s{st0}, s{st0}, s{st1}')
    a(f's_add_u32 s{st0}, s{st0}, 65536')
    setflag(a,st0)
    if OPM:
        a(f's_and_b32 s{st0}, s{sWG}, 3'); a(f's_lshl_b32 s{st0}, s{st0}, 1'); a(f's_lshr_b32 s{st1}, s{sWG}, 7'); a(f's_add_u32 s{st0}, s{st0}, s{st1}')
        a(f's_lshl_b32 s{st0}, s{st0}, 12')
    else: a(f's_lshl_b32 s{st0}, s{sJ}, 12')
    a(f's_add_u32 s{st0}, s{st0}, {WS_FLG+65536}')
    a(f'v_and_b32 v{vt0}, 31, v{vLane}')
    a(f'v_lshlrev_b32 v{vt0}, {FP2}, v{vt0}')
    a(f'v_add_u32 v{vt0}, s{st0}, v{vt0}')
    if not NOPOLL3: poll(a,'p3',vt0,[0],(1<<32)-1)
    a('s_barrier')
    a('s_branch L_done')
    a.lab('L_a_exact')
    a(f's_cmp_lg_u32 s{sRedo}, 0')
    a('s_cbranch_scc1 L_a_store')
    a(f's_mov_b32 s{sRedo}, 1')
    a(f's_mov_b32 s{sWoEn}, 0')
    for r in range(16): a(f'v_sub_f32 v{vMF+r}, v{vMF+r}, v{vM}')
    for r in range(16): a(f'v_sub_f32 v{vML+r}, v{vML+r}, v{vM}')
    maxpass('p1x',[0,1,2,3,4,5,6,7,8],False)
    a('s_branch L_a_p2')
    for L,fn in ool:
        a.lab(L); fn()
        if not L.startswith('L_bb'): a(f's_branch {L}_r')
    a.lab('L_b_fallback')
    for i in range(2):
        a(f'v_mov_b32 v{vt4}, v{vQab+i}')
        a(f'v_mov_b32 v{vt5}, v{vQab+i}')
        a('s_nop 1')
        a(f'v_permlane32_swap_b32 v{vt4}, v{vt5}')
        a(f's_cmp_eq_u32 s{sKH}, 0')
        a('s_cselect_b64 s[56:57], -1, 0')
        a('s_nop 1')
        a(f'v_cndmask_b32 v{vt4}, v{vt5}, v{vt4}, s[56:57]')
        a(f'v_cndmask_b32 v{vQa2+i}, 0, v{vt4}, s[{sLo}:{sLo+1}]')
    a(f'v_lshlrev_b32 v{vt4}, 3, v{vRho}')
    a(f'v_add_u32 v{vt4}, 1024, v{vt4}')
    a(f'v_lshrrev_b32 v{vt0}, 5, v{vLane}')
    a(f'v_bfe_u32 v{vt5}, v{vRho}, 2, 2')
    a(f'v_xor_b32 v{vt5}, v{vt5}, v{vt0}')
    a(f'v_lshlrev_b32 v{vt5}, 4, v{vt5}')
    a(f'v_lshl_add_u32 v{vt5}, v{vRho}, 6, v{vt5}')
    a(f'v_add_u32 v{vt5}, 1280, v{vt5}')
    a(f'v_xor_b32 v{vt0}, 32, v{vt5}')
    a(f'v_mov_b32 v{vM}, {NEG_BIG:#x}')
    a(f's_mov_b32 s{st0}, s{sHB}')
    a(f's_mov_b32 s{sIT}, 64')
    a.lab('L_fb_p1')
    a(f'buffer_load_dwordx2 {vr(vK1,2)}, v{vQ1o}, s[{sR}:{sR+3}], s{st0} offen {SL}')
    a(f'buffer_load_dwordx2 {vr(vK1+2,2)}, v{vQ1o}, s[{sR}:{sR+3}], s{st0} offen offset:512 {SL}')
    a(f'buffer_load_dwordx2 {vr(vK2,2)}, v{vt4}, s[{sR}:{sR+3}], s{st0} offen {SL}')
    a('s_waitcnt vmcnt(0)')
    qk1(vSa,'0',vQa1); qk2(vSa,vQa2)
    a('s_nop 15')
    rowmax(vM,vSa,False)
    a(f's_add_u32 s{st0}, s{st0}, {TILE}')
    a(f's_sub_u32 s{sIT}, s{sIT}, 1')
    a(f's_cmp_lg_u32 s{sIT}, 0')
    a('s_cbranch_scc1 L_fb_p1')
    xhalf_max(vM)
    for r in range(16): a(f'v_sub_f32 v{vCa+r}, 0, v{vM}')
    for r in range(16): a(f'v_mov_b32 v{vOa+r}, 0')
    a(f's_mov_b32 s{st0}, s{sHB}')
    a(f's_mov_b32 s{sIT}, 64')
    a.lab('L_fb_p2')
    a(f'buffer_load_dwordx2 {vr(vK1,2)}, v{vQ1o}, s[{sR}:{sR+3}], s{st0} offen {SL}')
    a(f'buffer_load_dwordx2 {vr(vK1+2,2)}, v{vQ1o}, s[{sR}:{sR+3}], s{st0} offen offset:512 {SL}')
    a(f'buffer_load_dwordx2 {vr(vK2,2)}, v{vt4}, s[{sR}:{sR+3}], s{st0} offen {SL}')
    a(f's_mov_b64 exec, s[{sVm}:{sVm+1}]')
    a(f'buffer_load_dwordx4 {vr(vV,4)}, v{vt5}, s[{sR}:{sR+3}], s{st0} offen {SL}')
    a(f'buffer_load_dwordx4 {vr(vV+4,4)}, v{vt0}, s[{sR}:{sR+3}], s{st0} offen {SL}')
    a('s_mov_b64 exec, -1')
    a('s_waitcnt vmcnt(0)')
    qk1(vSa,vr(vCa,16),vQa1); qk2(vSa,vQa2)
    a('s_nop 15')
    for r in range(16): ex(vSa,r)
    a('s_nop 0')
    for c in range(8): cv(vSa,c)
    a('s_nop 1')
    pv(vOa,0,0); pv(vOa,0,1)
    a(f's_add_u32 s{st0}, s{st0}, {TILE}')
    a(f's_sub_u32 s{sIT}, s{sIT}, 1')
    a(f's_cmp_lg_u32 s{sIT}, 0')
    a('s_cbranch_scc1 L_fb_p2')
    a('s_nop 15')
    get_l()
    a('s_branch L_b_store')
    return vEnd, dict(sHD=sHD,sJ=sJ)

def phase3(a,p,info,ROT3=3,XD=6):
    WOFF=40960
    sHD,sJ=info['sHD'],info['sJ']
    sX,sO=4,8
    st0,st1,st2,st3=20,21,22,23
    sPH=28; sBR=29; sMT=30; sNT=31
    vLane=1; vXo=2; vt0=4; vt1=5; vt2=6; vt3=7; vTok=8; vG=9; vTr=10; vOut=11; vTp=12; vTq=14; vX2=3
    vX=16; vWf=vX+160; vAcc=vWf+40; vEnd=vAcc+40
    a.lab('L_p3')
    a(f's_cmp_ge_u32 s{sWV}, 4')
    a('s_cbranch_scc1 L_done')
    a('s_load_dwordx2 s[50:51], s[0:1], 48')
    if OPM:
        a(f's_bfe_u32 s{sBR}, s{sWG}, 0x10002')
        a(f's_and_b32 s{sMT}, s{sWG}, 3'); a(f's_lshl_b32 s{sMT}, s{sMT}, 1'); a(f's_lshr_b32 s{st0}, s{sWG}, 7'); a(f's_add_u32 s{sMT}, s{sMT}, s{st0}')
        a(f's_lshl_b32 s{sMT}, s{sMT}, 1'); a(f's_bfe_u32 s{st0}, s{sWG}, 0x10006'); a(f's_add_u32 s{sMT}, s{sMT}, s{st0}')
        a(f's_bfe_u32 s{sNT}, s{sWG}, 0x30003')
        a(f's_and_b32 s{sPH}, s{sNT}, {ROT3}')
    else:
        a(f's_lshr_b32 s{sBR}, s{sHD}, 4')
        a(f's_bfe_u32 s{st0}, s{sHD}, 0x10003')
        a(f's_lshl_b32 s{sMT}, s{sJ}, 1')
        a(f's_add_u32 s{sMT}, s{sMT}, s{st0}')
        a(f's_and_b32 s{sNT}, s{sHD}, 7')
        a(f's_and_b32 s{sPH}, s{sHD}, {ROT3}')
    a(f'v_and_b32 v{vTok}, 15, v{vLane}')
    a(f'v_lshrrev_b32 v{vG}, 4, v{vLane}')
    a(f'v_lshlrev_b32 v{vXo}, 4, v{vLane}')
    a(f'v_lshlrev_b32 v{vX2}, 3, v{vLane}')
    a(f's_lshl_b32 s{st0}, s{sMT}, 3')
    a(f's_lshl_b32 s{st1}, s{sWV}, 1')
    a(f's_add_u32 s{st0}, s{st0}, s{st1}')
    a(f's_lshl_b32 s32, s{st0}, 14')
    a(f's_lshl_b32 s36, s{st0}, 12')
    a(f's_add_u32 s36, s36, {128*16384}')
    a(f's_add_u32 s37, s36, 4096')
    a(f's_mul_i32 s{st0}, s{sBR}, {2048*1280}')
    a(f's_add_u32 s{st0}, s{st0}, {WS_O}')
    a(f's_add_u32 s52, s{sWS}, s{st0}')
    a(f's_addc_u32 s53, s{sWS+1}, 0')
    srd(a,sX,52,53,2048*1280)
    a(f'v_bfe_u32 v{vt0}, v{vLane}, 2, 2')
    a(f'v_mul_u32_u24 v{vt0}, 160, v{vt0}')
    a(f'v_and_b32 v{vt1}, 3, v{vLane}')
    a(f'v_lshl_add_u32 v{vt0}, v{vt1}, 3, v{vt0}')
    a(f'v_add_u32 v{vt0}, {WOFF}, v{vt0}')
    a(f'v_lshrrev_b32 v{vt1}, 1, v{vG}')
    a(f'v_mul_u32_u24 v{vt1}, 5, v{vt1}')
    a(f'v_and_b32 v{vt2}, 1, v{vG}')
    a(f'v_add_u32 v{vt1}, v{vt1}, v{vt2}')
    a(f'v_mul_u32_u24 v{vt1}, 640, v{vt1}')
    a(f'v_add_u32 v{vTr}, v{vt0}, v{vt1}')
    a(f'v_mul_u32_u24 v{vt1}, {5*640}, v{vG}')
    a(f'v_add3_u32 v{vTq}, v{vt0}, v{vt1}, 0')
    a(f'v_add_u32 v{vTq}, {4*640}, v{vTq}')
    for i in range(40): a(f'v_mov_b32 v{vAcc+i}, 0')
    a(f's_lshl_b32 s{st0}, s{sMT}, 7')
    a(f's_lshl_b32 s{st1}, s{sWV}, 5')
    a(f's_add_u32 s{st0}, s{st0}, s{st1}')
    a(f'v_add_u32 v{vt0}, s{st0}, v{vTok}')
    a(f'v_mul_u32_u24 v{vt0}, 2560, v{vt0}')
    a(f'v_and_b32 v{vt1}, 1, v{vG}')
    a(f'v_lshlrev_b32 v{vt1}, 5, v{vt1}')
    a(f'v_lshrrev_b32 v{vt2}, 1, v{vG}')
    a(f'v_lshl_add_u32 v{vt1}, v{vt2}, 4, v{vt1}')
    a(f'v_add_u32 v{vOut}, v{vt0}, v{vt1}')
    a(f'v_lshl_add_u32 v{vt3}, v{vG}, 3, v{vt0}')
    a('s_barrier')
    p.stamp(12)
    a(f's_lshl_b32 s33, s{sNT}, 1')
    def xloads(st):
        L=[]
        if st<16:
            r0=40+2*(st&3)
            L.append(f's_add_u32 s{r0}, s33, {st}')
            L.append(f's_and_b32 s{r0}, s{r0}, 15')
            L.append(f's_lshl_b32 s{r0}, s{r0}, 10')
            L.append(f's_add_u32 s{r0}, s{r0}, s32')
            L.append(f's_add_u32 s{r0+1}, s{r0}, 16384')
            for u in range(2):
                L.append(f'buffer_load_dwordx4 {vr(vX+(st*2+u)*4,4)}, v{vXo}, s[{sX}:{sX+3}], s{r0+u} offen {SL}')
        elif st<20:
            for u in range(2):
                for hh in range(2):
                    L.append(f'buffer_load_dwordx2 {vr(vX+(st*2+u)*4+2*hh,2)}, v{vX2}, s[{sX}:{sX+3}], s{36+u} offen offset:{(st-16)*1024+hh*512} {SL}')
        return L
    nl=lambda st: sum(1 for l in xloads(st) if l.startswith('buffer'))
    for st in range(XD):
        for l in xloads(st): a(l)
    def wbase(st):
        if st<16:
            a(f's_add_u32 s{st0}, s33, {st}')
            a(f's_and_b32 s{st0}, s{st0}, 15')
            a(f's_mul_i32 s{st0}, s{st0}, 6400')
            a(f'v_add_u32 v{vTp+(st&1)}, s{st0}, v{vTr}')
    def trr(s,cp,h):
        buf=vWf+(s&1)*20+cp*4+2*h
        if s<16: return f'ds_read_b64_tr_b16 {vr(buf,2)}, v{vTp+(s&1)} offset:{cp*32+h*1280}'
        o=(s-16)*25600+cp*32+h*12800
        if o<65536: return f'ds_read_b64_tr_b16 {vr(buf,2)}, v{vTq} offset:{o}'
        return f'ds_read_b64_tr_b16 {vr(buf,2)}, v{vTq+1} offset:{o-51200}'
    a('s_waitcnt lgkmcnt(0)')
    srd(a,sO,50,51,2048*2560)
    a(f'v_add_u32 v{vTq+1}, 51200, v{vTq}')
    wbase(0)
    for cp in range(5):
        a(trr(0,cp,0)); a(trr(0,cp,1))
    for s in range(20):
        if s+1<20: wbase(s+1)
        nxt=[trr(s+1,cp,h) for cp in range(5) for h in range(2)] if s+1<20 else []
        xl=xloads(s+XD)
        buf=vWf+(s&1)*20
        younger=sum(nl(t) for t in range(s+1,min(s+XD,20)))
        a(f's_waitcnt lgkmcnt(0) vmcnt({younger})')
        k=0
        for cp in range(5):
            for u in range(2):
                ac=vAcc+(cp*2+u)*4
                a(f'v_mfma_f32_16x16x32_bf16 {vr(ac,4)}, {vr(buf+cp*4,4)}, {vr(vX+(s*2+u)*4,4)}, {vr(ac,4)}')
                for _ in range(2 if k<5 else 0):
                    if nxt: a(nxt.pop(0))
                if k>=5:
                    for _ in range(2):
                        if xl: a(xl.pop(0))
                k+=1
        assert not xl
    a('s_nop 7')
    p.stamp(13)
    a(f's_mul_i32 s{st0}, s{sBR}, 1280')
    a(f's_mul_i32 s{st1}, s{sNT}, 160')
    a(f's_add_u32 s{st0}, s{st0}, s{st1}')
    a(f's_add_u32 s{st1}, s{st0}, {16*2560}')
    for u in range(2):
        for cp in range(5):
            b=vAcc+(cp*2+u)*4
            a(f'v_cvt_pk_bf16_f32 v{b}, v{b}, v{b+1}')
            a(f'v_cvt_pk_bf16_f32 v{b+1}, v{b+2}, v{b+3}')
        for cp in (0,2):
            b=vAcc+(cp*2+u)*4; b2=vAcc+((cp+1)*2+u)*4
            a(f'v_mov_b32 v{b+2}, v{b2}')
            a(f'v_mov_b32 v{b+3}, v{b2+1}')
            a('s_nop 1')
            a(f'v_permlane16_swap_b32 v{b}, v{b+2}')
            a(f'v_permlane16_swap_b32 v{b+1}, v{b+3}')
            a('s_nop 1')
            a(f'buffer_store_dwordx4 {vr(b,4)}, v{vOut}, s[{sO}:{sO+3}], s{st0+u} offen offset:{cp*32} {SO}')
        b=vAcc+(4*2+u)*4
        a(f'buffer_store_dwordx2 {vr(b,2)}, v{vt3}, s[{sO}:{sO+3}], s{st0+u} offen offset:128 {SO}')
    return vEnd

def build(**kw):
    a=A(); p=Prof(a)
    a.raw(f'.globl {KNAME}'); a.raw('.p2align 8'); a.raw(f'.type {KNAME},@function'); a.lab(KNAME)
    a('s_cmp_ge_u32 s2, 256')
    a('s_cbranch_scc1 L_exit')
    p.real(0); p.stamp(0)
    a(f's_load_dwordx4 s[{sDBG}:{sDBG+3}], s[0:1], 56' if False else f's_load_dwordx2 s[{sDBG}:{sDBG+1}], s[0:1], 56')
    a(f's_load_dwordx2 s[{sWS}:{sWS+1}], s[0:1], 64')
    a('s_load_dwordx4 s[16:19], s[0:1], 0')
    a('s_load_dwordx4 s[20:23], s[0:1], 24')
    a(f's_mov_b32 s{sWG}, s2')
    a('v_lshrrev_b32 v2, 6, v0')
    a('s_nop 0')
    a(f'v_readfirstlane_b32 s{sWV}, v2')
    a(f's_cmp_lg_u32 s{sWG}, 0')
    a('s_cbranch_scc1 L_notok')
    a(f's_cmp_lg_u32 s{sWV}, 4')
    a('s_cbranch_scc1 L_notok')
    a('s_memrealtime s[56:57]')
    a('s_waitcnt lgkmcnt(0)')
    a('s_or_b32 s56, s56, 1')
    a('s_mov_b64 exec, 1')
    a('v_mov_b32 v2, 0')
    a('v_mov_b32 v3, s56')
    a(f'global_store_dword v2, v3, s[{sDBG}:{sDBG+1}] sc1')
    a('s_mov_b64 exec, -1')
    a.lab('L_notok')
    if CPF:
        a(f's_cmp_lg_u32 s{sWV}, 5')
        a('s_cbranch_scc1 L_nocpf')
        a('s_getpc_b64 s[56:57]')
        a.lab('L_pc')
        a(f's_lshr_b32 s58, s{sWG}, 3')
        a('s_and_b32 s58, s58, 31')
        a('s_lshl_b32 s58, s58, 10')
        a('v_and_b32 v2, 63, v0')
        a('v_lshlrev_b32 v2, 4, v2')
        a('v_add_u32 v2, s58, v2')
        a(f'v_min_u32 v2, CODE_BYTES-16, v2')
        a('global_load_dwordx4 v[84:87], v2, s[56:57]')
        a.lab('L_nocpf')
    v1=phase1(a,p,**kw.get('p1',{}))
    v2,info=phase2(a,p,**kw.get('p2',{}))
    v3=phase3(a,p,info,**kw.get('p3',{}))
    a.lab('L_done')
    if PROF:
        a('s_waitcnt vmcnt(0)')
        p.real(1); p.dump()
    a('s_endpgm')
    a.lab('L_exit')
    a('s_endpgm')
    a.lab('L_code_end')
    a.raw('.set CODE_BYTES, (L_code_end - L_pc) & 0xfffffff0' if CPF else '')
    vg=max(v1,v2,v3)
    desc=f'''.section .rodata,"a"
.p2align 6
.amdhsa_kernel {KNAME}
  .amdhsa_next_free_vgpr {vg}
  .amdhsa_next_free_sgpr 102
  .amdhsa_accum_offset {(vg+3)//4*4}
  .amdhsa_group_segment_fixed_size 0
  .amdhsa_kernarg_size 72
  .amdhsa_user_sgpr_count 2
  .amdhsa_user_sgpr_kernarg_segment_ptr 1
  .amdhsa_system_sgpr_workgroup_id_x 1
.end_amdhsa_kernel
'''
    hdr=open('cdna_kernels/'+NAME+'.s.ref').read().split('\n')
    out=[]
    for l in hdr:
        if l.startswith('; @launch'): out.append('; @launch grid=(256,1,1) block=(512,1,1) lds=163840'); continue
        if not l.startswith(';'): break
        out.append(l)
    out += [
     '; One persistent launch, one workgroup per CU, three phases chained by flags in d_ws (tagged with a per-launch token kept in d_debug[0]):',
     ';  1. QKV projections (128x128 tiles, branch B tile then branch A tile; waves 4-7 stage X/W by LDS-DMA, waves 0-3 run the MFMAs);',
     ';     Q (pre-scaled by log2(e)/sqrt(20)), K and V are written as MFMA fragment images.',
     ';  2. attention per (head, 256 queries): full attention for B (64 queries per wave, key range split over wave pairs and merged),',
     ';     sliding window for A.  Softmax subtracts the max of a sample of the keys of the row; if the row sum shows that this',
     ';     stand-in was unsafe (>= 2^100 or NaN) the tile is recomputed with the exact row max.',
     ';  3. output projection (128 tokens x 80 columns per workgroup).']
    out.append('.amdgcn_target "amdgcn-amd-amdhsa--gfx950"'); out.append('.text')
    return '\n'.join(out)+'\n'+a.txt()+desc

if __name__=='__main__':
    if len(sys.argv)>2 and sys.argv[2]=='prof': PROF=True
    kw=eval(sys.argv[3]) if len(sys.argv)>3 else {}
    if 'CPF' in kw: CPF=kw.pop('CPF')
    if 'JMAP' in kw: JMAP=kw.pop('JMAP')
    if 'NOPOLL3' in kw: NOPOLL3=kw.pop('NOPOLL3')
    if 'OPM' in kw: OPM=kw.pop('OPM')
    if 'RT' in kw: RT=kw.pop('RT')
    if 'BPROF' in kw: BPROF=kw.pop('BPROF')
    if 'POLL' in kw: POLLC.update(kw.pop('POLL'))
    if 'SCO' in kw: SCO=kw.pop('SCO')
    if 'SO' in kw: SO=kw.pop('SO')
    if 'SL' in kw: SL=kw.pop('SL')
    if 'SC' in kw: SC=kw.pop('SC')
    open(sys.argv[1],'w').write(build(**kw))
```

```python
import sys, math, struct
NAME='concat_heads__sliding_block__mha_block__prompt'
KNAME=NAME+'_kernel'
WS_Q=0
WS_KV=2*32*64*1280
WS_O=WS_KV+2*32*64*2560
WS_END=WS_O+2*2048*1280
WS_FLG=WS_END
CSCALE=(20.0**-0.5)*math.log2(math.e)
NEG_BIG=0xf149f2ca
def f32bits(x): return struct.unpack('<I',struct.pack('<f',x))[0]
class A:
    def __init__(s): s.l=[]
    def __call__(s,x): s.l.append('  '+x)
    def lab(s,x): s.l.append(x+':')
    def raw(s,x): s.l.append(x)
    def txt(s): return '\n'.join(s.l)+'\n'
def vr(a,n=1): return f'v{a}' if n==1 else f'v[{a}:{a+n-1}]'
PROF=False
BPROF=False
OPM=True
NOPOLL3=False
JMAP=False
CPF=True
RT=False
PROF_BASE=32<<20
NST=16
class Prof:
    def __init__(s,a): s.a=a; s.n=0
    def stamp(s,i=None,force=False):
        if not PROF: return
        if BPROF==2 and not force and i not in (0,7,8): return
        if BPROF==3 and not force and i not in (0,12,13): return
        if i is None: i=s.n
        s.n=max(s.n,i+1)
        assert i<14
        s.a(f's_memrealtime s[{60+2*i}:{61+2*i}]' if RT else f's_memtime s[{60+2*i}:{61+2*i}]')
    def real(s,idx):
        if PROF: s.a(f's_memrealtime s[{88+2*idx}:{89+2*idx}]')
    def dump(s):
        if not PROF: return
        a=s.a
        a('s_waitcnt lgkmcnt(0) vmcnt(0)')
        a(f's_lshl_b32 s92, s{sWG}, 3')
        a(f's_add_u32 s92, s92, s{sWV}')
        a('s_lshl_b32 s92, s92, 6')
        a(f's_add_u32 s92, s92, {PROF_BASE}')
        a(f's_add_u32 s94, s{sWS}, s92')
        a(f's_addc_u32 s95, s{sWS+1}, 0')
        a('v_mov_b32 v0, 0')
        a('s_mov_b64 exec, 1')
        for i in range(14):
            a(f'v_mov_b32 v1, s{60+2*i}')
            a(f'global_store_dword v0, v1, s[94:95] offset:{4*i}')
        a('v_mov_b32 v1, s88'); a('global_store_dword v0, v1, s[94:95] offset:56')
        a('v_mov_b32 v1, s90'); a('global_store_dword v0, v1, s[94:95] offset:60')
        a('s_waitcnt vmcnt(0)')
sWG=96; sWV=97; sDBG=98; sWS=100; sTOK=59
def srd(a, d, lo, hi, nbytes):
    a(f's_mov_b32 s{d}, s{lo}')
    a(f's_and_b32 s{d+1}, s{hi}, 0xffff')
    a(f's_mov_b32 s{d+2}, {nbytes}')
    a(f's_mov_b32 s{d+3}, 0x20000')

SC='sc1'
SL=''
SO=''
SCO='sc1'

TILE=2560; HALF=81920
P2M=212
P2C=list(range(244,256))
def head_j(a,sH,sJ_,t0,t1):
    if JMAP:
        a(f's_lshr_b32 s{sH}, s{sWG}, 3')
        a(f's_and_b32 s{sJ_}, s{sWG}, 7')
        return
    a(f's_and_b32 s{t0}, s{sWG}, 7')
    a(f's_lshr_b32 s{t1}, s{sWG}, 3')
    a(f's_lshl_b32 s{sH}, s{t0}, 2')
    a(f's_lshr_b32 s{t0}, s{t1}, 3')
    a(f's_add_u32 s{sH}, s{sH}, s{t0}')
    a(f's_and_b32 s{sJ_}, s{t1}, 7')
def q_prep(a):
    head_j(a,50,51,52,53)
    a('s_lshl_b32 s50, s50, 6')
    a('s_lshl_b32 s51, s51, 3')
    a('s_add_u32 s50, s50, s51')
    a(f's_and_b32 s51, s{sWV}, 3')
    a('s_lshl_b32 s51, s51, 1')
    a('s_add_u32 s50, s50, s51')
    a('s_mul_i32 s50, s50, 1280')
    a(f's_add_u32 s50, s50, {32*64*1280}')
    a('s_add_u32 s51, s50, 1280')
    srd(a,52,sWS,sWS+1,WS_O)
    a('v_and_b32 v5, 31, v1')
    a('v_lshlrev_b32 v5, 3, v5')
    a('v_lshrrev_b32 v4, 5, v1')
    a('v_mul_u32_u24 v33, 1280, v4')
    a('v_lshl_add_u32 v4, v4, 8, v5')
    a('v_add3_u32 v5, v5, v33, 0')
    a('v_add_u32 v5, 1024, v5')
def q_loads(a):
    for (r1,so) in ((16,50),(24,51)):
        a(f'buffer_load_dwordx2 v[{r1}:{r1+1}], v4, s[52:55], s{so} offen {SL}')
        a(f'buffer_load_dwordx2 v[{r1+2}:{r1+3}], v4, s[52:55], s{so} offen offset:512 {SL}')
    a(f'buffer_load_dwordx2 v[20:21], v5, s[52:55], s50 offen {SL}')
def q_issue(a):
    q_prep(a); q_loads(a)
def kv_first(a,pieces,rows=(0,HALF,8192,HALF+8192)):
    head_j(a,50,51,52,53)
    a(f's_mul_i32 s50, s50, {64*TILE}')
    a(f's_add_u32 s50, s50, {WS_KV+32*64*TILE}')
    a(f's_add_u32 s52, s{sWS}, s50')
    a(f's_addc_u32 s53, s{sWS+1}, 0')
    a('s_and_b32 s53, s53, 0xffff')
    a('s_mov_b32 s54, 163840')
    a('s_mov_b32 s55, 0x20000')
    a('v_lshlrev_b32 v2, 4, v1')
    for row in rows:
        for pc in pieces:
            a(f's_add_u32 m0, s{pc[0]}, {row+pc[1]}')
            a(f's_add_u32 s50, s{pc[0]}, {row+pc[1]}')
            a(f'buffer_load_dwordx4 v2, s[52:55], s50 offen {SL} lds')
def poll_f1(a,tag,br):
    head_j(a,50,51,52,53)
    a('s_mul_i32 s50, s50, 20')
    a('s_lshr_b32 s51, s50, 7')
    a('s_add_u32 s50, s50, 19')
    a('s_lshr_b32 s50, s50, 7')
    a('s_sub_u32 s50, s50, s51')
    a('v_bfe_u32 v2, v1, 4, 1')
    a('v_mul_u32_u24 v2, s50, v2')
    a('v_add_u32 v2, s51, v2')
    a('v_lshrrev_b32 v5, 5, v1')
    a('v_mul_u32_u24 v5, 5, v5')
    a('v_add_u32 v5, v5, v2')
    a('v_add_u32 v14, 10, v2')
    a('v_and_b32 v2, 15, v1')
    a('v_lshl_add_u32 v5, v5, 4, v2')
    a('v_lshl_add_u32 v14, v14, 4, v2')
    a('v_lshlrev_b32 v5, 7, v5')
    a('v_lshlrev_b32 v14, 7, v14')
    a(f'v_add_u32 v5, {WS_FLG+br*15*16*128}, v5')
    a(f'v_add_u32 v14, {WS_FLG+br*15*16*128}, v14')
    poll2(a,tag,5,14,(1<<64)-1)

def p2_early(a,tag):
    vLane=1; vt0=2; vt1=3; vt2=4; vt3=5; vCc=6; st0=50; sTm=52; sJ=51; sLo=56
    vK1a,vK2a,vVa,vVb,vDma,vRho,vOoff,vOo2,vQ1o,vQ2o,vWo,vKap=P2C
    vMF=P2M; vML=P2M+16
    head_j(a,50,sJ,52,53)
    a(f'v_lshlrev_b32 v{vDma}, 4, v{vLane}')
    a(f'v_and_b32 v{vRho}, 31, v{vLane}')
    a(f'v_lshlrev_b32 v{vt1}, 3, v{vRho}')
    a(f'v_add_u32 v{vK2a}, 1024, v{vt1}')
    a(f'v_mov_b32 v{vt2}, 0x70000000')
    a(f'v_cmp_gt_u32 s[{sLo}:{sLo+1}], 32, v{vLane}')
    a('s_nop 1')
    a(f'v_cndmask_b32 v{vQ2o}, v{vt2}, v{vK2a}, s[{sLo}:{sLo+1}]')
    a(f'v_lshrrev_b32 v{vt0}, 5, v{vLane}')
    a(f'v_lshlrev_b32 v{vK1a}, 3, v{vRho}')
    a(f'v_lshl_add_u32 v{vK1a}, v{vt0}, 8, v{vK1a}')
    a(f'v_mov_b32 v{vQ1o}, v{vK1a}')
    a(f'v_bfe_u32 v{vt1}, v{vRho}, 2, 2')
    a(f'v_xor_b32 v{vt1}, v{vt1}, v{vt0}')
    a(f'v_lshlrev_b32 v{vt1}, 4, v{vt1}')
    a(f'v_lshl_add_u32 v{vVa}, v{vRho}, 6, v{vt1}')
    a(f'v_add_u32 v{vVa}, 1280, v{vVa}')
    a(f'v_xor_b32 v{vVb}, 32, v{vVa}')
    a(f'v_and_b32 v{vt1}, 1, v{vRho}')
    a(f'v_lshlrev_b32 v{vKap}, 4, v{vt1}')
    a(f'v_lshrrev_b32 v{vt1}, 4, v{vRho}')
    a(f'v_lshl_or_b32 v{vKap}, v{vt1}, 3, v{vKap}')
    a(f'v_and_b32 v{vt1}, 4, v{vRho}')
    a(f'v_or_b32 v{vKap}, v{vKap}, v{vt1}')
    a(f'v_bfe_u32 v{vt1}, v{vRho}, 3, 1')
    a(f'v_lshl_or_b32 v{vKap}, v{vt1}, 1, v{vKap}')
    a(f'v_bfe_u32 v{vt1}, v{vRho}, 1, 1')
    a(f'v_or_b32 v{vKap}, v{vKap}, v{vt1}')
    a(f'v_lshlrev_b32 v{vt3}, 2, v{vt0}')
    a(f'v_sub_u32 v{vt3}, v{vKap}, v{vt3}')
    a(f'v_mov_b32 v{vt2}, {NEG_BIG:#x}')
    for r in range(16):
        base=(r&3)+8*(r>>2)
        kb=16*(r&1)+8*((r>>3)&1)+2*((r>>2)&1)+((r>>1)&1)
        if r>=2:
            q=r-2
            a(f'v_cndmask_b32 v{vMF+q}, v{vt2}, 0, s[{sTm+2*(q&1)}:{sTm+1+2*(q&1)}]')
            a(f'v_cndmask_b32 v{vML+q}, 0, v{vt2}, s[{sTm+2*(q&1)}:{sTm+1+2*(q&1)}]')
        a(f'v_cmp_gt_i32 s[{sTm+2*(r&1)}:{sTm+1+2*(r&1)}], {kb}, v{vt3}')
        if r==0: a('s_nop 0')
        if r==1: a('s_nop 1')
    a('s_nop 1')
    for q in (14,15):
        a(f'v_cndmask_b32 v{vMF+q}, v{vt2}, 0, s[{sTm+2*(q&1)}:{sTm+1+2*(q&1)}]')
        a(f'v_cndmask_b32 v{vML+q}, 0, v{vt2}, s[{sTm+2*(q&1)}:{sTm+1+2*(q&1)}]')
    a(f's_cmp_lg_u32 s{sJ}, 0')
    a(f's_cbranch_scc1 L_mf_ok_{tag}')
    for r in range(16): a(f'v_mov_b32 v{vMF+r}, v{vt2}')
    a.lab(f'L_mf_ok_{tag}')
    a(f'v_lshrrev_b32 v{vt1}, 4, v{vKap}')
    a(f'v_and_b32 v{vt2}, 15, v{vKap}')
    a(f'v_lshlrev_b32 v{vOoff}, 14, v{vt1}')
    a(f'v_lshl_add_u32 v{vOoff}, v{vt2}, 4, v{vOoff}')
    a(f'v_lshrrev_b32 v{vt3}, 5, v{vLane}')
    a(f'v_lshl_add_u32 v{vOoff}, v{vt3}, 8, v{vOoff}')
    a(f'v_lshlrev_b32 v{vOo2}, 12, v{vt1}')
    a(f'v_lshl_add_u32 v{vOo2}, v{vt2}, 3, v{vOo2}')
    a(f's_lshl_b32 s{st0}, s{sWV}, 6')
    a(f'v_add_u32 v{vt0}, s{st0}, v{vLane}')
    a(f'v_mul_u32_u24 v{vt1}, 52429, v{vt0}')
    a(f'v_lshrrev_b32 v{vt1}, 19, v{vt1}')
    a(f'v_mul_u32_u24 v{vt2}, 10, v{vt1}')
    a(f'v_sub_u32 v{vCc}, v{vt0}, v{vt2}')
    a(f'v_mul_u32_u24 v{vt1}, 1280, v{vt1}')
    a(f'v_lshl_add_u32 v{vWo}, v{vCc}, 4, v{vt1}')


class Att:
    def __init__(s,a):
        s.a=a
        s.vK1a,s.vK2a,s.vVa,s.vVb,s.vDma,s.vRho,s.vOoff,s.vOo2,s.vQ1o,s.vQ2o,s.vWo,s.vKap=P2C
        s.vt1=3; s.vM=10; s.vMb=35
        s.vQa1=16; s.vQab=20; s.vQa2=22; s.vQb1=24; s.vK1=28; s.vK2=32
        s.vV=36; s.vP=52; s.vSa=64; s.vSb=80; s.vOa=96; s.vOb=112; s.vCa=128; s.vCb=144; s.vS1=160
        s.sVm=24; s.sTm=40
    def rd_k1(s,dst,off,ad=None):
        assert off%512==0 and off//512+1<256
        s.a(f'ds_read2st64_b64 {vr(dst,4)}, v{s.vK1a if ad is None else ad} offset0:{off//512} offset1:{off//512+1}')
    def rd_k2(s,dst,off,ad=None): s.a(f'ds_read_b64 {vr(dst,2)}, v{s.vK2a if ad is None else ad} offset:{off}')
    def rd_v(s,buf,off,ada=None,adb=None):
        a=s.a
        a(f's_mov_b64 exec, s[{s.sVm}:{s.sVm+1}]')
        a(f'ds_read_b128 {vr(s.vV+8*buf,4)}, v{s.vVa if ada is None else ada} offset:{off}')
        a(f'ds_read_b128 {vr(s.vV+8*buf+4,4)}, v{s.vVb if adb is None else adb} offset:{off}')
        a('s_mov_b64 exec, -1')
    def qk1(s,S,C,Q1,K=None): s.a(f'v_mfma_f32_32x32x16_bf16 {vr(S,16)}, {vr(s.vK1 if K is None else K,4)}, {vr(Q1,4)}, {C}')
    def qk2(s,S,Q2,K=None): s.a(f'v_mfma_f32_32x32x8bf16_1k {vr(S,16)}, {vr(s.vK2 if K is None else K,2)}, {vr(Q2,2)}, {vr(S,16)}')
    def qk2b(s,S): s.a(f'v_mfma_f32_32x32x4bf16_1k {vr(S,32)}, {vr(s.vK2,2)}, {vr(s.vQab,2)}, {vr(S,32)}')
    def pv(s,O,buf,t): s.a(f'v_mfma_f32_32x32x16_bf16 {vr(O,16)}, {vr(s.vV+8*buf+4*t,4)}, {vr(s.vP+4*t,4)}, {vr(O,16)}')
    def ex(s,S,r): s.a(f'v_exp_f32 v{S+r}, v{S+r}')
    def cv(s,S,c): s.a(f'v_cvt_pk_bf16_f32 v{s.vP+c}, v{S+2*c}, v{S+2*c+1}')
    def rowmax(s,M,S,first):
        a=s.a
        if first:
            a(f'v_max3_f32 v{M}, v{S}, v{S+1}, v{S+2}'); rest=list(range(3,16))
        else: rest=list(range(16))
        while len(rest)>=2:
            a(f'v_max3_f32 v{M}, v{M}, v{S+rest[0]}, v{S+rest[1]}'); rest=rest[2:]
        if rest: a(f'v_max_f32 v{M}, v{M}, v{S+rest[0]}')
    def xhalf_max(s,M):
        a=s.a
        a(f'v_mov_b32 v{s.vt1}, v{M}')
        a('s_nop 1')
        a(f'v_permlane32_swap_b32 v{M}, v{s.vt1}')
        a('s_nop 1')
        a(f'v_max_f32 v{M}, v{M}, v{s.vt1}')
    def vinit(s):
        a=s.a
        a(f'v_cmp_eq_u32 s[{s.sTm}:{s.sTm+1}], 20, v{s.vRho}')
        a(f'v_mov_b32 v{s.vt1}, 0x3f803f80')
        a('s_nop 0')
        a(f'v_cndmask_b32 v{s.vt1}, 0, v{s.vt1}, s[{s.sTm}:{s.sTm+1}]')
        for i in range(16): a(f'v_mov_b32 v{s.vV+i}, v{s.vt1}')
    def expgroups(s,cur,A_,B_,C_,D_):
        ex=s.ex; cv=s.cv
        A_()
        for r in range(0,4): ex(cur,r)
        B_()
        ex(cur,4); ex(cur,5); cv(cur,0); ex(cur,6); cv(cur,1); ex(cur,7)
        C_()
        ex(cur,8); cv(cur,2); ex(cur,9); cv(cur,3); ex(cur,10); ex(cur,11)
        D_()
        ex(cur,12); ex(cur,13); cv(cur,4); ex(cur,14); cv(cur,5); ex(cur,15); cv(cur,6); cv(cur,7)
    def key_tile(s,pp,k2,v1):
        SP=[s.vSa,s.vS1]; cur=SP[pp&1]; nxt=SP[(pp+1)&1]
        ka,ko=k2; va,vo=v1
        s.a('s_waitcnt lgkmcnt(0)')
        s.expgroups(cur,
            lambda: s.qk1(nxt,vr(s.vCa,16),s.vQa1),
            lambda: (s.pv(s.vOb,(pp+1)&1,1), s.rd_v((pp+1)&1,vo,*( (va[2],va[3]) if va else (None,None)))),
            lambda: (s.qk1(nxt+16,vr(s.vCb,16),s.vQb1), s.rd_k1(s.vK1,ko,ka[0] if ka else None)),
            lambda: s.pv(s.vOa,pp&1,0))
        s.expgroups(cur+16,
            lambda: (s.qk2b(nxt), s.rd_k2(s.vK2,ko,ka[1] if ka else None)),
            lambda: None,
            lambda: s.pv(s.vOa,pp&1,1),
            lambda: s.pv(s.vOb,pp&1,0))
    def standin(s,ad):
        a=s.a
        s.rd_k1(s.vK1,0,ad[0]); s.rd_k2(s.vK2,0,ad[1])
        a('s_waitcnt lgkmcnt(0)')
        s.qk1(s.vSa,'0',s.vQa1); s.qk1(s.vSb,'0',s.vQb1)
        a('s_nop 9')
        s.qk2b(s.vSa)
    def standin2(s):
        a=s.a
        a('s_nop 15'); a('s_nop 3')
        s.rowmax(s.vM,s.vSa,True); s.rowmax(s.vMb,s.vSb,True)
        s.xhalf_max(s.vM); s.xhalf_max(s.vMb)
        for r in range(16): a(f'v_sub_f32 v{s.vCa+r}, 0, v{s.vM}')
        for r in range(16): a(f'v_sub_f32 v{s.vCb+r}, 0, v{s.vMb}')
    def first_tile(s,off,off1):
        a=s.a
        a('s_waitcnt lgkmcnt(0)')
        s.qk1(s.vSa,vr(s.vCa,16),s.vQa1); s.qk1(s.vSb,vr(s.vCb,16),s.vQb1)
        s.rd_k1(s.vK1,off1)
        a('s_nop 9')
        s.qk2b(s.vSa)
        s.rd_k2(s.vK2,off1)
        a('s_nop 15')
        a('s_nop 1')

def phase1(a,p,D=3,SY=1,LP='',EARLY2=False,SPF=False,SPFN=6,XROT=(2,1),LPRIO=2,EPRIO=1,EH=(0,1,2),TF=11,TP=15):
    R=4; XOFF=16384
    sX,sW,sO=4,8,12
    sBR,sMT,sNT=26,27,28
    sKS=31; sXo=32; sW0=34; sIT=36; sSlot=37; sLW=38; sLX=39; sT=40
    st0,st1,st2,st3=41,42,43,44
    sSec=45; sBase=46; sHS=47; sTS=48; sNx=30; sM=29; sN=33; sIdx=35
    vLane=1; vt0=6; vt1=7; vt2=8; vt3=9; vt4=10; vTok=11; vG=12; vRho=13
    vLW=8; vLX=10; vXh=2; vXc1=3
    vB0=14; vBc=19; vBn=24; vAd=29
    vWf=36; vXf=vWf+32; vAcc=vXf+4*(D+1); vEnd=vAcc+128
    assert vEnd<=256 and 8%(D+1)==0
    def wf(step,c): return vWf+(step&1)*16+c*4
    def xf(i): return vXf+(i%(D+1))*4
    def acc(t,c,mt): return vAcc+t*64+(c*4+mt)*4
    def slotbase(dst,idx):
        a(f's_lshl_b32 s{dst}, s{idx}, 15')
        a(f's_lshr_b32 s{st3}, s{idx}, 1')
        a(f's_lshl_b32 s{st3}, s{st3}, 14')
        a(f's_add_u32 s{dst}, s{dst}, s{st3}')
        a(f's_add_u32 s{dst}, s{dst}, 16384')
    a(f'v_and_b32 v{vLane}, 63, v0')
    a(f's_and_b32 s{st0}, s{sWG}, 7')
    a(f's_lshr_b32 s{st1}, s{sWG}, 3')
    a(f's_and_b32 s{st2}, s{st0}, 1')
    a(f's_lshl_b32 s{st2}, s{st2}, 3')
    a(f's_and_b32 s{st3}, s{st1}, 7')
    a(f's_add_u32 s{sMT}, s{st2}, s{st3}')
    a(f's_lshr_b32 s{st2}, s{st0}, 1')
    a(f's_lshl_b32 s{st2}, s{st2}, 2')
    a(f's_lshr_b32 s{st1}, s{st1}, 3')
    a(f's_add_u32 s{sNT}, s{st2}, s{st1}')
    a(f's_cmp_ge_u32 s{sNT}, 15')
    a(f's_cbranch_scc1 L_p1_skip')
    a(f's_cmp_ge_u32 s{sWV}, 4')
    a(f's_cbranch_scc0 L_p1_compute')
    i_c=len(a.l)
    a.lab('L_p1_compute')
    p2_early(a,'c')
    a(f's_and_b32 s{sM}, s{sWV}, 1')
    a(f's_lshr_b32 s{sN}, s{sWV}, 1')
    a(f'v_and_b32 v{vTok}, 15, v{vLane}')
    a(f'v_lshrrev_b32 v{vG}, 4, v{vLane}')
    a(f'v_and_b32 v{vt0}, 3, v{vLane}')
    a(f'v_bfe_u32 v{vt1}, v{vLane}, 2, 2')
    a(f'v_and_b32 v{vt2}, 1, v{vG}')
    a(f'v_lshl_or_b32 v{vt2}, v{vt2}, 2, v{vt1}')
    a(f'v_lshl_add_u32 v{vt3}, v{vG}, 3, v{vt1}')
    a(f'v_lshlrev_b32 v{vt3}, 8, v{vt3}')
    a(f'v_lshl_add_u32 v{vt3}, v{vt0}, 3, v{vt3}')
    a(f's_lshl_b32 s{st0}, s{sN}, 2')
    a(f'v_xor_b32 v{vt2}, s{st0}, v{vt2}')
    for c in range(4):
        a(f'v_xor_b32 v{vt4}, {c}, v{vt2}')
        a(f'v_lshl_add_u32 v{vB0+c}, v{vt4}, 5, v{vt3}')
    a(f'v_lshrrev_b32 v{vt0}, 1, v{vTok}')
    a(f'v_xor_b32 v{vt0}, v{vt0}, v{vG}')
    a(f'v_lshlrev_b32 v{vt0}, 4, v{vt0}')
    a(f'v_lshl_add_u32 v{vt0}, v{vTok}, 7, v{vt0}')
    a(f's_lshl_b32 s{st0}, s{sM}, 13')
    a(f's_add_u32 s{st0}, s{st0}, {XOFF}')
    a(f'v_add_u32 v{vB0+4}, s{st0}, v{vt0}')
    a(f'v_xor_b32 v{vXh}, 64, v{vt0}')
    a(f'v_sub_u32 v{vXh}, v{vXh}, v{vt0}')
    for i in range(5): a(f'v_add_u32 v{vBc+i}, 16384, v{vB0+i}')
    for i in range(128): a(f'v_mov_b32 v{vAcc+i}, 0')
    a(f's_mul_i32 s{sSec}, s{sNT}, 52')
    a(f's_lshr_b32 s{sSec}, s{sSec}, 8')
    a(f's_mul_i32 s{st0}, s{sSec}, 5')
    a(f's_sub_u32 s{st0}, s{sNT}, s{st0}')
    a(f's_lshl_b32 s{st0}, s{st0}, 7')
    a(f's_lshl_b32 s{st1}, s{sN}, 6')
    a(f's_add_u32 s{st0}, s{st0}, s{st1}')
    a(f's_cmp_eq_u32 s{sSec}, 0')
    a(f's_cselect_b32 s{st1}, 0, 1')
    a(f's_cselect_b32 s{st2}, 0, {WS_KV}')
    a(f's_lshl_b32 s{sTS}, 1280, s{st1}')
    a(f's_lshl_b32 s{sHS}, s{sTS}, 6')
    a(f's_lshl_b32 s{sT}, s{sMT}, 2')
    a(f's_lshl_b32 s{st1}, s{sM}, 1')
    a(f's_add_u32 s{sT}, s{sT}, s{st1}')
    a(f's_mul_i32 s{st1}, s{sT}, s{sTS}')
    a(f's_add_u32 s{sBase}, s{st1}, s{st2}')
    a(f's_cmp_eq_u32 s{sSec}, 2')
    a(f's_cbranch_scc1 L_p1_adV')
    a(f'v_lshrrev_b32 v{vt0}, 3, v{vTok}')
    a(f'v_lshlrev_b32 v{vRho}, 7, v{vt0}')
    a(f'v_bfe_u32 v{vt0}, v{vTok}, 1, 1')
    a(f'v_lshl_or_b32 v{vRho}, v{vt0}, 6, v{vRho}')
    a(f'v_bfe_u32 v{vt0}, v{vTok}, 2, 1')
    a(f'v_lshl_or_b32 v{vRho}, v{vt0}, 5, v{vRho}')
    a(f'v_and_b32 v{vt0}, 1, v{vTok}')
    a(f'v_lshl_or_b32 v{vRho}, v{vt0}, 4, v{vRho}')
    a(f's_lshr_b32 s{st0}, s{st0}, 2')
    for c in range(4):
        a(f'v_add_u32 v{vt0}, s{st0}, v{vG}')
        if c: a(f'v_add_u32 v{vt0}, {4*c}, v{vt0}')
        a(f'v_mul_u32_u24 v{vt1}, 52429, v{vt0}')
        a(f'v_lshrrev_b32 v{vt1}, 18, v{vt1}')
        a(f'v_mul_u32_u24 v{vt2}, 5, v{vt1}')
        a(f'v_sub_u32 v{vt2}, v{vt0}, v{vt2}')
        a(f'v_mul_u32_u24 v{vt1}, s{sHS}, v{vt1}')
        a(f'v_and_b32 v{vt3}, 1, v{vt2}')
        a(f'v_lshlrev_b32 v{vt3}, 9, v{vt3}')
        a(f'v_lshrrev_b32 v{vt4}, 1, v{vt2}')
        a(f'v_cmp_eq_u32 s[56:57], 4, v{vt2}')
        a(f'v_lshl_add_u32 v{vt3}, v{vt4}, 8, v{vt3}')
        a(f'v_add_u32 v{vt4}, 512, v{vt3}')
        a(f'v_add_u32 v{vt1}, v{vt1}, v{vRho}')
        a(f'v_cndmask_b32 v{vt3}, v{vt3}, v{vt4}, s[56:57]')
        a(f'v_add_u32 v{vAd+c}, v{vt1}, v{vt3}')
    a('s_branch L_p1_adD')
    a.lab('L_p1_adV')
    for c in range(4):
        a(f'v_add_u32 v{vt0}, s{st0}, v{vTok}')
        if c: a(f'v_add_u32 v{vt0}, {16*c}, v{vt0}')
        a(f'v_mul_u32_u24 v{vt1}, 52429, v{vt0}')
        a(f'v_lshrrev_b32 v{vt1}, 20, v{vt1}')
        a(f'v_mul_u32_u24 v{vt2}, 20, v{vt1}')
        a(f'v_sub_u32 v{vt2}, v{vt0}, v{vt2}')
        a(f'v_mul_u32_u24 v{vt1}, {64*2560}, v{vt1}')
        a(f'v_lshl_add_u32 v{vt1}, v{vt2}, 6, v{vt1}')
        a(f'v_bfe_u32 v{vt2}, v{vt2}, 2, 2')
        a(f'v_xor_b32 v{vt2}, v{vt2}, v{vG}')
        a(f'v_lshl_add_u32 v{vt1}, v{vt2}, 4, v{vt1}')
        a(f'v_add_u32 v{vAd+c}, 1280, v{vt1}')
    a.lab('L_p1_adD')
    a('s_waitcnt lgkmcnt(0)')
    srd(a,sO,sWS,sWS+1,WS_O)
    q_prep(a)
    def wread(nxt,h,step,c,hh):
        b=(vBn if nxt else vBc)+c
        return f'ds_read_b64_tr_b16 {vr(wf(step,c)+2*hh,2)}, v{b} offset:{h*8192+1024*hh}'
    def xread(nxt,h,mt,buf):
        b=((vBn if nxt else vBc)+4) if h==0 else vXc1
        return f'ds_read_b128 {vr(xf(buf),4)}, v{b} offset:{mt*2048}'
    def epilogue(v,t,br):
        if v==0:
            a(f's_cmp_lg_u32 s{sSec}, 0')
            a(f's_cbranch_scc1 L_p1_ns{t}')
            a(f's_mov_b32 s{st1}, {f32bits(CSCALE):#x}')
            for i in range(64): a(f'v_mul_f32 v{vAcc+64*t+i}, s{st1}, v{vAcc+64*t+i}')
            a.lab(f'L_p1_ns{t}')
        a(f's_lshl_b32 s{st0}, s{sTS}, 11')
        a(f's_mul_i32 s{st0}, s{st0}, {br}')
        a(f's_add_u32 s{st0}, s{st0}, s{sBase}')
        for tp in range(2):
            if tp: a(f's_add_u32 s{st0}, s{st0}, s{sTS}')
            for c in range(4):
                b=acc(t,c,2*tp)
                if v==0:
                    a(f'v_cvt_pk_bf16_f32 v{b}, v{b}, v{b+1}')
                    a(f'v_cvt_pk_bf16_f32 v{b+1}, v{b+2}, v{b+3}')
                    a(f'v_cvt_pk_bf16_f32 v{b+2}, v{b+4}, v{b+5}')
                    a(f'v_cvt_pk_bf16_f32 v{b+3}, v{b+6}, v{b+7}')
                else:
                    a(f'v_cvt_pk_bf16_f32 v{b}, v{b}, v{b+4}')
                    a(f'v_cvt_pk_bf16_f32 v{b+1}, v{b+1}, v{b+5}')
                    a(f'v_cvt_pk_bf16_f32 v{b+2}, v{b+2}, v{b+6}')
                    a(f'v_cvt_pk_bf16_f32 v{b+3}, v{b+3}, v{b+7}')
                a(f'buffer_store_dwordx4 {vr(b,4)}, v{vAd+c}, s[{sO}:{sO+3}], s{st0} offen {SC}')
    a(f's_cmp_eq_u32 s{sSec}, 2')
    a(f's_cbranch_scc1 L_p1_v1')
    for v in range(2):
        a.lab(f'L_p1_v{v}')
        p.stamp(1)
        a('s_barrier')
        p.stamp(2)
        def body(emit,issued,t):
            waits=[]
            for st in range(2):
                for mt in range(4):
                    gi=st*4+mt
                    need=[('x',gi)]
                    if mt==0: need.append(('w',st))
                    last=max(len(issued)-1-issued[::-1].index(tg) for tg in need)
                    y=len(issued)-1-last
                    waits.append(y)
                    if emit:
                        y=min(y,wmin[len(waits)-1])
                        a(f's_waitcnt lgkmcnt({min(y,15)})')
                    fill=[]
                    g2=gi+D; nx=g2>=8; h2=(g2%8)//4; m2=g2%4
                    fill.append((xread(nx,h2,m2,g2),('x',g2%8)))
                    wm={0:(0,1),1:(2,3)} if st==1 else {0:(0,1),1:(2,3)}
                    if mt in wm:
                        for c in wm[mt]:
                            fill.append((wread(st==1,(st+1)&1,st+1,c,0),('w',(st+1)%2)))
                            fill.append((wread(st==1,(st+1)&1,st+1,c,1),('w',(st+1)%2)))
                    if st==0 and mt==0:
                        fill.append((f'v_add_u32 v{vXc1}, v{vBc+4}, v{vXh}',None))
                    if st==0 and mt==2:
                        fill.append((f's_add_u32 s{sIdx}, s{sIdx}, 1',None))
                        fill.append((f's_and_b32 s{sIdx}, s{sIdx}, 3',None))
                        fill.append((f's_lshl_b32 s{sNx}, s{sIdx}, 15',None))
                        fill.append((f's_lshr_b32 s{st3}, s{sIdx}, 1',None))
                        fill.append((f's_lshl_b32 s{st3}, s{st3}, 14',None))
                        fill.append((f's_add_u32 s{sNx}, s{sNx}, s{st3}',None))
                        fill.append((f's_add_u32 s{sNx}, s{sNx}, 16384',None))
                    if st==0 and mt==3:
                        for i in range(5): fill.append((f'v_add_u32 v{vBn+i}, s{sNx}, v{vB0+i}',None))
                    if st==1 and mt==3:
                        for i in range(5): fill.append((f'v_mov_b32 v{vBc+i}, v{vBn+i}',None))
                    for c in range(4):
                        x=xf(gi); w=wf(st,c); ac=acc(t,c,mt)
                        if emit:
                            if v==0: a(f'v_mfma_f32_16x16x32_bf16 {vr(ac,4)}, {vr(w,4)}, {vr(x,4)}, {vr(ac,4)}')
                            else:    a(f'v_mfma_f32_16x16x32_bf16 {vr(ac,4)}, {vr(x,4)}, {vr(w,4)}, {vr(ac,4)}')
                        k=1 if c<3 else len(fill)
                        if len(fill)>4 and c<3: k=2
                        while k>0 and fill:
                            tx,tag=fill.pop(0); k-=1
                            if emit: a(tx)
                            if tag: issued.append(tag)
                    if st==0 and mt==SY and emit:
                        if t==1:
                            a(f's_cmp_eq_u32 s{sIT}, {20-TF}'); a(f's_cbranch_scc0 L_p1_nw{v}'); a('s_waitcnt vmcnt(0)'); a.lab(f'L_p1_nw{v}')
                        a('s_barrier')
            return waits
        pro=[('w',0)]*8+[('x',i) for i in range(D)]
        iss=list(pro); w1=body(False,iss,0); w2=body(False,iss,0)
        wmin=[min(x,y) for x,y in zip(w1,w2)]
        a(f's_mov_b32 s{sIdx}, 0')
        for c in range(4):
            a(wread(False,0,0,c,0)); a(wread(False,0,0,c,1))
        for i in range(D): a(xread(False,0,i,i))
        for t in range(2):
            a(f's_mov_b32 s{sIT}, 10')
            a.lab(f'L_p1_loop{v}_{t}')
            body(True,list(pro),t)
            a(f's_sub_u32 s{sIT}, s{sIT}, 1')
            a(f's_cmp_lg_u32 s{sIT}, 0')
            a(f's_cbranch_scc1 L_p1_loop{v}_{t}')
            a('s_nop 7')
            if t==0:
                epilogue(v,0,1)
                a('s_nop 1')
                for r in range(96,128): a(f'v_mov_b32 v{r}, 0')
            else:
                p.stamp(3)
                a('s_waitcnt lgkmcnt(0)')
                q_loads(a)
                epilogue(v,1,0)
        a('s_mov_b32 s49, 8')
        a('s_branch L_p1_done')
    i_l=len(a.l)
    a.lab('L_p1_loader')
    if LPRIO: a(f's_setprio {LPRIO}')
    sLd=29; sRot0=30
    a(f's_sub_u32 s{sLd}, s{sWV}, 4')
    a(f's_mul_i32 s{st3}, s{st3}, 5')
    a(f's_lshr_b32 s{st3}, s{st3}, 2')
    a(f's_mul_i32 s{st1}, s{st1}, 5')
    a(f's_lshr_b32 s{st1}, s{st1}, 1')
    a(f's_add_u32 s{sKS}, s{st3}, s{st1}')
    if XROT:
        ra,rb=XROT
        a(f's_and_b32 s{st0}, s{sWG}, 7')
        a(f's_lshr_b32 s{st1}, s{st0}, 1')
        a(f's_mul_i32 s{st1}, s{st1}, {ra}')
        a(f's_add_u32 s{sKS}, s{sKS}, s{st1}')
        a(f's_and_b32 s{st0}, s{st0}, 1')
        a(f's_mul_i32 s{st0}, s{st0}, {rb}')
        a(f's_add_u32 s{sKS}, s{sKS}, s{st0}')
        for lim in (40,20):
            a(f's_cmp_ge_u32 s{sKS}, {lim}')
            a(f's_cselect_b32 s{st0}, {lim//2 if lim==20 else 20}, 0')
            a(f's_sub_u32 s{sKS}, s{sKS}, s{st0}')
        a(f's_cmp_ge_u32 s{sKS}, 20')
        a(f's_cselect_b32 s{st0}, 10, 0')
        a(f's_sub_u32 s{sKS}, s{sKS}, s{st0}')
    a(f's_cmp_ge_u32 s{sKS}, 10')
    a(f's_cselect_b32 s{st0}, 10, 0')
    a(f's_sub_u32 s{sKS}, s{sKS}, s{st0}')
    a(f's_mov_b32 s{sRot0}, s{sKS}')
    a(f's_lshl_b32 s{sLW}, s{sLd}, 12')
    a(f's_lshl_b32 s{sLX}, s{sLd}, 12')
    a(f's_add_u32 s{sLX}, s{sLX}, {XOFF}')
    a(f'v_lshrrev_b32 v{vt0}, 4, v{vLane}')
    a(f'v_bfe_u32 v{vt1}, v{vLane}, 1, 3')
    a(f'v_and_b32 v2, 1, v{vLane}')
    a(f's_lshl_b32 s{st2}, s{sLd}, 4')
    a(f's_lshl_b32 s{st1}, s{sNT}, 8')
    for jj in range(2):
        a(f'v_add_u32 v3, {4*jj}, v{vt0}')
        a(f'v_xor_b32 v3, v3, v{vt1}')
        a(f'v_lshl_add_u32 v4, v3, 1, v2')
        a(f'v_lshlrev_b32 v4, 4, v4')
        a(f'v_add_u32 v{vLW+jj}, s{st2}, v{vt0}')
        if jj: a(f'v_add_u32 v{vLW+jj}, 8, v{vLW+jj}')
        a(f'v_mul_u32_u24 v{vLW+jj}, 3840, v{vLW+jj}')
        a(f'v_add3_u32 v{vLW+jj}, v{vLW+jj}, v4, s{st1}')
    a(f'v_lshrrev_b32 v{vt0}, 3, v{vLane}')
    a(f'v_and_b32 v{vt1}, 7, v{vLane}')
    a(f's_lshl_b32 s{st0}, s{sMT}, 7')
    a(f's_lshl_b32 s{st1}, s{sLd}, 5')
    a(f's_add_u32 s{st0}, s{st0}, s{st1}')
    for uu in range(2):
        a(f'v_lshrrev_b32 v2, 1, v{vt0}')
        if uu: a(f'v_add_u32 v2, 4, v2')
        a(f'v_xor_b32 v2, v2, v{vt1}')
        a(f'v_add_u32 v3, s{st0}, v{vt0}')
        if uu: a(f'v_add_u32 v3, 8, v3')
        a(f'v_mul_u32_u24 v3, 1280, v3')
        a(f'v_lshl_add_u32 v{vLX+uu}, v2, 4, v3')
    a('s_waitcnt lgkmcnt(0)')
    srd(a,sX,20,21,2048*1280)
    srd(a,sW,22,23,640*3840)
    NL=8
    def wstep():
        a(f's_mul_i32 s{sW0}, s{sKS}, {64*3840}')
        a(f's_lshl_b32 s{sXo}, s{sKS}, 7')
        slotbase(sSlot,sIdx)
        a(f's_add_u32 s{st0}, s{sSlot}, s{sLW}')
        a(f's_add_u32 s{st1}, s{sSlot}, s{sLX}')
        for j in range(4):
            a(f's_add_u32 m0, s{st0}, {j*1024}')
            if j&1: a(f's_add_u32 s{st2}, s{sW0}, {4*3840}')
            else: a('s_nop 0')
            a(f'buffer_load_dwordx4 v{vLW+(j>>1)}, s[{sW}:{sW+3}], s{st2 if j&1 else sW0} offen {LP} lds')
            a(f's_add_u32 m0, s{st1}, {j*1024}')
            if j==2: a(f's_add_u32 s{sXo}, s{sXo}, 20480')
            else: a('s_nop 0')
            a(f'buffer_load_dwordx4 v{vLX+(j&1)}, s[{sX}:{sX+3}], s{sXo} offen {LP} lds')
        a(f's_add_u32 s{sKS}, s{sKS}, 1')
        a(f's_cmp_eq_u32 s{sKS}, 10')
        a(f's_cselect_b32 s{sKS}, 0, s{sKS}')
        a(f's_add_u32 s{sIdx}, s{sIdx}, 1')
        a(f's_and_b32 s{sIdx}, s{sIdx}, 3')
    a(f's_mov_b32 s{sIdx}, 0')
    wstep()
    if EARLY2: wstep()
    a(f's_waitcnt vmcnt({NL if EARLY2 else 0})')
    a('s_barrier')
    if not EARLY2: wstep()
    wstep()
    p2_early(a,'l')
    for r in range(96,128): a(f'v_mov_b32 v{r}, 0')
    a(f's_mov_b32 s{sIT}, 0')
    a.lab('L_p1_ld_loop')
    a(f's_waitcnt vmcnt({NL})')
    a(f's_cmp_lg_u32 s{sIT}, {TP}'); a('s_cbranch_scc1 L_p1_ld_w1')
    a(f's_cmp_lg_u32 s{sWV}, 4'); a('s_cbranch_scc1 L_p1_ld_w1')
    poll_f1(a,'b',1)
    a.lab('L_p1_ld_w1')
    a('s_barrier')
    a(f's_cmp_lg_u32 s{sWV}, 4'); a('s_cbranch_scc1 L_p1_ld_h1')
    a(f's_cmp_lg_u32 s{sIT}, 8'); a('s_cbranch_scc1 L_p1_ld_h0')
    gettok(a,'p1',None)
    a.lab('L_p1_ld_h0')
    a(f's_cmp_lg_u32 s{sIT}, {TF}'); a('s_cbranch_scc1 L_p1_ld_h1')
    a(f's_add_u32 s50, s{sNT}, 15')
    a('s_lshl_b32 s50, s50, 4')
    a(f's_add_u32 s50, s50, s{sMT}')
    a('s_lshl_b32 s50, s50, 7')
    setflag(a,50)
    a.lab('L_p1_ld_h1')
    a(f's_cmp_lg_u32 s{sIT}, 7'); a('s_cbranch_scc1 L_p1_ld_h2')
    srd(a,sX,16,17,2048*1280)
    srd(a,sW,18,19,640*3840)
    a.lab('L_p1_ld_h2')
    wstep()
    a(f's_add_u32 s{sIT}, s{sIT}, 1')
    a(f's_cmp_lt_u32 s{sIT}, {TP+1}')
    a('s_cbranch_scc1 L_p1_ld_loop')
    p.stamp(1)
    a(f's_setprio {EPRIO}')
    a(f's_lshl_b32 s48, s{sLd}, 11')
    q_issue(a)
    kv_first(a,[(48,0),(48,1024)],(0,HALF,8192,HALF+8192))
    a('s_mov_b32 s3, 1')
    a.lab('L_early')
    at=Att(a)
    Lr=(12,13,14,15)
    a(f's_mov_b32 s{at.sVm}, 0xfffff'); a(f's_mov_b32 s{at.sVm+1}, 0xfffff')
    at.vinit()
    for i in range(4): a(f'v_mov_b32 v{at.vP+4+i}, 0')
    for r,src in zip(Lr,(at.vK1a,at.vK2a,at.vVa,at.vVb)): a(f'v_mov_b32 v{r}, v{src}')
    for r in (at.vK1a,at.vK2a,at.vVa,at.vVb): a(f'v_add_u32 v{r}, {HALF}, v{r}')
    def hook(n,fn):
        a('s_cmp_eq_u32 s3, 0'); a(f's_cbranch_scc1 L_eh{n}'); fn(); a.lab(f'L_eh{n}')
    hook(0,lambda: (a(f's_waitcnt vmcnt({NL+13})'), a('s_barrier'), wstep()))
    if TP==15: hook(1,lambda: (a(f's_waitcnt vmcnt({NL})'), a('s_barrier')))
    else: hook(1,lambda: (a(f's_waitcnt vmcnt({NL})'), a('s_barrier'), wstep()))
    p.stamp(2)
    at.standin(Lr)
    at.rd_k1(at.vK1,0); at.rd_k2(at.vK2,0); at.rd_v(0,0)
    at.standin2()
    at.first_tile(0,TILE)
    seq=[(None,0),(None,TILE),(None,2*TILE),(None,3*TILE),(Lr,0),(Lr,TILE),(Lr,2*TILE),(Lr,3*TILE),(None,4*TILE),(None,5*TILE)]
    for t in range(8):
        if TP==14 and t==EH[0]: hook(4,lambda: (a(f's_waitcnt vmcnt({NL})'), a('s_barrier')))
        if t==EH[1]: hook(2,lambda: (a('s_waitcnt vmcnt(0)'), a('s_barrier'), kv_first(a,[(48,0),(48,1024)],(16384,24576,32768,40960))))
        if t==EH[2]: hook(3,lambda: (a('s_barrier'), kv_first(a,[(48,0),(48,1024)],(HALF+16384,HALF+24576,HALF+32768,HALF+40960))))
        if t==0: p.stamp(3)
        if t==1: p.stamp(4)
        if t==2: p.stamp(6)
        at.key_tile(t,seq[t+2],seq[t+1])
    a('s_setprio 0')
    a('s_cmp_eq_u32 s3, 0'); a('s_cbranch_scc1 L_p1_idle_done')
    a(f's_lshl_b32 s49, s{sNT}, 4')
    a(f's_add_u32 s49, s49, s{sMT}')
    a('s_lshl_b32 s49, s49, 7')
    a('s_or_b32 s49, s49, 0x80000000')
    a('s_branch L_p1_done')
    a.lab('L_p1_idle_done')
    a('s_mov_b32 s49, 0')
    a('s_branch L_p1_done')
    i_e=len(a.l)
    a.l[i_c:i_e]=a.l[i_l:i_e]+a.l[i_c:i_l]
    a.lab('L_p1_skip')
    p2_early(a,'s')
    for r in range(96,128): a(f'v_mov_b32 v{r}, 0')
    a('s_waitcnt lgkmcnt(0)')
    a(f's_cmp_lg_u32 s{sWV}, 4'); a('s_cbranch_scc1 L_p1_sk1')
    gettok(a,'p1s',None)
    poll_f1(a,'bs',1)
    a.lab('L_p1_sk1')
    a('s_barrier')
    a(f's_lshl_b32 s48, s{sWV}, 10')
    q_issue(a)
    kv_first(a,[(48,0)],(0,HALF,8192,HALF+8192,16384,24576,32768,40960,HALF+16384,HALF+24576,HALF+32768,HALF+40960))
    a('s_waitcnt vmcnt(0)')
    a('s_barrier')
    a('s_mov_b32 s3, 0')
    a(f's_cmp_ge_u32 s{sWV}, 4'); a('s_cbranch_scc1 L_early')
    a('s_mov_b32 s49, 0')
    a.lab('L_p1_done')
    return vEnd

def gettok(a,tag,wave=4):
    if wave is not None:
        a(f's_cmp_lg_u32 s{sWV}, {wave}')
        a(f's_cbranch_scc1 L_tokd_{tag}')
    a('s_mov_b32 s58, 0x40000')
    a('v_mov_b32 v2, 0')
    a.lab(f'L_tok_{tag}')
    a(f'global_load_dword v3, v2, s[{sDBG}:{sDBG+1}] sc1')
    a('s_waitcnt vmcnt(0)')
    a(f'v_readfirstlane_b32 s{sTOK}, v3')
    a('s_nop 3')
    a(f's_cmp_lg_u32 s{sTOK}, 0')
    a(f's_cbranch_scc1 L_tokd_{tag}')
    a('s_sleep 4')
    a('s_sub_u32 s58, s58, 1')
    a('s_cmp_lg_u32 s58, 0')
    a(f's_cbranch_scc1 L_tok_{tag}')
    a.lab(f'L_tokd_{tag}')
def setflag(a,soff):
    a(f's_add_u32 s{soff}, s{soff}, {WS_FLG}')
    a('s_mov_b64 exec, 1')
    a(f'v_mov_b32 v2, s{soff}')
    a(f'v_mov_b32 v3, s{sTOK}')
    a(f'global_store_dword v2, v3, s[{sWS}:{sWS+1}] sc1')
    a('s_mov_b64 exec, -1')
def poll2(a,tag,va,vb,mask):
    a('s_mov_b32 s58, 0x40000')
    a.lab(f'L_poll_{tag}')
    a(f'global_load_dword v3, v{va}, s[{sWS}:{sWS+1}] sc1')
    a(f'global_load_dword v4, v{vb}, s[{sWS}:{sWS+1}] sc1')
    a('s_waitcnt vmcnt(0)')
    a(f'v_cmp_eq_u32 s[56:57], s{sTOK}, v3')
    a(f'v_cmp_eq_u32 vcc, s{sTOK}, v4')
    a('s_nop 4')
    a('s_and_b64 s[56:57], s[56:57], vcc')
    a(f's_and_b32 s56, s56, {mask&0xffffffff:#x}')
    a(f's_and_b32 s57, s57, {mask>>32:#x}')
    a(f's_cmp_lg_u32 s56, {mask&0xffffffff:#x}')
    a(f's_cbranch_scc1 L_polln_{tag}')
    a(f's_cmp_eq_u32 s57, {mask>>32:#x}')
    a(f's_cbranch_scc1 L_polld_{tag}')
    a.lab(f'L_polln_{tag}')
    a('s_sleep 1')
    a('s_sub_u32 s58, s58, 1')
    a('s_cmp_lg_u32 s58, 0')
    a(f's_cbranch_scc1 L_poll_{tag}')
    a.lab(f'L_polld_{tag}')
POLLC=dict(sl=2,pol='sc1',pre=0)
def poll(a,tag,vaddr,offs,mask):
    a('s_mov_b32 s58, 0x40000')
    for _ in range(POLLC['pre']): a('s_sleep 8')
    a.lab(f'L_poll_{tag}')
    for i,o in enumerate(offs):
        a(f'global_load_dword v{vaddr+1+i}, v{vaddr}, s[{sWS}:{sWS+1}] offset:{o} {POLLC["pol"]}')
    a('s_waitcnt vmcnt(0)')
    a(f'v_cmp_eq_u32 s[56:57], s{sTOK}, v{vaddr+1}')
    if len(offs)>1:
        a(f'v_cmp_eq_u32 vcc, s{sTOK}, v{vaddr+2}')
        a('s_nop 4')
        a('s_and_b64 s[56:57], s[56:57], vcc')
    else:
        a('s_nop 4')
    a(f's_and_b32 s56, s56, {mask&0xffffffff:#x}')
    a(f's_and_b32 s57, s57, {mask>>32:#x}')
    a(f's_cmp_lg_u32 s56, {mask&0xffffffff:#x}')
    a(f's_cbranch_scc1 L_polln_{tag}')
    a(f's_cmp_eq_u32 s57, {mask>>32:#x}')
    a(f's_cbranch_scc1 L_polld_{tag}')
    a.lab(f'L_polln_{tag}')
    a(f's_sleep {POLLC["sl"]}')
    a('s_sub_u32 s58, s58, 1')
    a('s_cmp_lg_u32 s58, 0')
    a(f's_cbranch_scc1 L_poll_{tag}')
    a.lab(f'L_polld_{tag}')

def phase2(a,p,PRIO=0,BSH=0,NOHOOK=0,SPRIO=0,FP2=7):
    TILE=2560; HALF=81920; WOFF=40960; SCR=81920
    sR,sOo,sWo=4,8,12
    sHD,sJ,sQP,sKH=16,17,18,19
    st0,st1,st2,st3=20,21,22,23
    sVm=24; sLo=26
    sIT=28; sHB=29; sHBw=30; sOl=31; sOh=32; sLl=33; sQA=34; sSw=35; sAg=36; sOB=37; sOA=50; sNeed=39
    sTm=40
    sKV=44
    sOff=31; sInc=32
    sWn=48
    sWl=39
    vLane=1; vt0=2; vt1=3; vt2=4; vt3=5; vM=10; vt4=14; vt5=15
    vK1a,vK2a,vVa,vVb,vDma,vRho,vOoff,vOo2,vQ1o,vQ2o,vWo,vKap=P2C
    vQa1=16; vQab=20; vQa2=22; vQb1=24; vK1=28; vK2=32; vMb=35
    vV=36; vP=52; vQA2=60; vCc=63
    vSa=64; vSb=80; vOa=96; vOb=112; vCa=128; vCb=144; vMF=P2M; vML=P2M+16; vQA1=192
    vS1=160
    vEnd=256
    a(f's_load_dwordx2 s[50:51], s[0:1], 16')
    a(f's_load_dwordx2 s[52:53], s[0:1], 40')
    head_j(a,sHD,sJ,st0,st1)
    a(f's_and_b32 s{sQP}, s{sWV}, 3')
    a(f's_lshr_b32 s{sKH}, s{sWV}, 2')
    a(f's_mul_i32 s{sHB}, s{sHD}, {64*TILE}')
    a(f's_add_u32 s{sAg}, s{sHB}, {WS_KV-20480}')
    a(f's_add_u32 s{sHB}, s{sHB}, {WS_KV+32*64*TILE}')
    a(f's_mul_i32 s{st0}, s{sJ}, 20480')
    a(f's_add_u32 s{sAg}, s{sAg}, s{st0}')
    a(f's_mov_b32 s{sVm}, 0xfffff')
    a(f's_mov_b32 s{sVm+1}, 0xfffff')
    a(f's_mov_b32 s{sLo}, -1')
    a(f's_mov_b32 s{sLo+1}, 0')
    a(f's_lshl_b32 s{st0}, s{sJ}, 3')
    a(f's_lshl_b32 s{st1}, s{sHD}, 6')
    a(f's_add_u32 s{st1}, s{st1}, s{st0}')
    a(f's_add_u32 s{st2}, s{st1}, s{sWV}')
    a(f's_mul_i32 s{sQA}, s{st2}, 1280')
    a(f's_lshl_b32 s{st2}, s{sQP}, 1')
    a(f's_add_u32 s{st2}, s{st2}, s{sKH}')
    a(f's_add_u32 s{st2}, s{st2}, s{st0}')
    a(f's_lshl_b32 s{sOB}, s{st2}, 15')
    a(f's_add_u32 s{sOB}, s{sOB}, {2048*1280}')
    a(f's_lshl_b32 s{sOB+1}, s{st2}, 13')
    a(f's_add_u32 s{sOB+1}, s{sOB+1}, {2048*1280+128*16384}')
    srd(a,sR,sWS,sWS+1,WS_O)
    a(f's_add_u32 s56, s{sWS}, {WS_O}')
    a(f's_addc_u32 s57, s{sWS+1}, 0')
    srd(a,sOo,56,57,WS_END-WS_O)
    a(f's_add_u32 s{sKV}, s{sWS}, s{sHB}')
    a(f's_addc_u32 s{sKV+1}, s{sWS+1}, 0')
    a(f's_and_b32 s{sKV+1}, s{sKV+1}, 0xffff')
    a(f's_mov_b32 s{sKV+2}, 163840')
    a(f's_mov_b32 s{sKV+3}, 0x20000')
    a(f's_lshl_b32 s{sOff}, s{sWV}, 10')
    a(f's_add_u32 s{sOff}, s{sOff}, 49152')
    a(f's_mov_b32 m0, s{sOff}')
    a(f's_mov_b32 s{sInc}, {HALF}')
    a(f's_mov_b32 s{sInc+1}, {(8192-HALF)&0xffffffff}')
    def vinit():
        a(f'v_cmp_eq_u32 s[{sTm}:{sTm+1}], 20, v{vRho}')
        a(f'v_mov_b32 v{vt1}, 0x3f803f80')
        a('s_nop 0')
        a(f'v_cndmask_b32 v{vt1}, 0, v{vt1}, s[{sTm}:{sTm+1}]')
        for i in range(16): a(f'v_mov_b32 v{vV+i}, v{vt1}')
    a(f's_cmp_lg_u32 s{sKH}, 0'); a('s_cbranch_scc1 L_p2_noinit')
    vinit()
    for i in range(4): a(f'v_mov_b32 v{vP+4+i}, 0')
    a.lab('L_p2_noinit')
    a(f's_lshl_b32 s{sWl}, s{sWV}, 10')
    a(f's_add_u32 s{sWl}, s{sWl}, {WOFF}')
    if OPM: a(f's_bfe_u32 s{sWn}, s{sWG}, 0x30003')
    else: a(f's_and_b32 s{sWn}, s{sHD}, 7')
    a(f's_mul_i32 s{sWn}, s{sWn}, 160')
    a('s_waitcnt lgkmcnt(0)')
    if OPM: a(f's_bitcmp0_b32 s{sWG}, 2')
    else: a(f's_cmp_lt_u32 s{sHD}, 16')
    a('s_cselect_b64 s[50:51], s[50:51], s[52:53]')
    srd(a,sWo,50,51,640*1280)
    p.stamp(5)

    def rd_k1(dst,off):
        assert off%512==0 and off//512+1<256
        a(f'ds_read2st64_b64 {vr(dst,4)}, v{vK1a} offset0:{off//512} offset1:{off//512+1}')
    def rd_k2(dst,off): a(f'ds_read_b64 {vr(dst,2)}, v{vK2a} offset:{off}')
    def rd_v(buf,off):
        a(f's_mov_b64 exec, s[{sVm}:{sVm+1}]')
        a(f'ds_read_b128 {vr(vV+8*buf,4)}, v{vVa} offset:{off}')
        a(f'ds_read_b128 {vr(vV+8*buf+4,4)}, v{vVb} offset:{off}')
        a('s_mov_b64 exec, -1')
    def qk1(S,C,Q1,K=None): a(f'v_mfma_f32_32x32x16_bf16 {vr(S,16)}, {vr(vK1 if K is None else K,4)}, {vr(Q1,4)}, {C}')
    def qk2(S,Q2,K=None): a(f'v_mfma_f32_32x32x8bf16_1k {vr(S,16)}, {vr(vK2 if K is None else K,2)}, {vr(Q2,2)}, {vr(S,16)}')
    def qk2b(S): a(f'v_mfma_f32_32x32x4bf16_1k {vr(S,32)}, {vr(vK2,2)}, {vr(vQab,2)}, {vr(S,32)}')
    def pv(O,buf,t): a(f'v_mfma_f32_32x32x16_bf16 {vr(O,16)}, {vr(vV+8*buf+4*t,4)}, {vr(vP+4*t,4)}, {vr(O,16)}')
    def ex(S,r): a(f'v_exp_f32 v{S+r}, v{S+r}')
    def cv(S,c): a(f'v_cvt_pk_bf16_f32 v{vP+c}, v{S+2*c}, v{S+2*c+1}')
    def rowmax(M,S,first):
        if first:
            a(f'v_max3_f32 v{M}, v{S}, v{S+1}, v{S+2}'); rest=list(range(3,16))
        else: rest=list(range(16))
        while len(rest)>=2:
            a(f'v_max3_f32 v{M}, v{M}, v{S+rest[0]}, v{S+rest[1]}'); rest=rest[2:]
        if rest: a(f'v_max_f32 v{M}, v{M}, v{S+rest[0]}')
    def xhalf_max(M):
        a(f'v_mov_b32 v{vt1}, v{M}')
        a('s_nop 1')
        a(f'v_permlane32_swap_b32 v{M}, v{vt1}')
        a('s_nop 1')
        a(f'v_max_f32 v{M}, v{M}, v{vt1}')
    def get_l():
        a(f'v_mov_b32 v{vt1}, v{vOa+8}')
        a(f'v_mov_b32 v{vt2}, v{vOa+8}')
        a('s_nop 1')
        a(f'v_permlane32_swap_b32 v{vt1}, v{vt2}')
        a('s_nop 1')
    def safety():
        a(f'v_max3_f32 v{vt3}, |v{vOa}|, |v{vOa+1}|, |v{vOa+2}|')
        for i in range(3,11,2): a(f'v_max3_f32 v{vt3}, v{vt3}, |v{vOa+i}|, |v{vOa+i+1}|')
        a(f'v_max_f32_e64 v{vt3}, v{vt3}, |v{vOa+11}|')
        a(f'v_mul_f32 v{vt3}, {f32bits(2.0**-27):#x}, v{vt3}')
        a(f'v_max_f32 v{vt3}, v{vt3}, v{vt2}')
        a(f'v_mov_b32 v{vt4}, {f32bits(2.0**100):#x}')
        a(f'v_cmp_nlt_f32 vcc, v{vt3}, v{vt4}')
        a(f'v_cmp_u_f32 s[56:57], v{vt2}, v{vt2}')
        a('s_nop 4')
        a('s_or_b64 vcc, vcc, s[56:57]')
    def store_o(soff):
        a(f'v_rcp_f32 v{vt3}, v{vt2}')
        a(f's_lshr_b32 s{st0}, s{sHD}, 1')
        a(f's_lshl_b32 s{st0}, s{st0}, 10')
        a(f's_and_b32 s{st1}, s{sHD}, 1')
        a(f's_lshl_b32 s{st1}, s{st1}, 9')
        a(f's_add_u32 s{st0}, s{st0}, s{st1}')
        a(f's_add_u32 s{st0}, s{st0}, s{soff}')
        for i in range(12): a(f'v_mul_f32 v{vOa+i}, v{vOa+i}, v{vt3}')
        for i in range(6): a(f'v_cvt_pk_bf16_f32 v{vSa+i}, v{vOa+2*i}, v{vOa+2*i+1}')
        a(f'buffer_store_dwordx4 {vr(vSa,4)}, v{vOoff}, s[{sOo}:{sOo+3}], s{st0} offen {SCO}')
        a(f's_lshl_b32 s{st0}, s{sHD}, 7')
        a(f's_add_u32 s{st0}, s{st0}, s{soff+1}')
        a(f's_mov_b64 exec, s[{sLo}:{sLo+1}]')
        a(f'buffer_store_dwordx2 {vr(vSa+4,2)}, v{vOo2}, s[{sOo}:{sOo+3}], s{st0} offen {SCO}')
        a('s_mov_b64 exec, -1')
    def addr_add(s):
        for r in (vK1a,vK2a,vVa,vVb): a(f'v_add_u32 v{r}, s{s}, v{r}')
    def addr_addi(imm):
        for r in (vK1a,vK2a,vVa,vVb): a(f'v_add_u32 v{r}, {imm}, v{r}')
    def dma_row(k):
        a(f'buffer_load_dwordx4 v{vDma}, s[{sKV}:{sKV+3}], s{sOff} offen {SL} lds')
        a(f's_add_u32 s{sOff}, s{sOff}, s{sInc+(k&1)}')
        a(f's_mov_b32 m0, s{sOff}')
    def dma_pair():
        dma_row(0); dma_row(1)
    def prio_switch(phase,L):
        a(f's_cmp_lt_u32 s{sWV}, 4')
        a(f's_cbranch_scc{1-phase} {L}_hi')
        a('s_setprio 0')
        a(f's_branch {L}_d')
        a.lab(f'{L}_hi')
        a('s_setprio 1')
        a.lab(f'{L}_d')
    def expgroups(cur,A_,B_,C_,D_):
        A_()
        for r in range(0,4): ex(cur,r)
        B_()
        ex(cur,4); ex(cur,5); cv(cur,0); ex(cur,6); cv(cur,1); ex(cur,7)
        C_()
        ex(cur,8); cv(cur,2); ex(cur,9); cv(cur,3); ex(cur,10); ex(cur,11)
        D_()
        ex(cur,12); ex(cur,13); cv(cur,4); ex(cur,14); cv(cur,5); ex(cur,15); cv(cur,6); cv(cur,7)

    a('s_cmp_eq_u32 s49, 8')
    a('s_cbranch_scc1 L_p2_w8')
    a('s_waitcnt vmcnt(0)')
    a('s_branch L_p2_wd')
    a.lab('L_p2_w8')
    a('s_waitcnt vmcnt(8)')
    a.lab('L_p2_wd')
    a('s_barrier')
    p.stamp(7)
    at=Att(a)
    a(f's_cmp_lg_u32 s{sKH}, 0'); a('s_cbranch_scc1 L_b_up')
    cur4=(vK1a,vK2a,vVa,vVb)
    at.standin(cur4)
    addr_addi(4*TILE)
    rd_k1(vK1,0); rd_k2(vK2,0); rd_v(0,0)
    at.standin2()
    at.first_tile(0,TILE)
    a('s_branch L_b_go')
    a.lab('L_b_up')
    addr_addi(4*TILE)
    a.lab('L_b_go')
    a(f's_mov_b32 s{sIT}, 0')
    a.raw('.p2align 6')
    a.lab('L_b_loop')
    ool=[]
    def cond(it,L,fn):
        a(f's_cmp_eq_u32 s{sIT}, {it}'); a(f's_cbranch_scc1 {L}'); a.lab(L+'_r')
        ool.append((L,fn))
    def body4(dma):
        for pp in range(4):
            off=pp*TILE
            if dma: dma_row(pp)
            at.key_tile(pp,(None,off+2*TILE),(None,off+TILE))
    body4(True)
    a(f's_cmp_eq_u32 s{sIT}, 0'); a('s_cbranch_scc1 L_bb0')
    a(f's_cmp_eq_u32 s{sIT}, 3'); a('s_cbranch_scc1 L_bb_r')
    addr_addi(4*TILE)
    a(f's_add_u32 s{sIT}, s{sIT}, 1')
    a.lab('L_b_loop2')
    body4(False)
    a(f's_cmp_eq_u32 s{sIT}, 6'); a('s_cbranch_scc1 L_b_exit')
    a(f's_cmp_eq_u32 s{sIT}, 2'); a('s_cbranch_scc1 L_bb2')
    addr_addi(4*TILE)
    a(f's_add_u32 s{sIT}, s{sIT}, 1')
    a('s_branch L_b_loop2')
    a.lab('L_bb_r')
    def bb0():
        a('s_waitcnt vmcnt(4)'); a('s_barrier')
        a(f's_cmp_lg_u32 s{sWV}, 4'); a('s_cbranch_scc1 L_bb_r')
        a('s_cmp_lt_i32 s49, 0'); a('s_cbranch_scc0 L_bb_r')
        a('s_and_b32 s50, s49, 0x7fffffff')
        setflag(a,50)
        a('s_branch L_bb_r')
    def bb1():
        a(f's_mov_b32 s{sOff}, 200000'); a(f's_mov_b32 m0, 200000'); a(f's_mov_b32 s{sInc}, 0'); a(f's_mov_b32 s{sInc+1}, 0'); a(f's_mov_b32 s{sKV+2}, 0')
        a('s_branch L_bb_r')
    def bb2():
        a(f's_cmp_lg_u32 s{sWV}, 0'); a('s_cbranch_scc1 L_bb2a')
        gettok(a,'a',None)
        poll_f1(a,'a',0)
        a.lab('L_bb2a')
        a('s_waitcnt vmcnt(0)'); a('s_barrier')
        a(f's_add_u32 s{sKV}, s{sWS}, s{sAg}')
        a(f's_addc_u32 s{sKV+1}, s{sWS+1}, 0')
        a(f's_and_b32 s{sKV+1}, s{sKV+1}, 0xffff')
        a(f's_mov_b32 s{sKV+2}, 40960')
        a(f's_lshl_b32 s{sOff}, s{sWV}, 10')
        a(f's_sub_u32 s{sOff}, s{sOff}, {3*8192}')
        a(f's_mov_b32 m0, s{sOff}')
        a(f's_mov_b32 s{sInc}, 8192')
        a(f's_mov_b32 s{sInc+1}, 8192')
        a(f'buffer_load_dwordx2 {vr(vQA1,2)}, v{vQ1o}, s[{sR}:{sR+3}], s{sQA} offen {SL}')
        a(f'buffer_load_dwordx2 {vr(vQA1+2,2)}, v{vQ1o}, s[{sR}:{sR+3}], s{sQA} offen offset:512 {SL}')
        a(f'buffer_load_dwordx2 {vr(vQA2,2)}, v{vQ2o}, s[{sR}:{sR+3}], s{sQA} offen {SL}')
        a('s_branch L_bb_r')
    ool.append(('L_bb0',bb0)); ool.append(('L_bb2',bb2))
    addr_addi(4*TILE)
    a(f's_add_u32 s{sIT}, s{sIT}, 1')
    a('s_branch L_b_loop')
    a.lab('L_b_exit')
    addr_addi(4*TILE)
    a('s_nop 1')
    pv(vOb,1,1)
    a('s_setprio 0')
    a('s_nop 15')
    p.stamp(8)
    a(f's_lshl_b32 s{st0}, s{sQP}, 1')
    a(f's_cmp_eq_u32 s{sKH}, 0')
    a('s_cbranch_scc0 L_mg_hi')
    a(f's_add_u32 s{st1}, s{st0}, 1')
    a(f's_mul_i32 s{st1}, s{st1}, 3072')
    a(f's_add_u32 s{st1}, s{st1}, {SCR}')
    a(f'v_add_u32 v{vt4}, s{st1}, v{vDma}')
    for i in range(3): a(f'ds_write_b128 v{vt4}, {vr(vOb+4*i,4)} offset:{1024*i}')
    a(f's_mul_i32 s{st1}, s{st0}, 3072')
    a('s_branch L_mg_d')
    a.lab('L_mg_hi')
    a(f's_mul_i32 s{st1}, s{st0}, 3072')
    a(f's_add_u32 s{st1}, s{st1}, {SCR}')
    a(f'v_add_u32 v{vt4}, s{st1}, v{vDma}')
    for i in range(3): a(f'ds_write_b128 v{vt4}, {vr(vOa+4*i,4)} offset:{1024*i}')
    for i in range(12): a(f'v_mov_b32 v{vOa+i}, v{vOb+i}')
    for i in range(4): a(f'v_mov_b32 v{vQa1+i}, v{vQb1+i}')
    a(f's_add_u32 s{st1}, s{st0}, 1')
    a(f's_mul_i32 s{st1}, s{st1}, 3072')
    a.lab('L_mg_d')
    a(f's_add_u32 s{st1}, s{st1}, {SCR}')
    a(f'v_add_u32 v{vt4}, s{st1}, v{vDma}')
    a('s_waitcnt lgkmcnt(0) vmcnt(0)')
    a('s_barrier')
    for i in range(3): a(f'ds_read_b128 {vr(vSa+4*i,4)}, v{vt4} offset:{1024*i}')
    a('s_waitcnt lgkmcnt(0)')
    a('s_barrier')
    for i in range(12): a(f'v_add_f32 v{vOa+i}, v{vOa+i}, v{vSa+i}')
    get_l()
    safety()
    a('s_cbranch_vccnz L_b_fallback')
    a.lab('L_b_store')
    store_o(sOB)
    p.stamp(9)
    a(f's_mul_i32 s{st0}, s{sWV}, {TILE}')
    a(f's_mul_i32 s{st1}, s{sKH}, {HALF}')
    a(f's_sub_u32 s{st0}, s{st0}, s{st1}')
    a(f's_sub_u32 s{st0}, s{st0}, {32*TILE}')
    addr_add(st0)
    a(f's_lshl_b32 s{st0}, s{sJ}, 3')
    a(f's_add_u32 s{st2}, s{st0}, s{sWV}')
    a(f's_lshl_b32 s{sOA}, s{st2}, 15')
    a(f's_lshl_b32 s{sOA+1}, s{st2}, 13')
    a(f's_add_u32 s{sOA+1}, s{sOA+1}, {128*16384}')
    for i in range(4): a(f'v_mov_b32 v{vQa1+i}, v{vQA1+i}')
    for i in range(2): a(f'v_mov_b32 v{vQa2+i}, v{vQA2+i}')
    a(f's_sub_u32 s{sSw}, 8, s{sWV}')
    a(f's_cmp_lg_u32 s{sJ}, 0')
    a(f's_cselect_b32 s{sSw}, 0, s{sSw}')
    vC=vCa; vO=vOa; vS=[vSa,vSb]
    KR=[(vV,vV+4),(vV+8,vV+12),(vP,vP+4)]
    SB=[vSa,vSb,vOa]
    sRedo=30; sWoEn=55
    def cmid_init(tag,val,first):
        a(f's_cmp_le_u32 s{sSw}, {first}')
        a(f's_cbranch_scc1 L_cm_{tag}_v')
        for r in range(16): a(f'v_mov_b32 v{vC+r}, {NEG_BIG:#x}')
        a(f's_branch L_cm_{tag}_d')
        a.lab(f'L_cm_{tag}_v')
        for r in range(16): a(f'v_mov_b32 v{vC+r}, {val}')
        a.lab(f'L_cm_{tag}_d')
    def cmid_switch(tag,t,val):
        L=f'L_sw_{tag}_{t}'
        a(f's_cmp_eq_u32 s{sSw}, {t}')
        a(f's_cbranch_scc1 {L}')
        a.lab(L+'_r')
        def fn():
            a('s_nop 15')
            for r in range(16): a(f'v_mov_b32 v{vC+r}, {val}')
            a('s_nop 1')
        ool.append((L,fn))
    wocnt=[0]
    def wo_dma():
        if wocnt[0]>=10: return
        n=wocnt[0]; wocnt[0]+=1
        a(f's_cmp_lg_u32 s{sWoEn}, 0')
        a(f's_cbranch_scc0 L_wo{n}')
        for k in range(2):
            a(f's_mov_b32 m0, s{sWl}')
            a(f's_add_u32 s{sWl}, s{sWl}, 5120')
            a(f'buffer_load_dwordx4 v{vWo}, s[{sWo}:{sWo+3}], s{sWn} offen lds')
            a(f's_add_u32 s{sWn}, s{sWn}, 40960')
        a.lab(f'L_wo{n}')
    def maxpass(tag,tiles,dma):
        cmid_init(tag,'0',max(1,tiles[0]))
        nb=len(tiles)//3
        for i in range(3):
            rd_k1(KR[i][0],tiles[i]*TILE); rd_k2(KR[i][1],tiles[i]*TILE)
        for b in range(nb):
            a('s_waitcnt lgkmcnt(0)')
            for i in range(3):
                t=tiles[3*b+i]
                if max(1,tiles[0])<t<=7: cmid_switch(tag,t,'0')
                C = vr(vMF,16) if t==0 else (vr(vML,16) if t==8 else vr(vC,16))
                qk1(SB[i],C,vQa1,KR[i][0]); qk2(SB[i],vQa2,KR[i][1])
            if b<nb-1:
                for i in range(3):
                    t=tiles[3*(b+1)+i]
                    rd_k1(KR[i][0],t*TILE); rd_k2(KR[i][1],t*TILE)
            else:
                rd_k1(vK1,0); rd_k2(vK2,0)
            if dma: wo_dma()
            a('s_nop 7')
            for i in range(3):
                if i==2: a('s_nop 3')
                rowmax(vM,SB[i],b==0 and i==0)
    a(f's_mov_b32 s{sRedo}, 0')
    a(f's_cmp_lt_u32 s{sWV}, 5')
    a(f's_cselect_b32 s{sWoEn}, 1, 0')
    maxpass('p1',[6,7,8],True)
    a.lab('L_a_p2')
    xhalf_max(vM)
    a(f'v_sub_f32 v{vM}, 0, v{vM}')
    for r in range(16): a(f'v_add_f32 v{vMF+r}, v{vMF+r}, v{vM}')
    for r in range(16): a(f'v_add_f32 v{vML+r}, v{vML+r}, v{vM}')
    cmid_init('p2',f'v{vM}',1)
    for r in range(16): a(f'v_mov_b32 v{vO+r}, 0')
    vinit()
    for i in range(4): a(f'v_mov_b32 v{vP+4+i}, 0')
    a('s_waitcnt lgkmcnt(0)')
    qk1(vS[0],vr(vMF,16),vQa1); qk2(vS[0],vQa2)
    rd_k1(vK1,TILE); rd_v(0,0); rd_k2(vK2,TILE)
    for t in range(9):
        last=(t==8); last2=(t==7); tn=t+1
        cur=vS[t&1]; nxt=vS[(t+1)&1]; off=t*TILE
        Cn = vr(vML,16) if tn==8 else vr(vC,16)
        a('s_waitcnt lgkmcnt(0)')
        if 2<=tn<=7: cmid_switch('p2',tn,f'v{vM}')
        wo_dma()
        def A_():
            if not last: qk1(nxt,Cn,vQa1)
            if not last and not last2: rd_k1(vK1,off+2*TILE)
        def B_():
            pv(vO,(t+1)&1,1)
            if not last: rd_v((t+1)&1,off+TILE)
        def C_():
            if not last: qk2(nxt,vQa2)
            if not last and not last2: rd_k2(vK2,off+2*TILE)
        expgroups(cur,A_,B_,C_,lambda: pv(vO,t&1,0))
    A_CHECK=True
    assert wocnt[0]==10
    a('s_nop 1')
    pv(vO,0,1)
    a('s_nop 15')
    a('s_nop 0')
    get_l()
    safety()
    a('s_cbranch_vccnz L_a_exact')
    a.lab('L_a_store')
    store_o(sOA)
    p.stamp(10)
    a('s_waitcnt vmcnt(0)')
    a('s_barrier')
    p.stamp(11)
    a(f's_cmp_lg_u32 s{sWV}, 4')
    a('s_cbranch_scc1 L_p3')
    a(f's_lshl_b32 s{st0}, s{sJ}, 12')
    a(f's_lshl_b32 s{st1}, s{sHD}, {FP2}')
    a(f's_add_u32 s{st0}, s{st0}, s{st1}')
    a(f's_add_u32 s{st0}, s{st0}, 65536')
    setflag(a,st0)
    if OPM:
        a(f's_and_b32 s{st0}, s{sWG}, 3'); a(f's_lshl_b32 s{st0}, s{st0}, 1'); a(f's_lshr_b32 s{st1}, s{sWG}, 7'); a(f's_add_u32 s{st0}, s{st0}, s{st1}')
        a(f's_lshl_b32 s{st0}, s{st0}, 12')
    else: a(f's_lshl_b32 s{st0}, s{sJ}, 12')
    a(f's_add_u32 s{st0}, s{st0}, {WS_FLG+65536}')
    a(f'v_and_b32 v{vt0}, 31, v{vLane}')
    a(f'v_lshlrev_b32 v{vt0}, {FP2}, v{vt0}')
    a(f'v_add_u32 v{vt0}, s{st0}, v{vt0}')
    if not NOPOLL3: poll(a,'p3',vt0,[0],(1<<32)-1)
    a('s_barrier')
    a('s_branch L_done')
    a.lab('L_a_exact')
    a(f's_cmp_lg_u32 s{sRedo}, 0')
    a('s_cbranch_scc1 L_a_store')
    a(f's_mov_b32 s{sRedo}, 1')
    a(f's_mov_b32 s{sWoEn}, 0')
    for r in range(16): a(f'v_sub_f32 v{vMF+r}, v{vMF+r}, v{vM}')
    for r in range(16): a(f'v_sub_f32 v{vML+r}, v{vML+r}, v{vM}')
    maxpass('p1x',[0,1,2,3,4,5,6,7,8],False)
    a('s_branch L_a_p2')
    for L,fn in ool:
        a.lab(L); fn()
        if not L.startswith('L_bb'): a(f's_branch {L}_r')
    a.lab('L_b_fallback')
    for i in range(2):
        a(f'v_mov_b32 v{vt4}, v{vQab+i}')
        a(f'v_mov_b32 v{vt5}, v{vQab+i}')
        a('s_nop 1')
        a(f'v_permlane32_swap_b32 v{vt4}, v{vt5}')
        a(f's_cmp_eq_u32 s{sKH}, 0')
        a('s_cselect_b64 s[56:57], -1, 0')
        a('s_nop 1')
        a(f'v_cndmask_b32 v{vt4}, v{vt5}, v{vt4}, s[56:57]')
        a(f'v_cndmask_b32 v{vQa2+i}, 0, v{vt4}, s[{sLo}:{sLo+1}]')
    a(f'v_lshlrev_b32 v{vt4}, 3, v{vRho}')
    a(f'v_add_u32 v{vt4}, 1024, v{vt4}')
    a(f'v_lshrrev_b32 v{vt0}, 5, v{vLane}')
    a(f'v_bfe_u32 v{vt5}, v{vRho}, 2, 2')
    a(f'v_xor_b32 v{vt5}, v{vt5}, v{vt0}')
    a(f'v_lshlrev_b32 v{vt5}, 4, v{vt5}')
    a(f'v_lshl_add_u32 v{vt5}, v{vRho}, 6, v{vt5}')
    a(f'v_add_u32 v{vt5}, 1280, v{vt5}')
    a(f'v_xor_b32 v{vt0}, 32, v{vt5}')
    a(f'v_mov_b32 v{vM}, {NEG_BIG:#x}')
    a(f's_mov_b32 s{st0}, s{sHB}')
    a(f's_mov_b32 s{sIT}, 64')
    a.lab('L_fb_p1')
    a(f'buffer_load_dwordx2 {vr(vK1,2)}, v{vQ1o}, s[{sR}:{sR+3}], s{st0} offen {SL}')
    a(f'buffer_load_dwordx2 {vr(vK1+2,2)}, v{vQ1o}, s[{sR}:{sR+3}], s{st0} offen offset:512 {SL}')
    a(f'buffer_load_dwordx2 {vr(vK2,2)}, v{vt4}, s[{sR}:{sR+3}], s{st0} offen {SL}')
    a('s_waitcnt vmcnt(0)')
    qk1(vSa,'0',vQa1); qk2(vSa,vQa2)
    a('s_nop 15')
    rowmax(vM,vSa,False)
    a(f's_add_u32 s{st0}, s{st0}, {TILE}')
    a(f's_sub_u32 s{sIT}, s{sIT}, 1')
    a(f's_cmp_lg_u32 s{sIT}, 0')
    a('s_cbranch_scc1 L_fb_p1')
    xhalf_max(vM)
    for r in range(16): a(f'v_sub_f32 v{vCa+r}, 0, v{vM}')
    for r in range(16): a(f'v_mov_b32 v{vOa+r}, 0')
    a(f's_mov_b32 s{st0}, s{sHB}')
    a(f's_mov_b32 s{sIT}, 64')
    a.lab('L_fb_p2')
    a(f'buffer_load_dwordx2 {vr(vK1,2)}, v{vQ1o}, s[{sR}:{sR+3}], s{st0} offen {SL}')
    a(f'buffer_load_dwordx2 {vr(vK1+2,2)}, v{vQ1o}, s[{sR}:{sR+3}], s{st0} offen offset:512 {SL}')
    a(f'buffer_load_dwordx2 {vr(vK2,2)}, v{vt4}, s[{sR}:{sR+3}], s{st0} offen {SL}')
    a(f's_mov_b64 exec, s[{sVm}:{sVm+1}]')
    a(f'buffer_load_dwordx4 {vr(vV,4)}, v{vt5}, s[{sR}:{sR+3}], s{st0} offen {SL}')
    a(f'buffer_load_dwordx4 {vr(vV+4,4)}, v{vt0}, s[{sR}:{sR+3}], s{st0} offen {SL}')
    a('s_mov_b64 exec, -1')
    a('s_waitcnt vmcnt(0)')
    qk1(vSa,vr(vCa,16),vQa1); qk2(vSa,vQa2)
    a('s_nop 15')
    for r in range(16): ex(vSa,r)
    a('s_nop 0')
    for c in range(8): cv(vSa,c)
    a('s_nop 1')
    pv(vOa,0,0); pv(vOa,0,1)
    a(f's_add_u32 s{st0}, s{st0}, {TILE}')
    a(f's_sub_u32 s{sIT}, s{sIT}, 1')
    a(f's_cmp_lg_u32 s{sIT}, 0')
    a('s_cbranch_scc1 L_fb_p2')
    a('s_nop 15')
    get_l()
    a('s_branch L_b_store')
    return vEnd, dict(sHD=sHD,sJ=sJ)

def phase3(a,p,info,ROT3=3,XD=6):
    WOFF=40960
    sHD,sJ=info['sHD'],info['sJ']
    sX,sO=4,8
    st0,st1,st2,st3=20,21,22,23
    sPH=28; sBR=29; sMT=30; sNT=31
    vLane=1; vXo=2; vt0=4; vt1=5; vt2=6; vt3=7; vTok=8; vG=9; vTr=10; vOut=11; vTp=12; vTq=14; vX2=3
    vX=16; vWf=vX+160; vAcc=vWf+40; vEnd=vAcc+40
    a.lab('L_p3')
    a(f's_cmp_ge_u32 s{sWV}, 4')
    a('s_cbranch_scc1 L_done')
    a('s_load_dwordx2 s[50:51], s[0:1], 48')
    if OPM:
        a(f's_bfe_u32 s{sBR}, s{sWG}, 0x10002')
        a(f's_and_b32 s{sMT}, s{sWG}, 3'); a(f's_lshl_b32 s{sMT}, s{sMT}, 1'); a(f's_lshr_b32 s{st0}, s{sWG}, 7'); a(f's_add_u32 s{sMT}, s{sMT}, s{st0}')
        a(f's_lshl_b32 s{sMT}, s{sMT}, 1'); a(f's_bfe_u32 s{st0}, s{sWG}, 0x10006'); a(f's_add_u32 s{sMT}, s{sMT}, s{st0}')
        a(f's_bfe_u32 s{sNT}, s{sWG}, 0x30003')
        a(f's_and_b32 s{sPH}, s{sNT}, {ROT3}')
    else:
        a(f's_lshr_b32 s{sBR}, s{sHD}, 4')
        a(f's_bfe_u32 s{st0}, s{sHD}, 0x10003')
        a(f's_lshl_b32 s{sMT}, s{sJ}, 1')
        a(f's_add_u32 s{sMT}, s{sMT}, s{st0}')
        a(f's_and_b32 s{sNT}, s{sHD}, 7')
        a(f's_and_b32 s{sPH}, s{sHD}, {ROT3}')
    a(f'v_and_b32 v{vTok}, 15, v{vLane}')
    a(f'v_lshrrev_b32 v{vG}, 4, v{vLane}')
    a(f'v_lshlrev_b32 v{vXo}, 4, v{vLane}')
    a(f'v_lshlrev_b32 v{vX2}, 3, v{vLane}')
    a(f's_lshl_b32 s{st0}, s{sMT}, 3')
    a(f's_lshl_b32 s{st1}, s{sWV}, 1')
    a(f's_add_u32 s{st0}, s{st0}, s{st1}')
    a(f's_lshl_b32 s32, s{st0}, 14')
    a(f's_lshl_b32 s36, s{st0}, 12')
    a(f's_add_u32 s36, s36, {128*16384}')
    a(f's_add_u32 s37, s36, 4096')
    a(f's_mul_i32 s{st0}, s{sBR}, {2048*1280}')
    a(f's_add_u32 s{st0}, s{st0}, {WS_O}')
    a(f's_add_u32 s52, s{sWS}, s{st0}')
    a(f's_addc_u32 s53, s{sWS+1}, 0')
    srd(a,sX,52,53,2048*1280)
    a(f'v_bfe_u32 v{vt0}, v{vLane}, 2, 2')
    a(f'v_mul_u32_u24 v{vt0}, 160, v{vt0}')
    a(f'v_and_b32 v{vt1}, 3, v{vLane}')
    a(f'v_lshl_add_u32 v{vt0}, v{vt1}, 3, v{vt0}')
    a(f'v_add_u32 v{vt0}, {WOFF}, v{vt0}')
    a(f'v_lshrrev_b32 v{vt1}, 1, v{vG}')
    a(f'v_mul_u32_u24 v{vt1}, 5, v{vt1}')
    a(f'v_and_b32 v{vt2}, 1, v{vG}')
    a(f'v_add_u32 v{vt1}, v{vt1}, v{vt2}')
    a(f'v_mul_u32_u24 v{vt1}, 640, v{vt1}')
    a(f'v_add_u32 v{vTr}, v{vt0}, v{vt1}')
    a(f'v_mul_u32_u24 v{vt1}, {5*640}, v{vG}')
    a(f'v_add3_u32 v{vTq}, v{vt0}, v{vt1}, 0')
    a(f'v_add_u32 v{vTq}, {4*640}, v{vTq}')
    for i in range(40): a(f'v_mov_b32 v{vAcc+i}, 0')
    a(f's_lshl_b32 s{st0}, s{sMT}, 7')
    a(f's_lshl_b32 s{st1}, s{sWV}, 5')
    a(f's_add_u32 s{st0}, s{st0}, s{st1}')
    a(f'v_add_u32 v{vt0}, s{st0}, v{vTok}')
    a(f'v_mul_u32_u24 v{vt0}, 2560, v{vt0}')
    a(f'v_and_b32 v{vt1}, 1, v{vG}')
    a(f'v_lshlrev_b32 v{vt1}, 5, v{vt1}')
    a(f'v_lshrrev_b32 v{vt2}, 1, v{vG}')
    a(f'v_lshl_add_u32 v{vt1}, v{vt2}, 4, v{vt1}')
    a(f'v_add_u32 v{vOut}, v{vt0}, v{vt1}')
    a(f'v_lshl_add_u32 v{vt3}, v{vG}, 3, v{vt0}')
    a('s_barrier')
    p.stamp(12)
    a(f's_lshl_b32 s33, s{sNT}, 1')
    def xloads(st):
        L=[]
        if st<16:
            r0=40+2*(st&3)
            L.append(f's_add_u32 s{r0}, s33, {st}')
            L.append(f's_and_b32 s{r0}, s{r0}, 15')
            L.append(f's_lshl_b32 s{r0}, s{r0}, 10')
            L.append(f's_add_u32 s{r0}, s{r0}, s32')
            L.append(f's_add_u32 s{r0+1}, s{r0}, 16384')
            for u in range(2):
                L.append(f'buffer_load_dwordx4 {vr(vX+(st*2+u)*4,4)}, v{vXo}, s[{sX}:{sX+3}], s{r0+u} offen {SL}')
        elif st<20:
            for u in range(2):
                for hh in range(2):
                    L.append(f'buffer_load_dwordx2 {vr(vX+(st*2+u)*4+2*hh,2)}, v{vX2}, s[{sX}:{sX+3}], s{36+u} offen offset:{(st-16)*1024+hh*512} {SL}')
        return L
    nl=lambda st: sum(1 for l in xloads(st) if l.startswith('buffer'))
    for st in range(XD):
        for l in xloads(st): a(l)
    def wbase(st):
        if st<16:
            a(f's_add_u32 s{st0}, s33, {st}')
            a(f's_and_b32 s{st0}, s{st0}, 15')
            a(f's_mul_i32 s{st0}, s{st0}, 6400')
            a(f'v_add_u32 v{vTp+(st&1)}, s{st0}, v{vTr}')
    def trr(s,cp,h):
        buf=vWf+(s&1)*20+cp*4+2*h
        if s<16: return f'ds_read_b64_tr_b16 {vr(buf,2)}, v{vTp+(s&1)} offset:{cp*32+h*1280}'
        o=(s-16)*25600+cp*32+h*12800
        if o<65536: return f'ds_read_b64_tr_b16 {vr(buf,2)}, v{vTq} offset:{o}'
        return f'ds_read_b64_tr_b16 {vr(buf,2)}, v{vTq+1} offset:{o-51200}'
    a('s_waitcnt lgkmcnt(0)')
    srd(a,sO,50,51,2048*2560)
    a(f'v_add_u32 v{vTq+1}, 51200, v{vTq}')
    wbase(0)
    for cp in range(5):
        a(trr(0,cp,0)); a(trr(0,cp,1))
    for s in range(20):
        if s+1<20: wbase(s+1)
        nxt=[trr(s+1,cp,h) for cp in range(5) for h in range(2)] if s+1<20 else []
        xl=xloads(s+XD)
        buf=vWf+(s&1)*20
        younger=sum(nl(t) for t in range(s+1,min(s+XD,20)))
        a(f's_waitcnt lgkmcnt(0) vmcnt({younger})')
        k=0
        for cp in range(5):
            for u in range(2):
                ac=vAcc+(cp*2+u)*4
                a(f'v_mfma_f32_16x16x32_bf16 {vr(ac,4)}, {vr(buf+cp*4,4)}, {vr(vX+(s*2+u)*4,4)}, {vr(ac,4)}')
                for _ in range(2 if k<5 else 0):
                    if nxt: a(nxt.pop(0))
                if k>=5:
                    for _ in range(2):
                        if xl: a(xl.pop(0))
                k+=1
        assert not xl
    a('s_nop 7')
    p.stamp(13)
    a(f's_mul_i32 s{st0}, s{sBR}, 1280')
    a(f's_mul_i32 s{st1}, s{sNT}, 160')
    a(f's_add_u32 s{st0}, s{st0}, s{st1}')
    a(f's_add_u32 s{st1}, s{st0}, {16*2560}')
    for u in range(2):
        for cp in range(5):
            b=vAcc+(cp*2+u)*4
            a(f'v_cvt_pk_bf16_f32 v{b}, v{b}, v{b+1}')
            a(f'v_cvt_pk_bf16_f32 v{b+1}, v{b+2}, v{b+3}')
        for cp in (0,2):
            b=vAcc+(cp*2+u)*4; b2=vAcc+((cp+1)*2+u)*4
            a(f'v_mov_b32 v{b+2}, v{b2}')
            a(f'v_mov_b32 v{b+3}, v{b2+1}')
            a('s_nop 1')
            a(f'v_permlane16_swap_b32 v{b}, v{b+2}')
            a(f'v_permlane16_swap_b32 v{b+1}, v{b+3}')
            a('s_nop 1')
            a(f'buffer_store_dwordx4 {vr(b,4)}, v{vOut}, s[{sO}:{sO+3}], s{st0+u} offen offset:{cp*32} {SO}')
        b=vAcc+(4*2+u)*4
        a(f'buffer_store_dwordx2 {vr(b,2)}, v{vt3}, s[{sO}:{sO+3}], s{st0+u} offen offset:128 {SO}')
    return vEnd

def build(**kw):
    a=A(); p=Prof(a)
    a.raw(f'.globl {KNAME}'); a.raw('.p2align 8'); a.raw(f'.type {KNAME},@function'); a.lab(KNAME)
    a('s_cmp_ge_u32 s2, 256')
    a('s_cbranch_scc1 L_exit')
    p.real(0); p.stamp(0)
    a(f's_load_dwordx4 s[{sDBG}:{sDBG+3}], s[0:1], 56' if False else f's_load_dwordx2 s[{sDBG}:{sDBG+1}], s[0:1], 56')
    a(f's_load_dwordx2 s[{sWS}:{sWS+1}], s[0:1], 64')
    a('s_load_dwordx4 s[16:19], s[0:1], 0')
    a('s_load_dwordx4 s[20:23], s[0:1], 24')
    a(f's_mov_b32 s{sWG}, s2')
    a('v_lshrrev_b32 v2, 6, v0')
    a('s_nop 0')
    a(f'v_readfirstlane_b32 s{sWV}, v2')
    a(f's_cmp_lg_u32 s{sWG}, 0')
    a('s_cbranch_scc1 L_notok')
    a(f's_cmp_lg_u32 s{sWV}, 4')
    a('s_cbranch_scc1 L_notok')
    a('s_memrealtime s[56:57]')
    a('s_waitcnt lgkmcnt(0)')
    a('s_or_b32 s56, s56, 1')
    a('s_mov_b64 exec, 1')
    a('v_mov_b32 v2, 0')
    a('v_mov_b32 v3, s56')
    a(f'global_store_dword v2, v3, s[{sDBG}:{sDBG+1}] sc1')
    a('s_mov_b64 exec, -1')
    a.lab('L_notok')
    if CPF:
        a(f's_cmp_lg_u32 s{sWV}, 5')
        a('s_cbranch_scc1 L_nocpf')
        a('s_getpc_b64 s[56:57]')
        a.lab('L_pc')
        a(f's_lshr_b32 s58, s{sWG}, 3')
        a('s_and_b32 s58, s58, 31')
        a('s_lshl_b32 s58, s58, 10')
        a('v_and_b32 v2, 63, v0')
        a('v_lshlrev_b32 v2, 4, v2')
        a('v_add_u32 v2, s58, v2')
        a(f'v_min_u32 v2, CODE_BYTES-16, v2')
        a('global_load_dwordx4 v[84:87], v2, s[56:57]')
        a.lab('L_nocpf')
    v1=phase1(a,p,**kw.get('p1',{}))
    v2,info=phase2(a,p,**kw.get('p2',{}))
    v3=phase3(a,p,info,**kw.get('p3',{}))
    a.lab('L_done')
    if PROF:
        a('s_waitcnt vmcnt(0)')
        p.real(1); p.dump()
    a('s_endpgm')
    a.lab('L_exit')
    a('s_endpgm')
    a.lab('L_code_end')
    a.raw('.set CODE_BYTES, (L_code_end - L_pc) & 0xfffffff0' if CPF else '')
    vg=max(v1,v2,v3)
    desc=f'''.section .rodata,"a"
.p2align 6
.amdhsa_kernel {KNAME}
  .amdhsa_next_free_vgpr {vg}
  .amdhsa_next_free_sgpr 102
  .amdhsa_accum_offset {(vg+3)//4*4}
  .amdhsa_group_segment_fixed_size 0
  .amdhsa_kernarg_size 72
  .amdhsa_user_sgpr_count 2
  .amdhsa_user_sgpr_kernarg_segment_ptr 1
  .amdhsa_system_sgpr_workgroup_id_x 1
.end_amdhsa_kernel
'''
    hdr=open('cdna_kernels/'+NAME+'.s.ref').read().split('\n')
    out=[]
    for l in hdr:
        if l.startswith('; @launch'): out.append('; @launch grid=(256,1,1) block=(512,1,1) lds=163840'); continue
        if not l.startswith(';'): break
        out.append(l)
    out += [
     '; One persistent launch, one workgroup per CU, three phases chained by flags in d_ws (tagged with a per-launch token kept in d_debug[0]):',
     ';  1. QKV projections (128x128 tiles, branch B tile then branch A tile; waves 4-7 stage X/W by LDS-DMA, waves 0-3 run the MFMAs);',
     ';     Q (pre-scaled by log2(e)/sqrt(20)), K and V are written as MFMA fragment images.',
     ';  2. attention per (head, 256 queries): full attention for B (64 queries per wave, key range split over wave pairs and merged),',
     ';     sliding window for A.  Softmax subtracts the max of a sample of the keys of the row; if the row sum shows that this',
     ';     stand-in was unsafe (>= 2^100 or NaN) the tile is recomputed with the exact row max.',
     ';  3. output projection (128 tokens x 80 columns per workgroup).']
    out.append('.amdgcn_target "amdgcn-amd-amdhsa--gfx950"'); out.append('.text')
    return '\n'.join(out)+'\n'+a.txt()+desc

if __name__=='__main__':
    if len(sys.argv)>2 and sys.argv[2]=='prof': PROF=True
    kw=eval(sys.argv[3]) if len(sys.argv)>3 else {}
    if 'CPF' in kw: CPF=kw.pop('CPF')
    if 'JMAP' in kw: JMAP=kw.pop('JMAP')
    if 'NOPOLL3' in kw: NOPOLL3=kw.pop('NOPOLL3')
    if 'OPM' in kw: OPM=kw.pop('OPM')
    if 'RT' in kw: RT=kw.pop('RT')
    if 'BPROF' in kw: BPROF=kw.pop('BPROF')
    if 'POLL' in kw: POLLC.update(kw.pop('POLL'))
    if 'SCO' in kw: SCO=kw.pop('SCO')
    if 'SO' in kw: SO=kw.pop('SO')
    if 'SL' in kw: SL=kw.pop('SL')
    if 'SC' in kw: SC=kw.pop('SC')
    open(sys.argv[1],'w').write(build(**kw))
```
